```python
import torch

def _softmax(x, axis=-1):
    return torch.softmax(x, dim=axis)
def _gelu(x):
    return torch.nn.functional.gelu(x, approximate="tanh")
def _silu(x):
    return torch.nn.functional.silu(x)
def _sigmoid(x):
    return torch.sigmoid(x)
def _layernorm(x, axis=-1, eps=1e-5):
    m = x.mean(dim=axis, keepdim=True)
    v = x.var(dim=axis, keepdim=True, unbiased=False)
    return (x - m) / torch.sqrt(v + eps)
def _scatter_add(tgt, idx, src, axis=0):
    return tgt.clone().index_add_(axis, idx, src)
def _segment_sum(src, seg, n):
    out = torch.zeros((n,) + src.shape[1:], dtype=src.dtype)
    return out.index_add_(0, seg, src)
def _pad(x, pw):
    flat = tuple(v for pair in reversed(pw) for v in pair)
    return torch.nn.functional.pad(x, flat)

kernel_name = 'parallel_sum__spectral_gfnet__glu_gated_swiglu__prompt'

def setup_inputs():

    _w = (lambda a: (lambda t: t.to(torch.bfloat16) if t.is_floating_point() else t)(torch.as_tensor(a)))
    def _A_setup():
        B, S, D = 1, 2048, 512
        Df = D // 2 + 1
        return {
            "x": _w((lambda *s: torch.randn(*s, dtype=torch.bfloat16) * 0.05)(B, S, D)),
            "w_r": _w((lambda *s: torch.randn(*s, dtype=torch.bfloat16) * 0.4)(S, Df) * 0.02),
            "w_i": _w((lambda *s: torch.randn(*s, dtype=torch.bfloat16) * 0.4)(S, Df) * 0.02),
        }
    _A_in = _A_setup()

    def _B_setup():
        B, S, D, F = 1, 2048, 512, 1376
        return {
            "x": _w((lambda *s: torch.randn(*s, dtype=torch.bfloat16) * 0.05)(B, S, D)),
            "w1": _w((lambda *s: torch.randn(*s, dtype=torch.bfloat16) * 0.2)(D, F) * (2.0 / D) ** 0.5),
            "w3": _w((lambda *s: torch.randn(*s, dtype=torch.bfloat16) * 0.2)(D, F) * (2.0 / D) ** 0.5),
            "w2": _w((lambda *s: torch.randn(*s, dtype=torch.bfloat16) * 0.2)(F, D) * (2.0 / F) ** 0.5),
        }
    _B_in = _B_setup()

    return {
        "A_x": _A_in["x"],
        "A_w_r": _A_in["w_r"],
        "A_w_i": _A_in["w_i"],
        "B_x": _B_in["x"],
        "B_w1": _B_in["w1"],
        "B_w3": _B_in["w3"],
        "B_w2": _B_in["w2"],
    }

def reference(A_x, A_w_r, A_w_i, B_x, B_w1, B_w3, B_w2):
    def _A_ref(x, w_r, w_i):
        B, S, D = x.shape
        X = (lambda x, axes=(-2,-1): torch.fft.rfft2(x.float(), dim=axes))(x, axes=(-2, -1))
        W = w_r + 1j * w_i
        X = X * W
        y = (lambda x, s, axes=(-2,-1): torch.fft.irfft2(x, s=s, dim=axes).to(torch.bfloat16))(X, (S, D), axes=(-2, -1))
        return y

    def _B_ref(x, w1, w3, w2):
        gate = torch.einsum("bsd,df->bsf", x, w1)
        up = torch.einsum("bsd,df->bsf", x, w3)
        h = _silu(gate) * up
        out = torch.einsum("bsf,fd->bsd", h, w2)
        return out

    x = A_x
    xn = _layernorm(x, axis=-1)
    return x + _A_ref(xn, A_w_r, A_w_i) + _B_ref(xn, B_w1, B_w3, B_w2)
```

```python
import re

def _regs(tok):
    tok = tok.strip()
    tok = re.sub(r"^-", "", tok)
    m = re.match(r"^(?:abs\(|\|)(.*?)(?:\)|\|)$", tok)
    if m: tok = m.group(1)
    m = re.match(r"^([vas])(\d+)$", tok)
    if m: return [(m.group(1), int(m.group(2)))]
    m = re.match(r"^([vas])\[(\d+):(\d+)\]$", tok)
    if m: return [(m.group(1), i) for i in range(int(m.group(2)), int(m.group(3)) + 1)]
    if tok in ("vcc", "vcc_lo", "vcc_hi"): return [("s", 106), ("s", 107)]
    if tok in ("exec", "exec_lo", "exec_hi"): return [("s", 126), ("s", 127)]
    if tok == "m0": return [("s", 124)]
    return []

TRANS = ("v_exp_f32", "v_log_f32", "v_rcp_f32", "v_rsq_f32", "v_sqrt_f32", "v_sin_f32", "v_cos_f32")

class Ins:
    def __init__(self, text):
        self.text = text
        t = text.split(";")[0].strip()
        parts = t.split(None, 1)
        self.op = parts[0]
        rest = parts[1] if len(parts) > 1 else ""
        ops = [o.strip() for o in re.split(r",(?![^\[]*\])", rest)] if rest else []
        if ops:
            last = ops[-1].split()
            self.mods = last[1:]
            ops[-1] = last[0] if last else ""
        else:
            self.mods = []
        self.ops = ops
        op = self.op
        R = [_regs(o) for o in ops]
        flat = lambda l: [x for y in l for x in y]
        self.w = []; self.r = []; self.srcc = []; self.ab = []
        self.kind = "other"
        self.states = 1
        if op == "s_nop":
            self.states = int(ops[0], 0) + 1; self.kind = "nop"
        elif op.startswith("v_mfma"):
            self.kind = "mfma"; self.w = R[0]; self.ab = R[1] + R[2]; self.srcc = R[3]; self.r = self.ab + self.srcc
            self.passes = 8 if "32x32x16" in op else 4
        elif op.startswith("v_"):
            self.kind = "valu"
            if "permlane" in op and "swap" in op:
                self.w = R[0] + R[1]; self.r = R[0] + R[1]
            elif re.match(r"v_(add|sub|subrev|addc|subb|subbrev)_co", op):
                self.w = R[0] + R[1]; self.r = flat(R[2:])
            else:
                self.w = R[0]; self.r = flat(R[1:])
                if re.match(r"v_(fmac|dot2c|pk_fmac|writelane)", op): self.r += R[0]
                if op.startswith("v_cndmask") and len(ops) == 3: self.r += _regs("vcc")
                if op.startswith("v_cmpx"): self.w += _regs("exec")
            self.dpp = ("_dpp" in op) or any(m.startswith(("row_", "quad_perm", "wave_")) for m in self.mods)
            if self.dpp: self.r += R[0]
            self.trans = op.replace("_e32", "").replace("_e64", "") in TRANS
            self.dot = op.startswith("v_dot")
        elif op.startswith("ds_"):
            self.kind = "ds"
            if "read" in op or "_rtn" in op or "permute" in op or "swizzle" in op:
                self.w = R[0]; self.r = flat(R[1:])
            else:
                self.r = flat(R)
        elif op.startswith(("buffer_", "global_")):
            self.kind = "vmem"
            self.lds = ("lds" in self.mods) or ("_lds_" in op)
            if "load" in op and not self.lds:
                self.w = R[0]; self.r = flat(R[1:])
                if "d16" in op: self.r += R[0]
            else:
                self.r = flat(R)
                if "atomic" in op and "sc0" in self.mods: self.w = R[0]
            self.wide_store = ("store" in op) and ("x3" in op or "x4" in op)
            if self.wide_store:
                self.sdata = R[0] if op.startswith("buffer") else R[1]
        elif op.startswith("s_"):
            self.kind = "salu"
            if not op.startswith(("s_cmp", "s_cbranch", "s_branch", "s_waitcnt", "s_barrier", "s_sleep", "s_setprio", "s_endpgm", "s_bitcmp")):
                self.w = R[0] if R else []; self.r = flat(R[1:])
            else:
                self.r = flat(R)

def need(p, c):
    n = 0
    pw, cr, cw = set(p.w), set(c.r), set(c.w)
    vec = lambda s: {x for x in s if x[0] in "va"}
    sca = lambda s: {x for x in s if x[0] == "s"}
    if p.kind == "mfma":
        big = {8: 12, 4: 8}[p.passes]
        if c.kind == "mfma":
            if pw & set(c.ab): n = max(n, big)
            if pw & set(c.srcc):
                if not (p.w == c.srcc and p.passes == c.passes): n = max(n, {8: 10, 4: 6}[p.passes])
            elif pw & cw: n = max(n, big)
        elif c.kind in ("valu", "ds", "vmem"):
            if pw & (cr | cw): n = max(n, big)
        if c.kind == "valu" and set(p.srcc) & cw: n = max(n, {8: 7, 4: 3}[p.passes])
    if p.kind == "valu":
        if c.kind == "mfma":
            if vec(pw) & cr: n = max(n, 3 if p.dot else 2)
            if ("s", 126) in pw: n = max(n, 4)
        if c.kind == "valu":
            if p.trans and not c.trans and vec(pw) & cr: n = max(n, 1)
            if p.dot and vec(pw) & (cr | cw):
                same_c = (c.op == p.op) and not (vec(pw) & set(sum([_regs(o) for o in c.ops[1:3]], [])))
                if not same_c: n = max(n, 3)
            if sca(pw) & cr:
                n = max(n, 4 if c.op.startswith(("v_readlane", "v_writelane")) else 2)
            if c.op.startswith(("v_readlane", "v_readfirstlane")) and vec(pw) & cr: n = max(n, 1)
            if c.dpp and vec(pw) & cr: n = max(n, 2)
            if c.dpp and ("s", 126) in pw: n = max(n, 5)
            if "permlane" in c.op and vec(pw) & cr: n = max(n, 2)
            if ("s", 126) in pw and c.op.startswith(("v_readlane", "v_readfirstlane", "v_writelane", "v_permlane")): n = max(n, 4)
        if c.kind in ("ds", "vmem") and p.dot and vec(pw) & cr: n = max(n, 3)
        if c.kind in ("ds", "vmem") and p.trans and vec(pw) & cr: n = max(n, 1)
        if c.kind == "vmem" and sca(pw) & cr: n = max(n, 5)
        if c.kind == "salu" and sca(pw) & cr: n = max(n, 1)
    if p.kind in ("ds", "vmem") and c.kind == "valu" and c.dpp and vec(pw) & cr: n = max(n, 2)
    if p.kind == "salu" and ("s", 124) in pw and c.kind == "vmem" and c.lds: n = max(n, 1)
    if p.kind == "vmem" and p.wide_store and set(p.sdata) & cw: n = max(n, 2)
    return n

def hazard_pass(lines):
    out = []; hist = []; added = 0
    for l in lines:
        s = l.strip()
        if not s or s.startswith((";", ".")) or s.endswith(":"):
            out.append(l); continue
        c = Ins(s)
        dist = 0; req = 0
        for p in reversed(hist):
            req = max(req, need(p, c) - dist)
            dist += p.states
            if dist > 24: break
        while req > 0:
            k = min(req, 16)
            nop = Ins(f"s_nop {k-1}")
            out.append(f"    s_nop {k-1}"); hist.append(nop); req -= k; added += 1
        out.append(l); hist.append(c)
        if c.op == "s_endpgm" or c.op == "s_branch": hist = []
        hist = hist[-32:]
    return out, added

class Asm:
    def __init__(self):
        self.lines = []
        self.launch = []
        self.kernels = []
        self._lab = 0
    def __call__(self, s):
        for l in s.strip("\n").split("\n"):
            l = l.strip()
            if not l: continue
            self.lines.append(l if l.endswith(":") else "    " + l)
    def label(self, base="L"):
        self._lab += 1
        return f"{base}_{self._lab}"
    def begin_kernel(self, name):
        self.lines += [f".globl {name}", ".p2align 8", f".type {name},@function", f"{name}:"]
    def add_kernel(self, name, vgpr, sgpr=102, accum=None):
        self.kernels.append((name, vgpr, sgpr, accum))
    def add_launch(self, name, grid, block, lds):
        self.launch.append((name, grid, block, lds))
    def text(self, header="", single=False, hazards=True):
        o = []
        if header: o += header.strip("\n").split("\n")
        for (n, g, b, l) in self.launch:
            if single:
                o.append(f"; @launch grid=({g},1,1) block=({b},1,1) lds={l}")
            else:
                o.append(f"; @launch kernel={n} grid=({g},1,1) block=({b},1,1) lds={l}")
        o.append('.amdgcn_target "amdgcn-amd-amdhsa--gfx950"')
        o.append(".text")
        body = self.lines
        if hazards:
            body, self.nops_added = hazard_pass(body)
        o += body
        o.append('.section .rodata,"a"')
        for (n, v, s, acc) in self.kernels:
            if acc is None: acc = min(256, (v + 3) // 4 * 4)
            o += [".p2align 6", f".amdhsa_kernel {n}", f"  .amdhsa_next_free_vgpr {v}", f"  .amdhsa_next_free_sgpr {s}",
                  f"  .amdhsa_accum_offset {acc}", "  .amdhsa_group_segment_fixed_size 0", "  .amdhsa_kernarg_size 80",
                  "  .amdhsa_user_sgpr_count 2", "  .amdhsa_user_sgpr_kernarg_segment_ptr 1",
                  "  .amdhsa_system_sgpr_workgroup_id_x 1", ".end_amdhsa_kernel"]
        return "\n".join(o) + "\n"

def srd(a, d, base, nbytes):
    a(f"s_mov_b32 s{d}, s{base}")
    a(f"s_and_b32 s{d+1}, s{base+1}, 0xffff")
    a(f"s_mov_b32 s{d+2}, {nbytes}")
    a(f"s_mov_b32 s{d+3}, 0x00020000")

import struct
def f32(x):
    return "0x%08x" % struct.unpack("<I", struct.pack("<f", x))[0]
def vr(b, n=1):
    return f"v{b}" if n == 1 else f"v[{b}:{b+n-1}]"
```

```python
from pieces import *

class DsQ:
    def __init__(self, a): self.a = a; self.q = []
    def op(self, text, tag=None): self.a(text); self.q.append(tag)
    def wait(self, tag):
        idx = [i for i, t in enumerate(self.q) if t == tag]
        if not idx: return
        n = len(self.q) - 1 - idx[-1]
        assert n <= 15, n
        self.a(f"s_waitcnt lgkmcnt({n})")
        self.q = self.q[idx[-1] + 1:]
    def drain(self): self.a("s_waitcnt lgkmcnt(0)"); self.q = []

def plan_slots():
    free = [(16, 0), (17, 0), (18, 0)] + [(4 * w + c, c + 1) for c in range(4) for w in range(4)]
    cells = {}
    def alloc(key, release):
        free.sort(key=lambda t: t[1])
        s, req = free.pop(0)
        cells[key] = (s, req)
        free.append((s, release))
    for q in range(4):
        alloc(("A", "X", q), 5 + q); alloc(("C", "X", q), 13 + q); alloc(("A", "Y", q), 5 + q)
    for q in range(4):
        alloc(("B", "Y", q), 9 + q); alloc(("C", "Y", q), 13 + q); alloc(("B", "X", q), 9 + q)
    return cells, free
CELLS, FREE_AFTER = plan_slots()

S_I, S_J, S_P, S_NP, S_ROT = 84, 85, 86, 87, 88

def g1_ids(a):
    a("s_and_b32 s40, s2, 7\ns_lshr_b32 s41, s2, 3")
    a(f"s_and_b32 s{S_I}, s40, 1\ns_lshl_b32 s{S_I}, s{S_I}, 3\ns_and_b32 s42, s41, 7\ns_add_u32 s{S_I}, s{S_I}, s42")
    a(f"s_lshr_b32 s{S_J}, s40, 1\ns_lshl_b32 s{S_J}, s{S_J}, 2\ns_lshr_b32 s42, s41, 3\ns_add_u32 s{S_J}, s{S_J}, s42")
    a(f"s_mul_i32 s{S_P}, s{S_J}, 43\ns_add_u32 s{S_NP}, s{S_P}, 43\ns_lshr_b32 s{S_P}, s{S_P}, 4\ns_lshr_b32 s{S_NP}, s{S_NP}, 4\ns_sub_u32 s{S_NP}, s{S_NP}, s{S_P}")
    a(f"s_add_u32 s{S_ROT}, s{S_I}, s{S_J}\ns_and_b32 s{S_ROT}, s{S_ROT}, 3")

X0, ACC, AF = 128, (64, 96), 32
PD = 3

def g1_x_issue_setup(a):
    a(f"s_and_b32 s40, s3, 1\ns_lshr_b32 s41, s3, 1\ns_lshl_b32 s41, s41, 5\ns_lshl_b32 s50, s{S_I}, 1\ns_add_u32 s50, s50, s40\ns_add_u32 s50, s50, s41")
    a("s_lshl_b32 s51, s3, 15")
    for c in range(4):
        a(f"s_add_u32 s40, s{S_ROT}, {c}\ns_and_b32 s40, s40, 3\ns_lshl_b32 s40, s40, 8\ns_lshl_b32 s{52+c}, s50, 15\ns_add_u32 s{52+c}, s{52+c}, s40")
    a("v_lshrrev_b32 v20, 4, v1\nv_and_b32 v21, 15, v1\nv_xor_b32 v21, v21, v20\nv_lshlrev_b32 v21, 4, v21\nv_lshl_add_u32 v16, v20, 10, v21")
    for e in range(1, 4): a(f"v_xor_b32 v{16+e}, {64*e}, v16")

def g1_x_issue(a, c):
    for e in range(8):
        a(f"s_add_u32 m0, s51, {c*SLOT + e*1024}")
        a(f"s_add_u32 s40, s{52+c}, {e*4096}")
        a(f"buffer_load_dwordx4 v{16+(e&3)}, {sr(S_X)}, s40 offen lds")

def epilogue_ops(acc, fb_sgpr, packed, st_flags):
    ops = []
    for tau in range(2):
        out = 24 + 4 * tau
        for p in range(4):
            g, u = acc + 16*tau + 2*p, acc + 16*tau + 8 + 2*p
            e, q = 16 + 4*(p & 1), 18 + 4*(p & 1)
            if packed:
                ops += [f"v_pk_mul_f32 v[{e}:{e+1}], v[{g}:{g+1}], v[10:11] op_sel_hi:[1,0]",
                        f"v_pk_mul_f32 v[{q}:{q+1}], v[{g}:{g+1}], v[{u}:{u+1}]",
                        f"v_exp_f32 v{e}, v{e}", f"v_exp_f32 v{e+1}, v{e+1}",
                        f"v_pk_fma_f32 v[{e}:{e+1}], v[{e}:{e+1}], v[10:11], v[10:11] op_sel:[0,1,1] op_sel_hi:[1,1,1]",
                        f"v_rcp_f32 v{e}, v{e}", f"v_rcp_f32 v{e+1}, v{e+1}",
                        f"v_pk_mul_f32 v[{q}:{q+1}], v[{q}:{q+1}], v[{e}:{e+1}]"]
            else:
                ops += [f"v_mul_f32 v{e}, v10, v{g}", f"v_mul_f32 v{e+1}, v10, v{g+1}",
                        f"v_exp_f32 v{e}, v{e}", f"v_mul_f32 v{q}, v{g}, v{u}",
                        f"v_exp_f32 v{e+1}, v{e+1}", f"v_mul_f32 v{q+1}, v{g+1}, v{u+1}",
                        f"v_fma_f32 v{e}, v{e}, v11, v11", f"v_fma_f32 v{e+1}, v{e+1}, v11, v11",
                        f"v_rcp_f32 v{e}, v{e}", f"v_rcp_f32 v{e+1}, v{e+1}",
                        f"v_mul_f32 v{q}, v{q}, v{e}", f"v_mul_f32 v{q+1}, v{q+1}, v{e+1}"]
            ops.append(f"v_cvt_pk_bf16_f32 v{out+p}, v{q}, v{q+1}")
        ops.append(f"buffer_store_dwordx4 v[{out}:{out+3}], v3, {sr(S_WS)}, s{fb_sgpr} offen offset:{1024*tau} {st_flags}")
    return ops

def g1_main(a, st_flags="", after_pass=None):
    dq = DsQ(a)
    slow = []
    a(f"s_lshl_b32 s40, s3, 2\ns_add_u32 s40, s40, {MISC}\nv_mov_b32 v9, s40")
    a("v_lshlrev_b32 v3, 4, v1")
    a("v_and_b32 v20, 31, v1\nv_lshrrev_b32 v21, 5, v1\nv_and_b32 v22, 15, v1\nv_xor_b32 v21, v21, v22\nv_lshlrev_b32 v21, 4, v21")
    a("v_lshl_add_u32 v24, v20, 8, v21\nv_add_u32 v24, s51, v24")
    for j in range(1, 8): a(f"v_xor_b32 v{24+j}, {32*j}, v24")
    a("v_bfe_u32 v20, v1, 4, 1")
    a("v_lshrrev_b32 v21, 5, v1")
    a("v_bfe_u32 v22, v1, 2, 2")
    a(f"v_add_u32 v8, s{S_P}, v22\nv_and_b32 v8, 1, v8")
    a("v_lshrrev_b32 v22, 1, v22\nv_lshl_add_u32 v22, v21, 2, v22\nv_lshl_add_u32 v22, v8, 1, v22\nv_lshlrev_b32 v22, 6, v22")
    a("v_lshl_add_u32 v22, v20, 12, v22\nv_lshl_add_u32 v22, v20, 5, v22")
    a("v_and_b32 v21, 1, v1\nv_lshl_add_u32 v22, v21, 4, v22\nv_bfe_u32 v21, v1, 1, 1\nv_lshl_add_u32 v4, v21, 3, v22")
    a("v_xor_b32 v5, 128, v4\nv_xor_b32 v6, 32, v4\nv_xor_b32 v7, 160, v4")
    a("s_mov_b32 s56, 0x3f803f80\ns_mov_b32 s57, 0x00003f80\ns_mov_b32 s58, 0x3f800000")
    a(f"s_mul_i32 s60, s50, 86\ns_lshl_b32 s40, s{S_P}, 1\ns_add_u32 s60, s60, s40\ns_lshl_b32 s60, s60, 10\ns_add_u32 s60, s60, {WS_H}")
    a(f"s_add_u32 s62, s60, 2048\ns_sub_u32 s40, s{S_NP}, 1\ns_lshl_b32 s40, s40, 11\ns_add_u32 s61, s60, s40")
    PROG = 9
    def progress(val, areg):
        a(f"v_mov_b32 v14, {val}")
        dq.op(f"ds_write_b32 v{areg}, v14 offset:{FL_FREE - MISC}")
    def reads(c):
        for j in range(8):
            r = X0 + 32*c + 4*j
            dq.op(f"ds_read_b128 v[{r}:{r+3}], v{24+j} offset:{c*SLOT}", ("x", c, j))
        progress(c + 1, PROG)
    def sums(c):
        for j in range(8):
            if j % 2 == 0: dq.wait(("x", c, j + 1))
            for r in range(X0 + 32*c + 4*j, X0 + 32*c + 4*j + 4):
                first = (r == X0)
                a(f"v_dot2_f32_bf16 v10, v{r}, s56, {'0' if first else 'v10'}")
                a(f"v_dot2_f32_bf16 v11, v{r}, v{r}, {'0' if first else 'v11'}")
    a("s_waitcnt vmcnt(8)"); reads(0)
    g1_x_issue(a, 2)
    sums(0)
    a("s_waitcnt vmcnt(8)"); reads(1)
    g1_x_issue(a, 3)
    sums(1)
    a("s_waitcnt vmcnt(8)"); reads(2); sums(2)
    a("s_waitcnt vmcnt(0)"); reads(3)
    dq.op(f"ds_read_b32 v2, v9 offset:{FL_FULL - MISC}", "poll")
    sums(3)
    a("v_mov_b32 v12, v10\nv_mov_b32 v13, v11")
    a("v_permlane32_swap_b32 v12, v10\nv_permlane32_swap_b32 v13, v11")
    a("v_add_f32 v10, v10, v12\nv_add_f32 v11, v11, v13")
    ln_scalars(a, 10, 11, None)
    bf_round(a, 10)
    a("v_xor_b32 v31, 0x80000000, v10")
    a(f"v_mul_f32 v10, {f32(-math.log2(math.e))}, v11")
    a("v_mul_f32 v11, v11, v11\nv_rcp_f32 v11, v11")
    def center(j):
        ops = []
        for r in range(4):
            x = X0 + 4*j + r; t = 16 + 2*r
            ops += [f"v_dot2_f32_bf16 v{t}, v{x}, s57, v31", f"v_dot2_f32_bf16 v{t+1}, v{x}, s58, v31"]
        for r in range(4):
            ops.append(f"v_cvt_pk_bf16_f32 v{X0+4*j+r}, v{16+2*r}, v{17+2*r}")
        return ops
    PASS = "ABC"
    def wreads(g):
        ps, q, j = PASS[g // 32], (g % 32) // 8, g % 8
        if j == 0:
            need_full = {"A": q + 1, "B": q + 5, "C": 0}[ps]
            if need_full:
                back, sl = a.label("g1b"), a.label("g1s")
                dq.wait("poll")
                a("v_readfirstlane_b32 s40, v2")
                a(f"s_cmp_ge_u32 s40, {need_full}")
                a(f"s_cbranch_scc0 {sl}")
                a(f"{back}:")
                slow.append((sl, back, need_full))
            bx, by = CELLS[(ps, "X", q)][0] * SLOT, CELLS[(ps, "Y", q)][0] * SLOT
            a(f"s_mov_b32 s40, {by - bx}\ns_mov_b32 s41, {bx}")
            a("v_mul_i32_i24 v0, s40, v8")
            for i in range(4): a(f"v_add3_u32 v{12+i}, v0, v{4+i}, s41")
        b = AF + 8 * (g % 4)
        for tau in range(2):
            for rd in range(2):
                dq.op(f"ds_read_b64_tr_b16 v[{b+4*tau+2*rd}:{b+4*tau+2*rd+1}], v{12+2*tau+rd} offset:{512*j}", ("w", g, tau))
        if j == 7:
            a(f"v_mov_b32 v0, {5 + g // 8}")
            dq.op(f"ds_write_b32 v{PROG}, v0 offset:{FL_FREE - MISC}")
        if j == 5 and g < 56:
            dq.op(f"ds_read_b32 v2, v9 offset:{FL_FULL - MISC}", "poll")
    for g in range(PD): wreads(g)
    for o in center(0) + center(1): a(o)
    fin2, done = a.label("g1fin2"), a.label("g1done")
    for g in range(96):
        ps, j = g // 32, g % 32
        acc = ACC[ps & 1]
        fill = []
        if ps == 0:
            if j < 30: fill = center(j + 2)
        else:
            ep = EP[ps]
            lo, hi = (len(ep) * max(j - 1, 0)) // 28, (len(ep) * max(j, 0)) // 28
            fill = ep[min(lo, len(ep)):min(hi, len(ep))]
        if j == 0 and ps == 0:
            EP = {1: epilogue_ops(ACC[0], 60, False, st_flags), 2: epilogue_ops(ACC[1], 61, False, st_flags)}
        b = AF + 8 * (g % 4)
        half = (len(fill) + 1) // 2
        for tau in range(2):
            dq.wait(("w", g, tau))
            d = acc + 16 * tau
            a(f"v_mfma_f32_32x32x16_bf16 v[{d}:{d+15}], v[{b+4*tau}:{b+4*tau+3}], v[{X0+4*j}:{X0+4*j+3}], " + ("0" if j == 0 else f"v[{d}:{d+15}]"))
            if tau == 0 and g + PD < 96: wreads(g + PD)
            for o in (fill[:half] if tau == 0 else fill[half:]): a(o)
        if after_pass and j == 31 and ps >= 1: after_pass(ps)
        if g == 63:
            a(f"s_cmp_eq_u32 s{S_NP}, 2")
            a(f"s_cbranch_scc1 {fin2}")
    for o in epilogue_ops(ACC[0], 62, True, st_flags): a(o)
    a(f"s_branch {done}")
    for (sl, back, n) in slow:
        a(f"{sl}:")
        lds_wait_ge(a, 9, FL_FULL - MISC, n, 2, 40, 41)
        a(f"s_branch {back}")
    a(f"{fin2}:")
    a("s_nop 15")
    for o in epilogue_ops(ACC[1], 61, True, st_flags): a(o)
    a(f"{done}:")

def g1_loader(a):
    a(f"v_mov_b32 v2, {MISC}")
    a("v_and_b32 v16, 3, v1\nv_lshl_add_u32 v16, v16, 2, v2")
    a("v_lshrrev_b32 v8, 2, v1\nv_and_b32 v9, 3, v1\nv_lshlrev_b32 v9, 4, v9\nv_xor_b32 v10, 2, v8")
    a("v_mul_u32_u24 v8, 5504, v8\nv_mul_u32_u24 v10, 5504, v10\nv_xor_b32 v11, 32, v9")
    a("v_add_u32 v4, v8, v9\nv_add_u32 v5, v8, v11\nv_add_u32 v6, v10, v9\nv_add_u32 v7, v10, v11")
    for q in range(4):
        a(f"s_add_u32 s40, s{S_ROT}, {q}\ns_and_b32 s40, s40, 3\ns_mul_i32 s{44+q}, s40, {128*2752}")
    a(f"s_and_b32 s40, s{S_P}, 1\ns_mul_i32 s48, s40, 2752\ns_sub_u32 s49, 2752, s48")
    a(f"s_lshl_b32 s40, s{S_P}, 6\ns_add_u32 s48, s48, s40\ns_add_u32 s49, s49, s40")
    lds_wait_ge(a, 2, FL_A_DONE - MISC, 4, 12, 40, 41)
    two, done = a.label("ld2"), a.label("lddone")
    a(f"s_cmp_eq_u32 s{S_NP}, 2")
    a(f"s_cbranch_scc1 {two}")
    def publish(n):
        a(f"v_mov_b32 v3, {n}")
        a(f"ds_write_b32 v16, v3 offset:{FL_FULL - MISC}")
    def variant(np_):
        seen = 0
        for grp in range(8):
            st, q = grp // 4, grp % 4
            if st == 0: seq = [[("A", "X", 0), ("C", "X", 64)], [("A", "Y", 0)]]
            else:       seq = [[("C", "Y", 64), ("B", "Y", 64 * (np_ - 1))], [("B", "X", 64 * (np_ - 1))]]
            if np_ == 2: seq = [[c for c in s if c[0] != "C"] for s in seq]
            req = max(CELLS[(c[0], c[1], q)][1] for s in seq for c in s)
            if req > seen:
                ok = a.label("ldok")
                a(f"ds_read_b128 v[12:15], v2 offset:{FL_FREE - MISC}\ns_waitcnt lgkmcnt(0)")
                a("v_min_u32 v12, v12, v13\nv_min3_u32 v12, v12, v14, v15\nv_readfirstlane_b32 s40, v12")
                a(f"s_cmp_ge_u32 s40, {req}\ns_cbranch_scc1 {ok}")
                if grp:
                    a("s_waitcnt vmcnt(0)"); publish(grp)
                lds_wait_ge(a, 2, FL_FREE - MISC, req, 12, 40, 41, minof=4)
                a(f"{ok}:")
                seen = req
            cnt = 0
            for s in seq:
                cl = s[0][1]; ci = 0 if cl == "X" else 1
                a(f"s_add_u32 s42, s{44+q}, s{48+ci}")
                for g in range(4):
                    if g: a(f"s_add_u32 s42, s42, {32*2752}")
                    for mat in range(2):
                        for (ps, _, off) in s:
                            dst = CELLS[(ps, cl, q)][0] * SLOT + mat * 4096 + g * 1024
                            if dst - off >= 0:
                                a(f"s_mov_b32 m0, {dst - off}")
                                a(f"buffer_load_dwordx4 v{4+2*ci+mat}, {sr(S_W1 + 4*mat)}, s42 offen offset:{off} lds")
                            else:
                                a(f"s_mov_b32 m0, {dst}\ns_add_u32 s43, s42, {off}")
                                a(f"buffer_load_dwordx4 v{4+2*ci+mat}, {sr(S_W1 + 4*mat)}, s43 offen lds")
                            cnt += 1
            if grp:
                a(f"s_waitcnt vmcnt({cnt})"); publish(grp)
        a("s_waitcnt vmcnt(0)"); publish(8)
    variant(3)
    a(f"s_branch {done}")
    a(f"{two}:")
    variant(2)
    a(f"{done}:")

def init_flags(a):
    a(f"v_mov_b32 v2, {MISC}\nv_mov_b32 v4, 0\nv_mov_b32 v5, 0\nv_mov_b32 v6, 0\nv_mov_b32 v7, 0")
    for i in range(4): a(f"ds_write_b128 v2, v[4:7] offset:{16*i}")
    a("s_waitcnt lgkmcnt(0)")
```

```python
from gemm1 import *

PJ = [(43 * j) >> 4 for j in range(17)]
ORDER = [PJ[j] for j in range(16)] + [PJ[j+1] - 1 for j in range(16)] + [PJ[j] + 1 for j in range(16) if PJ[j+1] - PJ[j] == 3]
assert sorted(ORDER) == list(range(43))
S_T, S_CJ = 89, 90
FL_FULL2, FL_FREE2, FL_FULLE = MISC + 64, MISC + 80, MISC + 96
TROW = 272
TILE = 64 * TROW

def g2_ids(a):
    a("s_and_b32 s40, s2, 7\ns_lshr_b32 s41, s2, 3")
    a(f"s_lshl_b32 s{S_T}, s40, 2\ns_and_b32 s42, s41, 3\ns_add_u32 s{S_T}, s{S_T}, s42\ns_lshr_b32 s{S_CJ}, s41, 2")

def full_check(a, stubs, sfull, need, areg, off, vt):
    back, sl = a.label("fb"), a.label("fs")
    a(f"s_cmp_ge_u32 s{sfull}, {need}")
    a(f"s_cbranch_scc0 {sl}")
    a(f"{back}:")
    stubs.append((sl, back, sfull, need, areg, off, vt))

def emit_stubs(a, stubs):
    for (sl, back, sfull, need, areg, off, vt) in stubs:
        a(f"{sl}:")
        lds_wait_ge(a, areg, off, need, vt, sfull, 41)
        a(f"s_branch {back}")

HB, ACC2, AF2 = 84, 52, 20

def g2_h_issue(a, ld_flags="", lo=0, hi=43):
    for p in range(lo, hi):
        a(f"s_add_u32 s40, s50, {ORDER[p] * 2048}")
        a(f"buffer_load_dwordx4 v[{HB+4*p}:{HB+4*p+3}], v3, {sr(S_WS)}, s40 offen {ld_flags}")

def g2_main_setup(a):
    a(f"s_and_b32 s40, s3, 1\ns_lshl_b32 s40, s40, 5\ns_add_u32 s40, s40, s{S_T}\ns_mul_i32 s50, s40, 86")
    a(f"s_lshr_b32 s51, s3, 1\ns_add_u32 s50, s50, s51\ns_lshl_b32 s50, s50, 10\ns_add_u32 s50, s50, {WS_H}")
    a("v_lshlrev_b32 v3, 4, v1")

def g2_main(a, w2cells, tiles, vm_after=0):
    dq = DsQ(a); stubs = []
    a(f"s_lshl_b32 s40, s3, 2\ns_add_u32 s40, s40, {MISC}\nv_mov_b32 v10, s40")
    a("v_bfe_u32 v16, v1, 2, 2\nv_lshrrev_b32 v17, 5, v1\nv_lshl_add_u32 v17, v17, 3, v16\ns_lshl_b32 s40, s51, 4\nv_add_u32 v17, s40, v17")
    a("v_lshlrev_b32 v17, 7, v17\nv_lshrrev_b32 v16, 1, v16\nv_lshl_add_u32 v17, v16, 6, v17")
    a("v_bfe_u32 v16, v1, 4, 1\nv_lshl_add_u32 v17, v16, 5, v17\nv_and_b32 v16, 3, v1\nv_lshl_add_u32 v4, v16, 3, v17")
    a("v_xor_b32 v5, 64, v4")
    for w in (1, 2):
        a(f"v_add_u32 v{4+2*w}, {65536*w}, v4\nv_add_u32 v{5+2*w}, {65536*w}, v5")
    a("s_mov_b32 s52, 0")
    reuse = {c for c in range(22) if w2cells[c] in w2cells[c+1:]}
    def reads(p):
        c = p // 2
        if p % 2 == 0: full_check(a, stubs, 52, c + 1, 10, FL_FULL2 - MISC, 2)
        base = w2cells[c] * SLOT + (p % 2) * 4096
        w, off = base >> 16, base & 0xffff
        b = AF2 + 8 * (p % 4)
        for dl in range(2):
            for rd in range(2):
                dq.op(f"ds_read_b64_tr_b16 v[{b+4*dl+2*rd}:{b+4*dl+2*rd+1}], v{4+2*w+dl} offset:{off + 512*rd}", ("w", p, dl))
        if p % 2 == 1 and c in reuse:
            a(f"v_mov_b32 v0, {c + 1}")
            dq.op(f"ds_write_b32 v10, v0 offset:{FL_FREE2 - MISC}")
    for p in range(PD): reads(p)
    for p in range(43):
        b = AF2 + 8 * (p % 4)
        a(f"s_waitcnt vmcnt({42 - p + vm_after})")
        for dl in range(2):
            dq.wait(("w", p, dl))
            d = ACC2 + 16 * dl
            a(f"v_mfma_f32_32x32x16_bf16 v[{d}:{d+15}], v[{b+4*dl}:{b+4*dl+3}], v[{HB+4*p}:{HB+4*p+3}], " + ("0" if p == 0 else f"v[{d}:{d+15}]"))
            if dl == 0 and p + PD < 43: reads(p + PD)
    a(f"s_and_b32 s40, s3, 1\ns_mul_i32 s40, s40, {32*TROW}\ns_mul_i32 s41, s51, {tiles[1] - tiles[0]}\ns_add_u32 s40, s40, s41\ns_add_u32 s40, s40, {tiles[0]}")
    a(f"v_and_b32 v16, 31, v1\nv_mul_u32_u24 v16, {TROW}, v16\nv_lshrrev_b32 v17, 5, v1\nv_lshl_add_u32 v16, v17, 4, v16\nv_add_u32 v16, s40, v16")
    a("s_barrier")
    for dl in range(2):
        for g in range(4):
            r = ACC2 + 16*dl + 4*g
            a(f"ds_write_b128 v16, v[{r}:{r+3}] offset:{128*dl + 32*g}")
    return stubs

GF, ACCE, BE = 128, 64, 32

def g_consts(a, dts):
    for n, dt in enumerate(dts):
        a(f"v_and_b32 v4, 15, v1\ns_lshl_b32 s40, s{S_CJ}, 6\nv_add_u32 v4, s40, v4")
        a(f"v_add_u32 v4, {16*dt}, v4")
        a(f"v_cvt_f32_u32 v4, v4\nv_mul_f32 v4, {f32(1/512)}, v4\nv_mul_f32 v5, {f32(7.0)}, v4")
        a("v_lshrrev_b32 v6, 4, v1\nv_lshl_add_u32 v6, v6, 1, 1\nv_cvt_f32_u32 v6, v6\nv_mul_f32 v6, v6, v4")
        for i in range(64):
            if i: a(f"v_add_f32 v6, v6, v{4 if i & 1 else 5}")
            t = 8 + 2 * (i & 1)
            a(f"v_cos_f32 v{t}, v6\nv_sin_f32 v{t+1}, v6")
            if i: a(f"v_cvt_pk_bf16_f32 v{GF+64*n+i-1}, v{18-t}, -v{19-t}")
        a(f"v_cvt_pk_bf16_f32 v{GF+64*n+63}, v10, -v11")

def e_part(a, dts, ecells, tileA):
    dq = DsQ(a); stubs = []
    a(f"v_mov_b32 v2, {MISC}")
    a("v_lshrrev_b32 v8, 2, v1\nv_lshlrev_b32 v9, 7, v8\nv_bfe_u32 v8, v1, 3, 2\nv_lshl_add_u32 v9, v8, 5, v9")
    a("v_and_b32 v8, 3, v1\nv_lshl_add_u32 v4, v8, 3, v9")
    for nu in range(1, 4): a(f"v_xor_b32 v{4+nu}, {32*nu}, v4")
    a("s_mov_b32 s52, 0")
    def reads(js):
        c = js // 2
        if js % 2 == 0:
            full_check(a, stubs, 52, c + 1, 2, FL_FULLE - MISC, 3)
            for nu in range(4): a(f"v_add_u32 v{12+nu}, {ecells[c]*SLOT}, v{4+nu}")
        b = BE + 16 * (js % 2)
        for nu in range(4):
            for rd in range(2):
                dq.op(f"ds_read_b64_tr_b16 v[{b+4*nu+2*rd}:{b+4*nu+2*rd+1}], v{12+nu} offset:{(js % 2)*4096 + 2048*rd}", ("e", js, nu))
    reads(0)
    for js in range(16):
        b = BE + 16 * (js % 2)
        dq.wait(("e", js, 0))
        if js + 1 < 16: reads(js + 1)
        for nu in range(4):
            dq.wait(("e", js, nu))
            for n in range(len(dts)):
                d = ACCE + 16*n + 4*nu; g = GF + 64*n + 4*js
                a(f"v_mfma_f32_16x16x32_bf16 v[{d}:{d+3}], v[{g}:{g+3}], v[{b+4*nu}:{b+4*nu+3}], " + ("0" if js == 0 else f"v[{d}:{d+3}]"))
    a(f"v_and_b32 v16, 15, v1\nv_mul_u32_u24 v16, {TROW}, v16\nv_lshrrev_b32 v17, 4, v1\nv_lshl_add_u32 v16, v17, 4, v16\nv_add_u32 v16, {tileA}, v16")
    a("s_barrier")
    for n, dt in enumerate(dts):
        for nu in range(4):
            d = ACCE + 16*n + 4*nu
            a(f"ds_write_b128 v16, v[{d}:{d+3}] offset:{16*nu*TROW + 64*dt}")
    return stubs

def g2_loader(a, seq, e_flags="", LAG=2):
    a(f"v_mov_b32 v2, {MISC}")
    a("v_and_b32 v16, 3, v1\nv_lshl_add_u32 v16, v16, 2, v2")
    a("v_lshrrev_b32 v8, 3, v1\nv_and_b32 v9, 7, v1\nv_bfe_u32 v10, v1, 4, 1\nv_lshlrev_b32 v10, 2, v10\nv_xor_b32 v10, v10, v9")
    a("v_lshlrev_b32 v10, 4, v10\nv_lshl_add_u32 v4, v8, 10, v10")
    a("v_bfe_u32 v10, v1, 4, 2\nv_lshlrev_b32 v10, 1, v10\nv_xor_b32 v10, v10, v9\nv_lshlrev_b32 v10, 4, v10\nv_lshl_add_u32 v5, v8, 12, v10")
    a(f"s_lshl_b32 s44, s{S_CJ}, 7")
    a(f"s_lshl_b32 s45, s{S_T}, 7\ns_add_u32 s45, s45, {WS_E}")
    def publish(item):
        kind, c = item[0], item[1]
        a(f"v_mov_b32 v3, {c + 1}")
        a(f"ds_write_b32 v16, v3 offset:{(FL_FULL2 if kind == 'w' else FL_FULLE) - MISC}")
    counts = []; seen = 0; pub = 0
    for n, (kind, c, slot, req) in enumerate(seq):
        if req > seen:
            ok = a.label("ldok")
            a(f"ds_read_b128 v[12:15], v2 offset:{FL_FREE2 - MISC}\ns_waitcnt lgkmcnt(0)")
            a("v_min_u32 v12, v12, v13\nv_min3_u32 v12, v12, v14, v15\nv_readfirstlane_b32 s40, v12")
            a(f"s_cmp_ge_u32 s40, {req}\ns_cbranch_scc1 {ok}")
            a("s_waitcnt vmcnt(0)")
            last = {}
            for it in seq[pub:n]: last[it[0]] = it
            for it in last.values(): publish(it)
            lds_wait_ge(a, 2, FL_FREE2 - MISC, req, 12, 40, 41, minof=4)
            a(f"{ok}:")
            seen = req
        cnt = 0
        if kind == "w":
            for p in range(2 * c, min(2 * c + 2, 43)):
                for g in range(4):
                    a(f"s_mov_b32 m0, {slot*SLOT + (p % 2)*4096 + g*1024}")
                    a(f"s_add_u32 s42, s44, {ORDER[p]*32768 + g*8192}")
                    a(f"buffer_load_dwordx4 v4, {sr(S_W2)}, s42 offen lds"); cnt += 1
        else:
            for g in range(8):
                a(f"s_mov_b32 m0, {slot*SLOT + g*1024}")
                a(f"s_add_u32 s42, s45, {(64*c + 8*g)*4096}")
                a(f"buffer_load_dwordx4 v5, {sr(S_WS)}, s42 offen {e_flags} lds"); cnt += 1
        counts.append(cnt)
        if n >= LAG:
            a(f"s_waitcnt vmcnt({sum(counts[n-LAG+1:])})"); publish(seq[n - LAG]); pub = n - LAG + 1
    for n in range(len(seq) - LAG, len(seq)):
        a(f"s_waitcnt vmcnt({sum(counts[n+1:])})"); publish(seq[n])

def res_issue(a, dst, voff):
    a(f"s_lshr_b32 s40, s3, 2\ns_lshl_b32 s40, s40, 5\ns_add_u32 s40, s40, s{S_T}\ns_lshl_b32 s40, s40, 15")
    a(f"s_and_b32 s41, s3, 3\ns_lshl_b32 s41, s41, 13\ns_add_u32 s40, s40, s41\ns_lshl_b32 s41, s{S_CJ}, 7\ns_add_u32 s91, s40, s41")
    a(f"v_lshrrev_b32 v{dst}, 3, v1\nv_and_b32 v{voff}, 7, v1\nv_lshlrev_b32 v{voff}, 4, v{voff}\nv_lshl_add_u32 v{voff}, v{dst}, 10, v{voff}")
    a(f"buffer_load_dwordx4 v[{dst}:{dst+3}], v{voff}, {sr(S_X)}, s91 offen")

def final_combine(a, tiles, tileA, xr, voff):
    a(f"s_and_b32 s40, s3, 3\ns_mul_i32 s40, s40, {8*TROW}\ns_lshr_b32 s41, s3, 2\ns_mul_i32 s42, s41, {32*TROW}")
    a(f"v_lshrrev_b32 v16, 3, v1\nv_mul_u32_u24 v16, {TROW}, v16\nv_and_b32 v17, 7, v1\nv_lshl_add_u32 v16, v17, 5, v16\nv_add_u32 v16, s40, v16")
    a(f"v_add_u32 v17, s42, v16\nv_add_u32 v17, {tiles[0]}, v17\nv_add_u32 v16, {tileA}, v16")
    a("s_lshl_b32 s41, s41, 31\ns_or_b32 s42, s41, 0x3f800000")
    a("s_waitcnt lgkmcnt(0)\ns_barrier")
    R = 20
    for q in range(2):
        a(f"ds_read_b128 v[{R+4*q}:{R+4*q+3}], v16 offset:{16*q}")
        a(f"ds_read_b128 v[{R+8+4*q}:{R+8+4*q+3}], v16 offset:{32*TROW + 16*q}")
        a(f"ds_read_b128 v[{R+16+4*q}:{R+16+4*q+3}], v17 offset:{16*q}")
        a(f"ds_read_b128 v[{R+24+4*q}:{R+24+4*q+3}], v17 offset:{tiles[1] - tiles[0] + 16*q}")
    a("s_waitcnt vmcnt(0)")
    XU = 52
    for p in range(4):
        a(f"v_lshlrev_b32 v{XU+2*p}, 16, v{xr+p}\nv_and_b32 v{XU+2*p+1}, 0xffff0000, v{xr+p}")
    for p in range(4):
        if p % 2 == 0: a(f"s_waitcnt lgkmcnt({4 if p == 0 else 0})")
        r = R + 2*p
        a(f"v_pk_fma_f32 v[{r}:{r+1}], v[{r+8}:{r+9}], s[42:43], v[{r}:{r+1}] op_sel_hi:[1,0,1]")
        a(f"v_pk_add_f32 v[{r+16}:{r+17}], v[{r+16}:{r+17}], v[{r+24}:{r+25}]")
        a(f"v_pk_add_f32 v[{r}:{r+1}], v[{r}:{r+1}], v[{XU+2*p}:{XU+2*p+1}]")
        a(f"v_pk_add_f32 v[{r}:{r+1}], v[{r}:{r+1}], v[{r+16}:{r+17}]")
        a(f"v_cvt_pk_bf16_f32 v{xr+p}, v{r}, v{r+1}")
    a(f"buffer_store_dwordx4 v[{xr}:{xr+3}], v{voff}, {sr(S_OUT)}, s91 offen")
```

```python
import math
from asmlib import *

WS_Z, WS_WT, WS_E, WS_H, WS_FLAG = 0x000000, 0x200000, 0x400000, 0x600000, 0xC00000
WS_STAMP = 0x8000000
SLOT = 8192
MISC = 19 * SLOT
FL_FULL, FL_FREE, FL_BAR_A, FL_A_DONE = MISC, MISC + 16, MISC + 32, MISC + 36
LDS_BYTES = 160 * 1024
SPIN = 1 << 20

S_X, S_WR, S_WI, S_W1, S_W3, S_W2, S_OUT, S_WS = 8, 12, 16, 20, 24, 28, 32, 36
S_WAVE = 3

def prologue(a, end_label, nwg=256):
    a(f"s_cmp_ge_u32 s2, {nwg}")
    a(f"s_cbranch_scc1 {end_label}")
    a("s_load_dwordx16 s[64:79], s[0:1], 0")
    a("s_load_dwordx4 s[80:83], s[0:1], 64")
    a("v_lshrrev_b32 v2, 6, v0")
    a("v_and_b32 v1, 63, v0")
    a("v_readfirstlane_b32 s3, v2")
    a("s_waitcnt lgkmcnt(0)")
    srd(a, S_X, 64, 2048 * 1024)
    srd(a, S_WR, 66, 2048 * 514)
    srd(a, S_WI, 68, 2048 * 514)
    srd(a, S_W1, 72, 512 * 2752)
    srd(a, S_W3, 74, 512 * 2752)
    srd(a, S_W2, 76, 1376 * 1024)
    srd(a, S_OUT, 78, 2048 * 1024)
    srd(a, S_WS, 82, 268435456)

def sr(b): return f"s[{b}:{b+3}]"

def lds_wait_ge(a, addr_v, off, n, vt, st, sc, minof=1):
    top, done = a.label("lw"), a.label("lwd")
    a(f"s_mov_b32 s{sc}, {SPIN}")
    a(f"{top}:")
    if minof == 1:
        a(f"ds_read_b32 v{vt}, v{addr_v} offset:{off}")
        a("s_waitcnt lgkmcnt(0)")
    else:
        a(f"ds_read_b128 v[{vt}:{vt+3}], v{addr_v} offset:{off}")
        a("s_waitcnt lgkmcnt(0)")
        a(f"v_min_u32 v{vt}, v{vt}, v{vt+1}")
        a(f"v_min3_u32 v{vt}, v{vt}, v{vt+2}, v{vt+3}")
    a(f"v_readfirstlane_b32 s{st}, v{vt}")
    a(f"s_cmp_ge_u32 s{st}, {n}")
    a(f"s_cbranch_scc1 {done}")
    a(f"s_sub_u32 s{sc}, s{sc}, 1")
    a(f"s_cbranch_scc0 {top}")
    a(f"{done}:")

def bf_round(a, v):
    a(f"v_cvt_pk_bf16_f32 v{v}, v{v}, v{v}")
    a(f"v_and_b32 v{v}, 0xffff0000, v{v}")

def ln_scalars(a, vsum, vsq, vt):
    a(f"v_mul_f32 v{vsum}, {f32(1/512)}, v{vsum}")
    a(f"v_mul_f32 v{vsq}, {f32(1/512)}, v{vsq}")
    a(f"v_fma_f32 v{vsq}, -v{vsum}, v{vsum}, v{vsq}")
    a(f"v_max_f32 v{vsq}, 0, v{vsq}")
    bf_round(a, vsq)
    a(f"v_add_f32 v{vsq}, {f32(1e-5)}, v{vsq}")
    bf_round(a, vsq)
    a(f"v_sqrt_f32 v{vsq}, v{vsq}")
    bf_round(a, vsq)
    a(f"v_rcp_f32 v{vsq}, v{vsq}")

def row_stage(a, s_hw, lds_base, st_flags=""):
    a("s_and_b32 s40, s2, 31")
    a("s_lshr_b32 s41, s2, 5")
    a(f"s_lshl_b32 s42, s41, 2\ns_add_u32 s42, s42, s{s_hw}\ns_lshl_b32 s42, s42, 5\ns_add_u32 s42, s42, s40")
    a("s_lshl_b32 s42, s42, 10")
    a("s_add_u32 s43, s42, 0x100000")
    a(f"s_lshl_b32 s44, s{s_hw}, 11\ns_add_u32 s44, s44, {lds_base}")
    a("v_lshlrev_b32 v2, 4, v1")
    a("s_mov_b32 m0, s44")
    a(f"buffer_load_dwordx4 v2, {sr(S_X)}, s42 offen lds")
    a("s_add_u32 m0, s44, 1024")
    a(f"buffer_load_dwordx4 v2, {sr(S_X)}, s43 offen lds")
    a("s_and_b32 s45, s2, 63")
    a("s_bfe_u32 s46, s2, 0x10006")
    a("s_lshr_b32 s47, s2, 7")
    a(f"s_and_b32 s48, s{s_hw}, 1\ns_lshr_b32 s49, s{s_hw}, 1")
    a("s_lshl_b32 s50, s46, 1\ns_add_u32 s50, s50, s49\ns_lshl_b32 s50, s50, 9\ns_add_u32 s50, s50, s45\ns_mul_i32 s50, s50, 514")
    a("s_lshl_b32 s51, s47, 1\ns_add_u32 s51, s51, s48\ns_lshl_b32 s51, s51, 6")
    a("s_lshl_b32 s52, s51, 1\ns_add_u32 s50, s50, s52\ns_add_u32 s50, s50, 2")
    a("v_lshlrev_b32 v3, 1, v1")
    WRE, WIM = 84, 92
    for e in range(8):
        a(f"s_add_u32 s52, s50, {e * 64 * 514}")
        a(f"buffer_load_ushort v{WRE+e}, v3, {sr(S_WR)}, s52 offen")
        a(f"buffer_load_ushort v{WIM+e}, v3, {sr(S_WI)}, s52 offen")
    N, Q4, FU, ARG, STEP = 4, 5, 6, 7, 8
    B1 = 16
    TC, TS = 32, 40
    A2 = 48
    CM = 9
    a(f"v_and_b32 v{N}, 15, v1")
    a(f"v_lshrrev_b32 v{Q4}, 4, v1\nv_lshlrev_b32 v{Q4}, 2, v{Q4}\nv_cvt_f32_u32 v{Q4}, v{Q4}")
    a(f"v_add_u32 v{FU}, 1, v{N}\nv_cvt_f32_u32 v{FU}, v{FU}")
    a(f"v_mul_f32 v{STEP}, {f32(1/32)}, v{FU}")
    a(f"v_mul_f32 v{ARG}, v{Q4}, v{STEP}")
    C0, S0 = 52, 60
    for j in range(8):
        if j == 4:
            a(f"v_mul_f32 v10, {f32(13.0)}, v{STEP}\nv_add_f32 v{ARG}, v{ARG}, v10")
        elif j:
            a(f"v_add_f32 v{ARG}, v{ARG}, v{STEP}")
        a(f"v_cos_f32 v{C0+j}, v{ARG}\nv_sin_f32 v{S0+j}, v{ARG}")
    for jj in range(4):
        a(f"v_cvt_pk_bf16_f32 v{B1+jj}, v{C0+2*jj}, v{C0+2*jj+1}")
        a(f"v_cvt_pk_bf16_f32 v{B1+4+jj}, -v{S0+2*jj}, -v{S0+2*jj+1}")
    for jj in range(8):
        a(f"v_xor_b32 v{B1+8+jj}, 0x80000000, v{B1+jj}")
    for tau in range(2):
        if tau: a(f"v_add_f32 v{FU}, {f32(16.0)}, v{FU}")
        a(f"v_mul_f32 v{STEP}, {f32(1/512)}, v{FU}")
        a(f"v_mul_f32 v{ARG}, v{Q4}, v{STEP}")
        for r in range(4):
            if r: a(f"v_add_f32 v{ARG}, v{ARG}, v{STEP}")
            a(f"v_cos_f32 v{TC+4*tau+r}, v{ARG}\nv_sin_f32 v{TS+4*tau+r}, v{ARG}")
    a(f"v_lshrrev_b32 v{STEP}, 1, v{N}\nv_cvt_f32_u32 v{STEP}, v{STEP}\nv_mul_f32 v{STEP}, {f32(1/16)}, v{STEP}")
    a(f"v_and_b32 v{ARG}, 1, v{N}\nv_cvt_f32_u32 v{ARG}, v{ARG}\nv_mul_f32 v{ARG}, {f32(0.25)}, v{ARG}")
    a(f"v_fma_f32 v{ARG}, v{Q4}, v{STEP}, v{ARG}")
    for r in range(4):
        if r: a(f"v_add_f32 v{ARG}, v{ARG}, v{STEP}")
        a(f"v_cos_f32 v{C0+r}, v{ARG}\nv_sin_f32 v{S0+r}, v{ARG}")
    for jj in range(2):
        a(f"v_cvt_pk_bf16_f32 v{A2+jj}, v{C0+2*jj}, v{C0+2*jj+1}")
        a(f"v_cvt_pk_bf16_f32 v{A2+2+jj}, v{S0+2*jj}, v{S0+2*jj+1}")
    a(f"v_cmp_eq_u32 vcc, 15, v{N}")
    a(f"v_mov_b32 v{CM}, {f32(32.0)}")
    a(f"v_cndmask_b32 v{CM}, 0, v{CM}, vcc")
    a("s_mov_b32 s53, 0x3f803f80")
    a("v_lshlrev_b32 v10, 3, v1\nv_add_u32 v10, s44, v10")
    a(f"v_lshrrev_b32 v11, 4, v1\nv_lshlrev_b32 v11, 6, v11\nv_add_u32 v11, v11, v{N}\nv_lshlrev_b32 v11, 2, v11\nv_add_u32 v11, s44, v11")
    XF = 52
    a("s_waitcnt vmcnt(16)")
    for al in range(2):
        a(f"ds_read_b64_tr_b16 v[{XF+4*al}:{XF+4*al+1}], v10 offset:{1024*al}")
        a(f"ds_read_b64_tr_b16 v[{XF+4*al+2}:{XF+4*al+3}], v10 offset:{1024*al+512}")
    D1 = 100
    SU = 12
    a("s_waitcnt lgkmcnt(0)")
    for al in range(2):
        for tau in range(2):
            for ri in range(2):
                d = D1 + 16*al + 8*tau + 4*ri
                a(f"v_mfma_f32_16x16x32_bf16 v[{d}:{d+3}], v[{XF+4*al}:{XF+4*al+3}], v[{B1+8*tau+4*ri}:{B1+8*tau+4*ri+3}], 0")
    for j in range(4):
        for al in range(2):
            c1 = "0" if j == 0 else f"v{SU+2*al}"
            c2 = "0" if j == 0 else f"v{SU+2*al+1}"
            a(f"v_dot2_f32_bf16 v{SU+2*al}, v{XF+4*al+j}, s53, {c1}")
            a(f"v_dot2_f32_bf16 v{SU+2*al+1}, v{XF+4*al+j}, v{XF+4*al+j}, {c2}")
    for m in ("row_ror:8 row_mask:0xf", "row_ror:4 row_mask:0xf", "row_ror:2 row_mask:0xf", "row_ror:1 row_mask:0xf",
              "row_bcast:15 row_mask:0xa", "row_bcast:31 row_mask:0xc"):
        for q in range(4):
            a(f"v_add_f32_dpp v{SU+q}, v{SU+q}, v{SU+q} {m} bank_mask:0xf")
    sub = [Asm(), Asm()]
    for al in range(2): ln_scalars(sub[al], SU+2*al, SU+2*al+1, None)
    for l0, l1 in zip(sub[0].lines, sub[1].lines): a(l0); a(l1)
    for al in range(2):
        a(f"v_readlane_b32 s{54+al}, v{SU+2*al}, 63")
        a(f"v_readlane_b32 s{56+2*al}, v{SU+2*al+1}, 63")
    UF = 60
    T0 = 76
    for al in range(2):
        for r in range(4):
            d = D1 + 16*al + 8 + r
            a(f"v_fma_f32 v{d}, -v{CM}, s{54+al}, v{d}")
    for al in range(2):
        for tau in range(2):
            re, im = D1 + 16*al + 8*tau, D1 + 16*al + 8*tau + 4
            for p in range(2):
                c, s = TC + 4*tau + 2*p, TS + 4*tau + 2*p
                tr, ti = T0 + 4*p, T0 + 4*p + 2
                a(f"v_pk_mul_f32 v[{tr}:{tr+1}], v[{re+2*p}:{re+2*p+1}], v[{c}:{c+1}]")
                a(f"v_pk_mul_f32 v[{ti}:{ti+1}], v[{im+2*p}:{im+2*p+1}], v[{c}:{c+1}]")
                a(f"v_pk_fma_f32 v[{tr}:{tr+1}], v[{im+2*p}:{im+2*p+1}], v[{s}:{s+1}], v[{tr}:{tr+1}]")
                a(f"v_pk_fma_f32 v[{ti}:{ti+1}], v[{re+2*p}:{re+2*p+1}], v[{s}:{s+1}], v[{ti}:{ti+1}] neg_lo:[1,0,0] neg_hi:[1,0,0]")
            u = UF + 8*al + 4*tau
            for p in range(2):
                a(f"v_cvt_pk_bf16_f32 v{u+p}, v{T0+4*p}, v{T0+4*p+1}")
                a(f"v_cvt_pk_bf16_f32 v{u+2+p}, v{T0+4*p+2}, v{T0+4*p+3}")
            d = D1 + 16*al + 8*tau
            a(f"v_mfma_f32_16x16x32_bf16 v[{d}:{d+3}], v[{A2}:{A2+3}], v[{u}:{u+3}], 0")
    for tau in range(2):
        for vl in range(2):
            d0, d1 = D1 + 8*tau + 2*vl, D1 + 16 + 8*tau + 2*vl
            a(f"v_pk_mul_f32 v[{d0}:{d0+1}], v[{d0}:{d0+1}], s[56:57] op_sel_hi:[1,0]")
            a(f"v_pk_fma_f32 v[{T0}:{T0+1}], v[{d1}:{d1+1}], s[58:59], v[{d0}:{d0+1}] op_sel_hi:[1,0,1]")
            a(f"v_pk_fma_f32 v[{T0+2}:{T0+3}], v[{d1}:{d1+1}], s[58:59], v[{d0}:{d0+1}] op_sel_hi:[1,0,1] neg_lo:[1,0,0] neg_hi:[1,0,0]")
            a(f"v_cvt_pk_bf16_f32 v{T0+4}, v{T0}, v{T0+1}")
            a(f"v_cvt_pk_bf16_f32 v{T0+5}, v{T0+2}, v{T0+3}")
            a(f"ds_write_b32 v11, v{T0+4} offset:{64*tau + 128*vl}")
            a(f"ds_write_b32 v11, v{T0+5} offset:{64*tau + 128*vl + 1024}")
    a(f"v_mov_b32 v12, {MISC}\nv_mov_b32 v13, 1")
    a("s_waitcnt lgkmcnt(0)")
    a("s_mov_b64 s[60:61], exec\ns_mov_b64 exec, 1")
    a(f"ds_add_u32 v12, v13 offset:{FL_BAR_A - MISC}")
    a("s_mov_b64 exec, s[60:61]")
    a("s_lshr_b32 s52, s45, 1")
    a("s_bfe_u32 s60, s52, 0x20002\ns_lshl_b32 s60, s60, 3")
    a("s_lshr_b32 s61, s52, 4\ns_lshl_b32 s61, s61, 2\ns_add_u32 s60, s60, s61")
    a("s_and_b32 s61, s52, 3\ns_add_u32 s60, s60, s61")
    a("s_lshl_b32 s61, s46, 5\ns_add_u32 s60, s60, s61\ns_lshl_b32 s60, s60, 6")
    a("s_and_b32 s61, s45, 1\ns_lshl_b32 s61, s61, 12\ns_add_u32 s60, s60, s61")
    a("s_lshl_b32 s61, s49, 5\ns_add_u32 s60, s60, s61")
    a(f"s_lshl_b32 s61, s51, 13\ns_add_u32 s60, s60, s61\ns_add_u32 s60, s60, {WS_WT}")
    a("v_lshlrev_b32 v14, 13, v1")
    a("s_waitcnt vmcnt(0)")
    for e in range(8):
        a(f"v_lshl_or_b32 v{WRE+e}, v{WIM+e}, 16, v{WRE+e}")
    a(f"buffer_store_dwordx4 v[{WRE}:{WRE+3}], v14, {sr(S_WS)}, s60 offen {st_flags}")
    a(f"buffer_store_dwordx4 v[{WRE+4}:{WRE+7}], v14, {sr(S_WS)}, s60 offen offset:16 {st_flags}")
    a(f"s_lshl_b32 s52, s{s_hw}, 6")
    a("v_add_u32 v14, s52, v1")
    a("v_and_b32 v15, 1, v14\nv_lshrrev_b32 v14, 1, v14")
    a(f"v_lshlrev_b32 v16, 10, v15\nv_lshl_add_u32 v16, v14, 2, v16\nv_add_u32 v16, {lds_base}, v16")
    a("v_lshlrev_b32 v17, 4, v15\nv_lshl_add_u32 v17, v14, 13, v17")
    a(f"s_lshl_b32 s52, s40, 8\ns_lshl_b32 s60, s41, 5\ns_add_u32 s52, s52, s60\ns_add_u32 s52, s52, {WS_Z}\ns_add_u32 s60, s52, {128*8192}")
    lds_wait_ge(a, 12, FL_BAR_A - MISC, 4, 18, 61, 62)
    for e in range(2):
        a(f"ds_read2st64_b32 v[{20+4*e}:{21+4*e}], v16 offset0:{2*e} offset1:{2*e+8}")
        a(f"ds_read2st64_b32 v[{22+4*e}:{23+4*e}], v16 offset0:{2*e+16} offset1:{2*e+24}")
    a("s_waitcnt lgkmcnt(2)")
    a(f"buffer_store_dwordx4 v[20:23], v17, {sr(S_WS)}, s52 offen {st_flags}")
    a("s_waitcnt lgkmcnt(0)")
    a(f"buffer_store_dwordx4 v[24:27], v17, {sr(S_WS)}, s60 offen {st_flags}")
    a("s_mov_b64 s[60:61], exec\ns_mov_b64 exec, 1")
    a(f"ds_add_u32 v12, v13 offset:{FL_A_DONE - MISC}")
    a("s_mov_b64 exec, s[60:61]")

CF_CA, CF_T1C, CF_T1S, CF_CB, CF_T2C, CF_T2S, CF_CD = 16, 48, 64, 80, 104, 120, 136
CF_Z, CF_W, CF_AR, CF_AI, CF_T = 160, 176, 192, 208, 224

def col_consts(a, s_pi, s_k1):
    L, H, C, ARG, STEP = 2, 3, 4, 5, 6
    a(f"v_bfe_u32 v7, v1, 2, 1\nv_lshlrev_b32 v{L}, 4, v7")
    a(f"v_bfe_u32 v7, v1, 3, 2\nv_lshl_add_u32 v{L}, v7, 2, v{L}")
    a(f"v_and_b32 v7, 3, v1\nv_add_u32 v{L}, v{L}, v7")
    a(f"v_lshl_add_u32 v{C}, v{L}, 1, s{s_pi}\nv_cvt_f32_u32 v{C}, v{C}")
    a(f"v_cvt_f32_u32 v{L}, v{L}")
    a(f"v_lshrrev_b32 v{H}, 5, v1\nv_cvt_f32_u32 v{H}, v{H}")
    tc, ts = 8, 10
    a(f"v_mul_f32 v{STEP}, {f32(1/64)}, v{C}")
    a(f"v_mul_f32 v{ARG}, 4.0, v{H}\nv_mul_f32 v{ARG}, v{ARG}, v{STEP}")
    a(f"v_mul_f32 v7, {f32(5.0)}, v{STEP}")
    for t in range(4):
        for i in range(4):
            if i: a(f"v_add_f32 v{ARG}, v{ARG}, v{STEP}")
            elif t: a(f"v_add_f32 v{ARG}, v{ARG}, v7")
            x = 2 * (i & 1)
            a(f"v_cos_f32 v{tc+(i&1)}, v{ARG}\nv_sin_f32 v{ts+(i&1)}, v{ARG}")
            a(f"v_cvt_pk_bf16_f32 v{CF_CA+8*t+i}, v{tc+(i&1)}, v{ts+(i&1)}")
            a(f"v_cvt_pk_bf16_f32 v{CF_CA+8*t+4+i}, -v{ts+(i&1)}, v{tc+(i&1)}")
    a(f"v_mul_f32 v{H}, {f32(16.0)}, v{H}")
    def mat(base):
        for R in range(16):
            if R: a(f"v_add_f32 v{ARG}, v{ARG}, v{STEP}")
            a(f"v_cos_f32 v{tc+(R&1)}, v{ARG}\nv_sin_f32 v{ts+(R&1)}, v{ARG}")
            if R & 1:
                a(f"v_cvt_pk_bf16_f32 v{base+(R>>1)}, v{tc}, v{tc+1}")
                a(f"v_cvt_pk_bf16_f32 v{base+8+(R>>1)}, v{ts}, v{ts+1}")
                a(f"v_cvt_pk_bf16_f32 v{base+16+(R>>1)}, -v{ts}, -v{ts+1}")
    def tw(cb, sb):
        for R in range(16):
            if R: a(f"v_add_f32 v{ARG}, v{ARG}, v{STEP}")
            a(f"v_cos_f32 v{cb+R}, v{ARG}\nv_sin_f32 v{sb+R}, v{ARG}")
    a(f"v_mul_f32 v{STEP}, {f32(1/2048)}, v{C}\nv_mul_f32 v{ARG}, v{H}, v{STEP}")
    tw(CF_T1C, CF_T1S)
    a(f"v_mul_f32 v{STEP}, {f32(1/32)}, v{L}\nv_mul_f32 v{ARG}, v{H}, v{STEP}")
    mat(CF_CB)
    a(f"v_cvt_f32_u32 v7, s{s_pi}\nv_fma_f32 v{H}, 0.5, v7, v{H}")
    a(f"v_mul_f32 v{STEP}, {f32(1/1024)}, v{L}\nv_mul_f32 v{ARG}, v{H}, v{STEP}")
    tw(CF_T2C, CF_T2S)
    a(f"s_cmp_eq_u32 s{s_k1}, 255")
    a(f"s_cselect_b32 s62, {f32(1/(2048*512))}, {f32(2/(2048*512))}") if False else None
    a(f"s_mov_b32 s62, {f32(2/(2048*512))}")
    a(f"s_cmov_b32 s62, {f32(1/(2048*512))}")
    for R in range(0, 32, 2):
        a(f"v_pk_mul_f32 v[{CF_T2C+R}:{CF_T2C+R+1}], v[{CF_T2C+R}:{CF_T2C+R+1}], s[62:63] op_sel_hi:[1,0]")
    a(f"v_and_b32 v7, 31, v1\nv_cvt_f32_u32 v7, v7\nv_mul_f32 v{STEP}, {f32(1/32)}, v7\nv_mul_f32 v{ARG}, v{H}, v{STEP}")
    mat(CF_CD)

def col_loads(a, s_pi, s_k1, which, ld_flags=""):
    if which == "w":
        a(f"s_lshl_b32 s60, s{s_k1}, 13\ns_lshl_b32 s61, s{s_pi}, 12\ns_add_u32 s60, s60, s61\ns_add_u32 s60, s60, {WS_WT}")
        a("v_lshlrev_b32 v12, 6, v1")
        for t in range(4):
            a(f"buffer_load_dwordx4 v[{CF_W+4*t}:{CF_W+4*t+3}], v12, {sr(S_WS)}, s60 offen offset:{16*t} {ld_flags}")
    else:
        a(f"s_lshl_b32 s60, s{s_k1}, 13\ns_lshl_b32 s61, s{s_pi}, 4\ns_add_u32 s60, s60, s61\ns_add_u32 s60, s60, {WS_Z}")
        a("v_bfe_u32 v13, v1, 2, 1\nv_lshlrev_b32 v14, 4, v13")
        a("v_bfe_u32 v13, v1, 3, 2\nv_lshl_add_u32 v14, v13, 2, v14")
        a("v_and_b32 v13, 3, v1\nv_add_u32 v14, v14, v13")
        a("v_lshlrev_b32 v14, 8, v14\nv_lshrrev_b32 v13, 5, v1\nv_lshl_add_u32 v14, v13, 5, v14")
        for t in range(4):
            a(f"buffer_load_dwordx4 v[{CF_Z+4*t}:{CF_Z+4*t+3}], v14, {sr(S_WS)}, s60 offen offset:{64*t} {ld_flags}")

def col_compute(a, s_pi, s_k1, st_flags="", wait_w="s_waitcnt vmcnt(0)"):
    AR, AI, U, T = CF_AR, CF_AI, CF_Z, CF_T
    def mf(d, x, y, first):
        a(f"v_mfma_f32_32x32x16_bf16 v[{d}:{d+15}], v[{x}:{x+3}], v[{y}:{y+3}], " + ("0" if first else f"v[{d}:{d+15}]"))
    def cmul(cs, conj):
        for p in range(8):
            c, s = cs(p)
            tr, ti = T + 4*(p & 1), T + 4*(p & 1) + 2
            re, im = AR + 2*p, AI + 2*p
            neg = "neg_lo:[1,0,0] neg_hi:[1,0,0]"
            a(f"v_pk_mul_f32 v[{tr}:{tr+1}], v[{re}:{re+1}], v[{c}:{c+1}]")
            a(f"v_pk_mul_f32 v[{ti}:{ti+1}], v[{im}:{im+1}], v[{c}:{c+1}]")
            a(f"v_pk_fma_f32 v[{tr}:{tr+1}], v[{im}:{im+1}], v[{s}:{s+1}], v[{tr}:{tr+1}] {neg if conj else ''}")
            a(f"v_pk_fma_f32 v[{ti}:{ti+1}], v[{re}:{re+1}], v[{s}:{s+1}], v[{ti}:{ti+1}] {'' if conj else neg}")
            a(f"v_cvt_pk_bf16_f32 v{U+p}, v{tr}, v{tr+1}")
            a(f"v_cvt_pk_bf16_f32 v{U+8+p}, v{ti}, v{ti+1}")
    for t in range(4):
        mf(AR, CF_Z + 4*t, CF_CA + 8*t, t == 0)
        mf(AI, CF_Z + 4*t, CF_CA + 8*t + 4, t == 0)
    cmul(lambda p: (CF_T1C + 2*p, CF_T1S + 2*p), False)
    C, S, N = CF_CB, CF_CB + 8, CF_CB + 16
    for t in range(2):
        mf(AR, C + 4*t, U + 4*t, t == 0); mf(AI, N + 4*t, U + 4*t, t == 0)
        mf(AR, S + 4*t, U + 8 + 4*t, False); mf(AI, C + 4*t, U + 8 + 4*t, False)
    a(wait_w)
    WC = CF_T1C
    for r in range(16):
        a(f"v_lshlrev_b32 v{CF_T1C+r}, 16, v{CF_W+r}")
        a(f"v_and_b32 v{CF_T1S+r}, 0xffff0000, v{CF_W+r}")
    cmul(lambda p: (CF_T1C + 2*p, CF_T1S + 2*p), True)
    for t in range(2):
        mf(AR, U + 4*t, C + 4*t, t == 0); mf(AI, U + 4*t, S + 4*t, t == 0)
        mf(AR, U + 8 + 4*t, N + 4*t, False); mf(AI, U + 8 + 4*t, C + 4*t, False)
    cmul(lambda p: (CF_T2C + 2*p, CF_T2S + 2*p), True)
    C, S, N = CF_CD, CF_CD + 8, CF_CD + 16
    for t in range(2):
        mf(AR, U + 4*t, C + 4*t, t == 0); mf(AI, U + 4*t, S + 4*t, t == 0)
        mf(AR, U + 8 + 4*t, N + 4*t, False); mf(AI, U + 8 + 4*t, C + 4*t, False)
    a(f"s_lshl_b32 s60, s{s_k1}, 13\ns_lshl_b32 s61, s{s_pi}, 6\ns_add_u32 s60, s60, s61\ns_add_u32 s60, s60, {WS_E}\ns_add_u32 s61, s60, 4096")
    a("v_and_b32 v12, 31, v1\nv_lshlrev_b32 v12, 7, v12\nv_lshrrev_b32 v13, 5, v1\nv_lshl_add_u32 v12, v13, 5, v12")
    for ri, acc in enumerate((AR, AI)):
        for p in range(8):
            a(f"v_cvt_pk_bf16_f32 v{U+8*ri+p}, v{acc+2*p}, v{acc+2*p+1}")
        for q in range(2):
            a(f"buffer_store_dwordx4 v[{U+8*ri+4*q}:{U+8*ri+4*q+3}], v12, {sr(S_WS)}, s{60+ri} offen offset:{16*q} {st_flags}")
```

```python
import sys
from gemm2 import *
HEADER = open("parallel_sum__spectral_gfnet__glu_gated_swiglu__prompt.s.ref").read().split("; Override")[0]

def init_flags2(a):
    a(f"v_lshlrev_b32 v2, 2, v1\nv_add_u32 v2, {MISC}, v2\nv_mov_b32 v4, 0\nds_write_b32 v2, v4\ns_waitcnt lgkmcnt(0)")

a = Asm()
a.begin_kernel("k1_kernel")
prologue(a, "k1_end")
g1_ids(a)
a("s_cmp_ge_u32 s3, 4\ns_cbranch_scc1 k1_helper")
g1_x_issue_setup(a); g1_x_issue(a, 0); g1_x_issue(a, 1)
a("s_barrier")
g1_main(a)
a("s_branch k1_end")
a("k1_helper:")
init_flags2(a)
a("s_barrier")
a("s_sub_u32 s4, s3, 4")
row_stage(a, 4, 18*SLOT)
a("s_cmp_lg_u32 s4, 0\ns_cbranch_scc1 k1_end")
g1_loader(a)
a("k1_end:\ns_endpgm")
a.add_kernel("k1_kernel", 256); a.add_launch("k1_kernel", 256, 512, LDS_BYTES)

a.begin_kernel("col_kernel")
prologue(a, "col_end")
col_loads(a, S_WAVE, 2, "z"); col_loads(a, S_WAVE, 2, "w")
col_consts(a, S_WAVE, 2)
a("s_waitcnt vmcnt(4)")
col_compute(a, S_WAVE, 2)
a("col_end:\ns_endpgm")
a.add_kernel("col_kernel", 256); a.add_launch("col_kernel", 256, 128, 0)

w2cells = list(range(11)) + list(range(11))
ecells = list(range(11, 19))
seq = [("w", c, c, 0) for c in range(11)] + [("e", c, 11 + c, 0) for c in range(8)] + [("w", 11 + c, c, c + 1) for c in range(11)]
tiles = (0, TILE); tileA = 2 * TILE
a.begin_kernel("k3_kernel")
prologue(a, "k3_end")
g2_ids(a)
a("s_cmp_ge_u32 s3, 4\ns_cbranch_scc1 k3_helper")
g2_main_setup(a); g2_h_issue(a)
res_issue(a, 12, 11)
a("s_barrier")
st = g2_main(a, w2cells, tiles, vm_after=1)
a("s_branch k3_fin")
emit_stubs(a, st)
a("k3_helper:")
init_flags2(a)
a("s_barrier")
a("s_cmp_eq_u32 s3, 4\ns_cbranch_scc1 k3_loader")
a("s_cmp_eq_u32 s3, 7\ns_cbranch_scc1 k3_h3")
a("s_cmp_eq_u32 s3, 6\ns_cbranch_scc1 k3_h2")
for lab, dts in (("k3_h1", [0]), ("k3_h2", [1]), ("k3_h3", [2, 3])):
    a(f"{lab}:")
    g_consts(a, dts)
    st = e_part(a, dts, ecells, tileA)
    res_issue(a, 12, 11)
    a("s_branch k3_fin")
    emit_stubs(a, st)
a("k3_loader:")
g2_loader(a, seq)
res_issue(a, 12, 11)
a("s_barrier")
a("k3_fin:")
final_combine(a, tiles, tileA, 12, 11)
a("k3_end:\ns_endpgm")
a.add_kernel("k3_kernel", 256); a.add_launch("k3_kernel", 256, 512, LDS_BYTES)
out = sys.argv[1] if len(sys.argv) > 1 else "v1.s"
open(out, "w").write(a.text(header=HEADER))
print("nops", a.nops_added)
```

```python
from pieces import *

class DsQ:
    def __init__(self, a): self.a = a; self.q = []
    def op(self, text, tag=None): self.a(text); self.q.append(tag)
    def wait(self, tag):
        idx = [i for i, t in enumerate(self.q) if t == tag]
        if not idx: return
        n = len(self.q) - 1 - idx[-1]
        assert n <= 15, n
        self.a(f"s_waitcnt lgkmcnt({n})")
        self.q = self.q[idx[-1] + 1:]
    def drain(self): self.a("s_waitcnt lgkmcnt(0)"); self.q = []

def plan_slots():
    free = [(16, 0), (17, 0), (18, 0)] + [(4 * w + c, c + 1) for c in range(4) for w in range(4)]
    cells = {}
    def alloc(key, release):
        free.sort(key=lambda t: t[1])
        s, req = free.pop(0)
        cells[key] = (s, req)
        free.append((s, release))
    for q in range(4):
        alloc(("A", "X", q), 5 + q); alloc(("C", "X", q), 13 + q); alloc(("A", "Y", q), 5 + q)
    for q in range(4):
        alloc(("B", "Y", q), 9 + q); alloc(("C", "Y", q), 13 + q); alloc(("B", "X", q), 9 + q)
    return cells, free
CELLS, FREE_AFTER = plan_slots()

S_I, S_J, S_P, S_NP, S_ROT = 84, 85, 86, 87, 88

def g1_ids(a):
    a("s_and_b32 s40, s2, 7\ns_lshr_b32 s41, s2, 3")
    a(f"s_and_b32 s{S_I}, s40, 1\ns_lshl_b32 s{S_I}, s{S_I}, 3\ns_and_b32 s42, s41, 7\ns_add_u32 s{S_I}, s{S_I}, s42")
    a(f"s_lshr_b32 s{S_J}, s40, 1\ns_lshl_b32 s{S_J}, s{S_J}, 2\ns_lshr_b32 s42, s41, 3\ns_add_u32 s{S_J}, s{S_J}, s42")
    a(f"s_mul_i32 s{S_P}, s{S_J}, 43\ns_add_u32 s{S_NP}, s{S_P}, 43\ns_lshr_b32 s{S_P}, s{S_P}, 4\ns_lshr_b32 s{S_NP}, s{S_NP}, 4\ns_sub_u32 s{S_NP}, s{S_NP}, s{S_P}")
    a(f"s_add_u32 s{S_ROT}, s{S_I}, s{S_J}\ns_and_b32 s{S_ROT}, s{S_ROT}, 3")

X0, ACC, AF = 128, (64, 96), 32
PD = 3

def g1_x_issue_setup(a):
    a(f"s_and_b32 s40, s3, 1\ns_lshr_b32 s41, s3, 1\ns_lshl_b32 s41, s41, 5\ns_lshl_b32 s50, s{S_I}, 1\ns_add_u32 s50, s50, s40\ns_add_u32 s50, s50, s41")
    a("s_lshl_b32 s51, s3, 15")
    for c in range(4):
        a(f"s_add_u32 s40, s{S_ROT}, {c}\ns_and_b32 s40, s40, 3\ns_lshl_b32 s40, s40, 8\ns_lshl_b32 s{52+c}, s50, 15\ns_add_u32 s{52+c}, s{52+c}, s40")
    a("v_lshrrev_b32 v20, 4, v1\nv_and_b32 v21, 15, v1\nv_xor_b32 v21, v21, v20\nv_lshlrev_b32 v21, 4, v21\nv_lshl_add_u32 v16, v20, 10, v21")
    for e in range(1, 4): a(f"v_xor_b32 v{16+e}, {64*e}, v16")

def g1_x_issue(a, c):
    for e in range(8):
        a(f"s_add_u32 m0, s51, {c*SLOT + e*1024}")
        a(f"s_add_u32 s40, s{52+c}, {e*4096}")
        a(f"buffer_load_dwordx4 v{16+(e&3)}, {sr(S_X)}, s40 offen lds")

def epilogue_ops(acc, fb_sgpr, packed, st_flags):
    ops = []
    for tau in range(2):
        out = 24 + 4 * tau
        for p in range(4):
            g, u = acc + 16*tau + 2*p, acc + 16*tau + 8 + 2*p
            e, q = 16 + 4*(p & 1), 18 + 4*(p & 1)
            if packed:
                ops += [f"v_pk_mul_f32 v[{e}:{e+1}], v[{g}:{g+1}], v[10:11] op_sel_hi:[1,0]",
                        f"v_pk_mul_f32 v[{q}:{q+1}], v[{g}:{g+1}], v[{u}:{u+1}]",
                        f"v_exp_f32 v{e}, v{e}", f"v_exp_f32 v{e+1}, v{e+1}",
                        f"v_pk_fma_f32 v[{e}:{e+1}], v[{e}:{e+1}], v[10:11], v[10:11] op_sel:[0,1,1] op_sel_hi:[1,1,1]",
                        f"v_rcp_f32 v{e}, v{e}", f"v_rcp_f32 v{e+1}, v{e+1}",
                        f"v_pk_mul_f32 v[{q}:{q+1}], v[{q}:{q+1}], v[{e}:{e+1}]"]
            else:
                ops += [f"v_mul_f32 v{e}, v10, v{g}", f"v_mul_f32 v{e+1}, v10, v{g+1}",
                        f"v_exp_f32 v{e}, v{e}", f"v_mul_f32 v{q}, v{g}, v{u}",
                        f"v_exp_f32 v{e+1}, v{e+1}", f"v_mul_f32 v{q+1}, v{g+1}, v{u+1}",
                        f"v_fma_f32 v{e}, v{e}, v11, v11", f"v_fma_f32 v{e+1}, v{e+1}, v11, v11",
                        f"v_rcp_f32 v{e}, v{e}", f"v_rcp_f32 v{e+1}, v{e+1}",
                        f"v_mul_f32 v{q}, v{q}, v{e}", f"v_mul_f32 v{q+1}, v{q+1}, v{e+1}"]
            ops.append(f"v_cvt_pk_bf16_f32 v{out+p}, v{q}, v{q+1}")
        ops.append(f"buffer_store_dwordx4 v[{out}:{out+3}], v3, {sr(S_WS)}, s{fb_sgpr} offen offset:{1024*tau} {st_flags}")
    return ops

def g1_main(a, st_flags="", after_pass=None):
    dq = DsQ(a)
    slow = []
    a(f"s_lshl_b32 s40, s3, 2\ns_add_u32 s40, s40, {MISC}\nv_mov_b32 v9, s40")
    a("v_lshlrev_b32 v3, 4, v1")
    a("v_and_b32 v20, 31, v1\nv_lshrrev_b32 v21, 5, v1\nv_and_b32 v22, 15, v1\nv_xor_b32 v21, v21, v22\nv_lshlrev_b32 v21, 4, v21")
    a("v_lshl_add_u32 v24, v20, 8, v21\nv_add_u32 v24, s51, v24")
    for j in range(1, 8): a(f"v_xor_b32 v{24+j}, {32*j}, v24")
    a("v_bfe_u32 v20, v1, 4, 1")
    a("v_lshrrev_b32 v21, 5, v1")
    a("v_bfe_u32 v22, v1, 2, 2")
    a(f"v_add_u32 v8, s{S_P}, v22\nv_and_b32 v8, 1, v8")
    a("v_lshrrev_b32 v22, 1, v22\nv_lshl_add_u32 v22, v21, 2, v22\nv_lshl_add_u32 v22, v8, 1, v22\nv_lshlrev_b32 v22, 6, v22")
    a("v_lshl_add_u32 v22, v20, 12, v22\nv_lshl_add_u32 v22, v20, 5, v22")
    a("v_and_b32 v21, 1, v1\nv_lshl_add_u32 v22, v21, 4, v22\nv_bfe_u32 v21, v1, 1, 1\nv_lshl_add_u32 v4, v21, 3, v22")
    a("v_xor_b32 v5, 128, v4\nv_xor_b32 v6, 32, v4\nv_xor_b32 v7, 160, v4")
    a("s_mov_b32 s56, 0x3f803f80\ns_mov_b32 s57, 0x00003f80\ns_mov_b32 s58, 0x3f800000")
    a(f"s_mul_i32 s60, s50, 86\ns_lshl_b32 s40, s{S_P}, 1\ns_add_u32 s60, s60, s40\ns_lshl_b32 s60, s60, 10\ns_add_u32 s60, s60, {WS_H}")
    a(f"s_add_u32 s62, s60, 2048\ns_sub_u32 s40, s{S_NP}, 1\ns_lshl_b32 s40, s40, 11\ns_add_u32 s61, s60, s40")
    PROG = 9
    def progress(val, areg):
        a(f"v_mov_b32 v14, {val}")
        dq.op(f"ds_write_b32 v{areg}, v14 offset:{FL_FREE - MISC}")
    def reads(c):
        for j in range(8):
            r = X0 + 32*c + 4*j
            dq.op(f"ds_read_b128 v[{r}:{r+3}], v{24+j} offset:{c*SLOT}", ("x", c, j))
        progress(c + 1, PROG)
    def sums(c):
        for j in range(8):
            if j % 2 == 0: dq.wait(("x", c, j + 1))
            for r in range(X0 + 32*c + 4*j, X0 + 32*c + 4*j + 4):
                first = (r == X0)
                a(f"v_dot2_f32_bf16 v10, v{r}, s56, {'0' if first else 'v10'}")
                a(f"v_dot2_f32_bf16 v11, v{r}, v{r}, {'0' if first else 'v11'}")
    a("s_waitcnt vmcnt(8)"); Stamps.at(a, 1); reads(0)
    g1_x_issue(a, 2)
    sums(0)
    a("s_waitcnt vmcnt(8)"); reads(1)
    g1_x_issue(a, 3)
    sums(1)
    a("s_waitcnt vmcnt(8)"); reads(2); sums(2)
    a("s_waitcnt vmcnt(0)"); Stamps.at(a, 2); reads(3)
    dq.op(f"ds_read_b32 v2, v9 offset:{FL_FULL - MISC}", "poll")
    sums(3)
    a("v_mov_b32 v12, v10\nv_mov_b32 v13, v11")
    a("v_permlane32_swap_b32 v12, v10\nv_permlane32_swap_b32 v13, v11")
    a("v_add_f32 v10, v10, v12\nv_add_f32 v11, v11, v13")
    ln_scalars(a, 10, 11, None)
    bf_round(a, 10)
    a("v_xor_b32 v31, 0x80000000, v10")
    a(f"v_mul_f32 v10, {f32(-math.log2(math.e))}, v11")
    a("v_mul_f32 v11, v11, v11\nv_rcp_f32 v11, v11")
    def center(j):
        ops = []
        for r in range(4):
            x = X0 + 4*j + r; t = 16 + 2*r
            ops += [f"v_dot2_f32_bf16 v{t}, v{x}, s57, v31", f"v_dot2_f32_bf16 v{t+1}, v{x}, s58, v31"]
        for r in range(4):
            ops.append(f"v_cvt_pk_bf16_f32 v{X0+4*j+r}, v{16+2*r}, v{17+2*r}")
        return ops
    PASS = "ABC"
    def wreads(g):
        ps, q, j = PASS[g // 32], (g % 32) // 8, g % 8
        if j == 0:
            need_full = {"A": q + 1, "B": q + 5, "C": 0}[ps]
            if need_full:
                back, sl = a.label("g1b"), a.label("g1s")
                dq.wait("poll")
                a("v_readfirstlane_b32 s40, v2")
                a(f"s_cmp_ge_u32 s40, {need_full}")
                a(f"s_cbranch_scc0 {sl}")
                a(f"{back}:")
                slow.append((sl, back, need_full))
            bx, by = CELLS[(ps, "X", q)][0] * SLOT, CELLS[(ps, "Y", q)][0] * SLOT
            a(f"s_mov_b32 s40, {by - bx}\ns_mov_b32 s41, {bx}")
            a("v_mul_i32_i24 v0, s40, v8")
            for i in range(4): a(f"v_add3_u32 v{12+i}, v0, v{4+i}, s41")
        b = AF + 8 * (g % 4)
        for tau in range(2):
            for rd in range(2):
                dq.op(f"ds_read_b64_tr_b16 v[{b+4*tau+2*rd}:{b+4*tau+2*rd+1}], v{12+2*tau+rd} offset:{512*j}", ("w", g, tau))
        if j == 7:
            a(f"v_mov_b32 v0, {5 + g // 8}")
            dq.op(f"ds_write_b32 v{PROG}, v0 offset:{FL_FREE - MISC}")
        if j == 5 and g < 56:
            dq.op(f"ds_read_b32 v2, v9 offset:{FL_FULL - MISC}", "poll")
    for g in range(PD): wreads(g)
    for o in center(0) + center(1): a(o)
    Stamps.at(a, 3)
    fin2, done = a.label("g1fin2"), a.label("g1done")
    for g in range(96):
        ps, j = g // 32, g % 32
        acc = ACC[ps & 1]
        fill = []
        if ps == 0:
            if j < 30: fill = center(j + 2)
        else:
            ep = EP[ps]
            lo, hi = (len(ep) * max(j - 1, 0)) // 28, (len(ep) * max(j, 0)) // 28
            fill = ep[min(lo, len(ep)):min(hi, len(ep))]
        if j == 0 and ps == 0:
            EP = {1: epilogue_ops(ACC[0], 60, False, st_flags), 2: epilogue_ops(ACC[1], 61, False, st_flags)}
        b = AF + 8 * (g % 4)
        half = (len(fill) + 1) // 2
        for tau in range(2):
            dq.wait(("w", g, tau))
            d = acc + 16 * tau
            a(f"v_mfma_f32_32x32x16_bf16 v[{d}:{d+15}], v[{b+4*tau}:{b+4*tau+3}], v[{X0+4*j}:{X0+4*j+3}], " + ("0" if j == 0 else f"v[{d}:{d+15}]"))
            if tau == 0 and g + PD < 96: wreads(g + PD)
            for o in (fill[:half] if tau == 0 else fill[half:]): a(o)
        if j == 31: Stamps.at(a, 4 + ps)
        if after_pass and j == 31 and ps >= 1: after_pass(ps)
        if g == 63:
            a(f"s_cmp_eq_u32 s{S_NP}, 2")
            a(f"s_cbranch_scc1 {fin2}")
    for o in epilogue_ops(ACC[0], 62, True, st_flags): a(o)
    a(f"s_branch {done}")
    for (sl, back, n) in slow:
        a(f"{sl}:")
        lds_wait_ge(a, 9, FL_FULL - MISC, n, 2, 40, 41)
        a(f"s_branch {back}")
    a(f"{fin2}:")
    a("s_nop 15")
    for o in epilogue_ops(ACC[1], 61, True, st_flags): a(o)
    a(f"{done}:")

def g1_loader(a):
    a(f"v_mov_b32 v2, {MISC}")
    a("v_and_b32 v16, 3, v1\nv_lshl_add_u32 v16, v16, 2, v2")
    a("v_lshrrev_b32 v8, 2, v1\nv_and_b32 v9, 3, v1\nv_lshlrev_b32 v9, 4, v9\nv_xor_b32 v10, 2, v8")
    a("v_mul_u32_u24 v8, 5504, v8\nv_mul_u32_u24 v10, 5504, v10\nv_xor_b32 v11, 32, v9")
    a("v_add_u32 v4, v8, v9\nv_add_u32 v5, v8, v11\nv_add_u32 v6, v10, v9\nv_add_u32 v7, v10, v11")
    for q in range(4):
        a(f"s_add_u32 s40, s{S_ROT}, {q}\ns_and_b32 s40, s40, 3\ns_mul_i32 s{44+q}, s40, {128*2752}")
    a(f"s_and_b32 s40, s{S_P}, 1\ns_mul_i32 s48, s40, 2752\ns_sub_u32 s49, 2752, s48")
    a(f"s_lshl_b32 s40, s{S_P}, 6\ns_add_u32 s48, s48, s40\ns_add_u32 s49, s49, s40")
    lds_wait_ge(a, 2, FL_A_DONE - MISC, 4, 12, 40, 41)
    Stamps.at(a, 3)
    two, done = a.label("ld2"), a.label("lddone")
    a(f"s_cmp_eq_u32 s{S_NP}, 2")
    a(f"s_cbranch_scc1 {two}")
    def publish(n):
        a(f"v_mov_b32 v3, {n}")
        a(f"ds_write_b32 v16, v3 offset:{FL_FULL - MISC}")
    def variant(np_):
        seen = 0
        for grp in range(8):
            st, q = grp // 4, grp % 4
            if st == 0: seq = [[("A", "X", 0), ("C", "X", 64)], [("A", "Y", 0)]]
            else:       seq = [[("C", "Y", 64), ("B", "Y", 64 * (np_ - 1))], [("B", "X", 64 * (np_ - 1))]]
            if np_ == 2: seq = [[c for c in s if c[0] != "C"] for s in seq]
            req = max(CELLS[(c[0], c[1], q)][1] for s in seq for c in s)
            if req > seen:
                ok = a.label("ldok")
                a(f"ds_read_b128 v[12:15], v2 offset:{FL_FREE - MISC}\ns_waitcnt lgkmcnt(0)")
                a("v_min_u32 v12, v12, v13\nv_min3_u32 v12, v12, v14, v15\nv_readfirstlane_b32 s40, v12")
                a(f"s_cmp_ge_u32 s40, {req}\ns_cbranch_scc1 {ok}")
                if grp:
                    a("s_waitcnt vmcnt(0)"); publish(grp)
                lds_wait_ge(a, 2, FL_FREE - MISC, req, 12, 40, 41, minof=4)
                a(f"{ok}:")
                seen = req
            cnt = 0
            for s in seq:
                cl = s[0][1]; ci = 0 if cl == "X" else 1
                a(f"s_add_u32 s42, s{44+q}, s{48+ci}")
                for g in range(4):
                    if g: a(f"s_add_u32 s42, s42, {32*2752}")
                    for mat in range(2):
                        for (ps, _, off) in s:
                            dst = CELLS[(ps, cl, q)][0] * SLOT + mat * 4096 + g * 1024
                            if dst - off >= 0:
                                a(f"s_mov_b32 m0, {dst - off}")
                                a(f"buffer_load_dwordx4 v{4+2*ci+mat}, {sr(S_W1 + 4*mat)}, s42 offen offset:{off} lds")
                            else:
                                a(f"s_mov_b32 m0, {dst}\ns_add_u32 s43, s42, {off}")
                                a(f"buffer_load_dwordx4 v{4+2*ci+mat}, {sr(S_W1 + 4*mat)}, s43 offen lds")
                            cnt += 1
            if grp:
                a(f"s_waitcnt vmcnt({cnt})"); publish(grp)
                if grp in (1, 4, 6): Stamps.at(a, {1: 4, 4: 5, 6: 6}[grp])
        a("s_waitcnt vmcnt(0)"); publish(8)
    variant(3)
    a(f"s_branch {done}")
    a(f"{two}:")
    variant(2)
    a(f"{done}:")

def init_flags(a):
    a(f"v_mov_b32 v2, {MISC}\nv_mov_b32 v4, 0\nv_mov_b32 v5, 0\nv_mov_b32 v6, 0\nv_mov_b32 v7, 0")
    for i in range(4): a(f"ds_write_b128 v2, v[4:7] offset:{16*i}")
    a("s_waitcnt lgkmcnt(0)")
```

```python
from gemm1 import *

PJ = [(43 * j) >> 4 for j in range(17)]
ORDER = [PJ[j] for j in range(16)] + [PJ[j+1] - 1 for j in range(16)] + [PJ[j] + 1 for j in range(16) if PJ[j+1] - PJ[j] == 3]
assert sorted(ORDER) == list(range(43))
S_T, S_CJ = 89, 90
FL_FULL2, FL_FREE2, FL_FULLE = MISC + 64, MISC + 80, MISC + 96
TROW = 272
TILE = 64 * TROW

def g2_ids(a):
    a("s_and_b32 s40, s2, 7\ns_lshr_b32 s41, s2, 3")
    a(f"s_lshl_b32 s{S_T}, s40, 2\ns_and_b32 s42, s41, 3\ns_add_u32 s{S_T}, s{S_T}, s42\ns_lshr_b32 s{S_CJ}, s41, 2")

def full_check(a, stubs, sfull, need, areg, off, vt):
    back, sl = a.label("fb"), a.label("fs")
    a(f"s_cmp_ge_u32 s{sfull}, {need}")
    a(f"s_cbranch_scc0 {sl}")
    a(f"{back}:")
    stubs.append((sl, back, sfull, need, areg, off, vt))

def emit_stubs(a, stubs):
    for (sl, back, sfull, need, areg, off, vt) in stubs:
        a(f"{sl}:")
        lds_wait_ge(a, areg, off, need, vt, sfull, 41)
        a(f"s_branch {back}")

HB, ACC2, AF2 = 84, 52, 20

def g2_h_issue(a, ld_flags="", lo=0, hi=43):
    for p in range(lo, hi):
        a(f"s_add_u32 s40, s50, {ORDER[p] * 2048}")
        a(f"buffer_load_dwordx4 v[{HB+4*p}:{HB+4*p+3}], v3, {sr(S_WS)}, s40 offen {ld_flags}")

def g2_main_setup(a):
    a(f"s_and_b32 s40, s3, 1\ns_lshl_b32 s40, s40, 5\ns_add_u32 s40, s40, s{S_T}\ns_mul_i32 s50, s40, 86")
    a(f"s_lshr_b32 s51, s3, 1\ns_add_u32 s50, s50, s51\ns_lshl_b32 s50, s50, 10\ns_add_u32 s50, s50, {WS_H}")
    a("v_lshlrev_b32 v3, 4, v1")

def g2_main(a, w2cells, tiles, vm_after=0):
    dq = DsQ(a); stubs = []
    a(f"s_lshl_b32 s40, s3, 2\ns_add_u32 s40, s40, {MISC}\nv_mov_b32 v10, s40")
    a("v_bfe_u32 v16, v1, 2, 2\nv_lshrrev_b32 v17, 5, v1\nv_lshl_add_u32 v17, v17, 3, v16\ns_lshl_b32 s40, s51, 4\nv_add_u32 v17, s40, v17")
    a("v_lshlrev_b32 v17, 7, v17\nv_lshrrev_b32 v16, 1, v16\nv_lshl_add_u32 v17, v16, 6, v17")
    a("v_bfe_u32 v16, v1, 4, 1\nv_lshl_add_u32 v17, v16, 5, v17\nv_and_b32 v16, 3, v1\nv_lshl_add_u32 v4, v16, 3, v17")
    a("v_xor_b32 v5, 64, v4")
    for w in (1, 2):
        a(f"v_add_u32 v{4+2*w}, {65536*w}, v4\nv_add_u32 v{5+2*w}, {65536*w}, v5")
    a("s_mov_b32 s52, 0")
    reuse = {c for c in range(22) if w2cells[c] in w2cells[c+1:]}
    def reads(p):
        c = p // 2
        if p % 2 == 0: full_check(a, stubs, 52, c + 1, 10, FL_FULL2 - MISC, 2)
        base = w2cells[c] * SLOT + (p % 2) * 4096
        w, off = base >> 16, base & 0xffff
        b = AF2 + 8 * (p % 4)
        for dl in range(2):
            for rd in range(2):
                dq.op(f"ds_read_b64_tr_b16 v[{b+4*dl+2*rd}:{b+4*dl+2*rd+1}], v{4+2*w+dl} offset:{off + 512*rd}", ("w", p, dl))
        if p % 2 == 1 and c in reuse:
            a(f"v_mov_b32 v0, {c + 1}")
            dq.op(f"ds_write_b32 v10, v0 offset:{FL_FREE2 - MISC}")
    for p in range(PD): reads(p)
    for p in range(43):
        b = AF2 + 8 * (p % 4)
        a(f"s_waitcnt vmcnt({42 - p + vm_after})")
        if p in (0, 16, 32): Stamps.at(a, 2 + p // 16)
        for dl in range(2):
            dq.wait(("w", p, dl))
            d = ACC2 + 16 * dl
            a(f"v_mfma_f32_32x32x16_bf16 v[{d}:{d+15}], v[{b+4*dl}:{b+4*dl+3}], v[{HB+4*p}:{HB+4*p+3}], " + ("0" if p == 0 else f"v[{d}:{d+15}]"))
            if dl == 0 and p + PD < 43: reads(p + PD)
    a(f"s_and_b32 s40, s3, 1\ns_mul_i32 s40, s40, {32*TROW}\ns_mul_i32 s41, s51, {tiles[1] - tiles[0]}\ns_add_u32 s40, s40, s41\ns_add_u32 s40, s40, {tiles[0]}")
    a(f"v_and_b32 v16, 31, v1\nv_mul_u32_u24 v16, {TROW}, v16\nv_lshrrev_b32 v17, 5, v1\nv_lshl_add_u32 v16, v17, 4, v16\nv_add_u32 v16, s40, v16")
    Stamps.at(a, 5)
    a("s_barrier")
    for dl in range(2):
        for g in range(4):
            r = ACC2 + 16*dl + 4*g
            a(f"ds_write_b128 v16, v[{r}:{r+3}] offset:{128*dl + 32*g}")
    return stubs

GF, ACCE, BE = 128, 64, 32

def g_consts(a, dts):
    for n, dt in enumerate(dts):
        a(f"v_and_b32 v4, 15, v1\ns_lshl_b32 s40, s{S_CJ}, 6\nv_add_u32 v4, s40, v4")
        a(f"v_add_u32 v4, {16*dt}, v4")
        a(f"v_cvt_f32_u32 v4, v4\nv_mul_f32 v4, {f32(1/512)}, v4\nv_mul_f32 v5, {f32(7.0)}, v4")
        a("v_lshrrev_b32 v6, 4, v1\nv_lshl_add_u32 v6, v6, 1, 1\nv_cvt_f32_u32 v6, v6\nv_mul_f32 v6, v6, v4")
        for i in range(64):
            if i: a(f"v_add_f32 v6, v6, v{4 if i & 1 else 5}")
            t = 8 + 2 * (i & 1)
            a(f"v_cos_f32 v{t}, v6\nv_sin_f32 v{t+1}, v6")
            if i: a(f"v_cvt_pk_bf16_f32 v{GF+64*n+i-1}, v{18-t}, -v{19-t}")
        a(f"v_cvt_pk_bf16_f32 v{GF+64*n+63}, v10, -v11")

def e_part(a, dts, ecells, tileA):
    dq = DsQ(a); stubs = []
    a(f"v_mov_b32 v2, {MISC}")
    a("v_lshrrev_b32 v8, 2, v1\nv_lshlrev_b32 v9, 7, v8\nv_bfe_u32 v8, v1, 3, 2\nv_lshl_add_u32 v9, v8, 5, v9")
    a("v_and_b32 v8, 3, v1\nv_lshl_add_u32 v4, v8, 3, v9")
    for nu in range(1, 4): a(f"v_xor_b32 v{4+nu}, {32*nu}, v4")
    a("s_mov_b32 s52, 0")
    def reads(js):
        c = js // 2
        if js % 2 == 0:
            full_check(a, stubs, 52, c + 1, 2, FL_FULLE - MISC, 3)
            for nu in range(4): a(f"v_add_u32 v{12+nu}, {ecells[c]*SLOT}, v{4+nu}")
        b = BE + 16 * (js % 2)
        for nu in range(4):
            for rd in range(2):
                dq.op(f"ds_read_b64_tr_b16 v[{b+4*nu+2*rd}:{b+4*nu+2*rd+1}], v{12+nu} offset:{(js % 2)*4096 + 2048*rd}", ("e", js, nu))
    Stamps.at(a, 2)
    reads(0)
    Stamps.at(a, 3)
    for js in range(16):
        b = BE + 16 * (js % 2)
        dq.wait(("e", js, 0))
        if js + 1 < 16: reads(js + 1)
        for nu in range(4):
            dq.wait(("e", js, nu))
            for n in range(len(dts)):
                d = ACCE + 16*n + 4*nu; g = GF + 64*n + 4*js
                a(f"v_mfma_f32_16x16x32_bf16 v[{d}:{d+3}], v[{g}:{g+3}], v[{b+4*nu}:{b+4*nu+3}], " + ("0" if js == 0 else f"v[{d}:{d+3}]"))
    a(f"v_and_b32 v16, 15, v1\nv_mul_u32_u24 v16, {TROW}, v16\nv_lshrrev_b32 v17, 4, v1\nv_lshl_add_u32 v16, v17, 4, v16\nv_add_u32 v16, {tileA}, v16")
    Stamps.at(a, 5)
    a("s_barrier")
    for n, dt in enumerate(dts):
        for nu in range(4):
            d = ACCE + 16*n + 4*nu
            a(f"ds_write_b128 v16, v[{d}:{d+3}] offset:{16*nu*TROW + 64*dt}")
    return stubs

def g2_loader(a, seq, e_flags="", LAG=2):
    a(f"v_mov_b32 v2, {MISC}")
    a("v_and_b32 v16, 3, v1\nv_lshl_add_u32 v16, v16, 2, v2")
    a("v_lshrrev_b32 v8, 3, v1\nv_and_b32 v9, 7, v1\nv_bfe_u32 v10, v1, 4, 1\nv_lshlrev_b32 v10, 2, v10\nv_xor_b32 v10, v10, v9")
    a("v_lshlrev_b32 v10, 4, v10\nv_lshl_add_u32 v4, v8, 10, v10")
    a("v_bfe_u32 v10, v1, 4, 2\nv_lshlrev_b32 v10, 1, v10\nv_xor_b32 v10, v10, v9\nv_lshlrev_b32 v10, 4, v10\nv_lshl_add_u32 v5, v8, 12, v10")
    a(f"s_lshl_b32 s44, s{S_CJ}, 7")
    a(f"s_lshl_b32 s45, s{S_T}, 7\ns_add_u32 s45, s45, {WS_E}")
    def publish(item):
        kind, c = item[0], item[1]
        a(f"v_mov_b32 v3, {c + 1}")
        a(f"ds_write_b32 v16, v3 offset:{(FL_FULL2 if kind == 'w' else FL_FULLE) - MISC}")
    counts = []; seen = 0; pub = 0
    for n, (kind, c, slot, req) in enumerate(seq):
        if req > seen:
            ok = a.label("ldok")
            a(f"ds_read_b128 v[12:15], v2 offset:{FL_FREE2 - MISC}\ns_waitcnt lgkmcnt(0)")
            a("v_min_u32 v12, v12, v13\nv_min3_u32 v12, v12, v14, v15\nv_readfirstlane_b32 s40, v12")
            a(f"s_cmp_ge_u32 s40, {req}\ns_cbranch_scc1 {ok}")
            a("s_waitcnt vmcnt(0)")
            last = {}
            for it in seq[pub:n]: last[it[0]] = it
            for it in last.values(): publish(it)
            lds_wait_ge(a, 2, FL_FREE2 - MISC, req, 12, 40, 41, minof=4)
            a(f"{ok}:")
            seen = req
        cnt = 0
        if kind == "w":
            for p in range(2 * c, min(2 * c + 2, 43)):
                for g in range(4):
                    a(f"s_mov_b32 m0, {slot*SLOT + (p % 2)*4096 + g*1024}")
                    a(f"s_add_u32 s42, s44, {ORDER[p]*32768 + g*8192}")
                    a(f"buffer_load_dwordx4 v4, {sr(S_W2)}, s42 offen lds"); cnt += 1
        else:
            for g in range(8):
                a(f"s_mov_b32 m0, {slot*SLOT + g*1024}")
                a(f"s_add_u32 s42, s45, {(64*c + 8*g)*4096}")
                a(f"buffer_load_dwordx4 v5, {sr(S_WS)}, s42 offen {e_flags} lds"); cnt += 1
        counts.append(cnt)
        if n in (10, 18): Stamps.at(a, 2 if n == 10 else 3)
        if n >= LAG:
            a(f"s_waitcnt vmcnt({sum(counts[n-LAG+1:])})"); publish(seq[n - LAG]); pub = n - LAG + 1
    for n in range(len(seq) - LAG, len(seq)):
        a(f"s_waitcnt vmcnt({sum(counts[n+1:])})"); publish(seq[n])

def res_issue(a, dst, voff):
    a(f"s_lshr_b32 s40, s3, 2\ns_lshl_b32 s40, s40, 5\ns_add_u32 s40, s40, s{S_T}\ns_lshl_b32 s40, s40, 15")
    a(f"s_and_b32 s41, s3, 3\ns_lshl_b32 s41, s41, 13\ns_add_u32 s40, s40, s41\ns_lshl_b32 s41, s{S_CJ}, 7\ns_add_u32 s91, s40, s41")
    a(f"v_lshrrev_b32 v{dst}, 3, v1\nv_and_b32 v{voff}, 7, v1\nv_lshlrev_b32 v{voff}, 4, v{voff}\nv_lshl_add_u32 v{voff}, v{dst}, 10, v{voff}")
    a(f"buffer_load_dwordx4 v[{dst}:{dst+3}], v{voff}, {sr(S_X)}, s91 offen")

def final_combine(a, tiles, tileA, xr, voff):
    a(f"s_and_b32 s40, s3, 3\ns_mul_i32 s40, s40, {8*TROW}\ns_lshr_b32 s41, s3, 2\ns_mul_i32 s42, s41, {32*TROW}")
    a(f"v_lshrrev_b32 v16, 3, v1\nv_mul_u32_u24 v16, {TROW}, v16\nv_and_b32 v17, 7, v1\nv_lshl_add_u32 v16, v17, 5, v16\nv_add_u32 v16, s40, v16")
    a(f"v_add_u32 v17, s42, v16\nv_add_u32 v17, {tiles[0]}, v17\nv_add_u32 v16, {tileA}, v16")
    a("s_lshl_b32 s41, s41, 31\ns_or_b32 s42, s41, 0x3f800000")
    a("s_waitcnt lgkmcnt(0)\ns_barrier")
    Stamps.at(a, 6)
    R = 20
    for q in range(2):
        a(f"ds_read_b128 v[{R+4*q}:{R+4*q+3}], v16 offset:{16*q}")
        a(f"ds_read_b128 v[{R+8+4*q}:{R+8+4*q+3}], v16 offset:{32*TROW + 16*q}")
        a(f"ds_read_b128 v[{R+16+4*q}:{R+16+4*q+3}], v17 offset:{16*q}")
        a(f"ds_read_b128 v[{R+24+4*q}:{R+24+4*q+3}], v17 offset:{tiles[1] - tiles[0] + 16*q}")
    a("s_waitcnt vmcnt(0)")
    XU = 52
    for p in range(4):
        a(f"v_lshlrev_b32 v{XU+2*p}, 16, v{xr+p}\nv_and_b32 v{XU+2*p+1}, 0xffff0000, v{xr+p}")
    for p in range(4):
        if p % 2 == 0: a(f"s_waitcnt lgkmcnt({4 if p == 0 else 0})")
        r = R + 2*p
        a(f"v_pk_fma_f32 v[{r}:{r+1}], v[{r+8}:{r+9}], s[42:43], v[{r}:{r+1}] op_sel_hi:[1,0,1]")
        a(f"v_pk_add_f32 v[{r+16}:{r+17}], v[{r+16}:{r+17}], v[{r+24}:{r+25}]")
        a(f"v_pk_add_f32 v[{r}:{r+1}], v[{r}:{r+1}], v[{XU+2*p}:{XU+2*p+1}]")
        a(f"v_pk_add_f32 v[{r}:{r+1}], v[{r}:{r+1}], v[{r+16}:{r+17}]")
        a(f"v_cvt_pk_bf16_f32 v{xr+p}, v{r}, v{r+1}")
    a(f"buffer_store_dwordx4 v[{xr}:{xr+3}], v{voff}, {sr(S_OUT)}, s91 offen")
```

```python
import math
from asmlib import *

WS_Z, WS_WT, WS_E, WS_H, WS_FLAG = 0x000000, 0x200000, 0x400000, 0x600000, 0xC00000
WS_STAMP = 0x8000000
SLOT = 8192
MISC = 19 * SLOT
FL_FULL, FL_FREE, FL_BAR_A, FL_A_DONE = MISC, MISC + 16, MISC + 32, MISC + 36
LDS_BYTES = 160 * 1024
SPIN = 1 << 20

S_X, S_WR, S_WI, S_W1, S_W3, S_W2, S_OUT, S_WS = 8, 12, 16, 20, 24, 28, 32, 36
S_WAVE = 3

def prologue(a, end_label, nwg=256, pf=None):
    a(f"s_cmp_ge_u32 s2, {nwg}")
    a(f"s_cbranch_scc1 {end_label}")
    Stamps.at(a, 0); Stamps.clear(a)
    a("s_load_dwordx16 s[64:79], s[0:1], 0")
    a("s_load_dwordx4 s[80:83], s[0:1], 64")
    if pf: code_prefetch(a, *pf)
    a("v_lshrrev_b32 v2, 6, v0")
    a("v_and_b32 v1, 63, v0")
    a("v_readfirstlane_b32 s3, v2")
    a("s_waitcnt lgkmcnt(0)")
    srd(a, S_X, 64, 2048 * 1024)
    srd(a, S_WR, 66, 2048 * 514)
    srd(a, S_WI, 68, 2048 * 514)
    srd(a, S_W1, 72, 512 * 2752)
    srd(a, S_W3, 74, 512 * 2752)
    srd(a, S_W2, 76, 1376 * 1024)
    srd(a, S_OUT, 78, 2048 * 1024)
    srd(a, S_WS, 82, 268435456)

class Stamps:
    on = False
    @staticmethod
    def at(a, i):
        if not Stamps.on: return
        a("s_memrealtime s[100:101]\ns_waitcnt lgkmcnt(0)")
        a(f"s_mov_b32 s{92+i}, s100")
    @staticmethod
    def clear(a):
        if not Stamps.on: return
        for i in range(1, 8): a(f"s_mov_b32 s{92+i}, 0")
    @staticmethod
    def dump(a, kidx):
        if not Stamps.on: return
        Stamps.at(a, 7)
        a(f"s_lshl_b32 s40, s2, 3\ns_add_u32 s40, s40, s3\ns_lshl_b32 s40, s40, 5\ns_add_u32 s40, s40, {WS_STAMP + kidx * 65536}")
        a("v_mov_b32 v0, 0")
        for i in range(8): a(f"v_mov_b32 v{4+i}, s{92+i}")
        a(f"buffer_store_dwordx4 v[4:7], v0, s[{S_WS}:{S_WS+3}], s40 offen")
        a(f"buffer_store_dwordx4 v[8:11], v0, s[{S_WS}:{S_WS+3}], s40 offen offset:16")

def code_prefetch(a, start_label, nbytes, nwaves, dst):
    lines = (nbytes + 127) // 128
    n = (lines + 32 * nwaves - 1) // (32 * nwaves)
    here = a.label("pc")
    a("s_getpc_b64 s[40:41]")
    a(f"{here}:")
    a(f"s_sub_u32 s40, s40, {here}-{start_label}\ns_subb_u32 s41, s41, 0")
    a(f"s_lshr_b32 s42, s2, 3\ns_mul_i32 s42, s42, {nwaves * n}")
    a(f"v_lshrrev_b32 v2, 6, v0\nv_mul_u32_u24 v2, {n}, v2\nv_and_b32 v3, 63, v0\nv_add3_u32 v2, v2, v3, s42")
    a(f"v_min_u32 v2, {lines - 1}, v2\nv_lshlrev_b32 v2, 7, v2")
    a("v_mov_b32 v3, s41\nv_add_co_u32 v2, vcc, s40, v2\nv_addc_co_u32 v3, vcc, 0, v3, vcc")
    a(f"s_mov_b64 exec, {(1 << n) - 1}")
    a(f"global_load_dword v{dst}, v[2:3], off")
    a("s_mov_b64 exec, -1")

def sr(b): return f"s[{b}:{b+3}]"

def lds_wait_ge(a, addr_v, off, n, vt, st, sc, minof=1):
    top, done = a.label("lw"), a.label("lwd")
    a(f"s_mov_b32 s{sc}, {SPIN}")
    a(f"{top}:")
    if minof == 1:
        a(f"ds_read_b32 v{vt}, v{addr_v} offset:{off}")
        a("s_waitcnt lgkmcnt(0)")
    else:
        a(f"ds_read_b128 v[{vt}:{vt+3}], v{addr_v} offset:{off}")
        a("s_waitcnt lgkmcnt(0)")
        a(f"v_min_u32 v{vt}, v{vt}, v{vt+1}")
        a(f"v_min3_u32 v{vt}, v{vt}, v{vt+2}, v{vt+3}")
    a(f"v_readfirstlane_b32 s{st}, v{vt}")
    a(f"s_cmp_ge_u32 s{st}, {n}")
    a(f"s_cbranch_scc1 {done}")
    a(f"s_sub_u32 s{sc}, s{sc}, 1")
    a(f"s_cbranch_scc0 {top}")
    a(f"{done}:")

def bf_round(a, v):
    a(f"v_cvt_pk_bf16_f32 v{v}, v{v}, v{v}")
    a(f"v_and_b32 v{v}, 0xffff0000, v{v}")

def ln_scalars(a, vsum, vsq, vt):
    a(f"v_mul_f32 v{vsum}, {f32(1/512)}, v{vsum}")
    a(f"v_mul_f32 v{vsq}, {f32(1/512)}, v{vsq}")
    a(f"v_fma_f32 v{vsq}, -v{vsum}, v{vsum}, v{vsq}")
    a(f"v_max_f32 v{vsq}, 0, v{vsq}")
    bf_round(a, vsq)
    a(f"v_add_f32 v{vsq}, {f32(1e-5)}, v{vsq}")
    bf_round(a, vsq)
    a(f"v_sqrt_f32 v{vsq}, v{vsq}")
    bf_round(a, vsq)
    a(f"v_rcp_f32 v{vsq}, v{vsq}")

def row_stage(a, s_hw, lds_base, st_flags=""):
    a("s_and_b32 s40, s2, 31")
    a("s_lshr_b32 s41, s2, 5")
    a(f"s_lshl_b32 s42, s41, 2\ns_add_u32 s42, s42, s{s_hw}\ns_lshl_b32 s42, s42, 5\ns_add_u32 s42, s42, s40")
    a("s_lshl_b32 s42, s42, 10")
    a("s_add_u32 s43, s42, 0x100000")
    a(f"s_lshl_b32 s44, s{s_hw}, 11\ns_add_u32 s44, s44, {lds_base}")
    a("v_lshlrev_b32 v2, 4, v1")
    a("s_mov_b32 m0, s44")
    a(f"buffer_load_dwordx4 v2, {sr(S_X)}, s42 offen lds")
    a("s_add_u32 m0, s44, 1024")
    a(f"buffer_load_dwordx4 v2, {sr(S_X)}, s43 offen lds")
    a("s_and_b32 s45, s2, 63")
    a("s_bfe_u32 s46, s2, 0x10006")
    a("s_lshr_b32 s47, s2, 7")
    a(f"s_and_b32 s48, s{s_hw}, 1\ns_lshr_b32 s49, s{s_hw}, 1")
    a("s_lshl_b32 s50, s46, 1\ns_add_u32 s50, s50, s49\ns_lshl_b32 s50, s50, 9\ns_add_u32 s50, s50, s45\ns_mul_i32 s50, s50, 514")
    a("s_lshl_b32 s51, s47, 1\ns_add_u32 s51, s51, s48\ns_lshl_b32 s51, s51, 6")
    a("s_lshl_b32 s52, s51, 1\ns_add_u32 s50, s50, s52\ns_add_u32 s50, s50, 2")
    a("v_lshlrev_b32 v3, 1, v1")
    WRE, WIM = 84, 92
    for e in range(8):
        a(f"s_add_u32 s52, s50, {e * 64 * 514}")
        a(f"buffer_load_ushort v{WRE+e}, v3, {sr(S_WR)}, s52 offen")
        a(f"buffer_load_ushort v{WIM+e}, v3, {sr(S_WI)}, s52 offen")
    N, Q4, FU, ARG, STEP = 4, 5, 6, 7, 8
    B1 = 16
    TC, TS = 32, 40
    A2 = 48
    CM = 9
    a(f"v_and_b32 v{N}, 15, v1")
    a(f"v_lshrrev_b32 v{Q4}, 4, v1\nv_lshlrev_b32 v{Q4}, 2, v{Q4}\nv_cvt_f32_u32 v{Q4}, v{Q4}")
    a(f"v_add_u32 v{FU}, 1, v{N}\nv_cvt_f32_u32 v{FU}, v{FU}")
    a(f"v_mul_f32 v{STEP}, {f32(1/32)}, v{FU}")
    a(f"v_mul_f32 v{ARG}, v{Q4}, v{STEP}")
    C0, S0 = 52, 60
    for j in range(8):
        if j == 4:
            a(f"v_mul_f32 v10, {f32(13.0)}, v{STEP}\nv_add_f32 v{ARG}, v{ARG}, v10")
        elif j:
            a(f"v_add_f32 v{ARG}, v{ARG}, v{STEP}")
        a(f"v_cos_f32 v{C0+j}, v{ARG}\nv_sin_f32 v{S0+j}, v{ARG}")
    for jj in range(4):
        a(f"v_cvt_pk_bf16_f32 v{B1+jj}, v{C0+2*jj}, v{C0+2*jj+1}")
        a(f"v_cvt_pk_bf16_f32 v{B1+4+jj}, -v{S0+2*jj}, -v{S0+2*jj+1}")
    for jj in range(8):
        a(f"v_xor_b32 v{B1+8+jj}, 0x80000000, v{B1+jj}")
    for tau in range(2):
        if tau: a(f"v_add_f32 v{FU}, {f32(16.0)}, v{FU}")
        a(f"v_mul_f32 v{STEP}, {f32(1/512)}, v{FU}")
        a(f"v_mul_f32 v{ARG}, v{Q4}, v{STEP}")
        for r in range(4):
            if r: a(f"v_add_f32 v{ARG}, v{ARG}, v{STEP}")
            a(f"v_cos_f32 v{TC+4*tau+r}, v{ARG}\nv_sin_f32 v{TS+4*tau+r}, v{ARG}")
    a(f"v_lshrrev_b32 v{STEP}, 1, v{N}\nv_cvt_f32_u32 v{STEP}, v{STEP}\nv_mul_f32 v{STEP}, {f32(1/16)}, v{STEP}")
    a(f"v_and_b32 v{ARG}, 1, v{N}\nv_cvt_f32_u32 v{ARG}, v{ARG}\nv_mul_f32 v{ARG}, {f32(0.25)}, v{ARG}")
    a(f"v_fma_f32 v{ARG}, v{Q4}, v{STEP}, v{ARG}")
    for r in range(4):
        if r: a(f"v_add_f32 v{ARG}, v{ARG}, v{STEP}")
        a(f"v_cos_f32 v{C0+r}, v{ARG}\nv_sin_f32 v{S0+r}, v{ARG}")
    for jj in range(2):
        a(f"v_cvt_pk_bf16_f32 v{A2+jj}, v{C0+2*jj}, v{C0+2*jj+1}")
        a(f"v_cvt_pk_bf16_f32 v{A2+2+jj}, v{S0+2*jj}, v{S0+2*jj+1}")
    a(f"v_cmp_eq_u32 vcc, 15, v{N}")
    a(f"v_mov_b32 v{CM}, {f32(32.0)}")
    a(f"v_cndmask_b32 v{CM}, 0, v{CM}, vcc")
    a("s_mov_b32 s53, 0x3f803f80")
    a("v_lshlrev_b32 v10, 3, v1\nv_add_u32 v10, s44, v10")
    a(f"v_lshrrev_b32 v11, 4, v1\nv_lshlrev_b32 v11, 6, v11\nv_add_u32 v11, v11, v{N}\nv_lshlrev_b32 v11, 2, v11\nv_add_u32 v11, s44, v11")
    XF = 52
    Stamps.at(a, 1)
    a("s_waitcnt vmcnt(16)")
    Stamps.at(a, 2)
    for al in range(2):
        a(f"ds_read_b64_tr_b16 v[{XF+4*al}:{XF+4*al+1}], v10 offset:{1024*al}")
        a(f"ds_read_b64_tr_b16 v[{XF+4*al+2}:{XF+4*al+3}], v10 offset:{1024*al+512}")
    D1 = 100
    SU = 12
    a("s_waitcnt lgkmcnt(0)")
    for al in range(2):
        for tau in range(2):
            for ri in range(2):
                d = D1 + 16*al + 8*tau + 4*ri
                a(f"v_mfma_f32_16x16x32_bf16 v[{d}:{d+3}], v[{XF+4*al}:{XF+4*al+3}], v[{B1+8*tau+4*ri}:{B1+8*tau+4*ri+3}], 0")
    for j in range(4):
        for al in range(2):
            c1 = "0" if j == 0 else f"v{SU+2*al}"
            c2 = "0" if j == 0 else f"v{SU+2*al+1}"
            a(f"v_dot2_f32_bf16 v{SU+2*al}, v{XF+4*al+j}, s53, {c1}")
            a(f"v_dot2_f32_bf16 v{SU+2*al+1}, v{XF+4*al+j}, v{XF+4*al+j}, {c2}")
    for m in ("row_ror:8 row_mask:0xf", "row_ror:4 row_mask:0xf", "row_ror:2 row_mask:0xf", "row_ror:1 row_mask:0xf",
              "row_bcast:15 row_mask:0xa", "row_bcast:31 row_mask:0xc"):
        for q in range(4):
            a(f"v_add_f32_dpp v{SU+q}, v{SU+q}, v{SU+q} {m} bank_mask:0xf")
    sub = [Asm(), Asm()]
    for al in range(2): ln_scalars(sub[al], SU+2*al, SU+2*al+1, None)
    for l0, l1 in zip(sub[0].lines, sub[1].lines): a(l0); a(l1)
    for al in range(2):
        a(f"v_readlane_b32 s{54+al}, v{SU+2*al}, 63")
        a(f"v_readlane_b32 s{56+2*al}, v{SU+2*al+1}, 63")
    UF = 60
    T0 = 76
    for al in range(2):
        for r in range(4):
            d = D1 + 16*al + 8 + r
            a(f"v_fma_f32 v{d}, -v{CM}, s{54+al}, v{d}")
    for al in range(2):
        for tau in range(2):
            re, im = D1 + 16*al + 8*tau, D1 + 16*al + 8*tau + 4
            for p in range(2):
                c, s = TC + 4*tau + 2*p, TS + 4*tau + 2*p
                tr, ti = T0 + 4*p, T0 + 4*p + 2
                a(f"v_pk_mul_f32 v[{tr}:{tr+1}], v[{re+2*p}:{re+2*p+1}], v[{c}:{c+1}]")
                a(f"v_pk_mul_f32 v[{ti}:{ti+1}], v[{im+2*p}:{im+2*p+1}], v[{c}:{c+1}]")
                a(f"v_pk_fma_f32 v[{tr}:{tr+1}], v[{im+2*p}:{im+2*p+1}], v[{s}:{s+1}], v[{tr}:{tr+1}]")
                a(f"v_pk_fma_f32 v[{ti}:{ti+1}], v[{re+2*p}:{re+2*p+1}], v[{s}:{s+1}], v[{ti}:{ti+1}] neg_lo:[1,0,0] neg_hi:[1,0,0]")
            u = UF + 8*al + 4*tau
            for p in range(2):
                a(f"v_cvt_pk_bf16_f32 v{u+p}, v{T0+4*p}, v{T0+4*p+1}")
                a(f"v_cvt_pk_bf16_f32 v{u+2+p}, v{T0+4*p+2}, v{T0+4*p+3}")
            d = D1 + 16*al + 8*tau
            a(f"v_mfma_f32_16x16x32_bf16 v[{d}:{d+3}], v[{A2}:{A2+3}], v[{u}:{u+3}], 0")
    for tau in range(2):
        for vl in range(2):
            d0, d1 = D1 + 8*tau + 2*vl, D1 + 16 + 8*tau + 2*vl
            a(f"v_pk_mul_f32 v[{d0}:{d0+1}], v[{d0}:{d0+1}], s[56:57] op_sel_hi:[1,0]")
            a(f"v_pk_fma_f32 v[{T0}:{T0+1}], v[{d1}:{d1+1}], s[58:59], v[{d0}:{d0+1}] op_sel_hi:[1,0,1]")
            a(f"v_pk_fma_f32 v[{T0+2}:{T0+3}], v[{d1}:{d1+1}], s[58:59], v[{d0}:{d0+1}] op_sel_hi:[1,0,1] neg_lo:[1,0,0] neg_hi:[1,0,0]")
            a(f"v_cvt_pk_bf16_f32 v{T0+4}, v{T0}, v{T0+1}")
            a(f"v_cvt_pk_bf16_f32 v{T0+5}, v{T0+2}, v{T0+3}")
            a(f"ds_write_b32 v11, v{T0+4} offset:{64*tau + 128*vl}")
            a(f"ds_write_b32 v11, v{T0+5} offset:{64*tau + 128*vl + 1024}")
    a(f"v_mov_b32 v12, {MISC}\nv_mov_b32 v13, 1")
    a("s_waitcnt lgkmcnt(0)")
    a("s_mov_b64 s[60:61], exec\ns_mov_b64 exec, 1")
    a(f"ds_add_u32 v12, v13 offset:{FL_BAR_A - MISC}")
    a("s_mov_b64 exec, s[60:61]")
    a("s_lshr_b32 s52, s45, 1")
    a("s_bfe_u32 s60, s52, 0x20002\ns_lshl_b32 s60, s60, 3")
    a("s_lshr_b32 s61, s52, 4\ns_lshl_b32 s61, s61, 2\ns_add_u32 s60, s60, s61")
    a("s_and_b32 s61, s52, 3\ns_add_u32 s60, s60, s61")
    a("s_lshl_b32 s61, s46, 5\ns_add_u32 s60, s60, s61\ns_lshl_b32 s60, s60, 6")
    a("s_and_b32 s61, s45, 1\ns_lshl_b32 s61, s61, 12\ns_add_u32 s60, s60, s61")
    a("s_lshl_b32 s61, s49, 5\ns_add_u32 s60, s60, s61")
    a(f"s_lshl_b32 s61, s51, 13\ns_add_u32 s60, s60, s61\ns_add_u32 s60, s60, {WS_WT}")
    a("v_lshlrev_b32 v14, 13, v1")
    a("s_waitcnt vmcnt(0)")
    for e in range(8):
        a(f"v_lshl_or_b32 v{WRE+e}, v{WIM+e}, 16, v{WRE+e}")
    a(f"buffer_store_dwordx4 v[{WRE}:{WRE+3}], v14, {sr(S_WS)}, s60 offen {st_flags}")
    a(f"buffer_store_dwordx4 v[{WRE+4}:{WRE+7}], v14, {sr(S_WS)}, s60 offen offset:16 {st_flags}")
    a(f"s_lshl_b32 s52, s{s_hw}, 6")
    a("v_add_u32 v14, s52, v1")
    a("v_and_b32 v15, 1, v14\nv_lshrrev_b32 v14, 1, v14")
    a(f"v_lshlrev_b32 v16, 10, v15\nv_lshl_add_u32 v16, v14, 2, v16\nv_add_u32 v16, {lds_base}, v16")
    a("v_lshlrev_b32 v17, 4, v15\nv_lshl_add_u32 v17, v14, 13, v17")
    a(f"s_lshl_b32 s52, s40, 8\ns_lshl_b32 s60, s41, 5\ns_add_u32 s52, s52, s60\ns_add_u32 s52, s52, {WS_Z}\ns_add_u32 s60, s52, {128*8192}")
    lds_wait_ge(a, 12, FL_BAR_A - MISC, 4, 18, 61, 62)
    for e in range(2):
        a(f"ds_read2st64_b32 v[{20+4*e}:{21+4*e}], v16 offset0:{2*e} offset1:{2*e+8}")
        a(f"ds_read2st64_b32 v[{22+4*e}:{23+4*e}], v16 offset0:{2*e+16} offset1:{2*e+24}")
    a("s_waitcnt lgkmcnt(2)")
    a(f"buffer_store_dwordx4 v[20:23], v17, {sr(S_WS)}, s52 offen {st_flags}")
    a("s_waitcnt lgkmcnt(0)")
    a(f"buffer_store_dwordx4 v[24:27], v17, {sr(S_WS)}, s60 offen {st_flags}")
    a("s_mov_b64 s[60:61], exec\ns_mov_b64 exec, 1")
    a(f"ds_add_u32 v12, v13 offset:{FL_A_DONE - MISC}")
    a("s_mov_b64 exec, s[60:61]")

CF_CA, CF_T1C, CF_T1S, CF_CB, CF_T2C, CF_T2S, CF_CD = 16, 48, 64, 80, 104, 120, 136
CF_Z, CF_W, CF_AR, CF_AI, CF_T = 160, 176, 192, 208, 224

def col_consts(a, s_pi, s_k1):
    L, H, C, ARG, STEP = 2, 3, 4, 5, 6
    a(f"v_bfe_u32 v7, v1, 2, 1\nv_lshlrev_b32 v{L}, 4, v7")
    a(f"v_bfe_u32 v7, v1, 3, 2\nv_lshl_add_u32 v{L}, v7, 2, v{L}")
    a(f"v_and_b32 v7, 3, v1\nv_add_u32 v{L}, v{L}, v7")
    a(f"v_lshl_add_u32 v{C}, v{L}, 1, s{s_pi}\nv_cvt_f32_u32 v{C}, v{C}")
    a(f"v_cvt_f32_u32 v{L}, v{L}")
    a(f"v_lshrrev_b32 v{H}, 5, v1\nv_cvt_f32_u32 v{H}, v{H}")
    tc, ts = 8, 10
    a(f"v_mul_f32 v{STEP}, {f32(1/64)}, v{C}")
    a(f"v_mul_f32 v{ARG}, 4.0, v{H}\nv_mul_f32 v{ARG}, v{ARG}, v{STEP}")
    a(f"v_mul_f32 v7, {f32(5.0)}, v{STEP}")
    for t in range(4):
        for i in range(4):
            if i: a(f"v_add_f32 v{ARG}, v{ARG}, v{STEP}")
            elif t: a(f"v_add_f32 v{ARG}, v{ARG}, v7")
            x = 2 * (i & 1)
            a(f"v_cos_f32 v{tc+(i&1)}, v{ARG}\nv_sin_f32 v{ts+(i&1)}, v{ARG}")
            a(f"v_cvt_pk_bf16_f32 v{CF_CA+8*t+i}, v{tc+(i&1)}, v{ts+(i&1)}")
            a(f"v_cvt_pk_bf16_f32 v{CF_CA+8*t+4+i}, -v{ts+(i&1)}, v{tc+(i&1)}")
    a(f"v_mul_f32 v{H}, {f32(16.0)}, v{H}")
    def mat(base):
        for R in range(16):
            if R: a(f"v_add_f32 v{ARG}, v{ARG}, v{STEP}")
            a(f"v_cos_f32 v{tc+(R&1)}, v{ARG}\nv_sin_f32 v{ts+(R&1)}, v{ARG}")
            if R & 1:
                a(f"v_cvt_pk_bf16_f32 v{base+(R>>1)}, v{tc}, v{tc+1}")
                a(f"v_cvt_pk_bf16_f32 v{base+8+(R>>1)}, v{ts}, v{ts+1}")
                a(f"v_cvt_pk_bf16_f32 v{base+16+(R>>1)}, -v{ts}, -v{ts+1}")
    def tw(cb, sb):
        for R in range(16):
            if R: a(f"v_add_f32 v{ARG}, v{ARG}, v{STEP}")
            a(f"v_cos_f32 v{cb+R}, v{ARG}\nv_sin_f32 v{sb+R}, v{ARG}")
    a(f"v_mul_f32 v{STEP}, {f32(1/2048)}, v{C}\nv_mul_f32 v{ARG}, v{H}, v{STEP}")
    tw(CF_T1C, CF_T1S)
    a(f"v_mul_f32 v{STEP}, {f32(1/32)}, v{L}\nv_mul_f32 v{ARG}, v{H}, v{STEP}")
    mat(CF_CB)
    a(f"v_cvt_f32_u32 v7, s{s_pi}\nv_fma_f32 v{H}, 0.5, v7, v{H}")
    a(f"v_mul_f32 v{STEP}, {f32(1/1024)}, v{L}\nv_mul_f32 v{ARG}, v{H}, v{STEP}")
    tw(CF_T2C, CF_T2S)
    a(f"s_cmp_eq_u32 s{s_k1}, 255")
    a(f"s_cselect_b32 s62, {f32(1/(2048*512))}, {f32(2/(2048*512))}") if False else None
    a(f"s_mov_b32 s62, {f32(2/(2048*512))}")
    a(f"s_cmov_b32 s62, {f32(1/(2048*512))}")
    for R in range(0, 32, 2):
        a(f"v_pk_mul_f32 v[{CF_T2C+R}:{CF_T2C+R+1}], v[{CF_T2C+R}:{CF_T2C+R+1}], s[62:63] op_sel_hi:[1,0]")
    a(f"v_and_b32 v7, 31, v1\nv_cvt_f32_u32 v7, v7\nv_mul_f32 v{STEP}, {f32(1/32)}, v7\nv_mul_f32 v{ARG}, v{H}, v{STEP}")
    mat(CF_CD)

def col_loads(a, s_pi, s_k1, which, ld_flags=""):
    if which == "w":
        a(f"s_lshl_b32 s60, s{s_k1}, 13\ns_lshl_b32 s61, s{s_pi}, 12\ns_add_u32 s60, s60, s61\ns_add_u32 s60, s60, {WS_WT}")
        a("v_lshlrev_b32 v12, 6, v1")
        for t in range(4):
            a(f"buffer_load_dwordx4 v[{CF_W+4*t}:{CF_W+4*t+3}], v12, {sr(S_WS)}, s60 offen offset:{16*t} {ld_flags}")
    else:
        a(f"s_lshl_b32 s60, s{s_k1}, 13\ns_lshl_b32 s61, s{s_pi}, 4\ns_add_u32 s60, s60, s61\ns_add_u32 s60, s60, {WS_Z}")
        a("v_bfe_u32 v13, v1, 2, 1\nv_lshlrev_b32 v14, 4, v13")
        a("v_bfe_u32 v13, v1, 3, 2\nv_lshl_add_u32 v14, v13, 2, v14")
        a("v_and_b32 v13, 3, v1\nv_add_u32 v14, v14, v13")
        a("v_lshlrev_b32 v14, 8, v14\nv_lshrrev_b32 v13, 5, v1\nv_lshl_add_u32 v14, v13, 5, v14")
        for t in range(4):
            a(f"buffer_load_dwordx4 v[{CF_Z+4*t}:{CF_Z+4*t+3}], v14, {sr(S_WS)}, s60 offen offset:{64*t} {ld_flags}")

def col_compute(a, s_pi, s_k1, st_flags="", wait_w="s_waitcnt vmcnt(0)"):
    AR, AI, U, T = CF_AR, CF_AI, CF_Z, CF_T
    def mf(d, x, y, first):
        a(f"v_mfma_f32_32x32x16_bf16 v[{d}:{d+15}], v[{x}:{x+3}], v[{y}:{y+3}], " + ("0" if first else f"v[{d}:{d+15}]"))
    def cmul(cs, conj):
        for p in range(8):
            c, s = cs(p)
            tr, ti = T + 4*(p & 1), T + 4*(p & 1) + 2
            re, im = AR + 2*p, AI + 2*p
            neg = "neg_lo:[1,0,0] neg_hi:[1,0,0]"
            a(f"v_pk_mul_f32 v[{tr}:{tr+1}], v[{re}:{re+1}], v[{c}:{c+1}]")
            a(f"v_pk_mul_f32 v[{ti}:{ti+1}], v[{im}:{im+1}], v[{c}:{c+1}]")
            a(f"v_pk_fma_f32 v[{tr}:{tr+1}], v[{im}:{im+1}], v[{s}:{s+1}], v[{tr}:{tr+1}] {neg if conj else ''}")
            a(f"v_pk_fma_f32 v[{ti}:{ti+1}], v[{re}:{re+1}], v[{s}:{s+1}], v[{ti}:{ti+1}] {'' if conj else neg}")
            a(f"v_cvt_pk_bf16_f32 v{U+p}, v{tr}, v{tr+1}")
            a(f"v_cvt_pk_bf16_f32 v{U+8+p}, v{ti}, v{ti+1}")
    for t in range(4):
        mf(AR, CF_Z + 4*t, CF_CA + 8*t, t == 0)
        mf(AI, CF_Z + 4*t, CF_CA + 8*t + 4, t == 0)
    cmul(lambda p: (CF_T1C + 2*p, CF_T1S + 2*p), False)
    C, S, N = CF_CB, CF_CB + 8, CF_CB + 16
    for t in range(2):
        mf(AR, C + 4*t, U + 4*t, t == 0); mf(AI, N + 4*t, U + 4*t, t == 0)
        mf(AR, S + 4*t, U + 8 + 4*t, False); mf(AI, C + 4*t, U + 8 + 4*t, False)
    a(wait_w)
    WC = CF_T1C
    for r in range(16):
        a(f"v_lshlrev_b32 v{CF_T1C+r}, 16, v{CF_W+r}")
        a(f"v_and_b32 v{CF_T1S+r}, 0xffff0000, v{CF_W+r}")
    cmul(lambda p: (CF_T1C + 2*p, CF_T1S + 2*p), True)
    for t in range(2):
        mf(AR, U + 4*t, C + 4*t, t == 0); mf(AI, U + 4*t, S + 4*t, t == 0)
        mf(AR, U + 8 + 4*t, N + 4*t, False); mf(AI, U + 8 + 4*t, C + 4*t, False)
    cmul(lambda p: (CF_T2C + 2*p, CF_T2S + 2*p), True)
    C, S, N = CF_CD, CF_CD + 8, CF_CD + 16
    for t in range(2):
        mf(AR, U + 4*t, C + 4*t, t == 0); mf(AI, U + 4*t, S + 4*t, t == 0)
        mf(AR, U + 8 + 4*t, N + 4*t, False); mf(AI, U + 8 + 4*t, C + 4*t, False)
    a(f"s_lshl_b32 s60, s{s_k1}, 13\ns_lshl_b32 s61, s{s_pi}, 6\ns_add_u32 s60, s60, s61\ns_add_u32 s60, s60, {WS_E}\ns_add_u32 s61, s60, 4096")
    a("v_and_b32 v12, 31, v1\nv_lshlrev_b32 v12, 7, v12\nv_lshrrev_b32 v13, 5, v1\nv_lshl_add_u32 v12, v13, 5, v12")
    for ri, acc in enumerate((AR, AI)):
        for p in range(8):
            a(f"v_cvt_pk_bf16_f32 v{U+8*ri+p}, v{acc+2*p}, v{acc+2*p+1}")
        for q in range(2):
            a(f"buffer_store_dwordx4 v[{U+8*ri+4*q}:{U+8*ri+4*q+3}], v12, {sr(S_WS)}, s{60+ri} offen offset:{16*q} {st_flags}")
```

```python
import sys
from gemm2 import *
HEADER = open("parallel_sum__spectral_gfnet__glu_gated_swiglu__prompt.s.ref").read().split("; Override")[0]

def init_flags2(a):
    a(f"v_lshlrev_b32 v2, 2, v1\nv_add_u32 v2, {MISC}, v2\nv_mov_b32 v4, 0\nds_write_b32 v2, v4\ns_waitcnt lgkmcnt(0)")

Stamps.on = "stamp" in sys.argv
PF = "pf" in sys.argv
a = Asm()
a.begin_kernel("k1_kernel")
prologue(a, "k1_end", pf=("k1_kernel", 60000, 8, 255) if PF else None)
g1_ids(a)
a("s_cmp_ge_u32 s3, 4\ns_cbranch_scc1 k1_helper")
g1_x_issue_setup(a); g1_x_issue(a, 0); g1_x_issue(a, 1)
a("s_barrier")
g1_main(a)
a("s_branch k1_dump")
a("k1_helper:")
init_flags2(a)
a("s_barrier")
a("s_sub_u32 s4, s3, 4")
row_stage(a, 4, 18*SLOT)
a("s_cmp_lg_u32 s4, 0\ns_cbranch_scc1 k1_dump")
g1_loader(a)
a("k1_dump:")
if Stamps.on: a("s_waitcnt vmcnt(0)")
Stamps.dump(a, 0)
a("k1_end:\ns_endpgm")
a.add_kernel("k1_kernel", 256); a.add_launch("k1_kernel", 256, 512, LDS_BYTES)

a.begin_kernel("col_kernel")
prologue(a, "col_end")
col_loads(a, S_WAVE, 2, "z"); col_loads(a, S_WAVE, 2, "w")
col_consts(a, S_WAVE, 2)
Stamps.at(a, 1)
a("s_waitcnt vmcnt(4)")
Stamps.at(a, 2)
col_compute(a, S_WAVE, 2)
Stamps.at(a, 3)
if Stamps.on: a("s_waitcnt vmcnt(0)")
Stamps.dump(a, 1)
a("col_end:\ns_endpgm")
a.add_kernel("col_kernel", 256); a.add_launch("col_kernel", 256, 128, 0)

w2cells = list(range(11)) + list(range(11))
ecells = list(range(11, 19))
seq = [("w", c, c, 0) for c in range(11)] + [("e", c, 11 + c, 0) for c in range(8)] + [("w", 11 + c, c, c + 1) for c in range(11)]
tiles = (0, TILE); tileA = 2 * TILE
a.begin_kernel("k3_kernel")
prologue(a, "k3_end")
g2_ids(a)
a("s_cmp_ge_u32 s3, 4\ns_cbranch_scc1 k3_helper")
g2_main_setup(a); g2_h_issue(a)
res_issue(a, 12, 11)
Stamps.at(a, 1)
a("s_barrier")
st = g2_main(a, w2cells, tiles, vm_after=1)
a("s_branch k3_fin")
emit_stubs(a, st)
a("k3_helper:")
init_flags2(a)
a("s_barrier")
a("s_cmp_eq_u32 s3, 4\ns_cbranch_scc1 k3_loader")
a("s_cmp_eq_u32 s3, 7\ns_cbranch_scc1 k3_h3")
a("s_cmp_eq_u32 s3, 6\ns_cbranch_scc1 k3_h2")
for lab, dts in (("k3_h1", [0]), ("k3_h2", [1]), ("k3_h3", [2, 3])):
    a(f"{lab}:")
    g_consts(a, dts)
    st = e_part(a, dts, ecells, tileA)
    res_issue(a, 12, 11)
    a("s_branch k3_fin")
    emit_stubs(a, st)
a("k3_loader:")
g2_loader(a, seq)
res_issue(a, 12, 11)
a("s_barrier")
a("k3_fin:")
final_combine(a, tiles, tileA, 12, 11)
if Stamps.on: a("s_waitcnt vmcnt(0)")
Stamps.dump(a, 2)
a("k3_end:\ns_endpgm")
a.add_kernel("k3_kernel", 256); a.add_launch("k3_kernel", 256, 512, LDS_BYTES)
out = sys.argv[1] if len(sys.argv) > 1 else "v1.s"
open(out, "w").write(a.text(header=HEADER))
print("nops", a.nops_added)
```

```python
import math
from asmlib import *

WS_Z, WS_WT, WS_E, WS_H, WS_FLAG = 0x000000, 0x200000, 0x400000, 0x600000, 0xC00000
WS_STAMP = 0x8000000
SLOT = 8192
MISC = 19 * SLOT
FL_FULL, FL_FREE, FL_BAR_A, FL_A_DONE = MISC, MISC + 16, MISC + 32, MISC + 36
LDS_BYTES = 160 * 1024
SPIN = 1 << 18
LSLEEP = [0]

S_X, S_WR, S_WI, S_W1, S_W3, S_W2, S_OUT, S_WS = 8, 12, 16, 20, 24, 28, 32, 36
S_WAVE = 3

def prologue(a, end_label, nwg=256, pf=None, init_lds=False):
    a(f"s_cmp_ge_u32 s2, {nwg}")
    a(f"s_cbranch_scc1 {end_label}")
    Stamps.at(a, 0)
    a("s_load_dwordx16 s[64:79], s[0:1], 0")
    a("s_load_dwordx4 s[80:83], s[0:1], 64")
    if pf: code_prefetch(a, *pf)
    a("v_lshrrev_b32 v2, 6, v0")
    a("v_and_b32 v1, 63, v0")
    a("v_readfirstlane_b32 s3, v2")
    if init_lds:
        a(f"v_lshlrev_b32 v4, 2, v1\nv_add_u32 v4, {MISC}, v4\nv_mov_b32 v5, 0\nds_write_b32 v4, v5")
    a("s_waitcnt lgkmcnt(0)")
    if init_lds: a("s_barrier")
    srd(a, S_X, 64, 2048 * 1024)
    srd(a, S_WR, 66, 2048 * 514)
    srd(a, S_WI, 68, 2048 * 514)
    srd(a, S_W1, 72, 512 * 2752)
    srd(a, S_W3, 74, 512 * 2752)
    srd(a, S_W2, 76, 1376 * 1024)
    srd(a, S_OUT, 78, 2048 * 1024)
    srd(a, S_WS, 82, 268435456)
    Stamps.clear(a)

class Stamps:
    on = False
    skip = set()
    op = "s_memrealtime"
    @staticmethod
    def reg(i): return 92 + i if i < 8 else 64 + i
    @staticmethod
    def at(a, i, force=False):
        if not Stamps.on or (i in Stamps.skip and not force): return
        a(f"{Stamps.op} s[100:101]\ns_waitcnt lgkmcnt(0)")
        a(f"s_mov_b32 s{Stamps.reg(i)}, s100")
    @staticmethod
    def clear(a):
        if not Stamps.on: return
        for i in range(1, 16): a(f"s_mov_b32 s{Stamps.reg(i)}, 0")
    @staticmethod
    def dump(a, kidx):
        if not Stamps.on: return
        Stamps.at(a, 15)
        a(f"s_lshl_b32 s40, s2, 3\ns_add_u32 s40, s40, s3\ns_lshl_b32 s40, s40, 6\ns_add_u32 s40, s40, {WS_STAMP + kidx * 131072}")
        a("v_mov_b32 v0, 0")
        for i in range(16): a(f"v_mov_b32 v{4+i}, s{Stamps.reg(i)}")
        for q in range(4): a(f"buffer_store_dwordx4 v[{4+4*q}:{7+4*q}], v0, s[{S_WS}:{S_WS+3}], s40 offen offset:{16*q}")

def code_prefetch(a, start_label, end_label, nbytes, nwaves, dst):
    lines = (nbytes + 127) // 128
    n = (lines + 32 * nwaves - 1) // (32 * nwaves)
    here = a.label("pc")
    a("s_getpc_b64 s[40:41]")
    a(f"{here}:")
    a(f"s_sub_u32 s40, s40, {here}-{start_label}\ns_subb_u32 s41, s41, 0")
    a(f"s_lshr_b32 s42, s2, 3\ns_mul_i32 s42, s42, {nwaves * n}")
    a(f"v_lshrrev_b32 v2, 6, v0\nv_mul_u32_u24 v2, {n}, v2\nv_and_b32 v3, 63, v0\nv_add3_u32 v2, v2, v3, s42")
    a(f"v_min_u32 v2, ({end_label}-{start_label})>>7, v2\nv_lshlrev_b32 v2, 7, v2")
    a("v_mov_b32 v3, s41\nv_add_co_u32 v2, vcc, s40, v2\nv_addc_co_u32 v3, vcc, 0, v3, vcc")
    a(f"s_mov_b64 exec, {(1 << n) - 1}")
    a(f"global_load_dword v{dst}, v[2:3], off")
    a("s_mov_b64 exec, -1")

def sr(b): return f"s[{b}:{b+3}]"

def lds_wait_ge(a, addr_v, off, n, vt, st, sc, minof=1, sleep=0):
    top, done = a.label("lw"), a.label("lwd")
    a(f"s_mov_b32 s{sc}, {SPIN}")
    a(f"{top}:")
    if minof == 1:
        a(f"ds_read_b32 v{vt}, v{addr_v} offset:{off}")
        a("s_waitcnt lgkmcnt(0)")
    else:
        a(f"ds_read_b128 v[{vt}:{vt+3}], v{addr_v} offset:{off}")
        a("s_waitcnt lgkmcnt(0)")
        a(f"v_min_u32 v{vt}, v{vt}, v{vt+1}")
        a(f"v_min3_u32 v{vt}, v{vt}, v{vt+2}, v{vt+3}")
    a(f"v_readfirstlane_b32 s{st}, v{vt}")
    a(f"s_cmp_ge_u32 s{st}, {n}")
    a(f"s_cbranch_scc1 {done}")
    if LSLEEP[0] or sleep: a(f"s_sleep {max(LSLEEP[0], sleep)}")
    a(f"s_sub_u32 s{sc}, s{sc}, 1")
    a(f"s_cbranch_scc0 {top}")
    a(f"{done}:")

def bf_round(a, v):
    a(f"v_cvt_pk_bf16_f32 v{v}, v{v}, v{v}")
    a(f"v_and_b32 v{v}, 0xffff0000, v{v}")

def ln_scalars(a, vsum, vsq, vt):
    a(f"v_mul_f32 v{vsum}, {f32(1/512)}, v{vsum}")
    a(f"v_mul_f32 v{vsq}, {f32(1/512)}, v{vsq}")
    a(f"v_fma_f32 v{vsq}, -v{vsum}, v{vsum}, v{vsq}")
    a(f"v_max_f32 v{vsq}, 0, v{vsq}")
    bf_round(a, vsq)
    a(f"v_add_f32 v{vsq}, {f32(1e-5)}, v{vsq}")
    bf_round(a, vsq)
    a(f"v_sqrt_f32 v{vsq}, v{vsq}")
    bf_round(a, vsq)
    a(f"v_rcp_f32 v{vsq}, v{vsq}")

def row_stage(a, s_hw, lds_base, st_flags="", after_issue=None, extra_vm=0):
    a("s_and_b32 s40, s2, 31")
    a("s_lshr_b32 s41, s2, 5")
    a(f"s_lshl_b32 s42, s41, 2\ns_add_u32 s42, s42, s{s_hw}\ns_lshl_b32 s42, s42, 5\ns_add_u32 s42, s42, s40")
    a("s_lshl_b32 s42, s42, 10")
    a("s_add_u32 s43, s42, 0x100000")
    a(f"s_lshl_b32 s44, s{s_hw}, 11\ns_add_u32 s44, s44, {lds_base}")
    a("v_lshlrev_b32 v2, 4, v1")
    a("s_mov_b32 m0, s44")
    a(f"buffer_load_dwordx4 v2, {sr(S_X)}, s42 offen lds")
    a("s_add_u32 m0, s44, 1024")
    a(f"buffer_load_dwordx4 v2, {sr(S_X)}, s43 offen lds")
    a("s_and_b32 s45, s2, 63")
    a("s_bfe_u32 s46, s2, 0x10006")
    a("s_lshr_b32 s47, s2, 7")
    a(f"s_and_b32 s48, s{s_hw}, 1\ns_lshr_b32 s49, s{s_hw}, 1")
    a("s_lshl_b32 s50, s46, 1\ns_add_u32 s50, s50, s49\ns_lshl_b32 s50, s50, 9\ns_add_u32 s50, s50, s45\ns_mul_i32 s50, s50, 514")
    a("s_lshl_b32 s51, s47, 1\ns_add_u32 s51, s51, s48\ns_lshl_b32 s51, s51, 6")
    a("s_lshl_b32 s52, s51, 1\ns_add_u32 s50, s50, s52\ns_add_u32 s50, s50, 2")
    a("v_lshlrev_b32 v3, 1, v1")
    WRE, WIM = 84, 92
    for e in range(8):
        a(f"s_add_u32 s52, s50, {e * 64 * 514}")
        a(f"buffer_load_ushort v{WRE+e}, v3, {sr(S_WR)}, s52 offen")
        a(f"buffer_load_ushort v{WIM+e}, v3, {sr(S_WI)}, s52 offen")
    Stamps.at(a, 1)
    if after_issue: after_issue()
    Stamps.at(a, 2)
    a("s_and_b32 s40, s2, 31\ns_lshr_b32 s41, s2, 5")
    N, Q4, FU, ARG, STEP = 4, 5, 6, 7, 8
    B1 = 16
    TC, TS = 32, 40
    A2 = 48
    CM = 9
    a(f"v_and_b32 v{N}, 15, v1")
    a(f"v_lshrrev_b32 v{Q4}, 4, v1\nv_lshlrev_b32 v{Q4}, 2, v{Q4}\nv_cvt_f32_u32 v{Q4}, v{Q4}")
    a(f"v_add_u32 v{FU}, 1, v{N}\nv_cvt_f32_u32 v{FU}, v{FU}")
    a(f"v_mul_f32 v{STEP}, {f32(1/32)}, v{FU}")
    a(f"v_mul_f32 v{ARG}, v{Q4}, v{STEP}")
    C0, S0 = 52, 60
    for j in range(8):
        if j == 4:
            a(f"v_mul_f32 v10, {f32(13.0)}, v{STEP}\nv_add_f32 v{ARG}, v{ARG}, v10")
        elif j:
            a(f"v_add_f32 v{ARG}, v{ARG}, v{STEP}")
        a(f"v_cos_f32 v{C0+j}, v{ARG}\nv_sin_f32 v{S0+j}, v{ARG}")
    for jj in range(4):
        a(f"v_cvt_pk_bf16_f32 v{B1+jj}, v{C0+2*jj}, v{C0+2*jj+1}")
        a(f"v_cvt_pk_bf16_f32 v{B1+4+jj}, -v{S0+2*jj}, -v{S0+2*jj+1}")
    for jj in range(8):
        a(f"v_xor_b32 v{B1+8+jj}, 0x80000000, v{B1+jj}")
    for tau in range(2):
        if tau: a(f"v_add_f32 v{FU}, {f32(16.0)}, v{FU}")
        a(f"v_mul_f32 v{STEP}, {f32(1/512)}, v{FU}")
        a(f"v_mul_f32 v{ARG}, v{Q4}, v{STEP}")
        for r in range(4):
            if r: a(f"v_add_f32 v{ARG}, v{ARG}, v{STEP}")
            a(f"v_cos_f32 v{TC+4*tau+r}, v{ARG}\nv_sin_f32 v{TS+4*tau+r}, v{ARG}")
    a(f"v_lshrrev_b32 v{STEP}, 1, v{N}\nv_cvt_f32_u32 v{STEP}, v{STEP}\nv_mul_f32 v{STEP}, {f32(1/16)}, v{STEP}")
    a(f"v_and_b32 v{ARG}, 1, v{N}\nv_cvt_f32_u32 v{ARG}, v{ARG}\nv_mul_f32 v{ARG}, {f32(0.25)}, v{ARG}")
    a(f"v_fma_f32 v{ARG}, v{Q4}, v{STEP}, v{ARG}")
    for r in range(4):
        if r: a(f"v_add_f32 v{ARG}, v{ARG}, v{STEP}")
        a(f"v_cos_f32 v{C0+r}, v{ARG}\nv_sin_f32 v{S0+r}, v{ARG}")
    for jj in range(2):
        a(f"v_cvt_pk_bf16_f32 v{A2+jj}, v{C0+2*jj}, v{C0+2*jj+1}")
        a(f"v_cvt_pk_bf16_f32 v{A2+2+jj}, v{S0+2*jj}, v{S0+2*jj+1}")
    a(f"v_cmp_eq_u32 vcc, 15, v{N}")
    a(f"v_mov_b32 v{CM}, {f32(32.0)}")
    a(f"v_cndmask_b32 v{CM}, 0, v{CM}, vcc")
    a("s_mov_b32 s53, 0x3f803f80")
    a("v_lshlrev_b32 v10, 3, v1\nv_add_u32 v10, s44, v10")
    a(f"v_lshrrev_b32 v11, 4, v1\nv_lshlrev_b32 v11, 6, v11\nv_add_u32 v11, v11, v{N}\nv_lshlrev_b32 v11, 2, v11\nv_add_u32 v11, s44, v11")
    XF = 52
    Stamps.at(a, 3)
    a(f"s_waitcnt vmcnt({16 + extra_vm})")
    Stamps.at(a, 4)
    for al in range(2):
        a(f"ds_read_b64_tr_b16 v[{XF+4*al}:{XF+4*al+1}], v10 offset:{1024*al}")
        a(f"ds_read_b64_tr_b16 v[{XF+4*al+2}:{XF+4*al+3}], v10 offset:{1024*al+512}")
    D1 = 100
    SU = 12
    a("s_waitcnt lgkmcnt(0)")
    for al in range(2):
        for tau in range(2):
            for ri in range(2):
                d = D1 + 16*al + 8*tau + 4*ri
                a(f"v_mfma_f32_16x16x32_bf16 v[{d}:{d+3}], v[{XF+4*al}:{XF+4*al+3}], v[{B1+8*tau+4*ri}:{B1+8*tau+4*ri+3}], 0")
    for j in range(4):
        for al in range(2):
            c1 = "0" if j == 0 else f"v{SU+2*al}"
            c2 = "0" if j == 0 else f"v{SU+2*al+1}"
            a(f"v_dot2_f32_bf16 v{SU+2*al}, v{XF+4*al+j}, s53, {c1}")
            a(f"v_dot2_f32_bf16 v{SU+2*al+1}, v{XF+4*al+j}, v{XF+4*al+j}, {c2}")
    for m in ("row_ror:8 row_mask:0xf", "row_ror:4 row_mask:0xf", "row_ror:2 row_mask:0xf", "row_ror:1 row_mask:0xf",
              "row_bcast:15 row_mask:0xa", "row_bcast:31 row_mask:0xc"):
        for q in range(4):
            a(f"v_add_f32_dpp v{SU+q}, v{SU+q}, v{SU+q} {m} bank_mask:0xf")
    sub = [Asm(), Asm()]
    for al in range(2): ln_scalars(sub[al], SU+2*al, SU+2*al+1, None)
    for l0, l1 in zip(sub[0].lines, sub[1].lines): a(l0); a(l1)
    for al in range(2):
        a(f"v_readlane_b32 s{54+al}, v{SU+2*al}, 63")
        a(f"v_readlane_b32 s{56+2*al}, v{SU+2*al+1}, 63")
    UF = 60
    T0 = 76
    for al in range(2):
        for r in range(4):
            d = D1 + 16*al + 8 + r
            a(f"v_fma_f32 v{d}, -v{CM}, s{54+al}, v{d}")
    for al in range(2):
        for tau in range(2):
            re, im = D1 + 16*al + 8*tau, D1 + 16*al + 8*tau + 4
            for p in range(2):
                c, s = TC + 4*tau + 2*p, TS + 4*tau + 2*p
                tr, ti = T0 + 4*p, T0 + 4*p + 2
                a(f"v_pk_mul_f32 v[{tr}:{tr+1}], v[{re+2*p}:{re+2*p+1}], v[{c}:{c+1}]")
                a(f"v_pk_mul_f32 v[{ti}:{ti+1}], v[{im+2*p}:{im+2*p+1}], v[{c}:{c+1}]")
                a(f"v_pk_fma_f32 v[{tr}:{tr+1}], v[{im+2*p}:{im+2*p+1}], v[{s}:{s+1}], v[{tr}:{tr+1}]")
                a(f"v_pk_fma_f32 v[{ti}:{ti+1}], v[{re+2*p}:{re+2*p+1}], v[{s}:{s+1}], v[{ti}:{ti+1}] neg_lo:[1,0,0] neg_hi:[1,0,0]")
            u = UF + 8*al + 4*tau
            for p in range(2):
                a(f"v_cvt_pk_bf16_f32 v{u+p}, v{T0+4*p}, v{T0+4*p+1}")
                a(f"v_cvt_pk_bf16_f32 v{u+2+p}, v{T0+4*p+2}, v{T0+4*p+3}")
            d = D1 + 16*al + 8*tau
            a(f"v_mfma_f32_16x16x32_bf16 v[{d}:{d+3}], v[{A2}:{A2+3}], v[{u}:{u+3}], 0")
    for tau in range(2):
        for vl in range(2):
            d0, d1 = D1 + 8*tau + 2*vl, D1 + 16 + 8*tau + 2*vl
            a(f"v_pk_mul_f32 v[{d0}:{d0+1}], v[{d0}:{d0+1}], s[56:57] op_sel_hi:[1,0]")
            a(f"v_pk_fma_f32 v[{T0}:{T0+1}], v[{d1}:{d1+1}], s[58:59], v[{d0}:{d0+1}] op_sel_hi:[1,0,1]")
            a(f"v_pk_fma_f32 v[{T0+2}:{T0+3}], v[{d1}:{d1+1}], s[58:59], v[{d0}:{d0+1}] op_sel_hi:[1,0,1] neg_lo:[1,0,0] neg_hi:[1,0,0]")
            a(f"v_cvt_pk_bf16_f32 v{T0+4}, v{T0}, v{T0+1}")
            a(f"v_cvt_pk_bf16_f32 v{T0+5}, v{T0+2}, v{T0+3}")
            a(f"ds_write_b32 v11, v{T0+4} offset:{64*tau + 128*vl}")
            a(f"ds_write_b32 v11, v{T0+5} offset:{64*tau + 128*vl + 1024}")
    Stamps.at(a, 5)
    a(f"v_mov_b32 v12, {MISC}\nv_mov_b32 v13, 1")
    a("s_waitcnt lgkmcnt(0)")
    a("s_mov_b64 s[60:61], exec\ns_mov_b64 exec, 1")
    a(f"ds_add_u32 v12, v13 offset:{FL_BAR_A - MISC}")
    a("s_mov_b64 exec, s[60:61]")
    a("s_lshr_b32 s52, s45, 1")
    a("s_bfe_u32 s60, s52, 0x20002\ns_lshl_b32 s60, s60, 3")
    a("s_lshr_b32 s61, s52, 4\ns_lshl_b32 s61, s61, 2\ns_add_u32 s60, s60, s61")
    a("s_and_b32 s61, s52, 3\ns_add_u32 s60, s60, s61")
    a("s_lshl_b32 s61, s46, 5\ns_add_u32 s60, s60, s61\ns_lshl_b32 s60, s60, 6")
    a("s_and_b32 s61, s45, 1\ns_lshl_b32 s61, s61, 12\ns_add_u32 s60, s60, s61")
    a("s_lshl_b32 s61, s49, 5\ns_add_u32 s60, s60, s61")
    a(f"s_lshl_b32 s61, s51, 13\ns_add_u32 s60, s60, s61\ns_add_u32 s60, s60, {WS_WT}")
    a("v_lshlrev_b32 v14, 13, v1")
    a(f"s_waitcnt vmcnt({extra_vm})")
    for e in range(8):
        a(f"v_lshl_or_b32 v{WRE+e}, v{WIM+e}, 16, v{WRE+e}")
    a(f"buffer_store_dwordx4 v[{WRE}:{WRE+3}], v14, {sr(S_WS)}, s60 offen {st_flags}")
    a(f"buffer_store_dwordx4 v[{WRE+4}:{WRE+7}], v14, {sr(S_WS)}, s60 offen offset:16 {st_flags}")
    a(f"s_lshl_b32 s52, s{s_hw}, 6")
    a("v_add_u32 v14, s52, v1")
    a("v_and_b32 v15, 1, v14\nv_lshrrev_b32 v14, 1, v14")
    a(f"v_lshlrev_b32 v16, 10, v15\nv_lshl_add_u32 v16, v14, 2, v16\nv_add_u32 v16, {lds_base}, v16")
    a("v_lshlrev_b32 v17, 4, v15\nv_lshl_add_u32 v17, v14, 13, v17")
    a(f"s_lshl_b32 s52, s40, 8\ns_lshl_b32 s60, s41, 5\ns_add_u32 s52, s52, s60\ns_add_u32 s52, s52, {WS_Z}\ns_add_u32 s60, s52, {128*8192}")
    Stamps.at(a, 6)
    lds_wait_ge(a, 12, FL_BAR_A - MISC, 4, 18, 61, 62)
    for e in range(2):
        a(f"ds_read2st64_b32 v[{20+4*e}:{21+4*e}], v16 offset0:{2*e} offset1:{2*e+8}")
        a(f"ds_read2st64_b32 v[{22+4*e}:{23+4*e}], v16 offset0:{2*e+16} offset1:{2*e+24}")
    a("s_waitcnt lgkmcnt(2)")
    a(f"buffer_store_dwordx4 v[20:23], v17, {sr(S_WS)}, s52 offen {st_flags}")
    a("s_waitcnt lgkmcnt(0)")
    a(f"buffer_store_dwordx4 v[24:27], v17, {sr(S_WS)}, s60 offen {st_flags}")
    a("s_mov_b64 s[60:61], exec\ns_mov_b64 exec, 1")
    a(f"ds_add_u32 v12, v13 offset:{FL_A_DONE - MISC}")
    a("s_mov_b64 exec, s[60:61]")

CF_CA, CF_T1C, CF_T1S, CF_CB, CF_T2C, CF_T2S, CF_CD = 16, 48, 64, 80, 104, 120, 136
CF_Z, CF_W, CF_AR, CF_AI, CF_T = 160, 176, 192, 208, 224

def col_consts(a, s_pi, s_k1):
    L, H, C, ARG, STEP = 2, 3, 4, 5, 6
    a(f"v_bfe_u32 v7, v1, 2, 1\nv_lshlrev_b32 v{L}, 4, v7")
    a(f"v_bfe_u32 v7, v1, 3, 2\nv_lshl_add_u32 v{L}, v7, 2, v{L}")
    a(f"v_and_b32 v7, 3, v1\nv_add_u32 v{L}, v{L}, v7")
    a(f"v_lshl_add_u32 v{C}, v{L}, 1, s{s_pi}\nv_cvt_f32_u32 v{C}, v{C}")
    a(f"v_cvt_f32_u32 v{L}, v{L}")
    a(f"v_lshrrev_b32 v{H}, 5, v1\nv_cvt_f32_u32 v{H}, v{H}")
    tc, ts = 8, 10
    a(f"v_mul_f32 v{STEP}, {f32(1/64)}, v{C}")
    a(f"v_mul_f32 v{ARG}, 4.0, v{H}\nv_mul_f32 v{ARG}, v{ARG}, v{STEP}")
    a(f"v_mul_f32 v7, {f32(5.0)}, v{STEP}")
    for t in range(4):
        for i in range(4):
            if i: a(f"v_add_f32 v{ARG}, v{ARG}, v{STEP}")
            elif t: a(f"v_add_f32 v{ARG}, v{ARG}, v7")
            x = 2 * (i & 1)
            a(f"v_cos_f32 v{tc+(i&1)}, v{ARG}\nv_sin_f32 v{ts+(i&1)}, v{ARG}")
            a(f"v_cvt_pk_bf16_f32 v{CF_CA+8*t+i}, v{tc+(i&1)}, v{ts+(i&1)}")
            a(f"v_cvt_pk_bf16_f32 v{CF_CA+8*t+4+i}, -v{ts+(i&1)}, v{tc+(i&1)}")
    a(f"v_mul_f32 v{H}, {f32(16.0)}, v{H}")
    def mat(base):
        for R in range(16):
            if R: a(f"v_add_f32 v{ARG}, v{ARG}, v{STEP}")
            a(f"v_cos_f32 v{tc+(R&1)}, v{ARG}\nv_sin_f32 v{ts+(R&1)}, v{ARG}")
            if R & 1:
                a(f"v_cvt_pk_bf16_f32 v{base+(R>>1)}, v{tc}, v{tc+1}")
                a(f"v_cvt_pk_bf16_f32 v{base+8+(R>>1)}, v{ts}, v{ts+1}")
                a(f"v_cvt_pk_bf16_f32 v{base+16+(R>>1)}, -v{ts}, -v{ts+1}")
    def tw(cb, sb):
        for R in range(16):
            if R: a(f"v_add_f32 v{ARG}, v{ARG}, v{STEP}")
            a(f"v_cos_f32 v{cb+R}, v{ARG}\nv_sin_f32 v{sb+R}, v{ARG}")
    a(f"v_mul_f32 v{STEP}, {f32(1/2048)}, v{C}\nv_mul_f32 v{ARG}, v{H}, v{STEP}")
    tw(CF_T1C, CF_T1S)
    a(f"v_mul_f32 v{STEP}, {f32(1/32)}, v{L}\nv_mul_f32 v{ARG}, v{H}, v{STEP}")
    mat(CF_CB)
    a(f"v_cvt_f32_u32 v7, s{s_pi}\nv_fma_f32 v{H}, 0.5, v7, v{H}")
    a(f"v_mul_f32 v{STEP}, {f32(1/1024)}, v{L}\nv_mul_f32 v{ARG}, v{H}, v{STEP}")
    tw(CF_T2C, CF_T2S)
    a(f"s_cmp_eq_u32 s{s_k1}, 255")
    a(f"s_mov_b32 s62, {f32(2/(2048*512))}")
    a(f"s_cmov_b32 s62, {f32(1/(2048*512))}")
    for R in range(0, 32, 2):
        a(f"v_pk_mul_f32 v[{CF_T2C+R}:{CF_T2C+R+1}], v[{CF_T2C+R}:{CF_T2C+R+1}], s[62:63] op_sel_hi:[1,0]")
    a(f"v_and_b32 v7, 31, v1\nv_cvt_f32_u32 v7, v7\nv_mul_f32 v{STEP}, {f32(1/32)}, v7\nv_mul_f32 v{ARG}, v{H}, v{STEP}")
    mat(CF_CD)

def col_loads(a, s_pi, s_k1, which, ld_flags=""):
    if which == "w":
        a(f"s_lshl_b32 s60, s{s_k1}, 13\ns_lshl_b32 s61, s{s_pi}, 12\ns_add_u32 s60, s60, s61\ns_add_u32 s60, s60, {WS_WT}")
        a("v_lshlrev_b32 v12, 6, v1")
        for t in range(4):
            a(f"buffer_load_dwordx4 v[{CF_W+4*t}:{CF_W+4*t+3}], v12, {sr(S_WS)}, s60 offen offset:{16*t} {ld_flags}")
    else:
        a(f"s_lshl_b32 s60, s{s_k1}, 13\ns_lshl_b32 s61, s{s_pi}, 4\ns_add_u32 s60, s60, s61\ns_add_u32 s60, s60, {WS_Z}")
        a("v_bfe_u32 v13, v1, 2, 1\nv_lshlrev_b32 v14, 4, v13")
        a("v_bfe_u32 v13, v1, 3, 2\nv_lshl_add_u32 v14, v13, 2, v14")
        a("v_and_b32 v13, 3, v1\nv_add_u32 v14, v14, v13")
        a("v_lshlrev_b32 v14, 8, v14\nv_lshrrev_b32 v13, 5, v1\nv_lshl_add_u32 v14, v13, 5, v14")
        for t in range(4):
            a(f"buffer_load_dwordx4 v[{CF_Z+4*t}:{CF_Z+4*t+3}], v14, {sr(S_WS)}, s60 offen offset:{64*t} {ld_flags}")

def col_compute(a, s_pi, s_k1, st_flags="", wait_w="s_waitcnt vmcnt(0)", packed=True, store=True):
    AR, AI, U, T = CF_AR, CF_AI, CF_Z, CF_T
    def mf(d, x, y, first):
        a(f"v_mfma_f32_32x32x16_bf16 v[{d}:{d+15}], v[{x}:{x+3}], v[{y}:{y+3}], " + ("0" if first else f"v[{d}:{d+15}]"))
    def cmul(cs, conj):
        for p in range(8):
            c, s = cs(p)
            tr, ti = T + 4*(p & 1), T + 4*(p & 1) + 2
            re, im = AR + 2*p, AI + 2*p
            neg = "neg_lo:[1,0,0] neg_hi:[1,0,0]"
            if not packed:
                n1, n2 = ("-", "") if conj else ("", "-")
                for e in range(2):
                    a(f"v_mul_f32 v{tr+e}, v{re+e}, v{c+e}\nv_mul_f32 v{ti+e}, v{im+e}, v{c+e}")
                for e in range(2):
                    a(f"v_fma_f32 v{tr+e}, {n1}v{im+e}, v{s+e}, v{tr+e}\nv_fma_f32 v{ti+e}, {n2}v{re+e}, v{s+e}, v{ti+e}")
                a(f"v_cvt_pk_bf16_f32 v{U+p}, v{tr}, v{tr+1}")
                a(f"v_cvt_pk_bf16_f32 v{U+8+p}, v{ti}, v{ti+1}")
                continue
            a(f"v_pk_mul_f32 v[{tr}:{tr+1}], v[{re}:{re+1}], v[{c}:{c+1}]")
            a(f"v_pk_mul_f32 v[{ti}:{ti+1}], v[{im}:{im+1}], v[{c}:{c+1}]")
            a(f"v_pk_fma_f32 v[{tr}:{tr+1}], v[{im}:{im+1}], v[{s}:{s+1}], v[{tr}:{tr+1}] {neg if conj else ''}")
            a(f"v_pk_fma_f32 v[{ti}:{ti+1}], v[{re}:{re+1}], v[{s}:{s+1}], v[{ti}:{ti+1}] {'' if conj else neg}")
            a(f"v_cvt_pk_bf16_f32 v{U+p}, v{tr}, v{tr+1}")
            a(f"v_cvt_pk_bf16_f32 v{U+8+p}, v{ti}, v{ti+1}")
    for t in range(4):
        mf(AR, CF_Z + 4*t, CF_CA + 8*t, t == 0)
        mf(AI, CF_Z + 4*t, CF_CA + 8*t + 4, t == 0)
    cmul(lambda p: (CF_T1C + 2*p, CF_T1S + 2*p), False)
    C, S, N = CF_CB, CF_CB + 8, CF_CB + 16
    for t in range(2):
        mf(AR, C + 4*t, U + 4*t, t == 0); mf(AI, N + 4*t, U + 4*t, t == 0)
        mf(AR, S + 4*t, U + 8 + 4*t, False); mf(AI, C + 4*t, U + 8 + 4*t, False)
    a(wait_w)
    WC = CF_T1C
    for r in range(16):
        a(f"v_lshlrev_b32 v{CF_T1C+r}, 16, v{CF_W+r}")
        a(f"v_and_b32 v{CF_T1S+r}, 0xffff0000, v{CF_W+r}")
    cmul(lambda p: (CF_T1C + 2*p, CF_T1S + 2*p), True)
    for t in range(2):
        mf(AR, U + 4*t, C + 4*t, t == 0); mf(AI, U + 4*t, S + 4*t, t == 0)
        mf(AR, U + 8 + 4*t, N + 4*t, False); mf(AI, U + 8 + 4*t, C + 4*t, False)
    cmul(lambda p: (CF_T2C + 2*p, CF_T2S + 2*p), True)
    C, S, N = CF_CD, CF_CD + 8, CF_CD + 16
    for t in range(2):
        mf(AR, U + 4*t, C + 4*t, t == 0); mf(AI, U + 4*t, S + 4*t, t == 0)
        mf(AR, U + 8 + 4*t, N + 4*t, False); mf(AI, U + 8 + 4*t, C + 4*t, False)
    if not store: return
    a(f"s_lshl_b32 s60, s{s_k1}, 13\ns_lshl_b32 s61, s{s_pi}, 6\ns_add_u32 s60, s60, s61\ns_add_u32 s60, s60, {WS_E}\ns_add_u32 s61, s60, 4096")
    a("v_and_b32 v12, 31, v1\nv_lshlrev_b32 v12, 7, v12\nv_lshrrev_b32 v13, 5, v1\nv_lshl_add_u32 v12, v13, 5, v12")
    for ri, acc in enumerate((AR, AI)):
        for p in range(8):
            a(f"v_cvt_pk_bf16_f32 v{U+8*ri+p}, v{acc+2*p}, v{acc+2*p+1}")
        for q in range(2):
            a(f"buffer_store_dwordx4 v[{U+8*ri+4*q}:{U+8*ri+4*q+3}], v12, {sr(S_WS)}, s{60+ri} offen offset:{16*q} {st_flags}")
```

```python
from pieces import *

def row_issue(a, s_hw, lds_rows, lds_w):
    a("s_and_b32 s40, s2, 31\ns_lshr_b32 s41, s2, 5")
    a(f"s_lshl_b32 s42, s41, 2\ns_add_u32 s42, s42, s{s_hw}\ns_lshl_b32 s42, s42, 5\ns_add_u32 s42, s42, s40\ns_lshl_b32 s42, s42, 10")
    a(f"s_lshl_b32 s44, s{s_hw}, 11\ns_add_u32 s44, s44, {lds_rows}\ns_mov_b32 m0, s44")
    a("v_lshlrev_b32 v2, 4, v1\ns_add_u32 s43, s42, 0x100000")
    a(f"buffer_load_dwordx4 v2, {sr(S_X)}, s42 offen lds")
    a("s_add_u32 m0, s44, 1024")
    a(f"buffer_load_dwordx4 v2, {sr(S_X)}, s43 offen lds")
    a("s_and_b32 s45, s2, 3\ns_bfe_u32 s46, s2, 0x20002\ns_bfe_u32 s47, s2, 0x10004\ns_bfe_u32 s48, s2, 0x20005\ns_lshr_b32 s49, s2, 7")
    a(f"s_lshl_b32 s50, s47, 2\ns_add_u32 s50, s50, s46\ns_lshl_b32 s50, s50, 2\ns_add_u32 s50, s50, s{s_hw}\ns_lshl_b32 s50, s50, 6")
    a("s_lshl_b32 s51, s48, 3\ns_add_u32 s50, s50, s51\ns_add_u32 s50, s50, s49\ns_mul_i32 s50, s50, 514\ns_lshl_b32 s51, s45, 7\ns_add_u32 s50, s50, s51\ns_add_u32 s50, s50, 2")
    a("v_lshrrev_b32 v3, 5, v1\nv_lshlrev_b32 v3, 4, v3\nv_bfe_u32 v4, v1, 3, 2\nv_add_u32 v3, v3, v4\nv_mul_u32_u24 v3, 1028, v3\nv_and_b32 v4, 7, v1\nv_lshl_add_u32 v3, v4, 4, v3")
    a(f"s_lshl_b32 s51, s{s_hw}, 10\ns_add_u32 m0, s51, {lds_w}")
    a(f"buffer_load_dwordx4 v3, {sr(S_WR)}, s50 offen lds")
    a(f"s_add_u32 m0, s51, {lds_w + 4096}")
    a(f"buffer_load_dwordx4 v3, {sr(S_WI)}, s50 offen lds")

def row_compute(a, s_hw, lds_rows, lds_w, st_flags, extra_vm):
    N, Q4, FU, ARG, STEP = 4, 5, 6, 7, 8
    B1, TC, TS, A2, CM = 16, 32, 40, 48, 9
    a(f"v_and_b32 v{N}, 15, v1")
    a(f"v_lshrrev_b32 v{Q4}, 4, v1\nv_lshlrev_b32 v{Q4}, 2, v{Q4}\nv_cvt_f32_u32 v{Q4}, v{Q4}")
    a(f"v_add_u32 v{FU}, 1, v{N}\nv_cvt_f32_u32 v{FU}, v{FU}")
    a(f"v_mul_f32 v{STEP}, {f32(1/32)}, v{FU}")
    a(f"v_mul_f32 v{ARG}, v{Q4}, v{STEP}")
    C0, S0 = 52, 60
    for j in range(8):
        if j == 4: a(f"v_mul_f32 v10, {f32(13.0)}, v{STEP}\nv_add_f32 v{ARG}, v{ARG}, v10")
        elif j: a(f"v_add_f32 v{ARG}, v{ARG}, v{STEP}")
        a(f"v_cos_f32 v{C0+j}, v{ARG}\nv_sin_f32 v{S0+j}, v{ARG}")
    for jj in range(4):
        a(f"v_cvt_pk_bf16_f32 v{B1+jj}, v{C0+2*jj}, v{C0+2*jj+1}")
        a(f"v_cvt_pk_bf16_f32 v{B1+4+jj}, -v{S0+2*jj}, -v{S0+2*jj+1}")
    for jj in range(8): a(f"v_xor_b32 v{B1+8+jj}, 0x80000000, v{B1+jj}")
    for tau in range(2):
        if tau: a(f"v_add_f32 v{FU}, {f32(16.0)}, v{FU}")
        a(f"v_mul_f32 v{STEP}, {f32(1/512)}, v{FU}\nv_mul_f32 v{ARG}, v{Q4}, v{STEP}")
        for r in range(4):
            if r: a(f"v_add_f32 v{ARG}, v{ARG}, v{STEP}")
            a(f"v_cos_f32 v{TC+4*tau+r}, v{ARG}\nv_sin_f32 v{TS+4*tau+r}, v{ARG}")
    a(f"v_lshrrev_b32 v{STEP}, 1, v{N}\nv_cvt_f32_u32 v{STEP}, v{STEP}\nv_mul_f32 v{STEP}, {f32(1/16)}, v{STEP}")
    a(f"v_and_b32 v{ARG}, 1, v{N}\nv_cvt_f32_u32 v{ARG}, v{ARG}\nv_mul_f32 v{ARG}, {f32(0.25)}, v{ARG}")
    a(f"v_fma_f32 v{ARG}, v{Q4}, v{STEP}, v{ARG}")
    for r in range(4):
        if r: a(f"v_add_f32 v{ARG}, v{ARG}, v{STEP}")
        a(f"v_cos_f32 v{C0+r}, v{ARG}\nv_sin_f32 v{S0+r}, v{ARG}")
    for jj in range(2):
        a(f"v_cvt_pk_bf16_f32 v{A2+jj}, v{C0+2*jj}, v{C0+2*jj+1}")
        a(f"v_cvt_pk_bf16_f32 v{A2+2+jj}, v{S0+2*jj}, v{S0+2*jj+1}")
    a(f"v_cmp_eq_u32 vcc, 15, v{N}\nv_mov_b32 v{CM}, {f32(32.0)}\nv_cndmask_b32 v{CM}, 0, v{CM}, vcc")
    a("s_mov_b32 s53, 0x3f803f80")
    a("v_lshlrev_b32 v10, 3, v1\nv_add_u32 v10, s44, v10")
    a(f"v_lshrrev_b32 v11, 4, v1\nv_lshlrev_b32 v11, 6, v11\nv_add_u32 v11, v11, v{N}\nv_lshlrev_b32 v11, 2, v11\nv_add_u32 v11, s44, v11")
    a(f"s_lshl_b32 s52, s{s_hw}, 6\nv_add_u32 v133, s52, v1\nv_and_b32 v134, 1, v133\nv_lshrrev_b32 v132, 1, v133")
    a(f"v_lshlrev_b32 v134, 10, v134\nv_lshl_add_u32 v132, v132, 2, v134\nv_add_u32 v132, {lds_rows}, v132\nv_lshlrev_b32 v133, 4, v133")
    a(f"v_lshrrev_b32 v135, 3, v1\nv_and_b32 v136, 7, v1\nv_lshlrev_b32 v134, 7, v136\nv_lshl_add_u32 v134, v135, 1, v134")
    a(f"s_lshl_b32 s52, s{s_hw}, 5\ns_add_u32 s52, s52, {lds_w}\nv_add_u32 v134, s52, v134")
    a("v_lshlrev_b32 v135, 13, v135\nv_lshl_add_u32 v135, v136, 4, v135")
    a(f"s_lshl_b32 s60, s45, 2\ns_add_u32 s60, s60, s{s_hw}\ns_lshl_b32 s60, s60, 17\ns_lshl_b32 s61, s49, 12\ns_add_u32 s60, s60, s61")
    a(f"s_lshl_b32 s61, s46, 10\ns_add_u32 s60, s60, s61\ns_lshl_b32 s61, s47, 9\ns_add_u32 s60, s60, s61\ns_lshl_b32 s61, s48, 7\ns_add_u32 s60, s60, s61\ns_add_u32 s50, s60, {WS_WT}\ns_add_u32 s51, s50, 0x10000")
    a(f"s_lshl_b32 s52, s2, 13\ns_add_u32 s52, s52, {WS_Z}\ns_add_u32 s63, s52, 4096")
    XF = 52
    Stamps.at(a, 3)
    a(f"s_waitcnt vmcnt({2 + extra_vm})")
    Stamps.at(a, 4)
    for al in range(2):
        a(f"ds_read_b64_tr_b16 v[{XF+4*al}:{XF+4*al+1}], v10 offset:{1024*al}")
        a(f"ds_read_b64_tr_b16 v[{XF+4*al+2}:{XF+4*al+3}], v10 offset:{1024*al+512}")
    D1, SU = 100, 12
    a("s_waitcnt lgkmcnt(0)")
    for j in range(4):
        for al in range(2):
            c1 = "0" if j == 0 else f"v{SU+2*al}"
            c2 = "0" if j == 0 else f"v{SU+2*al+1}"
            a(f"v_dot2_f32_bf16 v{SU+2*al}, v{XF+4*al+j}, s53, {c1}")
            a(f"v_dot2_f32_bf16 v{SU+2*al+1}, v{XF+4*al+j}, v{XF+4*al+j}, {c2}")
    mf = []
    for al in range(2):
        for tau in range(2):
            for ri in range(2):
                d = D1 + 16*al + 8*tau + 4*ri
                mf.append(f"v_mfma_f32_16x16x32_bf16 v[{d}:{d+3}], v[{XF+4*al}:{XF+4*al+3}], v[{B1+8*tau+4*ri}:{B1+8*tau+4*ri+3}], 0")
    for n, m in enumerate(("row_ror:8 row_mask:0xf", "row_ror:4 row_mask:0xf", "row_ror:2 row_mask:0xf", "row_ror:1 row_mask:0xf",
              "row_bcast:15 row_mask:0xa", "row_bcast:31 row_mask:0xc")):
        a(mf[n])
        for q in range(4): a(f"v_add_f32_dpp v{SU+q}, v{SU+q}, v{SU+q} {m} bank_mask:0xf")
    a(mf[6]); a(mf[7])
    sub = [Asm(), Asm()]
    for al in range(2): ln_scalars(sub[al], SU+2*al, SU+2*al+1, None)
    for l0, l1 in zip(sub[0].lines, sub[1].lines): a(l0); a(l1)
    for al in range(2):
        a(f"v_readlane_b32 s{54+al}, v{SU+2*al}, 63\nv_readlane_b32 s{56+2*al}, v{SU+2*al+1}, 63")
    UF, T0 = 60, 76
    for al in range(2):
        for r in range(4):
            d = D1 + 16*al + 8 + r
            a(f"v_fma_f32 v{d}, -v{CM}, s{54+al}, v{d}")
    mf = []
    for al in range(2):
        for tau in range(2):
            re, im = D1 + 16*al + 8*tau, D1 + 16*al + 8*tau + 4
            for p in range(2):
                c, s = TC + 4*tau + 2*p, TS + 4*tau + 2*p
                tr, ti = T0 + 4*p, T0 + 4*p + 2
                a(f"v_pk_mul_f32 v[{tr}:{tr+1}], v[{re+2*p}:{re+2*p+1}], v[{c}:{c+1}]")
                a(f"v_pk_mul_f32 v[{ti}:{ti+1}], v[{im+2*p}:{im+2*p+1}], v[{c}:{c+1}]")
                a(f"v_pk_fma_f32 v[{tr}:{tr+1}], v[{im+2*p}:{im+2*p+1}], v[{s}:{s+1}], v[{tr}:{tr+1}]")
                a(f"v_pk_fma_f32 v[{ti}:{ti+1}], v[{re+2*p}:{re+2*p+1}], v[{s}:{s+1}], v[{ti}:{ti+1}] neg_lo:[1,0,0] neg_hi:[1,0,0]")
            u = UF + 8*al + 4*tau
            for p in range(2):
                a(f"v_cvt_pk_bf16_f32 v{u+p}, v{T0+4*p}, v{T0+4*p+1}")
                a(f"v_cvt_pk_bf16_f32 v{u+2+p}, v{T0+4*p+2}, v{T0+4*p+3}")
            d = D1 + 16*al + 8*tau
            mf.append(f"v_mfma_f32_16x16x32_bf16 v[{d}:{d+3}], v[{A2}:{A2+3}], v[{u}:{u+3}], 0")
    for i in (0, 2, 1, 3): a(mf[i])
    a(f"v_mov_b32 v12, {MISC}\nv_mov_b32 v13, 1")
    for tau in range(2):
        for vl in range(2):
            d0, d1 = D1 + 8*tau + 2*vl, D1 + 16 + 8*tau + 2*vl
            t = T0 + 8 * vl
            a(f"v_pk_mul_f32 v[{d0}:{d0+1}], v[{d0}:{d0+1}], s[56:57] op_sel_hi:[1,0]")
            a(f"v_pk_fma_f32 v[{t}:{t+1}], v[{d1}:{d1+1}], s[58:59], v[{d0}:{d0+1}] op_sel_hi:[1,0,1]")
            a(f"v_pk_fma_f32 v[{t+2}:{t+3}], v[{d1}:{d1+1}], s[58:59], v[{d0}:{d0+1}] op_sel_hi:[1,0,1] neg_lo:[1,0,0] neg_hi:[1,0,0]")
            a(f"v_cvt_pk_bf16_f32 v{t+4}, v{t}, v{t+1}\nv_cvt_pk_bf16_f32 v{t+5}, v{t+2}, v{t+3}")
            a(f"ds_write_b32 v11, v{t+4} offset:{64*tau + 128*vl}")
            a(f"ds_write_b32 v11, v{t+5} offset:{64*tau + 128*vl + 1024}")
    Stamps.at(a, 5)
    a(f"s_waitcnt vmcnt({extra_vm})")
    a("s_mov_b64 exec, 1")
    a(f"ds_add_u32 v12, v13 offset:{FL_BAR_A - MISC}")
    a("s_mov_b64 exec, -1")
    lds_wait_ge(a, 12, FL_BAR_A - MISC, 4, 18, 61, 62)
    Stamps.at(a, 6)
    for e in range(2):
        a(f"ds_read2st64_b32 v[{20+4*e}:{21+4*e}], v132 offset0:{2*e} offset1:{2*e+8}")
        a(f"ds_read2st64_b32 v[{22+4*e}:{23+4*e}], v132 offset0:{2*e+16} offset1:{2*e+24}")
    WR_, WI_ = 32, 40
    for r in range(4):
        a(f"ds_read_u16 v{WR_+r}, v134 offset:{1024*r}\nds_read_u16 v{WI_+r}, v134 offset:{4096 + 1024*r}")
    a("s_waitcnt lgkmcnt(10)")
    a(f"buffer_store_dwordx4 v[20:23], v133, {sr(S_WS)}, s52 offen {st_flags}")
    a("s_waitcnt lgkmcnt(8)")
    a(f"buffer_store_dwordx4 v[24:27], v133, {sr(S_WS)}, s63 offen {st_flags}")
    for r in range(4):
        if r == 3: a("s_waitcnt lgkmcnt(8)")
        a(f"ds_read_u16 v{WR_+4+r}, v134 offset:{1024*r + 16}\nds_read_u16 v{WI_+4+r}, v134 offset:{4096 + 1024*r + 16}")
    a("s_mov_b64 exec, 1")
    a(f"ds_add_u32 v12, v13 offset:{FL_A_DONE - MISC}")
    a("s_mov_b64 exec, -1")
    for n in range(2):
        a(f"s_waitcnt lgkmcnt({9 if n == 0 else 0})")
        for r in range(4): a(f"v_lshl_or_b32 v{WR_+4*n+r}, v{WI_+4*n+r}, 16, v{WR_+4*n+r}")
        a(f"buffer_store_dwordx4 v[{WR_+4*n}:{WR_+4*n+3}], v135, {sr(S_WS)}, s{50+n} offen {st_flags}")

def col_loads2(a, s_pi, s_k1, ld_flags):
    a(f"s_lshl_b32 s60, s{s_k1}, 5\ns_lshl_b32 s61, s{s_pi}, 4\ns_add_u32 s60, s60, s61\ns_add_u32 s60, s60, {WS_Z}")
    for t in range(4):
        a(f"buffer_load_dwordx4 v[{CF_Z+4*t}:{CF_Z+4*t+3}], v14, {sr(S_WS)}, s60 offen {ld_flags}")
        if t < 3: a(f"s_add_u32 s60, s60, {64*8192}")
    a(f"s_lshl_b32 s60, s{s_k1}, 13\ns_lshl_b32 s61, s{s_pi}, 12\ns_add_u32 s60, s60, s61\ns_add_u32 s61, s60, {WS_WT}")
    for t in range(4):
        a(f"buffer_load_dwordx4 v[{CF_W+4*t}:{CF_W+4*t+3}], v15, {sr(S_WS)}, s61 offen offset:{1024*t} {ld_flags}")

def col_addrs(a):
    a("v_bfe_u32 v13, v1, 2, 1\nv_lshlrev_b32 v14, 4, v13\nv_bfe_u32 v13, v1, 3, 2\nv_lshl_add_u32 v14, v13, 2, v14")
    a("v_and_b32 v13, 0x23, v1\nv_add_u32 v14, v14, v13\nv_lshlrev_b32 v14, 13, v14\nv_lshlrev_b32 v15, 4, v1")
    a("v_bfe_u32 v12, v1, 3, 2\nv_lshlrev_b32 v12, 10, v12\nv_lshrrev_b32 v13, 5, v1\nv_lshl_add_u32 v12, v13, 9, v12\nv_and_b32 v13, 7, v1\nv_lshl_add_u32 v12, v13, 4, v12")

def col_store2(a, st_flags):
    AR, AI, U = CF_AR, CF_AI, CF_Z
    a(f"s_add_u32 s60, s60, {WS_E}")
    for q in range(4):
        for ri, acc in enumerate((AR, AI)):
            for p in range(2):
                a(f"v_cvt_pk_bf16_f32 v{U+4*q+2*ri+p}, v{acc+4*q+2*p}, v{acc+4*q+2*p+1}")
        a(f"buffer_store_dwordx4 v[{U+4*q}:{U+4*q+3}], v12, {sr(S_WS)}, s60 offen offset:{128*q} {st_flags}")
```

```python
import sys, math
from spec import *

OPT = set(sys.argv[2:])
Stamps.on = "stamp" in OPT
if "cyc" in OPT: Stamps.op = "s_memtime"
LSLEEP[0] = 1 if "lsleep" in OPT else 0
NAME = "parallel_sum__spectral_gfnet__glu_gated_swiglu__prompt_kernel"
HEADER = open("parallel_sum__spectral_gfnet__glu_gated_swiglu__prompt.s.ref").read().split("; Override")[0]
WT = "sc0 sc1"
RD = "sc1"
GF_EPOCH, GF_Z, GF_E, GF_H = WS_FLAG, WS_FLAG + 0x2000, WS_FLAG + 0x4000, WS_FLAG + 0x10000
FSTR, HSTR = 32, 64
FL_Z_CNT, FL_E_CNT, FL_HLVL, FL_FULL2, FL_GO, FL_FULLE = MISC + 40, MISC + 44, MISC + 48, MISC + 64, MISC + 80, MISC + 96
SCRATCH = MISC + 1024
GSPIN = 1 << 14
PSLEEP = 24 if "slowpoll" in OPT else 2
HWT = "" if "hplain" in OPT else WT
S_I, S_J, S_P, S_NP, S_ROT, S_T, S_CJ, S_RES, S_TAG, S_HW, S_COL = 84, 85, 86, 87, 88, 89, 90, 91, 5, 4, 83

class DsQ:
    def __init__(self, a): self.a = a; self.q = []
    def op(self, text, tag=None): self.a(text); self.q.append(tag)
    def wait(self, tag):
        idx = [i for i, t in enumerate(self.q) if t == tag]
        if not idx: return
        n = len(self.q) - 1 - idx[-1]
        assert n <= 15, n
        self.a(f"s_waitcnt lgkmcnt({n})")
        self.q = self.q[idx[-1] + 1:]

PJ = [(43 * j) >> 4 for j in range(17)]
ORDER = [PJ[j] for j in range(16)] + [PJ[j+1] - 1 for j in range(16)] + [PJ[j] + 1 for j in range(16) if PJ[j+1] - PJ[j] == 3]

def plan_slots():
    free = [(16, 0), (17, 0), (18, 0)] + [(4 * w + c, c + 1) for c in range(4) for w in range(4)]
    cells = {}
    def alloc(key, release):
        free.sort(key=lambda t: t[1])
        s, req = free.pop(0)
        cells[key] = (s, req)
        free.append((s, release))
    for q in range(4):
        alloc(("A", "X", q), 5 + q); alloc(("C", "X", q), 13 + q); alloc(("A", "Y", q), 5 + q)
    for q in range(4):
        alloc(("B", "Y", q), 9 + q); alloc(("C", "Y", q), 13 + q); alloc(("B", "X", q), 9 + q)
    for c in range(19): alloc(("w", c), 17 + c)
    for c in range(8): alloc(("e", c), 99)
    for c in range(19, 22): alloc(("w", c), 99)
    return cells
CELLS = plan_slots()
LAST_REQ = max(r for (s, r) in CELLS.values())
TB = [0, 1, 2, 3]; TA = [4, 5]

def ids(a):
    a("s_and_b32 s40, s2, 7\ns_lshr_b32 s41, s2, 3")
    a(f"s_and_b32 s{S_I}, s40, 1\ns_lshl_b32 s{S_I}, s{S_I}, 3\ns_and_b32 s42, s41, 7\ns_add_u32 s{S_I}, s{S_I}, s42")
    a(f"s_lshr_b32 s{S_J}, s40, 1\ns_lshl_b32 s{S_J}, s{S_J}, 2\ns_lshr_b32 s42, s41, 3\ns_add_u32 s{S_J}, s{S_J}, s42")
    a(f"s_mul_i32 s{S_P}, s{S_J}, 43\ns_add_u32 s{S_NP}, s{S_P}, 43\ns_lshr_b32 s{S_P}, s{S_P}, 4\ns_lshr_b32 s{S_NP}, s{S_NP}, 4\ns_sub_u32 s{S_NP}, s{S_NP}, s{S_P}")
    a(f"s_add_u32 s{S_ROT}, s{S_I}, s{S_J}\ns_and_b32 s{S_ROT}, s{S_ROT}, 3")
    a(f"s_lshl_b32 s{S_T}, s40, 2\ns_and_b32 s42, s41, 3\ns_add_u32 s{S_T}, s{S_T}, s42\ns_lshr_b32 s{S_CJ}, s41, 2")
    a(f"s_lshl_b32 s{S_COL}, s{S_CJ}, 5\ns_add_u32 s{S_COL}, s{S_COL}, s{S_T}")

def make_tag(a):
    a(f"s_mul_i32 s{S_TAG}, s{S_TAG}, 0x9E3779B1\ns_add_u32 s{S_TAG}, s{S_TAG}, 0x7F4A7C15")

def flag_store(a, soff, level, vt):
    a(f"s_add_u32 s40, s{S_TAG}, {level}\nv_mov_b32 v{vt}, s40")
    a("s_mov_b64 exec, 1")
    a(f"buffer_store_dword v{vt}, off, {sr(S_WS)}, s{soff} {WT}")
    a("s_mov_b64 exec, -1")

def wg_signal(a, cnt_word, n, base, vaddr, vone, vt):
    zf = a.label("zf")
    a("s_mov_b64 exec, 1")
    a(f"ds_add_rtn_u32 v{vt}, v{vaddr}, v{vone} offset:{cnt_word - MISC}\ns_mov_b64 exec, -1\ns_waitcnt lgkmcnt(0)\nv_readfirstlane_b32 s40, v{vt}")
    a(f"s_cmp_lg_u32 s40, {n - 1}\ns_cbranch_scc1 {zf}")
    a(f"s_mul_i32 s43, s2, {FSTR}\ns_add_u32 s43, s43, {base}")
    flag_store(a, 43, 1, vt)
    a(f"{zf}:")

def wait_all(a, base, level, s_pi, vt):
    top, done, other, out = a.label("gp"), a.label("gpd"), a.label("gpo"), a.label("gpx")
    a(f"v_mov_b32 v{vt+5}, {MISC}")
    a(f"s_cmp_lg_u32 s{s_pi}, 0\ns_cbranch_scc1 {other}")
    a(f"v_mul_u32_u24 v{vt+4}, {FSTR}, v1")
    a(f"s_mov_b32 s41, {GSPIN}\ns_mov_b32 s42, {base}\ns_mov_b32 s44, {base + 128*FSTR}\ns_add_u32 s43, s{S_TAG}, 1")
    a(f"{top}:")
    for i in range(4):
        a(f"buffer_load_dword v{vt+i}, v{vt+4}, {sr(S_WS)}, s{42 + 2*(i >> 1)} offen offset:{64*FSTR*(i & 1)} {RD}")
    a("s_waitcnt vmcnt(0)")
    for i in range(4): a(f"v_xor_b32 v{vt+i}, s43, v{vt+i}")
    a(f"v_or3_b32 v{vt}, v{vt}, v{vt+1}, v{vt+2}\nv_or_b32 v{vt}, v{vt}, v{vt+3}")
    a(f"v_cmpx_ne_u32 vcc, 0, v{vt}")
    a(f"s_cbranch_execz {done}")
    a(f"s_sleep {PSLEEP}\ns_sub_u32 s41, s41, 1")
    a(f"s_cbranch_scc0 {top}")
    a(f"{done}:")
    a(f"s_mov_b64 exec, -1\nv_mov_b32 v{vt}, {level}\nds_write_b32 v{vt+5}, v{vt} offset:{FL_GO - MISC}")
    a(f"s_branch {out}")
    a(f"{other}:")
    lds_wait_ge(a, vt + 5, FL_GO - MISC, level, vt, 40, 41, sleep=1)
    a(f"{out}:")

def check(a, stubs, scache, need, areg, off, vt, minof=1, before_spin=None):
    back, sl = a.label("fb"), a.label("fs")
    a(f"s_cmp_ge_u32 s{scache}, {need}")
    a(f"s_cbranch_scc0 {sl}")
    a(f"{back}:")
    stubs.append((sl, back, scache, need, areg, off, vt, minof, before_spin))

def emit_stubs(a, stubs):
    for (sl, back, sc, need, areg, off, vt, minof, before_spin) in stubs:
        a(f"{sl}:")
        if before_spin:
            a(f"ds_read_b32 v{vt}, v{areg} offset:{off}\ns_waitcnt lgkmcnt(0)\nv_readfirstlane_b32 s{sc}, v{vt}")
            a(f"s_cmp_ge_u32 s{sc}, {need}\ns_cbranch_scc1 {back}")
            before_spin()
        lds_wait_ge(a, areg, off, need, vt, sc, 41, minof=minof)
        a(f"s_branch {back}")

X0, ACC, AF, PD = 128, (64, 96), 32, 3

def x_setup(a):
    a(f"s_and_b32 s40, s3, 1\ns_lshr_b32 s41, s3, 1\ns_lshl_b32 s41, s41, 5\ns_lshl_b32 s50, s{S_I}, 1\ns_add_u32 s50, s50, s40\ns_add_u32 s50, s50, s41")
    a("s_lshl_b32 s51, s3, 15")
    a("s_lshr_b32 s41, s50, 3\ns_lshl_b32 s41, s41, 18\ns_and_b32 s42, s50, 7\ns_lshl_b32 s42, s42, 12\ns_add_u32 s41, s41, s42")
    for c in range(4):
        a(f"s_add_u32 s40, s{S_ROT}, {c}\ns_and_b32 s40, s40, 3\ns_lshl_b32 s40, s40, 8\ns_add_u32 s{52+c}, s41, s40")
    a(f"s_lshr_b32 s63, s{S_J}, 2\ns_lshl_b32 s63, s63, 1")
    a("v_lshrrev_b32 v20, 4, v1\nv_and_b32 v21, 15, v1\nv_xor_b32 v21, v21, v20\nv_lshlrev_b32 v21, 4, v21\nv_lshl_add_u32 v20, v20, 10, v21")
    for e in range(8):
        a(f"s_add_u32 s40, s63, {e}\ns_and_b32 s40, s40, 7\ns_lshl_b32 s{64+e}, s40, 10")
        if e < 4: a(f"s_and_b32 s40, s40, 3\ns_lshl_b32 s40, s40, 6\nv_xor_b32 v{16+e}, s40, v20")

def x_issue(a, c):
    a(f"s_add_u32 s41, s51, {c*SLOT}")
    for e in range(8):
        a(f"s_add_u32 m0, s41, s{64+e}")
        a(f"s_lshl_b32 s40, s{64+e}, 5\ns_add_u32 s40, s40, s{52+c}")
        a(f"buffer_load_dwordx4 v{16+(e&3)}, {sr(S_X)}, s40 offen lds")

def epilogue_ops(acc, fb_sgpr, packed):
    ops = []
    for tau in range(2):
        out = 24 + 4 * tau
        for p in range(4):
            g, u = acc + 16*tau + 2*p, acc + 16*tau + 8 + 2*p
            e, q = 16 + 4*(p & 1), 18 + 4*(p & 1)
            if packed:
                ops += [f"v_pk_mul_f32 v[{e}:{e+1}], v[{g}:{g+1}], v[10:11] op_sel_hi:[1,0]",
                        f"v_pk_mul_f32 v[{q}:{q+1}], v[{g}:{g+1}], v[{u}:{u+1}]",
                        f"v_exp_f32 v{e}, v{e}", f"v_exp_f32 v{e+1}, v{e+1}",
                        f"v_pk_fma_f32 v[{e}:{e+1}], v[{e}:{e+1}], v[10:11], v[10:11] op_sel:[0,1,1] op_sel_hi:[1,1,1]",
                        f"v_rcp_f32 v{e}, v{e}", f"v_rcp_f32 v{e+1}, v{e+1}",
                        f"v_pk_mul_f32 v[{q}:{q+1}], v[{q}:{q+1}], v[{e}:{e+1}]"]
            else:
                ops += [f"v_mul_f32 v{e}, v10, v{g}", f"v_mul_f32 v{e+1}, v10, v{g+1}",
                        f"v_exp_f32 v{e}, v{e}", f"v_mul_f32 v{q}, v{g}, v{u}",
                        f"v_exp_f32 v{e+1}, v{e+1}", f"v_mul_f32 v{q+1}, v{g+1}, v{u+1}",
                        f"v_fma_f32 v{e}, v{e}, v11, v11", f"v_fma_f32 v{e+1}, v{e+1}, v11, v11",
                        f"v_rcp_f32 v{e}, v{e}", f"v_nop", f"v_rcp_f32 v{e+1}, v{e+1}",
                        f"v_mul_f32 v{q}, v{q}, v{e}", f"v_mul_f32 v{q+1}, v{q+1}, v{e+1}"]
                ops.remove("v_nop")
            ops.append(f"v_cvt_pk_bf16_f32 v{out+p}, v{q}, v{q+1}")
        ops.append(f"buffer_store_dwordx4 v[{out}:{out+3}], v3, {sr(S_WS)}, s{fb_sgpr} offen offset:{1024*tau} {HWT}")
    return ops

def g1_main(a):
    dq = DsQ(a); slow = []
    a(f"s_lshl_b32 s40, s3, 2\ns_add_u32 s40, s40, {MISC}\nv_mov_b32 v9, s40")
    a("v_lshlrev_b32 v3, 4, v1")
    a("v_and_b32 v20, 31, v1\nv_lshrrev_b32 v21, 5, v1\nv_and_b32 v22, 15, v1\nv_xor_b32 v21, v21, v22\nv_lshlrev_b32 v21, 4, v21")
    a("v_lshl_add_u32 v24, v20, 8, v21\nv_add_u32 v24, s51, v24")
    for j in range(1, 8): a(f"v_xor_b32 v{24+j}, {32*j}, v24")
    a("v_bfe_u32 v20, v1, 4, 1\nv_lshrrev_b32 v21, 5, v1\nv_bfe_u32 v22, v1, 2, 2")
    a(f"v_add_u32 v8, s{S_P}, v22\nv_and_b32 v8, 1, v8")
    a("v_lshrrev_b32 v22, 1, v22\nv_lshl_add_u32 v22, v21, 2, v22\nv_lshl_add_u32 v22, v8, 1, v22\nv_lshlrev_b32 v22, 6, v22")
    a("v_lshl_add_u32 v22, v20, 12, v22\nv_lshl_add_u32 v22, v20, 5, v22")
    a("v_and_b32 v21, 1, v1\nv_lshl_add_u32 v22, v21, 4, v22\nv_bfe_u32 v21, v1, 1, 1\nv_lshl_add_u32 v4, v21, 3, v22")
    a("v_xor_b32 v5, 128, v4\nv_xor_b32 v6, 32, v4\nv_xor_b32 v7, 160, v4")
    a("s_mov_b32 s56, 0x3f803f80\ns_mov_b32 s57, 0x00003f80\ns_mov_b32 s58, 0x3f800000")
    a(f"s_mul_i32 s60, s50, 86\ns_lshl_b32 s40, s{S_P}, 1\ns_add_u32 s60, s60, s40\ns_lshl_b32 s60, s60, 10\ns_add_u32 s60, s60, {WS_H}")
    a(f"s_add_u32 s62, s60, 2048\ns_sub_u32 s40, s{S_NP}, 1\ns_lshl_b32 s40, s40, 11\ns_add_u32 s61, s60, s40")
    a(f"s_lshl_b32 s59, s50, 4\ns_add_u32 s59, s59, s{S_J}\ns_mul_i32 s59, s59, {HSTR}\ns_add_u32 s59, s59, {GF_H}")
    def reads(c):
        for j in range(8):
            r = X0 + 32*c + 4*j
            dq.op(f"ds_read_b128 v[{r}:{r+3}], v{24+j} offset:{c*SLOT}", ("x", c, j))
        a(f"v_mov_b32 v14, {c + 1}")
        dq.op(f"ds_write_b32 v9, v14 offset:{FL_FREE - MISC}")
    def sums(c):
        for j in range(8):
            if j % 2 == 0: dq.wait(("x", c, j + 1))
            for r in range(X0 + 32*c + 4*j, X0 + 32*c + 4*j + 4):
                first = (r == X0)
                a(f"v_dot2_f32_bf16 v10, v{r}, s56, {'0' if first else 'v10'}")
                a(f"v_dot2_f32_bf16 v11, v{r}, v{r}, {'0' if first else 'v11'}")
    a("s_waitcnt vmcnt(16)"); Stamps.at(a, 1); reads(0)
    x_issue(a, 3)
    if XS: Stamps.at(a, 9, True)
    sums(0)
    if XS: Stamps.at(a, 10, True)
    a("s_waitcnt vmcnt(16)"); reads(1); sums(1)
    a("s_waitcnt vmcnt(8)"); reads(2); sums(2)
    if XS: Stamps.at(a, 11, True)
    a("s_waitcnt vmcnt(0)"); Stamps.at(a, 2); reads(3)
    sums(3)
    a("v_mov_b32 v12, v10\nv_mov_b32 v13, v11")
    a("v_permlane32_swap_b32 v12, v10\nv_permlane32_swap_b32 v13, v11")
    a("v_add_f32 v10, v10, v12\nv_add_f32 v11, v11, v13")
    ln_scalars(a, 10, 11, None)
    bf_round(a, 10)
    a("v_xor_b32 v31, 0x80000000, v10")
    a(f"v_mul_f32 v10, {f32(-math.log2(math.e))}, v11")
    a("v_mul_f32 v11, v11, v11\nv_rcp_f32 v11, v11")
    a(f"s_load_dword s{S_TAG}, s[80:81], 0")
    for j in range(32):
        if j == 24:
            a("s_waitcnt lgkmcnt(0)"); make_tag(a); dq.q = []
        for r in range(4):
            x = X0 + 4*j + r; t = 16 + 2*r
            a(f"v_dot2_f32_bf16 v{t}, v{x}, s57, v31\nv_dot2_f32_bf16 v{t+1}, v{x}, s58, v31")
        for r in range(4): a(f"v_cvt_pk_bf16_f32 v{X0+4*j+r}, v{16+2*r}, v{17+2*r}")
        if j == 24: dq.op(f"ds_read_b32 v2, v9 offset:{FL_FULL - MISC}", "poll")
    PASS = "ABC"
    def wreads(g, part):
        ps, q, j = PASS[g // 32], (g % 32) // 8, g % 8
        if j == 0 and part == 0:
            need_full = {"A": q + 1, "B": q + 5, "C": 0}[ps]
            if need_full:
                back, sl = a.label("g1b"), a.label("g1s")
                dq.wait("poll")
                a(f"v_readfirstlane_b32 s40, v2\ns_cmp_ge_u32 s40, {need_full}\ns_cbranch_scc0 {sl}")
                a(f"{back}:")
                slow.append((sl, back, need_full))
            bx, by = CELLS[(ps, "X", q)][0] * SLOT, CELLS[(ps, "Y", q)][0] * SLOT
            a(f"s_mov_b32 s40, {by - bx}\ns_mov_b32 s41, {bx}\nv_mul_i32_i24 v0, s40, v8")
            for i in range(4): a(f"v_add3_u32 v{12+i}, v0, v{4+i}, s41")
        b = AF + 8 * (g % 4); tau = part
        for rd in range(2):
            dq.op(f"ds_read_b64_tr_b16 v[{b+4*tau+2*rd}:{b+4*tau+2*rd+1}], v{12+2*tau+rd} offset:{512*j}", ("w", g))
        if part == 1 and j == 7:
            a(f"v_mov_b32 v0, {5 + g // 8}")
            dq.op(f"ds_write_b32 v9, v0 offset:{FL_FREE - MISC}")
        if part == 1 and j == 4 and g < 56:
            dq.op(f"ds_read_b32 v2, v9 offset:{FL_FULL - MISC}", "poll")
    for g in range(PD): wreads(g, 0); wreads(g, 1)
    Stamps.at(a, 3)
    fin2, done = a.label("g1fin2"), a.label("g1done")
    EP = {1: epilogue_ops(ACC[0], 60, False), 2: epilogue_ops(ACC[1], 61, False)}
    NE = 20
    for g in range(96):
        ps, j = g // 32, g % 32
        acc = ACC[ps & 1]
        fill = []
        if ps:
            ep = EP[ps]
            lo, hi = (len(ep) * max(j - 1, 0)) // NE, (len(ep) * j) // NE
            fill = ep[min(lo, len(ep)):min(hi, len(ep))]
        b = AF + 8 * (g % 4)
        half = len(fill) // 2
        dq.wait(("w", g))
        for tau in range(2):
            d = acc + 16 * tau
            a(f"v_mfma_f32_32x32x16_bf16 v[{d}:{d+15}], v[{b+4*tau}:{b+4*tau+3}], v[{X0+4*j}:{X0+4*j+3}], " + ("0" if j == 0 else f"v[{d}:{d+15}]"))
            if g + PD < 96: wreads(g + PD, tau)
            for o in (fill[:half] if tau == 0 else fill[half:]): a(o)
        if ps == 2 and j == 6:
            Stamps.at(a, 6); a("s_waitcnt vmcnt(0)"); Stamps.at(a, 7); flag_store(a, 59, 1, 0)
        if j == 31 and ps < 2: Stamps.at(a, 4 + ps)
        if g == 63:
            a(f"s_cmp_eq_u32 s{S_NP}, 2\ns_cbranch_scc1 {fin2}")
    Stamps.at(a, 8)
    for o in epilogue_ops(ACC[0], 62, True): a(o)
    Stamps.at(a, 9)
    a("s_waitcnt vmcnt(2)"); flag_store(a, 59, 2, 0)
    a(f"s_branch {done}")
    for (sl, back, n) in slow:
        a(f"{sl}:")
        lds_wait_ge(a, 9, FL_FULL - MISC, n, 2, 40, 41)
        a(f"s_branch {back}")
    a(f"{fin2}:")
    a(f"v_mov_b32 v0, 16\nds_write_b32 v9, v0 offset:{FL_FREE - MISC}")
    a("s_nop 15")
    for o in epilogue_ops(ACC[1], 61, True): a(o)
    a(f"{done}:")

ACC2, AF2 = 52, 20
def HB(p): return X0 + 4*p if p < 32 else 84 + 4*(p - 32)

def g2_main(a):
    dq = DsQ(a); stubs = []
    a(f"s_and_b32 s40, s3, 1\ns_lshl_b32 s40, s40, 5\ns_add_u32 s40, s40, s{S_T}\ns_mul_i32 s50, s40, 86")
    a(f"s_lshr_b32 s51, s3, 1\ns_add_u32 s50, s50, s51\ns_lshl_b32 s50, s50, 10\ns_add_u32 s50, s50, {WS_H}")
    a("s_mov_b32 s52, 0\ns_mov_b32 s53, 0")
    a("s_waitcnt lgkmcnt(0)")
    def h_issue(lo, hi):
        for p in range(lo, hi):
            a(f"s_add_u32 s40, s50, {ORDER[p] * 2048}")
            a(f"buffer_load_dwordx4 v[{HB(p)}:{HB(p)+3}], v3, {sr(S_WS)}, s40 offen {RD}")
    def own_first():
        a("s_waitcnt vmcnt(0)"); flag_store(a, 59, 3, 0)
    check(a, stubs, 53, 1, 9, FL_HLVL - MISC, 2, before_spin=own_first)
    Stamps.at(a, 10)
    h_issue(0, 8)
    a("s_waitcnt vmcnt(8)"); flag_store(a, 59, 3, 0)
    Stamps.at(a, 11)
    h_issue(8, 16)
    check(a, stubs, 53, 2, 9, FL_HLVL - MISC, 2)
    h_issue(16, 32)
    res_issue(a, 12, 11)
    a("v_bfe_u32 v16, v1, 2, 2\nv_lshrrev_b32 v17, 5, v1\nv_lshl_add_u32 v17, v17, 3, v16\ns_lshl_b32 s40, s51, 4\nv_add_u32 v17, s40, v17")
    a("v_lshlrev_b32 v17, 7, v17\nv_lshrrev_b32 v16, 1, v16\nv_lshl_add_u32 v17, v16, 6, v17")
    a("v_bfe_u32 v16, v1, 4, 1\nv_lshl_add_u32 v17, v16, 5, v17\nv_and_b32 v16, 3, v1\nv_lshl_add_u32 v4, v16, 3, v17")
    a("v_xor_b32 v5, 64, v4\nv_add_u32 v6, 0x10000, v4\nv_add_u32 v7, 0x10000, v5\nv_add_u32 v18, 0x20000, v4\nv_add_u32 v19, 0x20000, v5")
    AR = [4, 6, 18]
    def reads(p, dl):
        c = p // 2
        if p % 2 == 0 and dl == 0: check(a, stubs, 52, c + 1, 9, FL_FULL2 - MISC, 2)
        base = CELLS[("w", c)][0] * SLOT + (p % 2) * 4096
        w, off = base >> 16, base & 0xffff
        b = AF2 + 8 * (p % 4)
        for rd in range(2):
            dq.op(f"ds_read_b64_tr_b16 v[{b+4*dl+2*rd}:{b+4*dl+2*rd+1}], v{AR[w]+dl} offset:{off + 512*rd}", ("w", p))
        if dl == 1 and p % 2 == 1 and 17 + c <= LAST_REQ:
            a(f"v_mov_b32 v0, {17 + c}")
            dq.op(f"ds_write_b32 v9, v0 offset:{FL_FREE - MISC}")
    Stamps.at(a, 12)
    for p in range(PD): reads(p, 0); reads(p, 1)
    vm = [("h", p) for p in range(8)] + ["f"] + [("h", p) for p in range(8, 32)] + ["r"]
    L3 = 12
    for p in range(43):
        if p == L3:
            check(a, stubs, 53, 3, 9, FL_HLVL - MISC, 2)
            Stamps.at(a, 13)
            h_issue(32, 43); vm += [("h", q) for q in range(32, 43)]
        b = AF2 + 8 * (p % 4)
        a(f"s_waitcnt vmcnt({len(vm) - 1 - vm.index(('h', p))})")
        dq.wait(("w", p))
        for dl in range(2):
            d = ACC2 + 16 * dl
            a(f"v_mfma_f32_32x32x16_bf16 v[{d}:{d+15}], v[{b+4*dl}:{b+4*dl+3}], v[{HB(p)}:{HB(p)+3}], " + ("0" if p == 0 else f"v[{d}:{d+15}]"))
            if p + PD < 43: reads(p + PD, dl)
    a(f"s_lshl_b32 s40, s3, 13")
    a("v_and_b32 v16, 31, v1\nv_lshrrev_b32 v17, 5, v1\nv_and_b32 v18, 7, v1\nv_xor_b32 v17, v17, v18\nv_lshlrev_b32 v17, 4, v17\nv_lshl_add_u32 v16, v16, 8, v17\nv_add_u32 v16, s40, v16")
    for g in range(1, 4): a(f"v_xor_b32 v{16+g}, {32*g}, v16")
    Stamps.at(a, 14)
    a("s_barrier")
    for dl in range(2):
        for g in range(4):
            r = ACC2 + 16*dl + 4*g
            a(f"ds_write_b128 v{16+g}, v[{r}:{r+3}] offset:{128*dl}")
    return stubs

def res_issue(a, dst, voff):
    a(f"s_lshr_b32 s40, s3, 2\ns_lshl_b32 s40, s40, 20\ns_lshr_b32 s41, s{S_T}, 3\ns_lshl_b32 s41, s41, 18\ns_add_u32 s40, s40, s41")
    a(f"s_and_b32 s41, s{S_T}, 7\ns_lshl_b32 s41, s41, 12\ns_add_u32 s40, s40, s41\ns_and_b32 s41, s3, 3\ns_lshl_b32 s41, s41, 16\ns_add_u32 s40, s40, s41")
    a(f"s_lshl_b32 s41, s{S_CJ}, 7\ns_add_u32 s{S_RES}, s40, s41")
    a(f"v_bfe_u32 v{dst}, v1, 3, 2\nv_and_b32 v{voff}, 7, v1\nv_lshlrev_b32 v{voff}, 4, v{voff}\nv_lshl_add_u32 v{voff}, v{dst}, 10, v{voff}")
    a(f"v_lshrrev_b32 v{dst}, 5, v1\nv_lshl_add_u32 v{voff}, v{dst}, 15, v{voff}")
    a(f"buffer_load_dwordx4 v[{dst}:{dst+3}], v{voff}, {sr(S_X)}, s{S_RES} offen")

def final_combine(a, xr, voff):
    a("s_and_b32 s40, s3, 3\ns_lshl_b32 s40, s40, 11\ns_lshr_b32 s41, s3, 2\ns_lshl_b32 s42, s41, 13")
    a("v_lshrrev_b32 v16, 3, v1\nv_and_b32 v17, 7, v1\nv_lshlrev_b32 v17, 1, v17\nv_xor_b32 v17, v17, v16\nv_lshlrev_b32 v17, 4, v17")
    a("v_lshl_add_u32 v16, v16, 8, v17\nv_add_u32 v16, s40, v16\nv_xor_b32 v17, 16, v16\nv_add_u32 v18, s42, v16\nv_add_u32 v19, s42, v17")
    a("s_lshl_b32 s41, s41, 31\ns_or_b32 s42, s41, 0x3f800000")
    a("s_waitcnt lgkmcnt(0)\ns_barrier")
    R = 20
    for q in range(2):
        a(f"ds_read_b128 v[{R+4*q}:{R+4*q+3}], v{16+q} offset:{TA[0]*SLOT}")
        a(f"ds_read_b128 v[{R+8+4*q}:{R+8+4*q+3}], v{16+q} offset:{TA[1]*SLOT}")
        a(f"ds_read_b128 v[{R+16+4*q}:{R+16+4*q+3}], v{18+q}")
        a(f"ds_read_b128 v[{R+24+4*q}:{R+24+4*q+3}], v{18+q} offset:{2*SLOT}")
    a("s_waitcnt vmcnt(0)")
    XU = 52
    for p in range(4):
        a(f"v_lshlrev_b32 v{XU+2*p}, 16, v{xr+p}\nv_and_b32 v{XU+2*p+1}, 0xffff0000, v{xr+p}")
    for p in range(4):
        if p % 2 == 0: a(f"s_waitcnt lgkmcnt({4 if p == 0 else 0})")
        r = R + 2*p
        a(f"v_pk_fma_f32 v[{r}:{r+1}], v[{r+8}:{r+9}], s[42:43], v[{r}:{r+1}] op_sel_hi:[1,0,1]")
        a(f"v_pk_add_f32 v[{r+16}:{r+17}], v[{r+16}:{r+17}], v[{r+24}:{r+25}]")
        a(f"v_pk_add_f32 v[{r}:{r+1}], v[{r}:{r+1}], v[{XU+2*p}:{XU+2*p+1}]")
        a(f"v_pk_add_f32 v[{r}:{r+1}], v[{r}:{r+1}], v[{r+16}:{r+17}]")
        a(f"v_cvt_pk_bf16_f32 v{xr+p}, v{r}, v{r+1}")
    a(f"buffer_store_dwordx4 v[{xr}:{xr+3}], v{voff}, {sr(S_OUT)}, s{S_RES} offen")

def loader(a):
    a(f"v_mov_b32 v2, {MISC}")
    a("v_and_b32 v16, 3, v1\nv_lshl_add_u32 v16, v16, 2, v2")
    a("v_lshrrev_b32 v8, 2, v1\nv_and_b32 v9, 3, v1\nv_lshlrev_b32 v9, 4, v9\nv_xor_b32 v10, 2, v8")
    a("v_mul_u32_u24 v8, 5504, v8\nv_mul_u32_u24 v10, 5504, v10\nv_xor_b32 v11, 32, v9")
    a("v_add_u32 v4, v8, v9\nv_add_u32 v5, v8, v11\nv_add_u32 v6, v10, v9\nv_add_u32 v7, v10, v11")
    a("v_lshrrev_b32 v8, 3, v1\nv_and_b32 v9, 7, v1\nv_bfe_u32 v10, v1, 4, 1\nv_lshlrev_b32 v10, 2, v10\nv_xor_b32 v10, v10, v9")
    a("v_lshlrev_b32 v10, 4, v10\nv_lshl_add_u32 v17, v8, 10, v10")
    for q in range(4):
        a(f"s_add_u32 s40, s{S_ROT}, {q}\ns_and_b32 s40, s40, 3\ns_mul_i32 s{44+q}, s40, {128*2752}")
    a(f"s_and_b32 s40, s{S_P}, 1\ns_mul_i32 s48, s40, 2752\ns_sub_u32 s49, 2752, s48")
    a(f"s_lshl_b32 s40, s{S_P}, 6\ns_add_u32 s48, s48, s40\ns_add_u32 s49, s49, s40")
    a(f"s_lshl_b32 s50, s{S_CJ}, 7\ns_mov_b32 s52, 0")
    lds_wait_ge(a, 2, FL_A_DONE - MISC, 4, 12, 40, 41)
    Stamps.at(a, 7)
    two, w2l = a.label("ld2"), a.label("ldw2")
    a(f"s_cmp_eq_u32 s{S_NP}, 2\ns_cbranch_scc1 {two}")
    DEPTH = 40
    class Pipe:
        def __init__(s): s.items = []; s.seen = 0
        def publish(s, it):
            a(f"v_mov_b32 v3, {it[1]}\ns_mov_b64 exec, 15\nds_max_u32 v16, v3 offset:{it[0] - MISC}\ns_mov_b64 exec, -1")
        def need(s, req):
            if req <= s.seen: return
            ok = a.label("ldok")
            a(f"s_cmp_ge_u32 s52, {req}\ns_cbranch_scc1 {ok}")
            a(f"ds_read_b128 v[12:15], v2 offset:{FL_FREE - MISC}\ns_waitcnt lgkmcnt(0)")
            a("v_min_u32 v12, v12, v13\nv_min3_u32 v12, v12, v14, v15\nv_readfirstlane_b32 s52, v12")
            a(f"s_cmp_ge_u32 s52, {req}\ns_cbranch_scc1 {ok}")
            for i, it in enumerate(s.items):
                a(f"s_waitcnt vmcnt({sum(x[2] for x in s.items[i+1:])})"); s.publish(it)
            lds_wait_ge(a, 2, FL_FREE - MISC, req, 12, 52, 41, minof=4)
            a(f"{ok}:")
            s.seen = req
        def done(s, word, val, cnt):
            s.items.append((word, val, cnt))
            while len(s.items) > 1 and sum(x[2] for x in s.items) > DEPTH:
                it = s.items.pop(0)
                a(f"s_waitcnt vmcnt({sum(x[2] for x in s.items)})"); s.publish(it)
        def flush(s, keep=0):
            while len(s.items) > keep:
                it = s.items.pop(0)
                a(f"s_waitcnt vmcnt({sum(x[2] for x in s.items)})"); s.publish(it)
    def variant(np_):
        pp = Pipe()
        for grp in range(8):
            st, q = grp // 4, grp % 4
            if st == 0: seq = [[("A", "X", 0), ("C", "X", 64)], [("A", "Y", 0)]]
            else:       seq = [[("C", "Y", 64), ("B", "Y", 64 * (np_ - 1))], [("B", "X", 64 * (np_ - 1))]]
            if np_ == 2: seq = [[c for c in s if c[0] != "C"] for s in seq]
            pp.need(max(CELLS[(c[0], c[1], q)][1] for s in seq for c in s))
            cnt = 0
            for s in seq:
                cl = s[0][1]; ci = 0 if cl == "X" else 1
                for g in range(4):
                    for mat in range(2):
                        for n, (ps, _, off) in enumerate(s):
                            dst = CELLS[(ps, cl, q)][0] * SLOT + mat * 4096 + g * 1024
                            neg = dst - off < 0
                            a(f"s_mov_b32 m0, {dst if neg else dst - off}")
                            if mat == 0 and n == 0:
                                a(f"s_add_u32 s42, s{44+q}, s{48+ci}" if g == 0 else f"s_add_u32 s42, s42, {32*2752}")
                            if neg:
                                a(f"s_add_u32 s43, s42, {off}\nbuffer_load_dwordx4 v{4+2*ci+mat}, {sr(S_W1 + 4*mat)}, s43 offen lds")
                            else:
                                a(f"buffer_load_dwordx4 v{4+2*ci+mat}, {sr(S_W1 + 4*mat)}, s42 offen offset:{off} lds")
                            cnt += 1
            if grp == 0:
                a(f"s_waitcnt vmcnt({cnt})\nv_mov_b32 v3, 1"); wg_signal(a, FL_Z_CNT, 4, GF_Z, 2, 3, 12); cnt += 1
            pp.done(FL_FULL, grp + 1, cnt)
            if grp in (1, 3, 5, 7): Stamps.at(a, 8 + grp // 2)
        pp.flush(keep=1)
        return pp
    p3 = variant(3)
    a(f"s_branch {w2l}")
    a(f"{two}:")
    p2 = variant(2)
    a(f"{w2l}:")
    pp = Pipe(); pp.items = [(FL_FULL, 8, 24)]; pp.seen = min(p3.seen, p2.seen)
    for c in range(22):
        slot, req = CELLS[("w", c)]
        pp.need(req)
        cnt = 0
        for p in range(2 * c, min(2 * c + 2, 43)):
            for g in range(4):
                a(f"s_mov_b32 m0, {slot*SLOT + (p % 2)*4096 + g*1024}")
                a(f"s_add_u32 s42, s50, {ORDER[p]*32768 + g*8192}")
                a(f"buffer_load_dwordx4 v17, {sr(S_W2)}, s42 offen lds"); cnt += 1
        pp.done(FL_FULL2, c + 1, cnt)
        if c in (8, 18, 21): Stamps.at(a, {8: 12, 18: 13, 21: 14}[c])
    pp.flush()

GF, ACCE, BE = 128, 64, 32

def g_consts(a, n, s_dt16):
    a(f"v_and_b32 v4, 15, v1\ns_lshl_b32 s40, s{S_CJ}, 6\ns_add_u32 s40, s40, s{s_dt16}\nv_add_u32 v4, s40, v4")
    a(f"v_cvt_f32_u32 v4, v4\nv_mul_f32 v4, {f32(1/512)}, v4\nv_mul_f32 v5, {f32(7.0)}, v4")
    a("v_lshrrev_b32 v6, 4, v1\nv_lshl_add_u32 v6, v6, 1, 1\nv_cvt_f32_u32 v6, v6\nv_mul_f32 v6, v6, v4")
    for i in range(64):
        if i: a(f"v_add_f32 v6, v6, v{4 if i & 1 else 5}")
        t = 8 + 2 * (i & 1)
        a(f"v_cos_f32 v{t}, v6\nv_sin_f32 v{t+1}, v6")
        if i: a(f"v_cvt_pk_bf16_f32 v{GF+64*n+i-1}, v{18-t}, -v{19-t}")
    a(f"v_cvt_pk_bf16_f32 v{GF+64*n+63}, v10, -v11")

def e_load(a, s_pi):
    a(f"v_mov_b32 v2, {MISC}")
    a("v_lshrrev_b32 v8, 4, v1\nv_bfe_u32 v9, v1, 2, 2\nv_xor_b32 v9, v9, v8\nv_lshlrev_b32 v5, 13, v8\nv_lshrrev_b32 v10, 1, v9\nv_lshl_add_u32 v5, v10, 12, v5")
    a("v_and_b32 v10, 1, v9\nv_lshl_add_u32 v5, v10, 6, v5\nv_and_b32 v10, 3, v1\nv_lshl_add_u32 v5, v10, 4, v5")
    a(f"s_lshl_b32 s45, s{S_T}, 7\ns_lshl_b32 s40, s{s_pi}, 18\ns_add_u32 s45, s45, s40\ns_add_u32 s45, s45, {WS_E}")
    a(f"s_lshl_b32 s40, s{s_pi}, 2\nv_add_u32 v6, s40, v2")
    for i in range(4):
        (s0, r0), (s1, r1) = CELLS[("e", 2*i)], CELLS[("e", 2*i + 1)]
        lds_wait_ge(a, 2, FL_FREE - MISC, max(r0, r1), 16, 40, 41, minof=4, sleep=1)
        a(f"s_mul_i32 s46, s{s_pi}, {(s1 - s0) * SLOT}\ns_add_u32 s46, s46, {s0 * SLOT}")
        for g in range(8):
            a(f"s_add_u32 m0, s46, {g*1024}")
            a(f"s_add_u32 s42, s45, {(64*i + 4*g)*8192}")
            a(f"buffer_load_dwordx4 v5, {sr(S_WS)}, s42 offen {RD} lds")
    for i in range(4):
        a(f"s_waitcnt vmcnt({8*(3-i)})\nv_mov_b32 v3, {i+1}\nds_write_b32 v6, v3 offset:{FL_FULLE - MISC}")

def e_part(a, nt, s_dt16):
    dq = DsQ(a); stubs = []
    a(f"v_mov_b32 v2, {MISC}")
    a("v_lshrrev_b32 v8, 3, v1\nv_lshlrev_b32 v9, 8, v8\nv_and_b32 v8, 3, v8\nv_lshl_add_u32 v9, v8, 6, v9")
    a("v_and_b32 v8, 3, v1\nv_lshl_add_u32 v9, v8, 4, v9\nv_bfe_u32 v8, v1, 2, 1\nv_lshl_add_u32 v4, v8, 3, v9")
    for nu in range(1, 4): a(f"v_xor_b32 v{4+nu}, {64*nu}, v4")
    a("s_mov_b32 s52, 0\ns_mov_b32 s53, 0\ns_waitcnt lgkmcnt(0)")
    def reads(js):
        c = js // 2
        if js % 2 == 0:
            check(a, stubs, 52 + (c & 1), c // 2 + 1, 2, FL_FULLE - MISC + 4 * (c & 1), 3)
            for nu in range(4): a(f"v_add_u32 v{16+nu}, {CELLS[('e', c)][0]*SLOT}, v{4+nu}")
        b = BE + 16 * (js % 2)
        for nu in range(4):
            for rd in range(2):
                dq.op(f"ds_read_b64_tr_b16 v[{b+4*nu+2*rd}:{b+4*nu+2*rd+1}], v{16+nu} offset:{(js % 2)*4096 + 2048*rd}", ("e", js, nu))
    reads(0)
    for js in range(16):
        b = BE + 16 * (js % 2)
        dq.wait(("e", js, 0))
        if js + 1 < 16: reads(js + 1)
        for nu in range(4):
            dq.wait(("e", js, nu))
            for n in range(nt):
                d = ACCE + 16*n + 4*nu; g = GF + 64*n + 4*js
                a(f"v_mfma_f32_16x16x32_bf16 v[{d}:{d+3}], v[{g}:{g+3}], v[{b+4*nu}:{b+4*nu+3}], " + ("0" if js == 0 else f"v[{d}:{d+3}]"))
    a(f"s_lshr_b32 s40, s{s_dt16}, 2\nv_lshrrev_b32 v17, 4, v1\nv_add_u32 v17, s40, v17\nv_and_b32 v18, 7, v1\nv_xor_b32 v17, v17, v18\nv_lshlrev_b32 v17, 4, v17")
    a(f"v_and_b32 v16, 15, v1\nv_lshl_add_u32 v16, v16, 8, v17\nv_xor_b32 v17, 64, v16")
    a("s_barrier")
    for n in range(nt):
        for nu in range(4):
            d = ACCE + 16*n + 4*nu
            a(f"ds_write_b128 v{16+n}, v[{d}:{d+3}] offset:{TA[nu >> 1]*SLOT + (nu & 1)*4096}")
    return stubs

def h_watch(a):
    top, done = a.label("hw"), a.label("hwd")
    a(f"v_and_b32 v4, 15, v1\nv_bfe_u32 v5, v1, 4, 1\nv_lshl_add_u32 v4, v5, 9, v4\nv_mul_u32_u24 v4, {HSTR}, v4")
    a(f"s_mul_i32 s42, s{S_T}, {16*HSTR}\ns_add_u32 s42, s42, {GF_H}")
    a(f"v_mov_b32 v2, {MISC}")
    lds_wait_ge(a, 2, FL_FREE - MISC, 12, 16, 40, 41, minof=4, sleep=4)
    a(f"s_mov_b32 s41, {GSPIN}")
    a(f"v_bfe_u32 v5, v1, 4, 2\nv_lshlrev_b32 v5, 2, v5\nv_add_u32 v5, {MISC}, v5")
    a(f"{top}:")
    a(f"buffer_load_dword v6, v4, {sr(S_WS)}, s42 offen {RD}\ns_waitcnt vmcnt(0)")
    a(f"v_subrev_u32 v6, s{S_TAG}, v6\nv_cmp_ge_u32 vcc, 3, v6\nv_cndmask_b32 v6, 0, v6, vcc")
    for m in (8, 4, 2, 1): a(f"v_min_u32_dpp v6, v6, v6 row_ror:{m} row_mask:0xf bank_mask:0xf")
    a(f"ds_write_b32 v5, v6 offset:{FL_HLVL - MISC}")
    a(f"v_cmp_ne_u32 vcc, 3, v6\ns_cbranch_vccz {done}")
    a(f"s_sleep {PSLEEP}\ns_sub_u32 s41, s41, 1\ns_cbranch_scc0 {top}")
    a(f"{done}:")

def prefetch_slices(a):
    a(f"s_lshl_b32 s40, s2, 2\ns_add_u32 s40, s40, s{S_HW}\ns_lshl_b32 s40, s40, 10\ns_add_u32 s41, s40, 0x100000\ns_mov_b32 m0, {SCRATCH}")
    for s in (S_W1, S_W3):
        a(f"buffer_load_dwordx4 v2, {sr(s)}, s40 offen lds\nbuffer_load_dwordx4 v2, {sr(s)}, s41 offen lds")
    a(f"buffer_load_dwordx4 v2, {sr(S_W2)}, s40 offen lds\nbuffer_load_dwordx4 v2, {sr(S_W2)}, s41 offen lds")

a = Asm()
a.begin_kernel(NAME)
prologue(a, "k_end", pf=(NAME, "k_end", 65536, 8, 255), init_lds=True)
a(f"s_add_u32 s80, s82, {GF_EPOCH}\ns_addc_u32 s81, s83, 0")
ids(a)
a("s_cmp_ge_u32 s3, 4\ns_cbranch_scc1 k_helper")
XS = "xs" in OPT
if XS: Stamps.at(a, 4)
x_setup(a)
if XS: Stamps.at(a, 5)
x_issue(a, 0)
if XS: Stamps.at(a, 6)
x_issue(a, 1)
if XS: Stamps.at(a, 7)
x_issue(a, 2)
if XS: Stamps.at(a, 8); Stamps.skip = set(range(4, 12))
g1_main(a)
st = g2_main(a)
a("s_branch k_fin")
emit_stubs(a, st)

Stamps.skip = set()
a("k_helper:")
a(f"s_sub_u32 s{S_HW}, s3, 4" + ("" if "noprio" in OPT else "\ns_setprio 2"))
SF = "" if "plain" in OPT else WT
row_issue(a, S_HW, 18*SLOT, 17*SLOT)
Stamps.at(a, 1)
if "nopf" not in OPT: prefetch_slices(a)
Stamps.at(a, 2)
a(f"s_load_dword s{S_TAG}, s[80:81], 0")
row_compute(a, S_HW, 18*SLOT, 17*SLOT, SF, 0 if "nopf" in OPT else 6)
make_tag(a)
a(f"s_setprio 0\ns_cmp_eq_u32 s{S_HW}, 0\ns_cbranch_scc1 k_loader")
a("s_waitcnt vmcnt(0)")
wg_signal(a, FL_Z_CNT, 4, GF_Z, 12, 13, 14)
a(f"s_cmp_eq_u32 s{S_HW}, 3\ns_cbranch_scc1 k_h3")
Stamps.at(a, 7)
a(f"s_sub_u32 s6, s{S_HW}, 1")
col_consts(a, 6, S_COL)
col_addrs(a)
Stamps.at(a, 8)
wait_all(a, GF_Z, 1, 6, 2)
Stamps.at(a, 9)
col_loads2(a, 6, S_COL, RD)
a("s_waitcnt vmcnt(4)")
Stamps.at(a, 10)
col_compute(a, 6, S_COL, packed="colpk" in OPT, store=False)
col_store2(a, SF)
Stamps.at(a, 11)
a(f"v_mov_b32 v2, {MISC}\nv_mov_b32 v3, 1")
lds_wait_ge(a, 2, FL_FREE - MISC, 5, 8, 40, 41, minof=4)
a("s_waitcnt vmcnt(0)")
Stamps.at(a, 12)
wg_signal(a, FL_E_CNT, 2, GF_E, 2, 3, 14)
a("s_lshl_b32 s7, s6, 4")
g_consts(a, 0, 7)
res_issue(a, 12, 11)
Stamps.at(a, 13)
wait_all(a, GF_E, 2, 6, 16)
Stamps.at(a, 14)
e_load(a, 6)
st = e_part(a, 1, 7)
a("s_branch k_fin")
emit_stubs(a, st)

a("k_h3:")
a("s_mov_b32 s7, 48"); g_consts(a, 1, 7)
a("s_mov_b32 s7, 32"); g_consts(a, 0, 7)
Stamps.at(a, 8)
res_issue(a, 12, 11)
h_watch(a)
Stamps.at(a, 14)
st = e_part(a, 2, 7)
a("s_branch k_fin")
emit_stubs(a, st)

a("k_loader:")
loader(a)
res_issue(a, 12, 11)
a("s_barrier")
a("k_fin:")
final_combine(a, 12, 11)
a("s_or_b32 s40, s2, s3\ns_cmp_lg_u32 s40, 0\ns_cbranch_scc1 k_dump")
a(f"s_mov_b32 s42, {GF_EPOCH}")
flag_store(a, 42, 0, 4)
a("k_dump:")
if Stamps.on: a("s_waitcnt vmcnt(0)")
Stamps.dump(a, 0)
a("k_end:\ns_endpgm")
a.add_kernel(NAME, 256); a.add_launch(NAME, 256, 512, LDS_BYTES)
open(sys.argv[1], "w").write(a.text(header=HEADER, single=True))
print("nops", a.nops_added, CELLS if "v" in OPT else "")
```

```python
from pieces import *

def row_setup(a, s_hw, lds_rows):
    a("s_and_b32 s40, s2, 31\ns_lshr_b32 s41, s2, 5")
    a(f"s_lshl2_add_u32 s42, s41, s{s_hw}\ns_lshl_b32 s42, s42, 5\ns_add_u32 s42, s42, s40\ns_lshl_b32 s42, s42, 10")
    a(f"s_lshl_b32 s44, s{s_hw}, 11\ns_add_u32 s44, s44, {lds_rows}\ns_mov_b32 m0, s44")
    a("v_lshlrev_b32 v2, 4, v1\ns_add_u32 s43, s42, 0x100000")
    a("s_and_b32 s45, s2, 3\ns_bfe_u32 s46, s2, 0x20002\ns_bfe_u32 s47, s2, 0x10004\ns_bfe_u32 s48, s2, 0x20005\ns_lshr_b32 s49, s2, 7")
    a(f"s_lshl2_add_u32 s50, s47, s46\ns_lshl2_add_u32 s50, s50, s{s_hw}\ns_lshl3_add_u32 s50, s50, s48\ns_lshl3_add_u32 s50, s50, s49")
    a("s_mulk_i32 s50, 514\ns_lshl_b32 s51, s45, 7\ns_add_u32 s50, s50, s51\ns_add_u32 s50, s50, 2")
    a("v_lshrrev_b32 v3, 5, v1\nv_bfe_u32 v4, v1, 3, 2\nv_lshl_add_u32 v3, v3, 4, v4\nv_mul_u32_u24 v3, 1028, v3\nv_and_b32 v4, 7, v1\nv_lshl_add_u32 v3, v4, 4, v3")
    a(f"s_lshl_b32 s51, s{s_hw}, 10")

def row_issue(a, lds_w):
    a(f"buffer_load_dwordx4 v2, {sr(S_X)}, s42 offen lds")
    a("s_add_u32 m0, s44, 1024")
    a(f"buffer_load_dwordx4 v2, {sr(S_X)}, s43 offen lds")
    a(f"s_add_u32 m0, s51, {lds_w}")
    a(f"buffer_load_dwordx4 v3, {sr(S_WR)}, s50 offen lds")
    a(f"s_add_u32 m0, s51, {lds_w + 4096}")
    a(f"buffer_load_dwordx4 v3, {sr(S_WI)}, s50 offen lds")

def row_compute(a, s_hw, lds_rows, lds_w, st_flags, extra_vm, idle_hook=None):
    N, Q4, FU, ARG, STEP = 4, 5, 6, 7, 8
    B1, TC, TS, A2, CM = 16, 32, 40, 48, 9
    a(f"v_and_b32 v{N}, 15, v1")
    a(f"v_lshrrev_b32 v{Q4}, 4, v1\nv_lshlrev_b32 v{Q4}, 2, v{Q4}\nv_cvt_f32_u32 v{Q4}, v{Q4}")
    a(f"v_add_u32 v{FU}, 1, v{N}\nv_cvt_f32_u32 v{FU}, v{FU}")
    a(f"v_mul_f32 v{STEP}, {f32(1/32)}, v{FU}")
    a(f"v_mul_f32 v{ARG}, v{Q4}, v{STEP}")
    C0, S0 = 52, 60
    for j in range(8):
        if j == 4: a(f"v_mul_f32 v10, {f32(13.0)}, v{STEP}\nv_add_f32 v{ARG}, v{ARG}, v10")
        elif j: a(f"v_add_f32 v{ARG}, v{ARG}, v{STEP}")
        a(f"v_cos_f32 v{C0+j}, v{ARG}\nv_sin_f32 v{S0+j}, v{ARG}")
    for jj in range(4):
        a(f"v_cvt_pk_bf16_f32 v{B1+jj}, v{C0+2*jj}, v{C0+2*jj+1}")
        a(f"v_cvt_pk_bf16_f32 v{B1+4+jj}, -v{S0+2*jj}, -v{S0+2*jj+1}")
    for jj in range(8): a(f"v_xor_b32 v{B1+8+jj}, 0x80000000, v{B1+jj}")
    for tau in range(2):
        if tau: a(f"v_add_f32 v{FU}, {f32(16.0)}, v{FU}")
        a(f"v_mul_f32 v{STEP}, {f32(1/512)}, v{FU}\nv_mul_f32 v{ARG}, v{Q4}, v{STEP}")
        for r in range(4):
            if r: a(f"v_add_f32 v{ARG}, v{ARG}, v{STEP}")
            a(f"v_cos_f32 v{TC+4*tau+r}, v{ARG}\nv_sin_f32 v{TS+4*tau+r}, v{ARG}")
    a(f"v_lshrrev_b32 v{STEP}, 1, v{N}\nv_cvt_f32_u32 v{STEP}, v{STEP}\nv_mul_f32 v{STEP}, {f32(1/16)}, v{STEP}")
    a(f"v_and_b32 v{ARG}, 1, v{N}\nv_cvt_f32_u32 v{ARG}, v{ARG}\nv_mul_f32 v{ARG}, {f32(0.25)}, v{ARG}")
    a(f"v_fma_f32 v{ARG}, v{Q4}, v{STEP}, v{ARG}")
    for r in range(4):
        if r: a(f"v_add_f32 v{ARG}, v{ARG}, v{STEP}")
        a(f"v_cos_f32 v{C0+r}, v{ARG}\nv_sin_f32 v{S0+r}, v{ARG}")
    for jj in range(2):
        a(f"v_cvt_pk_bf16_f32 v{A2+jj}, v{C0+2*jj}, v{C0+2*jj+1}")
        a(f"v_cvt_pk_bf16_f32 v{A2+2+jj}, v{S0+2*jj}, v{S0+2*jj+1}")
    a(f"v_cmp_eq_u32 vcc, 15, v{N}\nv_mov_b32 v{CM}, {f32(32.0)}\nv_cndmask_b32 v{CM}, 0, v{CM}, vcc")
    a("s_mov_b32 s53, 0x3f803f80")
    a("v_lshlrev_b32 v10, 3, v1\nv_add_u32 v10, s44, v10")
    a(f"v_lshrrev_b32 v11, 4, v1\nv_lshlrev_b32 v11, 6, v11\nv_add_u32 v11, v11, v{N}\nv_lshlrev_b32 v11, 2, v11\nv_add_u32 v11, s44, v11")
    a(f"s_lshl_b32 s52, s{s_hw}, 6\nv_add_u32 v125, s52, v1\nv_and_b32 v126, 1, v125\nv_lshrrev_b32 v124, 1, v125")
    a(f"v_lshlrev_b32 v126, 10, v126\nv_lshl_add_u32 v124, v124, 2, v126\nv_add_u32 v124, {lds_rows}, v124\nv_lshlrev_b32 v125, 4, v125")
    a(f"v_lshrrev_b32 v127, 3, v1\nv_and_b32 v3, 7, v1\nv_lshlrev_b32 v126, 7, v3\nv_lshl_add_u32 v126, v127, 1, v126")
    a(f"s_lshl_b32 s52, s{s_hw}, 5\ns_add_u32 s52, s52, {lds_w}\nv_add_u32 v126, s52, v126")
    a("v_lshlrev_b32 v127, 13, v127\nv_lshl_add_u32 v127, v3, 4, v127")
    a(f"s_lshl_b32 s60, s45, 2\ns_add_u32 s60, s60, s{s_hw}\ns_lshl_b32 s60, s60, 17\ns_lshl_b32 s61, s49, 12\ns_add_u32 s60, s60, s61")
    a(f"s_lshl_b32 s61, s46, 10\ns_add_u32 s60, s60, s61\ns_lshl_b32 s61, s47, 9\ns_add_u32 s60, s60, s61\ns_lshl_b32 s61, s48, 7\ns_add_u32 s60, s60, s61\ns_add_u32 s50, s60, {WS_WT}\ns_add_u32 s51, s50, 0x10000")
    a(f"s_lshl_b32 s52, s2, 13\ns_add_u32 s52, s52, {WS_Z}\ns_add_u32 s63, s52, 4096")
    XF = 52
    if idle_hook: idle_hook()
    Stamps.at(a, 3)
    a(f"s_waitcnt vmcnt({2 + extra_vm})")
    Stamps.at(a, 4)
    for al in range(2):
        a(f"ds_read_b64_tr_b16 v[{XF+4*al}:{XF+4*al+1}], v10 offset:{1024*al}")
        a(f"ds_read_b64_tr_b16 v[{XF+4*al+2}:{XF+4*al+3}], v10 offset:{1024*al+512}")
    D1, SU = 92, 12
    a("s_waitcnt lgkmcnt(0)")
    for j in range(4):
        for al in range(2):
            c1 = "0" if j == 0 else f"v{SU+2*al}"
            c2 = "0" if j == 0 else f"v{SU+2*al+1}"
            a(f"v_dot2_f32_bf16 v{SU+2*al}, v{XF+4*al+j}, s53, {c1}")
            a(f"v_dot2_f32_bf16 v{SU+2*al+1}, v{XF+4*al+j}, v{XF+4*al+j}, {c2}")
    mf = []
    for al in range(2):
        for tau in range(2):
            for ri in range(2):
                d = D1 + 16*al + 8*tau + 4*ri
                mf.append(f"v_mfma_f32_16x16x32_bf16 v[{d}:{d+3}], v[{XF+4*al}:{XF+4*al+3}], v[{B1+8*tau+4*ri}:{B1+8*tau+4*ri+3}], 0")
    for n, m in enumerate(("row_ror:8 row_mask:0xf", "row_ror:4 row_mask:0xf", "row_ror:2 row_mask:0xf", "row_ror:1 row_mask:0xf",
              "row_bcast:15 row_mask:0xa", "row_bcast:31 row_mask:0xc")):
        a(mf[n])
        for q in range(4): a(f"v_add_f32_dpp v{SU+q}, v{SU+q}, v{SU+q} {m} bank_mask:0xf")
    a(mf[6]); a(mf[7])
    sub = [Asm(), Asm()]
    for al in range(2): ln_scalars(sub[al], SU+2*al, SU+2*al+1, None)
    for l0, l1 in zip(sub[0].lines, sub[1].lines): a(l0); a(l1)
    for al in range(2):
        a(f"v_readlane_b32 s{54+al}, v{SU+2*al}, 63\nv_readlane_b32 s{56+2*al}, v{SU+2*al+1}, 63")
    UF, T0 = 60, 76
    for al in range(2):
        for r in range(4):
            d = D1 + 16*al + 8 + r
            a(f"v_fma_f32 v{d}, -v{CM}, s{54+al}, v{d}")
    mf = []
    for al in range(2):
        for tau in range(2):
            re, im = D1 + 16*al + 8*tau, D1 + 16*al + 8*tau + 4
            for p in range(2):
                c, s = TC + 4*tau + 2*p, TS + 4*tau + 2*p
                tr, ti = T0 + 4*p, T0 + 4*p + 2
                a(f"v_pk_mul_f32 v[{tr}:{tr+1}], v[{re+2*p}:{re+2*p+1}], v[{c}:{c+1}]")
                a(f"v_pk_mul_f32 v[{ti}:{ti+1}], v[{im+2*p}:{im+2*p+1}], v[{c}:{c+1}]")
                a(f"v_pk_fma_f32 v[{tr}:{tr+1}], v[{im+2*p}:{im+2*p+1}], v[{s}:{s+1}], v[{tr}:{tr+1}]")
                a(f"v_pk_fma_f32 v[{ti}:{ti+1}], v[{re+2*p}:{re+2*p+1}], v[{s}:{s+1}], v[{ti}:{ti+1}] neg_lo:[1,0,0] neg_hi:[1,0,0]")
            u = UF + 8*al + 4*tau
            for p in range(2):
                a(f"v_cvt_pk_bf16_f32 v{u+p}, v{T0+4*p}, v{T0+4*p+1}")
                a(f"v_cvt_pk_bf16_f32 v{u+2+p}, v{T0+4*p+2}, v{T0+4*p+3}")
            d = D1 + 16*al + 8*tau
            mf.append(f"v_mfma_f32_16x16x32_bf16 v[{d}:{d+3}], v[{A2}:{A2+3}], v[{u}:{u+3}], 0")
    for i in (0, 2, 1, 3): a(mf[i])
    a(f"v_mov_b32 v12, {MISC}\nv_mov_b32 v13, 1")
    for tau in range(2):
        for vl in range(2):
            d0, d1 = D1 + 8*tau + 2*vl, D1 + 16 + 8*tau + 2*vl
            t = T0 + 8 * vl
            a(f"v_pk_mul_f32 v[{d0}:{d0+1}], v[{d0}:{d0+1}], s[56:57] op_sel_hi:[1,0]")
            a(f"v_pk_fma_f32 v[{t}:{t+1}], v[{d1}:{d1+1}], s[58:59], v[{d0}:{d0+1}] op_sel_hi:[1,0,1]")
            a(f"v_pk_fma_f32 v[{t+2}:{t+3}], v[{d1}:{d1+1}], s[58:59], v[{d0}:{d0+1}] op_sel_hi:[1,0,1] neg_lo:[1,0,0] neg_hi:[1,0,0]")
            a(f"v_cvt_pk_bf16_f32 v{t+4}, v{t}, v{t+1}\nv_cvt_pk_bf16_f32 v{t+5}, v{t+2}, v{t+3}")
            a(f"ds_write_b32 v11, v{t+4} offset:{64*tau + 128*vl}")
            a(f"ds_write_b32 v11, v{t+5} offset:{64*tau + 128*vl + 1024}")
    Stamps.at(a, 5)
    a(f"s_waitcnt vmcnt({extra_vm})")
    a("s_mov_b64 exec, 1")
    a(f"ds_add_u32 v12, v13 offset:{FL_BAR_A - MISC}")
    a("s_mov_b64 exec, -1")
    lds_wait_ge(a, 12, FL_BAR_A - MISC, 4, 18, 61, 62)
    Stamps.at(a, 6)
    for e in range(2):
        a(f"ds_read2st64_b32 v[{20+4*e}:{21+4*e}], v124 offset0:{2*e} offset1:{2*e+8}")
        a(f"ds_read2st64_b32 v[{22+4*e}:{23+4*e}], v124 offset0:{2*e+16} offset1:{2*e+24}")
    WR_, WI_ = 32, 40
    for r in range(4):
        a(f"ds_read_u16 v{WR_+r}, v126 offset:{1024*r}\nds_read_u16 v{WI_+r}, v126 offset:{4096 + 1024*r}")
    a("s_waitcnt lgkmcnt(10)")
    a(f"buffer_store_dwordx4 v[20:23], v125, {sr(S_WS)}, s52 offen {st_flags}")
    a("s_waitcnt lgkmcnt(8)")
    a(f"buffer_store_dwordx4 v[24:27], v125, {sr(S_WS)}, s63 offen {st_flags}")
    for r in range(4):
        if r == 3: a("s_waitcnt lgkmcnt(8)")
        a(f"ds_read_u16 v{WR_+4+r}, v126 offset:{1024*r + 16}\nds_read_u16 v{WI_+4+r}, v126 offset:{4096 + 1024*r + 16}")
    a("s_mov_b64 exec, 1")
    a(f"ds_add_u32 v12, v13 offset:{FL_A_DONE - MISC}")
    a("s_mov_b64 exec, -1")
    for n in range(2):
        a(f"s_waitcnt lgkmcnt({9 if n == 0 else 0})")
        for r in range(4): a(f"v_lshl_or_b32 v{WR_+4*n+r}, v{WI_+4*n+r}, 16, v{WR_+4*n+r}")
        a(f"buffer_store_dwordx4 v[{WR_+4*n}:{WR_+4*n+3}], v127, {sr(S_WS)}, s{50+n} offen {st_flags}")

def col_loads2(a, s_pi, s_k1, ld_flags):
    a(f"s_lshl_b32 s60, s{s_k1}, 5\ns_lshl_b32 s61, s{s_pi}, 4\ns_add_u32 s60, s60, s61\ns_add_u32 s60, s60, {WS_Z}")
    for t in range(4):
        a(f"buffer_load_dwordx4 v[{CF_Z+4*t}:{CF_Z+4*t+3}], v14, {sr(S_WS)}, s60 offen {ld_flags}")
        if t < 3: a(f"s_add_u32 s60, s60, {64*8192}")
    a(f"s_lshl_b32 s60, s{s_k1}, 13\ns_lshl_b32 s61, s{s_pi}, 12\ns_add_u32 s60, s60, s61\ns_add_u32 s61, s60, {WS_WT}")
    for t in range(4):
        a(f"buffer_load_dwordx4 v[{CF_W+4*t}:{CF_W+4*t+3}], v15, {sr(S_WS)}, s61 offen offset:{1024*t} {ld_flags}")

def col_addrs(a):
    a("v_bfe_u32 v13, v1, 2, 1\nv_lshlrev_b32 v14, 4, v13\nv_bfe_u32 v13, v1, 3, 2\nv_lshl_add_u32 v14, v13, 2, v14")
    a("v_and_b32 v13, 0x23, v1\nv_add_u32 v14, v14, v13\nv_lshlrev_b32 v14, 13, v14\nv_lshlrev_b32 v15, 4, v1")
    a("v_bfe_u32 v12, v1, 3, 2\nv_lshlrev_b32 v12, 10, v12\nv_lshrrev_b32 v13, 5, v1\nv_lshl_add_u32 v12, v13, 9, v12\nv_and_b32 v13, 7, v1\nv_lshl_add_u32 v12, v13, 4, v12")

def col_store2(a, st_flags):
    AR, AI, U = CF_AR, CF_AI, CF_Z
    a(f"s_add_u32 s60, s60, {WS_E}")
    for q in range(4):
        for ri, acc in enumerate((AR, AI)):
            for p in range(2):
                a(f"v_cvt_pk_bf16_f32 v{U+4*q+2*ri+p}, v{acc+4*q+2*p}, v{acc+4*q+2*p+1}")
        a(f"buffer_store_dwordx4 v[{U+4*q}:{U+4*q+3}], v12, {sr(S_WS)}, s60 offen offset:{128*q} {st_flags}")

CA, CB, CD = 128, 160, 184
T1C, T1S, T2C, T2S = 16, 32, 48, 64
CZ, CW, CAR, CAI, CT = 80, 96, 208, 224, 112

def _lane_ids(a, s_pi, L, H, C, t):
    a(f"v_bfe_u32 v{t}, v1, 2, 1\nv_lshlrev_b32 v{L}, 4, v{t}\nv_bfe_u32 v{t}, v1, 3, 2\nv_lshl_add_u32 v{L}, v{t}, 2, v{L}")
    a(f"v_and_b32 v{t}, 3, v1\nv_add_u32 v{L}, v{L}, v{t}")
    a(f"v_lshl_add_u32 v{C}, v{L}, 1, s{s_pi}\nv_cvt_f32_u32 v{C}, v{C}\nv_cvt_f32_u32 v{L}, v{L}")
    a(f"v_lshrrev_b32 v{H}, 5, v1\nv_cvt_f32_u32 v{H}, v{H}")

def col_mats(a, s_pi):
    L, H, C, ARG, STEP, X, tc, ts = 240, 241, 242, 243, 244, 245, 246, 248
    _lane_ids(a, s_pi, L, H, C, X)
    a(f"v_mul_f32 v{STEP}, {f32(1/64)}, v{C}\nv_mul_f32 v{ARG}, 4.0, v{H}\nv_mul_f32 v{ARG}, v{ARG}, v{STEP}\nv_mul_f32 v{X}, {f32(5.0)}, v{STEP}")
    pend = []
    for t in range(4):
        for i in range(4):
            if i: a(f"v_add_f32 v{ARG}, v{ARG}, v{STEP}")
            elif t: a(f"v_add_f32 v{ARG}, v{ARG}, v{X}")
            a(f"v_cos_f32 v{tc+(i&1)}, v{ARG}\nv_sin_f32 v{ts+(i&1)}, v{ARG}")
            for o in pend: a(o)
            pend = [f"v_cvt_pk_bf16_f32 v{CA+8*t+i}, v{tc+(i&1)}, v{ts+(i&1)}", f"v_cvt_pk_bf16_f32 v{CA+8*t+4+i}, -v{ts+(i&1)}, v{tc+(i&1)}"]
    for o in pend: a(o)
    a(f"v_mul_f32 v{H}, {f32(16.0)}, v{H}")
    def mat(base):
        for R in range(16):
            if R: a(f"v_add_f32 v{ARG}, v{ARG}, v{STEP}")
            a(f"v_sin_f32 v{ts+(R&1)}, v{ARG}\nv_cos_f32 v{tc+(R&1)}, v{ARG}")
            if R & 1:
                a(f"v_cvt_pk_bf16_f32 v{base+8+(R>>1)}, v{ts}, v{ts+1}")
                a(f"v_cvt_pk_bf16_f32 v{base+(R>>1)}, v{tc}, v{tc+1}")
                a(f"v_xor_b32 v{base+16+(R>>1)}, 0x80008000, v{base+8+(R>>1)}")
    a(f"v_mul_f32 v{STEP}, {f32(1/32)}, v{L}\nv_mul_f32 v{ARG}, v{H}, v{STEP}")
    mat(CB)
    a(f"v_cvt_f32_u32 v{X}, s{s_pi}\nv_fma_f32 v{H}, 0.5, v{X}, v{H}")
    a(f"v_and_b32 v{X}, 31, v1\nv_cvt_f32_u32 v{X}, v{X}\nv_mul_f32 v{STEP}, {f32(1/32)}, v{X}\nv_mul_f32 v{ARG}, v{H}, v{STEP}")
    mat(CD)

def col_twiddles(a, s_pi, s_k1, which):
    L, H, C, ARG, STEP, X = 240, 241, 242, 243, 244, 245
    def tw(cb, sb):
        for R in range(16):
            if R: a(f"v_add_f32 v{ARG}, v{ARG}, v{STEP}")
            a(f"v_cos_f32 v{cb+R}, v{ARG}\nv_sin_f32 v{sb+R}, v{ARG}")
    if which == 2:
        a(f"v_mul_f32 v{STEP}, {f32(1/1024)}, v{L}\nv_mul_f32 v{ARG}, v{H}, v{STEP}")
        tw(T2C, T2S)
        a(f"s_cmp_eq_u32 s{s_k1}, 255\ns_mov_b32 s62, {f32(2/(2048*512))}\ns_cmov_b32 s62, {f32(1/(2048*512))}")
        for R in range(32): a(f"v_mul_f32 v{T2C+R}, s62, v{T2C+R}")
    else:
        a(f"v_floor_f32 v{X}, v{H}\nv_mul_f32 v{STEP}, {f32(1/2048)}, v{C}\nv_mul_f32 v{ARG}, v{X}, v{STEP}")
        tw(T1C, T1S)

def col_loads3(a, s_pi, s_k1, ld_flags):
    a(f"s_lshl_b32 s60, s{s_k1}, 5\ns_lshl_b32 s61, s{s_pi}, 4\ns_add_u32 s60, s60, s61\ns_add_u32 s60, s60, {WS_Z}")
    for t in range(4):
        a(f"buffer_load_dwordx4 v[{CZ+4*t}:{CZ+4*t+3}], v14, {sr(S_WS)}, s60 offen {ld_flags}")
        if t < 3: a(f"s_add_u32 s60, s60, {64*8192}")
    a(f"s_lshl_b32 s60, s{s_k1}, 13\ns_lshl_b32 s61, s{s_pi}, 12\ns_add_u32 s60, s60, s61\ns_add_u32 s61, s60, {WS_WT}")
    for t in range(4):
        a(f"buffer_load_dwordx4 v[{CW+4*t}:{CW+4*t+3}], v15, {sr(S_WS)}, s61 offen offset:{1024*t} {ld_flags}")

def col_compute3(a, st_flags):
    AR, AI, U, T = CAR, CAI, CZ, CT
    def mf(d, x, y, first):
        a(f"v_mfma_f32_32x32x16_bf16 v[{d}:{d+15}], v[{x}:{x+3}], v[{y}:{y+3}], " + ("0" if first else f"v[{d}:{d+15}]"))
    def cmul(cb, sb, conj):
        n1, n2 = ("-", "") if conj else ("", "-")
        for p in range(8):
            c, s = cb + 2*p, sb + 2*p
            tr, ti = T + 4*(p & 1), T + 4*(p & 1) + 2
            re, im = AR + 2*p, AI + 2*p
            for e in range(2): a(f"v_mul_f32 v{tr+e}, v{re+e}, v{c+e}\nv_mul_f32 v{ti+e}, v{im+e}, v{c+e}")
            for e in range(2): a(f"v_fma_f32 v{tr+e}, {n1}v{im+e}, v{s+e}, v{tr+e}\nv_fma_f32 v{ti+e}, {n2}v{re+e}, v{s+e}, v{ti+e}")
            a(f"v_cvt_pk_bf16_f32 v{U+p}, v{tr}, v{tr+1}\nv_cvt_pk_bf16_f32 v{U+8+p}, v{ti}, v{ti+1}")
    for t in range(4):
        a(f"s_waitcnt vmcnt({7 - t})")
        mf(AR, CZ + 4*t, CA + 8*t, t == 0); mf(AI, CZ + 4*t, CA + 8*t + 4, t == 0)
    cmul(T1C, T1S, False)
    C, S, N = CB, CB + 8, CB + 16
    for t in range(2):
        mf(AR, C + 4*t, U + 4*t, t == 0); mf(AI, N + 4*t, U + 4*t, t == 0)
        mf(AR, S + 4*t, U + 8 + 4*t, False); mf(AI, C + 4*t, U + 8 + 4*t, False)
    a("s_waitcnt vmcnt(0)")
    for r in range(16): a(f"v_lshlrev_b32 v{T1C+r}, 16, v{CW+r}\nv_and_b32 v{T1S+r}, 0xffff0000, v{CW+r}")
    cmul(T1C, T1S, True)
    for (C, S, N, last) in ((CB, CB + 8, CB + 16, False), (CD, CD + 8, CD + 16, True)):
        for t in range(2):
            mf(AR, U + 4*t, C + 4*t, t == 0); mf(AI, U + 4*t, S + 4*t, t == 0)
            mf(AR, U + 8 + 4*t, N + 4*t, False); mf(AI, U + 8 + 4*t, C + 4*t, False)
        if not last: cmul(T2C, T2S, True)
    a(f"s_add_u32 s60, s60, {WS_E}")
    for q in range(4):
        for ri, acc in enumerate((AR, AI)):
            for p in range(2): a(f"v_cvt_pk_bf16_f32 v{U+4*q+2*ri+p}, v{acc+4*q+2*p}, v{acc+4*q+2*p+1}")
        a(f"buffer_store_dwordx4 v[{U+4*q}:{U+4*q+3}], v12, {sr(S_WS)}, s60 offen offset:{128*q} {st_flags}")
```

```python
import sys, math
from spec import *

OPT = set(sys.argv[2:])
Stamps.on = "stamp" in OPT
if "cyc" in OPT: Stamps.op = "s_memtime"
LSLEEP[0] = 1 if "lsleep" in OPT else 0
NAME = "parallel_sum__spectral_gfnet__glu_gated_swiglu__prompt_kernel"
HEADER = open("parallel_sum__spectral_gfnet__glu_gated_swiglu__prompt.s.ref").read().split("; Override")[0]
WT = "sc0 sc1"
RD = "sc1"
GF_EPOCH, MBOX = WS_FLAG, WS_FLAG + 0x10000
S_MB, S_DBG = 64, 66
FL_Z_CNT, FL_E_CNT, FL_HLVL, FL_FULL2, FL_GO, FL_FULLE = MISC + 40, MISC + 44, MISC + 48, MISC + 64, MISC + 80, MISC + 96
SCRATCH = MISC + 1024
GSPIN = 1 << 14
CPRIO = 0 if "cp0" in OPT else 2
PSLEEP = 24 if "slowpoll" in OPT else 2
HWT = "" if "hplain" in OPT else WT
S_I, S_J, S_P, S_NP, S_ROT, S_T, S_CJ, S_RES, S_TAG, S_HW, S_COL = 84, 85, 86, 87, 88, 89, 90, 91, 5, 4, 83

class DsQ:
    def __init__(self, a): self.a = a; self.q = []
    def op(self, text, tag=None): self.a(text); self.q.append(tag)
    def wait(self, tag):
        idx = [i for i, t in enumerate(self.q) if t == tag]
        if not idx: return
        n = len(self.q) - 1 - idx[-1]
        assert n <= 15, n
        self.a(f"s_waitcnt lgkmcnt({n})")
        self.q = self.q[idx[-1] + 1:]

PJ = [(43 * j) >> 4 for j in range(17)]
ORDER = [PJ[j] for j in range(16)] + [PJ[j+1] - 1 for j in range(16)] + [PJ[j] + 1 for j in range(16) if PJ[j+1] - PJ[j] == 3]

def plan_slots():
    free = [(16, 0), (17, 0), (18, 0)] + [(4 * w + c, c + 1) for c in range(4) for w in range(4)]
    cells = {}
    def alloc(key, release):
        free.sort(key=lambda t: t[1])
        s, req = free.pop(0)
        cells[key] = (s, req)
        free.append((s, release))
    for q in range(4):
        alloc(("A", "X", q), 5 + q); alloc(("C", "X", q), 13 + q); alloc(("A", "Y", q), 5 + q)
    for q in range(4):
        alloc(("B", "Y", q), 9 + q); alloc(("C", "Y", q), 13 + q); alloc(("B", "X", q), 9 + q)
    for c in range(11): alloc(("w", c), 17 + c)
    for c in range(8): alloc(("e", c), 99)
    for c in range(11, 22): alloc(("w", c), 99)
    return cells
CELLS = plan_slots()
LAST_REQ = max(r for (s, r) in CELLS.values())
TB = [0, 1, 2, 3]; TA = [4, 5]

def ids_early(a):
    a(f"s_bfe_u32 s40, s2, 0x20003\ns_and_b32 s41, s2, 3\ns_lshl2_add_u32 s{S_I}, s41, s40")
    a(f"s_bfe_u32 s40, s2, 0x10002\ns_lshr_b32 s41, s2, 5\ns_lshl3_add_u32 s{S_J}, s40, s41")
    a(f"s_add_u32 s{S_ROT}, s{S_I}, s{S_J}\ns_and_b32 s{S_ROT}, s{S_ROT}, 3")

def ids_late(a):
    a(f"s_mul_i32 s{S_P}, s{S_J}, 43\ns_add_u32 s{S_NP}, s{S_P}, 43\ns_lshr_b32 s{S_P}, s{S_P}, 4\ns_lshr_b32 s{S_NP}, s{S_NP}, 4\ns_sub_u32 s{S_NP}, s{S_NP}, s{S_P}")
    a(f"s_and_b32 s40, s2, 7\ns_bfe_u32 s41, s2, 0x20003\ns_lshl2_add_u32 s{S_T}, s40, s41\ns_lshr_b32 s{S_CJ}, s2, 5")
    a(f"s_lshl_b32 s{S_COL}, s{S_CJ}, 5\ns_add_u32 s{S_COL}, s{S_COL}, s{S_T}")
    for d, src, n in ((S_W1, 72, 512*2752), (S_W3, 74, 512*2752), (S_W2, 76, 1376*1024), (S_OUT, 78, 2048*1024)):
        a(f"s_mov_b64 s[{d}:{d+1}], s[{src}:{src+1}]\ns_mov_b32 s{d+2}, {n}\ns_mov_b32 s{d+3}, 0x20000")
    a(f"s_mov_b32 s{S_WS+2}, 0x10000000\ns_mov_b32 s{S_WS+3}, 0x20000")
    a(f"s_add_u32 s80, s{S_WS}, {GF_EPOCH}\ns_addc_u32 s81, s{S_WS+1}, 0")
    a(f"s_lshl_b32 s40, s2, 8\ns_add_u32 s40, s40, {MBOX}\ns_add_u32 s{S_MB}, s{S_WS}, s40\ns_addc_u32 s{S_MB+1}, s{S_WS+1}, 0")
    Stamps.clear(a)

def make_tag(a):
    a(f"s_mul_i32 s{S_TAG}, s{S_TAG}, 0x9E3779B1\ns_add_u32 s{S_TAG}, s{S_TAG}, 0x7F4A7C15")

def flag_store(a, soff, level, vt):
    a(f"s_add_u32 s40, s{S_TAG}, {level}\nv_mov_b32 v{vt}, s40")
    a("s_mov_b64 exec, 1")
    a(f"buffer_store_dword v{vt}, off, {sr(S_WS)}, s{soff} {WT}")
    a("s_mov_b64 exec, -1")

def h_flag(a, level):
    a(f"s_add_u32 s40, s{S_TAG}, {level}\nv_mov_b32 v0, s40\nv_lshlrev_b32 v2, 13, v1")
    a("s_mov_b64 exec, 0xff")
    a(f"buffer_store_dword v0, v2, {sr(S_WS)}, s59 offen {WT}")
    a("s_mov_b64 exec, -1")

def wg_signal(a, cnt_word, n, event, vaddr, vone, vt):
    zf = a.label("zf")
    a("s_mov_b64 exec, 1")
    a(f"ds_add_rtn_u32 v{vt}, v{vaddr}, v{vone} offset:{cnt_word - MISC}\ns_mov_b64 exec, -1\ns_waitcnt lgkmcnt(0)\nv_readfirstlane_b32 s40, v{vt}")
    a(f"s_cmp_lg_u32 s40, {n - 1}\ns_cbranch_scc1 {zf}")
    a(f"s_and_b32 s43, s2, 1\ns_lshl_b32 s41, s43, 7\ns_add_u32 s41, s41, {4*event}\ns_mov_b32 s40, 1")
    a(f"s_atomic_add s40, s[{S_DBG}:{S_DBG+1}], s41 glc\ns_waitcnt lgkmcnt(0)")
    a(f"s_cmp_lg_u32 s40, 127\ns_cbranch_scc1 {zf}")
    a(f"s_lshl_b32 s43, s43, 2\ns_add_u32 s43, s43, {MBOX + 8*event}\ns_add_u32 s40, s{S_TAG}, 1\nv_mov_b32 v{vt}, s40\nv_lshlrev_b32 v{vt+1}, 8, v1")
    for i in range(4):
        a(f"buffer_store_dword v{vt}, v{vt+1}, {sr(S_WS)}, s43 offen {WT}\ns_add_u32 s43, s43, 0x4000")
    a(f"{zf}:")

def wait_go(a, event):
    top, done = a.label("gp"), a.label("gpd")
    a(f"s_mov_b32 s41, {GSPIN}\ns_add_u32 s43, s{S_TAG}, 1")
    a(f"{top}:")
    a(f"s_load_dwordx2 s[44:45], s[{S_MB}:{S_MB+1}], {8*event} glc\ns_waitcnt lgkmcnt(0)")
    a(f"s_xor_b32 s44, s44, s43\ns_xor_b32 s45, s45, s43\ns_or_b32 s44, s44, s45\ns_cbranch_scc0 {done}")
    a(f"s_sub_u32 s41, s41, 1\ns_cbranch_scc0 {top}")
    a(f"{done}:")

def h_level_sub(a):
    a("k_hlevel:")
    a(f"s_load_dwordx16 s[12:27], s[{S_MB}:{S_MB+1}], s54 glc\ns_mov_b32 s53, 3\ns_waitcnt lgkmcnt(0)")
    for i in range(16):
        a(f"s_sub_u32 s{12+i}, s{S_TAG+1}, s{12+i}")
    for st_ in (8, 4, 2, 1):
        for i in range(st_): a(f"s_max_u32 s{12+i}, s{12+i}, s{12+i+st_}")
    a("s_min_u32 s12, s12, 3\ns_sub_u32 s53, 3, s12\ns_setpc_b64 s[46:47]")

def h_wait(a, need, before_spin=None):
    top, done = a.label("hp"), a.label("hpd")
    a(f"s_cmp_ge_u32 s53, {need}\ns_cbranch_scc1 {done}")
    if before_spin:
        a(f"s_swappc_b64 s[46:47], s[48:49]\ns_cmp_ge_u32 s53, {need}\ns_cbranch_scc1 {done}")
        before_spin()
    a(f"s_mov_b32 s41, {GSPIN}")
    a(f"{top}:")
    a(f"s_swappc_b64 s[46:47], s[48:49]\ns_cmp_ge_u32 s53, {need}\ns_cbranch_scc1 {done}")
    a(f"s_sub_u32 s41, s41, 1\ns_cbranch_scc0 {top}")
    a(f"{done}:")

def check(a, stubs, scache, need, areg, off, vt, minof=1, before_spin=None):
    back, sl = a.label("fb"), a.label("fs")
    a(f"s_cmp_ge_u32 s{scache}, {need}")
    a(f"s_cbranch_scc0 {sl}")
    a(f"{back}:")
    stubs.append((sl, back, scache, need, areg, off, vt, minof, before_spin))

def emit_stubs(a, stubs):
    for (sl, back, sc, need, areg, off, vt, minof, before_spin) in stubs:
        a(f"{sl}:")
        if before_spin:
            a(f"ds_read_b32 v{vt}, v{areg} offset:{off}\ns_waitcnt lgkmcnt(0)\nv_readfirstlane_b32 s{sc}, v{vt}")
            a(f"s_cmp_ge_u32 s{sc}, {need}\ns_cbranch_scc1 {back}")
            before_spin()
        lds_wait_ge(a, areg, off, need, vt, sc, 41, minof=minof, sleep=1)
        a(f"s_branch {back}")

X0, ACC, AF, PD = 128, (64, 96), 32, 3

def x_setup(a):
    a(f"s_and_b32 s40, s3, 1\ns_lshl1_add_u32 s50, s{S_I}, s40\ns_lshr_b32 s41, s3, 1\ns_lshl_b32 s41, s41, 5\ns_add_u32 s50, s50, s41")
    a("s_lshl_b32 s51, s3, 15")
    a("s_lshr_b32 s41, s50, 3\ns_lshl_b32 s41, s41, 18\ns_and_b32 s42, s50, 7\ns_lshl_b32 s42, s42, 12\ns_add_u32 s56, s41, s42")
    a(f"s_lshl_b32 s40, s{S_ROT}, 8\ns_add_u32 s52, s56, s40")
    a(f"s_lshr_b32 s63, s{S_J}, 1\ns_and_b32 s63, s63, 6")
    a("v_lshrrev_b32 v20, 4, v1\nv_and_b32 v21, 15, v1\nv_xor_b32 v21, v21, v20\nv_lshlrev_b32 v21, 4, v21\nv_lshl_add_u32 v20, v20, 10, v21")
    a("s_and_b32 s40, s63, 2\ns_lshl_b32 s40, s40, 6\nv_xor_b32 v16, s40, v20\nv_xor_b32 v17, 64, v16\nv_xor_b32 v18, 0x80, v16\nv_xor_b32 v19, 0x80, v17")
    a("s_lshl_b32 s63, s63, 10")

def x_setup_late(a):
    for c in range(1, 4):
        a(f"s_add_u32 s40, s{S_ROT}, {c}\ns_and_b32 s40, s40, 3\ns_lshl_b32 s40, s40, 8\ns_add_u32 s{52+c}, s56, s40")

def x_issue(a, c):
    a(f"s_add_u32 s41, s51, {c*SLOT}" if c else "s_mov_b32 s41, s51")
    for e in range(8):
        a(f"s_xor_b32 s42, s63, {e << 10}" if e else "s_mov_b32 s42, s63")
        a("s_add_u32 m0, s41, s42\ns_lshl_b32 s42, s42, 5")
        a(f"s_add_u32 s40, s42, s{52+c}")
        a(f"buffer_load_dwordx4 v{16+(e&3)}, {sr(S_X)}, s40 offen lds")

def epilogue_ops(acc, fb_sgpr, packed):
    ops = []
    for tau in range(2):
        out = 24 + 4 * tau
        for p in range(4):
            g, u = acc + 16*tau + 2*p, acc + 16*tau + 8 + 2*p
            e, q = 16 + 4*(p & 1), 18 + 4*(p & 1)
            if packed:
                ops += [f"v_pk_mul_f32 v[{e}:{e+1}], v[{g}:{g+1}], v[10:11] op_sel_hi:[1,0]",
                        f"v_pk_mul_f32 v[{q}:{q+1}], v[{g}:{g+1}], v[{u}:{u+1}]",
                        f"v_exp_f32 v{e}, v{e}", f"v_exp_f32 v{e+1}, v{e+1}",
                        f"v_pk_fma_f32 v[{e}:{e+1}], v[{e}:{e+1}], v[10:11], v[10:11] op_sel:[0,1,1] op_sel_hi:[1,1,1]",
                        f"v_rcp_f32 v{e}, v{e}", f"v_rcp_f32 v{e+1}, v{e+1}",
                        f"v_pk_mul_f32 v[{q}:{q+1}], v[{q}:{q+1}], v[{e}:{e+1}]"]
            else:
                ops += [f"v_mul_f32 v{e}, v10, v{g}", f"v_mul_f32 v{e+1}, v10, v{g+1}",
                        f"v_exp_f32 v{e}, v{e}", f"v_mul_f32 v{q}, v{g}, v{u}",
                        f"v_exp_f32 v{e+1}, v{e+1}", f"v_mul_f32 v{q+1}, v{g+1}, v{u+1}",
                        f"v_fma_f32 v{e}, v{e}, v11, v11", f"v_fma_f32 v{e+1}, v{e+1}, v11, v11",
                        f"v_rcp_f32 v{e}, v{e}", f"v_nop", f"v_rcp_f32 v{e+1}, v{e+1}",
                        f"v_mul_f32 v{q}, v{q}, v{e}", f"v_mul_f32 v{q+1}, v{q+1}, v{e+1}"]
                ops.remove("v_nop")
            ops.append(f"v_cvt_pk_bf16_f32 v{out+p}, v{q}, v{q+1}")
        ops.append(f"buffer_store_dwordx4 v[{out}:{out+3}], v3, {sr(S_WS)}, s{fb_sgpr} offen offset:{1024*tau} {HWT}")
    return ops

def g1_main(a):
    dq = DsQ(a); slow = []
    a(f"s_lshl_b32 s40, s3, 2\ns_add_u32 s40, s40, {MISC}\nv_mov_b32 v9, s40")
    a("v_lshlrev_b32 v3, 4, v1")
    a("v_and_b32 v20, 31, v1\nv_lshrrev_b32 v21, 5, v1\nv_and_b32 v22, 15, v1\nv_xor_b32 v21, v21, v22\nv_lshlrev_b32 v21, 4, v21")
    a("v_lshl_add_u32 v24, v20, 8, v21\nv_add_u32 v24, s51, v24")
    for j in range(1, 8): a(f"v_xor_b32 v{24+j}, {32*j}, v24")
    a("v_bfe_u32 v20, v1, 4, 1\nv_lshrrev_b32 v21, 5, v1\nv_bfe_u32 v22, v1, 2, 2")
    a(f"v_add_u32 v8, s{S_P}, v22\nv_and_b32 v8, 1, v8")
    a("v_lshrrev_b32 v22, 1, v22\nv_lshl_add_u32 v22, v21, 2, v22\nv_lshl_add_u32 v22, v8, 1, v22\nv_lshlrev_b32 v22, 6, v22")
    a("v_lshl_add_u32 v22, v20, 12, v22\nv_lshl_add_u32 v22, v20, 5, v22")
    a("v_and_b32 v21, 1, v1\nv_lshl_add_u32 v22, v21, 4, v22\nv_bfe_u32 v21, v1, 1, 1\nv_lshl_add_u32 v4, v21, 3, v22")
    a("v_xor_b32 v5, 128, v4\nv_xor_b32 v6, 32, v4\nv_xor_b32 v7, 160, v4")
    a("s_mov_b32 s56, 0x3f803f80\ns_mov_b32 s57, 0x00003f80\ns_mov_b32 s58, 0x3f800000")
    a(f"s_mul_i32 s60, s50, 86\ns_lshl_b32 s40, s{S_P}, 1\ns_add_u32 s60, s60, s40\ns_lshl_b32 s60, s60, 10\ns_add_u32 s60, s60, {WS_H}")
    a(f"s_add_u32 s62, s60, 2048\ns_sub_u32 s40, s{S_NP}, 1\ns_lshl_b32 s40, s40, 11\ns_add_u32 s61, s60, s40")
    a(f"s_bfe_u32 s40, s50, 0x30002\ns_and_b32 s41, s50, 3\ns_lshl3_add_u32 s59, s41, s40\ns_lshl_b32 s59, s59, 8\ns_lshr_b32 s40, s50, 5\ns_lshl4_add_u32 s40, s40, s{S_J}")
    a(f"s_lshl2_add_u32 s59, s40, s59\ns_add_u32 s59, s59, {MBOX + 128}")
    def reads(c):
        for j in range(8):
            r = X0 + 32*c + 4*j
            dq.op(f"ds_read_b128 v[{r}:{r+3}], v{24+j} offset:{c*SLOT}", ("x", c, j))
        a(f"v_mov_b32 v14, {c + 1}")
        dq.op(f"ds_write_b32 v9, v14 offset:{FL_FREE - MISC}")
    def sums(c):
        for j in range(8):
            if j % 2 == 0: dq.wait(("x", c, j + 1))
            for r in range(X0 + 32*c + 4*j, X0 + 32*c + 4*j + 4):
                first = (r == X0)
                a(f"v_dot2_f32_bf16 v10, v{r}, s56, {'0' if first else 'v10'}")
                a(f"v_dot2_f32_bf16 v11, v{r}, v{r}, {'0' if first else 'v11'}")
    x_issue(a, 1)
    a("s_waitcnt vmcnt(8)"); Stamps.at(a, 1); reads(0)
    x_issue(a, 2)
    sums(0)
    a("s_waitcnt vmcnt(8)"); reads(1)
    x_issue(a, 3)
    sums(1)
    a("s_waitcnt vmcnt(8)"); reads(2); sums(2)
    a("s_waitcnt vmcnt(0)"); Stamps.at(a, 2); reads(3)
    sums(3)
    a("v_mov_b32 v12, v10\nv_mov_b32 v13, v11")
    a("v_permlane32_swap_b32 v12, v10\nv_permlane32_swap_b32 v13, v11")
    a("v_add_f32 v10, v10, v12\nv_add_f32 v11, v11, v13")
    ln_scalars(a, 10, 11, None)
    bf_round(a, 10)
    a("v_xor_b32 v31, 0x80000000, v10")
    a(f"v_mul_f32 v10, {f32(-math.log2(math.e))}, v11")
    a("v_mul_f32 v11, v11, v11\nv_rcp_f32 v11, v11")
    a(f"s_load_dword s{S_TAG}, s[80:81], 0")
    for j in range(32):
        if j == 24:
            a("s_waitcnt lgkmcnt(0)"); make_tag(a); dq.q = []
        for r in range(4):
            x = X0 + 4*j + r; t = 16 + 2*r
            a(f"v_dot2_f32_bf16 v{t}, v{x}, s57, v31\nv_dot2_f32_bf16 v{t+1}, v{x}, s58, v31")
        for r in range(4): a(f"v_cvt_pk_bf16_f32 v{X0+4*j+r}, v{16+2*r}, v{17+2*r}")
        if j == 24: dq.op(f"ds_read_b32 v2, v9 offset:{FL_FULL - MISC}", "poll")
    PASS = "ABC"
    def wreads(g, part):
        ps, q, j = PASS[g // 32], (g % 32) // 8, g % 8
        if j == 0 and part == 0:
            need_full = {"A": q + 1, "B": q + 5, "C": 0}[ps]
            if need_full:
                back, sl = a.label("g1b"), a.label("g1s")
                dq.wait("poll")
                a(f"v_readfirstlane_b32 s40, v2\ns_cmp_ge_u32 s40, {need_full}\ns_cbranch_scc0 {sl}")
                a(f"{back}:")
                slow.append((sl, back, need_full))
            bx, by = CELLS[(ps, "X", q)][0] * SLOT, CELLS[(ps, "Y", q)][0] * SLOT
            a(f"s_mov_b32 s40, {by - bx}\ns_mov_b32 s41, {bx}\nv_mul_i32_i24 v0, s40, v8")
            for i in range(4): a(f"v_add3_u32 v{12+i}, v0, v{4+i}, s41")
        b = AF + 8 * (g % 4); tau = part
        for rd in range(2):
            dq.op(f"ds_read_b64_tr_b16 v[{b+4*tau+2*rd}:{b+4*tau+2*rd+1}], v{12+2*tau+rd} offset:{512*j}", ("w", g))
        if part == 1 and j == 7:
            a(f"v_mov_b32 v0, {5 + g // 8}")
            dq.op(f"ds_write_b32 v9, v0 offset:{FL_FREE - MISC}")
        if part == 1 and j == 4 and g < 56:
            dq.op(f"ds_read_b32 v2, v9 offset:{FL_FULL - MISC}", "poll")
    for g in range(PD): wreads(g, 0); wreads(g, 1)
    Stamps.at(a, 3)
    fin2, done = a.label("g1fin2"), a.label("g1done")
    EP = {1: epilogue_ops(ACC[0], 60, False), 2: epilogue_ops(ACC[1], 61, False)}
    NE = 20
    for g in range(96):
        ps, j = g // 32, g % 32
        acc = ACC[ps & 1]
        fill = []
        if ps:
            ep = EP[ps]
            lo, hi = (len(ep) * max(j - 1, 0)) // NE, (len(ep) * j) // NE
            fill = ep[min(lo, len(ep)):min(hi, len(ep))]
        b = AF + 8 * (g % 4)
        half = len(fill) // 2
        dq.wait(("w", g))
        for tau in range(2):
            d = acc + 16 * tau
            a(f"v_mfma_f32_32x32x16_bf16 v[{d}:{d+15}], v[{b+4*tau}:{b+4*tau+3}], v[{X0+4*j}:{X0+4*j+3}], " + ("0" if j == 0 else f"v[{d}:{d+15}]"))
            if g + PD < 96: wreads(g + PD, tau)
            for o in (fill[:half] if tau == 0 else fill[half:]): a(o)
        if ps == 2 and j == 6:
            Stamps.at(a, 6); a("s_waitcnt vmcnt(0)"); Stamps.at(a, 7); h_flag(a, 1)
        if j == 31 and ps < 2: Stamps.at(a, 4 + ps)
        if g == 63:
            a(f"s_cmp_eq_u32 s{S_NP}, 2\ns_cbranch_scc1 {fin2}")
    Stamps.at(a, 8)
    for o in epilogue_ops(ACC[0], 62, True): a(o)
    Stamps.at(a, 9)
    a("s_waitcnt vmcnt(2)"); h_flag(a, 2)
    a(f"s_branch {done}")
    for (sl, back, n) in slow:
        a(f"{sl}:")
        lds_wait_ge(a, 9, FL_FULL - MISC, n, 2, 40, 41)
        a(f"s_branch {back}")
    a(f"{fin2}:")
    a(f"v_mov_b32 v0, 16\nds_write_b32 v9, v0 offset:{FL_FREE - MISC}")
    a("s_nop 15")
    for o in epilogue_ops(ACC[1], 61, True): a(o)
    a(f"{done}:")

ACC2, AF2 = 52, 20
def HB(p): return X0 + 4*p if p < 32 else 84 + 4*(p - 32)

def g2_main(a):
    dq = DsQ(a); stubs = []
    a(f"s_and_b32 s40, s3, 1\ns_lshl_b32 s40, s40, 5\ns_add_u32 s40, s40, s{S_T}\ns_mul_i32 s50, s40, 86")
    a(f"s_lshr_b32 s51, s3, 1\ns_add_u32 s50, s50, s51\ns_lshl_b32 s50, s50, 10\ns_add_u32 s50, s50, {WS_H}")
    a("s_mov_b32 s52, 0\ns_mov_b32 s53, 0")
    a("s_waitcnt lgkmcnt(0)")
    def h_issue(lo, hi):
        for p in range(lo, hi):
            a(f"s_add_u32 s40, s50, {ORDER[p] * 2048}")
            a(f"buffer_load_dwordx4 v[{HB(p)}:{HB(p)+3}], v3, {sr(S_WS)}, s40 offen {RD}")
    def own_first():
        a("s_waitcnt vmcnt(0)"); h_flag(a, 3)
    here = a.label("pc")
    a(f"s_getpc_b64 s[48:49]\n{here}:\ns_add_u32 s48, s48, k_hlevel-{here}\ns_addc_u32 s49, s49, 0")
    a(f"s_and_b32 s54, s3, 1\ns_lshl_b32 s54, s54, 6\ns_add_u32 s54, s54, 128\ns_add_u32 s{S_TAG+1}, s{S_TAG}, 3")
    a("v_and_b32 v4, 15, v1\nv_mul_u32_u24 v4, 43, v4\nv_add_u32 v5, 27, v4\nv_lshrrev_b32 v4, 4, v4\nv_lshrrev_b32 v5, 4, v5\nv_lshlrev_b32 v4, 11, v4\nv_lshlrev_b32 v5, 11, v5\nv_add_u32 v8, 0x800, v4")
    a(f"s_lshl_b32 s55, s{S_CJ}, 7\ns_add_u32 s55, s55, s50")
    def touch(v):
        a(f"s_mov_b64 exec, 0xffff\nbuffer_load_dword v10, v{v}, {sr(S_WS)}, s55 offen {RD}\ns_mov_b64 exec, -1")
    vm = []
    def hl(p):
        h_issue(p, p + 1); vm.append(("h", p))
    a("v_mov_b32 v11, v5")
    h_wait(a, 1, own_first)
    Stamps.at(a, 10)
    touch(4)
    for p in range(HA): hl(p)
    a("v_bfe_u32 v16, v1, 2, 2\nv_lshrrev_b32 v17, 5, v1\nv_lshl_add_u32 v17, v17, 3, v16\ns_lshl_b32 s40, s51, 4\nv_add_u32 v17, s40, v17")
    a("v_lshlrev_b32 v17, 7, v17\nv_lshrrev_b32 v16, 1, v16\nv_lshl_add_u32 v17, v16, 6, v17")
    a("v_bfe_u32 v16, v1, 4, 1\nv_lshl_add_u32 v17, v16, 5, v17\nv_and_b32 v16, 3, v1\nv_lshl_add_u32 v4, v16, 3, v17")
    a("v_xor_b32 v5, 64, v4\nv_add_u32 v6, 0x10000, v4\nv_add_u32 v7, 0x10000, v5\nv_add_u32 v18, 0x20000, v4\nv_add_u32 v19, 0x20000, v5")
    a(f"s_waitcnt vmcnt({HA + 1})"); h_flag(a, 3); vm.append("f")
    Stamps.at(a, 11)
    AR = [4, 6, 18]
    def reads(p, dl):
        c = p // 2
        if p % 2 == 0 and dl == 0: check(a, stubs, 52, c + 1, 9, FL_FULL2 - MISC, 2)
        base = CELLS[("w", c)][0] * SLOT + (p % 2) * 4096
        w, off = base >> 16, base & 0xffff
        b = AF2 + 8 * (p % 4)
        for rd in range(2):
            dq.op(f"ds_read_b64_tr_b16 v[{b+4*dl+2*rd}:{b+4*dl+2*rd+1}], v{AR[w]+dl} offset:{off + 512*rd}", ("w", p))
        if dl == 1 and p % 2 == 1 and 17 + c <= LAST_REQ:
            a(f"v_mov_b32 v0, {17 + c}")
            dq.op(f"ds_write_b32 v9, v0 offset:{FL_FREE - MISC}")
    for p in range(PD): reads(p, 0); reads(p, 1)
    for p in range(43):
        if p == L3P:
            Stamps.at(a, 12)
            h_wait(a, 3)
            Stamps.at(a, 13)
            touch(8); vm.append("t")
            for q in range(32, 43): hl(q)
        b = AF2 + 8 * (p % 4)
        a(f"s_waitcnt vmcnt({len(vm) - 1 - vm.index(('h', p))})")
        dq.wait(("w", p))
        for dl in range(2):
            d = ACC2 + 16 * dl
            a(f"v_mfma_f32_32x32x16_bf16 v[{d}:{d+15}], v[{b+4*dl}:{b+4*dl+3}], v[{HB(p)}:{HB(p)+3}], " + ("0" if p == 0 else f"v[{d}:{d+15}]"))
            if p + PD < 43: reads(p + PD, dl)
        if p + HA == 16:
            h_wait(a, 2); touch(11); vm.append("t")
        if p + HA < 32: hl(p + HA)
        if p + HA == 32:
            res_issue(a, 12, 11); vm.append("r")
    a(f"s_lshl_b32 s40, s3, 13")
    a("v_and_b32 v16, 31, v1\nv_lshrrev_b32 v17, 5, v1\nv_and_b32 v18, 7, v1\nv_xor_b32 v17, v17, v18\nv_lshlrev_b32 v17, 4, v17\nv_lshl_add_u32 v16, v16, 8, v17\nv_add_u32 v16, s40, v16")
    for g in range(1, 4): a(f"v_xor_b32 v{16+g}, {32*g}, v16")
    Stamps.at(a, 14)
    a("s_barrier")
    for dl in range(2):
        for g in range(4):
            r = ACC2 + 16*dl + 4*g
            a(f"ds_write_b128 v{16+g}, v[{r}:{r+3}] offset:{128*dl}")
    return stubs

def res_issue(a, dst, voff):
    a(f"s_lshr_b32 s40, s3, 2\ns_lshl_b32 s40, s40, 20\ns_lshr_b32 s41, s{S_T}, 3\ns_lshl_b32 s41, s41, 18\ns_add_u32 s40, s40, s41")
    a(f"s_and_b32 s41, s{S_T}, 7\ns_lshl_b32 s41, s41, 12\ns_add_u32 s40, s40, s41\ns_and_b32 s41, s3, 3\ns_lshl_b32 s41, s41, 16\ns_add_u32 s40, s40, s41")
    a(f"s_lshl_b32 s41, s{S_CJ}, 7\ns_add_u32 s{S_RES}, s40, s41")
    a(f"v_bfe_u32 v{dst}, v1, 3, 2\nv_and_b32 v{voff}, 7, v1\nv_lshlrev_b32 v{voff}, 4, v{voff}\nv_lshl_add_u32 v{voff}, v{dst}, 10, v{voff}")
    a(f"v_lshrrev_b32 v{dst}, 5, v1\nv_lshl_add_u32 v{voff}, v{dst}, 15, v{voff}")
    a(f"buffer_load_dwordx4 v[{dst}:{dst+3}], v{voff}, {sr(S_X)}, s{S_RES} offen")

def final_combine(a, xr, voff):
    a("s_and_b32 s40, s3, 3\ns_lshl_b32 s40, s40, 11\ns_lshr_b32 s41, s3, 2\ns_lshl_b32 s42, s41, 13")
    a("v_lshrrev_b32 v16, 3, v1\nv_and_b32 v17, 7, v1\nv_lshlrev_b32 v17, 1, v17\nv_xor_b32 v17, v17, v16\nv_lshlrev_b32 v17, 4, v17")
    a("v_lshl_add_u32 v16, v16, 8, v17\nv_add_u32 v16, s40, v16\nv_xor_b32 v17, 16, v16\nv_add_u32 v18, s42, v16\nv_add_u32 v19, s42, v17")
    a("s_lshl_b32 s41, s41, 31\ns_or_b32 s42, s41, 0x3f800000")
    a("s_waitcnt lgkmcnt(0)\ns_barrier")
    R = 20
    for q in range(2):
        a(f"ds_read_b128 v[{R+4*q}:{R+4*q+3}], v{16+q} offset:{TA[0]*SLOT}")
        a(f"ds_read_b128 v[{R+8+4*q}:{R+8+4*q+3}], v{16+q} offset:{TA[1]*SLOT}")
        a(f"ds_read_b128 v[{R+16+4*q}:{R+16+4*q+3}], v{18+q}")
        a(f"ds_read_b128 v[{R+24+4*q}:{R+24+4*q+3}], v{18+q} offset:{2*SLOT}")
    a("s_waitcnt vmcnt(0)")
    XU = 52
    for p in range(4):
        a(f"v_lshlrev_b32 v{XU+2*p}, 16, v{xr+p}\nv_and_b32 v{XU+2*p+1}, 0xffff0000, v{xr+p}")
    for p in range(4):
        if p % 2 == 0: a(f"s_waitcnt lgkmcnt({4 if p == 0 else 0})")
        r = R + 2*p
        a(f"v_pk_fma_f32 v[{r}:{r+1}], v[{r+8}:{r+9}], s[42:43], v[{r}:{r+1}] op_sel_hi:[1,0,1]")
        a(f"v_pk_add_f32 v[{r+16}:{r+17}], v[{r+16}:{r+17}], v[{r+24}:{r+25}]")
        a(f"v_pk_add_f32 v[{r}:{r+1}], v[{r}:{r+1}], v[{XU+2*p}:{XU+2*p+1}]")
        a(f"v_pk_add_f32 v[{r}:{r+1}], v[{r}:{r+1}], v[{r+16}:{r+17}]")
        a(f"v_cvt_pk_bf16_f32 v{xr+p}, v{r}, v{r+1}")
    a(f"buffer_store_dwordx4 v[{xr}:{xr+3}], v{voff}, {sr(S_OUT)}, s{S_RES} offen")

def loader(a):
    a(f"v_mov_b32 v2, {MISC}")
    a("v_and_b32 v16, 3, v1\nv_lshl_add_u32 v16, v16, 2, v2")
    a("v_lshrrev_b32 v8, 2, v1\nv_and_b32 v9, 3, v1\nv_lshlrev_b32 v9, 4, v9\nv_xor_b32 v10, 2, v8")
    a("v_mul_u32_u24 v8, 5504, v8\nv_mul_u32_u24 v10, 5504, v10\nv_xor_b32 v11, 32, v9")
    a("v_add_u32 v4, v8, v9\nv_add_u32 v5, v8, v11\nv_add_u32 v6, v10, v9\nv_add_u32 v7, v10, v11")
    a("v_lshrrev_b32 v8, 3, v1\nv_and_b32 v9, 7, v1\nv_bfe_u32 v10, v1, 4, 1\nv_lshlrev_b32 v10, 2, v10\nv_xor_b32 v10, v10, v9")
    a("v_lshlrev_b32 v10, 4, v10\nv_lshl_add_u32 v17, v8, 10, v10")
    for q in range(4):
        a(f"s_add_u32 s40, s{S_ROT}, {q}\ns_and_b32 s40, s40, 3\ns_mul_i32 s{44+q}, s40, {128*2752}")
    a(f"s_and_b32 s40, s{S_P}, 1\ns_mul_i32 s48, s40, 2752\ns_sub_u32 s49, 2752, s48")
    a(f"s_lshl_b32 s40, s{S_P}, 6\ns_add_u32 s48, s48, s40\ns_add_u32 s49, s49, s40")
    a(f"s_lshl_b32 s50, s{S_CJ}, 7\ns_mov_b32 s52, 0")
    lds_wait_ge(a, 2, FL_A_DONE - MISC, 4, 12, 40, 41)
    Stamps.at(a, 7)
    two, w2l = a.label("ld2"), a.label("ldw2")
    a(f"s_cmp_eq_u32 s{S_NP}, 2\ns_cbranch_scc1 {two}")
    DEPTH = 40
    class Pipe:
        def __init__(s): s.items = []; s.seen = 0
        def publish(s, it):
            a(f"v_mov_b32 v3, {it[1]}\ns_mov_b64 exec, 15\nds_max_u32 v16, v3 offset:{it[0] - MISC}\ns_mov_b64 exec, -1")
        def need(s, req):
            if req <= s.seen: return
            ok = a.label("ldok")
            a(f"s_cmp_ge_u32 s52, {req}\ns_cbranch_scc1 {ok}")
            a(f"ds_read_b128 v[12:15], v2 offset:{FL_FREE - MISC}\ns_waitcnt lgkmcnt(0)")
            a("v_min_u32 v12, v12, v13\nv_min3_u32 v12, v12, v14, v15\nv_readfirstlane_b32 s52, v12")
            a(f"s_cmp_ge_u32 s52, {req}\ns_cbranch_scc1 {ok}")
            for i, it in enumerate(s.items):
                a(f"s_waitcnt vmcnt({sum(x[2] for x in s.items[i+1:])})"); s.publish(it)
            lds_wait_ge(a, 2, FL_FREE - MISC, req, 12, 52, 41, minof=4, sleep=1)
            a(f"{ok}:")
            s.seen = req
        def done(s, word, val, cnt):
            s.items.append((word, val, cnt))
            while len(s.items) > 1 and sum(x[2] for x in s.items) > DEPTH:
                it = s.items.pop(0)
                a(f"s_waitcnt vmcnt({sum(x[2] for x in s.items)})"); s.publish(it)
        def flush(s, keep=0):
            while len(s.items) > keep:
                it = s.items.pop(0)
                a(f"s_waitcnt vmcnt({sum(x[2] for x in s.items)})"); s.publish(it)
    def variant(np_):
        pp = Pipe()
        for grp in range(8):
            st, q = grp // 4, grp % 4
            if st == 0: seq = [[("A", "X", 0), ("C", "X", 64)], [("A", "Y", 0)]]
            else:       seq = [[("C", "Y", 64), ("B", "Y", 64 * (np_ - 1))], [("B", "X", 64 * (np_ - 1))]]
            if np_ == 2: seq = [[c for c in s if c[0] != "C"] for s in seq]
            pp.need(max(CELLS[(c[0], c[1], q)][1] for s in seq for c in s))
            cnt = 0
            for s in seq:
                cl = s[0][1]; ci = 0 if cl == "X" else 1
                for g in range(4):
                    for mat in range(2):
                        for n, (ps, _, off) in enumerate(s):
                            dst = CELLS[(ps, cl, q)][0] * SLOT + mat * 4096 + g * 1024
                            neg = dst - off < 0
                            a(f"s_mov_b32 m0, {dst if neg else dst - off}")
                            if mat == 0 and n == 0:
                                a(f"s_add_u32 s42, s{44+q}, s{48+ci}" if g == 0 else f"s_add_u32 s42, s42, {32*2752}")
                            if neg:
                                a(f"s_add_u32 s43, s42, {off}\nbuffer_load_dwordx4 v{4+2*ci+mat}, {sr(S_W1 + 4*mat)}, s43 offen lds")
                            else:
                                a(f"buffer_load_dwordx4 v{4+2*ci+mat}, {sr(S_W1 + 4*mat)}, s42 offen offset:{off} lds")
                            cnt += 1
            if grp == 0:
                a(f"s_waitcnt vmcnt({cnt})\nv_mov_b32 v3, 1"); wg_signal(a, FL_Z_CNT, 4, 0, 2, 3, 12)
            pp.done(FL_FULL, grp + 1, cnt)
            if grp in (1, 3, 5, 7): Stamps.at(a, 8 + grp // 2)
        pp.flush(keep=1)
        return pp
    p3 = variant(3)
    a(f"s_branch {w2l}")
    a(f"{two}:")
    p2 = variant(2)
    a(f"{w2l}:")
    pp = Pipe(); pp.items = [(FL_FULL, 8, 24)]; pp.seen = min(p3.seen, p2.seen)
    for c in range(22):
        slot, req = CELLS[("w", c)]
        pp.need(req)
        cnt = 0
        for p in range(2 * c, min(2 * c + 2, 43)):
            for g in range(4):
                a(f"s_mov_b32 m0, {slot*SLOT + (p % 2)*4096 + g*1024}")
                a(f"s_add_u32 s42, s50, {ORDER[p]*32768 + g*8192}")
                a(f"buffer_load_dwordx4 v17, {sr(S_W2)}, s42 offen lds"); cnt += 1
        pp.done(FL_FULL2, c + 1, cnt)
        if c in (8, 18, 21): Stamps.at(a, {8: 12, 18: 13, 21: 14}[c])
    pp.flush()

GF, ACCE, BE = 128, 64, 32

def g_first(a, n, dt16, t0):
    st, s7, ar = t0, t0 + 1, t0 + 2
    a(f"v_and_b32 v{st}, 15, v1\ns_lshr_b32 s40, s2, 5\ns_lshl_b32 s40, s40, 6\ns_add_u32 s40, s40, {dt16}\nv_add_u32 v{st}, s40, v{st}")
    a(f"v_cvt_f32_u32 v{st}, v{st}\nv_mul_f32 v{st}, {f32(1/512)}, v{st}\nv_mul_f32 v{s7}, {f32(7.0)}, v{st}")
    a(f"v_lshrrev_b32 v{ar}, 4, v1\nv_lshl_add_u32 v{ar}, v{ar}, 1, 1\nv_cvt_f32_u32 v{ar}, v{ar}\nv_mul_f32 v{ar}, v{ar}, v{st}")
    for i in range(32):
        if i: a(f"v_add_f32 v{ar}, v{ar}, v{st if i & 1 else s7}")
        t = t0 + 4 + 2 * (i & 1); p = t0 + 4 + 2 * ((i + 1) & 1)
        a(f"v_cos_f32 v{t}, v{ar}\nv_sin_f32 v{t+1}, v{ar}")
        if i: a(f"v_cvt_pk_bf16_f32 v{GF+64*n+i-1}, v{p}, -v{p+1}")
    a(f"v_cvt_pk_bf16_f32 v{GF+64*n+31}, v{t0+6}, -v{t0+7}")

def g_second(a, nt):
    a("v_and_b32 v4, 1, v1\nv_lshlrev_b32 v4, 4, v4\nv_bfe_u32 v5, v1, 1, 1\nv_lshlrev_b32 v5, 15, v5\nv_add_u32 v6, 1, v1\nv_bfe_u32 v6, v6, 1, 1\nv_lshl_or_b32 v5, v6, 31, v5")
    for n in range(nt):
        for i in range(32):
            r = GF + 64*n + i
            a(f"v_alignbit_b32 v{r+32}, v{r}, v{r}, v4")
        for i in range(32):
            r = GF + 64*n + i
            a(f"v_xor_b32 v{r+32}, v5, v{r+32}")

def e_load(a, s_pi):
    a(f"v_mov_b32 v2, {MISC}")
    a("v_lshrrev_b32 v8, 4, v1\nv_bfe_u32 v9, v1, 2, 2\nv_xor_b32 v9, v9, v8\nv_lshlrev_b32 v5, 13, v8\nv_lshrrev_b32 v10, 1, v9\nv_lshl_add_u32 v5, v10, 12, v5")
    a("v_and_b32 v10, 1, v9\nv_lshl_add_u32 v5, v10, 6, v5\nv_and_b32 v10, 3, v1\nv_lshl_add_u32 v5, v10, 4, v5")
    a(f"s_lshl_b32 s45, s{S_T}, 7\ns_lshl_b32 s40, s{s_pi}, 18\ns_add_u32 s45, s45, s40\ns_add_u32 s45, s45, {WS_E}")
    a(f"s_lshl_b32 s40, s{s_pi}, 2\nv_add_u32 v6, s40, v2")
    for i in range(4):
        (s0, r0), (s1, r1) = CELLS[("e", 2*i)], CELLS[("e", 2*i + 1)]
        lds_wait_ge(a, 2, FL_FREE - MISC, max(r0, r1), 16, 40, 41, minof=4, sleep=1)
        a(f"s_mul_i32 s46, s{s_pi}, {(s1 - s0) * SLOT}\ns_add_u32 s46, s46, {s0 * SLOT}")
        for g in range(8):
            a(f"s_add_u32 m0, s46, {g*1024}")
            a(f"s_add_u32 s42, s45, {(64*i + 4*g)*8192}")
            a(f"buffer_load_dwordx4 v5, {sr(S_WS)}, s42 offen {RD} lds")
    for i in range(4):
        a(f"s_waitcnt vmcnt({8*(3-i)})\nv_mov_b32 v3, {i+1}\nds_write_b32 v6, v3 offset:{FL_FULLE - MISC}")

def e_part(a, nt, s_dt16):
    dq = DsQ(a); stubs = []
    a(f"v_mov_b32 v2, {MISC}")
    a("v_lshrrev_b32 v8, 3, v1\nv_lshlrev_b32 v9, 8, v8\nv_and_b32 v8, 3, v8\nv_lshl_add_u32 v9, v8, 6, v9")
    a("v_and_b32 v8, 3, v1\nv_lshl_add_u32 v9, v8, 4, v9\nv_bfe_u32 v8, v1, 2, 1\nv_lshl_add_u32 v4, v8, 3, v9")
    for nu in range(1, 4): a(f"v_xor_b32 v{4+nu}, {64*nu}, v4")
    a("s_mov_b32 s52, 0\ns_mov_b32 s53, 0\ns_waitcnt lgkmcnt(0)")
    def reads(js):
        c = js // 2
        if js % 2 == 0:
            check(a, stubs, 52 + (c & 1), c // 2 + 1, 2, FL_FULLE - MISC + 4 * (c & 1), 3)
            for nu in range(4): a(f"v_add_u32 v{16+nu}, {CELLS[('e', c)][0]*SLOT}, v{4+nu}")
        b = BE + 16 * (js % 2)
        for nu in range(4):
            for rd in range(2):
                dq.op(f"ds_read_b64_tr_b16 v[{b+4*nu+2*rd}:{b+4*nu+2*rd+1}], v{16+nu} offset:{(js % 2)*4096 + 2048*rd}", ("e", js, nu))
    reads(0)
    for js in range(16):
        b = BE + 16 * (js % 2)
        dq.wait(("e", js, 0))
        if js + 1 < 16: reads(js + 1)
        for nu in range(4):
            dq.wait(("e", js, nu))
            for n in range(nt):
                d = ACCE + 16*n + 4*nu; g = GF + 64*n + 4*js
                a(f"v_mfma_f32_16x16x32_bf16 v[{d}:{d+3}], v[{g}:{g+3}], v[{b+4*nu}:{b+4*nu+3}], " + ("0" if js == 0 else f"v[{d}:{d+3}]"))
    a(f"s_lshr_b32 s40, s{s_dt16}, 2\nv_lshrrev_b32 v17, 4, v1\nv_add_u32 v17, s40, v17\nv_and_b32 v18, 7, v1\nv_xor_b32 v17, v17, v18\nv_lshlrev_b32 v17, 4, v17")
    a(f"v_and_b32 v16, 15, v1\nv_lshl_add_u32 v16, v16, 8, v17\nv_xor_b32 v17, 64, v16")
    a("s_barrier")
    for n in range(nt):
        for nu in range(4):
            d = ACCE + 16*n + 4*nu
            a(f"ds_write_b128 v{16+n}, v[{d}:{d+3}] offset:{TA[nu >> 1]*SLOT + (nu & 1)*4096}")
    return stubs

def w2_touch(a):
    a(f"v_mov_b32 v2, {MISC}")
    lds_wait_ge(a, 2, FL_FULL - MISC, W2T, 16, 40, 41, sleep=4)
    a(f"v_lshlrev_b32 v4, 7, v1\ns_lshr_b32 s42, s2, 3\ns_mul_i32 s42, s42, {344*128}")
    for i in range(6):
        if i == 5: a("s_mov_b64 exec, 0xffffff")
        a(f"buffer_load_dword v10, v4, {sr(S_W2)}, s42 offen\ns_add_u32 s42, s42, 8192")
    a("s_mov_b64 exec, -1")

W2T = 8
L3P = 30
HA = 10
XS = False
SF = WT
a = Asm()
a.begin_kernel(NAME)
a("s_cmp_ge_u32 s2, 0x100\ns_cbranch_scc1 k_end")
Stamps.at(a, 0)
a(f"s_load_dwordx2 s[{S_X}:{S_X+1}], s[0:1], 0\ns_load_dwordx2 s[{S_WR}:{S_WR+1}], s[0:1], 8\ns_load_dwordx2 s[{S_WI}:{S_WI+1}], s[0:1], 16")
a(f"s_load_dwordx8 s[72:79], s[0:1], 32\ns_load_dwordx2 s[{S_WS}:{S_WS+1}], s[0:1], 72\ns_load_dwordx2 s[{S_DBG}:{S_DBG+1}], s[0:1], 64")
code_prefetch(a, NAME, "k_end", 65536, 8, 255)
a("v_lshrrev_b32 v2, 6, v0\nv_and_b32 v1, 63, v0\nv_readfirstlane_b32 s3, v2")
a(f"s_mov_b32 s{S_X+2}, 0x200000\ns_mov_b32 s{S_X+3}, 0x20000")
ids_early(a)
a("s_cmp_ge_u32 s3, 4\ns_cbranch_scc1 k_helper")
x_setup(a)
x_setup_late(a)
a("s_waitcnt lgkmcnt(0)\ns_barrier")
x_issue(a, 0)
a("s_branch k_main")
a("k_helper:")
a(f"s_setprio 3\ns_sub_u32 s{S_HW}, s3, 4")
a(f"v_lshlrev_b32 v4, 2, v1\nv_add_u32 v4, {MISC}, v4\nv_mov_b32 v5, 0\nds_write_b32 v4, v5")
a(f"s_mov_b32 s{S_WR+2}, {2048*514}\ns_mov_b32 s{S_WR+3}, s{S_X+3}\ns_mov_b64 s[{S_WI+2}:{S_WI+3}], s[{S_WR+2}:{S_WR+3}]")
row_setup(a, S_HW, 18*SLOT)
a("s_waitcnt lgkmcnt(0)\ns_barrier")
row_issue(a, 17*SLOT)
ids_late(a)
Stamps.at(a, 1)
a(f"s_load_dword s{S_TAG}, s[80:81], 0\ns_sub_u32 s6, s{S_HW}, 1")
row_compute(a, S_HW, 18*SLOT, 17*SLOT, SF, 0)
make_tag(a)
a(f"s_cmp_eq_u32 s{S_HW}, 0\ns_cbranch_scc1 k_loader")
a("s_waitcnt vmcnt(0)")
wg_signal(a, FL_Z_CNT, 4, 0, 12, 13, 14)
a(f"s_setprio 0\ns_cmp_eq_u32 s{S_HW}, 3\ns_cbranch_scc1 k_h3")
a("s_branch k_h12")

a("k_main:")
ids_late(a)
g1_main(a)
st = g2_main(a)
a("s_branch k_fin")
emit_stubs(a, st)
h_level_sub(a)

a("k_h12:")
Stamps.at(a, 7)
col_mats(a, 6)
col_twiddles(a, 6, S_COL, 2)
col_twiddles(a, 6, S_COL, 1)
col_addrs(a)
Stamps.at(a, 8)
a(f"s_setprio {CPRIO}")
wait_go(a, 0)
Stamps.at(a, 9)
col_loads3(a, 6, S_COL, RD)
col_compute3(a, SF)
Stamps.at(a, 11)
a(f"v_mov_b32 v2, {MISC}\nv_mov_b32 v3, 1")
lds_wait_ge(a, 2, FL_FREE - MISC, 5, 8, 40, 41, minof=4)
a("s_waitcnt vmcnt(0)")
Stamps.at(a, 12)
wg_signal(a, FL_E_CNT, 2, 1, 2, 3, 14)
a("s_setprio 0\ns_lshl_b32 s7, s6, 4")
g_first(a, 0, "s7", 4)
g_second(a, 1)
res_issue(a, 12, 11)
a(f"v_lshlrev_b32 v24, 12, v1\ns_lshl1_add_u32 s47, s{S_CJ}, s6\ns_lshl_b32 s47, s47, 17\ns_lshl_b32 s40, s{S_T}, 7\ns_add_u32 s47, s47, s40\ns_add_u32 s47, s47, {WS_E}")
Stamps.at(a, 13)
wait_go(a, 1)
a(f"s_mov_b32 exec_hi, 0\nbuffer_load_dword v25, v24, {sr(S_WS)}, s47 offen {RD}\ns_mov_b64 exec, -1")
Stamps.at(a, 14)
e_load(a, 6)
st = e_part(a, 1, 7)
a("s_branch k_fin")
emit_stubs(a, st)

a("k_h3:")
a("s_mov_b32 s7, 32")
w2_touch(a)
Stamps.at(a, 8)
g_first(a, 0, 32, 16); g_first(a, 1, 48, 16)
g_second(a, 2)
res_issue(a, 12, 11)
Stamps.at(a, 14)
st = e_part(a, 2, 7)
a("s_branch k_fin")
emit_stubs(a, st)

a("k_loader:")
loader(a)
res_issue(a, 12, 11)
a("s_barrier")
a("k_fin:")
final_combine(a, 12, 11)
a("s_or_b32 s40, s2, s3\ns_cmp_lg_u32 s40, 0\ns_cbranch_scc1 k_dump")
a(f"s_mov_b32 s42, {GF_EPOCH}")
flag_store(a, 42, 0, 4)
a("k_dump:")
if Stamps.on: a("s_waitcnt vmcnt(0)")
Stamps.dump(a, 0)
a("k_end:\ns_endpgm")
a.add_kernel(NAME, 256); a.add_launch(NAME, 256, 512, LDS_BYTES)
open(sys.argv[1], "w").write(a.text(header=HEADER, single=True))
print("nops", a.nops_added, CELLS if "v" in OPT else "")
```

```python
import re

def _regs(tok):
    tok = tok.strip()
    tok = re.sub(r"^-", "", tok)
    m = re.match(r"^(?:abs\(|\|)(.*?)(?:\)|\|)$", tok)
    if m: tok = m.group(1)
    m = re.match(r"^([vas])(\d+)$", tok)
    if m: return [(m.group(1), int(m.group(2)))]
    m = re.match(r"^([vas])\[(\d+):(\d+)\]$", tok)
    if m: return [(m.group(1), i) for i in range(int(m.group(2)), int(m.group(3)) + 1)]
    if tok in ("vcc", "vcc_lo", "vcc_hi"): return [("s", 106), ("s", 107)]
    if tok in ("exec", "exec_lo", "exec_hi"): return [("s", 126), ("s", 127)]
    if tok == "m0": return [("s", 124)]
    return []

TRANS = ("v_exp_f32", "v_log_f32", "v_rcp_f32", "v_rsq_f32", "v_sqrt_f32", "v_sin_f32", "v_cos_f32")

class Ins:
    def __init__(self, text):
        self.text = text
        t = text.split(";")[0].strip()
        parts = t.split(None, 1)
        self.op = parts[0]
        rest = parts[1] if len(parts) > 1 else ""
        ops = [o.strip() for o in re.split(r",(?![^\[]*\])", rest)] if rest else []
        if ops:
            last = ops[-1].split()
            self.mods = last[1:]
            ops[-1] = last[0] if last else ""
        else:
            self.mods = []
        self.ops = ops
        op = self.op
        R = [_regs(o) for o in ops]
        flat = lambda l: [x for y in l for x in y]
        self.w = []; self.r = []; self.srcc = []; self.ab = []
        self.kind = "other"
        self.states = 1
        if op == "s_nop":
            self.states = int(ops[0], 0) + 1; self.kind = "nop"
        elif op.startswith("v_mfma"):
            self.kind = "mfma"; self.w = R[0]; self.ab = R[1] + R[2]; self.srcc = R[3]; self.r = self.ab + self.srcc
            self.passes = 8 if "32x32x16" in op else 4
        elif op.startswith("v_"):
            self.kind = "valu"
            if "permlane" in op and "swap" in op:
                self.w = R[0] + R[1]; self.r = R[0] + R[1]
            elif re.match(r"v_(add|sub|subrev|addc|subb|subbrev)_co", op):
                self.w = R[0] + R[1]; self.r = flat(R[2:])
            else:
                self.w = R[0]; self.r = flat(R[1:])
                if re.match(r"v_(fmac|dot2c|pk_fmac|writelane)", op): self.r += R[0]
                if op.startswith("v_cndmask") and len(ops) == 3: self.r += _regs("vcc")
                if op.startswith("v_cmpx"): self.w += _regs("exec")
            self.dpp = ("_dpp" in op) or any(m.startswith(("row_", "quad_perm", "wave_")) for m in self.mods)
            if self.dpp: self.r += R[0]
            self.trans = op.replace("_e32", "").replace("_e64", "") in TRANS
            self.dot = op.startswith("v_dot")
        elif op.startswith("ds_"):
            self.kind = "ds"
            if "read" in op or "_rtn" in op or "permute" in op or "swizzle" in op:
                self.w = R[0]; self.r = flat(R[1:])
            else:
                self.r = flat(R)
        elif op.startswith(("buffer_", "global_")):
            self.kind = "vmem"
            self.lds = ("lds" in self.mods) or ("_lds_" in op)
            if "load" in op and not self.lds:
                self.w = R[0]; self.r = flat(R[1:])
                if "d16" in op: self.r += R[0]
            else:
                self.r = flat(R)
                if "atomic" in op and "sc0" in self.mods: self.w = R[0]
            self.wide_store = ("store" in op) and ("x3" in op or "x4" in op)
            if self.wide_store:
                self.sdata = R[0] if op.startswith("buffer") else R[1]
        elif op.startswith("s_"):
            self.kind = "salu"
            if not op.startswith(("s_cmp", "s_cbranch", "s_branch", "s_waitcnt", "s_barrier", "s_sleep", "s_setprio", "s_endpgm", "s_bitcmp")):
                self.w = R[0] if R else []; self.r = flat(R[1:])
            else:
                self.r = flat(R)

def need(p, c):
    n = 0
    pw, cr, cw = set(p.w), set(c.r), set(c.w)
    vec = lambda s: {x for x in s if x[0] in "va"}
    sca = lambda s: {x for x in s if x[0] == "s"}
    if p.kind == "mfma":
        big = {8: 12, 4: 8}[p.passes]
        if c.kind == "mfma":
            if pw & set(c.ab): n = max(n, big)
            if pw & set(c.srcc):
                if not (p.w == c.srcc and p.passes == c.passes): n = max(n, {8: 10, 4: 6}[p.passes])
            elif pw & cw: n = max(n, big)
        elif c.kind in ("valu", "ds", "vmem"):
            if pw & (cr | cw): n = max(n, big)
        if c.kind == "valu" and set(p.srcc) & cw: n = max(n, {8: 7, 4: 3}[p.passes])
    if p.kind == "valu":
        if c.kind == "mfma":
            if vec(pw) & cr: n = max(n, 3 if p.dot else 2)
            if ("s", 126) in pw: n = max(n, 4)
        if c.kind == "valu":
            if p.trans and not c.trans and vec(pw) & cr: n = max(n, 1)
            if p.dot and vec(pw) & (cr | cw):
                same_c = (c.op == p.op) and not (vec(pw) & set(sum([_regs(o) for o in c.ops[1:3]], [])))
                if not same_c: n = max(n, 3)
            if sca(pw) & cr:
                n = max(n, 4 if c.op.startswith(("v_readlane", "v_writelane")) else 2)
            if c.op.startswith(("v_readlane", "v_readfirstlane")) and vec(pw) & cr: n = max(n, 1)
            if c.dpp and vec(pw) & cr: n = max(n, 2)
            if c.dpp and ("s", 126) in pw: n = max(n, 5)
            if "permlane" in c.op and vec(pw) & cr: n = max(n, 2)
            if ("s", 126) in pw and c.op.startswith(("v_readlane", "v_readfirstlane", "v_writelane", "v_permlane")): n = max(n, 4)
        if c.kind in ("ds", "vmem") and p.dot and vec(pw) & cr: n = max(n, 3)
        if c.kind in ("ds", "vmem") and p.trans and vec(pw) & cr: n = max(n, 1)
        if c.kind == "vmem" and sca(pw) & cr: n = max(n, 5)
        if c.kind == "salu" and sca(pw) & cr: n = max(n, 1)
    if p.kind in ("ds", "vmem") and c.kind == "valu" and c.dpp and vec(pw) & cr: n = max(n, 2)
    if p.kind == "salu" and ("s", 124) in pw and c.kind == "vmem" and c.lds: n = max(n, 1)
    if p.kind == "vmem" and p.wide_store and set(p.sdata) & cw: n = max(n, 2)
    return n

def hazard_pass(lines):
    out = []; hist = []; added = 0
    for l in lines:
        s = l.strip()
        if not s or s.startswith((";", ".")) or s.endswith(":"):
            out.append(l); continue
        c = Ins(s)
        dist = 0; req = 0
        for p in reversed(hist):
            req = max(req, need(p, c) - dist)
            dist += p.states
            if dist > 24: break
        while req > 0:
            k = min(req, 16)
            nop = Ins(f"s_nop {k-1}")
            out.append(f"    s_nop {k-1}"); hist.append(nop); req -= k; added += 1
        out.append(l); hist.append(c)
        if c.op in ("s_endpgm", "s_branch", "s_setpc_b64"): hist = []
        hist = hist[-32:]
    return out, added

class Asm:
    def __init__(self):
        self.lines = []
        self.launch = []
        self.kernels = []
        self._lab = 0
    def __call__(self, s):
        for l in s.strip("\n").split("\n"):
            l = l.strip()
            if not l: continue
            self.lines.append(l if l.endswith(":") else "    " + l)
    def label(self, base="L"):
        self._lab += 1
        return f"{base}_{self._lab}"
    def begin_kernel(self, name):
        self.lines += [f".globl {name}", ".p2align 8", f".type {name},@function", f"{name}:"]
    def add_kernel(self, name, vgpr, sgpr=102, accum=None):
        self.kernels.append((name, vgpr, sgpr, accum))
    def add_launch(self, name, grid, block, lds):
        self.launch.append((name, grid, block, lds))
    def text(self, header="", single=False, hazards=True):
        o = []
        if header: o += header.strip("\n").split("\n")
        for (n, g, b, l) in self.launch:
            if single:
                o.append(f"; @launch grid=({g},1,1) block=({b},1,1) lds={l}")
            else:
                o.append(f"; @launch kernel={n} grid=({g},1,1) block=({b},1,1) lds={l}")
        o.append('.amdgcn_target "amdgcn-amd-amdhsa--gfx950"')
        o.append(".text")
        body = self.lines
        if hazards:
            body, self.nops_added = hazard_pass(body)
        o += body
        o.append('.section .rodata,"a"')
        for (n, v, s, acc) in self.kernels:
            if acc is None: acc = min(256, (v + 3) // 4 * 4)
            o += [".p2align 6", f".amdhsa_kernel {n}", f"  .amdhsa_next_free_vgpr {v}", f"  .amdhsa_next_free_sgpr {s}",
                  f"  .amdhsa_accum_offset {acc}", "  .amdhsa_group_segment_fixed_size 0", "  .amdhsa_kernarg_size 80",
                  "  .amdhsa_user_sgpr_count 2", "  .amdhsa_user_sgpr_kernarg_segment_ptr 1",
                  "  .amdhsa_system_sgpr_workgroup_id_x 1", ".end_amdhsa_kernel"]
        return "\n".join(o) + "\n"

def srd(a, d, base, nbytes):
    a(f"s_mov_b32 s{d}, s{base}")
    a(f"s_and_b32 s{d+1}, s{base+1}, 0xffff")
    a(f"s_mov_b32 s{d+2}, {nbytes}")
    a(f"s_mov_b32 s{d+3}, 0x00020000")

import struct
def f32(x):
    return "0x%08x" % struct.unpack("<I", struct.pack("<f", x))[0]
def vr(b, n=1):
    return f"v{b}" if n == 1 else f"v[{b}:{b+n-1}]"

import subprocess, tempfile, os
_E64_OK = re.compile(r"^v_(mov_b32|add_f32|sub_f32|mul_f32|max_f32|min_f32|add_u32|sub_u32|subrev_u32|and_b32|or_b32|xor_b32|lshlrev_b32|lshrrev_b32|"
                     r"cvt_f32_u32|exp_f32|rcp_f32|sqrt_f32|sin_f32|cos_f32|floor_f32|mul_u32_u24|mul_i32_i24|min_u32|max_u32)$")

def _sizes(text):
    with tempfile.TemporaryDirectory() as d:
        open(d + "/a.s", "w").write(text)
        subprocess.run(["clang", "-x", "assembler", "-target", "amdgcn-amd-amdhsa", "-mcpu=gfx950", "-c", d + "/a.s", "-o", d + "/a.o"], check=True)
        out = subprocess.run(["llvm-objdump", "-d", "--mcpu=gfx950", d + "/a.o"], capture_output=True, text=True).stdout
    sz = []
    for l in out.splitlines():
        m = re.search(r"// ([0-9A-F]{12}): ((?:[0-9A-F]{8} ?)+)", l)
        if m: sz.append(4 * len(m.group(2).split()))
    return sz

def align_pass(text, min_run_nop=6):
    lines = text.split("\n")
    t0 = lines.index(".text"); t1 = next(i for i, l in enumerate(lines) if l.startswith(".section .rodata"))
    idx = [i for i in range(t0, t1) if lines[i].startswith("    ") and not lines[i].strip().startswith((";", "."))]
    sz = _sizes(text)
    assert len(sz) == len(idx), (len(sz), len(idx))
    off = 0; wid = pad = 0
    for n, i in enumerate(idx):
        if sz[n] == 8 and off % 8 == 4:
            run = 0
            while n + run < len(idx) and sz[n + run] == 8: run += 1
            p = lines[idx[n - 1]].strip(); op = p.split()[0]
            if run >= 2 and sz[n - 1] == 4 and _E64_OK.match(op) and idx[n - 1] == i - 1:
                lines[idx[n - 1]] = "    " + p.replace(op, op + "_e64", 1); off += 4; wid += 1
            elif run >= min_run_nop:
                lines[i] = "    s_nop 0\n" + lines[i]; off += 4; pad += 1
        off += sz[n]
    return "\n".join(lines), wid, pad

def hop_pass(text, ret_label):
    lines = text.split("\n")
    t0 = lines.index(".text"); t1 = next(i for i, l in enumerate(lines) if l.startswith(".section .rodata"))
    isins = lambda l: l.startswith("    ") and not l.strip().startswith((";", "."))
    sz = iter(_sizes(re.sub(r"hs_\w+_0", ret_label, text)))
    out = lines[:t0 + 1]; seg = None; n = 0; acc = 0; sp = 0; total = 0
    for l in lines[t0 + 1:t1]:
        s = l.strip()
        if s.startswith(";@seg") or s.startswith(";@endseg"):
            if seg: out += [f"hs_{seg}_{n}:", f"    s_cbranch_execz {ret_label}"]; total += 1
            seg = None
            if s.startswith(";@seg"):
                _, seg, sp = s.split(); sp = int(sp); n = 0; acc = sp
            continue
        if s.startswith(";@sp"):
            sp = int(s.split()[1]); continue
        if isins(l):
            k = next(sz)
            if seg and acc + k > sp:
                out += [f"hs_{seg}_{n}:", f"    s_cbranch_execz hs_{seg}_{n+1}"]; n += 1; acc = 4; total += 1
            acc += k
        out.append(l)
    return "\n".join(out + lines[t1:]), total
```

```python
import math
from asmlib import *

WS_Z, WS_WT, WS_E, WS_H, WS_FLAG = 0x000000, 0x200000, 0x400000, 0x600000, 0xC00000
WS_STAMP = 0x8000000
SLOT = 8192
MISC = 19 * SLOT
FL_FULL, FL_FREE, FL_BAR_A, FL_A_DONE = MISC, MISC + 16, MISC + 32, MISC + 36
LDS_BYTES = 160 * 1024
SPIN = 1 << 21
LSLEEP = [0]

S_X, S_WR, S_WI, S_W1, S_W3, S_W2, S_OUT, S_WS = 8, 12, 16, 20, 24, 28, 32, 36
S_WAVE = 3

def prologue(a, end_label, nwg=256, pf=None, init_lds=False):
    a(f"s_cmp_ge_u32 s2, {nwg}")
    a(f"s_cbranch_scc1 {end_label}")
    Stamps.at(a, 0)
    a("s_load_dwordx16 s[64:79], s[0:1], 0")
    a("s_load_dwordx4 s[80:83], s[0:1], 64")
    if pf: code_prefetch(a, *pf)
    a("v_lshrrev_b32 v2, 6, v0")
    a("v_and_b32 v1, 63, v0")
    a("v_readfirstlane_b32 s3, v2")
    if init_lds:
        a(f"v_lshlrev_b32 v4, 2, v1\nv_add_u32 v4, {MISC}, v4\nv_mov_b32 v5, 0\nds_write_b32 v4, v5")
    a("s_waitcnt lgkmcnt(0)")
    if init_lds: a("s_barrier")
    srd(a, S_X, 64, 2048 * 1024)
    srd(a, S_WR, 66, 2048 * 514)
    srd(a, S_WI, 68, 2048 * 514)
    srd(a, S_W1, 72, 512 * 2752)
    srd(a, S_W3, 74, 512 * 2752)
    srd(a, S_W2, 76, 1376 * 1024)
    srd(a, S_OUT, 78, 2048 * 1024)
    srd(a, S_WS, 82, 268435456)
    Stamps.clear(a)

class Stamps:
    on = False
    skip = set()
    op = "s_memrealtime"
    @staticmethod
    def reg(i): return 92 + i if i < 8 else 64 + i
    @staticmethod
    def at(a, i, force=False):
        if not Stamps.on or (i in Stamps.skip and not force): return
        a(f"{Stamps.op} s[100:101]\ns_waitcnt lgkmcnt(0)")
        a(f"s_mov_b32 s{Stamps.reg(i)}, s100")
    @staticmethod
    def clear(a):
        if not Stamps.on: return
        for i in range(1, 16): a(f"s_mov_b32 s{Stamps.reg(i)}, 0")
    @staticmethod
    def dump(a, kidx):
        if not Stamps.on: return
        Stamps.at(a, 15)
        a(f"s_lshl_b32 s40, s2, 3\ns_add_u32 s40, s40, s3\ns_lshl_b32 s40, s40, 6\ns_add_u32 s40, s40, {WS_STAMP + kidx * 131072}")
        a("v_mov_b32 v0, 0")
        for i in range(16): a(f"v_mov_b32 v{4+i}, s{Stamps.reg(i)}")
        for q in range(4): a(f"buffer_store_dwordx4 v[{4+4*q}:{7+4*q}], v0, s[{S_WS}:{S_WS+3}], s40 offen offset:{16*q}")

class Trace:
    on = False
    names = {}
    def __init__(s, role, vreg): s.role = role; s.v = vreg; s.n = 0; Trace.names[role] = []
    def start(s, a):
        if Trace.on: a(f"v_mov_b32 v{s.v}, 0")
    def __call__(s, a, name):
        if not Trace.on: return
        a(f"s_memtime s[100:101]\ns_waitcnt lgkmcnt(0)\nv_writelane_b32 v{s.v}, s100, {s.n}")
        Trace.names[s.role].append(name); s.n += 1
    def park(s, a):
        if Trace.on: a(f"v_mov_b32 v100, v{s.v}")
    @staticmethod
    def dump(a):
        if not Trace.on: return
        a(f"s_memtime s[100:101]\ns_waitcnt lgkmcnt(0)\nv_writelane_b32 v100, s100, 63\nv_writelane_b32 v100, s92, 62")
        a(f"s_lshl3_add_u32 s40, s2, s3\ns_lshl_b32 s40, s40, 8\ns_add_u32 s40, s40, {WS_STAMP + 0x100000}\nv_lshlrev_b32 v101, 2, v1")
        a(f"buffer_store_dword v100, v101, s[{S_WS}:{S_WS+3}], s40 offen")

def code_prefetch(a, start_label, end_label, nbytes, nwaves, dst):
    lines = (nbytes + 127) // 128
    n = (lines + 32 * nwaves - 1) // (32 * nwaves)
    here = a.label("pc")
    a("s_getpc_b64 s[40:41]")
    a(f"{here}:")
    a(f"s_sub_u32 s40, s40, {here}-{start_label}\ns_subb_u32 s41, s41, 0")
    a(f"s_lshr_b32 s42, s2, 3\ns_mul_i32 s42, s42, {nwaves * n}")
    a(f"v_lshrrev_b32 v2, 6, v0\nv_mul_u32_u24 v2, {n}, v2\nv_and_b32 v3, 63, v0\nv_add3_u32 v2, v2, v3, s42")
    a(f"v_min_u32 v2, ({end_label}-{start_label})>>7, v2\nv_lshlrev_b32 v2, 7, v2")
    a("v_mov_b32 v3, s41\nv_add_co_u32 v2, vcc, s40, v2\nv_addc_co_u32 v3, vcc, 0, v3, vcc")
    a(f"s_mov_b64 exec, {(1 << n) - 1}")
    a(f"global_load_dword v{dst}, v[2:3], off")
    a("s_mov_b64 exec, -1")

def sr(b): return f"s[{b}:{b+3}]"

def lds_wait_ge(a, addr_v, off, n, vt, st, sc, minof=1, sleep=0):
    top, done = a.label("lw"), a.label("lwd")
    a(f"s_mov_b32 s{sc}, {SPIN}")
    a(f"{top}:")
    if minof == 1:
        a(f"ds_read_b32 v{vt}, v{addr_v} offset:{off}")
        a("s_waitcnt lgkmcnt(0)")
    else:
        a(f"ds_read_b128 v[{vt}:{vt+3}], v{addr_v} offset:{off}")
        a("s_waitcnt lgkmcnt(0)")
        a(f"v_min_u32 v{vt}, v{vt}, v{vt+1}")
        a(f"v_min3_u32 v{vt}, v{vt}, v{vt+2}, v{vt+3}")
    a(f"v_readfirstlane_b32 s{st}, v{vt}")
    a(f"s_cmp_ge_u32 s{st}, {n}")
    a(f"s_cbranch_scc1 {done}")
    if LSLEEP[0] or sleep: a(f"s_sleep {max(LSLEEP[0], sleep)}")
    a(f"s_sub_u32 s{sc}, s{sc}, 1")
    a(f"s_cbranch_scc0 {top}")
    a(f"{done}:")

def bf_round(a, v):
    a(f"v_cvt_pk_bf16_f32 v{v}, v{v}, v{v}")
    a(f"v_and_b32 v{v}, 0xffff0000, v{v}")

def ln_scalars(a, vsum, vsq, vt):
    a(f"v_mul_f32 v{vsum}, {f32(1/512)}, v{vsum}")
    a(f"v_mul_f32 v{vsq}, {f32(1/512)}, v{vsq}")
    a(f"v_fma_f32 v{vsq}, -v{vsum}, v{vsum}, v{vsq}")
    a(f"v_max_f32 v{vsq}, 0, v{vsq}")
    bf_round(a, vsq)
    a(f"v_add_f32 v{vsq}, {f32(1e-5)}, v{vsq}")
    bf_round(a, vsq)
    a(f"v_sqrt_f32 v{vsq}, v{vsq}")
    bf_round(a, vsq)
    a(f"v_rcp_f32 v{vsq}, v{vsq}")

def row_stage(a, s_hw, lds_base, st_flags="", after_issue=None, extra_vm=0):
    a("s_and_b32 s40, s2, 31")
    a("s_lshr_b32 s41, s2, 5")
    a(f"s_lshl_b32 s42, s41, 2\ns_add_u32 s42, s42, s{s_hw}\ns_lshl_b32 s42, s42, 5\ns_add_u32 s42, s42, s40")
    a("s_lshl_b32 s42, s42, 10")
    a("s_add_u32 s43, s42, 0x100000")
    a(f"s_lshl_b32 s44, s{s_hw}, 11\ns_add_u32 s44, s44, {lds_base}")
    a("v_lshlrev_b32 v2, 4, v1")
    a("s_mov_b32 m0, s44")
    a(f"buffer_load_dwordx4 v2, {sr(S_X)}, s42 offen lds")
    a("s_add_u32 m0, s44, 1024")
    a(f"buffer_load_dwordx4 v2, {sr(S_X)}, s43 offen lds")
    a("s_and_b32 s45, s2, 63")
    a("s_bfe_u32 s46, s2, 0x10006")
    a("s_lshr_b32 s47, s2, 7")
    a(f"s_and_b32 s48, s{s_hw}, 1\ns_lshr_b32 s49, s{s_hw}, 1")
    a("s_lshl_b32 s50, s46, 1\ns_add_u32 s50, s50, s49\ns_lshl_b32 s50, s50, 9\ns_add_u32 s50, s50, s45\ns_mul_i32 s50, s50, 514")
    a("s_lshl_b32 s51, s47, 1\ns_add_u32 s51, s51, s48\ns_lshl_b32 s51, s51, 6")
    a("s_lshl_b32 s52, s51, 1\ns_add_u32 s50, s50, s52\ns_add_u32 s50, s50, 2")
    a("v_lshlrev_b32 v3, 1, v1")
    WRE, WIM = 84, 92
    for e in range(8):
        a(f"s_add_u32 s52, s50, {e * 64 * 514}")
        a(f"buffer_load_ushort v{WRE+e}, v3, {sr(S_WR)}, s52 offen")
        a(f"buffer_load_ushort v{WIM+e}, v3, {sr(S_WI)}, s52 offen")
    Stamps.at(a, 1)
    if after_issue: after_issue()
    Stamps.at(a, 2)
    a("s_and_b32 s40, s2, 31\ns_lshr_b32 s41, s2, 5")
    N, Q4, FU, ARG, STEP = 4, 5, 6, 7, 8
    B1 = 16
    TC, TS = 32, 40
    A2 = 48
    CM = 9
    a(f"v_and_b32 v{N}, 15, v1")
    a(f"v_lshrrev_b32 v{Q4}, 4, v1\nv_lshlrev_b32 v{Q4}, 2, v{Q4}\nv_cvt_f32_u32 v{Q4}, v{Q4}")
    a(f"v_add_u32 v{FU}, 1, v{N}\nv_cvt_f32_u32 v{FU}, v{FU}")
    a(f"v_mul_f32 v{STEP}, {f32(1/32)}, v{FU}")
    a(f"v_mul_f32 v{ARG}, v{Q4}, v{STEP}")
    C0, S0 = 52, 60
    for j in range(8):
        if j == 4:
            a(f"v_mul_f32 v10, {f32(13.0)}, v{STEP}\nv_add_f32 v{ARG}, v{ARG}, v10")
        elif j:
            a(f"v_add_f32 v{ARG}, v{ARG}, v{STEP}")
        a(f"v_cos_f32 v{C0+j}, v{ARG}\nv_sin_f32 v{S0+j}, v{ARG}")
    for jj in range(4):
        a(f"v_cvt_pk_bf16_f32 v{B1+jj}, v{C0+2*jj}, v{C0+2*jj+1}")
        a(f"v_cvt_pk_bf16_f32 v{B1+4+jj}, -v{S0+2*jj}, -v{S0+2*jj+1}")
    for jj in range(8):
        a(f"v_xor_b32 v{B1+8+jj}, 0x80000000, v{B1+jj}")
    for tau in range(2):
        if tau: a(f"v_add_f32 v{FU}, {f32(16.0)}, v{FU}")
        a(f"v_mul_f32 v{STEP}, {f32(1/512)}, v{FU}")
        a(f"v_mul_f32 v{ARG}, v{Q4}, v{STEP}")
        for r in range(4):
            if r: a(f"v_add_f32 v{ARG}, v{ARG}, v{STEP}")
            a(f"v_cos_f32 v{TC+4*tau+r}, v{ARG}\nv_sin_f32 v{TS+4*tau+r}, v{ARG}")
    a(f"v_lshrrev_b32 v{STEP}, 1, v{N}\nv_cvt_f32_u32 v{STEP}, v{STEP}\nv_mul_f32 v{STEP}, {f32(1/16)}, v{STEP}")
    a(f"v_and_b32 v{ARG}, 1, v{N}\nv_cvt_f32_u32 v{ARG}, v{ARG}\nv_mul_f32 v{ARG}, {f32(0.25)}, v{ARG}")
    a(f"v_fma_f32 v{ARG}, v{Q4}, v{STEP}, v{ARG}")
    for r in range(4):
        if r: a(f"v_add_f32 v{ARG}, v{ARG}, v{STEP}")
        a(f"v_cos_f32 v{C0+r}, v{ARG}\nv_sin_f32 v{S0+r}, v{ARG}")
    for jj in range(2):
        a(f"v_cvt_pk_bf16_f32 v{A2+jj}, v{C0+2*jj}, v{C0+2*jj+1}")
        a(f"v_cvt_pk_bf16_f32 v{A2+2+jj}, v{S0+2*jj}, v{S0+2*jj+1}")
    a(f"v_cmp_eq_u32 vcc, 15, v{N}")
    a(f"v_mov_b32 v{CM}, {f32(32.0)}")
    a(f"v_cndmask_b32 v{CM}, 0, v{CM}, vcc")
    a("s_mov_b32 s53, 0x3f803f80")
    a("v_lshlrev_b32 v10, 3, v1\nv_add_u32 v10, s44, v10")
    a(f"v_lshrrev_b32 v11, 4, v1\nv_lshlrev_b32 v11, 6, v11\nv_add_u32 v11, v11, v{N}\nv_lshlrev_b32 v11, 2, v11\nv_add_u32 v11, s44, v11")
    XF = 52
    Stamps.at(a, 3)
    a(f"s_waitcnt vmcnt({16 + extra_vm})")
    Stamps.at(a, 4)
    for al in range(2):
        a(f"ds_read_b64_tr_b16 v[{XF+4*al}:{XF+4*al+1}], v10 offset:{1024*al}")
        a(f"ds_read_b64_tr_b16 v[{XF+4*al+2}:{XF+4*al+3}], v10 offset:{1024*al+512}")
    D1 = 100
    SU = 12
    a("s_waitcnt lgkmcnt(0)")
    for al in range(2):
        for tau in range(2):
            for ri in range(2):
                d = D1 + 16*al + 8*tau + 4*ri
                a(f"v_mfma_f32_16x16x32_bf16 v[{d}:{d+3}], v[{XF+4*al}:{XF+4*al+3}], v[{B1+8*tau+4*ri}:{B1+8*tau+4*ri+3}], 0")
    for j in range(4):
        for al in range(2):
            c1 = "0" if j == 0 else f"v{SU+2*al}"
            c2 = "0" if j == 0 else f"v{SU+2*al+1}"
            a(f"v_dot2_f32_bf16 v{SU+2*al}, v{XF+4*al+j}, s53, {c1}")
            a(f"v_dot2_f32_bf16 v{SU+2*al+1}, v{XF+4*al+j}, v{XF+4*al+j}, {c2}")
    for m in ("row_ror:8 row_mask:0xf", "row_ror:4 row_mask:0xf", "row_ror:2 row_mask:0xf", "row_ror:1 row_mask:0xf",
              "row_bcast:15 row_mask:0xa", "row_bcast:31 row_mask:0xc"):
        for q in range(4):
            a(f"v_add_f32_dpp v{SU+q}, v{SU+q}, v{SU+q} {m} bank_mask:0xf")
    sub = [Asm(), Asm()]
    for al in range(2): ln_scalars(sub[al], SU+2*al, SU+2*al+1, None)
    for l0, l1 in zip(sub[0].lines, sub[1].lines): a(l0); a(l1)
    for al in range(2):
        a(f"v_readlane_b32 s{54+al}, v{SU+2*al}, 63")
        a(f"v_readlane_b32 s{56+2*al}, v{SU+2*al+1}, 63")
    UF = 60
    T0 = 76
    for al in range(2):
        for r in range(4):
            d = D1 + 16*al + 8 + r
            a(f"v_fma_f32 v{d}, -v{CM}, s{54+al}, v{d}")
    for al in range(2):
        for tau in range(2):
            re, im = D1 + 16*al + 8*tau, D1 + 16*al + 8*tau + 4
            for p in range(2):
                c, s = TC + 4*tau + 2*p, TS + 4*tau + 2*p
                tr, ti = T0 + 4*p, T0 + 4*p + 2
                a(f"v_pk_mul_f32 v[{tr}:{tr+1}], v[{re+2*p}:{re+2*p+1}], v[{c}:{c+1}]")
                a(f"v_pk_mul_f32 v[{ti}:{ti+1}], v[{im+2*p}:{im+2*p+1}], v[{c}:{c+1}]")
                a(f"v_pk_fma_f32 v[{tr}:{tr+1}], v[{im+2*p}:{im+2*p+1}], v[{s}:{s+1}], v[{tr}:{tr+1}]")
                a(f"v_pk_fma_f32 v[{ti}:{ti+1}], v[{re+2*p}:{re+2*p+1}], v[{s}:{s+1}], v[{ti}:{ti+1}] neg_lo:[1,0,0] neg_hi:[1,0,0]")
            u = UF + 8*al + 4*tau
            for p in range(2):
                a(f"v_cvt_pk_bf16_f32 v{u+p}, v{T0+4*p}, v{T0+4*p+1}")
                a(f"v_cvt_pk_bf16_f32 v{u+2+p}, v{T0+4*p+2}, v{T0+4*p+3}")
            d = D1 + 16*al + 8*tau
            a(f"v_mfma_f32_16x16x32_bf16 v[{d}:{d+3}], v[{A2}:{A2+3}], v[{u}:{u+3}], 0")
    for tau in range(2):
        for vl in range(2):
            d0, d1 = D1 + 8*tau + 2*vl, D1 + 16 + 8*tau + 2*vl
            a(f"v_pk_mul_f32 v[{d0}:{d0+1}], v[{d0}:{d0+1}], s[56:57] op_sel_hi:[1,0]")
            a(f"v_pk_fma_f32 v[{T0}:{T0+1}], v[{d1}:{d1+1}], s[58:59], v[{d0}:{d0+1}] op_sel_hi:[1,0,1]")
            a(f"v_pk_fma_f32 v[{T0+2}:{T0+3}], v[{d1}:{d1+1}], s[58:59], v[{d0}:{d0+1}] op_sel_hi:[1,0,1] neg_lo:[1,0,0] neg_hi:[1,0,0]")
            a(f"v_cvt_pk_bf16_f32 v{T0+4}, v{T0}, v{T0+1}")
            a(f"v_cvt_pk_bf16_f32 v{T0+5}, v{T0+2}, v{T0+3}")
            a(f"ds_write_b32 v11, v{T0+4} offset:{64*tau + 128*vl}")
            a(f"ds_write_b32 v11, v{T0+5} offset:{64*tau + 128*vl + 1024}")
    Stamps.at(a, 5)
    a(f"v_mov_b32 v12, {MISC}\nv_mov_b32 v13, 1")
    a("s_waitcnt lgkmcnt(0)")
    a("s_mov_b64 s[60:61], exec\ns_mov_b64 exec, 1")
    a(f"ds_add_u32 v12, v13 offset:{FL_BAR_A - MISC}")
    a("s_mov_b64 exec, s[60:61]")
    a("s_lshr_b32 s52, s45, 1")
    a("s_bfe_u32 s60, s52, 0x20002\ns_lshl_b32 s60, s60, 3")
    a("s_lshr_b32 s61, s52, 4\ns_lshl_b32 s61, s61, 2\ns_add_u32 s60, s60, s61")
    a("s_and_b32 s61, s52, 3\ns_add_u32 s60, s60, s61")
    a("s_lshl_b32 s61, s46, 5\ns_add_u32 s60, s60, s61\ns_lshl_b32 s60, s60, 6")
    a("s_and_b32 s61, s45, 1\ns_lshl_b32 s61, s61, 12\ns_add_u32 s60, s60, s61")
    a("s_lshl_b32 s61, s49, 5\ns_add_u32 s60, s60, s61")
    a(f"s_lshl_b32 s61, s51, 13\ns_add_u32 s60, s60, s61\ns_add_u32 s60, s60, {WS_WT}")
    a("v_lshlrev_b32 v14, 13, v1")
    a(f"s_waitcnt vmcnt({extra_vm})")
    for e in range(8):
        a(f"v_lshl_or_b32 v{WRE+e}, v{WIM+e}, 16, v{WRE+e}")
    a(f"buffer_store_dwordx4 v[{WRE}:{WRE+3}], v14, {sr(S_WS)}, s60 offen {st_flags}")
    a(f"buffer_store_dwordx4 v[{WRE+4}:{WRE+7}], v14, {sr(S_WS)}, s60 offen offset:16 {st_flags}")
    a(f"s_lshl_b32 s52, s{s_hw}, 6")
    a("v_add_u32 v14, s52, v1")
    a("v_and_b32 v15, 1, v14\nv_lshrrev_b32 v14, 1, v14")
    a(f"v_lshlrev_b32 v16, 10, v15\nv_lshl_add_u32 v16, v14, 2, v16\nv_add_u32 v16, {lds_base}, v16")
    a("v_lshlrev_b32 v17, 4, v15\nv_lshl_add_u32 v17, v14, 13, v17")
    a(f"s_lshl_b32 s52, s40, 8\ns_lshl_b32 s60, s41, 5\ns_add_u32 s52, s52, s60\ns_add_u32 s52, s52, {WS_Z}\ns_add_u32 s60, s52, {128*8192}")
    Stamps.at(a, 6)
    lds_wait_ge(a, 12, FL_BAR_A - MISC, 4, 18, 61, 62)
    for e in range(2):
        a(f"ds_read2st64_b32 v[{20+4*e}:{21+4*e}], v16 offset0:{2*e} offset1:{2*e+8}")
        a(f"ds_read2st64_b32 v[{22+4*e}:{23+4*e}], v16 offset0:{2*e+16} offset1:{2*e+24}")
    a("s_waitcnt lgkmcnt(2)")
    a(f"buffer_store_dwordx4 v[20:23], v17, {sr(S_WS)}, s52 offen {st_flags}")
    a("s_waitcnt lgkmcnt(0)")
    a(f"buffer_store_dwordx4 v[24:27], v17, {sr(S_WS)}, s60 offen {st_flags}")
    a("s_mov_b64 s[60:61], exec\ns_mov_b64 exec, 1")
    a(f"ds_add_u32 v12, v13 offset:{FL_A_DONE - MISC}")
    a("s_mov_b64 exec, s[60:61]")

CF_CA, CF_T1C, CF_T1S, CF_CB, CF_T2C, CF_T2S, CF_CD = 16, 48, 64, 80, 104, 120, 136
CF_Z, CF_W, CF_AR, CF_AI, CF_T = 160, 176, 192, 208, 224

def col_consts(a, s_pi, s_k1):
    L, H, C, ARG, STEP = 2, 3, 4, 5, 6
    a(f"v_bfe_u32 v7, v1, 2, 1\nv_lshlrev_b32 v{L}, 4, v7")
    a(f"v_bfe_u32 v7, v1, 3, 2\nv_lshl_add_u32 v{L}, v7, 2, v{L}")
    a(f"v_and_b32 v7, 3, v1\nv_add_u32 v{L}, v{L}, v7")
    a(f"v_lshl_add_u32 v{C}, v{L}, 1, s{s_pi}\nv_cvt_f32_u32 v{C}, v{C}")
    a(f"v_cvt_f32_u32 v{L}, v{L}")
    a(f"v_lshrrev_b32 v{H}, 5, v1\nv_cvt_f32_u32 v{H}, v{H}")
    tc, ts = 8, 10
    a(f"v_mul_f32 v{STEP}, {f32(1/64)}, v{C}")
    a(f"v_mul_f32 v{ARG}, 4.0, v{H}\nv_mul_f32 v{ARG}, v{ARG}, v{STEP}")
    a(f"v_mul_f32 v7, {f32(5.0)}, v{STEP}")
    for t in range(4):
        for i in range(4):
            if i: a(f"v_add_f32 v{ARG}, v{ARG}, v{STEP}")
            elif t: a(f"v_add_f32 v{ARG}, v{ARG}, v7")
            x = 2 * (i & 1)
            a(f"v_cos_f32 v{tc+(i&1)}, v{ARG}\nv_sin_f32 v{ts+(i&1)}, v{ARG}")
            a(f"v_cvt_pk_bf16_f32 v{CF_CA+8*t+i}, v{tc+(i&1)}, v{ts+(i&1)}")
            a(f"v_cvt_pk_bf16_f32 v{CF_CA+8*t+4+i}, -v{ts+(i&1)}, v{tc+(i&1)}")
    a(f"v_mul_f32 v{H}, {f32(16.0)}, v{H}")
    def mat(base):
        for R in range(16):
            if R: a(f"v_add_f32 v{ARG}, v{ARG}, v{STEP}")
            a(f"v_cos_f32 v{tc+(R&1)}, v{ARG}\nv_sin_f32 v{ts+(R&1)}, v{ARG}")
            if R & 1:
                a(f"v_cvt_pk_bf16_f32 v{base+(R>>1)}, v{tc}, v{tc+1}")
                a(f"v_cvt_pk_bf16_f32 v{base+8+(R>>1)}, v{ts}, v{ts+1}")
                a(f"v_cvt_pk_bf16_f32 v{base+16+(R>>1)}, -v{ts}, -v{ts+1}")
    def tw(cb, sb):
        for R in range(16):
            if R: a(f"v_add_f32 v{ARG}, v{ARG}, v{STEP}")
            a(f"v_cos_f32 v{cb+R}, v{ARG}\nv_sin_f32 v{sb+R}, v{ARG}")
    a(f"v_mul_f32 v{STEP}, {f32(1/2048)}, v{C}\nv_mul_f32 v{ARG}, v{H}, v{STEP}")
    tw(CF_T1C, CF_T1S)
    a(f"v_mul_f32 v{STEP}, {f32(1/32)}, v{L}\nv_mul_f32 v{ARG}, v{H}, v{STEP}")
    mat(CF_CB)
    a(f"v_cvt_f32_u32 v7, s{s_pi}\nv_fma_f32 v{H}, 0.5, v7, v{H}")
    a(f"v_mul_f32 v{STEP}, {f32(1/1024)}, v{L}\nv_mul_f32 v{ARG}, v{H}, v{STEP}")
    tw(CF_T2C, CF_T2S)
    a(f"s_cmp_eq_u32 s{s_k1}, 255")
    a(f"s_mov_b32 s62, {f32(2/(2048*512))}")
    a(f"s_cmov_b32 s62, {f32(1/(2048*512))}")
    for R in range(0, 32, 2):
        a(f"v_pk_mul_f32 v[{CF_T2C+R}:{CF_T2C+R+1}], v[{CF_T2C+R}:{CF_T2C+R+1}], s[62:63] op_sel_hi:[1,0]")
    a(f"v_and_b32 v7, 31, v1\nv_cvt_f32_u32 v7, v7\nv_mul_f32 v{STEP}, {f32(1/32)}, v7\nv_mul_f32 v{ARG}, v{H}, v{STEP}")
    mat(CF_CD)

def col_loads(a, s_pi, s_k1, which, ld_flags=""):
    if which == "w":
        a(f"s_lshl_b32 s60, s{s_k1}, 13\ns_lshl_b32 s61, s{s_pi}, 12\ns_add_u32 s60, s60, s61\ns_add_u32 s60, s60, {WS_WT}")
        a("v_lshlrev_b32 v12, 6, v1")
        for t in range(4):
            a(f"buffer_load_dwordx4 v[{CF_W+4*t}:{CF_W+4*t+3}], v12, {sr(S_WS)}, s60 offen offset:{16*t} {ld_flags}")
    else:
        a(f"s_lshl_b32 s60, s{s_k1}, 13\ns_lshl_b32 s61, s{s_pi}, 4\ns_add_u32 s60, s60, s61\ns_add_u32 s60, s60, {WS_Z}")
        a("v_bfe_u32 v13, v1, 2, 1\nv_lshlrev_b32 v14, 4, v13")
        a("v_bfe_u32 v13, v1, 3, 2\nv_lshl_add_u32 v14, v13, 2, v14")
        a("v_and_b32 v13, 3, v1\nv_add_u32 v14, v14, v13")
        a("v_lshlrev_b32 v14, 8, v14\nv_lshrrev_b32 v13, 5, v1\nv_lshl_add_u32 v14, v13, 5, v14")
        for t in range(4):
            a(f"buffer_load_dwordx4 v[{CF_Z+4*t}:{CF_Z+4*t+3}], v14, {sr(S_WS)}, s60 offen offset:{64*t} {ld_flags}")

def col_compute(a, s_pi, s_k1, st_flags="", wait_w="s_waitcnt vmcnt(0)", packed=True, store=True):
    AR, AI, U, T = CF_AR, CF_AI, CF_Z, CF_T
    def mf(d, x, y, first):
        a(f"v_mfma_f32_32x32x16_bf16 v[{d}:{d+15}], v[{x}:{x+3}], v[{y}:{y+3}], " + ("0" if first else f"v[{d}:{d+15}]"))
    def cmul(cs, conj):
        for p in range(8):
            c, s = cs(p)
            tr, ti = T + 4*(p & 1), T + 4*(p & 1) + 2
            re, im = AR + 2*p, AI + 2*p
            neg = "neg_lo:[1,0,0] neg_hi:[1,0,0]"
            if not packed:
                n1, n2 = ("-", "") if conj else ("", "-")
                for e in range(2):
                    a(f"v_mul_f32 v{tr+e}, v{re+e}, v{c+e}\nv_mul_f32 v{ti+e}, v{im+e}, v{c+e}")
                for e in range(2):
                    a(f"v_fma_f32 v{tr+e}, {n1}v{im+e}, v{s+e}, v{tr+e}\nv_fma_f32 v{ti+e}, {n2}v{re+e}, v{s+e}, v{ti+e}")
                a(f"v_cvt_pk_bf16_f32 v{U+p}, v{tr}, v{tr+1}")
                a(f"v_cvt_pk_bf16_f32 v{U+8+p}, v{ti}, v{ti+1}")
                continue
            a(f"v_pk_mul_f32 v[{tr}:{tr+1}], v[{re}:{re+1}], v[{c}:{c+1}]")
            a(f"v_pk_mul_f32 v[{ti}:{ti+1}], v[{im}:{im+1}], v[{c}:{c+1}]")
            a(f"v_pk_fma_f32 v[{tr}:{tr+1}], v[{im}:{im+1}], v[{s}:{s+1}], v[{tr}:{tr+1}] {neg if conj else ''}")
            a(f"v_pk_fma_f32 v[{ti}:{ti+1}], v[{re}:{re+1}], v[{s}:{s+1}], v[{ti}:{ti+1}] {'' if conj else neg}")
            a(f"v_cvt_pk_bf16_f32 v{U+p}, v{tr}, v{tr+1}")
            a(f"v_cvt_pk_bf16_f32 v{U+8+p}, v{ti}, v{ti+1}")
    for t in range(4):
        mf(AR, CF_Z + 4*t, CF_CA + 8*t, t == 0)
        mf(AI, CF_Z + 4*t, CF_CA + 8*t + 4, t == 0)
    cmul(lambda p: (CF_T1C + 2*p, CF_T1S + 2*p), False)
    C, S, N = CF_CB, CF_CB + 8, CF_CB + 16
    for t in range(2):
        mf(AR, C + 4*t, U + 4*t, t == 0); mf(AI, N + 4*t, U + 4*t, t == 0)
        mf(AR, S + 4*t, U + 8 + 4*t, False); mf(AI, C + 4*t, U + 8 + 4*t, False)
    a(wait_w)
    WC = CF_T1C
    for r in range(16):
        a(f"v_lshlrev_b32 v{CF_T1C+r}, 16, v{CF_W+r}")
        a(f"v_and_b32 v{CF_T1S+r}, 0xffff0000, v{CF_W+r}")
    cmul(lambda p: (CF_T1C + 2*p, CF_T1S + 2*p), True)
    for t in range(2):
        mf(AR, U + 4*t, C + 4*t, t == 0); mf(AI, U + 4*t, S + 4*t, t == 0)
        mf(AR, U + 8 + 4*t, N + 4*t, False); mf(AI, U + 8 + 4*t, C + 4*t, False)
    cmul(lambda p: (CF_T2C + 2*p, CF_T2S + 2*p), True)
    C, S, N = CF_CD, CF_CD + 8, CF_CD + 16
    for t in range(2):
        mf(AR, U + 4*t, C + 4*t, t == 0); mf(AI, U + 4*t, S + 4*t, t == 0)
        mf(AR, U + 8 + 4*t, N + 4*t, False); mf(AI, U + 8 + 4*t, C + 4*t, False)
    if not store: return
    a(f"s_lshl_b32 s60, s{s_k1}, 13\ns_lshl_b32 s61, s{s_pi}, 6\ns_add_u32 s60, s60, s61\ns_add_u32 s60, s60, {WS_E}\ns_add_u32 s61, s60, 4096")
    a("v_and_b32 v12, 31, v1\nv_lshlrev_b32 v12, 7, v12\nv_lshrrev_b32 v13, 5, v1\nv_lshl_add_u32 v12, v13, 5, v12")
    for ri, acc in enumerate((AR, AI)):
        for p in range(8):
            a(f"v_cvt_pk_bf16_f32 v{U+8*ri+p}, v{acc+2*p}, v{acc+2*p+1}")
        for q in range(2):
            a(f"buffer_store_dwordx4 v[{U+8*ri+4*q}:{U+8*ri+4*q+3}], v12, {sr(S_WS)}, s{60+ri} offen offset:{16*q} {st_flags}")
```

```python
from pieces import *
NOST = False

def row_setup(a, s_hw, lds_rows):
    a("s_lshr_b32 s40, s2, 3\ns_and_b32 s41, s2, 3\ns_bfe_u32 s42, s2, 0x10002\ns_lshl1_add_u32 s41, s41, s42\ns_lshl_b32 s62, s41, 5\ns_add_u32 s62, s62, s40")
    a(f"s_lshl2_add_u32 s42, s41, s{s_hw}\ns_lshl_b32 s42, s42, 5\ns_add_u32 s42, s42, s40\ns_lshl_b32 s42, s42, 10")
    a(f"s_lshl_b32 s44, s{s_hw}, 11\ns_add_u32 s44, s44, {lds_rows}\ns_mov_b32 m0, s44")
    a("v_lshlrev_b32 v2, 4, v1\ns_add_u32 s43, s42, 0x100000")
    a("s_bfe_u32 s45, s2, 0x20003\ns_and_b32 s46, s2, 3\ns_bfe_u32 s47, s2, 0x10002\ns_bfe_u32 s48, s2, 0x20005\ns_lshr_b32 s49, s2, 7")
    a(f"s_lshl2_add_u32 s50, s47, s46\ns_lshl2_add_u32 s50, s50, s{s_hw}\ns_lshl3_add_u32 s50, s50, s48\ns_lshl3_add_u32 s50, s50, s49")
    a("s_mulk_i32 s50, 514\ns_lshl_b32 s51, s45, 7\ns_add_u32 s50, s50, s51\ns_add_u32 s50, s50, 2")
    a("v_lshrrev_b32 v3, 5, v1\nv_bfe_u32 v4, v1, 3, 2\nv_lshl_add_u32 v3, v3, 4, v4\nv_mul_u32_u24 v3, 1028, v3\nv_and_b32 v4, 7, v1\nv_lshl_add_u32 v3, v4, 4, v3")
    a(f"s_lshl_b32 s51, s{s_hw}, 10")

def row_issue(a, lds_w):
    a(f"buffer_load_dwordx4 v2, {sr(S_X)}, s42 offen lds")
    a("s_add_u32 m0, s44, 1024")
    a(f"buffer_load_dwordx4 v2, {sr(S_X)}, s43 offen lds")
    a(f"s_add_u32 m0, s51, {lds_w}")
    a(f"buffer_load_dwordx4 v3, {sr(S_WR)}, s50 offen lds")
    a(f"s_add_u32 m0, s51, {lds_w + 4096}")
    a(f"buffer_load_dwordx4 v3, {sr(S_WI)}, s50 offen lds")

def row_compute(a, s_hw, lds_rows, lds_w, st_flags, extra_vm, idle_hook=None, zgate=0, wgate=0):
    N, Q4, FU, ARG, STEP = 4, 5, 6, 7, 8
    B1, TC, TS, A2, CM = 16, 32, 40, 48, 9
    a(f"v_and_b32 v{N}, 15, v1")
    a(f"v_lshrrev_b32 v{Q4}, 4, v1\nv_lshlrev_b32 v{Q4}, 2, v{Q4}\nv_cvt_f32_u32 v{Q4}, v{Q4}")
    a(f"v_add_u32 v{FU}, 1, v{N}\nv_cvt_f32_u32 v{FU}, v{FU}")
    a(f"v_mul_f32 v{STEP}, {f32(1/32)}, v{FU}")
    a(f"v_mul_f32 v{ARG}, v{Q4}, v{STEP}")
    C0, S0 = 52, 60
    for j in range(8):
        if j == 4: a(f"v_mul_f32 v10, {f32(13.0)}, v{STEP}\nv_add_f32 v{ARG}, v{ARG}, v10")
        elif j: a(f"v_add_f32 v{ARG}, v{ARG}, v{STEP}")
        a(f"v_cos_f32 v{C0+j}, v{ARG}\nv_sin_f32 v{S0+j}, v{ARG}")
    for jj in range(4):
        a(f"v_cvt_pk_bf16_f32 v{B1+jj}, v{C0+2*jj}, v{C0+2*jj+1}")
        a(f"v_cvt_pk_bf16_f32 v{B1+4+jj}, -v{S0+2*jj}, -v{S0+2*jj+1}")
    for jj in range(8): a(f"v_xor_b32 v{B1+8+jj}, 0x80000000, v{B1+jj}")
    for tau in range(2):
        if tau: a(f"v_add_f32 v{FU}, {f32(16.0)}, v{FU}")
        a(f"v_mul_f32 v{STEP}, {f32(1/512)}, v{FU}\nv_mul_f32 v{ARG}, v{Q4}, v{STEP}")
        for r in range(4):
            if r: a(f"v_add_f32 v{ARG}, v{ARG}, v{STEP}")
            a(f"v_cos_f32 v{TC+4*tau+r}, v{ARG}\nv_sin_f32 v{TS+4*tau+r}, v{ARG}")
    a(f"v_lshrrev_b32 v{STEP}, 1, v{N}\nv_cvt_f32_u32 v{STEP}, v{STEP}\nv_mul_f32 v{STEP}, {f32(1/16)}, v{STEP}")
    a(f"v_and_b32 v{ARG}, 1, v{N}\nv_cvt_f32_u32 v{ARG}, v{ARG}\nv_mul_f32 v{ARG}, {f32(0.25)}, v{ARG}")
    a(f"v_fma_f32 v{ARG}, v{Q4}, v{STEP}, v{ARG}")
    for r in range(4):
        if r: a(f"v_add_f32 v{ARG}, v{ARG}, v{STEP}")
        a(f"v_cos_f32 v{C0+r}, v{ARG}\nv_sin_f32 v{S0+r}, v{ARG}")
    for jj in range(2):
        a(f"v_cvt_pk_bf16_f32 v{A2+jj}, v{C0+2*jj}, v{C0+2*jj+1}")
        a(f"v_cvt_pk_bf16_f32 v{A2+2+jj}, v{S0+2*jj}, v{S0+2*jj+1}")
    a(f"v_cmp_eq_u32 vcc, 15, v{N}\nv_mov_b32 v{CM}, {f32(32.0)}\nv_cndmask_b32 v{CM}, 0, v{CM}, vcc")
    a("s_mov_b32 s53, 0x3f803f80")
    a("v_lshlrev_b32 v10, 3, v1\nv_add_u32 v10, s44, v10")
    a(f"v_lshrrev_b32 v11, 4, v1\nv_lshlrev_b32 v11, 6, v11\nv_add_u32 v11, v11, v{N}\nv_lshlrev_b32 v11, 2, v11\nv_add_u32 v11, s44, v11")
    a(f"s_lshl_b32 s52, s{s_hw}, 6\nv_add_u32 v125, s52, v1\nv_and_b32 v126, 1, v125\nv_lshrrev_b32 v124, 1, v125")
    a(f"v_lshlrev_b32 v126, 10, v126\nv_lshl_add_u32 v124, v124, 2, v126\nv_add_u32 v124, {lds_rows}, v124\nv_lshlrev_b32 v125, 4, v125")
    a(f"v_lshrrev_b32 v127, 3, v1\nv_and_b32 v3, 7, v1\nv_lshlrev_b32 v126, 7, v3\nv_lshl_add_u32 v126, v127, 1, v126")
    a(f"s_lshl_b32 s52, s{s_hw}, 5\ns_add_u32 s52, s52, {lds_w}\nv_add_u32 v126, s52, v126")
    a("v_lshlrev_b32 v127, 13, v127\nv_lshl_add_u32 v127, v3, 4, v127")
    a(f"s_lshl_b32 s60, s45, 2\ns_add_u32 s60, s60, s{s_hw}\ns_lshl_b32 s60, s60, 17\ns_lshl_b32 s61, s49, 12\ns_add_u32 s60, s60, s61")
    a(f"s_lshl_b32 s61, s46, 10\ns_add_u32 s60, s60, s61\ns_lshl_b32 s61, s47, 9\ns_add_u32 s60, s60, s61\ns_lshl_b32 s61, s48, 7\ns_add_u32 s60, s60, s61\ns_add_u32 s50, s60, {WS_WT}\ns_add_u32 s51, s50, 0x10000")
    a(f"s_lshl_b32 s52, s62, 13\ns_add_u32 s52, s52, {WS_Z}\ns_add_u32 s63, s52, 4096")
    XF = 52
    if idle_hook: idle_hook()
    Stamps.at(a, 3)
    a(f"s_waitcnt vmcnt({2 + extra_vm})")
    Stamps.at(a, 4)
    for al in range(2):
        a(f"ds_read_b64_tr_b16 v[{XF+4*al}:{XF+4*al+1}], v10 offset:{1024*al}")
        a(f"ds_read_b64_tr_b16 v[{XF+4*al+2}:{XF+4*al+3}], v10 offset:{1024*al+512}")
    D1, SU = 92, 12
    a("s_waitcnt lgkmcnt(0)")
    for j in range(4):
        for al in range(2):
            c1 = "0" if j == 0 else f"v{SU+2*al}"
            c2 = "0" if j == 0 else f"v{SU+2*al+1}"
            a(f"v_dot2_f32_bf16 v{SU+2*al}, v{XF+4*al+j}, s53, {c1}")
            a(f"v_dot2_f32_bf16 v{SU+2*al+1}, v{XF+4*al+j}, v{XF+4*al+j}, {c2}")
    mf = []
    for al in range(2):
        for tau in range(2):
            for ri in range(2):
                d = D1 + 16*al + 8*tau + 4*ri
                mf.append(f"v_mfma_f32_16x16x32_bf16 v[{d}:{d+3}], v[{XF+4*al}:{XF+4*al+3}], v[{B1+8*tau+4*ri}:{B1+8*tau+4*ri+3}], 0")
    for n, m in enumerate(("row_ror:8 row_mask:0xf", "row_ror:4 row_mask:0xf", "row_ror:2 row_mask:0xf", "row_ror:1 row_mask:0xf",
              "row_bcast:15 row_mask:0xa", "row_bcast:31 row_mask:0xc")):
        a(mf[n])
        for q in range(4): a(f"v_add_f32_dpp v{SU+q}, v{SU+q}, v{SU+q} {m} bank_mask:0xf")
    a(mf[6]); a(mf[7])
    sub = [Asm(), Asm()]
    for al in range(2): ln_scalars(sub[al], SU+2*al, SU+2*al+1, None)
    for l0, l1 in zip(sub[0].lines, sub[1].lines): a(l0); a(l1)
    for al in range(2):
        a(f"v_readlane_b32 s{54+al}, v{SU+2*al}, 63\nv_readlane_b32 s{56+2*al}, v{SU+2*al+1}, 63")
    UF, T0 = 60, 76
    for al in range(2):
        for r in range(4):
            d = D1 + 16*al + 8 + r
            a(f"v_fma_f32 v{d}, -v{CM}, s{54+al}, v{d}")
    mf = []
    for al in range(2):
        for tau in range(2):
            re, im = D1 + 16*al + 8*tau, D1 + 16*al + 8*tau + 4
            for p in range(2):
                c, s = TC + 4*tau + 2*p, TS + 4*tau + 2*p
                tr, ti = T0 + 4*p, T0 + 4*p + 2
                a(f"v_pk_mul_f32 v[{tr}:{tr+1}], v[{re+2*p}:{re+2*p+1}], v[{c}:{c+1}]")
                a(f"v_pk_mul_f32 v[{ti}:{ti+1}], v[{im+2*p}:{im+2*p+1}], v[{c}:{c+1}]")
                a(f"v_pk_fma_f32 v[{tr}:{tr+1}], v[{im+2*p}:{im+2*p+1}], v[{s}:{s+1}], v[{tr}:{tr+1}]")
                a(f"v_pk_fma_f32 v[{ti}:{ti+1}], v[{re+2*p}:{re+2*p+1}], v[{s}:{s+1}], v[{ti}:{ti+1}] neg_lo:[1,0,0] neg_hi:[1,0,0]")
            u = UF + 8*al + 4*tau
            for p in range(2):
                a(f"v_cvt_pk_bf16_f32 v{u+p}, v{T0+4*p}, v{T0+4*p+1}")
                a(f"v_cvt_pk_bf16_f32 v{u+2+p}, v{T0+4*p+2}, v{T0+4*p+3}")
            d = D1 + 16*al + 8*tau
            mf.append(f"v_mfma_f32_16x16x32_bf16 v[{d}:{d+3}], v[{A2}:{A2+3}], v[{u}:{u+3}], 0")
    for i in (0, 2, 1, 3): a(mf[i])
    a(f"v_mov_b32 v12, {MISC}\nv_mov_b32 v13, 1")
    for tau in range(2):
        for vl in range(2):
            d0, d1 = D1 + 8*tau + 2*vl, D1 + 16 + 8*tau + 2*vl
            t = T0 + 8 * vl
            a(f"v_pk_mul_f32 v[{d0}:{d0+1}], v[{d0}:{d0+1}], s[56:57] op_sel_hi:[1,0]")
            a(f"v_pk_fma_f32 v[{t}:{t+1}], v[{d1}:{d1+1}], s[58:59], v[{d0}:{d0+1}] op_sel_hi:[1,0,1]")
            a(f"v_pk_fma_f32 v[{t+2}:{t+3}], v[{d1}:{d1+1}], s[58:59], v[{d0}:{d0+1}] op_sel_hi:[1,0,1] neg_lo:[1,0,0] neg_hi:[1,0,0]")
            a(f"v_cvt_pk_bf16_f32 v{t+4}, v{t}, v{t+1}\nv_cvt_pk_bf16_f32 v{t+5}, v{t+2}, v{t+3}")
            a(f"ds_write_b32 v11, v{t+4} offset:{64*tau + 128*vl}")
            a(f"ds_write_b32 v11, v{t+5} offset:{64*tau + 128*vl + 1024}")
    Stamps.at(a, 5)
    a(f"s_waitcnt vmcnt({extra_vm})")
    a("s_mov_b64 exec, 1")
    a(f"ds_add_u32 v12, v13 offset:{FL_BAR_A - MISC}")
    a("s_mov_b64 exec, -1")
    lds_wait_ge(a, 12, FL_BAR_A - MISC, 4, 18, 61, 62)
    Stamps.at(a, 6)
    for e in range(2):
        a(f"ds_read2st64_b32 v[{20+4*e}:{21+4*e}], v124 offset0:{2*e} offset1:{2*e+8}")
        a(f"ds_read2st64_b32 v[{22+4*e}:{23+4*e}], v124 offset0:{2*e+16} offset1:{2*e+24}")
    WR_, WI_ = 32, 40
    def zst():
        if NOST: return
        a(f"buffer_store_dwordx4 v[20:23], v125, {sr(S_WS)}, s52 offen {st_flags}")
        a(f"buffer_store_dwordx4 v[24:27], v125, {sr(S_WS)}, s63 offen {st_flags}")
    for r in range(4):
        a(f"ds_read_u16 v{WR_+r}, v126 offset:{1024*r}\nds_read_u16 v{WI_+r}, v126 offset:{4096 + 1024*r}")
    a("s_waitcnt lgkmcnt(8)")
    if not zgate: zst()
    for r in range(4):
        if r == 3: a("s_waitcnt lgkmcnt(8)")
        a(f"ds_read_u16 v{WR_+4+r}, v126 offset:{1024*r + 16}\nds_read_u16 v{WI_+4+r}, v126 offset:{4096 + 1024*r + 16}")
    a("s_mov_b64 exec, 1")
    a(f"ds_add_u32 v12, v13 offset:{FL_A_DONE - MISC}")
    a("s_mov_b64 exec, -1\ns_waitcnt lgkmcnt(0)")
    for r in range(8): a(f"v_lshl_or_b32 v{WR_+r}, v{WI_+r}, 16, v{WR_+r}")
    if wgate: lds_wait_ge(a, 12, FL_FREE - MISC, wgate, 16, 61, 62, minof=4, sleep=1)
    if zgate: zst()
    for n in range(0 if NOST else 2):
        a(f"buffer_store_dwordx4 v[{WR_+4*n}:{WR_+4*n+3}], v127, {sr(S_WS)}, s{50+n} offen {st_flags}")

def col_loads2(a, s_pi, s_k1, ld_flags):
    a(f"s_lshl_b32 s60, s{s_k1}, 5\ns_lshl_b32 s61, s{s_pi}, 4\ns_add_u32 s60, s60, s61\ns_add_u32 s60, s60, {WS_Z}")
    for t in range(4):
        a(f"buffer_load_dwordx4 v[{CF_Z+4*t}:{CF_Z+4*t+3}], v14, {sr(S_WS)}, s60 offen {ld_flags}")
        if t < 3: a(f"s_add_u32 s60, s60, {64*8192}")
    a(f"s_lshl_b32 s60, s{s_k1}, 13\ns_lshl_b32 s61, s{s_pi}, 12\ns_add_u32 s60, s60, s61\ns_add_u32 s61, s60, {WS_WT}")
    for t in range(4):
        a(f"buffer_load_dwordx4 v[{CF_W+4*t}:{CF_W+4*t+3}], v15, {sr(S_WS)}, s61 offen offset:{1024*t} {ld_flags}")

def col_addrs(a):
    a("v_bfe_u32 v13, v1, 2, 1\nv_lshlrev_b32 v14, 4, v13\nv_bfe_u32 v13, v1, 3, 2\nv_lshl_add_u32 v14, v13, 2, v14")
    a("v_and_b32 v13, 0x23, v1\nv_add_u32 v14, v14, v13\nv_lshlrev_b32 v14, 13, v14\nv_lshlrev_b32 v15, 4, v1")
    a("v_bfe_u32 v12, v1, 3, 2\nv_lshlrev_b32 v12, 10, v12\nv_lshrrev_b32 v13, 5, v1\nv_lshl_add_u32 v12, v13, 9, v12\nv_and_b32 v13, 7, v1\nv_lshl_add_u32 v12, v13, 4, v12")

def col_store2(a, st_flags):
    AR, AI, U = CF_AR, CF_AI, CF_Z
    a(f"s_add_u32 s60, s60, {WS_E}")
    for q in range(4):
        for ri, acc in enumerate((AR, AI)):
            for p in range(2):
                a(f"v_cvt_pk_bf16_f32 v{U+4*q+2*ri+p}, v{acc+4*q+2*p}, v{acc+4*q+2*p+1}")
        a(f"buffer_store_dwordx4 v[{U+4*q}:{U+4*q+3}], v12, {sr(S_WS)}, s60 offen offset:{128*q} {st_flags}")

CA, CB, CD = 128, 160, 184
T1C, T1S, T2C, T2S = 16, 32, 48, 64
CZ, CW, CAR, CAI, CT = 80, 96, 208, 224, 112

def _lane_ids(a, s_pi, L, H, C, t):
    a(f"v_bfe_u32 v{t}, v1, 2, 1\nv_lshlrev_b32 v{L}, 4, v{t}\nv_bfe_u32 v{t}, v1, 3, 2\nv_lshl_add_u32 v{L}, v{t}, 2, v{L}")
    a(f"v_and_b32 v{t}, 3, v1\nv_add_u32 v{L}, v{L}, v{t}")
    a(f"v_lshl_add_u32 v{C}, v{L}, 1, s{s_pi}\nv_cvt_f32_u32 v{C}, v{C}\nv_cvt_f32_u32 v{L}, v{L}")
    a(f"v_lshrrev_b32 v{H}, 5, v1\nv_cvt_f32_u32 v{H}, v{H}")

def col_mats(a, s_pi):
    L, H, C, ARG, STEP, X, tc, ts = 240, 241, 242, 243, 244, 245, 246, 248
    _lane_ids(a, s_pi, L, H, C, X)
    a(f"v_mul_f32 v{STEP}, {f32(1/64)}, v{C}\nv_mul_f32 v{ARG}, 4.0, v{H}\nv_mul_f32 v{ARG}, v{ARG}, v{STEP}\nv_mul_f32 v{X}, {f32(5.0)}, v{STEP}")
    pend = []
    for t in range(4):
        for i in range(4):
            if i: a(f"v_add_f32 v{ARG}, v{ARG}, v{STEP}")
            elif t: a(f"v_add_f32 v{ARG}, v{ARG}, v{X}")
            a(f"v_cos_f32 v{tc+(i&1)}, v{ARG}\nv_sin_f32 v{ts+(i&1)}, v{ARG}")
            for o in pend: a(o)
            pend = [f"v_cvt_pk_bf16_f32 v{CA+8*t+i}, v{tc+(i&1)}, v{ts+(i&1)}", f"v_cvt_pk_bf16_f32 v{CA+8*t+4+i}, -v{ts+(i&1)}, v{tc+(i&1)}"]
    for o in pend: a(o)
    a(f"v_mul_f32 v{H}, {f32(16.0)}, v{H}")
    def mat(base):
        for R in range(16):
            if R: a(f"v_add_f32 v{ARG}, v{ARG}, v{STEP}")
            a(f"v_sin_f32 v{ts+(R&1)}, v{ARG}\nv_cos_f32 v{tc+(R&1)}, v{ARG}")
            if R & 1:
                a(f"v_cvt_pk_bf16_f32 v{base+8+(R>>1)}, v{ts}, v{ts+1}")
                a(f"v_cvt_pk_bf16_f32 v{base+(R>>1)}, v{tc}, v{tc+1}")
                a(f"v_xor_b32 v{base+16+(R>>1)}, 0x80008000, v{base+8+(R>>1)}")
    a(f"v_mul_f32 v{STEP}, {f32(1/32)}, v{L}\nv_mul_f32 v{ARG}, v{H}, v{STEP}")
    mat(CB)
    a(f"v_cvt_f32_u32 v{X}, s{s_pi}\nv_fma_f32 v{H}, 0.5, v{X}, v{H}")
    a(f"v_and_b32 v{X}, 31, v1\nv_cvt_f32_u32 v{X}, v{X}\nv_mul_f32 v{STEP}, {f32(1/32)}, v{X}\nv_mul_f32 v{ARG}, v{H}, v{STEP}")
    mat(CD)

def col_twiddles(a, s_pi, s_k1, which):
    L, H, C, ARG, STEP, X = 240, 241, 242, 243, 244, 245
    def tw(cb, sb):
        for R in range(16):
            if R: a(f"v_add_f32 v{ARG}, v{ARG}, v{STEP}")
            a(f"v_cos_f32 v{cb+R}, v{ARG}\nv_sin_f32 v{sb+R}, v{ARG}")
    if which == 2:
        a(f"v_mul_f32 v{STEP}, {f32(1/1024)}, v{L}\nv_mul_f32 v{ARG}, v{H}, v{STEP}")
        tw(T2C, T2S)
        a(f"s_cmp_eq_u32 s{s_k1}, 255\ns_mov_b32 s62, {f32(2/(2048*512))}\ns_cmov_b32 s62, {f32(1/(2048*512))}")
        for R in range(32): a(f"v_mul_f32 v{T2C+R}, s62, v{T2C+R}")
    else:
        a(f"v_floor_f32 v{X}, v{H}\nv_mul_f32 v{STEP}, {f32(1/2048)}, v{C}\nv_mul_f32 v{ARG}, v{X}, v{STEP}")
        tw(T1C, T1S)

def col_loads3(a, s_pi, s_k1, ld_flags):
    a(f"s_lshl_b32 s60, s{s_k1}, 5\ns_lshl_b32 s61, s{s_pi}, 4\ns_add_u32 s60, s60, s61\ns_add_u32 s60, s60, {WS_Z}")
    for t in range(4):
        a(f"buffer_load_dwordx4 v[{CZ+4*t}:{CZ+4*t+3}], v14, {sr(S_WS)}, s60 offen {ld_flags}")
        if t < 3: a(f"s_add_u32 s60, s60, {64*8192}")
    a(f"s_lshl_b32 s60, s{s_k1}, 13\ns_lshl_b32 s61, s{s_pi}, 12\ns_add_u32 s60, s60, s61\ns_add_u32 s61, s60, {WS_WT}")
    for t in range(4):
        a(f"buffer_load_dwordx4 v[{CW+4*t}:{CW+4*t+3}], v15, {sr(S_WS)}, s61 offen offset:{1024*t} {ld_flags}")

def col_compute3(a, st_flags):
    AR, AI, U, T = CAR, CAI, CZ, CT
    def mf(d, x, y, first):
        a(f"v_mfma_f32_32x32x16_bf16 v[{d}:{d+15}], v[{x}:{x+3}], v[{y}:{y+3}], " + ("0" if first else f"v[{d}:{d+15}]"))
    def cmul(cb, sb, conj):
        n1, n2 = ("-", "") if conj else ("", "-")
        for p in range(8):
            c, s = cb + 2*p, sb + 2*p
            tr, ti = T + 4*(p & 1), T + 4*(p & 1) + 2
            re, im = AR + 2*p, AI + 2*p
            for e in range(2): a(f"v_mul_f32 v{tr+e}, v{re+e}, v{c+e}\nv_mul_f32 v{ti+e}, v{im+e}, v{c+e}")
            for e in range(2): a(f"v_fma_f32 v{tr+e}, {n1}v{im+e}, v{s+e}, v{tr+e}\nv_fma_f32 v{ti+e}, {n2}v{re+e}, v{s+e}, v{ti+e}")
            a(f"v_cvt_pk_bf16_f32 v{U+p}, v{tr}, v{tr+1}\nv_cvt_pk_bf16_f32 v{U+8+p}, v{ti}, v{ti+1}")
    for t in range(4):
        a(f"s_waitcnt vmcnt({7 - t})")
        mf(AR, CZ + 4*t, CA + 8*t, t == 0); mf(AI, CZ + 4*t, CA + 8*t + 4, t == 0)
    cmul(T1C, T1S, False)
    C, S, N = CB, CB + 8, CB + 16
    for t in range(2):
        mf(AR, C + 4*t, U + 4*t, t == 0); mf(AI, N + 4*t, U + 4*t, t == 0)
        mf(AR, S + 4*t, U + 8 + 4*t, False); mf(AI, C + 4*t, U + 8 + 4*t, False)
    a("s_waitcnt vmcnt(0)")
    for r in range(16): a(f"v_lshlrev_b32 v{T1C+r}, 16, v{CW+r}\nv_and_b32 v{T1S+r}, 0xffff0000, v{CW+r}")
    cmul(T1C, T1S, True)
    for (C, S, N, last) in ((CB, CB + 8, CB + 16, False), (CD, CD + 8, CD + 16, True)):
        for t in range(2):
            mf(AR, U + 4*t, C + 4*t, t == 0); mf(AI, U + 4*t, S + 4*t, t == 0)
            mf(AR, U + 8 + 4*t, N + 4*t, False); mf(AI, U + 8 + 4*t, C + 4*t, False)
        if not last: cmul(T2C, T2S, True)
    a(f"s_add_u32 s60, s60, {WS_E}")
    for q in range(4):
        for ri, acc in enumerate((AR, AI)):
            for p in range(2): a(f"v_cvt_pk_bf16_f32 v{U+4*q+2*ri+p}, v{acc+4*q+2*p}, v{acc+4*q+2*p+1}")
        a(f"buffer_store_dwordx4 v[{U+4*q}:{U+4*q+3}], v12, {sr(S_WS)}, s60 offen offset:{128*q} {st_flags}")
```

```python
import sys, math
from spec import *

OPT = set(sys.argv[2:])
Stamps.on = "stamp" in OPT
if "cyc" in OPT: Stamps.op = "s_memtime"
Trace.on = "trace" in OPT
TM, TL, TH, T3 = Trace("main", 10), Trace("loader", 31), Trace("h12", 255), Trace("h3", 31)
LSLEEP[0] = 1 if "lsleep" in OPT else 0
NAME = "parallel_sum__spectral_gfnet__glu_gated_swiglu__prompt_kernel"
HEADER = open("parallel_sum__spectral_gfnet__glu_gated_swiglu__prompt.s.ref").read().split("; Override")[0]
WT = "sc0 sc1"
RD = "" if "rdplain" in OPT else "sc1"
GF_EPOCH, MBOX = WS_FLAG, WS_FLAG + 0x10000
S_MB, S_DBG = 64, 66
FL_HS, FL_HSF = MISC + 112, MISC + 128
FL_Z_CNT, FL_E_CNT, FL_HLVL, FL_FULL2, FL_GO, FL_FULLE = MISC + 40, MISC + 44, MISC + 48, MISC + 64, MISC + 80, MISC + 96
SCRATCH = MISC + 1024
GSPIN = 1 << 14
CPRIO = 0 if "cp0" in OPT else 2
PSLEEP = 24 if "slowpoll" in OPT else 2
HWT = "" if "hplain" in OPT else WT
S_I, S_J, S_P, S_NP, S_ROT, S_T, S_CJ, S_RES, S_TAG, S_HW, S_COL = 84, 85, 86, 87, 88, 89, 90, 91, 5, 4, 83

class DsQ:
    def __init__(self, a): self.a = a; self.q = []
    def op(self, text, tag=None): self.a(text); self.q.append(tag)
    def wait(self, tag):
        idx = [i for i, t in enumerate(self.q) if t == tag]
        if not idx: return
        n = len(self.q) - 1 - idx[-1]
        assert n <= 15, n
        self.a(f"s_waitcnt lgkmcnt({n})")
        self.q = self.q[idx[-1] + 1:]

PJ = [(43 * j) >> 4 for j in range(17)]
ORDER = [PJ[j] for j in range(16)] + [PJ[j+1] - 1 for j in range(16)] + [PJ[j] + 1 for j in range(16) if PJ[j+1] - PJ[j] == 3]

NL, NS = 10, 7
HST = 18 * SLOT
def plan_slots():
    free = [(16, 0), (17, 0)] + [(4 * w + c, c + 1) for c in range(4) for w in range(4)]
    cells = {}
    def alloc(key, release):
        free.sort(key=lambda t: t[1])
        s, req = free.pop(0)
        cells[key] = (s, req)
        free.append((s, release))
    for q in range(4):
        alloc(("A", "X", q), 5 + q); alloc(("C", "X", q), 13 + q); alloc(("A", "Y", q), 5 + q)
    for q in range(4):
        alloc(("B", "Y", q), 9 + q); alloc(("C", "Y", q), 13 + q); alloc(("B", "X", q), 9 + q)
    for c in range(22): alloc(("w", c), 17 + c)
    for c in range(8): alloc(("e", c), 99)
    return cells
CELLS = plan_slots()
LAST_REQ = max(r for (s, r) in CELLS.values())
TA = [CELLS[("w", c)][0] for c in (12, 13)]; TB = [CELLS[("w", c)][0] for c in (14, 15, 16, 17)]

def ids_early(a):
    a(f"s_bfe_u32 s40, s2, 0x20003\ns_and_b32 s41, s2, 3\ns_lshl2_add_u32 s{S_I}, s41, s40")
    a(f"s_bfe_u32 s40, s2, 0x10002\ns_lshr_b32 s41, s2, 5\ns_lshl3_add_u32 s{S_J}, s40, s41")
    a(f"s_add_u32 s{S_ROT}, s{S_I}, s{S_J}\ns_and_b32 s{S_ROT}, s{S_ROT}, 3")

def ids_late(a):
    a(f"s_mul_i32 s{S_P}, s{S_J}, 43\ns_add_u32 s{S_NP}, s{S_P}, 43\ns_lshr_b32 s{S_P}, s{S_P}, 4\ns_lshr_b32 s{S_NP}, s{S_NP}, 4\ns_sub_u32 s{S_NP}, s{S_NP}, s{S_P}")
    a(f"s_and_b32 s40, s2, 3\ns_bfe_u32 s41, s2, 0x10002\ns_lshl1_add_u32 s40, s40, s41\ns_bfe_u32 s41, s2, 0x20003\ns_lshl2_add_u32 s{S_T}, s40, s41\ns_lshr_b32 s{S_CJ}, s2, 5")
    a(f"s_lshl_b32 s{S_COL}, s{S_CJ}, 5\ns_add_u32 s{S_COL}, s{S_COL}, s{S_T}")
    for d, src, n in ((S_W1, 72, 512*2752), (S_W3, 74, 512*2752), (S_W2, 76, 1376*1024), (S_OUT, 78, 2048*1024)):
        a(f"s_mov_b64 s[{d}:{d+1}], s[{src}:{src+1}]\ns_mov_b32 s{d+2}, {n}\ns_mov_b32 s{d+3}, 0x20000")
    a(f"s_mov_b32 s{S_WS+2}, 0x10000000\ns_mov_b32 s{S_WS+3}, 0x20000")
    a(f"s_add_u32 s80, s{S_WS}, {GF_EPOCH}\ns_addc_u32 s81, s{S_WS+1}, 0")
    a(f"s_lshl_b32 s40, s2, 8\ns_add_u32 s40, s40, {MBOX}\ns_add_u32 s{S_MB}, s{S_WS}, s40\ns_addc_u32 s{S_MB+1}, s{S_WS+1}, 0")
    Stamps.clear(a)

def warm(a, segs):
    if "hop" not in OPT: return
    a("s_mov_b64 exec, 0")
    for sg in segs: a(f"s_call_b64 s[0:1], hs_{sg}_0")
    a("s_mov_b64 exec, -1")

def make_tag(a):
    a(f"s_mul_i32 s{S_TAG}, s{S_TAG}, 0x9E3779B1\ns_add_u32 s{S_TAG}, s{S_TAG}, 0x7F4A7C15")

def flag_store(a, soff, level, vt):
    a(f"s_add_u32 s40, s{S_TAG}, {level}\nv_mov_b32 v{vt}, s40")
    a("s_mov_b64 exec, 1")
    a(f"buffer_store_dword v{vt}, off, {sr(S_WS)}, s{soff} {WT}")
    a("s_mov_b64 exec, -1")

def h_post(a):
    a(f"s_cmp_eq_u32 s{S_NP}, 2\ns_mov_b32 s40, 0x10000\ns_cmov_b32 s40, 0x10100\nv_mov_b32 v0, s40\nv_lshlrev_b32 v2, 13, v1")
    a("s_mov_b64 exec, 0xff")
    a(f"buffer_atomic_add v0, v2, {sr(S_WS)}, s59 offen sc1")
    a("s_mov_b64 exec, -1")

def wg_signal(a, cnt_word, n, event, vaddr, vone, vt):
    zf = a.label("zf")
    a("s_mov_b64 exec, 1")
    a(f"ds_add_rtn_u32 v{vt}, v{vaddr}, v{vone} offset:{cnt_word - MISC}\ns_mov_b64 exec, -1\ns_waitcnt lgkmcnt(0)\nv_readfirstlane_b32 s40, v{vt}")
    a(f"s_cmp_lg_u32 s40, {n - 1}\ns_cbranch_scc1 {zf}")
    a(f"s_and_b32 s43, s2, 1\ns_lshl_b32 s41, s43, 7\ns_add_u32 s41, s41, {4*event}\ns_mov_b32 s40, 1")
    a(f"s_atomic_add s40, s[{S_DBG}:{S_DBG+1}], s41 glc\ns_waitcnt lgkmcnt(0)")
    a(f"s_and_b32 s40, s40, 127\ns_cmp_lg_u32 s40, 127\ns_cbranch_scc1 {zf}")
    a(f"s_lshl_b32 s43, s43, 2\ns_add_u32 s43, s43, {MBOX + 8*event}\ns_add_u32 s40, s{S_TAG}, 1\nv_mov_b32 v{vt}, s40\nv_lshlrev_b32 v{vt+1}, 8, v1")
    for i in range(4):
        a(f"buffer_store_dword v{vt}, v{vt+1}, {sr(S_WS)}, s43 offen {WT}\ns_add_u32 s43, s43, 0x4000")
    a(f"{zf}:")

def wait_go(a, event):
    top, done = a.label("gp"), a.label("gpd")
    a(f"s_mov_b32 s41, {GSPIN}\ns_add_u32 s43, s{S_TAG}, 1")
    a(f"{top}:")
    a(f"s_load_dwordx2 s[44:45], s[{S_MB}:{S_MB+1}], {8*event} glc\ns_waitcnt lgkmcnt(0)")
    a(f"s_xor_b32 s44, s44, s43\ns_xor_b32 s45, s45, s43\ns_or_b32 s44, s44, s45\ns_cbranch_scc0 {done}")
    a(f"s_sub_u32 s41, s41, 1\ns_cbranch_scc0 {top}")
    a(f"{done}:")

def level_load(a):
    a(f"s_load_dword s53, s[{S_MB}:{S_MB+1}], s54 glc")

def level_test(a, need):
    a(f"s_bitcmp1_b32 s53, {8 * need - 4}")

def pair_table(a, vt, t1, t2):
    a(f"s_and_b32 s40, s{S_T}, 3\ns_lshl1_add_u32 s40, s40, s{S_CJ}\ns_lshl_b32 s40, s40, 1\ns_and_b32 s40, s40, 15\ns_mul_i32 s41, s40, 11\ns_lshr_b32 s41, s41, 4\ns_sub_u32 s41, s41, 32")
    a(f"v_add_u32 v{t1}, s41, v1\nv_subrev_u32 v{t2}, 11, v{t1}\nv_min_u32 v{t1}, v{t1}, v{t2}")
    a(f"v_lshrrev_b32 v{t2}, 1, v{t1}\nv_add3_u32 v{t1}, v{t1}, v{t2}, 1\nv_min_u32 v{t1}, 15, v{t1}")
    a(f"v_add_u32 v{t2}, s40, v1\nv_and_b32 v{t2}, 15, v{t2}\nv_cmp_gt_u32 vcc, 32, v1\nv_cndmask_b32 v{t1}, v{t1}, v{t2}, vcc\nv_mul_u32_u24 v{t1}, 43, v{t1}")
    a(f"v_cndmask_b32 v{t2}, 16, 27, vcc\nv_cmp_gt_u32 vcc, 16, v1\nv_cndmask_b32 v{t2}, v{t2}, 0, vcc\nv_add_u32 v{t1}, v{t1}, v{t2}\nv_lshrrev_b32 v{vt}, 4, v{t1}")

def h_wait(a, need, before=None):
    top, done = a.label("hp"), a.label("hpd")
    level_test(a, need)
    a(f"s_cbranch_scc1 {done}")
    if before: before()
    a(f"s_mov_b32 s41, {GSPIN}")
    a(f"{top}:")
    level_load(a); a("s_waitcnt lgkmcnt(0)"); level_test(a, need)
    a(f"s_cbranch_scc1 {done}\ns_sub_u32 s41, s41, 1\ns_cbranch_scc0 {top}")
    a(f"{done}:")

def mbox_off(a, dst, grp):
    a(f"s_bfe_u32 s40, s{grp}, 0x20003\ns_and_b32 s41, s{grp}, 4\ns_add_u32 s40, s40, s41\ns_and_b32 s41, s{grp}, 3\ns_lshl3_add_u32 s{dst}, s41, s40\ns_lshl_b32 s{dst}, s{dst}, 8")
    a(f"s_lshr_b32 s40, s{grp}, 5\ns_lshl2_add_u32 s{dst}, s40, s{dst}\ns_add_u32 s{dst}, s{dst}, {MBOX + 128}")

def check(a, stubs, scache, need, areg, off, vt, minof=1, before_spin=None):
    back, sl = a.label("fb"), a.label("fs")
    a(f"s_cmp_ge_u32 s{scache}, {need}")
    a(f"s_cbranch_scc0 {sl}")
    a(f"{back}:")
    stubs.append((sl, back, scache, need, areg, off, vt, minof, before_spin))

def emit_stubs(a, stubs):
    for (sl, back, sc, need, areg, off, vt, minof, before_spin) in stubs:
        a(f"{sl}:")
        if before_spin:
            a(f"ds_read_b32 v{vt}, v{areg} offset:{off}\ns_waitcnt lgkmcnt(0)\nv_readfirstlane_b32 s{sc}, v{vt}")
            a(f"s_cmp_ge_u32 s{sc}, {need}\ns_cbranch_scc1 {back}")
            before_spin()
        lds_wait_ge(a, areg, off, need, vt, sc, 41, minof=minof, sleep=1)
        a(f"s_branch {back}")

X0, ACC, AF, PD = 128, (64, 96), 32, 3

def x_setup(a):
    a(f"s_and_b32 s40, s3, 1\ns_lshl1_add_u32 s50, s{S_I}, s40\ns_lshr_b32 s41, s3, 1\ns_lshl_b32 s41, s41, 5\ns_add_u32 s50, s50, s41")
    a("s_lshl_b32 s51, s3, 15")
    a("s_lshr_b32 s41, s50, 3\ns_lshl_b32 s41, s41, 18\ns_and_b32 s42, s50, 7\ns_lshl_b32 s42, s42, 12\ns_add_u32 s56, s41, s42")
    a(f"s_lshl_b32 s40, s{S_ROT}, 8\ns_add_u32 s52, s56, s40")
    a(f"s_lshr_b32 s63, s{S_J}, 1\ns_and_b32 s63, s63, 6")
    a("v_lshrrev_b32 v20, 4, v1\nv_and_b32 v21, 15, v1\nv_xor_b32 v21, v21, v20\nv_lshlrev_b32 v21, 4, v21\nv_lshl_add_u32 v20, v20, 10, v21")
    a("s_and_b32 s40, s63, 2\ns_lshl_b32 s40, s40, 6\nv_xor_b32 v16, s40, v20\nv_xor_b32 v17, 64, v16\nv_xor_b32 v18, 0x80, v16\nv_xor_b32 v19, 0x80, v17")
    a("s_lshl_b32 s63, s63, 10")

def x_setup_late(a):
    for c in range(1, 4):
        a(f"s_add_u32 s40, s{S_ROT}, {c}\ns_and_b32 s40, s40, 3\ns_lshl_b32 s40, s40, 8\ns_add_u32 s{52+c}, s56, s40")

def x_issue(a, c, between=None):
    a(f"s_add_u32 s41, s51, {c*SLOT}" if c else "s_mov_b32 s41, s51")
    for e in range(8):
        a(f"s_xor_b32 s42, s63, {e << 10}" if e else "s_mov_b32 s42, s63")
        a("s_add_u32 m0, s41, s42\ns_lshl_b32 s42, s42, 5")
        a(f"s_add_u32 s40, s42, s{52+c}")
        a(f"buffer_load_dwordx4 v{16+(e&3)}, {sr(S_X)}, s40 offen lds")
        if between: between(e)

def epilogue_ops(acc, fb_sgpr, packed):
    ops = []; tail = []
    for tau in range(2):
        out = 24 + 4 * tau
        for p in range(4):
            g, u = acc + 16*tau + 2*p, acc + 16*tau + 8 + 2*p
            e, q = 16 + 4*(p & 1), 18 + 4*(p & 1)
            if packed:
                ops += [f"v_pk_mul_f32 v[{e}:{e+1}], v[{g}:{g+1}], v[10:11] op_sel_hi:[1,0]",
                        f"v_pk_mul_f32 v[{q}:{q+1}], v[{g}:{g+1}], v[{u}:{u+1}]",
                        f"v_exp_f32 v{e}, v{e}", f"v_exp_f32 v{e+1}, v{e+1}",
                        f"v_pk_fma_f32 v[{e}:{e+1}], v[{e}:{e+1}], v[10:11], v[10:11] op_sel:[0,1,1] op_sel_hi:[1,1,1]",
                        f"v_rcp_f32 v{e}, v{e}", f"v_rcp_f32 v{e+1}, v{e+1}",
                        f"v_pk_mul_f32 v[{q}:{q+1}], v[{q}:{q+1}], v[{e}:{e+1}]"]
            else:
                ops += [f"v_mul_f32 v{e}, v10, v{g}", f"v_mul_f32 v{e+1}, v10, v{g+1}",
                        f"v_exp_f32 v{e}, v{e}", f"v_mul_f32 v{q}, v{g}, v{u}",
                        f"v_exp_f32 v{e+1}, v{e+1}", f"v_mul_f32 v{q+1}, v{g+1}, v{u+1}",
                        f"v_fma_f32 v{e}, v{e}, v11, v11", f"v_fma_f32 v{e+1}, v{e+1}, v11, v11",
                        f"v_rcp_f32 v{e}, v{e}", f"v_nop", f"v_rcp_f32 v{e+1}, v{e+1}",
                        f"v_mul_f32 v{q}, v{q}, v{e}", f"v_mul_f32 v{q+1}, v{q+1}, v{e+1}"]
                ops.remove("v_nop")
            ops.append(f"v_cvt_pk_bf16_f32 v{out+p}, v{q}, v{q+1}")
        st = f"buffer_store_dwordx4 v[{out}:{out+3}], v3, {sr(S_WS)}, s{fb_sgpr} offen offset:{1024*tau} {HWT}"
        if packed: ops.append(st)
        else: tail.append(("ds", f"ds_write_b128 v16, v[{out}:{out+3}] offset:{1024*tau}"))
    if not packed:
        tail = ["v_add_u32 v16, s55, v3", f"v_mov_b32 v17, {fb_sgpr - 59}"] + tail + [("ds", f"ds_write_b32 v9, v17 offset:{FL_HS - MISC}")]
    return ops + tail

def HB(p): return X0 + 4*p if p < 32 else 84 + 4*(p - 32)
def h_pre(a, p): a(f"v_readlane_b32 s{68 + p % 4}, v8, {p}")
def h_load(a, p): a(f"buffer_load_dwordx4 v[{HB(p)}:{HB(p)+3}], v3, {sr(S_WS)}, s{68 + p % 4} offen {RD}")
def h_burst(a, lo, hi):
    for p in range(lo, min(lo + 3, hi)): h_pre(a, p)
    for p in range(lo, hi):
        if p + 3 < hi: h_pre(a, p + 3)
        h_load(a, p)

def g1_main(a):
    dq = DsQ(a); slow = []
    a(f"s_lshl_b32 s40, s3, 2\ns_add_u32 s40, s40, {MISC}\nv_mov_b32 v9, s40")
    a("v_lshlrev_b32 v3, 4, v1")
    a("v_and_b32 v20, 31, v1\nv_lshrrev_b32 v21, 5, v1\nv_and_b32 v22, 15, v1\nv_xor_b32 v21, v21, v22\nv_lshlrev_b32 v21, 4, v21")
    a("v_lshl_add_u32 v24, v20, 8, v21\nv_add_u32 v24, s51, v24")
    for j in range(1, 8): a(f"v_xor_b32 v{24+j}, {32*j}, v24")
    a("v_bfe_u32 v20, v1, 4, 1\nv_lshrrev_b32 v21, 5, v1\nv_bfe_u32 v22, v1, 2, 2")
    a(f"v_add_u32 v8, s{S_P}, v22\nv_and_b32 v8, 1, v8")
    a("v_lshrrev_b32 v22, 1, v22\nv_lshl_add_u32 v22, v21, 2, v22\nv_lshl_add_u32 v22, v8, 1, v22\nv_lshlrev_b32 v22, 6, v22")
    a("v_lshl_add_u32 v22, v20, 12, v22\nv_lshl_add_u32 v22, v20, 5, v22")
    a("v_and_b32 v21, 1, v1\nv_lshl_add_u32 v22, v21, 4, v22\nv_bfe_u32 v21, v1, 1, 1\nv_lshl_add_u32 v4, v21, 3, v22")
    a("v_xor_b32 v5, 128, v4\nv_xor_b32 v6, 32, v4\nv_xor_b32 v7, 160, v4")
    a("s_mov_b32 s56, 0x3f803f80\ns_mov_b32 s57, 0x00003f80\ns_mov_b32 s58, 0x3f800000")
    a(f"s_mul_i32 s60, s50, 86\ns_lshl_b32 s40, s{S_P}, 1\ns_add_u32 s60, s60, s40\ns_lshl_b32 s60, s60, 10\ns_add_u32 s60, s60, {WS_H}")
    a(f"s_add_u32 s62, s60, 2048\ns_sub_u32 s40, s{S_NP}, 1\ns_lshl_b32 s40, s40, 11\ns_add_u32 s61, s60, s40")
    mbox_off(a, 59, 50)
    def reads(c):
        for j in range(8):
            r = X0 + 32*c + 4*j
            dq.op(f"ds_read_b128 v[{r}:{r+3}], v{24+j} offset:{c*SLOT}", ("x", c, j))
        a(f"v_mov_b32 v14, {c + 1}")
        dq.op(f"ds_write_b32 v9, v14 offset:{FL_FREE - MISC}")
    def sums(c, only=None):
        for j in (range(8) if only is None else [only]):
            if j % 2 == 0: dq.wait(("x", c, j + 1))
            for r in range(X0 + 32*c + 4*j, X0 + 32*c + 4*j + 4):
                first = (r == X0)
                a(f"v_dot2_f32_bf16 v10, v{r}, s56, {'0' if first else 'v10'}")
                a(f"v_dot2_f32_bf16 v11, v{r}, v{r}, {'0' if first else 'v11'}")
    x_issue(a, 1)
    wd = a.label("wd")
    for w, segs in enumerate((["m1"], ["m2"], ["ld"], ["c1"])):
        nx = a.label("wn")
        if w < 3: a(f"s_cmp_lg_u32 s3, {w}\ns_cbranch_scc1 {nx}")
        warm(a, segs)
        if w < 3: a(f"s_branch {wd}\n{nx}:")
    a(f"{wd}:")
    Stamps.at(a, 6)
    a("s_waitcnt vmcnt(8)"); Stamps.at(a, 1); reads(0)
    x_issue(a, 2, lambda e: sums(0, e))
    a("s_waitcnt vmcnt(8)"); reads(1)
    x_issue(a, 3, lambda e: sums(1, e))
    a("s_waitcnt vmcnt(8)"); reads(2); sums(2)
    a("s_waitcnt vmcnt(0)"); Stamps.at(a, 2); reads(3)
    sums(3)
    a("v_mov_b32 v12, v10\nv_mov_b32 v13, v11")
    a("v_permlane32_swap_b32 v12, v10\nv_permlane32_swap_b32 v13, v11")
    a("v_add_f32 v10, v10, v12\nv_add_f32 v11, v11, v13")
    sub = Asm(); ln_scalars(sub, 10, 11, None)
    a(sub.lines[0])
    a("v_cvt_pk_bf16_f32 v31, -v10, -v10\nv_and_b32 v31, 0xffff0000, v31")
    rest = sub.lines[1:] + [f"v_mul_f32 v10, {f32(-math.log2(math.e))}, v11", "v_mul_f32 v11, v11, v11", "v_rcp_f32 v11, v11"]
    for j in range(32):
        for r in range(4):
            x = X0 + 4*j + r; t = 16 + 2*r
            a(f"v_dot2_f32_bf16 v{t}, v{x}, s57, v31\nv_dot2_f32_bf16 v{t+1}, v{x}, s58, v31")
        if j < len(rest): a(rest[j])
        for r in range(4): a(f"v_cvt_pk_bf16_f32 v{X0+4*j+r}, v{16+2*r}, v{17+2*r}")
        if j == 24: dq.op(f"ds_read_b32 v2, v9 offset:{FL_FULL - MISC}", "poll")
    PASS = "ABC"
    def base_calc(r):
        ps, q = PASS[r // 32], (r % 32) // 8
        bx, by = CELLS[(ps, "X", q)][0] * SLOT, CELLS[(ps, "Y", q)][0] * SLOT
        a(f"v_mul_i32_i24 v0, {by - bx}, v8\nv_add_u32 v0, {bx}, v0")
        return 8
    def full_check(r):
        ps, q = PASS[r // 32], (r % 32) // 8
        need_full = {"A": q + 1, "B": q + 5, "C": 0}[ps]
        if not need_full: return 0
        back, sl = a.label("g1b"), a.label("g1s")
        dq.wait("poll")
        a(f"v_readfirstlane_b32 s40, v2\ns_cmp_ge_u32 s40, {need_full}\ns_cbranch_scc0 {sl}")
        a(f"{back}:")
        slow.append((sl, back, need_full, FL_FULL))
        return 16
    def addr(tau):
        for i in (2*tau, 2*tau + 1): a(f"v_add_u32 v{12+i}, v0, v{4+i}")
        return 8
    def wreads(r, tau):
        j = r % 8; b = AF + 8 * (r % 4); cost = 8
        for rd in range(2):
            dq.op(f"ds_read_b64_tr_b16 v[{b+4*tau+2*rd}:{b+4*tau+2*rd+1}], v{12+2*tau+rd} offset:{512*j}", ("w", r))
        nxt = r - j + 8
        if nxt < 96:
            if j == 6 and tau == 0: cost += base_calc(nxt)
            if j == 6 and tau == 1: cost += full_check(nxt)
            if j == 7: cost += addr(tau)
            if j == 3 and tau == 1 and nxt < 64:
                dq.op(f"ds_read_b32 v2, v9 offset:{FL_FULL - MISC}", "poll"); cost += 4
        if j == 7 and tau == 1:
            a(f"v_mov_b32 v2, {5 + r // 8}")
            dq.op(f"ds_write_b32 v9, v2 offset:{FL_FREE - MISC}"); cost += 8
        return cost
    a(f";@sp {HM}")
    base_calc(0); addr(0); addr(1); full_check(0)
    for g in range(PD): wreads(g, 0); wreads(g, 1)
    Stamps.at(a, 3)
    fin2, done = a.label("g1fin2"), a.label("g1done")
    EP = {0: [], 1: epilogue_ops(ACC[0], 60, False), 2: epilogue_ops(ACC[1], 61, False)}
    opcost = lambda o: 8 if isinstance(o, tuple) or o.startswith(("v_exp", "v_rcp")) else 4
    a(f"s_lshl_b32 s55, s3, 11\ns_add_u32 s55, s55, {HST}\ns_and_b32 s54, s3, 1\ns_lshl_b32 s54, s54, 2\ns_add_u32 s54, s54, 128")
    def g2_setup(tab, t1, t2):
        sub = Asm()
        sub(f"s_and_b32 s40, s3, 1\ns_lshl_b32 s40, s40, 5\ns_add_u32 s40, s40, s{S_T}\ns_mul_i32 s50, s40, 86")
        sub(f"s_lshr_b32 s51, s3, 1\ns_add_u32 s50, s50, s51\ns_lshl_b32 s50, s50, 10\ns_add_u32 s50, s50, {WS_H}")
        pair_table(sub, tab, t1, t2)
        sub(f"v_lshlrev_b32 v{tab}, 11, v{tab}\nv_add_u32 v{tab}, s50, v{tab}")
        return [l.strip() for l in sub.lines]
    def step(g, extra=None):
        ps, j = g // 32, g % 32
        acc = ACC[ps & 1]; ep = EP[ps]
        b = AF + 8 * (g % 4)
        dq.wait(("w", g))
        for tau in range(2):
            d = acc + 16 * tau
            a(f"v_mfma_f32_32x32x16_bf16 v[{d}:{d+15}], v[{b+4*tau}:{b+4*tau+3}], v[{X0+4*j}:{X0+4*j+3}], " + ("0" if j == 0 else f"v[{d}:{d+15}]"))
            cost = 4 * tau
            if g + PD < 96: cost += wreads(g + PD, tau)
            if ps == 2 and j == 13 and tau == 1:
                dq.op(f"ds_read_b32 v2, v9 offset:{FL_HSF - MISC}", "poll"); cost += 4
            if ps == 2 and j == HSJ and tau == 0:
                back, sl = a.label("g1b"), a.label("g1s")
                dq.wait("poll")
                a(f"v_readfirstlane_b32 s40, v2\ns_cmp_ge_u32 s40, 1\ns_cbranch_scc0 {sl}\n{back}:")
                slow.append((sl, back, 1, FL_HSF)); cost += 16
            if ps == 2 and j == 20 and tau == 0: level_load(a); cost += 4
            while ep and j >= 1 and cost + opcost(ep[0]) <= GAPB:
                o = ep.pop(0); cost += opcost(o)
                if isinstance(o, tuple): dq.op(o[1])
                else: a(o)
                if not ep: print("fill list", ps, "ends at step", j)
            if extra: extra(tau)
    for g in range(96 - ET):
        if g == 32: a(f";@seg m2 {HM}")
        step(g)
        if g % 32 == 31:
            assert not EP[g // 32]
            Stamps.at(a, 4 + g // 32)
        if g == 63:
            a(f"s_cmp_eq_u32 s{S_NP}, 2\ns_cbranch_scc1 {fin2}")
    assert not EP[2]
    for o in g2_setup(8, 16, 17): a(o)
    late = a.label("g1late")
    a("s_waitcnt lgkmcnt(0)"); dq.q = []
    level_test(a, 1)
    a(f"s_cbranch_scc0 {late}")
    for p in range(3): h_pre(a, p)
    nxt = [0]
    def early(tau):
        p = nxt[0]; h_pre(a, p + 3); h_load(a, p); nxt[0] += 1
    for g in range(96 - ET, 96): step(g, early)
    Stamps.at(a, 8)
    fin = epilogue_ops(ACC[0], 62, True)
    sts = [o for o in fin if o.startswith("buffer")]; fin = [o for o in fin if not o.startswith("buffer")]
    for n, o in enumerate(fin):
        a(o)
        if n % 8 == 7 and nxt[0] < 16:
            p = nxt[0]
            if p + 3 < 16: h_pre(a, p + 3)
            h_load(a, p); nxt[0] += 1
    assert nxt[0] == 16, nxt
    for o in sts: a(o)
    Stamps.at(a, 9)
    a(f"s_mov_b32 s57, 0\ns_branch {done}")
    a(f"{late}:")
    dq.q = []
    for g in range(96 - ET, 96): step(g)
    level_load(a)
    for o in epilogue_ops(ACC[0], 62, True): a(o)
    a("s_waitcnt lgkmcnt(0)")
    level_test(a, 1)
    a("s_cbranch_scc0 k_g2late\ns_mov_b32 s57, 2\ns_branch k_g2mid")
    for (sl, back, n, word) in slow:
        a(f"{sl}:")
        lds_wait_ge(a, 9, word - MISC, n, 2, 40, 41)
        a(f"s_branch {back}")
    a(f"{fin2}:")
    a(f"v_mov_b32 v0, 16\nds_write_b32 v9, v0 offset:{FL_FREE - MISC}")
    a("s_nop 15")
    for o in epilogue_ops(ACC[1], 61, True): a(o)
    for o in g2_setup(8, 16, 17): a(o)
    lds_wait_ge(a, 9, FL_HSF - MISC, 1, 2, 40, 41)
    a("s_mov_b32 s53, 0")
    a("k_g2late:")
    a("s_waitcnt vmcnt(0)"); h_post(a)
    a("s_mov_b32 s57, 1")
    h_wait(a, 1)
    a("k_g2mid:")
    h_burst(a, 0, 16)
    a(f"{done}:")

ACC2, AF2 = 52, 20

def slot_sel(a, dst, idx, slots):
    a(f"s_mov_b32 s{dst}, {slots[0]*SLOT}")
    for i in range(1, len(slots)):
        a(f"s_cmp_eq_u32 s{idx}, {i}\ns_cmov_b32 s{dst}, {slots[i]*SLOT}")

def g2_main(a):
    dq = DsQ(a); stubs = []
    TM.start(a); TM(a, "T0")
    level_load(a)
    vm = [("h", p) for p in range(16)]
    a("s_mov_b32 s52, 0\ns_mov_b32 s55, 0")
    a("v_bfe_u32 v16, v1, 2, 2\nv_lshrrev_b32 v17, 5, v1\nv_lshl_add_u32 v17, v17, 3, v16\ns_lshl_b32 s40, s51, 4\nv_add_u32 v17, s40, v17")
    a("v_lshlrev_b32 v17, 7, v17\nv_lshrrev_b32 v16, 1, v16\nv_lshl_add_u32 v17, v16, 6, v17")
    a("v_bfe_u32 v16, v1, 4, 1\nv_lshl_add_u32 v17, v16, 5, v17\nv_and_b32 v16, 3, v1\nv_lshl_add_u32 v4, v16, 3, v17")
    a("v_xor_b32 v5, 64, v4\nv_add_u32 v6, 0x10000, v4\nv_add_u32 v7, 0x10000, v5\nv_add_u32 v18, 0x20000, v4\nv_add_u32 v19, 0x20000, v5")
    Stamps.at(a, 11)
    a(f";@sp {HM}")
    def ensure_posted(wait, only=None):
        sk = a.label("ep")
        a(f"s_cmp_eq_u32 s57, 1\ns_cbranch_scc1 {sk}" if only is None else f"s_cmp_lg_u32 s57, {only}\ns_cbranch_scc1 {sk}")
        a(wait); h_post(a); a(f"s_mov_b32 s57, 1\n{sk}:")
    ensure_posted("s_waitcnt vmcnt(16)", only=2)
    AR = [4, 6, 18]
    def reads(p, dl):
        c = p // 2
        if p % 2 == 0 and dl == 0: check(a, stubs, 52, c + 1, 9, FL_FULL2 - MISC, 2)
        base = CELLS[("w", c)][0] * SLOT + (p % 2) * 4096
        w, off = base >> 16, base & 0xffff
        b = AF2 + 8 * (p % 4)
        for rd in range(2):
            dq.op(f"ds_read_b64_tr_b16 v[{b+4*dl+2*rd}:{b+4*dl+2*rd+1}], v{AR[w]+dl} offset:{off + 512*rd}", ("w", p))
        if dl == 1 and p % 2 == 1 and c <= 17:
            a(f"v_mov_b32 v0, {17 + c}")
            dq.op(f"ds_write_b32 v9, v0 offset:{FL_FREE - MISC}")
    for p in range(PD): reads(p, 0); reads(p, 1)
    for p in range(43):
        if p == L2P:
            a("s_waitcnt lgkmcnt(0)"); dq.q = []
            h_wait(a, 2, lambda: ensure_posted("s_waitcnt vmcnt(0)"))
            for q in range(16, 19): h_pre(a, q)
        if p == PSTP: ensure_posted(f"s_waitcnt vmcnt({len(vm) - 16})")
        if p in L3TRY:
            skip = a.label("l3s")
            a(f"s_cmp_lg_u32 s55, 0\ns_cbranch_scc1 {skip}\ns_waitcnt lgkmcnt(0)")
            level_test(a, 3)
            a(f"s_cbranch_scc0 {skip}\ns_call_b64 s[46:47], k_l3burst")
            a(f"{skip}:")
        if p + 5 in L3TRY + (L3P,): level_load(a)
        if p == L3P:
            skip = a.label("l3s")
            Stamps.at(a, 12)
            a(f"s_waitcnt lgkmcnt(0)\ns_cmp_lg_u32 s55, 0\ns_cbranch_scc1 {skip}")
            h_wait(a, 3)
            a("s_call_b64 s[46:47], k_l3burst")
            a(f"{skip}:")
            Stamps.at(a, 13)
            vm += [("h", q) for q in range(32, 43)]
        b = AF2 + 8 * (p % 4)
        a(f"s_waitcnt vmcnt({len(vm) - 1 - vm.index(('h', p))})")
        if p % 4 == 0: TM(a, f"p{p}")
        dq.wait(("w", p))
        for dl in range(2):
            d = ACC2 + 16 * dl
            a(f"v_mfma_f32_32x32x16_bf16 v[{d}:{d+15}], v[{b+4*dl}:{b+4*dl+3}], v[{HB(p)}:{HB(p)+3}], " + ("0" if p == 0 else f"v[{d}:{d+15}]"))
            if p + PD < 43: reads(p + PD, dl)
        q = p - L2P + 16
        if 16 <= q < 32:
            if q + 3 < 32: h_pre(a, q + 3)
            h_load(a, q); vm.append(("h", q))
        if q == 32:
            res_issue(a, 12, 11); vm.append("r")
        if p == 40:
            slot_sel(a, 40, 3, TB)
            a("v_and_b32 v16, 31, v1\nv_lshrrev_b32 v17, 5, v1\nv_and_b32 v18, 7, v1\nv_xor_b32 v17, v17, v18\nv_lshlrev_b32 v17, 4, v17\nv_lshl_add_u32 v16, v16, 8, v17\nv_add_u32 v16, s40, v16")
            for g in range(1, 4): a(f"v_xor_b32 v{16+g}, {32*g}, v16")
            a(f"v_mov_b32 v8, {MISC}")
    TM(a, "loopend")
    lds_wait_ge(a, 8, FL_FREE - MISC, 34, 4, 40, 41, minof=4)
    Stamps.at(a, 14)
    for dl in range(2):
        for g in range(4):
            r = ACC2 + 16*dl + 4*g
            a(f"ds_write_b128 v{16+g}, v[{r}:{r+3}] offset:{128*dl}")
    TM(a, "written"); TM.park(a)
    a("s_branch k_fin")
    a("k_l3burst:")
    h_burst(a, 32, 43)
    a("s_mov_b32 s55, 1\ns_setpc_b64 s[46:47]")
    return stubs

def res_issue(a, dst, voff):
    a(f"s_lshr_b32 s40, s3, 2\ns_lshl_b32 s40, s40, 20\ns_lshr_b32 s41, s{S_T}, 3\ns_lshl_b32 s41, s41, 18\ns_add_u32 s40, s40, s41")
    a(f"s_and_b32 s41, s{S_T}, 7\ns_lshl_b32 s41, s41, 12\ns_add_u32 s40, s40, s41\ns_and_b32 s41, s3, 3\ns_lshl_b32 s41, s41, 16\ns_add_u32 s40, s40, s41")
    a(f"s_lshl_b32 s41, s{S_CJ}, 7\ns_add_u32 s{S_RES}, s40, s41")
    a(f"v_bfe_u32 v{dst}, v1, 3, 2\nv_and_b32 v{voff}, 7, v1\nv_lshlrev_b32 v{voff}, 4, v{voff}\nv_lshl_add_u32 v{voff}, v{dst}, 10, v{voff}")
    a(f"v_lshrrev_b32 v{dst}, 5, v1\nv_lshl_add_u32 v{voff}, v{dst}, 15, v{voff}")
    a(f"buffer_load_dwordx4 v[{dst}:{dst+3}], v{voff}, {sr(S_X)}, s{S_RES} offen")

def final_combine(a, xr, voff):
    a("s_and_b32 s40, s3, 3\ns_lshl_b32 s40, s40, 11\ns_lshr_b32 s41, s3, 2")
    slot_sel(a, 42, 41, TB[:2]); slot_sel(a, 43, 41, TB[2:])
    a("v_lshrrev_b32 v4, 3, v1\nv_and_b32 v5, 7, v1\nv_lshlrev_b32 v5, 1, v5\nv_xor_b32 v5, v5, v4\nv_lshlrev_b32 v5, 4, v5")
    a("v_lshl_add_u32 v4, v4, 8, v5\nv_add_u32 v4, s40, v4\nv_xor_b32 v5, 16, v4")
    a("v_add_u32 v6, s42, v4\nv_add_u32 v7, s42, v5\nv_add_u32 v8, s43, v4\nv_add_u32 v9, s43, v5")
    a(f"v_add_u32 v2, {TA[1]*SLOT}, v4\nv_add_u32 v3, {TA[1]*SLOT}, v5\nv_add_u32 v4, {TA[0]*SLOT}, v4\nv_add_u32 v5, {TA[0]*SLOT}, v5")
    a("s_lshl_b32 s41, s41, 31\ns_or_b32 s42, s41, 0x3f800000")
    a("s_waitcnt vmcnt(0)")
    XU = 84
    for p in range(4):
        a(f"v_lshlrev_b32 v{XU+2*p}, 16, v{xr+p}\nv_and_b32 v{XU+2*p+1}, 0xffff0000, v{xr+p}")
    if Trace.on: a("s_memtime s[100:101]\ns_waitcnt lgkmcnt(0)\nv_writelane_b32 v100, s100, 60")
    a("s_waitcnt lgkmcnt(0)\ns_barrier")
    if Trace.on: a("s_memtime s[100:101]\ns_waitcnt lgkmcnt(0)\nv_writelane_b32 v100, s100, 61")
    R = 20
    for q in range(2):
        a(f"ds_read_b128 v[{R+4*q}:{R+4*q+3}], v{4+q}")
        a(f"ds_read_b128 v[{R+8+4*q}:{R+8+4*q+3}], v{2+q}")
        a(f"ds_read_b128 v[{R+16+4*q}:{R+16+4*q+3}], v{6+q}")
        a(f"ds_read_b128 v[{R+24+4*q}:{R+24+4*q+3}], v{8+q}")
    for p in range(4):
        if p % 2 == 0: a(f"s_waitcnt lgkmcnt({4 if p == 0 else 0})")
        r = R + 2*p
        a(f"v_pk_fma_f32 v[{r}:{r+1}], v[{r+8}:{r+9}], s[42:43], v[{r}:{r+1}] op_sel_hi:[1,0,1]")
        a(f"v_pk_add_f32 v[{r+16}:{r+17}], v[{r+16}:{r+17}], v[{r+24}:{r+25}]")
        a(f"v_pk_add_f32 v[{r}:{r+1}], v[{r}:{r+1}], v[{XU+2*p}:{XU+2*p+1}]")
        a(f"v_pk_add_f32 v[{r}:{r+1}], v[{r}:{r+1}], v[{r+16}:{r+17}]")
        a(f"v_cvt_pk_bf16_f32 v{xr+p}, v{r}, v{r+1}")
    a(f"buffer_store_dwordx4 v[{xr}:{xr+3}], v{voff}, {sr(S_OUT)}, s{S_RES} offen")

def loader(a):
    a(f"v_mov_b32 v2, {MISC}")
    a("v_and_b32 v16, 3, v1\nv_lshl_add_u32 v16, v16, 2, v2")
    a("v_lshrrev_b32 v8, 2, v1\nv_and_b32 v9, 3, v1\nv_lshlrev_b32 v9, 4, v9\nv_xor_b32 v10, 2, v8")
    a("v_mul_u32_u24 v8, 5504, v8\nv_mul_u32_u24 v10, 5504, v10\nv_xor_b32 v11, 32, v9")
    a("v_add_u32 v4, v8, v9\nv_add_u32 v5, v8, v11\nv_add_u32 v6, v10, v9\nv_add_u32 v7, v10, v11")
    a("v_lshrrev_b32 v8, 3, v1\nv_and_b32 v9, 7, v1\nv_bfe_u32 v10, v1, 4, 1\nv_lshlrev_b32 v10, 2, v10\nv_xor_b32 v10, v10, v9")
    a("v_lshlrev_b32 v10, 4, v10\nv_lshl_add_u32 v17, v8, 10, v10")
    for q in range(4):
        a(f"s_add_u32 s40, s{S_ROT}, {q}\ns_and_b32 s40, s40, 3\ns_mul_i32 s{44+q}, s40, {128*2752}")
    a(f"s_and_b32 s40, s{S_P}, 1\ns_mul_i32 s48, s40, 2752\ns_sub_u32 s49, 2752, s48")
    a(f"s_lshl_b32 s40, s{S_P}, 6\ns_add_u32 s48, s48, s40\ns_add_u32 s49, s49, s40")
    a(f"s_lshl_b32 s50, s{S_CJ}, 7\ns_mov_b32 s52, 0")
    pair_table(a, 18, 19, 20)
    a("v_lshlrev_b32 v18, 15, v18\nv_add_u32 v18, s50, v18\nv_lshlrev_b32 v19, 4, v1")
    lds_wait_ge(a, 2, FL_A_DONE - MISC, 4, 12, 40, 41)
    if LGATE:
        a("s_waitcnt vmcnt(0)\nv_mov_b32 v3, 1"); wg_signal(a, FL_Z_CNT, 4, 0, 2, 3, 12)
    Stamps.at(a, 7)
    two, w2l = a.label("ld2"), a.label("ldw2")
    a(f"s_cmp_eq_u32 s{S_NP}, 2\ns_cbranch_scc1 {two}")
    class Pipe:
        def __init__(s): s.items = []; s.seen = 0
        def publish(s, it):
            if it[0] is None: return
            a(f"v_mov_b32 v3, {it[1]}\ns_mov_b64 exec, 15\nds_max_u32 v16, v3 offset:{it[0] - MISC}\ns_mov_b64 exec, -1")
        def probe(s, req, ok):
            a(f"s_call_b64 s[54:55], k_ldprobe\ns_cmp_ge_u32 s52, {req}\ns_cbranch_scc1 {ok}")
        def need(s, req):
            if req <= s.seen: return
            ok = a.label("ldok")
            a(f"s_cmp_ge_u32 s52, {req}\ns_cbranch_scc1 {ok}")
            for i, it in enumerate(s.items):
                if it[0] is None: continue
                s.probe(req, ok)
                a(f"s_waitcnt vmcnt({sum(x[2] for x in s.items[i+1:])})"); s.publish(it)
            lds_wait_ge(a, 2, FL_FREE - MISC, req, 12, 52, 41, minof=4, sleep=LSL)
            a(f"{ok}:")
            s.seen = req
        def done(s, word, val, cnt):
            s.items.append((word, val, cnt))
            while len(s.items) > 1 and sum(x[2] for x in s.items) > DEPTH:
                it = s.items.pop(0)
                a(f"s_waitcnt vmcnt({sum(x[2] for x in s.items)})"); s.publish(it)
        def flush(s, keep=0):
            while len(s.items) > keep:
                it = s.items.pop(0)
                a(f"s_waitcnt vmcnt({sum(x[2] for x in s.items)})"); s.publish(it)
    def variant(np_):
        pp = Pipe()
        for grp in range(8):
            st, q = grp // 4, grp % 4
            if st == 0: seq = [[("A", "X", 0), ("C", "X", 64)], [("A", "Y", 0)]]
            else:       seq = [[("C", "Y", 64), ("B", "Y", 64 * (np_ - 1))], [("B", "X", 64 * (np_ - 1))]]
            if np_ == 2: seq = [[c for c in s if c[0] != "C"] for s in seq]
            tot = 0
            for si, s in enumerate(seq):
                pp.need(max([CELLS[(c[0], c[1], q)][1] for c in s] + [LGATE]))
                cl = s[0][1]; ci = 0 if cl == "X" else 1; cnt = 0
                for g in range(4):
                    for mat in range(2):
                        for n, (ps, _, off) in enumerate(s):
                            dst = CELLS[(ps, cl, q)][0] * SLOT + mat * 4096 + g * 1024
                            neg = dst - off < 0
                            a(f"s_mov_b32 m0, {dst if neg else dst - off}")
                            if mat == 0 and n == 0:
                                a(f"s_add_u32 s42, s{44+q}, s{48+ci}" if g == 0 else f"s_add_u32 s42, s42, {32*2752}")
                            if neg:
                                a(f"s_add_u32 s43, s42, {off}\nbuffer_load_dwordx4 v{4+2*ci+mat}, {sr(S_W1 + 4*mat)}, s43 offen lds")
                            else:
                                a(f"buffer_load_dwordx4 v{4+2*ci+mat}, {sr(S_W1 + 4*mat)}, s42 offen offset:{off} lds")
                            cnt += 1
                tot += cnt
                if grp == 0 and si == 1 and not LGATE:
                    a(f"s_waitcnt vmcnt({tot})\nv_mov_b32 v3, 1"); wg_signal(a, FL_Z_CNT, 4, 0, 2, 3, 12)
                pp.done(FL_FULL if si == 1 else None, grp + 1, cnt)
            if grp in (1, 3, 5, 7): Stamps.at(a, 8 + grp // 2)
            if grp == 1: a(f"s_setprio {LPRIO}")
        while pp.items and pp.items[0][1] < 8:
            pp.flush(keep=len(pp.items) - 1)
        return pp
    p3 = variant(3)
    a(f"s_branch {w2l}")
    a("k_ldprobe:")
    a(f"ds_read_b128 v[12:15], v2 offset:{FL_FREE - MISC}\ns_waitcnt lgkmcnt(0)")
    a("v_min_u32 v12, v12, v13\nv_min3_u32 v12, v12, v14, v15\nv_readfirstlane_b32 s52, v12\ns_nop 0\ns_setpc_b64 s[54:55]")
    a(f"{two}:")
    p2 = variant(2)
    a(f"{w2l}:")
    pp = Pipe(); pp.items = [(FL_FULL, 8, 24)]; pp.seen = min(p3.seen, p2.seen)
    TL.start(a)
    for c in range(22):
        slot, req = CELLS[("w", c)]
        ps_ = list(range(2 * c, min(2 * c + 2, 43)))
        for p in ps_: a(f"v_readlane_b32 s{44 + p % 2}, v18, {p}")
        pp.need(req)
        if c % 2 == 0: TL(a, f"c{c}")
        for p in ps_:
            for g in range(4):
                a(f"s_mov_b32 m0, {slot*SLOT + (p % 2)*4096 + g*1024}")
                if g: a(f"s_add_u32 s{44 + p % 2}, s{44 + p % 2}, 8192")
                a(f"buffer_load_dwordx4 v17, {sr(S_W2)}, s{44 + p % 2} offen lds")
        pp.done(FL_FULL2, c + 1, 4 * len(ps_))
        if c in (17, 21): Stamps.at(a, 12 if c == 17 else 13)
    a("v_lshrrev_b32 v8, 4, v1\nv_bfe_u32 v9, v1, 2, 2\nv_xor_b32 v9, v9, v8\nv_lshlrev_b32 v5, 13, v8\nv_lshrrev_b32 v10, 1, v9\nv_lshl_add_u32 v5, v10, 12, v5")
    a("v_and_b32 v10, 1, v9\nv_lshl_add_u32 v5, v10, 6, v5\nv_and_b32 v10, 3, v1\nv_lshl_add_u32 v5, v10, 4, v5")
    a(f"s_lshl_b32 s46, s{S_T}, 7\ns_add_u32 s46, s46, {WS_E}")
    eg = a.label("eg")
    a(f"ds_read_b32 v12, v2 offset:{FL_GO - MISC}\ns_waitcnt lgkmcnt(0)\nv_readfirstlane_b32 s40, v12\ns_cmp_lg_u32 s40, 0\ns_cbranch_scc1 {eg}")
    for i, it in enumerate(pp.items):
        a(f"s_waitcnt vmcnt({sum(x[2] for x in pp.items[i+1:])})"); pp.publish(it)
    lds_wait_ge(a, 2, FL_GO - MISC, 1, 12, 40, 41, sleep=1)
    a(f"{eg}:")
    for c in range(8):
        slot, req = CELLS[("e", c)]
        pp.need(req)
        if c % 2 == 0: TL(a, f"e{c}")
        for g in range(8):
            a(f"s_mov_b32 m0, {slot*SLOT + g*1024}")
            a(f"s_add_u32 s42, s46, {(32*c + 4*g)*8192}")
            a(f"buffer_load_dwordx4 v5, {sr(S_WS)}, s42 offen {RD} lds")
        pp.done(FL_FULLE, c + 1, 8)
    TL(a, "issued")
    pp.flush()
    TL(a, "landed"); TL.park(a)

GF, ACCE, BE = 128, 64, 32

def g_first(a, n, dt16, t0):
    st, s7, ar = t0, t0 + 1, t0 + 2
    a(f"v_and_b32 v{st}, 15, v1\ns_lshr_b32 s40, s2, 5\ns_lshl_b32 s40, s40, 6\ns_add_u32 s40, s40, {dt16}\nv_add_u32 v{st}, s40, v{st}")
    a(f"v_cvt_f32_u32 v{st}, v{st}\nv_mul_f32 v{st}, {f32(1/512)}, v{st}\nv_mul_f32 v{s7}, {f32(7.0)}, v{st}")
    a(f"v_lshrrev_b32 v{ar}, 4, v1\nv_lshl_add_u32 v{ar}, v{ar}, 1, 1\nv_cvt_f32_u32 v{ar}, v{ar}\nv_mul_f32 v{ar}, v{ar}, v{st}")
    for i in range(32):
        if i: a(f"v_add_f32 v{ar}, v{ar}, v{st if i & 1 else s7}")
        t = t0 + 4 + 2 * (i & 1); p = t0 + 4 + 2 * ((i + 1) & 1)
        a(f"v_cos_f32 v{t}, v{ar}\nv_sin_f32 v{t+1}, v{ar}")
        if i: a(f"v_cvt_pk_bf16_f32 v{GF+64*n+i-1}, v{p}, -v{p+1}")
    a(f"v_cvt_pk_bf16_f32 v{GF+64*n+31}, v{t0+6}, -v{t0+7}")

def g_second(a, nt):
    a("v_and_b32 v4, 1, v1\nv_lshlrev_b32 v4, 4, v4\nv_bfe_u32 v5, v1, 1, 1\nv_lshlrev_b32 v5, 15, v5\nv_add_u32 v6, 1, v1\nv_bfe_u32 v6, v6, 1, 1\nv_lshl_or_b32 v5, v6, 31, v5")
    for n in range(nt):
        for i in range(32):
            r = GF + 64*n + i
            a(f"v_alignbit_b32 v{r+32}, v{r}, v{r}, v4")
        for i in range(32):
            r = GF + 64*n + i
            a(f"v_xor_b32 v{r+32}, v5, v{r+32}")

def e_load(a, s_pi):
    a(f"v_mov_b32 v2, {MISC}")
    a("v_lshrrev_b32 v8, 4, v1\nv_bfe_u32 v9, v1, 2, 2\nv_xor_b32 v9, v9, v8\nv_lshlrev_b32 v5, 13, v8\nv_lshrrev_b32 v10, 1, v9\nv_lshl_add_u32 v5, v10, 12, v5")
    a("v_and_b32 v10, 1, v9\nv_lshl_add_u32 v5, v10, 6, v5\nv_and_b32 v10, 3, v1\nv_lshl_add_u32 v5, v10, 4, v5")
    a(f"s_lshl_b32 s45, s{S_T}, 7\ns_lshl_b32 s40, s{s_pi}, 18\ns_add_u32 s45, s45, s40\ns_add_u32 s45, s45, {WS_E}")
    a(f"s_lshl_b32 s40, s{s_pi}, 2\nv_add_u32 v6, s40, v2")
    for i in range(4):
        (s0, r0), (s1, r1) = CELLS[("e", 2*i)], CELLS[("e", 2*i + 1)]
        lds_wait_ge(a, 2, FL_FREE - MISC, max(r0, r1), 16, 40, 41, minof=4, sleep=1)
        TH(a, f"ld{i}")
        a(f"s_mul_i32 s46, s{s_pi}, {(s1 - s0) * SLOT}\ns_add_u32 s46, s46, {s0 * SLOT}")
        for g in range(8):
            a(f"s_add_u32 m0, s46, {g*1024}")
            a(f"s_add_u32 s42, s45, {(64*i + 4*g)*8192}")
            a(f"buffer_load_dwordx4 v5, {sr(S_WS)}, s42 offen {RD} lds")
    for i in range(4):
        a(f"s_waitcnt vmcnt({8*(3-i)})\nv_mov_b32 v3, {i+1}\nds_write_b32 v6, v3 offset:{FL_FULLE - MISC}")

def e_part(a, nt, s_dt16):
    TT = TH if nt == 1 else T3
    dq = DsQ(a); stubs = []
    a(f"v_mov_b32 v2, {MISC}")
    a("v_lshrrev_b32 v8, 3, v1\nv_lshlrev_b32 v9, 8, v8\nv_and_b32 v8, 3, v8\nv_lshl_add_u32 v9, v8, 6, v9")
    a("v_and_b32 v8, 3, v1\nv_lshl_add_u32 v9, v8, 4, v9\nv_bfe_u32 v8, v1, 2, 1\nv_lshl_add_u32 v4, v8, 3, v9")
    for nu in range(1, 4): a(f"v_xor_b32 v{4+nu}, {64*nu}, v4")
    a("s_mov_b32 s52, 0\ns_mov_b32 s53, 0\ns_waitcnt lgkmcnt(0)")
    AH = 7
    def reads(u):
        js, nu = u // 4, u % 4
        c = js // 2
        if u % 8 == 0: check(a, stubs, 52, c + 1, 2, FL_FULLE - MISC, 3)
        if js % 2 == 0: a(f"v_add_u32 v{16+nu}, {CELLS[('e', c)][0]*SLOT}, v{4+nu}")
        b = BE + 4 * (u % 8)
        for rd in range(2):
            dq.op(f"ds_read_b64_tr_b16 v[{b+2*rd}:{b+2*rd+1}], v{16+nu} offset:{(js % 2)*4096 + 2048*rd}", ("e", u))
    a(f"s_setprio {EPRIO}")
    for u in range(AH): reads(u)
    for u in range(64):
        js, nu = u // 4, u % 4
        b = BE + 4 * (u % 8)
        dq.wait(("e", u))
        if u % 8 == 0: TT(a, f"u{u}")
        for n in range(nt):
            d = ACCE + 16*n + 4*nu; g = GF + 64*n + 4*js
            a(f"v_mfma_f32_16x16x32_bf16 v[{d}:{d+3}], v[{g}:{g+3}], v[{b}:{b+3}], " + ("0" if js == 0 else f"v[{d}:{d+3}]"))
        if u + AH < 64: reads(u + AH)
    a(f"s_lshr_b32 s40, s{s_dt16}, 2\nv_lshrrev_b32 v17, 4, v1\nv_add_u32 v17, s40, v17\nv_and_b32 v18, 7, v1\nv_xor_b32 v17, v17, v18\nv_lshlrev_b32 v17, 4, v17")
    a(f"v_and_b32 v16, 15, v1\nv_lshl_add_u32 v16, v16, 8, v17\nv_xor_b32 v17, 64, v16")
    a(f"v_add_u32 v18, {TA[1]*SLOT}, v16\nv_add_u32 v19, {TA[1]*SLOT}, v17\nv_add_u32 v16, {TA[0]*SLOT}, v16\nv_add_u32 v17, {TA[0]*SLOT}, v17")
    TT(a, "edone")
    lds_wait_ge(a, 2, FL_FREE - MISC, 30, 4, 40, 41, minof=4, sleep=1)
    for n in range(nt):
        for nu in range(4):
            d = ACCE + 16*n + 4*nu
            a(f"ds_write_b128 v{16+n+2*(nu >> 1)}, v[{d}:{d+3}] offset:{(nu & 1)*4096}")
    TT(a, "written"); TT.park(a)
    return stubs

def h_relay(a, level):
    lds_wait_ge(a, 2, FL_HS - MISC, level, 16, 40, 41, minof=4, sleep=1)
    for i in range(8): a(f"ds_read_b128 v[{32+4*i}:{35+4*i}], v24 offset:{1024*i}")
    a(f"v_mov_b32 v16, {level}\nds_write_b32 v25, v16 offset:{FL_HSF - MISC}")
    for i in range(8):
        a(f"s_waitcnt lgkmcnt({8 - i})")
        a(f"buffer_store_dwordx4 v[{32+4*i}:{35+4*i}], v26, {sr(S_WS)}, s{44 + i // 2} offen offset:{1024*(i & 1)} {WT}")
    a(f"v_mov_b32 v16, {1 << (8 * (level - 1))}\ns_waitcnt vmcnt(0)\ns_mov_b32 exec_hi, 0")
    a(f"buffer_atomic_add v16, v27, {sr(S_WS)}, s48 offen sc1\ns_mov_b64 exec, -1")

def h_relay_setup(a):
    a(f"v_mov_b32 v2, {MISC}\nv_lshlrev_b32 v26, 4, v1\nv_add_u32 v24, {HST}, v26\nv_and_b32 v25, 3, v1\nv_lshl_add_u32 v25, v25, 2, v2")
    a(f"s_lshl_b32 s49, s{S_I}, 1\ns_mul_i32 s44, s49, 86\ns_lshl1_add_u32 s44, s{S_P}, s44\ns_lshl_b32 s44, s44, 10\ns_add_u32 s44, s44, {WS_H}")
    a(f"s_add_u32 s45, s44, {86*1024}\ns_add_u32 s46, s44, {32*86*1024}\ns_add_u32 s47, s46, {86*1024}")
    mbox_off(a, 48, 49)
    a("v_and_b32 v27, 7, v1\nv_lshlrev_b32 v27, 13, v27\nv_bfe_u32 v16, v1, 3, 1\nv_lshl_add_u32 v27, v16, 11, v27\nv_bfe_u32 v16, v1, 4, 1\nv_lshl_add_u32 v27, v16, 2, v27")

def scalar_prefetch(a):
    a(f"s_lshl3_add_u32 s40, s2, s3\ns_and_b32 s41, s40, 1023\ns_mulk_i32 s41, {11*128}\ns_min_u32 s41, s41, {512*2752 - 11*128}")
    a(f"s_cmp_lt_u32 s40, 1024\ns_cselect_b64 s[42:43], s[{S_W1}:{S_W1+1}], s[{S_W3}:{S_W3+1}]\ns_add_u32 s42, s42, s41\ns_addc_u32 s43, s43, 0")
    for i in range(11): a(f"s_load_dword s82, s[42:43], {128*i}")

def w2_touch(a):
    a(f"v_mov_b32 v2, {MISC}")
    lds_wait_ge(a, 2, FL_FULL - MISC, W2T, 16, 40, 41, sleep=4)
    a(f"v_lshlrev_b32 v4, 7, v1\ns_lshr_b32 s42, s2, 3\ns_mul_i32 s42, s42, {344*128}")
    for i in range(6):
        if i == 5: a("s_mov_b64 exec, 0xffffff")
        a(f"buffer_load_dword v10, v4, {sr(S_W2)}, s42 offen\ns_add_u32 s42, s42, 8192")
    a("s_mov_b64 exec, -1")

W2T = 8
L3P = 31
ET = 4
HSJ = 18
L2P = 4
PSTP = 13
L3TRY = (21, 26)
GAPB = int([o[2:] for o in OPT if o.startswith("gb")][0]) if any(o.startswith("gb") for o in OPT) else 24
EPRIO = 2
DEPTH = 40
LSL = 0
HV, HM = 256, 128
LPRIO = 0 if "lp0" in OPT else 3
ZG = 3 if "zg" in OPT else 0
WG = 3 if ("wg" in OPT or "zg" in OPT) else 0
LGATE = 3 if "lg" in OPT else 0
XS = False
SF = WT
a = Asm()
a.begin_kernel(NAME)
a("s_cmp_ge_u32 s2, 0x100\ns_cbranch_scc1 k_end")
Stamps.at(a, 0)
if Trace.on: a("s_memtime s[92:93]\ns_waitcnt lgkmcnt(0)")
a(f"s_load_dwordx2 s[{S_X}:{S_X+1}], s[0:1], 0\ns_load_dwordx2 s[{S_WR}:{S_WR+1}], s[0:1], 8\ns_load_dwordx2 s[{S_WI}:{S_WI+1}], s[0:1], 16")
a(f"s_load_dwordx8 s[72:79], s[0:1], 32\ns_load_dwordx2 s[{S_WS}:{S_WS+1}], s[0:1], 72\ns_load_dwordx2 s[{S_DBG}:{S_DBG+1}], s[0:1], 64")
code_prefetch(a, NAME, "k_end", 65536, 8, 255)
a("v_lshrrev_b32 v2, 6, v0\nv_and_b32 v1, 63, v0\nv_readfirstlane_b32 s3, v2")
a(f"s_mov_b32 s{S_X+2}, 0x200000\ns_mov_b32 s{S_X+3}, 0x20000")
ids_early(a)
a("s_cmp_ge_u32 s3, 4\ns_cbranch_scc1 k_helper")
x_setup(a)
x_setup_late(a)
a("s_waitcnt lgkmcnt(0)\ns_barrier")
x_issue(a, 0)
a("s_branch k_main")
a("k_helper:")
a(f"s_setprio 3\ns_sub_u32 s{S_HW}, s3, 4")
a(f"v_lshlrev_b32 v4, 2, v1\nv_add_u32 v4, {MISC}, v4\nv_mov_b32 v5, 0\nds_write_b32 v4, v5")
a(f"s_mov_b32 s{S_WR+2}, {2048*514}\ns_mov_b32 s{S_WR+3}, s{S_X+3}\ns_mov_b64 s[{S_WI+2}:{S_WI+3}], s[{S_WR+2}:{S_WR+3}]")
row_setup(a, S_HW, 18*SLOT)
a("s_waitcnt lgkmcnt(0)\ns_barrier")
row_issue(a, 17*SLOT)
ids_late(a)
Stamps.at(a, 1)
if "sp" in OPT: scalar_prefetch(a)
a(f"s_load_dword s{S_TAG}, s[80:81], 0\ns_sub_u32 s6, s{S_HW}, 1")
row_compute(a, S_HW, 18*SLOT, 17*SLOT, SF, 0, zgate=ZG, wgate=WG)
make_tag(a)
a(f"s_cmp_eq_u32 s{S_HW}, 0\ns_cbranch_scc1 k_loader")
a(f"s_lshl_b32 s42, s2, 8\ns_add_u32 s42, s42, {MBOX + 128}\nv_mov_b32 v14, 0\nv_mov_b32 v15, 0\ns_mov_b64 exec, 1")
a(f"buffer_store_dwordx2 v[14:15], off, {sr(S_WS)}, s42 {WT}\ns_mov_b64 exec, -1")
a("s_waitcnt vmcnt(0)")
wg_signal(a, FL_Z_CNT, 4, 0, 12, 13, 14)
a(f"s_setprio 0\ns_cmp_eq_u32 s{S_HW}, 3\ns_cbranch_scc1 k_h3")
a("s_branch k_h12")

a("k_main:")
ids_late(a)
if "sp" in OPT: scalar_prefetch(a)
g1_main(a)
st = g2_main(a)
emit_stubs(a, st)

a("k_h12:")
Stamps.at(a, 7)
if "nogen" not in OPT:
    col_mats(a, 6)
    col_twiddles(a, 6, S_COL, 2)
    col_twiddles(a, 6, S_COL, 1)
col_addrs(a)
Stamps.at(a, 8)
a(f"s_setprio {CPRIO}")
wait_go(a, 0)
Stamps.at(a, 9)
col_loads3(a, 6, S_COL, RD)
if "nocol" not in OPT: col_compute3(a, SF)
Stamps.at(a, 11)
a(f"v_mov_b32 v2, {MISC}\nv_mov_b32 v3, 1")
a("s_waitcnt vmcnt(0)")
Stamps.at(a, 12)
wg_signal(a, FL_E_CNT, 2, 1, 2, 3, 14)
a("s_setprio 0\ns_lshl_b32 s7, s6, 4")
if "nogen" not in OPT:
    g_first(a, 0, "s7", 4)
    g_second(a, 1)
res_issue(a, 12, 11)
a(f"v_lshlrev_b32 v24, 12, v1\ns_lshl1_add_u32 s47, s{S_CJ}, s6\ns_lshl_b32 s47, s47, 17\ns_lshl_b32 s40, s{S_T}, 7\ns_add_u32 s47, s47, s40\ns_add_u32 s47, s47, {WS_E}")
Stamps.at(a, 13)
a(f"s_setprio {EPRIO}")
TH.start(a); TH(a, "waitE")
wait_go(a, 1)
TH(a, "goE")
a(f"s_mov_b32 exec_hi, 0\nbuffer_load_dword v25, v24, {sr(S_WS)}, s47 offen {RD}\ns_mov_b64 exec, -1")
Stamps.at(a, 14)
a(f"v_mov_b32 v2, {MISC}\nv_mov_b32 v3, 1\nds_write_b32 v2, v3 offset:{FL_GO - MISC}")
st = e_part(a, 1, 7)
a("s_branch k_fin")
emit_stubs(a, st)

a(";@endseg")
a("k_h3:")
a("s_mov_b32 s7, 32")
warm(a, ["h3", "ld2", "m3", "c2"])
Stamps.at(a, 8)
if "nogen" not in OPT:
    g_first(a, 0, 32, 16); g_first(a, 1, 48, 16)
    g_second(a, 2)
if "w2t" in OPT: w2_touch(a)
wait_go(a, 0)
h_relay_setup(a)
a("s_setprio 2")
h_relay(a, 1)
Stamps.at(a, 9)
a(f"s_cmp_eq_u32 s{S_NP}, 2\ns_cbranch_scc1 k_h3b")
for i in range(4): a(f"s_add_u32 s{44+i}, s{44+i}, 4096")
h_relay(a, 2)
a("k_h3b:")
res_issue(a, 12, 11)
Stamps.at(a, 14)
T3.start(a)
st = e_part(a, 2, 7)
a("s_branch k_fin")
emit_stubs(a, st)

a("k_loader:")
loader(a)
res_issue(a, 12, 11)
a("k_fin:")
final_combine(a, 12, 11)
a("s_xor_b32 s40, s3, 5\ns_or_b32 s40, s40, s2\ns_cmp_lg_u32 s40, 0\ns_cbranch_scc1 k_dump")
a(f"s_mov_b32 s42, {GF_EPOCH}")
flag_store(a, 42, 0, 4)
a("k_dump:")
if Stamps.on: a("s_waitcnt vmcnt(0)")
Stamps.dump(a, 0)
if Trace.on: a("s_waitcnt vmcnt(0)")
Trace.dump(a)
import json
if Trace.on: json.dump(Trace.names, open(sys.argv[1][:-2] + ".json", "w"))
a(";@endseg")
a("k_end:\ns_endpgm")
a("k_hopret:\ns_waitcnt lgkmcnt(0)\ns_setpc_b64 s[0:1]")
a.add_kernel(NAME, 256); a.add_launch(NAME, 256, 512, LDS_BYTES)
txt = a.text(header=HEADER, single=True)
if "hop" in OPT:
    txt, nh_ = hop_pass(txt, "k_hopret"); print("hop sites", nh_)
if "noal" not in OPT: txt, nw_, np_ = align_pass(txt)
open(sys.argv[1], "w").write(txt)
print("nops", a.nops_added, CELLS if "v" in OPT else "")
```

```python
import sys, math
from spec import *

OPT = set(sys.argv[2:])
Stamps.on = "stamp" in OPT or "se" in OPT
if "se" in OPT or "qs" in OPT: Stamps.skip = set(range(1, 15))
if "cyc" in OPT: Stamps.op = "s_memtime"
Trace.on = "trace" in OPT
TM, TL, TH, T3 = Trace("main", 10), Trace("loader", 31), Trace("h12", 31), Trace("h3", 31)
LSLEEP[0] = 1 if "lsleep" in OPT else 0
NAME = "parallel_sum__spectral_gfnet__glu_gated_swiglu__prompt_kernel"
HEADER = open("parallel_sum__spectral_gfnet__glu_gated_swiglu__prompt.s.ref").read().split("; Override")[0]
WT = "sc0 sc1"
RD = "" if "rdplain" in OPT else "sc1"
GF_EPOCH, MBOX = WS_FLAG, WS_FLAG + 0x10000
S_MB, S_DBG = 64, 66
FL_HS, FL_HSF = MISC + 112, MISC + 128
FL_Z_CNT, FL_E_CNT, FL_HLVL, FL_FULL2, FL_GO, FL_FULLE = MISC + 40, MISC + 44, MISC + 48, MISC + 64, MISC + 80, MISC + 96
SCRATCH = MISC + 1024
GSPIN = 1 << 14
CPRIO = 0 if "cp0" in OPT else 2
PSLEEP = 24 if "slowpoll" in OPT else 2
HWT = "" if "hplain" in OPT else WT
S_I, S_J, S_P, S_NP, S_ROT, S_T, S_CJ, S_RES, S_TAG, S_HW, S_COL = 84, 85, 86, 87, 88, 89, 90, 91, 5, 4, 83

class DsQ:
    def __init__(self, a): self.a = a; self.q = []
    def op(self, text, tag=None):
        self.a(text)
        if "read" in text.split()[0]: self.q.append(tag)
    def wait(self, tag):
        idx = [i for i, t in enumerate(self.q) if t == tag]
        if not idx: return
        n = len(self.q) - 1 - idx[-1]
        assert n <= 15, n
        self.a(f"s_waitcnt lgkmcnt({n})")
        self.q = self.q[idx[-1] + 1:]

PJ = [(43 * j) >> 4 for j in range(17)]
ORDER = [PJ[j] for j in range(16)] + [PJ[j+1] - 1 for j in range(16)] + [PJ[j] + 1 for j in range(16) if PJ[j+1] - PJ[j] == 3]

NL, NS = (int([o[2:] for o in OPT if o.startswith("nl")][0]) if any(o.startswith("nl") for o in OPT) else 10), 7
HST = 18 * SLOT
def plan_slots():
    free = [(16, 0), (17, 0)] + [(4 * w + c, c + 1) for c in range(4) for w in range(4)]
    cells = {}
    def alloc(key, release):
        free.sort(key=lambda t: t[1])
        s, req = free.pop(0)
        cells[key] = (s, req)
        free.append((s, release))
    for q in range(4):
        alloc(("A", "X", q), 5 + q); alloc(("C", "X", q), 13 + q); alloc(("A", "Y", q), 5 + q)
    for q in range(4):
        alloc(("B", "Y", q), 9 + q); alloc(("C", "Y", q), 13 + q); alloc(("B", "X", q), 9 + q)
    ne = 18 - NL
    rest_e, rest_w = list(range(ne, 8)), list(range(NL, 22))
    order = [("w", c) for c in range(NL)] + [("e", c) for c in range(ne)]
    while rest_e or rest_w:
        if rest_e: order.append(("e", rest_e.pop(0)))
        if rest_e and "ee" in OPT: order.append(("e", rest_e.pop(0)))
        if rest_w: order.append(("w", rest_w.pop(0)))
    for k in order: alloc(k, 17 + k[1] if k[0] == "w" else 99)
    global FINAL
    FINAL = sorted((rel, s) for (s, rel) in free)[:6]
    return cells
CELLS = plan_slots()
LAST_REQ = max(r for (s, r) in CELLS.values())
TA = [s for _, s in FINAL[:2]]; TB = [s for _, s in FINAL[2:]]; TA_REQ, TB_REQ = FINAL[1][0], FINAL[5][0]; assert TB_REQ <= 37, FINAL

def ids_early(a):
    a(f"s_bfe_u32 s40, s2, 0x20003\ns_and_b32 s41, s2, 3\ns_lshl2_add_u32 s{S_I}, s41, s40")
    a(f"s_bfe_u32 s40, s2, 0x10002\ns_lshr_b32 s41, s2, 5\ns_lshl3_add_u32 s{S_J}, s40, s41")
    a(f"s_add_u32 s{S_ROT}, s{S_I}, s{S_J}\ns_and_b32 s{S_ROT}, s{S_ROT}, 3")

def ids_late(a):
    a(f"s_mul_i32 s{S_P}, s{S_J}, 43\ns_add_u32 s{S_NP}, s{S_P}, 43\ns_lshr_b32 s{S_P}, s{S_P}, 4\ns_lshr_b32 s{S_NP}, s{S_NP}, 4\ns_sub_u32 s{S_NP}, s{S_NP}, s{S_P}")
    a(f"s_and_b32 s40, s2, 3\ns_bfe_u32 s41, s2, 0x10002\ns_lshl1_add_u32 s40, s40, s41\ns_bfe_u32 s41, s2, 0x20003\ns_lshl2_add_u32 s{S_T}, s40, s41\ns_lshr_b32 s{S_CJ}, s2, 5")
    a(f"s_lshl_b32 s{S_COL}, s{S_CJ}, 5\ns_add_u32 s{S_COL}, s{S_COL}, s{S_T}")
    for d, src, n in ((S_W1, 72, 512*2752), (S_W3, 74, 512*2752), (S_W2, 76, 1376*1024), (S_OUT, 78, 2048*1024)):
        a(f"s_mov_b64 s[{d}:{d+1}], s[{src}:{src+1}]\ns_mov_b32 s{d+2}, {n}\ns_mov_b32 s{d+3}, 0x20000")
    a(f"s_mov_b32 s{S_WS+2}, 0x10000000\ns_mov_b32 s{S_WS+3}, 0x20000")
    a(f"s_add_u32 s80, s{S_WS}, {GF_EPOCH}\ns_addc_u32 s81, s{S_WS+1}, 0")
    a(f"s_lshl_b32 s40, s2, 8\ns_add_u32 s40, s40, {MBOX}\ns_add_u32 s{S_MB}, s{S_WS}, s40\ns_addc_u32 s{S_MB+1}, s{S_WS+1}, 0")
    Stamps.clear(a)

def warm(a, segs):
    if "hop" not in OPT: return
    a("s_mov_b64 exec, 0")
    for sg in segs: a(f"s_call_b64 s[0:1], hs_{sg}_0")
    a("s_mov_b64 exec, -1")

def make_tag(a):
    a(f"s_mul_i32 s{S_TAG}, s{S_TAG}, 0x9E3779B1\ns_add_u32 s{S_TAG}, s{S_TAG}, 0x7F4A7C15")

def flag_store(a, soff, level, vt):
    a(f"s_add_u32 s40, s{S_TAG}, {level}\nv_mov_b32 v{vt}, s40")
    a("s_mov_b64 exec, 1")
    a(f"buffer_store_dword v{vt}, off, {sr(S_WS)}, s{soff} {WT}")
    a("s_mov_b64 exec, -1")

def h_post(a):
    a(f"s_cmp_eq_u32 s{S_NP}, 2\ns_mov_b32 s40, 0x10000\ns_cmov_b32 s40, 0x10100\nv_mov_b32 v0, s40\nv_lshlrev_b32 v2, 13, v1")
    a("s_mov_b64 exec, 0xff")
    a(f"buffer_atomic_add v0, v2, {sr(S_WS)}, s59 offen sc1")
    a("s_mov_b64 exec, -1")

def wg_signal(a, cnt_word, n, event, vaddr, vone, vt):
    zf = a.label("zf")
    a("s_mov_b64 exec, 1")
    a(f"ds_add_rtn_u32 v{vt}, v{vaddr}, v{vone} offset:{cnt_word - MISC}\ns_mov_b64 exec, -1\ns_waitcnt lgkmcnt(0)\nv_readfirstlane_b32 s40, v{vt}")
    a(f"s_cmp_lg_u32 s40, {n - 1}\ns_cbranch_scc1 {zf}")
    a(f"s_and_b32 s43, s2, 1\ns_lshl_b32 s41, s43, 7\ns_add_u32 s41, s41, {4*event}\ns_mov_b32 s40, 1")
    a(f"s_atomic_add s40, s[{S_DBG}:{S_DBG+1}], s41 glc\ns_waitcnt lgkmcnt(0)")
    a(f"s_and_b32 s40, s40, 127\ns_cmp_lg_u32 s40, 127\ns_cbranch_scc1 {zf}")
    a(f"s_lshl_b32 s43, s43, 2\ns_add_u32 s43, s43, {MBOX + 8*event}\ns_add_u32 s40, s{S_TAG}, 1\nv_mov_b32 v{vt}, s40\nv_lshlrev_b32 v{vt+1}, 8, v1")
    for i in range(4):
        a(f"buffer_store_dword v{vt}, v{vt+1}, {sr(S_WS)}, s43 offen {WT}\ns_add_u32 s43, s43, 0x4000")
    a(f"{zf}:")

def wait_go(a, event):
    top, done = a.label("gp"), a.label("gpd")
    a(f"s_mov_b32 s41, {GSPIN}\ns_add_u32 s43, s{S_TAG}, 1")
    a(f"{top}:")
    a(f"s_load_dwordx2 s[44:45], s[{S_MB}:{S_MB+1}], {8*event} glc\ns_waitcnt lgkmcnt(0)")
    a(f"s_xor_b32 s44, s44, s43\ns_xor_b32 s45, s45, s43\ns_or_b32 s44, s44, s45\ns_cbranch_scc0 {done}")
    a(f"s_sub_u32 s41, s41, 1\ns_cbranch_scc0 {top}")
    a(f"{done}:")

def level_load(a):
    a(f"s_load_dword s53, s[{S_MB}:{S_MB+1}], s54 glc")

def level_test(a, need):
    a(f"s_bitcmp1_b32 s53, {8 * need - 4}" if "nohw" not in OPT else "s_cmp_eq_u32 s2, s2")

def pair_table(a, vt, t1, t2, sx=40):
    a(f"s_and_b32 s{sx}, s{S_T}, 3\ns_lshl1_add_u32 s{sx}, s{sx}, s{S_CJ}\ns_lshl_b32 s{sx}, s{sx}, 1\ns_and_b32 s{sx}, s{sx}, 15\ns_mul_i32 s{sx+1}, s{sx}, 11\ns_lshr_b32 s{sx+1}, s{sx+1}, 4\ns_sub_u32 s{sx+1}, s{sx+1}, 32")
    a(f"v_add_u32 v{t1}, s{sx+1}, v1\nv_subrev_u32 v{t2}, 11, v{t1}\nv_min_u32 v{t1}, v{t1}, v{t2}")
    a(f"v_lshrrev_b32 v{t2}, 1, v{t1}\nv_add3_u32 v{t1}, v{t1}, v{t2}, 1\nv_min_u32 v{t1}, 15, v{t1}")
    a(f"v_add_u32 v{t2}, s{sx}, v1\nv_and_b32 v{t2}, 15, v{t2}\nv_cmp_gt_u32 vcc, 32, v1\nv_cndmask_b32 v{t1}, v{t1}, v{t2}, vcc\nv_mul_u32_u24 v{t1}, 43, v{t1}")
    a(f"v_cndmask_b32 v{t2}, 16, 27, vcc\nv_cmp_gt_u32 vcc, 16, v1\nv_cndmask_b32 v{t2}, v{t2}, 0, vcc\nv_add_u32 v{t1}, v{t1}, v{t2}\nv_lshrrev_b32 v{vt}, 4, v{t1}")

def h_wait(a, need, before=None):
    top, done = a.label("hp"), a.label("hpd")
    level_test(a, need)
    a(f"s_cbranch_scc1 {done}")
    if before: before()
    a(f"s_mov_b32 s41, {GSPIN}")
    a(f"{top}:")
    level_load(a); a("s_waitcnt lgkmcnt(0)"); level_test(a, need)
    a(f"s_cbranch_scc1 {done}\ns_sub_u32 s41, s41, 1\ns_cbranch_scc0 {top}")
    a(f"{done}:")

def mbox_off(a, dst, grp):
    a(f"s_bfe_u32 s40, s{grp}, 0x20003\ns_and_b32 s41, s{grp}, 4\ns_add_u32 s40, s40, s41\ns_and_b32 s41, s{grp}, 3\ns_lshl3_add_u32 s{dst}, s41, s40\ns_lshl_b32 s{dst}, s{dst}, 8")
    a(f"s_lshr_b32 s40, s{grp}, 5\ns_lshl2_add_u32 s{dst}, s40, s{dst}\ns_add_u32 s{dst}, s{dst}, {MBOX + 128}")

def check(a, stubs, scache, need, areg, off, vt, minof=1, before_spin=None):
    back, sl = a.label("fb"), a.label("fs")
    a(f"s_cmp_ge_u32 s{scache}, {need}")
    a(f"s_cbranch_scc0 {sl}")
    a(f"{back}:")
    stubs.append((sl, back, scache, need, areg, off, vt, minof, before_spin))

def emit_stubs(a, stubs):
    for (sl, back, sc, need, areg, off, vt, minof, before_spin) in stubs:
        a(f"{sl}:")
        if before_spin:
            a(f"ds_read_b32 v{vt}, v{areg} offset:{off}\ns_waitcnt lgkmcnt(0)\nv_readfirstlane_b32 s{sc}, v{vt}")
            a(f"s_cmp_ge_u32 s{sc}, {need}\ns_cbranch_scc1 {back}")
            before_spin()
        lds_wait_ge(a, areg, off, need, vt, sc, 41, minof=minof, sleep=1)
        a(f"s_branch {back}")

X0, ACC, AF, PD = 128, (64, 96), 32, 3

def x_setup(a):
    a(f"s_and_b32 s40, s3, 1\ns_lshl1_add_u32 s50, s{S_I}, s40\ns_lshr_b32 s41, s3, 1\ns_lshl_b32 s41, s41, 5\ns_add_u32 s50, s50, s41")
    a("s_lshl_b32 s51, s3, 15")
    a("s_lshr_b32 s41, s50, 3\ns_lshl_b32 s41, s41, 18\ns_and_b32 s42, s50, 7\ns_lshl_b32 s42, s42, 12\ns_add_u32 s56, s41, s42")
    a(f"s_lshl_b32 s40, s{S_ROT}, 8\ns_add_u32 s52, s56, s40")
    if "rs" in OPT: a(f"s_and_b32 s63, s{S_J}, 4\ns_lshr_b32 s40, s{S_J}, 2\ns_and_b32 s40, s40, 2\ns_or_b32 s63, s63, s40")
    else: a(f"s_lshr_b32 s63, s{S_J}, 1\ns_and_b32 s63, s63, 6")
    a("v_lshrrev_b32 v20, 4, v1\nv_and_b32 v21, 15, v1\nv_xor_b32 v21, v21, v20\nv_lshlrev_b32 v21, 4, v21\nv_lshl_add_u32 v20, v20, 10, v21")
    a("s_and_b32 s40, s63, 2\ns_lshl_b32 s40, s40, 6\nv_xor_b32 v16, s40, v20\nv_xor_b32 v17, 64, v16\nv_xor_b32 v18, 0x80, v16\nv_xor_b32 v19, 0x80, v17")
    a("s_lshl_b32 s63, s63, 10")

def x_setup_late(a):
    for c in range(1, 4):
        a(f"s_add_u32 s40, s{S_ROT}, {c}\ns_and_b32 s40, s40, 3\ns_lshl_b32 s40, s40, 8\ns_add_u32 s{52+c}, s56, s40")

def x_issue(a, c, between=None):
    a(f"s_add_u32 s41, s51, {c*SLOT}" if c else "s_mov_b32 s41, s51")
    for e in range(8):
        a(f"s_xor_b32 s42, s63, {e << 10}" if e else "s_mov_b32 s42, s63")
        a("s_add_u32 m0, s41, s42\ns_lshl_b32 s42, s42, 5")
        a(f"s_add_u32 s40, s42, s{52+c}")
        a(f"buffer_load_dwordx4 v{16+(e&3)}, {sr(S_X)}, s40 offen lds")
        if between: between(e)

def epilogue_ops(acc, level):
    ev = []
    for n in range(16):
        tau, r = n // 8, n % 8
        g, u = acc + 16*tau + r, acc + 16*tau + 8 + r
        ev += [(n, 0, f"v_mul_f32 v{u}, v{g}, v{u}"), (n, 1, f"v_mul_f32 v{g}, v10, v{g}"), (n + 1, 2, f"v_exp_f32 v{g}, v{g}"),
               (n + 2, 3, f"v_fma_f32 v{g}, v{g}, v11, v11"), (n + 3, 5, f"v_rcp_f32 v{g}, v{g}"), (n + 4, 4, f"v_mul_f32 v{u}, v{u}, v{g}")]
        if r & 1: ev.append((n + 5, 6, f"v_cvt_pk_bf16_f32 v{24 + 4*tau + r // 2}, v{u-1}, v{u}"))
    ops = [o for _, _, o in sorted(ev, key=lambda t: (t[0], t[1]))]
    ops.insert(len(ops) - 6, ("ds", "ds_write_b128 v22, v[24:27]"))
    ops.insert(len(ops) - 2, f"v_mov_b32 v23, {level}")
    return ops + [("ds", "ds_write_b128 v22, v[28:31] offset:1024"), ("ds", f"ds_write_b32 v9, v23 offset:{FL_HS - MISC}")]

def HB(p): return X0 + 4*p if p < 32 else 84 + 4*(p - 32)
def h_pre(a, p): a(f"v_readlane_b32 s{68 + p % 4}, v8, {p}")
def h_load(a, p): a(f"buffer_load_dwordx4 v[{HB(p)}:{HB(p)+3}], v3, {sr(S_WS)}, s{68 + p % 4} offen {RD}")
def h_burst(a, lo, hi):
    for p in range(lo, min(lo + 3, hi)): h_pre(a, p)
    for p in range(lo, hi):
        if p + 3 < hi: h_pre(a, p + 3)
        h_load(a, p)

def g1_main(a):
    dq = DsQ(a); slow = []
    a(f"s_lshl_b32 s40, s3, 2\ns_add_u32 s40, s40, {MISC}\nv_mov_b32 v9, s40")
    a("v_lshlrev_b32 v3, 4, v1")
    a("v_and_b32 v20, 31, v1\nv_lshrrev_b32 v21, 5, v1\nv_and_b32 v22, 15, v1\nv_xor_b32 v21, v21, v22\nv_lshlrev_b32 v21, 4, v21")
    a("v_lshl_add_u32 v24, v20, 8, v21\nv_add_u32 v24, s51, v24")
    for j in range(1, 8): a(f"v_xor_b32 v{24+j}, {32*j}, v24")
    a("v_bfe_u32 v20, v1, 4, 1\nv_lshrrev_b32 v21, 5, v1\nv_bfe_u32 v22, v1, 2, 2")
    a(f"v_add_u32 v8, s{S_P}, v22\nv_and_b32 v8, 1, v8")
    a("v_lshrrev_b32 v22, 1, v22\nv_lshl_add_u32 v22, v21, 2, v22\nv_lshl_add_u32 v22, v8, 1, v22\nv_lshlrev_b32 v22, 6, v22")
    a("v_lshl_add_u32 v22, v20, 12, v22\nv_lshl_add_u32 v22, v20, 5, v22")
    a("v_and_b32 v21, 1, v1\nv_lshl_add_u32 v22, v21, 4, v22\nv_bfe_u32 v21, v1, 1, 1\nv_lshl_add_u32 v4, v21, 3, v22")
    a("v_xor_b32 v5, 128, v4\nv_xor_b32 v6, 32, v4\nv_xor_b32 v7, 160, v4")
    a("s_mov_b32 s56, 0x3f803f80\ns_mov_b32 s57, 0x00003f80\ns_mov_b32 s58, 0x3f800000")
    def reads(c):
        for j in range(8):
            r = X0 + 32*c + 4*j
            dq.op(f"ds_read_b128 v[{r}:{r+3}], v{24+j} offset:{c*SLOT}", ("x", c, j))
        a(f"v_mov_b32 v14, {c + 1}")
        dq.op(f"ds_write_b32 v9, v14 offset:{FL_FREE - MISC}")
    def sums(c, only=None):
        for j in (range(8) if only is None else [only]):
            if j % 2 == 0: dq.wait(("x", c, j + 1))
            for r in range(X0 + 32*c + 4*j, X0 + 32*c + 4*j + 4):
                first = (r == X0)
                a(f"v_dot2_f32_bf16 v10, v{r}, s56, {'0' if first else 'v10'}")
                a(f"v_dot2_f32_bf16 v11, v{r}, v{r}, {'0' if first else 'v11'}")
    wd = a.label("wd")
    if "hopm" in OPT:
        for w, segs in enumerate((["x0"], ["x1"], ["x2"], ["x3"])):
            nx = a.label("wn")
            if w < 3: a(f"s_cmp_lg_u32 s3, {w}\ns_cbranch_scc1 {nx}")
            warm(a, segs)
            if w < 3: a(f"s_branch {wd}\n{nx}:")
        a(f"{wd}:")
    x_issue(a, 1)
    Stamps.at(a, 6)
    if "hopm" in OPT: a(f";@seg x0 {HV}")
    a("s_waitcnt vmcnt(8)"); Stamps.at(a, 1); reads(0)
    x_issue(a, 2, lambda e: sums(0, e))
    a("s_waitcnt vmcnt(8)"); reads(1)
    x_issue(a, 3, lambda e: sums(1, e))
    if "hopm" in OPT: a(f";@seg x1 {HV}")
    a("s_waitcnt vmcnt(8)"); reads(2); sums(2)
    a("s_waitcnt vmcnt(0)"); Stamps.at(a, 2); reads(3)
    sums(3)
    a("v_mov_b32 v12, v10\nv_mov_b32 v13, v11")
    a("v_permlane32_swap_b32 v12, v10\nv_permlane32_swap_b32 v13, v11")
    a("v_add_f32 v10, v10, v12\nv_add_f32 v11, v11, v13")
    sub = Asm(); ln_scalars(sub, 10, 11, None)
    a(sub.lines[0])
    a("v_cvt_pk_bf16_f32 v31, -v10, -v10\nv_and_b32 v31, 0xffff0000, v31")
    rest = sub.lines[1:] + [f"v_mul_f32 v10, {f32(-math.log2(math.e))}, v11", "v_mul_f32 v11, v11, v11", "v_rcp_f32 v11, v11"]
    for j in range(32):
        for r in range(4):
            x = X0 + 4*j + r; t = 16 + 2*r
            a(f"v_dot2_f32_bf16 v{t}, v{x}, s57, v31\nv_dot2_f32_bf16 v{t+1}, v{x}, s58, v31")
        if j in (2, 17) and "hopm" in OPT: a(f";@seg x{2 if j == 2 else 3} {HV}")
        if j < len(rest): a(rest[j])
        for r in range(4): a(f"v_cvt_pk_bf16_f32 v{X0+4*j+r}, v{16+2*r}, v{17+2*r}")
        if j == 24: dq.op(f"ds_read_b32 v2, v9 offset:{FL_FULL - MISC}", "poll")
    PASS = "ABC"
    def base_calc(r):
        ps, q = PASS[r // 32], (r % 32) // 8
        bx, by = CELLS[(ps, "X", q)][0] * SLOT, CELLS[(ps, "Y", q)][0] * SLOT
        a(f"v_mul_i32_i24 v0, {by - bx}, v8\nv_add_u32 v0, {bx}, v0")
        return 8
    def full_check(r):
        ps, q = PASS[r // 32], (r % 32) // 8
        need_full = {"A": q + 1, "B": q + 5, "C": 0}[ps]
        if not need_full: return 0
        back, sl = a.label("g1b"), a.label("g1s")
        dq.wait("poll")
        a(f"v_readfirstlane_b32 s40, v2\ns_cmp_ge_u32 s40, {need_full}\ns_cbranch_scc0 {sl}")
        a(f"{back}:")
        slow.append((sl, back, need_full, FL_FULL))
        return 16
    def AB(r): return 12 + 4 * ((r // 8) & 1)
    def addr(r, tau):
        for i in (2*tau, 2*tau + 1): a(f"v_add_u32 v{AB(r)+i}, v0, v{4+i}")
        return 8
    def wreads(r, tau):
        j = r % 8; b = AF + 8 * (r % 4); cost = 8
        for rd in range(2):
            dq.op(f"ds_read_b64_tr_b16 v[{b+4*tau+2*rd}:{b+4*tau+2*rd+1}], v{AB(r)+2*tau+rd} offset:{512*j}", ("w", r))
        nxt = r - j + 8
        if nxt < 96:
            if j == 2 and tau == 0: cost += base_calc(nxt)
            if j == 4: cost += addr(nxt, tau)
            if j == 7 and tau == 0: cost += full_check(nxt)
            if j == 5 and tau == 0 and nxt < 64:
                dq.op(f"ds_read_b32 v2, v9 offset:{FL_FULL - MISC}", "poll"); cost += 4
        if j == 6 and tau == 1: a(f"v_mov_b32 v0, {5 + r // 8}"); cost += 4
        if j == 7 and tau == 1:
            dq.op(f"ds_write_b32 v9, v0 offset:{FL_FREE - MISC}"); cost += 4
        return cost
    a(f";@seg m1 {HM}")
    base_calc(0); addr(0, 0); addr(0, 1); full_check(0)
    for g in range(PD): wreads(g, 0); wreads(g, 1)
    Stamps.at(a, 3)
    fin2, done = a.label("g1fin2"), a.label("g1done")
    sub = Asm()
    sub(f"s_lshl_b32 s42, s3, 11\ns_add_u32 s42, s42, {HST}\nv_add_u32 v22, s42, v3\ns_and_b32 s54, s3, 1\ns_lshl_b32 s54, s54, 2\ns_add_u32 s54, s54, 128")
    sub(f"s_and_b32 s42, s3, 1\ns_lshl_b32 s42, s42, 5\ns_add_u32 s42, s42, s{S_T}\ns_mul_i32 s50, s42, 86")
    sub(f"s_lshr_b32 s51, s3, 1\ns_add_u32 s50, s50, s51\ns_lshl_b32 s50, s50, 10\ns_add_u32 s50, s50, {WS_H}")
    pair_table(sub, 20, 24, 25, 42)
    sub("v_lshlrev_b32 v20, 11, v20\nv_add_u32 v20, s50, v20")
    sub("v_bfe_u32 v24, v1, 2, 2\nv_lshrrev_b32 v25, 5, v1\nv_lshl_add_u32 v25, v25, 3, v24\ns_lshl_b32 s42, s51, 4\nv_add_u32 v25, s42, v25")
    sub("v_lshlrev_b32 v25, 7, v25\nv_lshrrev_b32 v24, 1, v24\nv_lshl_add_u32 v25, v24, 6, v25")
    sub("v_bfe_u32 v24, v1, 4, 1\nv_lshl_add_u32 v25, v24, 5, v25\nv_and_b32 v24, 3, v1\nv_lshl_add_u32 v21, v24, 3, v25")
    res_setup(sub, 42)
    EP = {0: [l.strip() for l in sub.lines], 1: epilogue_ops(ACC[0], 1), 2: epilogue_ops(ACC[1], 2)}
    opcost = lambda o: 8 if isinstance(o, tuple) or o.startswith(("v_exp", "v_rcp")) else 4
    def emit(o):
        if isinstance(o, tuple): dq.op(o[1])
        else: a(o)
    def step(g, extra=None):
        ps, j = g // 32, g % 32
        acc = ACC[ps & 1]; ep = EP[ps]
        b = AF + 8 * (g % 4)
        dq.wait(("w", g))
        for tau in range(2):
            d = acc + 16 * tau
            a(f"v_mfma_f32_32x32x16_bf16 v[{d}:{d+15}], v[{b+4*tau}:{b+4*tau+3}], v[{X0+4*j}:{X0+4*j+3}], " + ("0" if j == 0 else f"v[{d}:{d+15}]"))
            cost = 4 * tau
            if g + PD < 96: cost += wreads(g + PD, tau)
            if ps == 2 and j in (HSJ - 3, 26) and tau == 1:
                dq.op(f"ds_read_b32 v2, v9 offset:{FL_HSF - MISC}", "poll"); cost += 4
            if ps == 2 and j == HSJ and tau == 0:
                back, sl = a.label("g1b"), a.label("g1s")
                dq.wait("poll")
                a(f"v_readfirstlane_b32 s40, v2\ns_cmp_ge_u32 s40, 1\ns_cbranch_scc0 {sl}\n{back}:")
                slow.append((sl, back, 1, FL_HSF)); cost += 16
            if ps == 2 and j == 20 and tau == 0: level_load(a); cost += 4
            while ep and j >= 1 and cost + opcost(ep[0]) <= (GAPB if ps else 20):
                assert not (ps == 2 and isinstance(ep[0], tuple) and j < HSJ)
                o = ep.pop(0); cost += opcost(o); emit(o)
                if not ep: print("fill list", ps, "ends at step", j)
            if extra: extra(tau)
    for g in range(96 - ET):
        if g == 32: a(f";@seg m2 {HM}")
        if "qs" in OPT and g % 8 == 0: Stamps.at(a, 1 + g // 8, True)
        step(g)
        if g % 32 == 31:
            assert not EP[g // 32]
            Stamps.at(a, 4 + g // 32)
        if g == 63:
            a(f"s_cmp_eq_u32 s{S_NP}, 2\ns_cbranch_scc1 {fin2}")
    assert not EP[2]
    if "qs" in OPT: Stamps.at(a, 13, True)
    late = a.label("g1late")
    a("v_mov_b32 v8, v20\ns_waitcnt lgkmcnt(0)\nv_readfirstlane_b32 s56, v2"); dq.q = []
    def final_ep(acc, level, need, extra=None):
        checked = False
        for n, o in enumerate(epilogue_ops(acc, level)):
            if isinstance(o, tuple) and not checked:
                back, sl = a.label("g1b"), a.label("g1s")
                a(f"s_cmp_ge_u32 s56, {need}\ns_cbranch_scc0 {sl}\n{back}:"); slow.append((sl, back, need, FL_HSF)); checked = True
            a(o[1] if isinstance(o, tuple) else o)
            if extra: extra(n)
    level_test(a, 1)
    a(f"s_cbranch_scc0 {late}")
    for p in range(3): h_pre(a, p)
    nxt = [0]
    def early(tau):
        p = nxt[0]
        if p >= 16: return
        if p + 3 < 16: h_pre(a, p + 3)
        h_load(a, p); nxt[0] += 1
    for g in range(96 - ET, 96): step(g, early)
    Stamps.at(a, 8)
    a(f";@seg m3 {HV}")
    level_load(a)
    final_ep(ACC[0], 3, 2)
    for _ in range(8): early(0)
    Stamps.at(a, 9)
    a(f"s_branch {done}")
    a(f"{late}:")
    dq.q = []
    for g in range(96 - ET, 96): step(g)
    level_load(a)
    final_ep(ACC[0], 3, 2)
    a("s_branch k_g2late")
    a(f"{fin2}:")
    a(f"v_mov_b32 v0, 16\nds_write_b32 v9, v0 offset:{FL_FREE - MISC}\ns_mov_b32 s56, 0\ns_mov_b32 s53, 0\nv_mov_b32 v8, v20")
    a("s_nop 15")
    final_ep(ACC[1], 2, 1)
    a("k_g2late:")
    a("s_waitcnt lgkmcnt(0)")
    h_wait(a, 1)
    h_burst(a, 0, 16)
    a(f"s_branch {done}")
    for (sl, back, n, word) in slow:
        a(f"{sl}:")
        lds_wait_ge(a, 9, word - MISC, n, 2, 40, 41)
        a(f"s_branch {back}")
    a(f"{done}:")

ACC2, AF2 = 52, 20

def slot_sel(a, dst, idx, slots):
    a(f"s_mov_b32 s{dst}, {slots[0]*SLOT}")
    for i in range(1, len(slots)):
        a(f"s_cmp_eq_u32 s{idx}, {i}\ns_cmov_b32 s{dst}, {slots[i]*SLOT}")

def g2_main(a):
    dq = DsQ(a); stubs = []
    TM.start(a); TM(a, "T0")
    vm = [("h", p) for p in range(16)]
    a(f"s_mov_b32 s55, 0\nds_read_b32 v2, v9 offset:{FL_FULL2 - MISC}")
    a("v_mov_b32 v4, v21\nv_xor_b32 v5, 64, v21\nv_add_u32 v6, 0x10000, v4\nv_add_u32 v7, 0x10000, v5\nv_add_u32 v18, 0x20000, v4\nv_add_u32 v19, 0x20000, v5")
    a("s_waitcnt lgkmcnt(0)\nv_readfirstlane_b32 s52, v2")
    Stamps.at(a, 11)
    a(f";@sp {HM}")
    AR = [4, 6, 18]
    NB = 4
    def reads(p, dl):
        c = p // 2
        if p % 2 == 0 and dl == 0: check(a, stubs, 52, c + 1, 9, FL_FULL2 - MISC, 2)
        base = CELLS[("w", c)][0] * SLOT + (p % 2) * 4096
        w, off = base >> 16, base & 0xffff
        b = AF2 + 8 * (p % NB)
        for rd in range(2):
            dq.op(f"ds_read_b64_tr_b16 v[{b+4*dl+2*rd}:{b+4*dl+2*rd+1}], v{AR[w]+dl} offset:{off + 512*rd}", ("w", p))
        if dl == 1 and p % 2 == 1 and 17 + c <= TB_REQ:
            a(f"v_mov_b32 v0, {17 + c}")
            dq.op(f"ds_write_b32 v9, v0 offset:{FL_FREE - MISC}")
    for p in range(PD): reads(p, 0); reads(p, 1)
    for p in range(43):
        if p == L2P:
            TM(a, "w2"); h_wait(a, 2); TM(a, "L2")
            for q in range(16, 19): h_pre(a, q)
        if p in L3TRY:
            skip = a.label("l3s")
            a(f"s_cmp_lg_u32 s55, 0\ns_cbranch_scc1 {skip}\ns_waitcnt lgkmcnt(0)")
            level_test(a, 3)
            a(f"s_cbranch_scc0 {skip}\ns_call_b64 s[46:47], k_l3burst")
            a(f"{skip}:")
        if p + 5 in L3TRY + (L3P,): level_load(a)
        if p == L3P:
            skip = a.label("l3s")
            TM(a, "w3")
            a(f"s_waitcnt lgkmcnt(0)\ns_cmp_lg_u32 s55, 0\ns_cbranch_scc1 {skip}")
            h_wait(a, 3)
            a("s_call_b64 s[46:47], k_l3burst")
            a(f"{skip}:")
            TM(a, "L3")
            vm += [("h", q) for q in range(32, 43)]
        b = AF2 + 8 * (p % NB)
        a(f"s_waitcnt vmcnt({len(vm) - 1 - vm.index(('h', p))})")
        if p % 4 == 0: TM(a, f"p{p}")
        dq.wait(("w", p))
        for dl in range(2):
            d = ACC2 + 16 * dl
            a(f"v_mfma_f32_32x32x16_bf16 v[{d}:{d+15}], v[{b+4*dl}:{b+4*dl+3}], v[{HB(p)}:{HB(p)+3}], " + ("0" if p == 0 else f"v[{d}:{d+15}]"))
            if p + PD < 43: reads(p + PD, dl)
        q = p - L2P + 16
        if 16 <= q < 32:
            if q + 3 < 32: h_pre(a, q + 3)
            h_load(a, q); vm.append(("h", q))
        if q == 32:
            res_load(a, 12, 11); vm.append("r")
        if p == 40:
            slot_sel(a, 40, 3, TB)
            a("v_and_b32 v16, 31, v1\nv_lshrrev_b32 v17, 5, v1\nv_and_b32 v18, 7, v1\nv_xor_b32 v17, v17, v18\nv_lshlrev_b32 v17, 4, v17\nv_lshl_add_u32 v16, v16, 8, v17\nv_add_u32 v16, s40, v16")
            for g in range(1, 4): a(f"v_xor_b32 v{16+g}, {32*g}, v16")
            a(f"v_mov_b32 v8, {MISC}")
    TM(a, "loopend")
    lds_wait_ge(a, 8, FL_FREE - MISC, TB_REQ, 4, 40, 41, minof=4)
    Stamps.at(a, 14)
    for dl in range(2):
        for g in range(4):
            r = ACC2 + 16*dl + 4*g
            a(f"ds_write_b128 v{16+g}, v[{r}:{r+3}] offset:{128*dl}")
    TM(a, "written"); TM.park(a)
    a("s_branch k_fin")
    a("k_l3burst:")
    h_burst(a, 32, 43)
    a("s_mov_b32 s55, 1\ns_setpc_b64 s[46:47]")
    return stubs

def res_setup(a, t=40):
    a(f"s_lshr_b32 s{t}, s3, 2\ns_lshl_b32 s{t}, s{t}, 20\ns_lshr_b32 s{t+1}, s{S_T}, 3\ns_lshl_b32 s{t+1}, s{t+1}, 18\ns_add_u32 s{t}, s{t}, s{t+1}")
    a(f"s_and_b32 s{t+1}, s{S_T}, 7\ns_lshl_b32 s{t+1}, s{t+1}, 12\ns_add_u32 s{t}, s{t}, s{t+1}\ns_and_b32 s{t+1}, s3, 3\ns_lshl_b32 s{t+1}, s{t+1}, 16\ns_add_u32 s{t}, s{t}, s{t+1}")
    a(f"s_lshl_b32 s{t+1}, s{S_CJ}, 7\ns_add_u32 s{S_RES}, s{t}, s{t+1}")

def res_load(a, dst, voff):
    a(f"v_bfe_u32 v{dst}, v1, 3, 2\nv_and_b32 v{voff}, 7, v1\nv_lshlrev_b32 v{voff}, 4, v{voff}\nv_lshl_add_u32 v{voff}, v{dst}, 10, v{voff}")
    a(f"v_lshrrev_b32 v{dst}, 5, v1\nv_lshl_add_u32 v{voff}, v{dst}, 15, v{voff}")
    a(f"buffer_load_dwordx4 v[{dst}:{dst+3}], v{voff}, {sr(S_X)}, s{S_RES} offen")

def res_issue(a, dst, voff):
    res_setup(a); res_load(a, dst, voff)

def final_combine(a, xr, voff):
    a("s_and_b32 s40, s3, 3\ns_lshl_b32 s40, s40, 11\ns_lshr_b32 s41, s3, 2")
    slot_sel(a, 42, 41, TB[:2]); slot_sel(a, 43, 41, TB[2:])
    a("v_lshrrev_b32 v4, 3, v1\nv_and_b32 v5, 7, v1\nv_lshlrev_b32 v5, 1, v5\nv_xor_b32 v5, v5, v4\nv_lshlrev_b32 v5, 4, v5")
    a("v_lshl_add_u32 v4, v4, 8, v5\nv_add_u32 v4, s40, v4\nv_xor_b32 v5, 16, v4")
    a("v_add_u32 v6, s42, v4\nv_add_u32 v7, s42, v5\nv_add_u32 v8, s43, v4\nv_add_u32 v9, s43, v5")
    a(f"v_add_u32 v2, {TA[1]*SLOT}, v4\nv_add_u32 v3, {TA[1]*SLOT}, v5\nv_add_u32 v4, {TA[0]*SLOT}, v4\nv_add_u32 v5, {TA[0]*SLOT}, v5")
    a("s_lshl_b32 s41, s41, 31\ns_or_b32 s42, s41, 0x3f800000")
    a("s_waitcnt vmcnt(0)")
    XU = 84
    for p in range(4):
        a(f"v_lshlrev_b32 v{XU+2*p}, 16, v{xr+p}\nv_and_b32 v{XU+2*p+1}, 0xffff0000, v{xr+p}")
    if Trace.on: a("s_memtime s[100:101]\ns_waitcnt lgkmcnt(0)\nv_writelane_b32 v100, s100, 60")
    a("s_waitcnt lgkmcnt(0)\ns_barrier")
    if Trace.on: a("s_memtime s[100:101]\ns_waitcnt lgkmcnt(0)\nv_writelane_b32 v100, s100, 61")
    R = 20
    for q in range(2):
        a(f"ds_read_b128 v[{R+4*q}:{R+4*q+3}], v{4+q}")
        a(f"ds_read_b128 v[{R+8+4*q}:{R+8+4*q+3}], v{2+q}")
        a(f"ds_read_b128 v[{R+16+4*q}:{R+16+4*q+3}], v{6+q}")
        a(f"ds_read_b128 v[{R+24+4*q}:{R+24+4*q+3}], v{8+q}")
    for p in range(4):
        if p % 2 == 0: a(f"s_waitcnt lgkmcnt({4 if p == 0 else 0})")
        r = R + 2*p
        a(f"v_pk_fma_f32 v[{r}:{r+1}], v[{r+8}:{r+9}], s[42:43], v[{r}:{r+1}] op_sel_hi:[1,0,1]")
        a(f"v_pk_add_f32 v[{r+16}:{r+17}], v[{r+16}:{r+17}], v[{r+24}:{r+25}]")
        a(f"v_pk_add_f32 v[{r}:{r+1}], v[{r}:{r+1}], v[{XU+2*p}:{XU+2*p+1}]")
        a(f"v_pk_add_f32 v[{r}:{r+1}], v[{r}:{r+1}], v[{r+16}:{r+17}]")
        a(f"v_cvt_pk_bf16_f32 v{xr+p}, v{r}, v{r+1}")
    a(f"buffer_store_dwordx4 v[{xr}:{xr+3}], v{voff}, {sr(S_OUT)}, s{S_RES} offen")

def loader(a):
    a(f"v_mov_b32 v2, {MISC}")
    a("v_and_b32 v16, 3, v1\nv_lshl_add_u32 v16, v16, 2, v2")
    a("v_lshrrev_b32 v8, 2, v1\nv_and_b32 v9, 3, v1\nv_lshlrev_b32 v9, 4, v9\nv_xor_b32 v10, 2, v8")
    a("v_mul_u32_u24 v8, 5504, v8\nv_mul_u32_u24 v10, 5504, v10\nv_xor_b32 v11, 32, v9")
    a("v_add_u32 v4, v8, v9\nv_add_u32 v5, v8, v11\nv_add_u32 v6, v10, v9\nv_add_u32 v7, v10, v11")
    a("v_lshrrev_b32 v8, 3, v1\nv_and_b32 v9, 7, v1\nv_bfe_u32 v10, v1, 4, 1\nv_lshlrev_b32 v10, 2, v10\nv_xor_b32 v10, v10, v9")
    a("v_lshlrev_b32 v10, 4, v10\nv_lshl_add_u32 v17, v8, 10, v10")
    for q in range(4):
        a(f"s_add_u32 s40, s{S_ROT}, {q}\ns_and_b32 s40, s40, 3\ns_mul_i32 s{44+q}, s40, {128*2752}")
    a(f"s_and_b32 s40, s{S_P}, 1\ns_mul_i32 s48, s40, 2752\ns_sub_u32 s49, 2752, s48")
    a(f"s_lshl_b32 s40, s{S_P}, 6\ns_add_u32 s48, s48, s40\ns_add_u32 s49, s49, s40")
    a(f"s_lshl_b32 s50, s{S_CJ}, 7\ns_mov_b32 s52, 0")
    pair_table(a, 18, 19, 20)
    a("v_lshlrev_b32 v18, 15, v18\nv_add_u32 v18, s50, v18\nv_lshlrev_b32 v19, 4, v1")
    lds_wait_ge(a, 2, FL_A_DONE - MISC, 4, 12, 40, 41)
    if LGATE:
        a("s_waitcnt vmcnt(0)\nv_mov_b32 v3, 1"); wg_signal(a, FL_Z_CNT, 4, 0, 2, 3, 12)
    Stamps.at(a, 7)
    two, w2l = a.label("ld2"), a.label("ldw2")
    if "noload" in OPT:
        a("s_waitcnt vmcnt(0)\nv_mov_b32 v3, 1"); wg_signal(a, FL_Z_CNT, 4, 0, 2, 3, 12)
        a(f"v_mov_b32 v3, 99\nds_write_b32 v16, v3 offset:{FL_FULL - MISC}\nds_write_b32 v16, v3 offset:{FL_FULL2 - MISC}\ns_branch k_ldend")
    a(f"s_cmp_eq_u32 s{S_NP}, 2\ns_cbranch_scc1 {two}")
    class Pipe:
        def __init__(s): s.items = []; s.seen = 0; s.depth = DEPTH
        def publish(s, it):
            if it[0] is None: return
            a(f"v_mov_b32 v3, {it[1]}\ns_mov_b64 exec, 15\nds_max_u32 v16, v3 offset:{it[0] - MISC}\ns_mov_b64 exec, -1")
        def probe(s, req, ok):
            a(f"s_call_b64 s[54:55], k_ldprobe\ns_cmp_ge_u32 s52, {req}\ns_cbranch_scc1 {ok}")
        def need(s, req):
            if req <= s.seen: return
            ok = a.label("ldok")
            a(f"s_cmp_ge_u32 s52, {req}\ns_cbranch_scc1 {ok}")
            for i, it in enumerate(s.items):
                if it[0] is None: continue
                s.probe(req, ok)
                a(f"s_waitcnt vmcnt({sum(x[2] for x in s.items[i+1:])})"); s.publish(it)
            lds_wait_ge(a, 2, FL_FREE - MISC, req, 12, 52, 41, minof=4, sleep=LSL)
            a(f"{ok}:")
            s.seen = req
        def done(s, word, val, cnt):
            s.items.append((word, val, cnt))
            while len(s.items) > 1 and sum(x[2] for x in s.items) > s.depth:
                it = s.items.pop(0)
                a(f"s_waitcnt vmcnt({sum(x[2] for x in s.items)})"); s.publish(it)
        def flush(s, keep=0):
            while len(s.items) > keep:
                it = s.items.pop(0)
                a(f"s_waitcnt vmcnt({sum(x[2] for x in s.items)})"); s.publish(it)
    def variant(np_):
        pp = Pipe()
        for grp in range(8):
            st, q = grp // 4, grp % 4
            if st == 0: seq = [[("A", "X", 0), ("C", "X", 64)], [("A", "Y", 0)]]
            else:       seq = [[("C", "Y", 64), ("B", "Y", 64 * (np_ - 1))], [("B", "X", 64 * (np_ - 1))]]
            if np_ == 2: seq = [[c for c in s if c[0] != "C"] for s in seq]
            tot = 0
            for si, s in enumerate(seq):
                pp.need(max([CELLS[(c[0], c[1], q)][1] for c in s] + [LGATE]))
                cl = s[0][1]; ci = 0 if cl == "X" else 1; cnt = 0
                for g in range(4):
                    for mat in range(2):
                        for n, (ps, _, off) in enumerate(s):
                            dst = CELLS[(ps, cl, q)][0] * SLOT + mat * 4096 + g * 1024
                            neg = dst - off < 0
                            a(f"s_mov_b32 m0, {dst if neg else dst - off}")
                            if mat == 0 and n == 0:
                                a(f"s_add_u32 s42, s{44+q}, s{48+ci}" if g == 0 else f"s_add_u32 s42, s42, {32*2752}")
                            if neg:
                                a(f"s_add_u32 s43, s42, {off}\nbuffer_load_dwordx4 v{4+2*ci+mat}, {sr(S_W1 + 4*mat)}, s43 offen lds")
                            else:
                                a(f"buffer_load_dwordx4 v{4+2*ci+mat}, {sr(S_W1 + 4*mat)}, s42 offen offset:{off} lds")
                            cnt += 1
                tot += cnt
                if grp == 0 and si == 1 and not LGATE:
                    a(f"s_waitcnt vmcnt({tot})\nv_mov_b32 v3, 1"); wg_signal(a, FL_Z_CNT, 4, 0, 2, 3, 12)
                pp.done(FL_FULL if si == 1 else None, grp + 1, cnt)
            if grp in (1, 3, 5, 7): Stamps.at(a, 8 + grp // 2)
            if grp == 1: a(f"s_setprio {LPRIO}")
        while pp.items and pp.items[0][1] < 8:
            pp.flush(keep=len(pp.items) - 1)
        return pp
    p3 = variant(3)
    a(f"s_branch {w2l}")
    a("k_ldprobe:")
    a(f"ds_read_b128 v[12:15], v2 offset:{FL_FREE - MISC}\ns_waitcnt lgkmcnt(0)")
    a("v_min_u32 v12, v12, v13\nv_min3_u32 v12, v12, v14, v15\nv_readfirstlane_b32 s52, v12\ns_nop 0\ns_setpc_b64 s[54:55]")
    a(f"{two}:")
    p2 = variant(2)
    a(f";@seg ld2 {HV}")
    a(f"{w2l}:")
    pp = Pipe(); pp.items = [(FL_FULL, 8, 24)]; pp.seen = min(p3.seen, p2.seen); pp.depth = DEPTH2
    TL.start(a)
    for c in range(22):
        slot, req = CELLS[("w", c)]
        ps_ = list(range(2 * c, min(2 * c + 2, 43)))
        for p in ps_: a(f"v_readlane_b32 s{44 + p % 2}, v18, {p}")
        pp.need(req)
        if c % 2 == 0: TL(a, f"c{c}")
        for p in ps_:
            for g in range(4):
                a(f"s_mov_b32 m0, {slot*SLOT + (p % 2)*4096 + g*1024}")
                if g: a(f"s_add_u32 s{44 + p % 2}, s{44 + p % 2}, 8192")
                a(f"buffer_load_dwordx4 v17, {sr(S_W2)}, s{44 + p % 2} offen lds")
        pp.done(FL_FULL2, c + 1, 4 * len(ps_))
        if c in (9, 21): Stamps.at(a, 12 if c == 9 else 13)
    TL(a, "issued")
    pp.flush()
    TL(a, "landed"); TL.park(a)

GF, ACCE, BE = 128, 64, 32

def g_first(a, n, dt16, t0):
    st, s7, ar = t0, t0 + 1, t0 + 2
    a(f"v_and_b32 v{st}, 15, v1\ns_lshr_b32 s40, s2, 5\ns_lshl_b32 s40, s40, 6\ns_add_u32 s40, s40, {dt16}\nv_add_u32 v{st}, s40, v{st}")
    a(f"v_cvt_f32_u32 v{st}, v{st}\nv_mul_f32 v{st}, {f32(1/512)}, v{st}\nv_mul_f32 v{s7}, {f32(7.0)}, v{st}")
    a(f"v_lshrrev_b32 v{ar}, 4, v1\nv_lshl_add_u32 v{ar}, v{ar}, 1, 1\nv_cvt_f32_u32 v{ar}, v{ar}\nv_mul_f32 v{ar}, v{ar}, v{st}")
    for i in range(32):
        if i: a(f"v_add_f32 v{ar}, v{ar}, v{st if i & 1 else s7}")
        t = t0 + 4 + 2 * (i & 1); p = t0 + 4 + 2 * ((i + 1) & 1)
        a(f"v_cos_f32 v{t}, v{ar}\nv_sin_f32 v{t+1}, v{ar}")
        if i: a(f"v_cvt_pk_bf16_f32 v{GF+64*n+i-1}, v{p}, -v{p+1}")
    a(f"v_cvt_pk_bf16_f32 v{GF+64*n+31}, v{t0+6}, -v{t0+7}")

def g_second(a, nt):
    a("v_and_b32 v4, 1, v1\nv_lshlrev_b32 v4, 4, v4\nv_bfe_u32 v5, v1, 1, 1\nv_lshlrev_b32 v5, 15, v5\nv_add_u32 v6, 1, v1\nv_bfe_u32 v6, v6, 1, 1\nv_lshl_or_b32 v5, v6, 31, v5")
    for n in range(nt):
        for i in range(32):
            r = GF + 64*n + i
            a(f"v_alignbit_b32 v{r+32}, v{r}, v{r}, v4")
        for i in range(32):
            r = GF + 64*n + i
            a(f"v_xor_b32 v{r+32}, v5, v{r+32}")

def e_load(a, s_pi):
    a(f"v_mov_b32 v2, {MISC}")
    a("v_lshrrev_b32 v8, 4, v1\nv_bfe_u32 v9, v1, 2, 2\nv_xor_b32 v9, v9, v8\nv_lshlrev_b32 v5, 13, v8\nv_lshrrev_b32 v10, 1, v9\nv_lshl_add_u32 v5, v10, 12, v5")
    a("v_and_b32 v10, 1, v9\nv_lshl_add_u32 v5, v10, 6, v5\nv_and_b32 v10, 3, v1\nv_lshl_add_u32 v5, v10, 4, v5")
    a(f"s_lshl_b32 s45, s{S_T}, 7\ns_lshl_b32 s40, s{s_pi}, 18\ns_add_u32 s45, s45, s40\ns_add_u32 s45, s45, {WS_E}")
    a(f"s_lshl_b32 s40, s{s_pi}, 2\nv_add_u32 v6, s40, v2")
    for i in range(4):
        (s0, r0), (s1, r1) = CELLS[("e", 2*i)], CELLS[("e", 2*i + 1)]
        lds_wait_ge(a, 2, FL_FREE - MISC, max(r0, r1), 16, 40, 41, minof=4, sleep=1)
        TH(a, f"ld{i}")
        a(f"s_mul_i32 s46, s{s_pi}, {(s1 - s0) * SLOT}\ns_add_u32 s46, s46, {s0 * SLOT}")
        for g in range(8):
            a(f"s_add_u32 m0, s46, {g*1024}")
            a(f"s_add_u32 s42, s45, {(64*i + 4*g)*8192}")
            a(f"buffer_load_dwordx4 v5, {sr(S_WS)}, s42 offen {RD} lds")
    for i in range(4):
        a(f"s_waitcnt vmcnt({8*(3-i)})\nv_mov_b32 v3, {i+1}\nds_write_b32 v6, v3 offset:{FL_FULLE - MISC}")

def e_part(a, nt, s_dt16):
    TT = TH
    dq = DsQ(a); stubs = []
    a(f"v_mov_b32 v2, {MISC}")
    a("v_lshrrev_b32 v8, 3, v1\nv_lshlrev_b32 v9, 8, v8\nv_and_b32 v8, 3, v8\nv_lshl_add_u32 v9, v8, 6, v9")
    a("v_and_b32 v8, 3, v1\nv_lshl_add_u32 v9, v8, 4, v9\nv_bfe_u32 v8, v1, 2, 1\nv_lshl_add_u32 v4, v8, 3, v9")
    for nu in range(1, 4): a(f"v_xor_b32 v{4+nu}, {64*nu}, v4")
    a("s_mov_b32 s52, 0\ns_mov_b32 s53, 0\ns_waitcnt lgkmcnt(0)")
    AH = 7
    def reads(u):
        js, nu = u // 4, u % 4
        c = js // 2
        if u % 8 == 0: check(a, stubs, 52 + (c & 1), c // 2 + 1, 2, FL_FULLE - MISC + 4 * (c & 1), 3)
        if js % 2 == 0: a(f"v_add_u32 v{16+nu}, {CELLS[('e', c)][0]*SLOT}, v{4+nu}")
        b = BE + 4 * (u % 8)
        for rd in range(2):
            dq.op(f"ds_read_b64_tr_b16 v[{b+2*rd}:{b+2*rd+1}], v{16+nu} offset:{(js % 2)*4096 + 2048*rd}", ("e", u))
    a(f"s_setprio {EPRIO}")
    for u in range(AH): reads(u)
    for u in range(64):
        js, nu = u // 4, u % 4
        b = BE + 4 * (u % 8)
        dq.wait(("e", u))
        if u % 8 == 0: TT(a, f"u{u}")
        for n in range(nt):
            d = ACCE + 16*n + 4*nu; g = GF + 64*n + 4*js
            a(f"v_mfma_f32_16x16x32_bf16 v[{d}:{d+3}], v[{g}:{g+3}], v[{b}:{b+3}], " + ("0" if js == 0 else f"v[{d}:{d+3}]"))
        if u + AH < 64: reads(u + AH)
    a(f"s_lshr_b32 s40, s{s_dt16}, 2\nv_lshrrev_b32 v17, 4, v1\nv_add_u32 v17, s40, v17\nv_and_b32 v18, 7, v1\nv_xor_b32 v17, v17, v18\nv_lshlrev_b32 v17, 4, v17")
    a(f"v_and_b32 v16, 15, v1\nv_lshl_add_u32 v16, v16, 8, v17\nv_xor_b32 v17, 64, v16")
    a(f"v_add_u32 v18, {TA[1]*SLOT}, v16\nv_add_u32 v19, {TA[1]*SLOT}, v17\nv_add_u32 v16, {TA[0]*SLOT}, v16\nv_add_u32 v17, {TA[0]*SLOT}, v17")
    TT(a, "edone")
    lds_wait_ge(a, 2, FL_FREE - MISC, TA_REQ, 4, 40, 41, minof=4, sleep=1)
    for n in range(nt):
        for nu in range(4):
            d = ACCE + 16*n + 4*nu
            a(f"ds_write_b128 v{16+n+2*(nu >> 1)}, v[{d}:{d+3}] offset:{(nu & 1)*4096}")
    TT(a, "written"); TT.park(a)
    return stubs

def h_relay(a, level, val):
    lds_wait_ge(a, 2, FL_HS - MISC, level, 16, 40, 41, minof=4, sleep=1 if level < 3 else 0)
    T3(a, f"hs{level}")
    for i in range(8): a(f"ds_read_b128 v[{32+4*i}:{35+4*i}], v24 offset:{1024*i}")
    a(f"v_mov_b32 v16, {level}\nds_write_b32 v25, v16 offset:{FL_HSF - MISC}")
    for i in range(8):
        a(f"s_waitcnt lgkmcnt({7 - i})")
        a(f"buffer_store_dwordx4 v[{32+4*i}:{35+4*i}], v26, {sr(S_WS)}, s{44 + i // 2} offen offset:{1024*(i & 1)} {WT}")
    T3(a, "st")
    a(f"v_mov_b32 v16, {val}\ns_waitcnt vmcnt({63 if ('noack' in OPT and level >= 2) or 'noack1' in OPT else 0})\ns_mov_b32 exec_hi, 0")
    a(f"buffer_atomic_add v16, v27, {sr(S_WS)}, s48 offen sc1\ns_mov_b64 exec, -1")
    T3(a, "ack")
    if Trace.on: a("s_waitcnt vmcnt(0)")
    T3(a, "atom"); T3.park(a)

def h_relay_setup(a):
    a(f"v_mov_b32 v2, {MISC}\nv_lshlrev_b32 v26, 4, v1\nv_add_u32 v24, {HST}, v26\nv_and_b32 v25, 3, v1\nv_lshl_add_u32 v25, v25, 2, v2")
    a(f"s_lshl_b32 s49, s{S_I}, 1\ns_mul_i32 s44, s49, 86\ns_lshl1_add_u32 s44, s{S_P}, s44\ns_lshl_b32 s44, s44, 10\ns_add_u32 s44, s44, {WS_H}")
    a(f"s_add_u32 s45, s44, {86*1024}\ns_add_u32 s46, s44, {32*86*1024}\ns_add_u32 s47, s46, {86*1024}")
    mbox_off(a, 48, 49)
    a("v_and_b32 v27, 7, v1\nv_lshlrev_b32 v27, 13, v27\nv_bfe_u32 v16, v1, 3, 1\nv_lshl_add_u32 v27, v16, 11, v27\nv_bfe_u32 v16, v1, 4, 1\nv_lshl_add_u32 v27, v16, 2, v27")

def scalar_prefetch(a):
    a(f"s_lshl3_add_u32 s40, s2, s3\ns_and_b32 s41, s40, 1023\ns_mulk_i32 s41, {11*128}\ns_min_u32 s41, s41, {512*2752 - 11*128}")
    a(f"s_cmp_lt_u32 s40, 1024\ns_cselect_b64 s[42:43], s[{S_W1}:{S_W1+1}], s[{S_W3}:{S_W3+1}]\ns_add_u32 s42, s42, s41\ns_addc_u32 s43, s43, 0")
    for i in range(11): a(f"s_load_dword s82, s[42:43], {128*i}")

def w2_touch(a):
    a(f"v_mov_b32 v2, {MISC}")
    lds_wait_ge(a, 2, FL_FULL - MISC, W2T, 16, 40, 41, sleep=4)
    a(f"v_lshlrev_b32 v4, 7, v1\ns_lshr_b32 s42, s2, 3\ns_mul_i32 s42, s42, {344*128}")
    for i in range(6):
        if i == 5: a("s_mov_b64 exec, 0xffffff")
        a(f"buffer_load_dword v10, v4, {sr(S_W2)}, s42 offen\ns_add_u32 s42, s42, 8192")
    a("s_mov_b64 exec, -1")

W2T = 8
L3P = 31
ET = 4
HSJ = 14
L2P = 4
PSTP = 13
L3TRY = (21, 26)
GAPB = int([o[2:] for o in OPT if o.startswith("gb")][0]) if any(o.startswith("gb") for o in OPT) else 28
EPRIO = 2
DEPTH = 40
DEPTH2 = int([o[2:] for o in OPT if o.startswith("d2")][0]) if any(o.startswith("d2") for o in OPT) else 40
LSL = 2 if "lsl" in OPT else 0
HV, HM = 256, 128
LPRIO = 0 if "lp0" in OPT else 3
ZG = 3 if "zg" in OPT else 0
WG = 3 if ("wg" in OPT or "zg" in OPT) else 0
LGATE = 3 if "lg" in OPT else 0
XS = False
SF = WT
if "nost" in OPT:
    import spec
    spec.NOST = True
a = Asm()
a.begin_kernel(NAME)
a("s_cmp_ge_u32 s2, 0x100\ns_cbranch_scc1 k_end")
Stamps.at(a, 0)
if Trace.on: a("s_memtime s[92:93]\ns_waitcnt lgkmcnt(0)")
a(f"s_load_dwordx2 s[{S_X}:{S_X+1}], s[0:1], 0\ns_load_dwordx2 s[{S_WR}:{S_WR+1}], s[0:1], 8\ns_load_dwordx2 s[{S_WI}:{S_WI+1}], s[0:1], 16")
a(f"s_load_dwordx8 s[72:79], s[0:1], 32\ns_load_dwordx2 s[{S_WS}:{S_WS+1}], s[0:1], 72\ns_load_dwordx2 s[{S_DBG}:{S_DBG+1}], s[0:1], 64")
code_prefetch(a, NAME, "k_end", 65536, 8, 255)
a("v_lshrrev_b32 v2, 6, v0\nv_and_b32 v1, 63, v0\nv_readfirstlane_b32 s3, v2")
a(f"s_mov_b32 s{S_X+2}, 0x200000\ns_mov_b32 s{S_X+3}, 0x20000")
ids_early(a)
a("s_cmp_ge_u32 s3, 4\ns_cbranch_scc1 k_helper")
x_setup(a)
x_setup_late(a)
a("s_waitcnt lgkmcnt(0)\ns_barrier")
x_issue(a, 0)
a("s_branch k_main")
a("k_helper:")
a(f"s_setprio 3\ns_sub_u32 s{S_HW}, s3, 4")
a(f"v_lshlrev_b32 v4, 2, v1\nv_add_u32 v4, {MISC}, v4\nv_mov_b32 v5, 0\nds_write_b32 v4, v5")
a(f"s_mov_b32 s{S_WR+2}, {2048*514}\ns_mov_b32 s{S_WR+3}, s{S_X+3}\ns_mov_b64 s[{S_WI+2}:{S_WI+3}], s[{S_WR+2}:{S_WR+3}]")
row_setup(a, S_HW, 18*SLOT)
a("s_waitcnt lgkmcnt(0)\ns_barrier")
row_issue(a, 17*SLOT)
ids_late(a)
Stamps.at(a, 1)
if "sp" in OPT: scalar_prefetch(a)
a(f"s_load_dword s{S_TAG}, s[80:81], 0\ns_sub_u32 s6, s{S_HW}, 1")
row_compute(a, S_HW, 18*SLOT, 17*SLOT, SF, 0, zgate=ZG, wgate=WG)
make_tag(a)
a(f"s_cmp_eq_u32 s{S_HW}, 0\ns_cbranch_scc1 k_loader")
a(f"s_lshl_b32 s42, s2, 8\ns_add_u32 s42, s42, {MBOX + 128}\nv_mov_b32 v14, 0\nv_mov_b32 v15, 0\ns_mov_b64 exec, 1")
a(f"buffer_store_dwordx2 v[14:15], off, {sr(S_WS)}, s42 {WT}\ns_mov_b64 exec, -1")
a("s_waitcnt vmcnt(0)")
wg_signal(a, FL_Z_CNT, 4, 0, 12, 13, 14)
a(f"s_setprio 0\ns_cmp_eq_u32 s{S_HW}, 3\ns_cbranch_scc1 k_h3")
a("s_branch k_h12")

a("k_main:")
ids_late(a)
if "sp" in OPT: scalar_prefetch(a)
g1_main(a)
st = g2_main(a)
emit_stubs(a, st)

a(";@endseg")
a("k_h12:")
if "nocolE" in OPT:
    res_issue(a, 12, 11); a("s_branch k_fin")
Stamps.at(a, 7)
if "nogen" not in OPT:
    col_mats(a, 6)
    col_twiddles(a, 6, S_COL, 2)
    col_twiddles(a, 6, S_COL, 1)
col_addrs(a)
Stamps.at(a, 8)
a(f"s_setprio {CPRIO}")
wait_go(a, 0)
Stamps.at(a, 9)
col_loads3(a, 6, S_COL, RD)
if "nocol" not in OPT: col_compute3(a, SF)
Stamps.at(a, 11)
a(f"v_mov_b32 v2, {MISC}\nv_mov_b32 v3, 1")
a("s_waitcnt vmcnt(0)")
Stamps.at(a, 12)
wg_signal(a, FL_E_CNT, 2, 1, 2, 3, 14)
a("s_setprio 0\ns_lshl_b32 s7, s6, 5\ns_add_u32 s55, s7, 16")
if "nogen" not in OPT:
    g_first(a, 0, "s7", 4); g_first(a, 1, "s55", 4)
    g_second(a, 2)
res_issue(a, 12, 11)
a(f"v_lshlrev_b32 v24, 12, v1\ns_lshl1_add_u32 s47, s{S_CJ}, s6\ns_lshl_b32 s47, s47, 17\ns_lshl_b32 s40, s{S_T}, 7\ns_add_u32 s47, s47, s40\ns_add_u32 s47, s47, {WS_E}")
if "noE" in OPT: a("s_branch k_fin")
Stamps.at(a, 13)
a(f"s_setprio {EPRIO}")
TH.start(a); TH(a, "waitE")
wait_go(a, 1)
TH(a, "goE")
a(f"s_mov_b32 exec_hi, 0\nbuffer_load_dword v25, v24, {sr(S_WS)}, s47 offen {RD}\ns_mov_b64 exec, -1")
Stamps.at(a, 14)
e_load(a, 6)
st = e_part(a, 2, 7)
a("s_branch k_fin")
emit_stubs(a, st)

a(";@endseg")
a("k_h3:")
warm(a, ["m1", "m2", "ld2", "m3"])
if "w2t" in OPT: w2_touch(a)
wait_go(a, 0)
h_relay_setup(a)
res_issue(a, 12, 11)
a("s_setprio 3")
T3.start(a)
h_relay(a, 1, 1)
Stamps.at(a, 9)
a(f"s_sub_u32 s49, s{S_NP}, 1\ns_lshl_b32 s49, s49, 11\ns_cmp_eq_u32 s{S_NP}, 2\ns_mov_b32 s50, 0x100\ns_cmov_b32 s50, 0x10100")
for i in range(4): a(f"s_add_u32 s{44+i}, s{44+i}, s49")
h_relay(a, 2, "s50")
Stamps.at(a, 10)
a(f"s_cmp_eq_u32 s{S_NP}, 2\ns_cbranch_scc1 k_fin")
for i in range(4): a(f"s_sub_u32 s{44+i}, s{44+i}, 2048")
h_relay(a, 3, 0x10000)
Stamps.at(a, 14)
a("s_branch k_fin")

a("k_loader:")
loader(a)
a("k_ldend:")
res_issue(a, 12, 11)
a("k_fin:")
final_combine(a, 12, 11)
a("s_xor_b32 s40, s3, 5\ns_or_b32 s40, s40, s2\ns_cmp_lg_u32 s40, 0\ns_cbranch_scc1 k_dump")
a(f"s_mov_b32 s42, {GF_EPOCH}")
flag_store(a, 42, 0, 4)
a("k_dump:")
if Stamps.on: a("s_waitcnt vmcnt(0)")
Stamps.dump(a, 0)
if Trace.on: a("s_waitcnt vmcnt(0)")
Trace.dump(a)
import json
if Trace.on: json.dump(Trace.names, open(sys.argv[1][:-2] + ".json", "w"))
a(";@endseg")
a("k_end:\ns_endpgm")
a("k_hopret:\ns_waitcnt lgkmcnt(0)\ns_setpc_b64 s[0:1]")
a.add_kernel(NAME, 256); a.add_launch(NAME, 256, 512, LDS_BYTES)
txt = a.text(header=HEADER, single=True)
if "hop" in OPT:
    txt, nh_ = hop_pass(txt, "k_hopret"); print("hop sites", nh_)
if "noal" not in OPT: txt, nw_, np_ = align_pass(txt)
open(sys.argv[1], "w").write(txt)
print("nops", a.nops_added, CELLS if "v" in OPT else "")
```

```python
import sys, math
from spec import *

OPT = set(sys.argv[2:])
Stamps.on = "stamp" in OPT or "se" in OPT
if "se" in OPT or "qs" in OPT: Stamps.skip = set(range(1, 15))
if "cyc" in OPT: Stamps.op = "s_memtime"
Trace.on = "trace" in OPT
TM, TL, TH, T3 = Trace("main", 10), Trace("loader", 31), Trace("h12", 31), Trace("h3", 31)
LSLEEP[0] = 1 if "lsleep" in OPT else 0
NAME = "parallel_sum__spectral_gfnet__glu_gated_swiglu__prompt_kernel"
HEADER = open("parallel_sum__spectral_gfnet__glu_gated_swiglu__prompt.s.ref").read().split("; Override")[0]
WT = "sc0 sc1"
RD = "" if "rdplain" in OPT else "sc1"
GF_EPOCH, MBOX = WS_FLAG, WS_FLAG + 0x10000
S_MB, S_DBG = 64, 66
FL_HS, FL_HSF = MISC + 112, MISC + 128
FL_Z_CNT, FL_E_CNT, FL_HLVL, FL_FULL2, FL_GO, FL_FULLE = MISC + 40, MISC + 44, MISC + 48, MISC + 64, MISC + 80, MISC + 96
SCRATCH = MISC + 1024
GSPIN = 1 << 14
CPRIO = 0 if "cp0" in OPT else 2
PSLEEP = 24 if "slowpoll" in OPT else 2
HWT = "" if "hplain" in OPT else WT
S_I, S_J, S_P, S_NP, S_ROT, S_T, S_CJ, S_RES, S_TAG, S_HW, S_COL = 84, 85, 86, 87, 88, 89, 90, 91, 5, 4, 83

class DsQ:
    def __init__(self, a): self.a = a; self.q = []
    def op(self, text, tag=None):
        self.a(text)
        if "read" in text.split()[0]: self.q.append(tag)
    def wait(self, tag):
        idx = [i for i, t in enumerate(self.q) if t == tag]
        if not idx: return
        n = len(self.q) - 1 - idx[-1]
        assert n <= 15, n
        self.a(f"s_waitcnt lgkmcnt({n})")
        self.q = self.q[idx[-1] + 1:]

PJ = [(43 * j) >> 4 for j in range(17)]
ORDER = [PJ[j] for j in range(16)] + [PJ[j+1] - 1 for j in range(16)] + [PJ[j] + 1 for j in range(16) if PJ[j+1] - PJ[j] == 3]

NL, NS = (int([o[2:] for o in OPT if o.startswith("nl")][0]) if any(o.startswith("nl") for o in OPT) else 10), 7
HST = 18 * SLOT
def plan_slots():
    free = [(16, 0), (17, 0)] + [(4 * w + c, c + 1) for c in range(4) for w in range(4)]
    cells = {}
    def alloc(key, release):
        free.sort(key=lambda t: t[1])
        s, req = free.pop(0)
        cells[key] = (s, req)
        free.append((s, release))
    for q in range(4):
        alloc(("A", "X", q), 5 + q); alloc(("C", "X", q), 13 + q); alloc(("A", "Y", q), 5 + q)
    for q in range(4):
        alloc(("B", "Y", q), 9 + q); alloc(("C", "Y", q), 13 + q); alloc(("B", "X", q), 9 + q)
    ne = 18 - NL
    rest_e, rest_w = list(range(ne, 8)), list(range(NL, 22))
    order = [("w", c) for c in range(NL)] + [("e", c) for c in range(ne)]
    while rest_e or rest_w:
        if rest_e: order.append(("e", rest_e.pop(0)))
        if rest_e and "ee" in OPT: order.append(("e", rest_e.pop(0)))
        if rest_w: order.append(("w", rest_w.pop(0)))
    for k in order: alloc(k, 17 + k[1] if k[0] == "w" else 99)
    global FINAL
    FINAL = sorted((rel, s) for (s, rel) in free)[:6]
    return cells
CELLS = plan_slots()
LAST_REQ = max(r for (s, r) in CELLS.values())
TA = [s for _, s in FINAL[:2]]; TB = [s for _, s in FINAL[2:]]; TA_REQ, TB_REQ = FINAL[1][0], FINAL[5][0]; assert TB_REQ <= 37, FINAL

def ids_early(a):
    a(f"s_bfe_u32 s40, s2, 0x20003\ns_and_b32 s41, s2, 3\ns_lshl2_add_u32 s{S_I}, s41, s40")
    a(f"s_bfe_u32 s40, s2, 0x10002\ns_lshr_b32 s41, s2, 5\ns_lshl3_add_u32 s{S_J}, s40, s41")
    a(f"s_add_u32 s{S_ROT}, s{S_I}, s{S_J}\ns_and_b32 s{S_ROT}, s{S_ROT}, 3")

def ids_late(a):
    a(f"s_mul_i32 s{S_P}, s{S_J}, 43\ns_add_u32 s{S_NP}, s{S_P}, 43\ns_lshr_b32 s{S_P}, s{S_P}, 4\ns_lshr_b32 s{S_NP}, s{S_NP}, 4\ns_sub_u32 s{S_NP}, s{S_NP}, s{S_P}")
    a(f"s_and_b32 s40, s2, 3\ns_bfe_u32 s41, s2, 0x10002\ns_lshl1_add_u32 s40, s40, s41\ns_bfe_u32 s41, s2, 0x20003\ns_lshl2_add_u32 s{S_T}, s40, s41\ns_lshr_b32 s{S_CJ}, s2, 5")
    a(f"s_lshl_b32 s{S_COL}, s{S_CJ}, 5\ns_add_u32 s{S_COL}, s{S_COL}, s{S_T}")
    for d, src, n in ((S_W1, 72, 512*2752), (S_W3, 74, 512*2752), (S_W2, 76, 1376*1024), (S_OUT, 78, 2048*1024)):
        a(f"s_mov_b64 s[{d}:{d+1}], s[{src}:{src+1}]\ns_mov_b32 s{d+2}, {n}\ns_mov_b32 s{d+3}, 0x20000")
    a(f"s_mov_b32 s{S_WS+2}, 0x10000000\ns_mov_b32 s{S_WS+3}, 0x20000")
    a(f"s_add_u32 s80, s{S_WS}, {GF_EPOCH}\ns_addc_u32 s81, s{S_WS+1}, 0")
    a(f"s_lshl_b32 s40, s2, 8\ns_add_u32 s40, s40, {MBOX}\ns_add_u32 s{S_MB}, s{S_WS}, s40\ns_addc_u32 s{S_MB+1}, s{S_WS+1}, 0")
    Stamps.clear(a)

def warm(a, segs):
    if "hop" not in OPT: return
    a("s_mov_b64 exec, 0")
    for sg in segs: a(f"s_call_b64 s[0:1], hs_{sg}_0")
    a("s_mov_b64 exec, -1")

def make_tag(a):
    a(f"s_mul_i32 s{S_TAG}, s{S_TAG}, 0x9E3779B1\ns_add_u32 s{S_TAG}, s{S_TAG}, 0x7F4A7C15")

def flag_store(a, soff, level, vt):
    a(f"s_add_u32 s40, s{S_TAG}, {level}\nv_mov_b32 v{vt}, s40")
    a("s_mov_b64 exec, 1")
    a(f"buffer_store_dword v{vt}, off, {sr(S_WS)}, s{soff} {WT}")
    a("s_mov_b64 exec, -1")

def h_post(a):
    a(f"s_cmp_eq_u32 s{S_NP}, 2\ns_mov_b32 s40, 0x10000\ns_cmov_b32 s40, 0x10100\nv_mov_b32 v0, s40\nv_lshlrev_b32 v2, 13, v1")
    a("s_mov_b64 exec, 0xff")
    a(f"buffer_atomic_add v0, v2, {sr(S_WS)}, s59 offen sc1")
    a("s_mov_b64 exec, -1")

def wg_signal(a, cnt_word, n, event, vaddr, vone, vt):
    zf = a.label("zf")
    a("s_mov_b64 exec, 1")
    a(f"ds_add_rtn_u32 v{vt}, v{vaddr}, v{vone} offset:{cnt_word - MISC}\ns_mov_b64 exec, -1\ns_waitcnt lgkmcnt(0)\nv_readfirstlane_b32 s40, v{vt}")
    a(f"s_cmp_lg_u32 s40, {n - 1}\ns_cbranch_scc1 {zf}")
    a(f"s_and_b32 s43, s2, 1\ns_lshl_b32 s41, s43, 7\ns_add_u32 s41, s41, {4*event}\ns_mov_b32 s40, 1")
    a(f"s_atomic_add s40, s[{S_DBG}:{S_DBG+1}], s41 glc\ns_waitcnt lgkmcnt(0)")
    a(f"s_and_b32 s40, s40, 127\ns_cmp_lg_u32 s40, 127\ns_cbranch_scc1 {zf}")
    a(f"s_lshl_b32 s43, s43, 2\ns_add_u32 s43, s43, {MBOX + 8*event}\ns_add_u32 s40, s{S_TAG}, 1\nv_mov_b32 v{vt}, s40\nv_lshlrev_b32 v{vt+1}, 8, v1")
    for i in range(4):
        a(f"buffer_store_dword v{vt}, v{vt+1}, {sr(S_WS)}, s43 offen {WT}\ns_add_u32 s43, s43, 0x4000")
    a(f"{zf}:")

def wait_go(a, event):
    top, done = a.label("gp"), a.label("gpd")
    a(f"s_mov_b32 s41, {GSPIN}\ns_add_u32 s43, s{S_TAG}, 1")
    a(f"{top}:")
    a(f"s_load_dwordx2 s[44:45], s[{S_MB}:{S_MB+1}], {8*event} glc\ns_waitcnt lgkmcnt(0)")
    a(f"s_xor_b32 s44, s44, s43\ns_xor_b32 s45, s45, s43\ns_or_b32 s44, s44, s45\ns_cbranch_scc0 {done}")
    a(f"s_sub_u32 s41, s41, 1\ns_cbranch_scc0 {top}")
    a(f"{done}:")

def level_load(a):
    a(f"s_load_dword s53, s[{S_MB}:{S_MB+1}], s54 glc")

def level_test(a, need):
    a(f"s_bitcmp1_b32 s53, {8 * need - 4}" if "nohw" not in OPT else "s_cmp_eq_u32 s2, s2")

def pair_table(a, vt, t1, t2, sx=40):
    a(f"s_and_b32 s{sx}, s{S_T}, 3\ns_lshl1_add_u32 s{sx}, s{sx}, s{S_CJ}\ns_lshl_b32 s{sx}, s{sx}, 1\ns_and_b32 s{sx}, s{sx}, 15\ns_mul_i32 s{sx+1}, s{sx}, 11\ns_lshr_b32 s{sx+1}, s{sx+1}, 4\ns_sub_u32 s{sx+1}, s{sx+1}, 32")
    a(f"v_add_u32 v{t1}, s{sx+1}, v1\nv_subrev_u32 v{t2}, 11, v{t1}\nv_min_u32 v{t1}, v{t1}, v{t2}")
    a(f"v_lshrrev_b32 v{t2}, 1, v{t1}\nv_add3_u32 v{t1}, v{t1}, v{t2}, 1\nv_min_u32 v{t1}, 15, v{t1}")
    a(f"v_add_u32 v{t2}, s{sx}, v1\nv_and_b32 v{t2}, 15, v{t2}\nv_cmp_gt_u32 vcc, 32, v1\nv_cndmask_b32 v{t1}, v{t1}, v{t2}, vcc\nv_mul_u32_u24 v{t1}, 43, v{t1}")
    a(f"v_cndmask_b32 v{t2}, 16, 27, vcc\nv_cmp_gt_u32 vcc, 16, v1\nv_cndmask_b32 v{t2}, v{t2}, 0, vcc\nv_add_u32 v{t1}, v{t1}, v{t2}\nv_lshrrev_b32 v{vt}, 4, v{t1}")

def h_wait(a, need, before=None):
    top, done = a.label("hp"), a.label("hpd")
    level_test(a, need)
    a(f"s_cbranch_scc1 {done}")
    if before: before()
    a(f"s_mov_b32 s41, {GSPIN}")
    a(f"{top}:")
    level_load(a); a("s_waitcnt lgkmcnt(0)"); level_test(a, need)
    a(f"s_cbranch_scc1 {done}\ns_sub_u32 s41, s41, 1\ns_cbranch_scc0 {top}")
    a(f"{done}:")

def mbox_off(a, dst, grp):
    a(f"s_bfe_u32 s40, s{grp}, 0x20003\ns_and_b32 s41, s{grp}, 4\ns_add_u32 s40, s40, s41\ns_and_b32 s41, s{grp}, 3\ns_lshl3_add_u32 s{dst}, s41, s40\ns_lshl_b32 s{dst}, s{dst}, 8")
    a(f"s_lshr_b32 s40, s{grp}, 5\ns_lshl2_add_u32 s{dst}, s40, s{dst}\ns_add_u32 s{dst}, s{dst}, {MBOX + 128}")

def check(a, stubs, scache, need, areg, off, vt, minof=1, before_spin=None):
    back, sl = a.label("fb"), a.label("fs")
    a(f"s_cmp_ge_u32 s{scache}, {need}")
    a(f"s_cbranch_scc0 {sl}")
    a(f"{back}:")
    stubs.append((sl, back, scache, need, areg, off, vt, minof, before_spin))

def emit_stubs(a, stubs):
    for (sl, back, sc, need, areg, off, vt, minof, before_spin) in stubs:
        a(f"{sl}:")
        if before_spin:
            a(f"ds_read_b32 v{vt}, v{areg} offset:{off}\ns_waitcnt lgkmcnt(0)\nv_readfirstlane_b32 s{sc}, v{vt}")
            a(f"s_cmp_ge_u32 s{sc}, {need}\ns_cbranch_scc1 {back}")
            before_spin()
        lds_wait_ge(a, areg, off, need, vt, sc, 41, minof=minof, sleep=1)
        a(f"s_branch {back}")

X0, ACC, AF, PD = 128, (64, 96), 32, 3

def x_setup(a):
    a(f"s_and_b32 s40, s3, 1\ns_lshl1_add_u32 s50, s{S_I}, s40\ns_lshr_b32 s41, s3, 1\ns_lshl_b32 s41, s41, 5\ns_add_u32 s50, s50, s41")
    a("s_lshl_b32 s51, s3, 15")
    a("s_lshr_b32 s41, s50, 3\ns_lshl_b32 s41, s41, 18\ns_and_b32 s42, s50, 7\ns_lshl_b32 s42, s42, 12\ns_add_u32 s56, s41, s42")
    a(f"s_lshl_b32 s40, s{S_ROT}, 8\ns_add_u32 s52, s56, s40")
    if "rs" in OPT: a(f"s_and_b32 s63, s{S_J}, 4\ns_lshr_b32 s40, s{S_J}, 2\ns_and_b32 s40, s40, 2\ns_or_b32 s63, s63, s40")
    else: a(f"s_lshr_b32 s63, s{S_J}, 1\ns_and_b32 s63, s63, 6")
    a("v_lshrrev_b32 v20, 4, v1\nv_and_b32 v21, 15, v1\nv_xor_b32 v21, v21, v20\nv_lshlrev_b32 v21, 4, v21\nv_lshl_add_u32 v20, v20, 10, v21")
    a("s_and_b32 s40, s63, 2\ns_lshl_b32 s40, s40, 6\nv_xor_b32 v16, s40, v20\nv_xor_b32 v17, 64, v16\nv_xor_b32 v18, 0x80, v16\nv_xor_b32 v19, 0x80, v17")
    a("s_lshl_b32 s63, s63, 10")

def x_setup_late(a):
    for c in range(1, 4):
        a(f"s_add_u32 s40, s{S_ROT}, {c}\ns_and_b32 s40, s40, 3\ns_lshl_b32 s40, s40, 8\ns_add_u32 s{52+c}, s56, s40")

def x_issue(a, c, between=None):
    a(f"s_add_u32 s41, s51, {c*SLOT}" if c else "s_mov_b32 s41, s51")
    for e in range(8):
        a(f"s_xor_b32 s42, s63, {e << 10}" if e else "s_mov_b32 s42, s63")
        a("s_add_u32 m0, s41, s42\ns_lshl_b32 s42, s42, 5")
        a(f"s_add_u32 s40, s42, s{52+c}")
        a(f"buffer_load_dwordx4 v{16+(e&3)}, {sr(S_X)}, s40 offen lds")
        if between: between(e)

def epilogue_ops(acc, level):
    ev = []
    for n in range(16):
        tau, r = n // 8, n % 8
        g, u = acc + 16*tau + r, acc + 16*tau + 8 + r
        ev += [(n, 0, f"v_mul_f32 v{u}, v{g}, v{u}"), (n, 1, f"v_mul_f32 v{g}, v10, v{g}"), (n + 1, 2, f"v_exp_f32 v{g}, v{g}"),
               (n + 2, 3, f"v_fma_f32 v{g}, v{g}, v11, v11"), (n + 3, 5, f"v_rcp_f32 v{g}, v{g}"), (n + 4, 4, f"v_mul_f32 v{u}, v{u}, v{g}")]
        if r & 1: ev.append((n + 5, 6, f"v_cvt_pk_bf16_f32 v{24 + 4*tau + r // 2}, v{u-1}, v{u}"))
    ops = [o for _, _, o in sorted(ev, key=lambda t: (t[0], t[1]))]
    ops.insert(len(ops) - 6, ("ds", "ds_write_b128 v22, v[24:27]"))
    ops.insert(len(ops) - 2, f"v_mov_b32 v23, {level}")
    return ops + [("ds", "ds_write_b128 v22, v[28:31] offset:1024"), ("ds", f"ds_write_b32 v9, v23 offset:{FL_HS - MISC}")]

def HB(p): return X0 + 4*p if p < 32 else 84 + 4*(p - 32)
def h_pre(a, p): a(f"v_readlane_b32 s{68 + p % 4}, v8, {p}")
def h_load(a, p): a(f"buffer_load_dwordx4 v[{HB(p)}:{HB(p)+3}], v3, {sr(S_WS)}, s{68 + p % 4} offen {RD}")
def h_burst(a, lo, hi):
    for p in range(lo, min(lo + 3, hi)): h_pre(a, p)
    for p in range(lo, hi):
        if p + 3 < hi: h_pre(a, p + 3)
        h_load(a, p)

def g1_main(a):
    dq = DsQ(a); slow = []
    a(f"s_lshl_b32 s40, s3, 2\ns_add_u32 s40, s40, {MISC}\nv_mov_b32 v9, s40")
    a("v_lshlrev_b32 v3, 4, v1")
    a("v_and_b32 v20, 31, v1\nv_lshrrev_b32 v21, 5, v1\nv_and_b32 v22, 15, v1\nv_xor_b32 v21, v21, v22\nv_lshlrev_b32 v21, 4, v21")
    a("v_lshl_add_u32 v24, v20, 8, v21\nv_add_u32 v24, s51, v24")
    for j in range(1, 8): a(f"v_xor_b32 v{24+j}, {32*j}, v24")
    a("v_bfe_u32 v20, v1, 4, 1\nv_lshrrev_b32 v21, 5, v1\nv_bfe_u32 v22, v1, 2, 2")
    a(f"v_add_u32 v8, s{S_P}, v22\nv_and_b32 v8, 1, v8")
    a("v_lshrrev_b32 v22, 1, v22\nv_lshl_add_u32 v22, v21, 2, v22\nv_lshl_add_u32 v22, v8, 1, v22\nv_lshlrev_b32 v22, 6, v22")
    a("v_lshl_add_u32 v22, v20, 12, v22\nv_lshl_add_u32 v22, v20, 5, v22")
    a("v_and_b32 v21, 1, v1\nv_lshl_add_u32 v22, v21, 4, v22\nv_bfe_u32 v21, v1, 1, 1\nv_lshl_add_u32 v4, v21, 3, v22")
    a("v_xor_b32 v5, 128, v4\nv_xor_b32 v6, 32, v4\nv_xor_b32 v7, 160, v4")
    a("s_mov_b32 s56, 0x3f803f80\ns_mov_b32 s57, 0x00003f80\ns_mov_b32 s58, 0x3f800000")
    def reads(c):
        for j in range(8):
            r = X0 + 32*c + 4*j
            dq.op(f"ds_read_b128 v[{r}:{r+3}], v{24+j} offset:{c*SLOT}", ("x", c, j))
        a(f"v_mov_b32 v14, {c + 1}")
        dq.op(f"ds_write_b32 v9, v14 offset:{FL_FREE - MISC}")
    def sums(c, only=None):
        for j in (range(8) if only is None else [only]):
            if j % 2 == 0: dq.wait(("x", c, j + 1))
            for r in range(X0 + 32*c + 4*j, X0 + 32*c + 4*j + 4):
                first = (r == X0)
                a(f"v_dot2_f32_bf16 v10, v{r}, s56, {'0' if first else 'v10'}")
                a(f"v_dot2_f32_bf16 v11, v{r}, v{r}, {'0' if first else 'v11'}")
    wd = a.label("wd")
    if "hopm" in OPT:
        for w, segs in enumerate((["x0"], ["x1"], ["x2"], ["x3"])):
            nx = a.label("wn")
            if w < 3: a(f"s_cmp_lg_u32 s3, {w}\ns_cbranch_scc1 {nx}")
            warm(a, segs)
            if w < 3: a(f"s_branch {wd}\n{nx}:")
        a(f"{wd}:")
    x_issue(a, 1)
    Stamps.at(a, 6)
    if "hopm" in OPT: a(f";@seg x0 {HV}")
    a("s_waitcnt vmcnt(8)"); Stamps.at(a, 1); reads(0)
    x_issue(a, 2, lambda e: sums(0, e))
    a("s_waitcnt vmcnt(8)"); reads(1)
    x_issue(a, 3, lambda e: sums(1, e))
    if "hopm" in OPT: a(f";@seg x1 {HV}")
    a("s_waitcnt vmcnt(8)"); reads(2); sums(2)
    a("s_waitcnt vmcnt(0)"); Stamps.at(a, 2); reads(3)
    sums(3)
    a("v_mov_b32 v12, v10\nv_mov_b32 v13, v11")
    a("v_permlane32_swap_b32 v12, v10\nv_permlane32_swap_b32 v13, v11")
    a("v_add_f32 v10, v10, v12\nv_add_f32 v11, v11, v13")
    sub = Asm(); ln_scalars(sub, 10, 11, None)
    a(sub.lines[0])
    a("v_cvt_pk_bf16_f32 v31, -v10, -v10\nv_and_b32 v31, 0xffff0000, v31")
    rest = sub.lines[1:] + [f"v_mul_f32 v10, {f32(-math.log2(math.e))}, v11", "v_mul_f32 v11, v11, v11", "v_rcp_f32 v11, v11"]
    for j in range(32):
        for r in range(4):
            x = X0 + 4*j + r; t = 16 + 2*r
            a(f"v_dot2_f32_bf16 v{t}, v{x}, s57, v31\nv_dot2_f32_bf16 v{t+1}, v{x}, s58, v31")
        if j in (2, 17) and "hopm" in OPT: a(f";@seg x{2 if j == 2 else 3} {HV}")
        if j < len(rest): a(rest[j])
        for r in range(4): a(f"v_cvt_pk_bf16_f32 v{X0+4*j+r}, v{16+2*r}, v{17+2*r}")
        if j == 24: dq.op(f"ds_read_b32 v2, v9 offset:{FL_FULL - MISC}", "poll")
    PASS = "ABC"
    def base_calc(r):
        ps, q = PASS[r // 32], (r % 32) // 8
        bx, by = CELLS[(ps, "X", q)][0] * SLOT, CELLS[(ps, "Y", q)][0] * SLOT
        a(f"v_mul_i32_i24 v0, {by - bx}, v8\nv_add_u32 v0, {bx}, v0")
        return 8
    def full_check(r):
        ps, q = PASS[r // 32], (r % 32) // 8
        need_full = {"A": q + 1, "B": q + 5, "C": 0}[ps]
        if not need_full: return 0
        back, sl = a.label("g1b"), a.label("g1s")
        dq.wait("poll")
        a(f"v_readfirstlane_b32 s40, v2\ns_cmp_ge_u32 s40, {need_full}\ns_cbranch_scc0 {sl}")
        a(f"{back}:")
        slow.append((sl, back, need_full, FL_FULL))
        return 16
    def AB(r): return 12 + 4 * ((r // 8) & 1)
    def addr(r, tau):
        for i in (2*tau, 2*tau + 1): a(f"v_add_u32 v{AB(r)+i}, v0, v{4+i}")
        return 8
    def wreads(r, tau):
        j = r % 8; b = AF + 8 * (r % 4); cost = 8
        for rd in range(2):
            dq.op(f"ds_read_b64_tr_b16 v[{b+4*tau+2*rd}:{b+4*tau+2*rd+1}], v{AB(r)+2*tau+rd} offset:{512*j}", ("w", r))
        nxt = r - j + 8
        if nxt < 96:
            if j == 2 and tau == 0: cost += base_calc(nxt)
            if j == 4: cost += addr(nxt, tau)
            if j == 7 and tau == 0: cost += full_check(nxt)
            if j == 5 and tau == 0 and nxt < 64:
                dq.op(f"ds_read_b32 v2, v9 offset:{FL_FULL - MISC}", "poll"); cost += 4
        if j == 6 and tau == 1: a(f"v_mov_b32 v0, {5 + r // 8}"); cost += 4
        if j == 7 and tau == 1:
            dq.op(f"ds_write_b32 v9, v0 offset:{FL_FREE - MISC}"); cost += 4
        return cost
    a(f";@seg m1 {HM}")
    base_calc(0); addr(0, 0); addr(0, 1); full_check(0)
    for g in range(PD): wreads(g, 0); wreads(g, 1)
    Stamps.at(a, 3)
    fin2, done = a.label("g1fin2"), a.label("g1done")
    sub = Asm()
    sub(f"s_lshl_b32 s42, s3, 11\ns_add_u32 s42, s42, {HST}\nv_add_u32 v22, s42, v3\ns_and_b32 s54, s3, 1\ns_lshl_b32 s54, s54, 2\ns_add_u32 s54, s54, 128")
    sub(f"s_and_b32 s42, s3, 1\ns_lshl_b32 s42, s42, 5\ns_add_u32 s42, s42, s{S_T}\ns_mul_i32 s50, s42, 86")
    sub(f"s_lshr_b32 s51, s3, 1\ns_add_u32 s50, s50, s51\ns_lshl_b32 s50, s50, 10\ns_add_u32 s50, s50, {WS_H}")
    pair_table(sub, 20, 24, 25, 42)
    sub("v_lshlrev_b32 v20, 11, v20\nv_add_u32 v20, s50, v20")
    sub("v_bfe_u32 v24, v1, 2, 2\nv_lshrrev_b32 v25, 5, v1\nv_lshl_add_u32 v25, v25, 3, v24\ns_lshl_b32 s42, s51, 4\nv_add_u32 v25, s42, v25")
    sub("v_lshlrev_b32 v25, 7, v25\nv_lshrrev_b32 v24, 1, v24\nv_lshl_add_u32 v25, v24, 6, v25")
    sub("v_bfe_u32 v24, v1, 4, 1\nv_lshl_add_u32 v25, v24, 5, v25\nv_and_b32 v24, 3, v1\nv_lshl_add_u32 v21, v24, 3, v25")
    res_setup(sub, 42)
    EP = {0: [l.strip() for l in sub.lines], 1: epilogue_ops(ACC[0], 1), 2: epilogue_ops(ACC[1], 2)}
    opcost = lambda o: 8 if isinstance(o, tuple) or o.startswith(("v_exp", "v_rcp")) else 4
    def emit(o):
        if isinstance(o, tuple): dq.op(o[1])
        else: a(o)
    def step(g, extra=None):
        ps, j = g // 32, g % 32
        acc = ACC[ps & 1]; ep = EP[ps]
        b = AF + 8 * (g % 4)
        dq.wait(("w", g))
        for tau in range(2):
            d = acc + 16 * tau
            a(f"v_mfma_f32_32x32x16_bf16 v[{d}:{d+15}], v[{b+4*tau}:{b+4*tau+3}], v[{X0+4*j}:{X0+4*j+3}], " + ("0" if j == 0 else f"v[{d}:{d+15}]"))
            cost = 4 * tau
            if g + PD < 96: cost += wreads(g + PD, tau)
            if ps == 2 and j in (HSJ - 3, 26) and tau == 1:
                dq.op(f"ds_read_b32 v2, v9 offset:{FL_HSF - MISC}", "poll"); cost += 4
            if ps == 2 and j == HSJ and tau == 0:
                back, sl = a.label("g1b"), a.label("g1s")
                dq.wait("poll")
                a(f"v_readfirstlane_b32 s40, v2\ns_cmp_ge_u32 s40, 1\ns_cbranch_scc0 {sl}\n{back}:")
                slow.append((sl, back, 1, FL_HSF)); cost += 16
            if ps == 2 and j == 20 and tau == 0: level_load(a); cost += 4
            while ep and j >= 1 and cost + opcost(ep[0]) <= (GAPB if ps else 20):
                assert not (ps == 2 and isinstance(ep[0], tuple) and j < HSJ)
                o = ep.pop(0); cost += opcost(o); emit(o)
                if not ep: print("fill list", ps, "ends at step", j)
            if extra: extra(tau)
    for g in range(96 - ET):
        if g == 32: a(f";@seg m2 {HM}")
        if "qs" in OPT and g % 8 == 0: Stamps.at(a, 1 + g // 8, True)
        step(g)
        if g % 32 == 31:
            assert not EP[g // 32]
            Stamps.at(a, 4 + g // 32)
        if g == 63:
            a(f"s_cmp_eq_u32 s{S_NP}, 2\ns_cbranch_scc1 {fin2}")
    assert not EP[2]
    if "qs" in OPT: Stamps.at(a, 13, True)
    late = a.label("g1late")
    a("v_mov_b32 v8, v20\ns_waitcnt lgkmcnt(0)\nv_readfirstlane_b32 s56, v2"); dq.q = []
    def final_ep(acc, level, need, extra=None):
        checked = False
        for n, o in enumerate(epilogue_ops(acc, level)):
            if isinstance(o, tuple) and not checked:
                back, sl = a.label("g1b"), a.label("g1s")
                a(f"s_cmp_ge_u32 s56, {need}\ns_cbranch_scc0 {sl}\n{back}:"); slow.append((sl, back, need, FL_HSF)); checked = True
            a(o[1] if isinstance(o, tuple) else o)
            if extra: extra(n)
    level_test(a, 1)
    a(f"s_cbranch_scc0 {late}")
    for p in range(3): h_pre(a, p)
    nxt = [0]
    def early(tau):
        p = nxt[0]
        if p >= 16: return
        if p + 3 < 16: h_pre(a, p + 3)
        h_load(a, p); nxt[0] += 1
    for g in range(96 - ET, 96): step(g, early)
    Stamps.at(a, 8)
    a(f";@seg m3 {HV}")
    level_load(a)
    final_ep(ACC[0], 3, 2)
    for _ in range(8): early(0)
    Stamps.at(a, 9)
    a(f"s_branch {done}")
    a(f"{late}:")
    dq.q = []
    for g in range(96 - ET, 96): step(g)
    level_load(a)
    final_ep(ACC[0], 3, 2)
    a("s_branch k_g2late")
    a(f"{fin2}:")
    a(f"v_mov_b32 v0, 16\nds_write_b32 v9, v0 offset:{FL_FREE - MISC}\ns_mov_b32 s56, 0\ns_mov_b32 s53, 0\nv_mov_b32 v8, v20")
    a("s_nop 15")
    final_ep(ACC[1], 2, 1)
    a("k_g2late:")
    a("s_waitcnt lgkmcnt(0)")
    h_wait(a, 1)
    h_burst(a, 0, 16)
    a(f"s_branch {done}")
    for (sl, back, n, word) in slow:
        a(f"{sl}:")
        lds_wait_ge(a, 9, word - MISC, n, 2, 40, 41)
        a(f"s_branch {back}")
    a(f"{done}:")

ACC2, AF2 = 52, 20

def slot_sel(a, dst, idx, slots):
    a(f"s_mov_b32 s{dst}, {slots[0]*SLOT}")
    for i in range(1, len(slots)):
        a(f"s_cmp_eq_u32 s{idx}, {i}\ns_cmov_b32 s{dst}, {slots[i]*SLOT}")

def g2_main(a):
    dq = DsQ(a); stubs = []
    TM.start(a); TM(a, "T0")
    vm = [("h", p) for p in range(16)]
    a(f"s_mov_b32 s55, 0\nds_read_b32 v2, v9 offset:{FL_FULL2 - MISC}")
    a("v_mov_b32 v4, v21\nv_xor_b32 v5, 64, v21\nv_add_u32 v6, 0x10000, v4\nv_add_u32 v7, 0x10000, v5\nv_add_u32 v18, 0x20000, v4\nv_add_u32 v19, 0x20000, v5")
    a("s_waitcnt lgkmcnt(0)\nv_readfirstlane_b32 s52, v2")
    Stamps.at(a, 11)
    a(f";@sp {HM}")
    AR = [4, 6, 18]
    NB = 4
    def reads(p, dl):
        c = p // 2
        if p % 2 == 0 and dl == 0: check(a, stubs, 52, c + 1, 9, FL_FULL2 - MISC, 2)
        base = CELLS[("w", c)][0] * SLOT + (p % 2) * 4096
        w, off = base >> 16, base & 0xffff
        b = AF2 + 8 * (p % NB)
        for rd in range(2):
            dq.op(f"ds_read_b64_tr_b16 v[{b+4*dl+2*rd}:{b+4*dl+2*rd+1}], v{AR[w]+dl} offset:{off + 512*rd}", ("w", p))
        if dl == 1 and p % 2 == 1 and 17 + c <= TB_REQ:
            a(f"v_mov_b32 v0, {17 + c}")
            dq.op(f"ds_write_b32 v9, v0 offset:{FL_FREE - MISC}")
    for p in range(PD): reads(p, 0); reads(p, 1)
    for p in range(43):
        if p == L2P:
            TM(a, "w2"); h_wait(a, 2); TM(a, "L2")
            for q in range(16, 19): h_pre(a, q)
        if p in L3TRY:
            skip = a.label("l3s")
            a(f"s_cmp_lg_u32 s55, 0\ns_cbranch_scc1 {skip}\ns_waitcnt lgkmcnt(0)")
            level_test(a, 3)
            a(f"s_cbranch_scc0 {skip}\ns_call_b64 s[46:47], k_l3burst")
            a(f"{skip}:")
        if p + 5 in L3TRY + (L3P,): level_load(a)
        if p == L3P:
            skip = a.label("l3s")
            TM(a, "w3")
            a(f"s_waitcnt lgkmcnt(0)\ns_cmp_lg_u32 s55, 0\ns_cbranch_scc1 {skip}")
            h_wait(a, 3)
            a("s_call_b64 s[46:47], k_l3burst")
            a(f"{skip}:")
            TM(a, "L3")
            vm += [("h", q) for q in range(32, 43)]
        b = AF2 + 8 * (p % NB)
        a(f"s_waitcnt vmcnt({len(vm) - 1 - vm.index(('h', p))})")
        if p % 4 == 0: TM(a, f"p{p}")
        dq.wait(("w", p))
        for dl in range(2):
            d = ACC2 + 16 * dl
            a(f"v_mfma_f32_32x32x16_bf16 v[{d}:{d+15}], v[{b+4*dl}:{b+4*dl+3}], v[{HB(p)}:{HB(p)+3}], " + ("0" if p == 0 else f"v[{d}:{d+15}]"))
            if p + PD < 43: reads(p + PD, dl)
        q = p - L2P + 16
        if 16 <= q < 32:
            if q + 3 < 32: h_pre(a, q + 3)
            h_load(a, q); vm.append(("h", q))
        if q == 32:
            res_load(a, 12, 11); vm.append("r")
        if p == 40:
            slot_sel(a, 40, 3, TB)
            a("v_and_b32 v16, 31, v1\nv_lshrrev_b32 v17, 5, v1\nv_and_b32 v18, 7, v1\nv_xor_b32 v17, v17, v18\nv_lshlrev_b32 v17, 4, v17\nv_lshl_add_u32 v16, v16, 8, v17\nv_add_u32 v16, s40, v16")
            for g in range(1, 4): a(f"v_xor_b32 v{16+g}, {32*g}, v16")
            a(f"v_mov_b32 v8, {MISC}")
    TM(a, "loopend")
    lds_wait_ge(a, 8, FL_FREE - MISC, TB_REQ, 4, 40, 41, minof=4)
    Stamps.at(a, 14)
    for dl in range(2):
        for g in range(4):
            r = ACC2 + 16*dl + 4*g
            a(f"ds_write_b128 v{16+g}, v[{r}:{r+3}] offset:{128*dl}")
    TM(a, "written"); TM.park(a)
    a("s_branch k_fin")
    a("k_l3burst:")
    h_burst(a, 32, 43)
    a("s_mov_b32 s55, 1\ns_setpc_b64 s[46:47]")
    return stubs

def res_setup(a, t=40):
    a(f"s_lshr_b32 s{t}, s3, 2\ns_lshl_b32 s{t}, s{t}, 20\ns_lshr_b32 s{t+1}, s{S_T}, 3\ns_lshl_b32 s{t+1}, s{t+1}, 18\ns_add_u32 s{t}, s{t}, s{t+1}")
    a(f"s_and_b32 s{t+1}, s{S_T}, 7\ns_lshl_b32 s{t+1}, s{t+1}, 12\ns_add_u32 s{t}, s{t}, s{t+1}\ns_and_b32 s{t+1}, s3, 3\ns_lshl_b32 s{t+1}, s{t+1}, 16\ns_add_u32 s{t}, s{t}, s{t+1}")
    a(f"s_lshl_b32 s{t+1}, s{S_CJ}, 7\ns_add_u32 s{S_RES}, s{t}, s{t+1}")

def res_load(a, dst, voff):
    a(f"v_bfe_u32 v{dst}, v1, 3, 2\nv_and_b32 v{voff}, 7, v1\nv_lshlrev_b32 v{voff}, 4, v{voff}\nv_lshl_add_u32 v{voff}, v{dst}, 10, v{voff}")
    a(f"v_lshrrev_b32 v{dst}, 5, v1\nv_lshl_add_u32 v{voff}, v{dst}, 15, v{voff}")
    a(f"buffer_load_dwordx4 v[{dst}:{dst+3}], v{voff}, {sr(S_X)}, s{S_RES} offen")

def res_issue(a, dst, voff):
    res_setup(a); res_load(a, dst, voff)

def final_combine(a, xr, voff):
    a("s_and_b32 s40, s3, 3\ns_lshl_b32 s40, s40, 11\ns_lshr_b32 s41, s3, 2")
    slot_sel(a, 42, 41, TB[:2]); slot_sel(a, 43, 41, TB[2:])
    a("v_lshrrev_b32 v4, 3, v1\nv_and_b32 v5, 7, v1\nv_lshlrev_b32 v5, 1, v5\nv_xor_b32 v5, v5, v4\nv_lshlrev_b32 v5, 4, v5")
    a("v_lshl_add_u32 v4, v4, 8, v5\nv_add_u32 v4, s40, v4\nv_xor_b32 v5, 16, v4")
    a("v_add_u32 v6, s42, v4\nv_add_u32 v7, s42, v5\nv_add_u32 v8, s43, v4\nv_add_u32 v9, s43, v5")
    a(f"v_add_u32 v2, {TA[1]*SLOT}, v4\nv_add_u32 v3, {TA[1]*SLOT}, v5\nv_add_u32 v4, {TA[0]*SLOT}, v4\nv_add_u32 v5, {TA[0]*SLOT}, v5")
    a("s_lshl_b32 s41, s41, 31\ns_or_b32 s42, s41, 0x3f800000")
    a("s_waitcnt vmcnt(0)")
    XU = 84
    for p in range(4):
        a(f"v_lshlrev_b32 v{XU+2*p}, 16, v{xr+p}\nv_and_b32 v{XU+2*p+1}, 0xffff0000, v{xr+p}")
    if Trace.on: a("s_memtime s[100:101]\ns_waitcnt lgkmcnt(0)\nv_writelane_b32 v100, s100, 60")
    a("s_waitcnt lgkmcnt(0)\ns_barrier")
    if Trace.on: a("s_memtime s[100:101]\ns_waitcnt lgkmcnt(0)\nv_writelane_b32 v100, s100, 61")
    R = 20
    for q in range(2):
        a(f"ds_read_b128 v[{R+4*q}:{R+4*q+3}], v{4+q}")
        a(f"ds_read_b128 v[{R+8+4*q}:{R+8+4*q+3}], v{2+q}")
        a(f"ds_read_b128 v[{R+16+4*q}:{R+16+4*q+3}], v{6+q}")
        a(f"ds_read_b128 v[{R+24+4*q}:{R+24+4*q+3}], v{8+q}")
    for p in range(4):
        if p % 2 == 0: a(f"s_waitcnt lgkmcnt({4 if p == 0 else 0})")
        r = R + 2*p
        a(f"v_pk_fma_f32 v[{r}:{r+1}], v[{r+8}:{r+9}], s[42:43], v[{r}:{r+1}] op_sel_hi:[1,0,1]")
        a(f"v_pk_add_f32 v[{r+16}:{r+17}], v[{r+16}:{r+17}], v[{r+24}:{r+25}]")
        a(f"v_pk_add_f32 v[{r}:{r+1}], v[{r}:{r+1}], v[{XU+2*p}:{XU+2*p+1}]")
        a(f"v_pk_add_f32 v[{r}:{r+1}], v[{r}:{r+1}], v[{r+16}:{r+17}]")
        a(f"v_cvt_pk_bf16_f32 v{xr+p}, v{r}, v{r+1}")
    a(f"buffer_store_dwordx4 v[{xr}:{xr+3}], v{voff}, {sr(S_OUT)}, s{S_RES} offen {'sc0 sc1' if 'owt' in OPT else 'nt' if 'ont' in OPT else ''}")

def loader(a):
    a(f"v_mov_b32 v2, {MISC}")
    a("v_and_b32 v16, 3, v1\nv_lshl_add_u32 v16, v16, 2, v2")
    a("v_lshrrev_b32 v8, 2, v1\nv_and_b32 v9, 3, v1\nv_lshlrev_b32 v9, 4, v9\nv_xor_b32 v10, 2, v8")
    a("v_mul_u32_u24 v8, 5504, v8\nv_mul_u32_u24 v10, 5504, v10\nv_xor_b32 v11, 32, v9")
    a("v_add_u32 v4, v8, v9\nv_add_u32 v5, v8, v11\nv_add_u32 v6, v10, v9\nv_add_u32 v7, v10, v11")
    a("v_lshrrev_b32 v8, 3, v1\nv_and_b32 v9, 7, v1\nv_bfe_u32 v10, v1, 4, 1\nv_lshlrev_b32 v10, 2, v10\nv_xor_b32 v10, v10, v9")
    a("v_lshlrev_b32 v10, 4, v10\nv_lshl_add_u32 v17, v8, 10, v10")
    for q in range(4):
        a(f"s_add_u32 s40, s{S_ROT}, {q}\ns_and_b32 s40, s40, 3\ns_mul_i32 s{44+q}, s40, {128*2752}")
    a(f"s_and_b32 s40, s{S_P}, 1\ns_mul_i32 s48, s40, 2752\ns_sub_u32 s49, 2752, s48")
    a(f"s_lshl_b32 s40, s{S_P}, 6\ns_add_u32 s48, s48, s40\ns_add_u32 s49, s49, s40")
    a(f"s_lshl_b32 s50, s{S_CJ}, 7\ns_mov_b32 s52, 0")
    pair_table(a, 18, 19, 20)
    a("v_lshlrev_b32 v18, 15, v18\nv_add_u32 v18, s50, v18\nv_lshlrev_b32 v19, 4, v1")
    lds_wait_ge(a, 2, FL_A_DONE - MISC, 4, 12, 40, 41)
    if LGATE:
        a("s_waitcnt vmcnt(0)\nv_mov_b32 v3, 1"); wg_signal(a, FL_Z_CNT, 4, 0, 2, 3, 12)
    Stamps.at(a, 7)
    two, w2l = a.label("ld2"), a.label("ldw2")
    if "noload" in OPT:
        a("s_waitcnt vmcnt(0)\nv_mov_b32 v3, 1"); wg_signal(a, FL_Z_CNT, 4, 0, 2, 3, 12)
        a(f"v_mov_b32 v3, 99\nds_write_b32 v16, v3 offset:{FL_FULL - MISC}\nds_write_b32 v16, v3 offset:{FL_FULL2 - MISC}\ns_branch k_ldend")
    a(f"s_cmp_eq_u32 s{S_NP}, 2\ns_cbranch_scc1 {two}")
    class Pipe:
        def __init__(s): s.items = []; s.seen = 0; s.depth = DEPTH
        def publish(s, it):
            if it[0] is None: return
            a(f"v_mov_b32 v3, {it[1]}\ns_mov_b64 exec, 15\nds_max_u32 v16, v3 offset:{it[0] - MISC}\ns_mov_b64 exec, -1")
        def probe(s, req, ok):
            a(f"s_call_b64 s[54:55], k_ldprobe\ns_cmp_ge_u32 s52, {req}\ns_cbranch_scc1 {ok}")
        def need(s, req):
            if req <= s.seen: return
            ok = a.label("ldok")
            a(f"s_cmp_ge_u32 s52, {req}\ns_cbranch_scc1 {ok}")
            for i, it in enumerate(s.items):
                if it[0] is None: continue
                s.probe(req, ok)
                a(f"s_waitcnt vmcnt({sum(x[2] for x in s.items[i+1:])})"); s.publish(it)
            lds_wait_ge(a, 2, FL_FREE - MISC, req, 12, 52, 41, minof=4, sleep=LSL)
            a(f"{ok}:")
            s.seen = req
        def done(s, word, val, cnt):
            s.items.append((word, val, cnt))
            while len(s.items) > 1 and sum(x[2] for x in s.items) > s.depth:
                it = s.items.pop(0)
                a(f"s_waitcnt vmcnt({sum(x[2] for x in s.items)})"); s.publish(it)
        def flush(s, keep=0):
            while len(s.items) > keep:
                it = s.items.pop(0)
                a(f"s_waitcnt vmcnt({sum(x[2] for x in s.items)})"); s.publish(it)
    def variant(np_):
        pp = Pipe()
        for grp in range(8):
            st, q = grp // 4, grp % 4
            if st == 0: seq = [[("A", "X", 0), ("C", "X", 64)], [("A", "Y", 0)]]
            else:       seq = [[("C", "Y", 64), ("B", "Y", 64 * (np_ - 1))], [("B", "X", 64 * (np_ - 1))]]
            if np_ == 2: seq = [[c for c in s if c[0] != "C"] for s in seq]
            tot = 0
            for si, s in enumerate(seq):
                pp.need(max([CELLS[(c[0], c[1], q)][1] for c in s] + [LGATE]))
                cl = s[0][1]; ci = 0 if cl == "X" else 1; cnt = 0
                for g in range(4):
                    for mat in range(2):
                        for n, (ps, _, off) in enumerate(s):
                            dst = CELLS[(ps, cl, q)][0] * SLOT + mat * 4096 + g * 1024
                            neg = dst - off < 0
                            a(f"s_mov_b32 m0, {dst if neg else dst - off}")
                            if mat == 0 and n == 0:
                                a(f"s_add_u32 s42, s{44+q}, s{48+ci}" if g == 0 else f"s_add_u32 s42, s42, {32*2752}")
                            if neg:
                                a(f"s_add_u32 s43, s42, {off}\nbuffer_load_dwordx4 v{4+2*ci+mat}, {sr(S_W1 + 4*mat)}, s43 offen lds")
                            else:
                                a(f"buffer_load_dwordx4 v{4+2*ci+mat}, {sr(S_W1 + 4*mat)}, s42 offen offset:{off} lds")
                            cnt += 1
                tot += cnt
                if grp == 0 and si == 1 and not LGATE:
                    a(f"s_waitcnt vmcnt({tot})\nv_mov_b32 v3, 1"); wg_signal(a, FL_Z_CNT, 4, 0, 2, 3, 12)
                pp.done(FL_FULL if si == 1 else None, grp + 1, cnt)
            if grp in (1, 3, 5, 7): Stamps.at(a, 8 + grp // 2)
            if grp == 1: a(f"s_setprio {LPRIO}")
        while pp.items and pp.items[0][1] < 8:
            pp.flush(keep=len(pp.items) - 1)
        return pp
    p3 = variant(3)
    a(f"s_branch {w2l}")
    a("k_ldprobe:")
    a(f"ds_read_b128 v[12:15], v2 offset:{FL_FREE - MISC}\ns_waitcnt lgkmcnt(0)")
    a("v_min_u32 v12, v12, v13\nv_min3_u32 v12, v12, v14, v15\nv_readfirstlane_b32 s52, v12\ns_nop 0\ns_setpc_b64 s[54:55]")
    a(f"{two}:")
    p2 = variant(2)
    a(f";@seg ld2 {HV}")
    a(f"{w2l}:")
    pp = Pipe(); pp.items = [(FL_FULL, 8, 24)]; pp.seen = min(p3.seen, p2.seen); pp.depth = DEPTH2
    TL.start(a)
    for c in range(22):
        slot, req = CELLS[("w", c)]
        ps_ = list(range(2 * c, min(2 * c + 2, 43)))
        for p in ps_: a(f"v_readlane_b32 s{44 + p % 2}, v18, {p}")
        pp.need(req)
        if c % 2 == 0: TL(a, f"c{c}")
        for p in ps_:
            for g in range(4):
                a(f"s_mov_b32 m0, {slot*SLOT + (p % 2)*4096 + g*1024}")
                if g: a(f"s_add_u32 s{44 + p % 2}, s{44 + p % 2}, 8192")
                a(f"buffer_load_dwordx4 v17, {sr(S_W2)}, s{44 + p % 2} offen lds")
        pp.done(FL_FULL2, c + 1, 4 * len(ps_))
        if c in (9, 21): Stamps.at(a, 12 if c == 9 else 13)
    TL(a, "issued")
    pp.flush()
    TL(a, "landed"); TL.park(a)

GF, ACCE, BE = 128, 64, 32

def g_first(a, n, dt16, t0):
    st, s7, ar = t0, t0 + 1, t0 + 2
    a(f"v_and_b32 v{st}, 15, v1\ns_lshr_b32 s40, s2, 5\ns_lshl_b32 s40, s40, 6\ns_add_u32 s40, s40, {dt16}\nv_add_u32 v{st}, s40, v{st}")
    a(f"v_cvt_f32_u32 v{st}, v{st}\nv_mul_f32 v{st}, {f32(1/512)}, v{st}\nv_mul_f32 v{s7}, {f32(7.0)}, v{st}")
    a(f"v_lshrrev_b32 v{ar}, 4, v1\nv_lshl_add_u32 v{ar}, v{ar}, 1, 1\nv_cvt_f32_u32 v{ar}, v{ar}\nv_mul_f32 v{ar}, v{ar}, v{st}")
    for i in range(32):
        if i: a(f"v_add_f32 v{ar}, v{ar}, v{st if i & 1 else s7}")
        t = t0 + 4 + 2 * (i & 1); p = t0 + 4 + 2 * ((i + 1) & 1)
        a(f"v_cos_f32 v{t}, v{ar}\nv_sin_f32 v{t+1}, v{ar}")
        if i: a(f"v_cvt_pk_bf16_f32 v{GF+64*n+i-1}, v{p}, -v{p+1}")
    a(f"v_cvt_pk_bf16_f32 v{GF+64*n+31}, v{t0+6}, -v{t0+7}")

def g_second(a, nt):
    a("v_and_b32 v4, 1, v1\nv_lshlrev_b32 v4, 4, v4\nv_bfe_u32 v5, v1, 1, 1\nv_lshlrev_b32 v5, 15, v5\nv_add_u32 v6, 1, v1\nv_bfe_u32 v6, v6, 1, 1\nv_lshl_or_b32 v5, v6, 31, v5")
    for n in range(nt):
        for i in range(32):
            r = GF + 64*n + i
            a(f"v_alignbit_b32 v{r+32}, v{r}, v{r}, v4")
        for i in range(32):
            r = GF + 64*n + i
            a(f"v_xor_b32 v{r+32}, v5, v{r+32}")

def e_load(a, s_pi):
    a(f"v_mov_b32 v2, {MISC}")
    a("v_lshrrev_b32 v8, 4, v1\nv_bfe_u32 v9, v1, 2, 2\nv_xor_b32 v9, v9, v8\nv_lshlrev_b32 v5, 13, v8\nv_lshrrev_b32 v10, 1, v9\nv_lshl_add_u32 v5, v10, 12, v5")
    a("v_and_b32 v10, 1, v9\nv_lshl_add_u32 v5, v10, 6, v5\nv_and_b32 v10, 3, v1\nv_lshl_add_u32 v5, v10, 4, v5")
    a(f"s_lshl_b32 s45, s{S_T}, 7\ns_lshl_b32 s40, s{s_pi}, 18\ns_add_u32 s45, s45, s40\ns_add_u32 s45, s45, {WS_E}")
    a(f"s_lshl_b32 s40, s{s_pi}, 2\nv_add_u32 v6, s40, v2")
    for i in range(4):
        (s0, r0), (s1, r1) = CELLS[("e", 2*i)], CELLS[("e", 2*i + 1)]
        lds_wait_ge(a, 2, FL_FREE - MISC, max(r0, r1), 16, 40, 41, minof=4, sleep=1)
        TH(a, f"ld{i}")
        a(f"s_mul_i32 s46, s{s_pi}, {(s1 - s0) * SLOT}\ns_add_u32 s46, s46, {s0 * SLOT}")
        for g in range(8):
            a(f"s_add_u32 m0, s46, {g*1024}")
            a(f"s_add_u32 s42, s45, {(64*i + 4*g)*8192}")
            a(f"buffer_load_dwordx4 v5, {sr(S_WS)}, s42 offen {RD} lds")
    for i in range(4):
        a(f"s_waitcnt vmcnt({8*(3-i)})\nv_mov_b32 v3, {i+1}\nds_write_b32 v6, v3 offset:{FL_FULLE - MISC}")

def e_part(a, nt, s_dt16):
    TT = TH
    dq = DsQ(a); stubs = []
    a(f"v_mov_b32 v2, {MISC}")
    a("v_lshrrev_b32 v8, 3, v1\nv_lshlrev_b32 v9, 8, v8\nv_and_b32 v8, 3, v8\nv_lshl_add_u32 v9, v8, 6, v9")
    a("v_and_b32 v8, 3, v1\nv_lshl_add_u32 v9, v8, 4, v9\nv_bfe_u32 v8, v1, 2, 1\nv_lshl_add_u32 v4, v8, 3, v9")
    for nu in range(1, 4): a(f"v_xor_b32 v{4+nu}, {64*nu}, v4")
    a("s_mov_b32 s52, 0\ns_mov_b32 s53, 0\ns_waitcnt lgkmcnt(0)")
    AH = 7
    def reads(u):
        js, nu = u // 4, u % 4
        c = js // 2
        if u % 8 == 0: check(a, stubs, 52 + (c & 1), c // 2 + 1, 2, FL_FULLE - MISC + 4 * (c & 1), 3)
        if js % 2 == 0: a(f"v_add_u32 v{16+nu}, {CELLS[('e', c)][0]*SLOT}, v{4+nu}")
        b = BE + 4 * (u % 8)
        for rd in range(2):
            dq.op(f"ds_read_b64_tr_b16 v[{b+2*rd}:{b+2*rd+1}], v{16+nu} offset:{(js % 2)*4096 + 2048*rd}", ("e", u))
    a(f"s_setprio {EPRIO}")
    for u in range(AH): reads(u)
    for u in range(64):
        js, nu = u // 4, u % 4
        b = BE + 4 * (u % 8)
        dq.wait(("e", u))
        if u % 8 == 0: TT(a, f"u{u}")
        for n in range(nt):
            d = ACCE + 16*n + 4*nu; g = GF + 64*n + 4*js
            a(f"v_mfma_f32_16x16x32_bf16 v[{d}:{d+3}], v[{g}:{g+3}], v[{b}:{b+3}], " + ("0" if js == 0 else f"v[{d}:{d+3}]"))
        if u + AH < 64: reads(u + AH)
    a(f"s_lshr_b32 s40, s{s_dt16}, 2\nv_lshrrev_b32 v17, 4, v1\nv_add_u32 v17, s40, v17\nv_and_b32 v18, 7, v1\nv_xor_b32 v17, v17, v18\nv_lshlrev_b32 v17, 4, v17")
    a(f"v_and_b32 v16, 15, v1\nv_lshl_add_u32 v16, v16, 8, v17\nv_xor_b32 v17, 64, v16")
    a(f"v_add_u32 v18, {TA[1]*SLOT}, v16\nv_add_u32 v19, {TA[1]*SLOT}, v17\nv_add_u32 v16, {TA[0]*SLOT}, v16\nv_add_u32 v17, {TA[0]*SLOT}, v17")
    TT(a, "edone")
    lds_wait_ge(a, 2, FL_FREE - MISC, TA_REQ, 4, 40, 41, minof=4, sleep=1)
    for n in range(nt):
        for nu in range(4):
            d = ACCE + 16*n + 4*nu
            a(f"ds_write_b128 v{16+n+2*(nu >> 1)}, v[{d}:{d+3}] offset:{(nu & 1)*4096}")
    TT(a, "written"); TT.park(a)
    return stubs

def h_relay(a, level, val):
    lds_wait_ge(a, 2, FL_HS - MISC, level, 16, 40, 41, minof=4, sleep=1 if level < 3 else 0)
    T3(a, f"hs{level}")
    for i in range(8): a(f"ds_read_b128 v[{32+4*i}:{35+4*i}], v24 offset:{1024*i}")
    a(f"v_mov_b32 v16, {level}\nds_write_b32 v25, v16 offset:{FL_HSF - MISC}")
    for i in range(8):
        a(f"s_waitcnt lgkmcnt({7 - i})")
        a(f"buffer_store_dwordx4 v[{32+4*i}:{35+4*i}], v26, {sr(S_WS)}, s{44 + i // 2} offen offset:{1024*(i & 1)} {WT}")
    T3(a, "st")
    a(f"v_mov_b32 v16, {val}\ns_waitcnt vmcnt({63 if ('noack' in OPT and level >= 2) or 'noack1' in OPT else 0})\ns_mov_b32 exec_hi, 0")
    a(f"buffer_atomic_add v16, v27, {sr(S_WS)}, s48 offen sc1\ns_mov_b64 exec, -1")
    T3(a, "ack")
    if Trace.on: a("s_waitcnt vmcnt(0)")
    T3(a, "atom"); T3.park(a)

def h_relay_setup(a):
    a(f"v_mov_b32 v2, {MISC}\nv_lshlrev_b32 v26, 4, v1\nv_add_u32 v24, {HST}, v26\nv_and_b32 v25, 3, v1\nv_lshl_add_u32 v25, v25, 2, v2")
    a(f"s_lshl_b32 s49, s{S_I}, 1\ns_mul_i32 s44, s49, 86\ns_lshl1_add_u32 s44, s{S_P}, s44\ns_lshl_b32 s44, s44, 10\ns_add_u32 s44, s44, {WS_H}")
    a(f"s_add_u32 s45, s44, {86*1024}\ns_add_u32 s46, s44, {32*86*1024}\ns_add_u32 s47, s46, {86*1024}")
    mbox_off(a, 48, 49)
    a("v_and_b32 v27, 7, v1\nv_lshlrev_b32 v27, 13, v27\nv_bfe_u32 v16, v1, 3, 1\nv_lshl_add_u32 v27, v16, 11, v27\nv_bfe_u32 v16, v1, 4, 1\nv_lshl_add_u32 v27, v16, 2, v27")

def scalar_prefetch(a):
    a(f"s_lshl3_add_u32 s40, s2, s3\ns_and_b32 s41, s40, 1023\ns_mulk_i32 s41, {11*128}\ns_min_u32 s41, s41, {512*2752 - 11*128}")
    a(f"s_cmp_lt_u32 s40, 1024\ns_cselect_b64 s[42:43], s[{S_W1}:{S_W1+1}], s[{S_W3}:{S_W3+1}]\ns_add_u32 s42, s42, s41\ns_addc_u32 s43, s43, 0")
    for i in range(11): a(f"s_load_dword s82, s[42:43], {128*i}")

def w2_touch(a):
    a(f"v_mov_b32 v2, {MISC}")
    lds_wait_ge(a, 2, FL_FULL - MISC, W2T, 16, 40, 41, sleep=4)
    a(f"v_lshlrev_b32 v4, 7, v1\ns_lshr_b32 s42, s2, 3\ns_mul_i32 s42, s42, {344*128}")
    for i in range(6):
        if i == 5: a("s_mov_b64 exec, 0xffffff")
        a(f"buffer_load_dword v10, v4, {sr(S_W2)}, s42 offen\ns_add_u32 s42, s42, 8192")
    a("s_mov_b64 exec, -1")

W2T = 8
L3P = 31
ET = 4
HSJ = 14
L2P = 4
PSTP = 13
L3TRY = (21, 26)
GAPB = int([o[2:] for o in OPT if o.startswith("gb")][0]) if any(o.startswith("gb") for o in OPT) else 28
EPRIO = 2
DEPTH = 40
DEPTH2 = int([o[2:] for o in OPT if o.startswith("d2")][0]) if any(o.startswith("d2") for o in OPT) else 40
LSL = 2 if "lsl" in OPT else 0
HV, HM = 256, 128
LPRIO = 0 if "lp0" in OPT else 3
ZG = 3 if "zg" in OPT else 0
WG = 3 if ("wg" in OPT or "zg" in OPT) else 0
LGATE = 3 if "lg" in OPT else 0
XS = False
SF = WT
if "nost" in OPT:
    import spec
    spec.NOST = True
a = Asm()
a.begin_kernel(NAME)
a("s_cmp_ge_u32 s2, 0x100\ns_cbranch_scc1 k_end")
Stamps.at(a, 0)
if "dbgspan" in OPT or "fix" in OPT: a("s_memrealtime s[92:93]")
if Trace.on: a("s_memtime s[92:93]\ns_waitcnt lgkmcnt(0)")
a(f"s_load_dwordx2 s[{S_X}:{S_X+1}], s[0:1], 0\ns_load_dwordx2 s[{S_WR}:{S_WR+1}], s[0:1], 8\ns_load_dwordx2 s[{S_WI}:{S_WI+1}], s[0:1], 16")
a(f"s_load_dwordx8 s[72:79], s[0:1], 32\ns_load_dwordx2 s[{S_WS}:{S_WS+1}], s[0:1], 72\ns_load_dwordx2 s[{S_DBG}:{S_DBG+1}], s[0:1], 64")
code_prefetch(a, NAME, "k_end", 65536, 8, 255)
a("v_lshrrev_b32 v2, 6, v0\nv_and_b32 v1, 63, v0\nv_readfirstlane_b32 s3, v2")
a(f"s_mov_b32 s{S_X+2}, 0x200000\ns_mov_b32 s{S_X+3}, 0x20000")
ids_early(a)
a("s_cmp_ge_u32 s3, 4\ns_cbranch_scc1 k_helper")
x_setup(a)
x_setup_late(a)
a("s_waitcnt lgkmcnt(0)\ns_barrier")
x_issue(a, 0)
a("s_branch k_main")
a("k_helper:")
a(f"s_setprio 3\ns_sub_u32 s{S_HW}, s3, 4")
a(f"v_lshlrev_b32 v4, 2, v1\nv_add_u32 v4, {MISC}, v4\nv_mov_b32 v5, 0\nds_write_b32 v4, v5")
a(f"s_mov_b32 s{S_WR+2}, {2048*514}\ns_mov_b32 s{S_WR+3}, s{S_X+3}\ns_mov_b64 s[{S_WI+2}:{S_WI+3}], s[{S_WR+2}:{S_WR+3}]")
row_setup(a, S_HW, 18*SLOT)
a("s_waitcnt lgkmcnt(0)\ns_barrier")
row_issue(a, 17*SLOT)
ids_late(a)
Stamps.at(a, 1)
if "sp" in OPT: scalar_prefetch(a)
a(f"s_load_dword s{S_TAG}, s[80:81], 0\ns_sub_u32 s6, s{S_HW}, 1")
row_compute(a, S_HW, 18*SLOT, 17*SLOT, SF, 0, zgate=ZG, wgate=WG)
make_tag(a)
a(f"s_cmp_eq_u32 s{S_HW}, 0\ns_cbranch_scc1 k_loader")
a(f"s_lshl_b32 s42, s2, 8\ns_add_u32 s42, s42, {MBOX + 128}\nv_mov_b32 v14, 0\nv_mov_b32 v15, 0\ns_mov_b64 exec, 1")
a(f"buffer_store_dwordx2 v[14:15], off, {sr(S_WS)}, s42 {WT}\ns_mov_b64 exec, -1")
a("s_waitcnt vmcnt(0)")
wg_signal(a, FL_Z_CNT, 4, 0, 12, 13, 14)
a(f"s_setprio 0\ns_cmp_eq_u32 s{S_HW}, 3\ns_cbranch_scc1 k_h3")
a("s_branch k_h12")

a("k_main:")
ids_late(a)
if "sp" in OPT: scalar_prefetch(a)
g1_main(a)
st = g2_main(a)
emit_stubs(a, st)

a(";@endseg")
a("k_h12:")
if "nocolE" in OPT:
    res_issue(a, 12, 11); a("s_branch k_fin")
Stamps.at(a, 7)
if "nogen" not in OPT:
    col_mats(a, 6)
    col_twiddles(a, 6, S_COL, 2)
    col_twiddles(a, 6, S_COL, 1)
col_addrs(a)
Stamps.at(a, 8)
a(f"s_setprio {CPRIO}")
wait_go(a, 0)
Stamps.at(a, 9)
col_loads3(a, 6, S_COL, RD)
if "nocol" not in OPT: col_compute3(a, SF)
Stamps.at(a, 11)
a(f"v_mov_b32 v2, {MISC}\nv_mov_b32 v3, 1")
a("s_waitcnt vmcnt(0)")
Stamps.at(a, 12)
wg_signal(a, FL_E_CNT, 2, 1, 2, 3, 14)
a("s_setprio 0\ns_lshl_b32 s7, s6, 5\ns_add_u32 s55, s7, 16")
if "nogen" not in OPT:
    g_first(a, 0, "s7", 4); g_first(a, 1, "s55", 4)
    g_second(a, 2)
res_issue(a, 12, 11)
a(f"v_lshlrev_b32 v24, 12, v1\ns_lshl1_add_u32 s47, s{S_CJ}, s6\ns_lshl_b32 s47, s47, 17\ns_lshl_b32 s40, s{S_T}, 7\ns_add_u32 s47, s47, s40\ns_add_u32 s47, s47, {WS_E}")
if "noE" in OPT: a("s_branch k_fin")
Stamps.at(a, 13)
a(f"s_setprio {EPRIO}")
TH.start(a); TH(a, "waitE")
wait_go(a, 1)
TH(a, "goE")
a(f"s_mov_b32 exec_hi, 0\nbuffer_load_dword v25, v24, {sr(S_WS)}, s47 offen {RD}\ns_mov_b64 exec, -1")
Stamps.at(a, 14)
e_load(a, 6)
st = e_part(a, 2, 7)
a("s_branch k_fin")
emit_stubs(a, st)

a(";@endseg")
a("k_h3:")
warm(a, ["m1", "m2", "ld2", "m3"])
if "w2t" in OPT: w2_touch(a)
wait_go(a, 0)
h_relay_setup(a)
res_issue(a, 12, 11)
a("s_setprio 3")
T3.start(a)
h_relay(a, 1, 1)
Stamps.at(a, 9)
a(f"s_sub_u32 s49, s{S_NP}, 1\ns_lshl_b32 s49, s49, 11\ns_cmp_eq_u32 s{S_NP}, 2\ns_mov_b32 s50, 0x100\ns_cmov_b32 s50, 0x10100")
for i in range(4): a(f"s_add_u32 s{44+i}, s{44+i}, s49")
h_relay(a, 2, "s50")
Stamps.at(a, 10)
a(f"s_cmp_eq_u32 s{S_NP}, 2\ns_cbranch_scc1 k_fin")
for i in range(4): a(f"s_sub_u32 s{44+i}, s{44+i}, 2048")
h_relay(a, 3, 0x10000)
Stamps.at(a, 14)
a("s_branch k_fin")

a("k_loader:")
loader(a)
a("k_ldend:")
res_issue(a, 12, 11)
a("k_fin:")
final_combine(a, 12, 11)
a("s_xor_b32 s40, s3, 5\ns_or_b32 s40, s40, s2\ns_cmp_lg_u32 s40, 0\ns_cbranch_scc1 k_dump")
a(f"s_mov_b32 s42, {GF_EPOCH}")
flag_store(a, 42, 0, 4)
a("k_dump:")
if "fix" in OPT:
    a("k_fx:\ns_memrealtime s[94:95]\ns_waitcnt lgkmcnt(0)\ns_sub_u32 s94, s94, s92\ns_cmp_lt_u32 s94, 4000\ns_cbranch_scc1 k_fx")
if "dbgspan" in OPT:
    a("s_waitcnt vmcnt(0)\ns_memrealtime s[94:95]\ns_waitcnt lgkmcnt(0)\ns_cmp_lg_u32 s3, 0\ns_cbranch_scc1 k_end")
    a("s_and_b32 s92, s92, 0xffffff\ns_and_b32 s94, s94, 0xffffff\ns_sub_u32 s93, 0xffffff, s92\ns_sub_u32 s95, s94, s92")
    for i, r in enumerate((93, 94, 92, 95)):
        a(f"s_atomic_umax s{r}, s[{S_DBG}:{S_DBG+1}], {16 + 4*i}")
    a("s_waitcnt lgkmcnt(0)")
if Stamps.on: a("s_waitcnt vmcnt(0)")
Stamps.dump(a, 0)
if Trace.on: a("s_waitcnt vmcnt(0)")
Trace.dump(a)
import json
if Trace.on: json.dump(Trace.names, open(sys.argv[1][:-2] + ".json", "w"))
a(";@endseg")
a("k_end:\ns_endpgm")
a("k_hopret:\ns_waitcnt lgkmcnt(0)\ns_setpc_b64 s[0:1]")
a.add_kernel(NAME, 256); a.add_launch(NAME, 256, 512, LDS_BYTES)
txt = a.text(header=HEADER, single=True)
if "hop" in OPT:
    txt, nh_ = hop_pass(txt, "k_hopret"); print("hop sites", nh_)
if "noal" not in OPT: txt, nw_, np_ = align_pass(txt)
open(sys.argv[1], "w").write(txt)
print("nops", a.nops_added, CELLS if "v" in OPT else "")
```

```python
import sys, math
from spec import *

OPT = set(sys.argv[2:])
Stamps.on = "stamp" in OPT or "se" in OPT
if "se" in OPT or "qs" in OPT: Stamps.skip = set(range(1, 15))
if "cyc" in OPT: Stamps.op = "s_memtime"
Trace.on = "trace" in OPT
TM, TL, TH, T3 = Trace("main", 10), Trace("loader", 31), Trace("h12", 31), Trace("h3", 31)
LSLEEP[0] = 1 if "lsleep" in OPT else 0
NAME = "parallel_sum__spectral_gfnet__glu_gated_swiglu__prompt_kernel"
HEADER = open("parallel_sum__spectral_gfnet__glu_gated_swiglu__prompt.s.ref").read().split("; Override")[0]
WT = "sc0 sc1"
RD = "" if "rdplain" in OPT else "sc1"
GF_EPOCH, MBOX = WS_FLAG, WS_FLAG + 0x10000
S_MB, S_DBG = 64, 66
FL_HS, FL_HSF = MISC + 112, MISC + 128
FL_Z_CNT, FL_E_CNT, FL_HLVL, FL_FULL2, FL_GO, FL_FULLE = MISC + 40, MISC + 44, MISC + 48, MISC + 64, MISC + 80, MISC + 96
SCRATCH = MISC + 1024
GSPIN = 1 << 14
CPRIO = 0 if "cp0" in OPT else 2
PSLEEP = 24 if "slowpoll" in OPT else 2
HWT = "" if "hplain" in OPT else WT
S_I, S_J, S_P, S_NP, S_ROT, S_T, S_CJ, S_RES, S_TAG, S_HW, S_COL = 84, 85, 86, 87, 88, 89, 90, 91, 5, 4, 83

class DsQ:
    def __init__(self, a): self.a = a; self.q = []
    def op(self, text, tag=None):
        self.a(text)
        if "read" in text.split()[0]: self.q.append(tag)
    def wait(self, tag):
        idx = [i for i, t in enumerate(self.q) if t == tag]
        if not idx: return
        n = len(self.q) - 1 - idx[-1]
        assert n <= 15, n
        self.a(f"s_waitcnt lgkmcnt({n})")
        self.q = self.q[idx[-1] + 1:]

PJ = [(43 * j) >> 4 for j in range(17)]
ORDER = [PJ[j] for j in range(16)] + [PJ[j+1] - 1 for j in range(16)] + [PJ[j] + 1 for j in range(16) if PJ[j+1] - PJ[j] == 3]

NL, NS = (int([o[2:] for o in OPT if o.startswith("nl")][0]) if any(o.startswith("nl") for o in OPT) else 10), 7
HST = 18 * SLOT
def plan_slots():
    free = [(16, 0), (17, 0)] + [(4 * w + c, c + 1) for c in range(4) for w in range(4)]
    cells = {}
    def alloc(key, release):
        free.sort(key=lambda t: t[1])
        s, req = free.pop(0)
        cells[key] = (s, req)
        free.append((s, release))
    for q in range(4):
        alloc(("A", "X", q), 5 + q); alloc(("C", "X", q), 13 + q); alloc(("A", "Y", q), 5 + q)
    for q in range(4):
        alloc(("B", "Y", q), 9 + q); alloc(("C", "Y", q), 13 + q); alloc(("B", "X", q), 9 + q)
    ne = 18 - NL
    rest_e, rest_w = list(range(ne, 8)), list(range(NL, 22))
    order = [("w", c) for c in range(NL)] + [("e", c) for c in range(ne)]
    while rest_e or rest_w:
        if rest_e: order.append(("e", rest_e.pop(0)))
        if rest_e and "ee" in OPT: order.append(("e", rest_e.pop(0)))
        if rest_w: order.append(("w", rest_w.pop(0)))
    for k in order: alloc(k, 17 + k[1] if k[0] == "w" else 99)
    global FINAL
    FINAL = sorted((rel, s) for (s, rel) in free)[:6]
    return cells
CELLS = plan_slots()
LAST_REQ = max(r for (s, r) in CELLS.values())
TA = [s for _, s in FINAL[:2]]; TB = [s for _, s in FINAL[2:]]; TA_REQ, TB_REQ = FINAL[1][0], FINAL[5][0]; assert TB_REQ <= 37, FINAL

def ids_early(a):
    a(f"s_bfe_u32 s40, s2, 0x20003\ns_and_b32 s41, s2, 3\ns_lshl2_add_u32 s{S_I}, s41, s40")
    a(f"s_bfe_u32 s40, s2, 0x10002\ns_lshr_b32 s41, s2, 5\ns_lshl3_add_u32 s{S_J}, s40, s41")
    a(f"s_add_u32 s{S_ROT}, s{S_I}, s{S_J}\ns_and_b32 s{S_ROT}, s{S_ROT}, 3")

def ids_late(a):
    a(f"s_mul_i32 s{S_P}, s{S_J}, 43\ns_add_u32 s{S_NP}, s{S_P}, 43\ns_lshr_b32 s{S_P}, s{S_P}, 4\ns_lshr_b32 s{S_NP}, s{S_NP}, 4\ns_sub_u32 s{S_NP}, s{S_NP}, s{S_P}")
    a(f"s_and_b32 s40, s2, 3\ns_bfe_u32 s41, s2, 0x10002\ns_lshl1_add_u32 s40, s40, s41\ns_bfe_u32 s41, s2, 0x20003\ns_lshl2_add_u32 s{S_T}, s40, s41\ns_lshr_b32 s{S_CJ}, s2, 5")
    a(f"s_lshl_b32 s{S_COL}, s{S_CJ}, 5\ns_add_u32 s{S_COL}, s{S_COL}, s{S_T}")
    for d, src, n in ((S_W1, 72, 512*2752), (S_W3, 74, 512*2752), (S_W2, 76, 1376*1024), (S_OUT, 78, 2048*1024)):
        a(f"s_mov_b64 s[{d}:{d+1}], s[{src}:{src+1}]\ns_mov_b32 s{d+2}, {n}\ns_mov_b32 s{d+3}, 0x20000")
    a(f"s_mov_b32 s{S_WS+2}, 0x10000000\ns_mov_b32 s{S_WS+3}, 0x20000")
    a(f"s_add_u32 s80, s{S_WS}, {GF_EPOCH}\ns_addc_u32 s81, s{S_WS+1}, 0")
    a(f"s_lshl_b32 s40, s2, 8\ns_add_u32 s40, s40, {MBOX}\ns_add_u32 s{S_MB}, s{S_WS}, s40\ns_addc_u32 s{S_MB+1}, s{S_WS+1}, 0")
    Stamps.clear(a)

def warm(a, segs):
    if "hop" not in OPT: return
    a("s_mov_b64 exec, 0")
    for sg in segs: a(f"s_call_b64 s[0:1], hs_{sg}_0")
    a("s_mov_b64 exec, -1")

def make_tag(a):
    a(f"s_mul_i32 s{S_TAG}, s{S_TAG}, 0x9E3779B1\ns_add_u32 s{S_TAG}, s{S_TAG}, 0x7F4A7C15")

def flag_store(a, soff, level, vt):
    a(f"s_add_u32 s40, s{S_TAG}, {level}\nv_mov_b32 v{vt}, s40")
    a("s_mov_b64 exec, 1")
    a(f"buffer_store_dword v{vt}, off, {sr(S_WS)}, s{soff} {WT}")
    a("s_mov_b64 exec, -1")

def h_post(a):
    a(f"s_cmp_eq_u32 s{S_NP}, 2\ns_mov_b32 s40, 0x10000\ns_cmov_b32 s40, 0x10100\nv_mov_b32 v0, s40\nv_lshlrev_b32 v2, 13, v1")
    a("s_mov_b64 exec, 0xff")
    a(f"buffer_atomic_add v0, v2, {sr(S_WS)}, s59 offen sc1")
    a("s_mov_b64 exec, -1")

def wg_signal(a, cnt_word, n, event, vaddr, vone, vt):
    zf = a.label("zf")
    a("s_mov_b64 exec, 1")
    a(f"ds_add_rtn_u32 v{vt}, v{vaddr}, v{vone} offset:{cnt_word - MISC}\ns_mov_b64 exec, -1\ns_waitcnt lgkmcnt(0)\nv_readfirstlane_b32 s40, v{vt}")
    a(f"s_cmp_lg_u32 s40, {n - 1}\ns_cbranch_scc1 {zf}")
    a(f"s_and_b32 s43, s2, 1\ns_lshl_b32 s41, s43, 7\ns_add_u32 s41, s41, {4*event}\ns_mov_b32 s40, 1")
    a(f"s_atomic_add s40, s[{S_DBG}:{S_DBG+1}], s41 glc\ns_waitcnt lgkmcnt(0)")
    a(f"s_and_b32 s40, s40, 127\ns_cmp_lg_u32 s40, 127\ns_cbranch_scc1 {zf}")
    a(f"s_lshl_b32 s43, s43, 2\ns_add_u32 s43, s43, {MBOX + 8*event}\ns_add_u32 s40, s{S_TAG}, 1\nv_mov_b32 v{vt}, s40\nv_lshlrev_b32 v{vt+1}, 8, v1")
    for i in range(4):
        a(f"buffer_store_dword v{vt}, v{vt+1}, {sr(S_WS)}, s43 offen {WT}\ns_add_u32 s43, s43, 0x4000")
    a(f"{zf}:")

def wait_go(a, event):
    top, done = a.label("gp"), a.label("gpd")
    a(f"s_mov_b32 s41, {GSPIN}\ns_add_u32 s43, s{S_TAG}, 1")
    a(f"{top}:")
    a(f"s_load_dwordx2 s[44:45], s[{S_MB}:{S_MB+1}], {8*event} glc\ns_waitcnt lgkmcnt(0)")
    a(f"s_xor_b32 s44, s44, s43\ns_xor_b32 s45, s45, s43\ns_or_b32 s44, s44, s45\ns_cbranch_scc0 {done}")
    a(f"s_sub_u32 s41, s41, 1\ns_cbranch_scc0 {top}")
    a(f"{done}:")

def level_load(a):
    a(f"s_load_dword s53, s[{S_MB}:{S_MB+1}], s54 glc")

def level_test(a, need):
    a(f"s_bitcmp1_b32 s53, {8 * need - 4}" if "nohw" not in OPT else "s_cmp_eq_u32 s2, s2")

def pair_table(a, vt, t1, t2, sx=40):
    a(f"s_and_b32 s{sx}, s{S_T}, 3\ns_lshl1_add_u32 s{sx}, s{sx}, s{S_CJ}\ns_lshl_b32 s{sx}, s{sx}, 1\ns_and_b32 s{sx}, s{sx}, 15\ns_mul_i32 s{sx+1}, s{sx}, 11\ns_lshr_b32 s{sx+1}, s{sx+1}, 4\ns_sub_u32 s{sx+1}, s{sx+1}, 32")
    a(f"v_add_u32 v{t1}, s{sx+1}, v1\nv_subrev_u32 v{t2}, 11, v{t1}\nv_min_u32 v{t1}, v{t1}, v{t2}")
    a(f"v_lshrrev_b32 v{t2}, 1, v{t1}\nv_add3_u32 v{t1}, v{t1}, v{t2}, 1\nv_min_u32 v{t1}, 15, v{t1}")
    a(f"v_add_u32 v{t2}, s{sx}, v1\nv_and_b32 v{t2}, 15, v{t2}\nv_cmp_gt_u32 vcc, 32, v1\nv_cndmask_b32 v{t1}, v{t1}, v{t2}, vcc\nv_mul_u32_u24 v{t1}, 43, v{t1}")
    a(f"v_cndmask_b32 v{t2}, 16, 27, vcc\nv_cmp_gt_u32 vcc, 16, v1\nv_cndmask_b32 v{t2}, v{t2}, 0, vcc\nv_add_u32 v{t1}, v{t1}, v{t2}\nv_lshrrev_b32 v{vt}, 4, v{t1}")

def h_wait(a, need, before=None):
    top, done = a.label("hp"), a.label("hpd")
    level_test(a, need)
    a(f"s_cbranch_scc1 {done}")
    if before: before()
    a(f"s_mov_b32 s41, {GSPIN}")
    a(f"{top}:")
    level_load(a); a("s_waitcnt lgkmcnt(0)"); level_test(a, need)
    a(f"s_cbranch_scc1 {done}\ns_sub_u32 s41, s41, 1\ns_cbranch_scc0 {top}")
    a(f"{done}:")

def mbox_off(a, dst, grp):
    a(f"s_bfe_u32 s40, s{grp}, 0x20003\ns_and_b32 s41, s{grp}, 4\ns_add_u32 s40, s40, s41\ns_and_b32 s41, s{grp}, 3\ns_lshl3_add_u32 s{dst}, s41, s40\ns_lshl_b32 s{dst}, s{dst}, 8")
    a(f"s_lshr_b32 s40, s{grp}, 5\ns_lshl2_add_u32 s{dst}, s40, s{dst}\ns_add_u32 s{dst}, s{dst}, {MBOX + 128}")

def check(a, stubs, scache, need, areg, off, vt, minof=1, before_spin=None):
    back, sl = a.label("fb"), a.label("fs")
    a(f"s_cmp_ge_u32 s{scache}, {need}")
    a(f"s_cbranch_scc0 {sl}")
    a(f"{back}:")
    stubs.append((sl, back, scache, need, areg, off, vt, minof, before_spin))

def emit_stubs(a, stubs):
    for (sl, back, sc, need, areg, off, vt, minof, before_spin) in stubs:
        a(f"{sl}:")
        if before_spin:
            a(f"ds_read_b32 v{vt}, v{areg} offset:{off}\ns_waitcnt lgkmcnt(0)\nv_readfirstlane_b32 s{sc}, v{vt}")
            a(f"s_cmp_ge_u32 s{sc}, {need}\ns_cbranch_scc1 {back}")
            before_spin()
        lds_wait_ge(a, areg, off, need, vt, sc, 41, minof=minof, sleep=1)
        a(f"s_branch {back}")

X0, ACC, AF, PD = 128, (64, 96), 32, 3

def x_setup(a):
    a(f"s_and_b32 s40, s3, 1\ns_lshl1_add_u32 s50, s{S_I}, s40\ns_lshr_b32 s41, s3, 1\ns_lshl_b32 s41, s41, 5\ns_add_u32 s50, s50, s41")
    a("s_lshl_b32 s51, s3, 15")
    a("s_lshr_b32 s41, s50, 3\ns_lshl_b32 s41, s41, 18\ns_and_b32 s42, s50, 7\ns_lshl_b32 s42, s42, 12\ns_add_u32 s56, s41, s42")
    a(f"s_lshl_b32 s40, s{S_ROT}, 8\ns_add_u32 s52, s56, s40")
    if "rs" in OPT: a(f"s_and_b32 s63, s{S_J}, 4\ns_lshr_b32 s40, s{S_J}, 2\ns_and_b32 s40, s40, 2\ns_or_b32 s63, s63, s40")
    else: a(f"s_lshr_b32 s63, s{S_J}, 1\ns_and_b32 s63, s63, 6")
    a("v_lshrrev_b32 v20, 4, v1\nv_and_b32 v21, 15, v1\nv_xor_b32 v21, v21, v20\nv_lshlrev_b32 v21, 4, v21\nv_lshl_add_u32 v20, v20, 10, v21")
    a("s_and_b32 s40, s63, 2\ns_lshl_b32 s40, s40, 6\nv_xor_b32 v16, s40, v20\nv_xor_b32 v17, 64, v16\nv_xor_b32 v18, 0x80, v16\nv_xor_b32 v19, 0x80, v17")
    a("s_lshl_b32 s63, s63, 10")

def x_setup_late(a):
    for c in range(1, 4):
        a(f"s_add_u32 s40, s{S_ROT}, {c}\ns_and_b32 s40, s40, 3\ns_lshl_b32 s40, s40, 8\ns_add_u32 s{52+c}, s56, s40")

def x_issue(a, c, between=None):
    a(f"s_add_u32 s41, s51, {c*SLOT}" if c else "s_mov_b32 s41, s51")
    for e in range(8):
        a(f"s_xor_b32 s42, s63, {e << 10}" if e else "s_mov_b32 s42, s63")
        a("s_add_u32 m0, s41, s42\ns_lshl_b32 s42, s42, 5")
        a(f"s_add_u32 s40, s42, s{52+c}")
        a(f"buffer_load_dwordx4 v{16+(e&3)}, {sr(S_X)}, s40 offen lds")
        if between: between(e)

def epilogue_ops(acc, level):
    ev = []
    for n in range(16):
        tau, r = n // 8, n % 8
        g, u = acc + 16*tau + r, acc + 16*tau + 8 + r
        ev += [(n, 0, f"v_mul_f32 v{u}, v{g}, v{u}"), (n, 1, f"v_mul_f32 v{g}, v10, v{g}"), (n + 1, 2, f"v_exp_f32 v{g}, v{g}"),
               (n + 2, 3, f"v_fma_f32 v{g}, v{g}, v11, v11"), (n + 3, 5, f"v_rcp_f32 v{g}, v{g}"), (n + 4, 4, f"v_mul_f32 v{u}, v{u}, v{g}")]
        if r & 1: ev.append((n + 5, 6, f"v_cvt_pk_bf16_f32 v{24 + 4*tau + r // 2}, v{u-1}, v{u}"))
    ops = [o for _, _, o in sorted(ev, key=lambda t: (t[0], t[1]))]
    ops.insert(len(ops) - 6, ("ds", "ds_write_b128 v22, v[24:27]"))
    ops.insert(len(ops) - 2, f"v_mov_b32 v23, {level}")
    return ops + [("ds", "ds_write_b128 v22, v[28:31] offset:1024"), ("ds", f"ds_write_b32 v9, v23 offset:{FL_HS - MISC}")]

def HB(p): return X0 + 4*p if p < 32 else 84 + 4*(p - 32)
def h_pre(a, p): a(f"v_readlane_b32 s{68 + p % 4}, v8, {p}")
def h_load(a, p): a(f"buffer_load_dwordx4 v[{HB(p)}:{HB(p)+3}], v3, {sr(S_WS)}, s{68 + p % 4} offen {RD}")
def h_burst(a, lo, hi):
    for p in range(lo, min(lo + 3, hi)): h_pre(a, p)
    for p in range(lo, hi):
        if p + 3 < hi: h_pre(a, p + 3)
        h_load(a, p)

def g1_main(a):
    dq = DsQ(a); slow = []
    a(f"s_lshl_b32 s40, s3, 2\ns_add_u32 s40, s40, {MISC}\nv_mov_b32 v9, s40")
    a("v_lshlrev_b32 v3, 4, v1")
    a("v_and_b32 v20, 31, v1\nv_lshrrev_b32 v21, 5, v1\nv_and_b32 v22, 15, v1\nv_xor_b32 v21, v21, v22\nv_lshlrev_b32 v21, 4, v21")
    a("v_lshl_add_u32 v24, v20, 8, v21\nv_add_u32 v24, s51, v24")
    for j in range(1, 8): a(f"v_xor_b32 v{24+j}, {32*j}, v24")
    a("v_bfe_u32 v20, v1, 4, 1\nv_lshrrev_b32 v21, 5, v1\nv_bfe_u32 v22, v1, 2, 2")
    a(f"v_add_u32 v8, s{S_P}, v22\nv_and_b32 v8, 1, v8")
    a("v_lshrrev_b32 v22, 1, v22\nv_lshl_add_u32 v22, v21, 2, v22\nv_lshl_add_u32 v22, v8, 1, v22\nv_lshlrev_b32 v22, 6, v22")
    a("v_lshl_add_u32 v22, v20, 12, v22\nv_lshl_add_u32 v22, v20, 5, v22")
    a("v_and_b32 v21, 1, v1\nv_lshl_add_u32 v22, v21, 4, v22\nv_bfe_u32 v21, v1, 1, 1\nv_lshl_add_u32 v4, v21, 3, v22")
    a("v_xor_b32 v5, 128, v4\nv_xor_b32 v6, 32, v4\nv_xor_b32 v7, 160, v4")
    a("s_mov_b32 s56, 0x3f803f80\ns_mov_b32 s57, 0x00003f80\ns_mov_b32 s58, 0x3f800000")
    def reads(c):
        for j in range(8):
            r = X0 + 32*c + 4*j
            dq.op(f"ds_read_b128 v[{r}:{r+3}], v{24+j} offset:{c*SLOT}", ("x", c, j))
        a(f"v_mov_b32 v14, {c + 1}")
        dq.op(f"ds_write_b32 v9, v14 offset:{FL_FREE - MISC}")
    def sums(c, only=None):
        for j in (range(8) if only is None else [only]):
            if j % 2 == 0: dq.wait(("x", c, j + 1))
            for r in range(X0 + 32*c + 4*j, X0 + 32*c + 4*j + 4):
                first = (r == X0)
                a(f"v_dot2_f32_bf16 v10, v{r}, s56, {'0' if first else 'v10'}")
                a(f"v_dot2_f32_bf16 v11, v{r}, v{r}, {'0' if first else 'v11'}")
    wd = a.label("wd")
    if "hopm" in OPT:
        for w, segs in enumerate((["x0"], ["x1"], ["x2"], ["x3"])):
            nx = a.label("wn")
            if w < 3: a(f"s_cmp_lg_u32 s3, {w}\ns_cbranch_scc1 {nx}")
            warm(a, segs)
            if w < 3: a(f"s_branch {wd}\n{nx}:")
        a(f"{wd}:")
    x_issue(a, 1)
    Stamps.at(a, 6)
    if "hopm" in OPT: a(f";@seg x0 {HV}")
    a("s_waitcnt vmcnt(8)"); Stamps.at(a, 1); reads(0)
    x_issue(a, 2, lambda e: sums(0, e))
    a("s_waitcnt vmcnt(8)"); reads(1)
    x_issue(a, 3, lambda e: sums(1, e))
    if "hopm" in OPT: a(f";@seg x1 {HV}")
    a("s_waitcnt vmcnt(8)"); reads(2); sums(2)
    a("s_waitcnt vmcnt(0)"); Stamps.at(a, 2); reads(3)
    sums(3)
    a("v_mov_b32 v12, v10\nv_mov_b32 v13, v11")
    a("v_permlane32_swap_b32 v12, v10\nv_permlane32_swap_b32 v13, v11")
    a("v_add_f32 v10, v10, v12\nv_add_f32 v11, v11, v13")
    sub = Asm(); ln_scalars(sub, 10, 11, None)
    a(sub.lines[0])
    a("v_cvt_pk_bf16_f32 v31, -v10, -v10\nv_and_b32 v31, 0xffff0000, v31")
    rest = sub.lines[1:] + [f"v_mul_f32 v10, {f32(-math.log2(math.e))}, v11", "v_mul_f32 v11, v11, v11", "v_rcp_f32 v11, v11"]
    for j in range(32):
        for r in range(4):
            x = X0 + 4*j + r; t = 16 + 2*r
            a(f"v_dot2_f32_bf16 v{t}, v{x}, s57, v31\nv_dot2_f32_bf16 v{t+1}, v{x}, s58, v31")
        if j in (2, 17) and "hopm" in OPT: a(f";@seg x{2 if j == 2 else 3} {HV}")
        if j < len(rest): a(rest[j])
        for r in range(4): a(f"v_cvt_pk_bf16_f32 v{X0+4*j+r}, v{16+2*r}, v{17+2*r}")
        if j == 24: dq.op(f"ds_read_b32 v2, v9 offset:{FL_FULL - MISC}", "poll")
    PASS = "ABC"
    def base_calc(r):
        ps, q = PASS[r // 32], (r % 32) // 8
        bx, by = CELLS[(ps, "X", q)][0] * SLOT, CELLS[(ps, "Y", q)][0] * SLOT
        a(f"v_mul_i32_i24 v0, {by - bx}, v8\nv_add_u32 v0, {bx}, v0")
        return 8
    def full_check(r):
        ps, q = PASS[r // 32], (r % 32) // 8
        need_full = {"A": q + 1, "B": q + 5, "C": 0}[ps]
        if not need_full: return 0
        back, sl = a.label("g1b"), a.label("g1s")
        dq.wait("poll")
        a(f"v_readfirstlane_b32 s40, v2\ns_cmp_ge_u32 s40, {need_full}\ns_cbranch_scc0 {sl}")
        a(f"{back}:")
        slow.append((sl, back, need_full, FL_FULL))
        return 16
    def AB(r): return 12 + 4 * ((r // 8) & 1)
    def addr(r, tau):
        for i in (2*tau, 2*tau + 1): a(f"v_add_u32 v{AB(r)+i}, v0, v{4+i}")
        return 8
    def wreads(r, tau):
        j = r % 8; b = AF + 8 * (r % 4); cost = 8
        for rd in range(2):
            dq.op(f"ds_read_b64_tr_b16 v[{b+4*tau+2*rd}:{b+4*tau+2*rd+1}], v{AB(r)+2*tau+rd} offset:{512*j}", ("w", r))
        nxt = r - j + 8
        if nxt < 96:
            if j == 2 and tau == 0: cost += base_calc(nxt)
            if j == 4: cost += addr(nxt, tau)
            if j == 7 and tau == 0: cost += full_check(nxt)
            if j == 5 and tau == 0 and nxt < 64:
                dq.op(f"ds_read_b32 v2, v9 offset:{FL_FULL - MISC}", "poll"); cost += 4
        if j == 6 and tau == 1: a(f"v_mov_b32 v0, {5 + r // 8}"); cost += 4
        if j == 7 and tau == 1:
            dq.op(f"ds_write_b32 v9, v0 offset:{FL_FREE - MISC}"); cost += 4
        return cost
    a(f";@seg m1 {HM}")
    base_calc(0); addr(0, 0); addr(0, 1); full_check(0)
    for g in range(PD): wreads(g, 0); wreads(g, 1)
    Stamps.at(a, 3)
    fin2, done = a.label("g1fin2"), a.label("g1done")
    sub = Asm()
    sub(f"s_lshl_b32 s42, s3, 11\ns_add_u32 s42, s42, {HST}\nv_add_u32 v22, s42, v3\ns_and_b32 s54, s3, 1\ns_lshl_b32 s54, s54, 2\ns_add_u32 s54, s54, 128")
    sub(f"s_and_b32 s42, s3, 1\ns_lshl_b32 s42, s42, 5\ns_add_u32 s42, s42, s{S_T}\ns_mul_i32 s50, s42, 86")
    sub(f"s_lshr_b32 s51, s3, 1\ns_add_u32 s50, s50, s51\ns_lshl_b32 s50, s50, 10\ns_add_u32 s50, s50, {WS_H}")
    pair_table(sub, 20, 24, 25, 42)
    sub("v_lshlrev_b32 v20, 11, v20\nv_add_u32 v20, s50, v20")
    sub("v_bfe_u32 v24, v1, 2, 2\nv_lshrrev_b32 v25, 5, v1\nv_lshl_add_u32 v25, v25, 3, v24\ns_lshl_b32 s42, s51, 4\nv_add_u32 v25, s42, v25")
    sub("v_lshlrev_b32 v25, 7, v25\nv_lshrrev_b32 v24, 1, v24\nv_lshl_add_u32 v25, v24, 6, v25")
    sub("v_bfe_u32 v24, v1, 4, 1\nv_lshl_add_u32 v25, v24, 5, v25\nv_and_b32 v24, 3, v1\nv_lshl_add_u32 v21, v24, 3, v25")
    res_setup(sub, 42)
    EP = {0: [l.strip() for l in sub.lines], 1: epilogue_ops(ACC[0], 1), 2: epilogue_ops(ACC[1], 2)}
    opcost = lambda o: 8 if isinstance(o, tuple) or o.startswith(("v_exp", "v_rcp")) else 4
    def emit(o):
        if isinstance(o, tuple): dq.op(o[1])
        else: a(o)
    def step(g, extra=None):
        ps, j = g // 32, g % 32
        acc = ACC[ps & 1]; ep = EP[ps]
        b = AF + 8 * (g % 4)
        dq.wait(("w", g))
        for tau in range(2):
            d = acc + 16 * tau
            a(f"v_mfma_f32_32x32x16_bf16 v[{d}:{d+15}], v[{b+4*tau}:{b+4*tau+3}], v[{X0+4*j}:{X0+4*j+3}], " + ("0" if j == 0 else f"v[{d}:{d+15}]"))
            cost = 4 * tau
            if g + PD < 96: cost += wreads(g + PD, tau)
            if ps == 2 and j in (HSJ - 3, 26) and tau == 1:
                dq.op(f"ds_read_b32 v2, v9 offset:{FL_HSF - MISC}", "poll"); cost += 4
            if ps == 2 and j == HSJ and tau == 0:
                back, sl = a.label("g1b"), a.label("g1s")
                dq.wait("poll")
                a(f"v_readfirstlane_b32 s40, v2\ns_cmp_ge_u32 s40, 1\ns_cbranch_scc0 {sl}\n{back}:")
                slow.append((sl, back, 1, FL_HSF)); cost += 16
            if ps == 2 and j == 20 and tau == 0: level_load(a); cost += 4
            while ep and j >= 1 and cost + opcost(ep[0]) <= (GAPB if ps else 20):
                assert not (ps == 2 and isinstance(ep[0], tuple) and j < HSJ)
                o = ep.pop(0); cost += opcost(o); emit(o)
                if not ep: print("fill list", ps, "ends at step", j)
            if extra: extra(tau)
    for g in range(96 - ET):
        if g == 32: a(f";@seg m2 {HM}")
        if "qs" in OPT and g % 8 == 0: Stamps.at(a, 1 + g // 8, True)
        step(g)
        if g % 32 == 31:
            assert not EP[g // 32]
            Stamps.at(a, 4 + g // 32)
        if g == 63:
            a(f"s_cmp_eq_u32 s{S_NP}, 2\ns_cbranch_scc1 {fin2}")
    assert not EP[2]
    if "qs" in OPT: Stamps.at(a, 13, True)
    late = a.label("g1late")
    a("v_mov_b32 v8, v20\ns_waitcnt lgkmcnt(0)\nv_readfirstlane_b32 s56, v2"); dq.q = []
    def final_ep(acc, level, need, extra=None):
        checked = False
        for n, o in enumerate(epilogue_ops(acc, level)):
            if isinstance(o, tuple) and not checked:
                back, sl = a.label("g1b"), a.label("g1s")
                a(f"s_cmp_ge_u32 s56, {need}\ns_cbranch_scc0 {sl}\n{back}:"); slow.append((sl, back, need, FL_HSF)); checked = True
            a(o[1] if isinstance(o, tuple) else o)
            if extra: extra(n)
    level_test(a, 1)
    a(f"s_cbranch_scc0 {late}")
    for p in range(3): h_pre(a, p)
    nxt = [0]
    def early(tau):
        p = nxt[0]
        if p >= 16: return
        if p + 3 < 16: h_pre(a, p + 3)
        h_load(a, p); nxt[0] += 1
    for g in range(96 - ET, 96): step(g, early)
    Stamps.at(a, 8)
    a(f";@seg m3 {HV}")
    level_load(a)
    final_ep(ACC[0], 3, 2)
    for _ in range(8): early(0)
    Stamps.at(a, 9)
    a(f"s_branch {done}")
    a(f"{late}:")
    dq.q = []
    for g in range(96 - ET, 96): step(g)
    level_load(a)
    final_ep(ACC[0], 3, 2)
    a("s_branch k_g2late")
    a(f"{fin2}:")
    a(f"v_mov_b32 v0, 16\nds_write_b32 v9, v0 offset:{FL_FREE - MISC}\ns_mov_b32 s56, 0\ns_mov_b32 s53, 0\nv_mov_b32 v8, v20")
    a("s_nop 15")
    final_ep(ACC[1], 2, 1)
    a("k_g2late:")
    a("s_waitcnt lgkmcnt(0)")
    h_wait(a, 1)
    h_burst(a, 0, 16)
    a(f"s_branch {done}")
    for (sl, back, n, word) in slow:
        a(f"{sl}:")
        lds_wait_ge(a, 9, word - MISC, n, 2, 40, 41)
        a(f"s_branch {back}")
    a(f"{done}:")

ACC2, AF2 = 52, 20

def slot_sel(a, dst, idx, slots):
    a(f"s_mov_b32 s{dst}, {slots[0]*SLOT}")
    for i in range(1, len(slots)):
        a(f"s_cmp_eq_u32 s{idx}, {i}\ns_cmov_b32 s{dst}, {slots[i]*SLOT}")

def g2_main(a):
    dq = DsQ(a); stubs = []
    TM.start(a); TM(a, "T0")
    vm = [("h", p) for p in range(16)]
    a(f"s_mov_b32 s55, 0\nds_read_b32 v2, v9 offset:{FL_FULL2 - MISC}")
    a("v_mov_b32 v4, v21\nv_xor_b32 v5, 64, v21\nv_add_u32 v6, 0x10000, v4\nv_add_u32 v7, 0x10000, v5\nv_add_u32 v18, 0x20000, v4\nv_add_u32 v19, 0x20000, v5")
    a("s_waitcnt lgkmcnt(0)\nv_readfirstlane_b32 s52, v2")
    Stamps.at(a, 11)
    a(f";@sp {HM}")
    AR = [4, 6, 18]
    NB = 4
    def reads(p, dl):
        c = p // 2
        if p % 2 == 0 and dl == 0: check(a, stubs, 52, c + 1, 9, FL_FULL2 - MISC, 2)
        base = CELLS[("w", c)][0] * SLOT + (p % 2) * 4096
        w, off = base >> 16, base & 0xffff
        b = AF2 + 8 * (p % NB)
        for rd in range(2):
            dq.op(f"ds_read_b64_tr_b16 v[{b+4*dl+2*rd}:{b+4*dl+2*rd+1}], v{AR[w]+dl} offset:{off + 512*rd}", ("w", p))
        if dl == 1 and p % 2 == 1 and 17 + c <= TB_REQ:
            a(f"v_mov_b32 v0, {17 + c}")
            dq.op(f"ds_write_b32 v9, v0 offset:{FL_FREE - MISC}")
    for p in range(PD): reads(p, 0); reads(p, 1)
    for p in range(43):
        if p == L2P:
            TM(a, "w2")
            if L2P > 4: a("s_waitcnt lgkmcnt(0)")
            h_wait(a, 2); TM(a, "L2")
            for q in range(16, 19): h_pre(a, q)
        if p in L3TRY:
            skip = a.label("l3s")
            a(f"s_cmp_lg_u32 s55, 0\ns_cbranch_scc1 {skip}\ns_waitcnt lgkmcnt(0)")
            level_test(a, 3)
            a(f"s_cbranch_scc0 {skip}\ns_call_b64 s[46:47], k_l3burst")
            a(f"{skip}:")
        if p + 5 in L3TRY + (L3P,) or (L2P > 4 and p == max(L2P - 7, 0)): level_load(a)
        if p == L3P:
            skip = a.label("l3s")
            TM(a, "w3")
            a(f"s_waitcnt lgkmcnt(0)\ns_cmp_lg_u32 s55, 0\ns_cbranch_scc1 {skip}")
            h_wait(a, 3)
            a("s_call_b64 s[46:47], k_l3burst")
            a(f"{skip}:")
            TM(a, "L3")
            vm += [("h", q) for q in range(32, 43)]
        b = AF2 + 8 * (p % NB)
        a(f"s_waitcnt vmcnt({len(vm) - 1 - vm.index(('h', p))})")
        if p % 4 == 0: TM(a, f"p{p}")
        dq.wait(("w", p))
        for dl in range(2):
            d = ACC2 + 16 * dl
            a(f"v_mfma_f32_32x32x16_bf16 v[{d}:{d+15}], v[{b+4*dl}:{b+4*dl+3}], v[{HB(p)}:{HB(p)+3}], " + ("0" if p == 0 else f"v[{d}:{d+15}]"))
            if p + PD < 43: reads(p + PD, dl)
        for q in range(LR * (p - L2P) + 16, LR * (p - L2P + 1) + 16):
            if 16 <= q < 32:
                if q + 3 < 32: h_pre(a, q + 3)
                h_load(a, q); vm.append(("h", q))
        if LR * (p - L2P) + 16 == 32:
            res_load(a, 12, 11); vm.append("r")
        if p == 40:
            slot_sel(a, 40, 3, TB)
            a("v_and_b32 v16, 31, v1\nv_lshrrev_b32 v17, 5, v1\nv_and_b32 v18, 7, v1\nv_xor_b32 v17, v17, v18\nv_lshlrev_b32 v17, 4, v17\nv_lshl_add_u32 v16, v16, 8, v17\nv_add_u32 v16, s40, v16")
            for g in range(1, 4): a(f"v_xor_b32 v{16+g}, {32*g}, v16")
            a(f"v_mov_b32 v8, {MISC}")
    TM(a, "loopend")
    lds_wait_ge(a, 8, FL_FREE - MISC, TB_REQ, 4, 40, 41, minof=4)
    Stamps.at(a, 14)
    for dl in range(2):
        for g in range(4):
            r = ACC2 + 16*dl + 4*g
            a(f"ds_write_b128 v{16+g}, v[{r}:{r+3}] offset:{128*dl}")
    TM(a, "written"); TM.park(a)
    a("s_branch k_fin")
    a("k_l3burst:")
    h_burst(a, 32, 43)
    a("s_mov_b32 s55, 1\ns_setpc_b64 s[46:47]")
    return stubs

def res_setup(a, t=40):
    a(f"s_lshr_b32 s{t}, s3, 2\ns_lshl_b32 s{t}, s{t}, 20\ns_lshr_b32 s{t+1}, s{S_T}, 3\ns_lshl_b32 s{t+1}, s{t+1}, 18\ns_add_u32 s{t}, s{t}, s{t+1}")
    a(f"s_and_b32 s{t+1}, s{S_T}, 7\ns_lshl_b32 s{t+1}, s{t+1}, 12\ns_add_u32 s{t}, s{t}, s{t+1}\ns_and_b32 s{t+1}, s3, 3\ns_lshl_b32 s{t+1}, s{t+1}, 16\ns_add_u32 s{t}, s{t}, s{t+1}")
    a(f"s_lshl_b32 s{t+1}, s{S_CJ}, 7\ns_add_u32 s{S_RES}, s{t}, s{t+1}")

def res_load(a, dst, voff):
    a(f"v_bfe_u32 v{dst}, v1, 3, 2\nv_and_b32 v{voff}, 7, v1\nv_lshlrev_b32 v{voff}, 4, v{voff}\nv_lshl_add_u32 v{voff}, v{dst}, 10, v{voff}")
    a(f"v_lshrrev_b32 v{dst}, 5, v1\nv_lshl_add_u32 v{voff}, v{dst}, 15, v{voff}")
    a(f"buffer_load_dwordx4 v[{dst}:{dst+3}], v{voff}, {sr(S_X)}, s{S_RES} offen")

def res_issue(a, dst, voff):
    res_setup(a); res_load(a, dst, voff)

def final_combine(a, xr, voff):
    a("s_and_b32 s40, s3, 3\ns_lshl_b32 s40, s40, 11\ns_lshr_b32 s41, s3, 2")
    slot_sel(a, 42, 41, TB[:2]); slot_sel(a, 43, 41, TB[2:])
    a("v_lshrrev_b32 v4, 3, v1\nv_and_b32 v5, 7, v1\nv_lshlrev_b32 v5, 1, v5\nv_xor_b32 v5, v5, v4\nv_lshlrev_b32 v5, 4, v5")
    a("v_lshl_add_u32 v4, v4, 8, v5\nv_add_u32 v4, s40, v4\nv_xor_b32 v5, 16, v4")
    a("v_add_u32 v6, s42, v4\nv_add_u32 v7, s42, v5\nv_add_u32 v8, s43, v4\nv_add_u32 v9, s43, v5")
    a(f"v_add_u32 v2, {TA[1]*SLOT}, v4\nv_add_u32 v3, {TA[1]*SLOT}, v5\nv_add_u32 v4, {TA[0]*SLOT}, v4\nv_add_u32 v5, {TA[0]*SLOT}, v5")
    a("s_lshl_b32 s41, s41, 31\ns_or_b32 s42, s41, 0x3f800000")
    a("s_waitcnt vmcnt(0)")
    XU = 84
    for p in range(4):
        a(f"v_lshlrev_b32 v{XU+2*p}, 16, v{xr+p}\nv_and_b32 v{XU+2*p+1}, 0xffff0000, v{xr+p}")
    if Trace.on: a("s_memtime s[100:101]\ns_waitcnt lgkmcnt(0)\nv_writelane_b32 v100, s100, 60")
    a("s_waitcnt lgkmcnt(0)\ns_barrier")
    if Trace.on: a("s_memtime s[100:101]\ns_waitcnt lgkmcnt(0)\nv_writelane_b32 v100, s100, 61")
    R = 20
    for q in range(2):
        a(f"ds_read_b128 v[{R+4*q}:{R+4*q+3}], v{4+q}")
        a(f"ds_read_b128 v[{R+8+4*q}:{R+8+4*q+3}], v{2+q}")
        a(f"ds_read_b128 v[{R+16+4*q}:{R+16+4*q+3}], v{6+q}")
        a(f"ds_read_b128 v[{R+24+4*q}:{R+24+4*q+3}], v{8+q}")
    for p in range(4):
        if p % 2 == 0: a(f"s_waitcnt lgkmcnt({4 if p == 0 else 0})")
        r = R + 2*p
        a(f"v_pk_fma_f32 v[{r}:{r+1}], v[{r+8}:{r+9}], s[42:43], v[{r}:{r+1}] op_sel_hi:[1,0,1]")
        a(f"v_pk_add_f32 v[{r+16}:{r+17}], v[{r+16}:{r+17}], v[{r+24}:{r+25}]")
        a(f"v_pk_add_f32 v[{r}:{r+1}], v[{r}:{r+1}], v[{XU+2*p}:{XU+2*p+1}]")
        a(f"v_pk_add_f32 v[{r}:{r+1}], v[{r}:{r+1}], v[{r+16}:{r+17}]")
        a(f"v_cvt_pk_bf16_f32 v{xr+p}, v{r}, v{r+1}")
    a(f"buffer_store_dwordx4 v[{xr}:{xr+3}], v{voff}, {sr(S_OUT)}, s{S_RES} offen {'sc0 sc1' if 'owt' in OPT else 'nt' if 'ont' in OPT else ''}")

def loader(a):
    a(f"v_mov_b32 v2, {MISC}")
    a("v_and_b32 v16, 3, v1\nv_lshl_add_u32 v16, v16, 2, v2")
    a("v_lshrrev_b32 v8, 2, v1\nv_and_b32 v9, 3, v1\nv_lshlrev_b32 v9, 4, v9\nv_xor_b32 v10, 2, v8")
    a("v_mul_u32_u24 v8, 5504, v8\nv_mul_u32_u24 v10, 5504, v10\nv_xor_b32 v11, 32, v9")
    a("v_add_u32 v4, v8, v9\nv_add_u32 v5, v8, v11\nv_add_u32 v6, v10, v9\nv_add_u32 v7, v10, v11")
    a("v_lshrrev_b32 v8, 3, v1\nv_and_b32 v9, 7, v1\nv_bfe_u32 v10, v1, 4, 1\nv_lshlrev_b32 v10, 2, v10\nv_xor_b32 v10, v10, v9")
    a("v_lshlrev_b32 v10, 4, v10\nv_lshl_add_u32 v17, v8, 10, v10")
    for q in range(4):
        a(f"s_add_u32 s40, s{S_ROT}, {q}\ns_and_b32 s40, s40, 3\ns_mul_i32 s{44+q}, s40, {128*2752}")
    a(f"s_and_b32 s40, s{S_P}, 1\ns_mul_i32 s48, s40, 2752\ns_sub_u32 s49, 2752, s48")
    a(f"s_lshl_b32 s40, s{S_P}, 6\ns_add_u32 s48, s48, s40\ns_add_u32 s49, s49, s40")
    a(f"s_lshl_b32 s50, s{S_CJ}, 7\ns_mov_b32 s52, 0")
    pair_table(a, 18, 19, 20)
    a("v_lshlrev_b32 v18, 15, v18\nv_add_u32 v18, s50, v18\nv_lshlrev_b32 v19, 4, v1")
    lds_wait_ge(a, 2, FL_A_DONE - MISC, 4, 12, 40, 41)
    if LGATE:
        a("s_waitcnt vmcnt(0)\nv_mov_b32 v3, 1"); wg_signal(a, FL_Z_CNT, 4, 0, 2, 3, 12)
    Stamps.at(a, 7)
    two, w2l = a.label("ld2"), a.label("ldw2")
    if "noload" in OPT:
        a("s_waitcnt vmcnt(0)\nv_mov_b32 v3, 1"); wg_signal(a, FL_Z_CNT, 4, 0, 2, 3, 12)
        a(f"v_mov_b32 v3, 99\nds_write_b32 v16, v3 offset:{FL_FULL - MISC}\nds_write_b32 v16, v3 offset:{FL_FULL2 - MISC}\ns_branch k_ldend")
    a(f"s_cmp_eq_u32 s{S_NP}, 2\ns_cbranch_scc1 {two}")
    class Pipe:
        def __init__(s): s.items = []; s.seen = 0; s.depth = DEPTH
        def publish(s, it):
            if it[0] is None: return
            a(f"v_mov_b32 v3, {it[1]}\ns_mov_b64 exec, 15\nds_max_u32 v16, v3 offset:{it[0] - MISC}\ns_mov_b64 exec, -1")
        def probe(s, req, ok):
            a(f"s_call_b64 s[54:55], k_ldprobe\ns_cmp_ge_u32 s52, {req}\ns_cbranch_scc1 {ok}")
        def need(s, req):
            if req <= s.seen: return
            ok = a.label("ldok")
            a(f"s_cmp_ge_u32 s52, {req}\ns_cbranch_scc1 {ok}")
            for i, it in enumerate(s.items):
                if it[0] is None: continue
                s.probe(req, ok)
                a(f"s_waitcnt vmcnt({sum(x[2] for x in s.items[i+1:])})"); s.publish(it)
            lds_wait_ge(a, 2, FL_FREE - MISC, req, 12, 52, 41, minof=4, sleep=LSL)
            a(f"{ok}:")
            s.seen = req
        def done(s, word, val, cnt):
            s.items.append((word, val, cnt))
            while len(s.items) > 1 and sum(x[2] for x in s.items) > s.depth:
                it = s.items.pop(0)
                a(f"s_waitcnt vmcnt({sum(x[2] for x in s.items)})"); s.publish(it)
        def flush(s, keep=0):
            while len(s.items) > keep:
                it = s.items.pop(0)
                a(f"s_waitcnt vmcnt({sum(x[2] for x in s.items)})"); s.publish(it)
    def variant(np_):
        pp = Pipe()
        for grp in range(8):
            st, q = grp // 4, grp % 4
            if st == 0: seq = [[("A", "X", 0), ("C", "X", 64)], [("A", "Y", 0)]]
            else:       seq = [[("C", "Y", 64), ("B", "Y", 64 * (np_ - 1))], [("B", "X", 64 * (np_ - 1))]]
            if np_ == 2: seq = [[c for c in s if c[0] != "C"] for s in seq]
            tot = 0
            for si, s in enumerate(seq):
                pp.need(max([CELLS[(c[0], c[1], q)][1] for c in s] + [LGATE]))
                cl = s[0][1]; ci = 0 if cl == "X" else 1; cnt = 0
                for g in range(4):
                    for mat in range(2):
                        for n, (ps, _, off) in enumerate(s):
                            dst = CELLS[(ps, cl, q)][0] * SLOT + mat * 4096 + g * 1024
                            neg = dst - off < 0
                            a(f"s_mov_b32 m0, {dst if neg else dst - off}")
                            if mat == 0 and n == 0:
                                a(f"s_add_u32 s42, s{44+q}, s{48+ci}" if g == 0 else f"s_add_u32 s42, s42, {32*2752}")
                            if neg:
                                a(f"s_add_u32 s43, s42, {off}\nbuffer_load_dwordx4 v{4+2*ci+mat}, {sr(S_W1 + 4*mat)}, s43 offen lds")
                            else:
                                a(f"buffer_load_dwordx4 v{4+2*ci+mat}, {sr(S_W1 + 4*mat)}, s42 offen offset:{off} lds")
                            cnt += 1
                tot += cnt
                if grp == 0 and si == 1 and not LGATE:
                    a(f"s_waitcnt vmcnt({tot})\nv_mov_b32 v3, 1"); wg_signal(a, FL_Z_CNT, 4, 0, 2, 3, 12)
                pp.done(FL_FULL if si == 1 else None, grp + 1, cnt)
            if grp in (1, 3, 5, 7): Stamps.at(a, 8 + grp // 2)
            if grp == 1: a(f"s_setprio {LPRIO}")
        while pp.items and pp.items[0][1] < 8:
            pp.flush(keep=len(pp.items) - 1)
        return pp
    p3 = variant(3)
    a(f"s_branch {w2l}")
    a("k_ldprobe:")
    a(f"ds_read_b128 v[12:15], v2 offset:{FL_FREE - MISC}\ns_waitcnt lgkmcnt(0)")
    a("v_min_u32 v12, v12, v13\nv_min3_u32 v12, v12, v14, v15\nv_readfirstlane_b32 s52, v12\ns_nop 0\ns_setpc_b64 s[54:55]")
    a(f"{two}:")
    p2 = variant(2)
    a(f";@seg ld2 {HV}")
    a(f"{w2l}:")
    pp = Pipe(); pp.items = [(FL_FULL, 8, 24)]; pp.seen = min(p3.seen, p2.seen); pp.depth = DEPTH2
    TL.start(a)
    a("v_lshlrev_b32 v19, 4, v1")
    staged = list(range(22 - NST, 22))
    order = [("d", c) for c in range(22) if c not in staged]
    for n, c in enumerate(staged): order.insert(1 + 2 * n, ("s", c))
    order += [("w", c) for c in staged]
    for kind, c in order:
        slot, req = CELLS[("w", c)]
        ps_ = list(range(2 * c, min(2 * c + 2, 43)))
        base = 32 + 32 * (c - (22 - NST))
        if kind != "w":
            for p in ps_: a(f"v_readlane_b32 s{44 + p % 2}, v18, {p}")
        if kind != "s":
            pp.need(req)
            if c % 2 == 0: TL(a, f"c{c}")
        if kind == "w":
            a(f"v_add_u32 v20, {slot*SLOT}, v19")
            for i in range(4 * len(ps_)): a(f"ds_write_b128 v20, v[{base+4*i}:{base+4*i+3}] offset:{1024*i}")
            pp.flush(); pp.publish((FL_FULL2, c + 1))
            continue
        for p in ps_:
            for g in range(4):
                if kind == "d": a(f"s_mov_b32 m0, {slot*SLOT + (p % 2)*4096 + g*1024}")
                if g: a(f"s_add_u32 s{44 + p % 2}, s{44 + p % 2}, 8192")
                r = base + 16 * (p % 2) + 4 * g
                a(f"buffer_load_dwordx4 v17, {sr(S_W2)}, s{44 + p % 2} offen lds" if kind == "d" else
                  f"buffer_load_dwordx4 v[{r}:{r+3}], v17, {sr(S_W2)}, s{44 + p % 2} offen")
        pp.done(FL_FULL2 if kind == "d" else None, c + 1, 4 * len(ps_))
    TL(a, "issued")
    pp.flush()
    TL(a, "landed"); TL.park(a)

GF, ACCE, BE = 128, 64, 32

def g_first(a, n, dt16, t0):
    st, s7, ar = t0, t0 + 1, t0 + 2
    a(f"v_and_b32 v{st}, 15, v1\ns_lshr_b32 s40, s2, 5\ns_lshl_b32 s40, s40, 6\ns_add_u32 s40, s40, {dt16}\nv_add_u32 v{st}, s40, v{st}")
    a(f"v_cvt_f32_u32 v{st}, v{st}\nv_mul_f32 v{st}, {f32(1/512)}, v{st}\nv_mul_f32 v{s7}, {f32(7.0)}, v{st}")
    a(f"v_lshrrev_b32 v{ar}, 4, v1\nv_lshl_add_u32 v{ar}, v{ar}, 1, 1\nv_cvt_f32_u32 v{ar}, v{ar}\nv_mul_f32 v{ar}, v{ar}, v{st}")
    for i in range(32):
        if i: a(f"v_add_f32 v{ar}, v{ar}, v{st if i & 1 else s7}")
        t = t0 + 4 + 2 * (i & 1); p = t0 + 4 + 2 * ((i + 1) & 1)
        a(f"v_cos_f32 v{t}, v{ar}\nv_sin_f32 v{t+1}, v{ar}")
        if i: a(f"v_cvt_pk_bf16_f32 v{GF+64*n+i-1}, v{p}, -v{p+1}")
    a(f"v_cvt_pk_bf16_f32 v{GF+64*n+31}, v{t0+6}, -v{t0+7}")

def g_second(a, nt, t=4):
    a(f"v_and_b32 v{t}, 1, v1\nv_lshlrev_b32 v{t}, 4, v{t}\nv_bfe_u32 v{t+1}, v1, 1, 1\nv_lshlrev_b32 v{t+1}, 15, v{t+1}\nv_add_u32 v{t+2}, 1, v1\nv_bfe_u32 v{t+2}, v{t+2}, 1, 1\nv_lshl_or_b32 v{t+1}, v{t+2}, 31, v{t+1}")
    for n in range(nt):
        for i in range(32):
            r = GF + 64*n + i
            a(f"v_alignbit_b32 v{r+32}, v{r}, v{r}, v{t}")
        for i in range(32):
            r = GF + 64*n + i
            a(f"v_xor_b32 v{r+32}, v{t+1}, v{r+32}")

def e_load(a, s_pi, meanwhile):
    a(f"v_mov_b32 v2, {MISC}")
    a("v_lshrrev_b32 v8, 4, v1\nv_bfe_u32 v9, v1, 2, 2\nv_xor_b32 v9, v9, v8\nv_lshlrev_b32 v5, 13, v8\nv_lshrrev_b32 v10, 1, v9\nv_lshl_add_u32 v5, v10, 12, v5")
    a("v_and_b32 v10, 1, v9\nv_lshl_add_u32 v5, v10, 6, v5\nv_and_b32 v10, 3, v1\nv_lshl_add_u32 v5, v10, 4, v5")
    a(f"s_lshl_b32 s45, s{S_T}, 7\ns_lshl_b32 s40, s{s_pi}, 18\ns_add_u32 s45, s45, s40\ns_add_u32 s45, s45, {WS_E}")
    a(f"s_lshl_b32 s40, s{s_pi}, 2\nv_add_u32 v6, s40, v2")
    for i in range(4):
        (s0, r0), (s1, r1) = CELLS[("e", 2*i)], CELLS[("e", 2*i + 1)]
        lds_wait_ge(a, 2, FL_FREE - MISC, max(r0, r1), 16, 40, 41, minof=4, sleep=1)
        TH(a, f"ld{i}")
        a(f"s_mul_i32 s46, s{s_pi}, {(s1 - s0) * SLOT}\ns_add_u32 s46, s46, {s0 * SLOT}")
        for g in range(8):
            a(f"s_add_u32 m0, s46, {g*1024}")
            a(f"s_add_u32 s42, s45, {(64*i + 4*g)*8192}")
            a(f"buffer_load_dwordx4 v5, {sr(S_WS)}, s42 offen {RD} lds")
    meanwhile()
    for i in range(4):
        a(f"s_waitcnt vmcnt({8*(3-i)})\nv_mov_b32 v3, {i+1}\nds_write_b32 v6, v3 offset:{FL_FULLE - MISC}")

def e_part(a, nt, s_dt16):
    TT = TH if nt == 1 else T3
    dq = DsQ(a); stubs = []
    a(f"v_mov_b32 v2, {MISC}")
    a("v_lshrrev_b32 v8, 3, v1\nv_lshlrev_b32 v9, 8, v8\nv_and_b32 v8, 3, v8\nv_lshl_add_u32 v9, v8, 6, v9")
    a("v_and_b32 v8, 3, v1\nv_lshl_add_u32 v9, v8, 4, v9\nv_bfe_u32 v8, v1, 2, 1\nv_lshl_add_u32 v4, v8, 3, v9")
    for nu in range(1, 4): a(f"v_xor_b32 v{4+nu}, {64*nu}, v4")
    a("s_mov_b32 s52, 0\ns_mov_b32 s53, 0\ns_waitcnt lgkmcnt(0)")
    AH = 7
    def reads(u):
        js, nu = u // 4, u % 4
        c = js // 2
        if u % 8 == 0: check(a, stubs, 52 + (c & 1), c // 2 + 1, 2, FL_FULLE - MISC + 4 * (c & 1), 3)
        if js % 2 == 0: a(f"v_add_u32 v{16+nu}, {CELLS[('e', c)][0]*SLOT}, v{4+nu}")
        b = BE + 4 * (u % 8)
        for rd in range(2):
            dq.op(f"ds_read_b64_tr_b16 v[{b+2*rd}:{b+2*rd+1}], v{16+nu} offset:{(js % 2)*4096 + 2048*rd}", ("e", u))
    a(f"s_setprio {EPRIO}")
    for u in range(AH): reads(u)
    for u in range(64):
        js, nu = u // 4, u % 4
        b = BE + 4 * (u % 8)
        dq.wait(("e", u))
        if u % 8 == 0: TT(a, f"u{u}")
        for n in range(nt):
            d = ACCE + 16*n + 4*nu; g = GF + 64*n + 4*js
            a(f"v_mfma_f32_16x16x32_bf16 v[{d}:{d+3}], v[{g}:{g+3}], v[{b}:{b+3}], " + ("0" if js == 0 else f"v[{d}:{d+3}]"))
        if u + AH < 64: reads(u + AH)
    a(f"s_lshr_b32 s40, s{s_dt16}, 2\nv_lshrrev_b32 v17, 4, v1\nv_add_u32 v17, s40, v17\nv_and_b32 v18, 7, v1\nv_xor_b32 v17, v17, v18\nv_lshlrev_b32 v17, 4, v17")
    a(f"v_and_b32 v16, 15, v1\nv_lshl_add_u32 v16, v16, 8, v17\nv_xor_b32 v17, 64, v16")
    a(f"v_add_u32 v18, {TA[1]*SLOT}, v16\nv_add_u32 v19, {TA[1]*SLOT}, v17\nv_add_u32 v16, {TA[0]*SLOT}, v16\nv_add_u32 v17, {TA[0]*SLOT}, v17")
    TT(a, "edone")
    lds_wait_ge(a, 2, FL_FREE - MISC, TA_REQ, 4, 40, 41, minof=4, sleep=1)
    for n in range(nt):
        for nu in range(4):
            d = ACCE + 16*n + 4*nu
            a(f"ds_write_b128 v{16+n+2*(nu >> 1)}, v[{d}:{d+3}] offset:{(nu & 1)*4096}")
    TT(a, "written"); TT.park(a)
    return stubs

def h_relay(a, level, val):
    lds_wait_ge(a, 2, FL_HS - MISC, level, 16, 40, 41, minof=4, sleep=1 if level < 3 else 0)
    T3(a, f"hs{level}")
    for i in range(8): a(f"ds_read_b128 v[{32+4*i}:{35+4*i}], v24 offset:{1024*i}")
    a(f"v_mov_b32 v16, {level}\nds_write_b32 v25, v16 offset:{FL_HSF - MISC}")
    for i in range(8):
        a(f"s_waitcnt lgkmcnt({7 - i})")
        a(f"buffer_store_dwordx4 v[{32+4*i}:{35+4*i}], v26, {sr(S_WS)}, s{44 + i // 2} offen offset:{1024*(i & 1)} {WT}")
    T3(a, "st")
    a(f"v_mov_b32 v16, {val}\ns_waitcnt vmcnt({63 if ('noack' in OPT and level >= 2) or 'noack1' in OPT else 0})\ns_mov_b32 exec_hi, 0")
    a(f"buffer_atomic_add v16, v27, {sr(S_WS)}, s48 offen sc1\ns_mov_b64 exec, -1")
    T3(a, "ack")
    if Trace.on: a("s_waitcnt vmcnt(0)")
    T3(a, "atom"); T3.park(a)

def h_relay_setup(a):
    a(f"v_mov_b32 v2, {MISC}\nv_lshlrev_b32 v26, 4, v1\nv_add_u32 v24, {HST}, v26\nv_and_b32 v25, 3, v1\nv_lshl_add_u32 v25, v25, 2, v2")
    a(f"s_lshl_b32 s49, s{S_I}, 1\ns_mul_i32 s44, s49, 86\ns_lshl1_add_u32 s44, s{S_P}, s44\ns_lshl_b32 s44, s44, 10\ns_add_u32 s44, s44, {WS_H}")
    a(f"s_add_u32 s45, s44, {86*1024}\ns_add_u32 s46, s44, {32*86*1024}\ns_add_u32 s47, s46, {86*1024}")
    mbox_off(a, 48, 49)
    a("v_and_b32 v27, 7, v1\nv_lshlrev_b32 v27, 13, v27\nv_bfe_u32 v16, v1, 3, 1\nv_lshl_add_u32 v27, v16, 11, v27\nv_bfe_u32 v16, v1, 4, 1\nv_lshl_add_u32 v27, v16, 2, v27")

def scalar_prefetch(a):
    a(f"s_lshl3_add_u32 s40, s2, s3\ns_and_b32 s41, s40, 1023\ns_mulk_i32 s41, {11*128}\ns_min_u32 s41, s41, {512*2752 - 11*128}")
    a(f"s_cmp_lt_u32 s40, 1024\ns_cselect_b64 s[42:43], s[{S_W1}:{S_W1+1}], s[{S_W3}:{S_W3+1}]\ns_add_u32 s42, s42, s41\ns_addc_u32 s43, s43, 0")
    for i in range(11): a(f"s_load_dword s82, s[42:43], {128*i}")

def w2_touch(a):
    a(f"v_mov_b32 v2, {MISC}")
    lds_wait_ge(a, 2, FL_FULL - MISC, W2T, 16, 40, 41, sleep=4)
    a(f"v_lshlrev_b32 v4, 7, v1\ns_lshr_b32 s42, s2, 3\ns_mul_i32 s42, s42, {344*128}")
    for i in range(6):
        if i == 5: a("s_mov_b64 exec, 0xffffff")
        a(f"buffer_load_dword v10, v4, {sr(S_W2)}, s42 offen\ns_add_u32 s42, s42, 8192")
    a("s_mov_b64 exec, -1")

W2T = 8
L3P = 31
ET = 4
HSJ = 10
L2P = int([o[2:] for o in OPT if o.startswith("l2")][0]) if any(o.startswith("l2") for o in OPT) else 4
LR = 2 if "r2" in OPT else 1
PSTP = 13
L3TRY = (18, 24) if "r2" in OPT else (21, 26)
GAPB = int([o[2:] for o in OPT if o.startswith("gb")][0]) if any(o.startswith("gb") for o in OPT) else 28
EPRIO = 0 if "ep0" in OPT else 2
DEPTH = 40
DEPTH2 = int([o[2:] for o in OPT if o.startswith("d2")][0]) if any(o.startswith("d2") for o in OPT) else 40
NST = int([o[2:] for o in OPT if o.startswith("st")and o[2:].isdigit()][0]) if any(o.startswith("st") and o[2:].isdigit() for o in OPT) else 0
LSL = 2 if "lsl" in OPT else 0
HV, HM = 256, 128
G1PRIO = 0 if "g0" in OPT else 2
KPRIO = 2 if "k2" in OPT else 0
LPRIO = 0 if "lp0" in OPT else 3
ZG = 3 if "zg" in OPT else 0
WG = 3 if ("wg" in OPT or "zg" in OPT) else 0
LGATE = 3 if "lg" in OPT else 0
XS = False
SF = WT
if "nost" in OPT:
    import spec
    spec.NOST = True
a = Asm()
a.begin_kernel(NAME)
a("s_cmp_ge_u32 s2, 0x100\ns_cbranch_scc1 k_end")
Stamps.at(a, 0)
if "dbgspan" in OPT or "fix" in OPT: a("s_memrealtime s[92:93]")
if Trace.on: a("s_memtime s[92:93]\ns_waitcnt lgkmcnt(0)")
a(f"s_load_dwordx2 s[{S_X}:{S_X+1}], s[0:1], 0\ns_load_dwordx2 s[{S_WR}:{S_WR+1}], s[0:1], 8\ns_load_dwordx2 s[{S_WI}:{S_WI+1}], s[0:1], 16")
a(f"s_load_dwordx8 s[72:79], s[0:1], 32\ns_load_dwordx2 s[{S_WS}:{S_WS+1}], s[0:1], 72\ns_load_dwordx2 s[{S_DBG}:{S_DBG+1}], s[0:1], 64")
code_prefetch(a, NAME, "k_end", 65536, 8, 255)
a("v_lshrrev_b32 v2, 6, v0\nv_and_b32 v1, 63, v0\nv_readfirstlane_b32 s3, v2")
a(f"s_mov_b32 s{S_X+2}, 0x200000\ns_mov_b32 s{S_X+3}, 0x20000")
ids_early(a)
a("s_cmp_ge_u32 s3, 4\ns_cbranch_scc1 k_helper")
x_setup(a)
x_setup_late(a)
a("s_waitcnt lgkmcnt(0)\ns_barrier")
x_issue(a, 0)
a("s_branch k_main")
a("k_helper:")
a(f"s_setprio 3\ns_sub_u32 s{S_HW}, s3, 4")
a(f"v_lshlrev_b32 v4, 2, v1\nv_add_u32 v4, {MISC}, v4\nv_mov_b32 v5, 0\nds_write_b32 v4, v5")
a(f"s_mov_b32 s{S_WR+2}, {2048*514}\ns_mov_b32 s{S_WR+3}, s{S_X+3}\ns_mov_b64 s[{S_WI+2}:{S_WI+3}], s[{S_WR+2}:{S_WR+3}]")
row_setup(a, S_HW, 18*SLOT)
a("s_waitcnt lgkmcnt(0)\ns_barrier")
row_issue(a, 17*SLOT)
ids_late(a)
Stamps.at(a, 1)
if "sp" in OPT: scalar_prefetch(a)
a(f"s_load_dword s{S_TAG}, s[80:81], 0\ns_sub_u32 s6, s{S_HW}, 1")
row_compute(a, S_HW, 18*SLOT, 17*SLOT, SF, 0, zgate=ZG, wgate=WG)
make_tag(a)
a(f"s_cmp_eq_u32 s{S_HW}, 0\ns_cbranch_scc1 k_loader")
a(f"s_lshl_b32 s42, s2, 8\ns_add_u32 s42, s42, {MBOX + 128}\nv_mov_b32 v14, 0\nv_mov_b32 v15, 0\ns_mov_b64 exec, 1")
a(f"buffer_store_dwordx2 v[14:15], off, {sr(S_WS)}, s42 {WT}\ns_mov_b64 exec, -1")
a("s_waitcnt vmcnt(0)")
wg_signal(a, FL_Z_CNT, 4, 0, 12, 13, 14)
a(f"s_setprio 0\ns_cmp_eq_u32 s{S_HW}, 3\ns_cbranch_scc1 k_h3")
a("s_branch k_h12")

a("k_main:")
ids_late(a)
if "sp" in OPT: scalar_prefetch(a)
g1_main(a)
st = g2_main(a)
emit_stubs(a, st)

a(";@endseg")
a("k_h12:")
a(f"s_setprio {KPRIO}")
if "nocolE" in OPT:
    res_issue(a, 12, 11); a("s_branch k_fin")
Stamps.at(a, 7)
if "nogen" not in OPT:
    col_mats(a, 6)
    col_twiddles(a, 6, S_COL, 2)
    col_twiddles(a, 6, S_COL, 1)
col_addrs(a)
Stamps.at(a, 8)
a(f"s_setprio {CPRIO}")
wait_go(a, 0)
Stamps.at(a, 9)
col_loads3(a, 6, S_COL, RD)
if "nocol" not in OPT: col_compute3(a, SF)
Stamps.at(a, 11)
a(f"v_mov_b32 v2, {MISC}\nv_mov_b32 v3, 1")
a("s_waitcnt vmcnt(0)")
Stamps.at(a, 12)
wg_signal(a, FL_E_CNT, 2, 1, 2, 3, 14)
a(f"s_setprio {G1PRIO}\ns_lshl_b32 s7, s6, 4")
g_first(a, 0, "s7", 4)
res_issue(a, 12, 11)
a(f"v_lshlrev_b32 v24, 12, v1\ns_lshl1_add_u32 s47, s{S_CJ}, s6\ns_lshl_b32 s47, s47, 17\ns_lshl_b32 s40, s{S_T}, 7\ns_add_u32 s47, s47, s40\ns_add_u32 s47, s47, {WS_E}")
if "noE" in OPT: a("s_branch k_fin")
Stamps.at(a, 13)
a(f"s_setprio {EPRIO}")
TH.start(a); TH(a, "waitE")
wait_go(a, 1)
TH(a, "goE")
a(f"s_mov_b32 exec_hi, 0\nbuffer_load_dword v25, v24, {sr(S_WS)}, s47 offen {RD}\ns_mov_b64 exec, -1")
Stamps.at(a, 14)
e_load(a, 6, lambda: g_second(a, 1, 20))
st = e_part(a, 1, 7)
a("s_branch k_fin")
emit_stubs(a, st)

a(";@endseg")
a("k_h3:")
warm(a, ["m1", "m2", "ld2", "m3"])
a("s_mov_b32 s7, 32")
g_first(a, 0, 32, 16); g_first(a, 1, 48, 16); g_second(a, 2)
if "w2t" in OPT: w2_touch(a)
wait_go(a, 0)
h_relay_setup(a)
res_issue(a, 12, 11)
a("s_setprio 3")
T3.start(a)
h_relay(a, 1, 1)
Stamps.at(a, 9)
a(f"s_sub_u32 s49, s{S_NP}, 1\ns_lshl_b32 s49, s49, 11\ns_cmp_eq_u32 s{S_NP}, 2\ns_mov_b32 s50, 0x100\ns_cmov_b32 s50, 0x10100")
for i in range(4): a(f"s_add_u32 s{44+i}, s{44+i}, s49")
h_relay(a, 2, "s50")
Stamps.at(a, 10)
a(f"s_cmp_eq_u32 s{S_NP}, 2\ns_cbranch_scc1 k_h3e")
for i in range(4): a(f"s_sub_u32 s{44+i}, s{44+i}, 2048")
h_relay(a, 3, 0x10000)
a("k_h3e:")
Stamps.at(a, 14)
st = e_part(a, 2, 7)
a("s_branch k_fin")
emit_stubs(a, st)

a("k_loader:")
loader(a)
a("k_ldend:")
res_issue(a, 12, 11)
a("k_fin:")
final_combine(a, 12, 11)
a("s_xor_b32 s40, s3, 5\ns_or_b32 s40, s40, s2\ns_cmp_lg_u32 s40, 0\ns_cbranch_scc1 k_dump")
a(f"s_mov_b32 s42, {GF_EPOCH}")
flag_store(a, 42, 0, 4)
a("k_dump:")
if "fix" in OPT:
    a("k_fx:\ns_memrealtime s[94:95]\ns_waitcnt lgkmcnt(0)\ns_sub_u32 s94, s94, s92\ns_cmp_lt_u32 s94, 4000\ns_cbranch_scc1 k_fx")
if "dbgspan" in OPT:
    a("s_waitcnt vmcnt(0)\ns_memrealtime s[94:95]\ns_waitcnt lgkmcnt(0)\ns_cmp_lg_u32 s3, 0\ns_cbranch_scc1 k_end")
    a("s_and_b32 s92, s92, 0xffffff\ns_and_b32 s94, s94, 0xffffff\ns_sub_u32 s93, 0xffffff, s92\ns_sub_u32 s95, s94, s92")
    for i, r in enumerate((93, 94, 92, 95)):
        a(f"s_atomic_umax s{r}, s[{S_DBG}:{S_DBG+1}], {16 + 4*i}")
    a("s_waitcnt lgkmcnt(0)")
if Stamps.on: a("s_waitcnt vmcnt(0)")
Stamps.dump(a, 0)
if Trace.on: a("s_waitcnt vmcnt(0)")
Trace.dump(a)
import json
if Trace.on: json.dump(Trace.names, open(sys.argv[1][:-2] + ".json", "w"))
a(";@endseg")
a("k_end:\ns_endpgm")
a("k_hopret:\ns_waitcnt lgkmcnt(0)\ns_setpc_b64 s[0:1]")
a.add_kernel(NAME, 256); a.add_launch(NAME, 256, 512, LDS_BYTES)
txt = a.text(header=HEADER, single=True)
if "hop" in OPT:
    txt, nh_ = hop_pass(txt, "k_hopret"); print("hop sites", nh_)
if "noal" not in OPT: txt, nw_, np_ = align_pass(txt)
open(sys.argv[1], "w").write(txt)
print("nops", a.nops_added, CELLS if "v" in OPT else "")
```

```python
import sys, math
from spec import *

OPT = set(sys.argv[2:])
Stamps.on = "stamp" in OPT or "se" in OPT
if "se" in OPT or "qs" in OPT: Stamps.skip = set(range(1, 15))
if "cyc" in OPT: Stamps.op = "s_memtime"
Trace.on = "trace" in OPT
TM, TL, TH, T3 = Trace("main", 10), Trace("loader", 31), Trace("h12", 31), Trace("h3", 31)
LSLEEP[0] = 1 if "lsleep" in OPT else 0
NAME = "parallel_sum__spectral_gfnet__glu_gated_swiglu__prompt_kernel"
HEADER = open("parallel_sum__spectral_gfnet__glu_gated_swiglu__prompt.s.ref").read().split("; Override")[0]
WT = "sc0 sc1"
RD = "" if "rdplain" in OPT else "sc1"
GF_EPOCH, MBOX = WS_FLAG, WS_FLAG + 0x10000
S_MB, S_DBG = 64, 66
FL_HS, FL_HSF = MISC + 112, MISC + 128
FL_Z_CNT, FL_E_CNT, FL_HLVL, FL_FULL2, FL_GO, FL_FULLE = MISC + 40, MISC + 44, MISC + 48, MISC + 64, MISC + 80, MISC + 96
SCRATCH = MISC + 1024
GSPIN = 1 << 14
CPRIO = 0 if "cp0" in OPT else 2
PSLEEP = 24 if "slowpoll" in OPT else 2
HWT = "" if "hplain" in OPT else WT
S_I, S_J, S_P, S_NP, S_ROT, S_T, S_CJ, S_RES, S_TAG, S_HW, S_COL = 84, 85, 86, 87, 88, 89, 90, 91, 5, 4, 83

class DsQ:
    def __init__(self, a): self.a = a; self.q = []
    def op(self, text, tag=None):
        self.a(text)
        if "read" in text.split()[0]: self.q.append(tag)
    def wait(self, tag):
        idx = [i for i, t in enumerate(self.q) if t == tag]
        if not idx: return
        n = len(self.q) - 1 - idx[-1]
        assert n <= 15, n
        self.a(f"s_waitcnt lgkmcnt({n})")
        self.q = self.q[idx[-1] + 1:]

PJ = [(43 * j) >> 4 for j in range(17)]
ORDER = [PJ[j] for j in range(16)] + [PJ[j+1] - 1 for j in range(16)] + [PJ[j] + 1 for j in range(16) if PJ[j+1] - PJ[j] == 3]

NL, NS = (int([o[2:] for o in OPT if o.startswith("nl")][0]) if any(o.startswith("nl") for o in OPT) else 10), 7
HST = 18 * SLOT
def plan_slots():
    free = [(16, 0), (17, 0)] + [(4 * w + c, c + 1) for c in range(4) for w in range(4)]
    cells = {}
    def alloc(key, release):
        free.sort(key=lambda t: t[1])
        s, req = free.pop(0)
        cells[key] = (s, req)
        free.append((s, release))
    for q in range(4):
        alloc(("A", "X", q), 5 + q); alloc(("C", "X", q), 13 + q); alloc(("A", "Y", q), 5 + q)
    for q in range(4):
        alloc(("B", "Y", q), 9 + q); alloc(("C", "Y", q), 13 + q); alloc(("B", "X", q), 9 + q)
    ne = 18 - NL
    rest_e, rest_w = list(range(ne, 8)), list(range(NL, 22))
    order = [("w", c) for c in range(NL)] + [("e", c) for c in range(ne)]
    while rest_e or rest_w:
        if rest_e: order.append(("e", rest_e.pop(0)))
        if rest_e and "ee" in OPT: order.append(("e", rest_e.pop(0)))
        if rest_w: order.append(("w", rest_w.pop(0)))
    for k in order: alloc(k, 17 + k[1] if k[0] == "w" else 99)
    global FINAL
    FINAL = sorted((rel, s) for (s, rel) in free)[:6]
    return cells
CELLS = plan_slots()
LAST_REQ = max(r for (s, r) in CELLS.values())
TA = [s for _, s in FINAL[:2]]; TB = [s for _, s in FINAL[2:]]; TA_REQ, TB_REQ = FINAL[1][0], FINAL[5][0]; assert TB_REQ <= 37, FINAL

def ids_early(a):
    a(f"s_bfe_u32 s40, s2, 0x20003\ns_and_b32 s41, s2, 3\ns_lshl2_add_u32 s{S_I}, s41, s40")
    a(f"s_bfe_u32 s40, s2, 0x10002\ns_lshr_b32 s41, s2, 5\ns_lshl3_add_u32 s{S_J}, s40, s41")
    a(f"s_add_u32 s{S_ROT}, s{S_I}, s{S_J}\ns_and_b32 s{S_ROT}, s{S_ROT}, 3")

def ids_late(a):
    a(f"s_mul_i32 s{S_P}, s{S_J}, 43\ns_add_u32 s{S_NP}, s{S_P}, 43\ns_lshr_b32 s{S_P}, s{S_P}, 4\ns_lshr_b32 s{S_NP}, s{S_NP}, 4\ns_sub_u32 s{S_NP}, s{S_NP}, s{S_P}")
    a(f"s_and_b32 s40, s2, 3\ns_bfe_u32 s41, s2, 0x10002\ns_lshl1_add_u32 s40, s40, s41\ns_bfe_u32 s41, s2, 0x20003\ns_lshl2_add_u32 s{S_T}, s40, s41\ns_lshr_b32 s{S_CJ}, s2, 5")
    a(f"s_lshl_b32 s{S_COL}, s{S_CJ}, 5\ns_add_u32 s{S_COL}, s{S_COL}, s{S_T}")
    for d, src, n in ((S_W1, 72, 512*2752), (S_W3, 74, 512*2752), (S_W2, 76, 1376*1024), (S_OUT, 78, 2048*1024)):
        a(f"s_mov_b64 s[{d}:{d+1}], s[{src}:{src+1}]\ns_mov_b32 s{d+2}, {n}\ns_mov_b32 s{d+3}, 0x20000")
    a(f"s_mov_b32 s{S_WS+2}, 0x10000000\ns_mov_b32 s{S_WS+3}, 0x20000")
    a(f"s_add_u32 s80, s{S_WS}, {GF_EPOCH}\ns_addc_u32 s81, s{S_WS+1}, 0")
    a(f"s_lshl_b32 s40, s2, 8\ns_add_u32 s40, s40, {MBOX}\ns_add_u32 s{S_MB}, s{S_WS}, s40\ns_addc_u32 s{S_MB+1}, s{S_WS+1}, 0")
    Stamps.clear(a)

def warm(a, segs):
    if "hop" not in OPT: return
    a("s_mov_b64 exec, 0")
    for sg in segs: a(f"s_call_b64 s[0:1], hs_{sg}_0")
    a("s_mov_b64 exec, -1")

def make_tag(a):
    a(f"s_mul_i32 s{S_TAG}, s{S_TAG}, 0x9E3779B1\ns_add_u32 s{S_TAG}, s{S_TAG}, 0x7F4A7C15")

def flag_store(a, soff, level, vt):
    a(f"s_add_u32 s40, s{S_TAG}, {level}\nv_mov_b32 v{vt}, s40")
    a("s_mov_b64 exec, 1")
    a(f"buffer_store_dword v{vt}, off, {sr(S_WS)}, s{soff} {WT}")
    a("s_mov_b64 exec, -1")

def h_post(a):
    a(f"s_cmp_eq_u32 s{S_NP}, 2\ns_mov_b32 s40, 0x10000\ns_cmov_b32 s40, 0x10100\nv_mov_b32 v0, s40\nv_lshlrev_b32 v2, 13, v1")
    a("s_mov_b64 exec, 0xff")
    a(f"buffer_atomic_add v0, v2, {sr(S_WS)}, s59 offen sc1")
    a("s_mov_b64 exec, -1")

def wg_signal(a, cnt_word, n, event, vaddr, vone, vt):
    zf = a.label("zf")
    a("s_mov_b64 exec, 1")
    a(f"ds_add_rtn_u32 v{vt}, v{vaddr}, v{vone} offset:{cnt_word - MISC}\ns_mov_b64 exec, -1\ns_waitcnt lgkmcnt(0)\nv_readfirstlane_b32 s40, v{vt}")
    a(f"s_cmp_lg_u32 s40, {n - 1}\ns_cbranch_scc1 {zf}")
    a(f"s_and_b32 s43, s2, 1\ns_lshl_b32 s41, s43, 7\ns_add_u32 s41, s41, {4*event}\ns_mov_b32 s40, 1")
    a(f"s_atomic_add s40, s[{S_DBG}:{S_DBG+1}], s41 glc\ns_waitcnt lgkmcnt(0)")
    a(f"s_and_b32 s40, s40, 127\ns_cmp_lg_u32 s40, 127\ns_cbranch_scc1 {zf}")
    a(f"s_lshl_b32 s43, s43, 2\ns_add_u32 s43, s43, {MBOX + 8*event}\ns_add_u32 s40, s{S_TAG}, 1\nv_mov_b32 v{vt}, s40\nv_lshlrev_b32 v{vt+1}, 8, v1")
    for i in range(4):
        a(f"buffer_store_dword v{vt}, v{vt+1}, {sr(S_WS)}, s43 offen {WT}\ns_add_u32 s43, s43, 0x4000")
    a(f"{zf}:")

def wait_go(a, event):
    top, done = a.label("gp"), a.label("gpd")
    a(f"s_mov_b32 s41, {GSPIN}\ns_add_u32 s43, s{S_TAG}, 1")
    a(f"{top}:")
    a(f"s_load_dwordx2 s[44:45], s[{S_MB}:{S_MB+1}], {8*event} glc\ns_waitcnt lgkmcnt(0)")
    a(f"s_xor_b32 s44, s44, s43\ns_xor_b32 s45, s45, s43\ns_or_b32 s44, s44, s45\ns_cbranch_scc0 {done}")
    a(f"s_sub_u32 s41, s41, 1\ns_cbranch_scc0 {top}")
    a(f"{done}:")

def level_load(a):
    a(f"s_load_dword s53, s[{S_MB}:{S_MB+1}], s54 glc")

def level_test(a, need):
    a(f"s_bitcmp1_b32 s53, {8 * need - 4}" if "nohw" not in OPT else "s_cmp_eq_u32 s2, s2")

def pair_table(a, vt, t1, t2, sx=40):
    a(f"s_and_b32 s{sx}, s{S_T}, 3\ns_lshl1_add_u32 s{sx}, s{sx}, s{S_CJ}\ns_lshl_b32 s{sx}, s{sx}, 1\ns_and_b32 s{sx}, s{sx}, 15\ns_mul_i32 s{sx+1}, s{sx}, 11\ns_lshr_b32 s{sx+1}, s{sx+1}, 4\ns_sub_u32 s{sx+1}, s{sx+1}, 32")
    a(f"v_add_u32 v{t1}, s{sx+1}, v1\nv_subrev_u32 v{t2}, 11, v{t1}\nv_min_u32 v{t1}, v{t1}, v{t2}")
    a(f"v_lshrrev_b32 v{t2}, 1, v{t1}\nv_add3_u32 v{t1}, v{t1}, v{t2}, 1\nv_min_u32 v{t1}, 15, v{t1}")
    a(f"v_add_u32 v{t2}, s{sx}, v1\nv_and_b32 v{t2}, 15, v{t2}\nv_cmp_gt_u32 vcc, 32, v1\nv_cndmask_b32 v{t1}, v{t1}, v{t2}, vcc\nv_mul_u32_u24 v{t1}, 43, v{t1}")
    a(f"v_cndmask_b32 v{t2}, 16, 27, vcc\nv_cmp_gt_u32 vcc, 16, v1\nv_cndmask_b32 v{t2}, v{t2}, 0, vcc\nv_add_u32 v{t1}, v{t1}, v{t2}\nv_lshrrev_b32 v{vt}, 4, v{t1}")

def h_wait(a, need, before=None):
    top, done = a.label("hp"), a.label("hpd")
    level_test(a, need)
    a(f"s_cbranch_scc1 {done}")
    if before: before()
    a(f"s_mov_b32 s41, {GSPIN}")
    a(f"{top}:")
    level_load(a); a("s_waitcnt lgkmcnt(0)"); level_test(a, need)
    a(f"s_cbranch_scc1 {done}\ns_sub_u32 s41, s41, 1\ns_cbranch_scc0 {top}")
    a(f"{done}:")

def mbox_off(a, dst, grp):
    a(f"s_bfe_u32 s40, s{grp}, 0x20003\ns_and_b32 s41, s{grp}, 4\ns_add_u32 s40, s40, s41\ns_and_b32 s41, s{grp}, 3\ns_lshl3_add_u32 s{dst}, s41, s40\ns_lshl_b32 s{dst}, s{dst}, 8")
    a(f"s_lshr_b32 s40, s{grp}, 5\ns_lshl2_add_u32 s{dst}, s40, s{dst}\ns_add_u32 s{dst}, s{dst}, {MBOX + 128}")

def check(a, stubs, scache, need, areg, off, vt, minof=1, before_spin=None):
    back, sl = a.label("fb"), a.label("fs")
    a(f"s_cmp_ge_u32 s{scache}, {need}")
    a(f"s_cbranch_scc0 {sl}")
    a(f"{back}:")
    stubs.append((sl, back, scache, need, areg, off, vt, minof, before_spin))

def emit_stubs(a, stubs):
    for (sl, back, sc, need, areg, off, vt, minof, before_spin) in stubs:
        a(f"{sl}:")
        if before_spin:
            a(f"ds_read_b32 v{vt}, v{areg} offset:{off}\ns_waitcnt lgkmcnt(0)\nv_readfirstlane_b32 s{sc}, v{vt}")
            a(f"s_cmp_ge_u32 s{sc}, {need}\ns_cbranch_scc1 {back}")
            before_spin()
        lds_wait_ge(a, areg, off, need, vt, sc, 41, minof=minof, sleep=1)
        a(f"s_branch {back}")

X0, ACC, AF, PD = 128, (64, 96), 32, 3

def x_setup(a):
    a(f"s_and_b32 s40, s3, 1\ns_lshl1_add_u32 s50, s{S_I}, s40\ns_lshr_b32 s41, s3, 1\ns_lshl_b32 s41, s41, 5\ns_add_u32 s50, s50, s41")
    a("s_lshl_b32 s51, s3, 15")
    a("s_lshr_b32 s41, s50, 3\ns_lshl_b32 s41, s41, 18\ns_and_b32 s42, s50, 7\ns_lshl_b32 s42, s42, 12\ns_add_u32 s56, s41, s42")
    a(f"s_lshl_b32 s40, s{S_ROT}, 8\ns_add_u32 s52, s56, s40")
    if "rs" in OPT: a(f"s_and_b32 s63, s{S_J}, 4\ns_lshr_b32 s40, s{S_J}, 2\ns_and_b32 s40, s40, 2\ns_or_b32 s63, s63, s40")
    else: a(f"s_lshr_b32 s63, s{S_J}, 1\ns_and_b32 s63, s63, 6")
    a("v_lshrrev_b32 v20, 4, v1\nv_and_b32 v21, 15, v1\nv_xor_b32 v21, v21, v20\nv_lshlrev_b32 v21, 4, v21\nv_lshl_add_u32 v20, v20, 10, v21")
    a("s_and_b32 s40, s63, 2\ns_lshl_b32 s40, s40, 6\nv_xor_b32 v16, s40, v20\nv_xor_b32 v17, 64, v16\nv_xor_b32 v18, 0x80, v16\nv_xor_b32 v19, 0x80, v17")
    a("s_lshl_b32 s63, s63, 10")

def x_setup_late(a):
    for c in range(1, 4):
        a(f"s_add_u32 s40, s{S_ROT}, {c}\ns_and_b32 s40, s40, 3\ns_lshl_b32 s40, s40, 8\ns_add_u32 s{52+c}, s56, s40")

def x_issue(a, c, between=None):
    a(f"s_add_u32 s41, s51, {c*SLOT}" if c else "s_mov_b32 s41, s51")
    for e in range(8):
        a(f"s_xor_b32 s42, s63, {e << 10}" if e else "s_mov_b32 s42, s63")
        a("s_add_u32 m0, s41, s42\ns_lshl_b32 s42, s42, 5")
        a(f"s_add_u32 s40, s42, s{52+c}")
        a(f"buffer_load_dwordx4 v{16+(e&3)}, {sr(S_X)}, s40 offen lds")
        if between: between(e)

def epilogue_ops(acc, level):
    ev = []
    for n in range(16):
        tau, r = n // 8, n % 8
        g, u = acc + 16*tau + r, acc + 16*tau + 8 + r
        ev += [(n, 0, f"v_mul_f32 v{u}, v{g}, v{u}"), (n, 1, f"v_mul_f32 v{g}, v10, v{g}"), (n + 1, 2, f"v_exp_f32 v{g}, v{g}"),
               (n + 2, 3, f"v_fma_f32 v{g}, v{g}, v11, v11"), (n + 3, 5, f"v_rcp_f32 v{g}, v{g}"), (n + 4, 4, f"v_mul_f32 v{u}, v{u}, v{g}")]
        if r & 1: ev.append((n + 5, 6, f"v_cvt_pk_bf16_f32 v{24 + 4*tau + r // 2}, v{u-1}, v{u}"))
    ops = [o for _, _, o in sorted(ev, key=lambda t: (t[0], t[1]))]
    ops.insert(len(ops) - 6, ("ds", "ds_write_b128 v22, v[24:27]"))
    ops.insert(len(ops) - 2, f"v_mov_b32 v23, {level}")
    return ops + [("ds", "ds_write_b128 v22, v[28:31] offset:1024"), ("ds", f"ds_write_b32 v9, v23 offset:{FL_HS - MISC}")]

def HB(p): return X0 + 4*p if p < 32 else 84 + 4*(p - 32)
def h_pre(a, p): a(f"v_readlane_b32 s{68 + p % 4}, v8, {p}")
def h_load(a, p): a(f"buffer_load_dwordx4 v[{HB(p)}:{HB(p)+3}], v3, {sr(S_WS)}, s{68 + p % 4} offen {RD}")
def h_burst(a, lo, hi):
    for p in range(lo, min(lo + 3, hi)): h_pre(a, p)
    for p in range(lo, hi):
        if p + 3 < hi: h_pre(a, p + 3)
        h_load(a, p)

def g1_main(a):
    dq = DsQ(a); slow = []
    a(f"s_lshl_b32 s40, s3, 2\ns_add_u32 s40, s40, {MISC}\nv_mov_b32 v9, s40")
    a("v_lshlrev_b32 v3, 4, v1")
    a("v_and_b32 v20, 31, v1\nv_lshrrev_b32 v21, 5, v1\nv_and_b32 v22, 15, v1\nv_xor_b32 v21, v21, v22\nv_lshlrev_b32 v21, 4, v21")
    a("v_lshl_add_u32 v24, v20, 8, v21\nv_add_u32 v24, s51, v24")
    for j in range(1, 8): a(f"v_xor_b32 v{24+j}, {32*j}, v24")
    a("v_bfe_u32 v20, v1, 4, 1\nv_lshrrev_b32 v21, 5, v1\nv_bfe_u32 v22, v1, 2, 2")
    a(f"v_add_u32 v8, s{S_P}, v22\nv_and_b32 v8, 1, v8")
    a("v_lshrrev_b32 v22, 1, v22\nv_lshl_add_u32 v22, v21, 2, v22\nv_lshl_add_u32 v22, v8, 1, v22\nv_lshlrev_b32 v22, 6, v22")
    a("v_lshl_add_u32 v22, v20, 12, v22\nv_lshl_add_u32 v22, v20, 5, v22")
    a("v_and_b32 v21, 1, v1\nv_lshl_add_u32 v22, v21, 4, v22\nv_bfe_u32 v21, v1, 1, 1\nv_lshl_add_u32 v4, v21, 3, v22")
    a("v_xor_b32 v5, 128, v4\nv_xor_b32 v6, 32, v4\nv_xor_b32 v7, 160, v4")
    a("s_mov_b32 s56, 0x3f803f80\ns_mov_b32 s57, 0x00003f80\ns_mov_b32 s58, 0x3f800000")
    def reads(c):
        for j in range(8):
            r = X0 + 32*c + 4*j
            dq.op(f"ds_read_b128 v[{r}:{r+3}], v{24+j} offset:{c*SLOT}", ("x", c, j))
        a(f"v_mov_b32 v14, {c + 1}")
        dq.op(f"ds_write_b32 v9, v14 offset:{FL_FREE - MISC}")
    def sums(c, only=None):
        for j in (range(8) if only is None else [only]):
            if j % 2 == 0: dq.wait(("x", c, j + 1))
            for r in range(X0 + 32*c + 4*j, X0 + 32*c + 4*j + 4):
                first = (r == X0)
                a(f"v_dot2_f32_bf16 v10, v{r}, s56, {'0' if first else 'v10'}")
                a(f"v_dot2_f32_bf16 v11, v{r}, v{r}, {'0' if first else 'v11'}")
    wd = a.label("wd")
    if "hopm" in OPT:
        for w, segs in enumerate((["x0"], ["x1"], ["x2"], ["x3"])):
            nx = a.label("wn")
            if w < 3: a(f"s_cmp_lg_u32 s3, {w}\ns_cbranch_scc1 {nx}")
            warm(a, segs)
            if w < 3: a(f"s_branch {wd}\n{nx}:")
        a(f"{wd}:")
    x_issue(a, 1)
    Stamps.at(a, 6)
    if "hopm" in OPT: a(f";@seg x0 {HV}")
    a("s_waitcnt vmcnt(8)"); Stamps.at(a, 1); reads(0)
    x_issue(a, 2, lambda e: sums(0, e))
    a("s_waitcnt vmcnt(8)"); reads(1)
    x_issue(a, 3, lambda e: sums(1, e))
    if "hopm" in OPT: a(f";@seg x1 {HV}")
    a("s_waitcnt vmcnt(8)"); reads(2); sums(2)
    a("s_waitcnt vmcnt(0)"); Stamps.at(a, 2); reads(3)
    sums(3)
    a("v_mov_b32 v12, v10\nv_mov_b32 v13, v11")
    a("v_permlane32_swap_b32 v12, v10\nv_permlane32_swap_b32 v13, v11")
    a("v_add_f32 v10, v10, v12\nv_add_f32 v11, v11, v13")
    sub = Asm(); ln_scalars(sub, 10, 11, None)
    a(sub.lines[0])
    a("v_cvt_pk_bf16_f32 v31, -v10, -v10\nv_and_b32 v31, 0xffff0000, v31")
    rest = sub.lines[1:] + [f"v_mul_f32 v10, {f32(-math.log2(math.e))}, v11", "v_mul_f32 v11, v11, v11", "v_rcp_f32 v11, v11"]
    for j in range(32):
        for r in range(4):
            x = X0 + 4*j + r; t = 16 + 2*r
            a(f"v_dot2_f32_bf16 v{t}, v{x}, s57, v31\nv_dot2_f32_bf16 v{t+1}, v{x}, s58, v31")
        if j in (2, 17) and "hopm" in OPT: a(f";@seg x{2 if j == 2 else 3} {HV}")
        if j < len(rest): a(rest[j])
        for r in range(4): a(f"v_cvt_pk_bf16_f32 v{X0+4*j+r}, v{16+2*r}, v{17+2*r}")
        if j == 24: dq.op(f"ds_read_b32 v2, v9 offset:{FL_FULL - MISC}", "poll")
    PASS = "ABC"
    def base_calc(r):
        ps, q = PASS[r // 32], (r % 32) // 8
        bx, by = CELLS[(ps, "X", q)][0] * SLOT, CELLS[(ps, "Y", q)][0] * SLOT
        a(f"v_mul_i32_i24 v0, {by - bx}, v8\nv_add_u32 v0, {bx}, v0")
        return 8
    def full_check(r):
        ps, q = PASS[r // 32], (r % 32) // 8
        need_full = {"A": q + 1, "B": q + 5, "C": 0}[ps]
        if not need_full: return 0
        back, sl = a.label("g1b"), a.label("g1s")
        dq.wait("poll")
        a(f"v_readfirstlane_b32 s40, v2\ns_cmp_ge_u32 s40, {need_full}\ns_cbranch_scc0 {sl}")
        a(f"{back}:")
        slow.append((sl, back, need_full, FL_FULL))
        return 16
    def AB(r): return 12 + 4 * ((r // 8) & 1)
    def addr(r, tau):
        for i in (2*tau, 2*tau + 1): a(f"v_add_u32 v{AB(r)+i}, v0, v{4+i}")
        return 8
    def wreads(r, tau):
        j = r % 8; b = AF + 8 * (r % 4); cost = 8
        for rd in range(2):
            dq.op(f"ds_read_b64_tr_b16 v[{b+4*tau+2*rd}:{b+4*tau+2*rd+1}], v{AB(r)+2*tau+rd} offset:{512*j}", ("w", r))
        nxt = r - j + 8
        if nxt < 96:
            if j == 2 and tau == 0: cost += base_calc(nxt)
            if j == 4: cost += addr(nxt, tau)
            if j == 7 and tau == 0: cost += full_check(nxt)
            if j == 5 and tau == 0 and nxt < 64:
                dq.op(f"ds_read_b32 v2, v9 offset:{FL_FULL - MISC}", "poll"); cost += 4
        if j == 6 and tau == 1: a(f"v_mov_b32 v0, {5 + r // 8}"); cost += 4
        if j == 7 and tau == 1:
            dq.op(f"ds_write_b32 v9, v0 offset:{FL_FREE - MISC}"); cost += 4
        return cost
    a(f";@seg m1 {HM}")
    base_calc(0); addr(0, 0); addr(0, 1); full_check(0)
    for g in range(PD): wreads(g, 0); wreads(g, 1)
    Stamps.at(a, 3)
    fin2, done = a.label("g1fin2"), a.label("g1done")
    sub = Asm()
    sub(f"s_lshl_b32 s42, s3, 11\ns_add_u32 s42, s42, {HST}\nv_add_u32 v22, s42, v3\ns_and_b32 s54, s3, 1\ns_lshl_b32 s54, s54, 2\ns_add_u32 s54, s54, 128")
    sub(f"s_and_b32 s42, s3, 1\ns_lshl_b32 s42, s42, 5\ns_add_u32 s42, s42, s{S_T}\ns_mul_i32 s50, s42, 86")
    sub(f"s_lshr_b32 s51, s3, 1\ns_add_u32 s50, s50, s51\ns_lshl_b32 s50, s50, 10\ns_add_u32 s50, s50, {WS_H}")
    pair_table(sub, 20, 24, 25, 42)
    sub("v_lshlrev_b32 v20, 11, v20\nv_add_u32 v20, s50, v20")
    sub("v_bfe_u32 v24, v1, 2, 2\nv_lshrrev_b32 v25, 5, v1\nv_lshl_add_u32 v25, v25, 3, v24\ns_lshl_b32 s42, s51, 4\nv_add_u32 v25, s42, v25")
    sub("v_lshlrev_b32 v25, 7, v25\nv_lshrrev_b32 v24, 1, v24\nv_lshl_add_u32 v25, v24, 6, v25")
    sub("v_bfe_u32 v24, v1, 4, 1\nv_lshl_add_u32 v25, v24, 5, v25\nv_and_b32 v24, 3, v1\nv_lshl_add_u32 v21, v24, 3, v25")
    res_setup(sub, 42)
    EP = {0: [l.strip() for l in sub.lines], 1: epilogue_ops(ACC[0], 1), 2: epilogue_ops(ACC[1], 2)}
    opcost = lambda o: 8 if isinstance(o, tuple) or o.startswith(("v_exp", "v_rcp")) else 4
    def emit(o):
        if isinstance(o, tuple): dq.op(o[1])
        else: a(o)
    def step(g, extra=None):
        ps, j = g // 32, g % 32
        acc = ACC[ps & 1]; ep = EP[ps]
        b = AF + 8 * (g % 4)
        dq.wait(("w", g))
        for tau in range(2):
            d = acc + 16 * tau
            a(f"v_mfma_f32_32x32x16_bf16 v[{d}:{d+15}], v[{b+4*tau}:{b+4*tau+3}], v[{X0+4*j}:{X0+4*j+3}], " + ("0" if j == 0 else f"v[{d}:{d+15}]"))
            cost = 4 * tau
            if g + PD < 96: cost += wreads(g + PD, tau)
            if ps == 2 and j in (HSJ - 3, 26) and tau == 1:
                dq.op(f"ds_read_b32 v2, v9 offset:{FL_HSF - MISC}", "poll"); cost += 4
            if ps == 2 and j == HSJ and tau == 0:
                back, sl = a.label("g1b"), a.label("g1s")
                dq.wait("poll")
                a(f"v_readfirstlane_b32 s40, v2\ns_cmp_ge_u32 s40, 1\ns_cbranch_scc0 {sl}\n{back}:")
                slow.append((sl, back, 1, FL_HSF)); cost += 16
            if ps == 2 and j == 20 and tau == 0: level_load(a); cost += 4
            while ep and j >= 1 and cost + opcost(ep[0]) <= (GAPB if ps else 20):
                assert not (ps == 2 and isinstance(ep[0], tuple) and j < HSJ)
                o = ep.pop(0); cost += opcost(o); emit(o)
                if not ep: print("fill list", ps, "ends at step", j)
            if extra: extra(tau)
    for g in range(96 - ET):
        if g == 32: a(f";@seg m2 {HM}")
        if "qs" in OPT and g % 8 == 0: Stamps.at(a, 1 + g // 8, True)
        step(g)
        if g % 32 == 31:
            assert not EP[g // 32]
            Stamps.at(a, 4 + g // 32)
        if g == 63:
            a(f"s_cmp_eq_u32 s{S_NP}, 2\ns_cbranch_scc1 {fin2}")
    assert not EP[2]
    if "qs" in OPT: Stamps.at(a, 13, True)
    late = a.label("g1late")
    a("v_mov_b32 v8, v20\ns_waitcnt lgkmcnt(0)\nv_readfirstlane_b32 s56, v2"); dq.q = []
    def final_ep(acc, level, need, extra=None):
        checked = False
        for n, o in enumerate(epilogue_ops(acc, level)):
            if isinstance(o, tuple) and not checked:
                back, sl = a.label("g1b"), a.label("g1s")
                a(f"s_cmp_ge_u32 s56, {need}\ns_cbranch_scc0 {sl}\n{back}:"); slow.append((sl, back, need, FL_HSF)); checked = True
            a(o[1] if isinstance(o, tuple) else o)
            if extra: extra(n)
    level_test(a, 1)
    a(f"s_cbranch_scc0 {late}")
    for p in range(3): h_pre(a, p)
    nxt = [0]
    def early(tau):
        p = nxt[0]
        if p >= 16: return
        if p + 3 < 16: h_pre(a, p + 3)
        h_load(a, p); nxt[0] += 1
    for g in range(96 - ET, 96): step(g, early)
    Stamps.at(a, 8)
    a(f";@seg m3 {HV}")
    level_load(a)
    final_ep(ACC[0], 3, 2)
    for _ in range(8): early(0)
    Stamps.at(a, 9)
    a(f"s_branch {done}")
    a(f"{late}:")
    dq.q = []
    for g in range(96 - ET, 96): step(g)
    level_load(a)
    final_ep(ACC[0], 3, 2)
    a("s_branch k_g2late")
    a(f"{fin2}:")
    a(f"v_mov_b32 v0, 16\nds_write_b32 v9, v0 offset:{FL_FREE - MISC}\ns_mov_b32 s56, 0\ns_mov_b32 s53, 0\nv_mov_b32 v8, v20")
    a("s_nop 15")
    final_ep(ACC[1], 2, 1)
    a("k_g2late:")
    a("s_waitcnt lgkmcnt(0)")
    h_wait(a, 1)
    h_burst(a, 0, 16)
    a(f"s_branch {done}")
    for (sl, back, n, word) in slow:
        a(f"{sl}:")
        lds_wait_ge(a, 9, word - MISC, n, 2, 40, 41)
        a(f"s_branch {back}")
    a(f"{done}:")

ACC2, AF2 = 52, 20

def slot_sel(a, dst, idx, slots):
    a(f"s_mov_b32 s{dst}, {slots[0]*SLOT}")
    for i in range(1, len(slots)):
        a(f"s_cmp_eq_u32 s{idx}, {i}\ns_cmov_b32 s{dst}, {slots[i]*SLOT}")

def g2_main(a):
    dq = DsQ(a); stubs = []
    TM.start(a); TM(a, "T0")
    vm = [("h", p) for p in range(16)]
    a(f"s_mov_b32 s55, 0\nds_read_b32 v2, v9 offset:{FL_FULL2 - MISC}")
    a("v_mov_b32 v4, v21\nv_xor_b32 v5, 64, v21\nv_add_u32 v6, 0x10000, v4\nv_add_u32 v7, 0x10000, v5\nv_add_u32 v18, 0x20000, v4\nv_add_u32 v19, 0x20000, v5")
    a("s_waitcnt lgkmcnt(0)\nv_readfirstlane_b32 s52, v2")
    Stamps.at(a, 11)
    a(f";@sp {HM}")
    AR = [4, 6, 18]
    NB = 4
    def reads(p, dl):
        c = p // 2
        if p % 2 == 0 and dl == 0: check(a, stubs, 52, c + 1, 9, FL_FULL2 - MISC, 2)
        base = CELLS[("w", c)][0] * SLOT + (p % 2) * 4096
        w, off = base >> 16, base & 0xffff
        b = AF2 + 8 * (p % NB)
        for rd in range(2):
            dq.op(f"ds_read_b64_tr_b16 v[{b+4*dl+2*rd}:{b+4*dl+2*rd+1}], v{AR[w]+dl} offset:{off + 512*rd}", ("w", p))
        if dl == 1 and p % 2 == 1 and 17 + c <= TB_REQ:
            a(f"v_mov_b32 v0, {17 + c}")
            dq.op(f"ds_write_b32 v9, v0 offset:{FL_FREE - MISC}")
    for p in range(PD): reads(p, 0); reads(p, 1)
    for p in range(43):
        if p == L2P:
            TM(a, "w2")
            if L2P > 4: a("s_waitcnt lgkmcnt(0)")
            h_wait(a, 2); TM(a, "L2")
            for q in range(16, 19): h_pre(a, q)
        if p in L3TRY:
            skip = a.label("l3s")
            a(f"s_cmp_lg_u32 s55, 0\ns_cbranch_scc1 {skip}\ns_waitcnt lgkmcnt(0)")
            level_test(a, 3)
            a(f"s_cbranch_scc0 {skip}\ns_call_b64 s[46:47], k_l3burst")
            a(f"{skip}:")
        if p + 5 in L3TRY + (L3P,) or (L2P > 4 and p == max(L2P - 7, 0)): level_load(a)
        if p == L3P:
            skip = a.label("l3s")
            TM(a, "w3")
            a(f"s_waitcnt lgkmcnt(0)\ns_cmp_lg_u32 s55, 0\ns_cbranch_scc1 {skip}")
            h_wait(a, 3)
            a("s_call_b64 s[46:47], k_l3burst")
            a(f"{skip}:")
            TM(a, "L3")
            vm += [("h", q) for q in range(32, 43)]
        b = AF2 + 8 * (p % NB)
        a(f"s_waitcnt vmcnt({len(vm) - 1 - vm.index(('h', p))})")
        if p % 4 == 0: TM(a, f"p{p}")
        dq.wait(("w", p))
        for dl in range(2):
            d = ACC2 + 16 * dl
            a(f"v_mfma_f32_32x32x16_bf16 v[{d}:{d+15}], v[{b+4*dl}:{b+4*dl+3}], v[{HB(p)}:{HB(p)+3}], " + ("0" if p == 0 else f"v[{d}:{d+15}]"))
            if p + PD < 43: reads(p + PD, dl)
        for q in range(LR * (p - L2P) + 16, LR * (p - L2P + 1) + 16):
            if 16 <= q < 32:
                if q + 3 < 32: h_pre(a, q + 3)
                h_load(a, q); vm.append(("h", q))
        if LR * (p - L2P) + 16 == 32:
            res_load(a, 12, 11); vm.append("r")
        if p == 40:
            slot_sel(a, 40, 3, TB)
            a("v_and_b32 v16, 31, v1\nv_lshrrev_b32 v17, 5, v1\nv_and_b32 v18, 7, v1\nv_xor_b32 v17, v17, v18\nv_lshlrev_b32 v17, 4, v17\nv_lshl_add_u32 v16, v16, 8, v17\nv_add_u32 v16, s40, v16")
            for g in range(1, 4): a(f"v_xor_b32 v{16+g}, {32*g}, v16")
            a(f"v_mov_b32 v8, {MISC}")
    TM(a, "loopend")
    lds_wait_ge(a, 8, FL_FREE - MISC, TB_REQ, 4, 40, 41, minof=4)
    Stamps.at(a, 14)
    for dl in range(2):
        for g in range(4):
            r = ACC2 + 16*dl + 4*g
            a(f"ds_write_b128 v{16+g}, v[{r}:{r+3}] offset:{128*dl}")
    TM(a, "written"); TM.park(a)
    a("s_branch k_fin")
    a("k_l3burst:")
    h_burst(a, 32, 43)
    a("s_mov_b32 s55, 1\ns_setpc_b64 s[46:47]")
    return stubs

def res_setup(a, t=40):
    a(f"s_lshr_b32 s{t}, s3, 2\ns_lshl_b32 s{t}, s{t}, 20\ns_lshr_b32 s{t+1}, s{S_T}, 3\ns_lshl_b32 s{t+1}, s{t+1}, 18\ns_add_u32 s{t}, s{t}, s{t+1}")
    a(f"s_and_b32 s{t+1}, s{S_T}, 7\ns_lshl_b32 s{t+1}, s{t+1}, 12\ns_add_u32 s{t}, s{t}, s{t+1}\ns_and_b32 s{t+1}, s3, 3\ns_lshl_b32 s{t+1}, s{t+1}, 16\ns_add_u32 s{t}, s{t}, s{t+1}")
    a(f"s_lshl_b32 s{t+1}, s{S_CJ}, 7\ns_add_u32 s{S_RES}, s{t}, s{t+1}")

def res_load(a, dst, voff):
    a(f"v_bfe_u32 v{dst}, v1, 3, 2\nv_and_b32 v{voff}, 7, v1\nv_lshlrev_b32 v{voff}, 4, v{voff}\nv_lshl_add_u32 v{voff}, v{dst}, 10, v{voff}")
    a(f"v_lshrrev_b32 v{dst}, 5, v1\nv_lshl_add_u32 v{voff}, v{dst}, 15, v{voff}")
    a(f"buffer_load_dwordx4 v[{dst}:{dst+3}], v{voff}, {sr(S_X)}, s{S_RES} offen")

def res_issue(a, dst, voff):
    res_setup(a); res_load(a, dst, voff)

def final_combine(a, xr, voff):
    a("s_and_b32 s40, s3, 3\ns_lshl_b32 s40, s40, 11\ns_lshr_b32 s41, s3, 2")
    slot_sel(a, 42, 41, TB[:2]); slot_sel(a, 43, 41, TB[2:])
    a("v_lshrrev_b32 v4, 3, v1\nv_and_b32 v5, 7, v1\nv_lshlrev_b32 v5, 1, v5\nv_xor_b32 v5, v5, v4\nv_lshlrev_b32 v5, 4, v5")
    a("v_lshl_add_u32 v4, v4, 8, v5\nv_add_u32 v4, s40, v4\nv_xor_b32 v5, 16, v4")
    a("v_add_u32 v6, s42, v4\nv_add_u32 v7, s42, v5\nv_add_u32 v8, s43, v4\nv_add_u32 v9, s43, v5")
    a(f"v_add_u32 v2, {TA[1]*SLOT}, v4\nv_add_u32 v3, {TA[1]*SLOT}, v5\nv_add_u32 v4, {TA[0]*SLOT}, v4\nv_add_u32 v5, {TA[0]*SLOT}, v5")
    a("s_lshl_b32 s41, s41, 31\ns_or_b32 s42, s41, 0x3f800000")
    a("s_waitcnt vmcnt(0)")
    XU = 84
    for p in range(4):
        a(f"v_lshlrev_b32 v{XU+2*p}, 16, v{xr+p}\nv_and_b32 v{XU+2*p+1}, 0xffff0000, v{xr+p}")
    if Trace.on: a("s_memtime s[100:101]\ns_waitcnt lgkmcnt(0)\nv_writelane_b32 v100, s100, 60")
    a("s_waitcnt lgkmcnt(0)\ns_barrier")
    if Trace.on: a("s_memtime s[100:101]\ns_waitcnt lgkmcnt(0)\nv_writelane_b32 v100, s100, 61")
    R = 20
    for q in range(2):
        a(f"ds_read_b128 v[{R+4*q}:{R+4*q+3}], v{4+q}")
        a(f"ds_read_b128 v[{R+8+4*q}:{R+8+4*q+3}], v{2+q}")
        a(f"ds_read_b128 v[{R+16+4*q}:{R+16+4*q+3}], v{6+q}")
        a(f"ds_read_b128 v[{R+24+4*q}:{R+24+4*q+3}], v{8+q}")
    for p in range(4):
        if p % 2 == 0: a(f"s_waitcnt lgkmcnt({4 if p == 0 else 0})")
        r = R + 2*p
        a(f"v_pk_fma_f32 v[{r}:{r+1}], v[{r+8}:{r+9}], s[42:43], v[{r}:{r+1}] op_sel_hi:[1,0,1]")
        a(f"v_pk_add_f32 v[{r+16}:{r+17}], v[{r+16}:{r+17}], v[{r+24}:{r+25}]")
        a(f"v_pk_add_f32 v[{r}:{r+1}], v[{r}:{r+1}], v[{XU+2*p}:{XU+2*p+1}]")
        a(f"v_pk_add_f32 v[{r}:{r+1}], v[{r}:{r+1}], v[{r+16}:{r+17}]")
        a(f"v_cvt_pk_bf16_f32 v{xr+p}, v{r}, v{r+1}")
    a(f"buffer_store_dwordx4 v[{xr}:{xr+3}], v{voff}, {sr(S_OUT)}, s{S_RES} offen {'sc0 sc1' if 'owt' in OPT else 'nt' if 'ont' in OPT else ''}")

def loader(a):
    a(f"v_mov_b32 v2, {MISC}")
    a("v_and_b32 v16, 3, v1\nv_lshl_add_u32 v16, v16, 2, v2")
    a("v_lshrrev_b32 v8, 2, v1\nv_and_b32 v9, 3, v1\nv_lshlrev_b32 v9, 4, v9\nv_xor_b32 v10, 2, v8")
    a("v_mul_u32_u24 v8, 5504, v8\nv_mul_u32_u24 v10, 5504, v10\nv_xor_b32 v11, 32, v9")
    a("v_add_u32 v4, v8, v9\nv_add_u32 v5, v8, v11\nv_add_u32 v6, v10, v9\nv_add_u32 v7, v10, v11")
    a("v_lshrrev_b32 v8, 3, v1\nv_and_b32 v9, 7, v1\nv_bfe_u32 v10, v1, 4, 1\nv_lshlrev_b32 v10, 2, v10\nv_xor_b32 v10, v10, v9")
    a("v_lshlrev_b32 v10, 4, v10\nv_lshl_add_u32 v17, v8, 10, v10")
    for q in range(4):
        a(f"s_add_u32 s40, s{S_ROT}, {q}\ns_and_b32 s40, s40, 3\ns_mul_i32 s{44+q}, s40, {128*2752}")
    a(f"s_and_b32 s40, s{S_P}, 1\ns_mul_i32 s48, s40, 2752\ns_sub_u32 s49, 2752, s48")
    a(f"s_lshl_b32 s40, s{S_P}, 6\ns_add_u32 s48, s48, s40\ns_add_u32 s49, s49, s40")
    a(f"s_lshl_b32 s50, s{S_CJ}, 7\ns_mov_b32 s52, 0")
    pair_table(a, 18, 19, 20)
    a("v_lshlrev_b32 v18, 15, v18\nv_add_u32 v18, s50, v18\nv_lshlrev_b32 v19, 4, v1")
    lds_wait_ge(a, 2, FL_A_DONE - MISC, 4, 12, 40, 41)
    if LGATE:
        a("s_waitcnt vmcnt(0)\nv_mov_b32 v3, 1"); wg_signal(a, FL_Z_CNT, 4, 0, 2, 3, 12)
    Stamps.at(a, 7)
    two, w2l = a.label("ld2"), a.label("ldw2")
    if "noload" in OPT:
        a("s_waitcnt vmcnt(0)\nv_mov_b32 v3, 1"); wg_signal(a, FL_Z_CNT, 4, 0, 2, 3, 12)
        a(f"v_mov_b32 v3, 99\nds_write_b32 v16, v3 offset:{FL_FULL - MISC}\nds_write_b32 v16, v3 offset:{FL_FULL2 - MISC}\ns_branch k_ldend")
    a(f"s_cmp_eq_u32 s{S_NP}, 2\ns_cbranch_scc1 {two}")
    class Pipe:
        def __init__(s): s.items = []; s.seen = 0; s.depth = DEPTH
        def publish(s, it):
            if it[0] is None: return
            a(f"v_mov_b32 v3, {it[1]}\ns_mov_b64 exec, 15\nds_max_u32 v16, v3 offset:{it[0] - MISC}\ns_mov_b64 exec, -1")
        def probe(s, req, ok):
            a(f"s_call_b64 s[54:55], k_ldprobe\ns_cmp_ge_u32 s52, {req}\ns_cbranch_scc1 {ok}")
        def need(s, req):
            if req <= s.seen: return
            ok = a.label("ldok")
            a(f"s_cmp_ge_u32 s52, {req}\ns_cbranch_scc1 {ok}")
            for i, it in enumerate(s.items):
                if it[0] is None: continue
                s.probe(req, ok)
                a(f"s_waitcnt vmcnt({sum(x[2] for x in s.items[i+1:])})"); s.publish(it)
            lds_wait_ge(a, 2, FL_FREE - MISC, req, 12, 52, 41, minof=4, sleep=LSL)
            a(f"{ok}:")
            s.seen = req
        def done(s, word, val, cnt):
            s.items.append((word, val, cnt))
            while len(s.items) > 1 and sum(x[2] for x in s.items) > s.depth:
                it = s.items.pop(0)
                a(f"s_waitcnt vmcnt({sum(x[2] for x in s.items)})"); s.publish(it)
        def flush(s, keep=0):
            while len(s.items) > keep:
                it = s.items.pop(0)
                a(f"s_waitcnt vmcnt({sum(x[2] for x in s.items)})"); s.publish(it)
    def variant(np_):
        pp = Pipe()
        for grp in range(8):
            st, q = grp // 4, grp % 4
            if st == 0: seq = [[("A", "X", 0), ("C", "X", 64)], [("A", "Y", 0)]]
            else:       seq = [[("C", "Y", 64), ("B", "Y", 64 * (np_ - 1))], [("B", "X", 64 * (np_ - 1))]]
            if np_ == 2: seq = [[c for c in s if c[0] != "C"] for s in seq]
            tot = 0
            for si, s in enumerate(seq):
                pp.need(max([CELLS[(c[0], c[1], q)][1] for c in s] + [LGATE]))
                cl = s[0][1]; ci = 0 if cl == "X" else 1; cnt = 0
                for g in range(4):
                    for mat in range(2):
                        for n, (ps, _, off) in enumerate(s):
                            dst = CELLS[(ps, cl, q)][0] * SLOT + mat * 4096 + g * 1024
                            neg = dst - off < 0
                            a(f"s_mov_b32 m0, {dst if neg else dst - off}")
                            if mat == 0 and n == 0:
                                a(f"s_add_u32 s42, s{44+q}, s{48+ci}" if g == 0 else f"s_add_u32 s42, s42, {32*2752}")
                            if neg:
                                a(f"s_add_u32 s43, s42, {off}\nbuffer_load_dwordx4 v{4+2*ci+mat}, {sr(S_W1 + 4*mat)}, s43 offen lds")
                            else:
                                a(f"buffer_load_dwordx4 v{4+2*ci+mat}, {sr(S_W1 + 4*mat)}, s42 offen offset:{off} lds")
                            cnt += 1
                tot += cnt
                if grp == 0 and si == 1 and not LGATE:
                    a(f"s_waitcnt vmcnt({tot})\nv_mov_b32 v3, 1"); wg_signal(a, FL_Z_CNT, 4, 0, 2, 3, 12)
                pp.done(FL_FULL if si == 1 else None, grp + 1, cnt)
            if grp in (1, 3, 5, 7): Stamps.at(a, 8 + grp // 2)
            if grp == 1: a(f"s_setprio {LPRIO}")
        while pp.items and pp.items[0][1] < 8:
            pp.flush(keep=len(pp.items) - 1)
        return pp
    p3 = variant(3)
    a(f"s_branch {w2l}")
    a("k_ldprobe:")
    a(f"ds_read_b128 v[12:15], v2 offset:{FL_FREE - MISC}\ns_waitcnt lgkmcnt(0)")
    a("v_min_u32 v12, v12, v13\nv_min3_u32 v12, v12, v14, v15\nv_readfirstlane_b32 s52, v12\ns_nop 0\ns_setpc_b64 s[54:55]")
    a(f"{two}:")
    p2 = variant(2)
    a(f";@seg ld2 {HV}")
    a(f"{w2l}:")
    pp = Pipe(); pp.items = [(FL_FULL, 8, 24)]; pp.seen = min(p3.seen, p2.seen); pp.depth = DEPTH2
    TL.start(a)
    for c in range(22):
        slot, req = CELLS[("w", c)]
        ps_ = list(range(2 * c, min(2 * c + 2, 43)))
        for p in ps_: a(f"v_readlane_b32 s{44 + p % 2}, v18, {p}")
        pp.need(req)
        if c % 2 == 0: TL(a, f"c{c}")
        for p in ps_:
            for g in range(4):
                a(f"s_mov_b32 m0, {slot*SLOT + (p % 2)*4096 + g*1024}")
                if g: a(f"s_add_u32 s{44 + p % 2}, s{44 + p % 2}, 8192")
                a(f"buffer_load_dwordx4 v17, {sr(S_W2)}, s{44 + p % 2} offen lds")
        pp.done(FL_FULL2, c + 1, 4 * len(ps_))
        if c in (9, 21): Stamps.at(a, 12 if c == 9 else 13)
    TL(a, "issued")
    pp.flush()
    TL(a, "landed"); TL.park(a)

GF, ACCE, BE = 128, 64, 32

def g_first(a, n, dt16, t0):
    st, s7, ar = t0, t0 + 1, t0 + 2
    a(f"v_and_b32 v{st}, 15, v1\ns_lshr_b32 s40, s2, 5\ns_lshl_b32 s40, s40, 6\ns_add_u32 s40, s40, {dt16}\nv_add_u32 v{st}, s40, v{st}")
    a(f"v_cvt_f32_u32 v{st}, v{st}\nv_mul_f32 v{st}, {f32(1/512)}, v{st}\nv_mul_f32 v{s7}, {f32(7.0)}, v{st}")
    a(f"v_lshrrev_b32 v{ar}, 4, v1\nv_lshl_add_u32 v{ar}, v{ar}, 1, 1\nv_cvt_f32_u32 v{ar}, v{ar}\nv_mul_f32 v{ar}, v{ar}, v{st}")
    for i in range(32):
        if i: a(f"v_add_f32 v{ar}, v{ar}, v{st if i & 1 else s7}")
        t = t0 + 4 + 2 * (i & 1); p = t0 + 4 + 2 * ((i + 1) & 1)
        a(f"v_cos_f32 v{t}, v{ar}\nv_sin_f32 v{t+1}, v{ar}")
        if i: a(f"v_cvt_pk_bf16_f32 v{GF+64*n+i-1}, v{p}, -v{p+1}")
    a(f"v_cvt_pk_bf16_f32 v{GF+64*n+31}, v{t0+6}, -v{t0+7}")

def g_second(a, nt):
    a("v_and_b32 v4, 1, v1\nv_lshlrev_b32 v4, 4, v4\nv_bfe_u32 v5, v1, 1, 1\nv_lshlrev_b32 v5, 15, v5\nv_add_u32 v6, 1, v1\nv_bfe_u32 v6, v6, 1, 1\nv_lshl_or_b32 v5, v6, 31, v5")
    for n in range(nt):
        for i in range(32):
            r = GF + 64*n + i
            a(f"v_alignbit_b32 v{r+32}, v{r}, v{r}, v4")
        for i in range(32):
            r = GF + 64*n + i
            a(f"v_xor_b32 v{r+32}, v5, v{r+32}")

def e_load(a, s_pi):
    a(f"v_mov_b32 v2, {MISC}")
    a("v_lshrrev_b32 v8, 4, v1\nv_bfe_u32 v9, v1, 2, 2\nv_xor_b32 v9, v9, v8\nv_lshlrev_b32 v5, 13, v8\nv_lshrrev_b32 v10, 1, v9\nv_lshl_add_u32 v5, v10, 12, v5")
    a("v_and_b32 v10, 1, v9\nv_lshl_add_u32 v5, v10, 6, v5\nv_and_b32 v10, 3, v1\nv_lshl_add_u32 v5, v10, 4, v5")
    a(f"s_lshl_b32 s45, s{S_T}, 7\ns_lshl_b32 s40, s{s_pi}, 18\ns_add_u32 s45, s45, s40\ns_add_u32 s45, s45, {WS_E}")
    a(f"s_lshl_b32 s40, s{s_pi}, 2\nv_add_u32 v6, s40, v2")
    for i in range(4):
        (s0, r0), (s1, r1) = CELLS[("e", 2*i)], CELLS[("e", 2*i + 1)]
        lds_wait_ge(a, 2, FL_FREE - MISC, max(r0, r1), 16, 40, 41, minof=4, sleep=1)
        TH(a, f"ld{i}")
        a(f"s_mul_i32 s46, s{s_pi}, {(s1 - s0) * SLOT}\ns_add_u32 s46, s46, {s0 * SLOT}")
        for g in range(8):
            a(f"s_add_u32 m0, s46, {g*1024}")
            a(f"s_add_u32 s42, s45, {(64*i + 4*g)*8192}")
            a(f"buffer_load_dwordx4 v5, {sr(S_WS)}, s42 offen {RD} lds")
    for i in range(4):
        a(f"s_waitcnt vmcnt({8*(3-i)})\nv_mov_b32 v3, {i+1}\nds_write_b32 v6, v3 offset:{FL_FULLE - MISC}")

def e_part(a, nt, s_dt16):
    TT = TH
    dq = DsQ(a); stubs = []
    a(f"v_mov_b32 v2, {MISC}")
    a("v_lshrrev_b32 v8, 3, v1\nv_lshlrev_b32 v9, 8, v8\nv_and_b32 v8, 3, v8\nv_lshl_add_u32 v9, v8, 6, v9")
    a("v_and_b32 v8, 3, v1\nv_lshl_add_u32 v9, v8, 4, v9\nv_bfe_u32 v8, v1, 2, 1\nv_lshl_add_u32 v4, v8, 3, v9")
    for nu in range(1, 4): a(f"v_xor_b32 v{4+nu}, {64*nu}, v4")
    a("s_mov_b32 s52, 0\ns_mov_b32 s53, 0\ns_waitcnt lgkmcnt(0)")
    AH = 7
    def reads(u):
        js, nu = u // 4, u % 4
        c = js // 2
        if u % 8 == 0: check(a, stubs, 52 + (c & 1), c // 2 + 1, 2, FL_FULLE - MISC + 4 * (c & 1), 3)
        if js % 2 == 0: a(f"v_add_u32 v{16+nu}, {CELLS[('e', c)][0]*SLOT}, v{4+nu}")
        b = BE + 4 * (u % 8)
        for rd in range(2):
            dq.op(f"ds_read_b64_tr_b16 v[{b+2*rd}:{b+2*rd+1}], v{16+nu} offset:{(js % 2)*4096 + 2048*rd}", ("e", u))
    a(f"s_setprio {EPRIO}")
    for u in range(AH): reads(u)
    for u in range(64):
        js, nu = u // 4, u % 4
        b = BE + 4 * (u % 8)
        dq.wait(("e", u))
        if u % 8 == 0: TT(a, f"u{u}")
        for n in range(nt):
            d = ACCE + 16*n + 4*nu; g = GF + 64*n + 4*js
            a(f"v_mfma_f32_16x16x32_bf16 v[{d}:{d+3}], v[{g}:{g+3}], v[{b}:{b+3}], " + ("0" if js == 0 else f"v[{d}:{d+3}]"))
        if u + AH < 64: reads(u + AH)
    a(f"s_lshr_b32 s40, s{s_dt16}, 2\nv_lshrrev_b32 v17, 4, v1\nv_add_u32 v17, s40, v17\nv_and_b32 v18, 7, v1\nv_xor_b32 v17, v17, v18\nv_lshlrev_b32 v17, 4, v17")
    a(f"v_and_b32 v16, 15, v1\nv_lshl_add_u32 v16, v16, 8, v17\nv_xor_b32 v17, 64, v16")
    a(f"v_add_u32 v18, {TA[1]*SLOT}, v16\nv_add_u32 v19, {TA[1]*SLOT}, v17\nv_add_u32 v16, {TA[0]*SLOT}, v16\nv_add_u32 v17, {TA[0]*SLOT}, v17")
    TT(a, "edone")
    lds_wait_ge(a, 2, FL_FREE - MISC, TA_REQ, 4, 40, 41, minof=4, sleep=1)
    for n in range(nt):
        for nu in range(4):
            d = ACCE + 16*n + 4*nu
            a(f"ds_write_b128 v{16+n+2*(nu >> 1)}, v[{d}:{d+3}] offset:{(nu & 1)*4096}")
    TT(a, "written"); TT.park(a)
    return stubs

def h_relay(a, level, val):
    lds_wait_ge(a, 2, FL_HS - MISC, level, 16, 40, 41, minof=4, sleep=1 if level < 3 else 0)
    T3(a, f"hs{level}")
    for i in range(8): a(f"ds_read_b128 v[{32+4*i}:{35+4*i}], v24 offset:{1024*i}")
    a(f"v_mov_b32 v16, {level}\nds_write_b32 v25, v16 offset:{FL_HSF - MISC}")
    for i in range(8):
        a(f"s_waitcnt lgkmcnt({7 - i})")
        a(f"buffer_store_dwordx4 v[{32+4*i}:{35+4*i}], v26, {sr(S_WS)}, s{44 + i // 2} offen offset:{1024*(i & 1)} {WT}")
    T3(a, "st")
    a(f"v_mov_b32 v16, {val}\ns_waitcnt vmcnt({63 if ('noack' in OPT and level >= 2) or 'noack1' in OPT else 0})\ns_mov_b32 exec_hi, 0")
    a(f"buffer_atomic_add v16, v27, {sr(S_WS)}, s48 offen sc1\ns_mov_b64 exec, -1")
    T3(a, "ack")
    if Trace.on: a("s_waitcnt vmcnt(0)")
    T3(a, "atom"); T3.park(a)

def h_relay_setup(a):
    a(f"v_mov_b32 v2, {MISC}\nv_lshlrev_b32 v26, 4, v1\nv_add_u32 v24, {HST}, v26\nv_and_b32 v25, 3, v1\nv_lshl_add_u32 v25, v25, 2, v2")
    a(f"s_lshl_b32 s49, s{S_I}, 1\ns_mul_i32 s44, s49, 86\ns_lshl1_add_u32 s44, s{S_P}, s44\ns_lshl_b32 s44, s44, 10\ns_add_u32 s44, s44, {WS_H}")
    a(f"s_add_u32 s45, s44, {86*1024}\ns_add_u32 s46, s44, {32*86*1024}\ns_add_u32 s47, s46, {86*1024}")
    mbox_off(a, 48, 49)
    a("v_and_b32 v27, 7, v1\nv_lshlrev_b32 v27, 13, v27\nv_bfe_u32 v16, v1, 3, 1\nv_lshl_add_u32 v27, v16, 11, v27\nv_bfe_u32 v16, v1, 4, 1\nv_lshl_add_u32 v27, v16, 2, v27")

def scalar_prefetch(a):
    a(f"s_lshl3_add_u32 s40, s2, s3\ns_and_b32 s41, s40, 1023\ns_mulk_i32 s41, {11*128}\ns_min_u32 s41, s41, {512*2752 - 11*128}")
    a(f"s_cmp_lt_u32 s40, 1024\ns_cselect_b64 s[42:43], s[{S_W1}:{S_W1+1}], s[{S_W3}:{S_W3+1}]\ns_add_u32 s42, s42, s41\ns_addc_u32 s43, s43, 0")
    for i in range(11): a(f"s_load_dword s82, s[42:43], {128*i}")

def w2_touch(a):
    a(f"v_mov_b32 v2, {MISC}")
    lds_wait_ge(a, 2, FL_FULL - MISC, W2T, 16, 40, 41, sleep=4)
    a(f"v_lshlrev_b32 v4, 7, v1\ns_lshr_b32 s42, s2, 3\ns_mul_i32 s42, s42, {344*128}")
    for i in range(6):
        if i == 5: a("s_mov_b64 exec, 0xffffff")
        a(f"buffer_load_dword v10, v4, {sr(S_W2)}, s42 offen\ns_add_u32 s42, s42, 8192")
    a("s_mov_b64 exec, -1")

W2T = 8
L3P = 31
ET = 4
HSJ = 10
L2P = int([o[2:] for o in OPT if o.startswith("l2")][0]) if any(o.startswith("l2") for o in OPT) else 4
LR = 2 if "r2" in OPT else 1
PSTP = 13
L3TRY = (18, 24) if "r2" in OPT else (21, 26)
GAPB = int([o[2:] for o in OPT if o.startswith("gb")][0]) if any(o.startswith("gb") for o in OPT) else 28
EPRIO = 0 if "ep0" in OPT else 2
DEPTH = 40
DEPTH2 = int([o[2:] for o in OPT if o.startswith("d2")][0]) if any(o.startswith("d2") for o in OPT) else 40
LSL = 2 if "lsl" in OPT else 0
HV, HM = 256, 128
LPRIO = 0 if "lp0" in OPT else 3
ZG = 3 if "zg" in OPT else 0
WG = 3 if ("wg" in OPT or "zg" in OPT) else 0
LGATE = 3 if "lg" in OPT else 0
XS = False
SF = WT
if "nost" in OPT:
    import spec
    spec.NOST = True
a = Asm()
a.begin_kernel(NAME)
a("s_cmp_ge_u32 s2, 0x100\ns_cbranch_scc1 k_end")
Stamps.at(a, 0)
if "dbgspan" in OPT or "fix" in OPT: a("s_memrealtime s[92:93]")
if Trace.on: a("s_memtime s[92:93]\ns_waitcnt lgkmcnt(0)")
a(f"s_load_dwordx2 s[{S_X}:{S_X+1}], s[0:1], 0\ns_load_dwordx2 s[{S_WR}:{S_WR+1}], s[0:1], 8\ns_load_dwordx2 s[{S_WI}:{S_WI+1}], s[0:1], 16")
a(f"s_load_dwordx8 s[72:79], s[0:1], 32\ns_load_dwordx2 s[{S_WS}:{S_WS+1}], s[0:1], 72\ns_load_dwordx2 s[{S_DBG}:{S_DBG+1}], s[0:1], 64")
code_prefetch(a, NAME, "k_end", 65536, 8, 255)
a("v_lshrrev_b32 v2, 6, v0\nv_and_b32 v1, 63, v0\nv_readfirstlane_b32 s3, v2")
a(f"s_mov_b32 s{S_X+2}, 0x200000\ns_mov_b32 s{S_X+3}, 0x20000")
ids_early(a)
a("s_cmp_ge_u32 s3, 4\ns_cbranch_scc1 k_helper")
x_setup(a)
x_setup_late(a)
a("s_waitcnt lgkmcnt(0)\ns_barrier")
x_issue(a, 0)
a("s_branch k_main")
a("k_helper:")
a(f"s_setprio 3\ns_sub_u32 s{S_HW}, s3, 4")
a(f"v_lshlrev_b32 v4, 2, v1\nv_add_u32 v4, {MISC}, v4\nv_mov_b32 v5, 0\nds_write_b32 v4, v5")
a(f"s_mov_b32 s{S_WR+2}, {2048*514}\ns_mov_b32 s{S_WR+3}, s{S_X+3}\ns_mov_b64 s[{S_WI+2}:{S_WI+3}], s[{S_WR+2}:{S_WR+3}]")
row_setup(a, S_HW, 18*SLOT)
a("s_waitcnt lgkmcnt(0)\ns_barrier")
row_issue(a, 17*SLOT)
ids_late(a)
Stamps.at(a, 1)
if "sp" in OPT: scalar_prefetch(a)
a(f"s_load_dword s{S_TAG}, s[80:81], 0\ns_sub_u32 s6, s{S_HW}, 1")
row_compute(a, S_HW, 18*SLOT, 17*SLOT, SF, 0, zgate=ZG, wgate=WG)
make_tag(a)
a(f"s_cmp_eq_u32 s{S_HW}, 0\ns_cbranch_scc1 k_loader")
a(f"s_lshl_b32 s42, s2, 8\ns_add_u32 s42, s42, {MBOX + 128}\nv_mov_b32 v14, 0\nv_mov_b32 v15, 0\ns_mov_b64 exec, 1")
a(f"buffer_store_dwordx2 v[14:15], off, {sr(S_WS)}, s42 {WT}\ns_mov_b64 exec, -1")
a("s_waitcnt vmcnt(0)")
wg_signal(a, FL_Z_CNT, 4, 0, 12, 13, 14)
a(f"s_setprio 0\ns_cmp_eq_u32 s{S_HW}, 3\ns_cbranch_scc1 k_h3")
a("s_branch k_h12")

a("k_main:")
ids_late(a)
if "sp" in OPT: scalar_prefetch(a)
g1_main(a)
st = g2_main(a)
emit_stubs(a, st)

a(";@endseg")
a("k_h12:")
if "nocolE" in OPT:
    res_issue(a, 12, 11); a("s_branch k_fin")
Stamps.at(a, 7)
if "nogen" not in OPT:
    col_mats(a, 6)
    col_twiddles(a, 6, S_COL, 2)
    col_twiddles(a, 6, S_COL, 1)
col_addrs(a)
Stamps.at(a, 8)
a(f"s_setprio {CPRIO}")
wait_go(a, 0)
Stamps.at(a, 9)
col_loads3(a, 6, S_COL, RD)
if "nocol" not in OPT: col_compute3(a, SF)
Stamps.at(a, 11)
a(f"v_mov_b32 v2, {MISC}\nv_mov_b32 v3, 1")
a("s_waitcnt vmcnt(0)")
Stamps.at(a, 12)
wg_signal(a, FL_E_CNT, 2, 1, 2, 3, 14)
a("s_setprio 0\ns_lshl_b32 s7, s6, 5\ns_add_u32 s55, s7, 16")
if "nogen" not in OPT:
    g_first(a, 0, "s7", 4); g_first(a, 1, "s55", 4)
    g_second(a, 2)
res_issue(a, 12, 11)
a(f"v_lshlrev_b32 v24, 12, v1\ns_lshl1_add_u32 s47, s{S_CJ}, s6\ns_lshl_b32 s47, s47, 17\ns_lshl_b32 s40, s{S_T}, 7\ns_add_u32 s47, s47, s40\ns_add_u32 s47, s47, {WS_E}")
if "noE" in OPT: a("s_branch k_fin")
Stamps.at(a, 13)
a(f"s_setprio {EPRIO}")
TH.start(a); TH(a, "waitE")
wait_go(a, 1)
TH(a, "goE")
a(f"s_mov_b32 exec_hi, 0\nbuffer_load_dword v25, v24, {sr(S_WS)}, s47 offen {RD}\ns_mov_b64 exec, -1")
Stamps.at(a, 14)
e_load(a, 6)
st = e_part(a, 2, 7)
a("s_branch k_fin")
emit_stubs(a, st)

a(";@endseg")
a("k_h3:")
warm(a, ["m1", "m2", "ld2", "m3"])
if "w2t" in OPT: w2_touch(a)
wait_go(a, 0)
h_relay_setup(a)
res_issue(a, 12, 11)
a("s_setprio 3")
T3.start(a)
h_relay(a, 1, 1)
Stamps.at(a, 9)
a(f"s_sub_u32 s49, s{S_NP}, 1\ns_lshl_b32 s49, s49, 11\ns_cmp_eq_u32 s{S_NP}, 2\ns_mov_b32 s50, 0x100\ns_cmov_b32 s50, 0x10100")
for i in range(4): a(f"s_add_u32 s{44+i}, s{44+i}, s49")
h_relay(a, 2, "s50")
Stamps.at(a, 10)
a(f"s_cmp_eq_u32 s{S_NP}, 2\ns_cbranch_scc1 k_fin")
for i in range(4): a(f"s_sub_u32 s{44+i}, s{44+i}, 2048")
h_relay(a, 3, 0x10000)
Stamps.at(a, 14)
a("s_branch k_fin")

a("k_loader:")
loader(a)
a("k_ldend:")
res_issue(a, 12, 11)
a("k_fin:")
final_combine(a, 12, 11)
a("s_xor_b32 s40, s3, 5\ns_or_b32 s40, s40, s2\ns_cmp_lg_u32 s40, 0\ns_cbranch_scc1 k_dump")
a(f"s_mov_b32 s42, {GF_EPOCH}")
flag_store(a, 42, 0, 4)
a("k_dump:")
if "fixg" in OPT:
    a("s_cmp_lg_u32 s3, 0\ns_cbranch_scc1 k_end\ns_and_b32 s40, s2, 31\ns_cmp_lg_u32 s40, s2\ns_cbranch_scc1 k_end")
    a(f"s_not_b32 s93, s92\ns_atomic_umax s93, s[{S_DBG}:{S_DBG+1}], 16\ns_waitcnt lgkmcnt(0)\ns_sleep 127\ns_load_dword s92, s[{S_DBG}:{S_DBG+1}], 16 glc\ns_waitcnt lgkmcnt(0)\ns_not_b32 s92, s92")
if "fix" in OPT:
    a("k_fx:\ns_memrealtime s[94:95]\ns_waitcnt lgkmcnt(0)\ns_sub_u32 s94, s94, s92\ns_cmp_lt_u32 s94, 4000\ns_cbranch_scc1 k_fx")
if "dbgspan" in OPT:
    a("s_waitcnt vmcnt(0)\ns_memrealtime s[94:95]\ns_waitcnt lgkmcnt(0)\ns_cmp_lg_u32 s3, 0\ns_cbranch_scc1 k_end")
    a("s_and_b32 s92, s92, 0xffffff\ns_and_b32 s94, s94, 0xffffff\ns_sub_u32 s93, 0xffffff, s92\ns_sub_u32 s95, s94, s92")
    for i, r in enumerate((93, 94, 92, 95)):
        a(f"s_atomic_umax s{r}, s[{S_DBG}:{S_DBG+1}], {16 + 4*i}")
    a("s_waitcnt lgkmcnt(0)")
if Stamps.on: a("s_waitcnt vmcnt(0)")
Stamps.dump(a, 0)
if Trace.on: a("s_waitcnt vmcnt(0)")
Trace.dump(a)
import json
if Trace.on: json.dump(Trace.names, open(sys.argv[1][:-2] + ".json", "w"))
a(";@endseg")
a("k_end:\ns_endpgm")
a("k_hopret:\ns_waitcnt lgkmcnt(0)\ns_setpc_b64 s[0:1]")
a.add_kernel(NAME, 256); a.add_launch(NAME, 256, 512, LDS_BYTES)
txt = a.text(header=HEADER, single=True)
if "hop" in OPT:
    txt, nh_ = hop_pass(txt, "k_hopret"); print("hop sites", nh_)
if "noal" not in OPT: txt, nw_, np_ = align_pass(txt)
open(sys.argv[1], "w").write(txt)
print("nops", a.nops_added, CELLS if "v" in OPT else "")
```

```python
from pieces import *

def row_setup(a, s_hw, lds_rows):
    a("s_lshr_b32 s40, s2, 3\ns_and_b32 s41, s2, 3\ns_bfe_u32 s42, s2, 0x10002\ns_lshl1_add_u32 s41, s41, s42\ns_lshl_b32 s62, s41, 5\ns_add_u32 s62, s62, s40")
    a(f"s_lshl2_add_u32 s42, s41, s{s_hw}\ns_lshl_b32 s42, s42, 5\ns_add_u32 s42, s42, s40\ns_lshl_b32 s42, s42, 10")
    a(f"s_lshl_b32 s44, s{s_hw}, 11\ns_add_u32 s44, s44, {lds_rows}\ns_mov_b32 m0, s44")
    a("v_lshlrev_b32 v2, 4, v1\ns_add_u32 s43, s42, 0x100000")

def row_issue(a):
    a(f"buffer_load_dwordx4 v2, {sr(S_X)}, s42 offen lds")
    a("s_add_u32 m0, s44, 1024")
    a(f"buffer_load_dwordx4 v2, {sr(S_X)}, s43 offen lds")

def w_issue(a, lds_w):
    a("s_bfe_u32 s45, s2, 0x20003\ns_and_b32 s46, s2, 3\ns_bfe_u32 s47, s2, 0x10002\ns_bfe_u32 s48, s2, 0x20005\ns_lshr_b32 s49, s2, 7")
    a("s_lshl2_add_u32 s50, s47, s46\ns_lshl_b32 s50, s50, 2\ns_lshl3_add_u32 s50, s50, s48\ns_lshl3_add_u32 s50, s50, s49")
    a("s_mulk_i32 s50, 514\ns_lshl_b32 s51, s45, 7\ns_add_u32 s50, s50, s51\ns_add_u32 s50, s50, 2")
    a("v_lshrrev_b32 v3, 5, v1\nv_bfe_u32 v4, v1, 3, 2\nv_lshl_add_u32 v3, v3, 4, v4\nv_mul_u32_u24 v3, 1028, v3\nv_and_b32 v4, 7, v1\nv_lshl_add_u32 v3, v4, 4, v3")
    for r in range(4):
        a(f"s_mov_b32 m0, {lds_w + 1024*r}")
        if r: a(f"s_add_u32 s50, s50, {64*514}")
        a(f"buffer_load_dwordx4 v3, {sr(S_WR)}, s50 offen lds")
        a(f"s_mov_b32 m0, {lds_w + 4096 + 1024*r}")
        a(f"buffer_load_dwordx4 v3, {sr(S_WI)}, s50 offen lds")

def w_store(a, lds_w, st_flags, between=None):
    a(f"v_lshrrev_b32 v5, 3, v1\nv_and_b32 v3, 7, v1\nv_lshlrev_b32 v4, 7, v3\nv_lshl_add_u32 v4, v5, 1, v4\nv_add_u32 v4, {lds_w}, v4")
    a("v_lshlrev_b32 v5, 13, v5\nv_lshl_add_u32 v5, v3, 4, v5")
    a("s_lshl_b32 s60, s45, 19\ns_lshl_b32 s61, s49, 12\ns_add_u32 s60, s60, s61\ns_lshl_b32 s61, s46, 10\ns_add_u32 s60, s60, s61")
    a(f"s_lshl_b32 s61, s47, 9\ns_add_u32 s60, s60, s61\ns_lshl_b32 s61, s48, 7\ns_add_u32 s60, s60, s61\ns_add_u32 s50, s60, {WS_WT}")
    a("s_waitcnt vmcnt(0)")
    def rd(n):
        for r in range(4):
            a(f"ds_read_u16 v{32+8*n+r}, v4 offset:{1024*r + 16*n}\nds_read_u16 v{36+8*n+r}, v4 offset:{4096 + 1024*r + 16*n}")
    def st(n): a(f"buffer_store_dwordx4 v[{32+8*n}:{35+8*n}], v5, {sr(S_WS)}, s50 offen {st_flags}\ns_add_u32 s50, s50, 0x10000")
    rd(0)
    for n in range(8):
        a("s_waitcnt lgkmcnt(4)")
        if n < 7: rd(n + 1)
        else: a(f"s_mov_b64 exec, 1\nds_add_u32 v12, v13 offset:{FL_A_DONE - MISC}\ns_mov_b64 exec, -1")
        a(f"s_waitcnt lgkmcnt({8 if n < 7 else 0})")
        for r in range(4): a(f"v_lshl_or_b32 v{32+8*n+r}, v{36+8*n+r}, 16, v{32+8*n+r}")
        if not between: st(n)
    if between:
        between()
        for n in range(8): st(n)

ZR = 96
def z_store(a, s_half, lds_rows, st_flags, between=None):
    a(f"v_and_b32 v4, 1, v1\nv_lshrrev_b32 v5, 1, v1\nv_lshlrev_b32 v4, 10, v4\nv_lshl_add_u32 v4, v5, 2, v4\ns_lshl_b32 s52, s{s_half}, 9\ns_add_u32 s52, s52, {lds_rows}\nv_add_u32 v4, s52, v4\nv_add_u32 v5, 128, v4")
    a(f"s_lshl_b32 s52, s62, 13\ns_lshl_b32 s63, s{s_half}, 12\ns_add_u32 s52, s52, s63\ns_add_u32 s52, s52, {WS_Z}")
    lds_wait_ge(a, 12, FL_BAR_A - MISC, 4, 18, 61, 63)
    Stamps.at(a, 6)
    for e in range(4):
        a(f"ds_read2st64_b32 v[{ZR+4*e}:{ZR+1+4*e}], v{4 + (e & 1)} offset0:{e >> 1} offset1:{(e >> 1) + 8}")
        a(f"ds_read2st64_b32 v[{ZR+2+4*e}:{ZR+3+4*e}], v{4 + (e & 1)} offset0:{(e >> 1) + 16} offset1:{(e >> 1) + 24}")
    if between:
        a("s_waitcnt lgkmcnt(0)"); between()
    for e in range(4):
        if not between: a(f"s_waitcnt lgkmcnt({6 - 2*e})")
        a(f"buffer_store_dwordx4 v[{ZR+4*e}:{ZR+3+4*e}], v2, {sr(S_WS)}, s52 offen offset:{1024*e} {st_flags}")

def row_compute(a, s_hw, wait_rows):
    N, Q4, FU, ARG, STEP = 4, 5, 6, 7, 8
    B1, TC, TS, A2, CM = 16, 32, 40, 48, 9
    a(f"v_and_b32 v{N}, 15, v1")
    a(f"v_lshrrev_b32 v{Q4}, 4, v1\nv_lshlrev_b32 v{Q4}, 2, v{Q4}\nv_cvt_f32_u32 v{Q4}, v{Q4}")
    a(f"v_add_u32 v{FU}, 1, v{N}\nv_cvt_f32_u32 v{FU}, v{FU}")
    a(f"v_mul_f32 v{STEP}, {f32(1/32)}, v{FU}")
    a(f"v_mul_f32 v{ARG}, v{Q4}, v{STEP}")
    C0, S0 = 52, 60
    for j in range(8):
        if j == 4: a(f"v_mul_f32 v10, {f32(13.0)}, v{STEP}\nv_add_f32 v{ARG}, v{ARG}, v10")
        elif j: a(f"v_add_f32 v{ARG}, v{ARG}, v{STEP}")
        a(f"v_cos_f32 v{C0+j}, v{ARG}\nv_sin_f32 v{S0+j}, v{ARG}")
    for jj in range(4):
        a(f"v_cvt_pk_bf16_f32 v{B1+jj}, v{C0+2*jj}, v{C0+2*jj+1}")
        a(f"v_cvt_pk_bf16_f32 v{B1+4+jj}, -v{S0+2*jj}, -v{S0+2*jj+1}")
    for jj in range(8): a(f"v_xor_b32 v{B1+8+jj}, 0x80000000, v{B1+jj}")
    for tau in range(2):
        if tau: a(f"v_add_f32 v{FU}, {f32(16.0)}, v{FU}")
        a(f"v_mul_f32 v{STEP}, {f32(1/512)}, v{FU}\nv_mul_f32 v{ARG}, v{Q4}, v{STEP}")
        for r in range(4):
            if r: a(f"v_add_f32 v{ARG}, v{ARG}, v{STEP}")
            a(f"v_cos_f32 v{TC+4*tau+r}, v{ARG}\nv_sin_f32 v{TS+4*tau+r}, v{ARG}")
    a(f"v_lshrrev_b32 v{STEP}, 1, v{N}\nv_cvt_f32_u32 v{STEP}, v{STEP}\nv_mul_f32 v{STEP}, {f32(1/16)}, v{STEP}")
    a(f"v_and_b32 v{ARG}, 1, v{N}\nv_cvt_f32_u32 v{ARG}, v{ARG}\nv_mul_f32 v{ARG}, {f32(0.25)}, v{ARG}")
    a(f"v_fma_f32 v{ARG}, v{Q4}, v{STEP}, v{ARG}")
    for r in range(4):
        if r: a(f"v_add_f32 v{ARG}, v{ARG}, v{STEP}")
        a(f"v_cos_f32 v{C0+r}, v{ARG}\nv_sin_f32 v{S0+r}, v{ARG}")
    for jj in range(2):
        a(f"v_cvt_pk_bf16_f32 v{A2+jj}, v{C0+2*jj}, v{C0+2*jj+1}")
        a(f"v_cvt_pk_bf16_f32 v{A2+2+jj}, v{S0+2*jj}, v{S0+2*jj+1}")
    a(f"v_cmp_eq_u32 vcc, 15, v{N}\nv_mov_b32 v{CM}, {f32(32.0)}\nv_cndmask_b32 v{CM}, 0, v{CM}, vcc")
    a("s_mov_b32 s53, 0x3f803f80")
    a("v_lshlrev_b32 v10, 3, v1\nv_add_u32 v10, s44, v10")
    a(f"v_lshrrev_b32 v11, 4, v1\nv_lshlrev_b32 v11, 6, v11\nv_add_u32 v11, v11, v{N}\nv_lshlrev_b32 v11, 2, v11\nv_add_u32 v11, s44, v11")
    XF = 52
    Stamps.at(a, 3)
    wait_rows()
    Stamps.at(a, 4)
    for al in range(2):
        a(f"ds_read_b64_tr_b16 v[{XF+4*al}:{XF+4*al+1}], v10 offset:{1024*al}")
        a(f"ds_read_b64_tr_b16 v[{XF+4*al+2}:{XF+4*al+3}], v10 offset:{1024*al+512}")
    D1, SU = 92, 12
    a("s_waitcnt lgkmcnt(0)")
    for j in range(4):
        for al in range(2):
            c1 = "0" if j == 0 else f"v{SU+2*al}"
            c2 = "0" if j == 0 else f"v{SU+2*al+1}"
            a(f"v_dot2_f32_bf16 v{SU+2*al}, v{XF+4*al+j}, s53, {c1}")
            a(f"v_dot2_f32_bf16 v{SU+2*al+1}, v{XF+4*al+j}, v{XF+4*al+j}, {c2}")
    mf = []
    for al in range(2):
        for tau in range(2):
            for ri in range(2):
                d = D1 + 16*al + 8*tau + 4*ri
                mf.append(f"v_mfma_f32_16x16x32_bf16 v[{d}:{d+3}], v[{XF+4*al}:{XF+4*al+3}], v[{B1+8*tau+4*ri}:{B1+8*tau+4*ri+3}], 0")
    for n, m in enumerate(("row_ror:8 row_mask:0xf", "row_ror:4 row_mask:0xf", "row_ror:2 row_mask:0xf", "row_ror:1 row_mask:0xf",
              "row_bcast:15 row_mask:0xa", "row_bcast:31 row_mask:0xc")):
        a(mf[n])
        for q in range(4): a(f"v_add_f32_dpp v{SU+q}, v{SU+q}, v{SU+q} {m} bank_mask:0xf")
    a(mf[6]); a(mf[7])
    sub = [Asm(), Asm()]
    for al in range(2): ln_scalars(sub[al], SU+2*al, SU+2*al+1, None)
    for l0, l1 in zip(sub[0].lines, sub[1].lines): a(l0); a(l1)
    for al in range(2):
        a(f"v_readlane_b32 s{54+al}, v{SU+2*al}, 63\nv_readlane_b32 s{56+2*al}, v{SU+2*al+1}, 63")
    UF, T0 = 60, 76
    for al in range(2):
        for r in range(4):
            d = D1 + 16*al + 8 + r
            a(f"v_fma_f32 v{d}, -v{CM}, s{54+al}, v{d}")
    mf = []
    for al in range(2):
        for tau in range(2):
            re, im = D1 + 16*al + 8*tau, D1 + 16*al + 8*tau + 4
            for p in range(2):
                c, s = TC + 4*tau + 2*p, TS + 4*tau + 2*p
                tr, ti = T0 + 4*p, T0 + 4*p + 2
                for e in range(2): a(f"v_mul_f32 v{tr+e}, v{re+2*p+e}, v{c+e}\nv_mul_f32 v{ti+e}, v{im+2*p+e}, v{c+e}")
                for e in range(2): a(f"v_fma_f32 v{tr+e}, v{im+2*p+e}, v{s+e}, v{tr+e}\nv_fma_f32 v{ti+e}, -v{re+2*p+e}, v{s+e}, v{ti+e}")
            u = UF + 8*al + 4*tau
            for p in range(2):
                a(f"v_cvt_pk_bf16_f32 v{u+p}, v{T0+4*p}, v{T0+4*p+1}")
                a(f"v_cvt_pk_bf16_f32 v{u+2+p}, v{T0+4*p+2}, v{T0+4*p+3}")
            d = D1 + 16*al + 8*tau
            mf.append(f"v_mfma_f32_16x16x32_bf16 v[{d}:{d+3}], v[{A2}:{A2+3}], v[{u}:{u+3}], 0")
    for i in (0, 2, 1, 3): a(mf[i])
    a(f"v_mov_b32 v12, {MISC}\nv_mov_b32 v13, 1")
    for tau in range(2):
        for vl in range(2):
            d0, d1 = D1 + 8*tau + 2*vl, D1 + 16 + 8*tau + 2*vl
            t = T0 + 8 * vl
            for e in range(2): a(f"v_mul_f32 v{d0+e}, s56, v{d0+e}")
            for e in range(2): a(f"v_fma_f32 v{t+e}, v{d1+e}, s58, v{d0+e}\nv_fma_f32 v{t+2+e}, -v{d1+e}, s58, v{d0+e}")
            a(f"v_cvt_pk_bf16_f32 v{t+4}, v{t}, v{t+1}\nv_cvt_pk_bf16_f32 v{t+5}, v{t+2}, v{t+3}")
            a(f"ds_write_b32 v11, v{t+4} offset:{64*tau + 128*vl}")
            a(f"ds_write_b32 v11, v{t+5} offset:{64*tau + 128*vl + 1024}")
    Stamps.at(a, 5)
    a("s_mov_b64 exec, 1")
    a(f"ds_add_u32 v12, v13 offset:{FL_BAR_A - MISC}")
    a("s_mov_b64 exec, -1")

def col_loads2(a, s_pi, s_k1, ld_flags):
    a(f"s_lshl_b32 s60, s{s_k1}, 5\ns_lshl_b32 s61, s{s_pi}, 4\ns_add_u32 s60, s60, s61\ns_add_u32 s60, s60, {WS_Z}")
    for t in range(4):
        a(f"buffer_load_dwordx4 v[{CF_Z+4*t}:{CF_Z+4*t+3}], v14, {sr(S_WS)}, s60 offen {ld_flags}")
        if t < 3: a(f"s_add_u32 s60, s60, {64*8192}")
    a(f"s_lshl_b32 s60, s{s_k1}, 13\ns_lshl_b32 s61, s{s_pi}, 12\ns_add_u32 s60, s60, s61\ns_add_u32 s61, s60, {WS_WT}")
    for t in range(4):
        a(f"buffer_load_dwordx4 v[{CF_W+4*t}:{CF_W+4*t+3}], v15, {sr(S_WS)}, s61 offen offset:{1024*t} {ld_flags}")

def col_addrs(a):
    a("v_bfe_u32 v13, v1, 2, 1\nv_lshlrev_b32 v14, 4, v13\nv_bfe_u32 v13, v1, 3, 2\nv_lshl_add_u32 v14, v13, 2, v14")
    a("v_and_b32 v13, 0x23, v1\nv_add_u32 v14, v14, v13\nv_lshlrev_b32 v14, 13, v14\nv_lshlrev_b32 v15, 4, v1")
    a("v_bfe_u32 v12, v1, 3, 2\nv_lshlrev_b32 v12, 10, v12\nv_lshrrev_b32 v13, 5, v1\nv_lshl_add_u32 v12, v13, 9, v12\nv_and_b32 v13, 7, v1\nv_lshl_add_u32 v12, v13, 4, v12")

def col_store2(a, st_flags):
    AR, AI, U = CF_AR, CF_AI, CF_Z
    a(f"s_add_u32 s60, s60, {WS_E}")
    for q in range(4):
        for ri, acc in enumerate((AR, AI)):
            for p in range(2):
                a(f"v_cvt_pk_bf16_f32 v{U+4*q+2*ri+p}, v{acc+4*q+2*p}, v{acc+4*q+2*p+1}")
        a(f"buffer_store_dwordx4 v[{U+4*q}:{U+4*q+3}], v12, {sr(S_WS)}, s60 offen offset:{128*q} {st_flags}")

CA, CB, CD = 128, 160, 184
T1C, T1S, T2C, T2S = 16, 32, 48, 64
CZ, CW, CAR, CAI, CT = 80, 96, 208, 224, 112

def _lane_ids(a, s_pi, L, H, C, t):
    a(f"v_bfe_u32 v{t}, v1, 2, 1\nv_lshlrev_b32 v{L}, 4, v{t}\nv_bfe_u32 v{t}, v1, 3, 2\nv_lshl_add_u32 v{L}, v{t}, 2, v{L}")
    a(f"v_and_b32 v{t}, 3, v1\nv_add_u32 v{L}, v{L}, v{t}")
    a(f"v_lshl_add_u32 v{C}, v{L}, 1, s{s_pi}\nv_cvt_f32_u32 v{C}, v{C}\nv_cvt_f32_u32 v{L}, v{L}")
    a(f"v_lshrrev_b32 v{H}, 5, v1\nv_cvt_f32_u32 v{H}, v{H}")

def col_mats(a, s_pi):
    L, H, C, ARG, STEP, X, tc, ts = 240, 241, 242, 243, 244, 245, 246, 248
    _lane_ids(a, s_pi, L, H, C, X)
    a(f"v_mul_f32 v{STEP}, {f32(1/64)}, v{C}\nv_mul_f32 v{ARG}, 4.0, v{H}\nv_mul_f32 v{ARG}, v{ARG}, v{STEP}\nv_mul_f32 v{X}, {f32(5.0)}, v{STEP}")
    pend = []
    for t in range(4):
        for i in range(4):
            if i: a(f"v_add_f32 v{ARG}, v{ARG}, v{STEP}")
            elif t: a(f"v_add_f32 v{ARG}, v{ARG}, v{X}")
            a(f"v_cos_f32 v{tc+(i&1)}, v{ARG}\nv_sin_f32 v{ts+(i&1)}, v{ARG}")
            for o in pend: a(o)
            pend = [f"v_cvt_pk_bf16_f32 v{CA+8*t+i}, v{tc+(i&1)}, v{ts+(i&1)}", f"v_cvt_pk_bf16_f32 v{CA+8*t+4+i}, -v{ts+(i&1)}, v{tc+(i&1)}"]
    for o in pend: a(o)
    a(f"v_mul_f32 v{H}, {f32(16.0)}, v{H}")
    def mat(base):
        for R in range(16):
            if R: a(f"v_add_f32 v{ARG}, v{ARG}, v{STEP}")
            a(f"v_sin_f32 v{ts+(R&1)}, v{ARG}\nv_cos_f32 v{tc+(R&1)}, v{ARG}")
            if R & 1:
                a(f"v_cvt_pk_bf16_f32 v{base+8+(R>>1)}, v{ts}, v{ts+1}")
                a(f"v_cvt_pk_bf16_f32 v{base+(R>>1)}, v{tc}, v{tc+1}")
                a(f"v_xor_b32 v{base+16+(R>>1)}, 0x80008000, v{base+8+(R>>1)}")
    a(f"v_mul_f32 v{STEP}, {f32(1/32)}, v{L}\nv_mul_f32 v{ARG}, v{H}, v{STEP}")
    mat(CB)
    a(f"v_cvt_f32_u32 v{X}, s{s_pi}\nv_fma_f32 v{H}, 0.5, v{X}, v{H}")
    a(f"v_and_b32 v{X}, 31, v1\nv_cvt_f32_u32 v{X}, v{X}\nv_mul_f32 v{STEP}, {f32(1/32)}, v{X}\nv_mul_f32 v{ARG}, v{H}, v{STEP}")
    mat(CD)

def col_twiddles(a, s_pi, s_k1, which):
    L, H, C, ARG, STEP, X = 240, 241, 242, 243, 244, 245
    def tw(cb, sb):
        for R in range(16):
            if R: a(f"v_add_f32 v{ARG}, v{ARG}, v{STEP}")
            a(f"v_cos_f32 v{cb+R}, v{ARG}\nv_sin_f32 v{sb+R}, v{ARG}")
    if which == 2:
        a(f"v_mul_f32 v{STEP}, {f32(1/1024)}, v{L}\nv_mul_f32 v{ARG}, v{H}, v{STEP}")
        tw(T2C, T2S)
        a(f"s_cmp_eq_u32 s{s_k1}, 255\ns_mov_b32 s62, {f32(2/(2048*512))}\ns_cmov_b32 s62, {f32(1/(2048*512))}")
        for R in range(32): a(f"v_mul_f32 v{T2C+R}, s62, v{T2C+R}")
    else:
        a(f"v_floor_f32 v{X}, v{H}\nv_mul_f32 v{STEP}, {f32(1/2048)}, v{C}\nv_mul_f32 v{ARG}, v{X}, v{STEP}")
        tw(T1C, T1S)

def col_w_loads(a, ld_flags):
    for t in range(4):
        a(f"buffer_load_dwordx4 v[{CW+4*t}:{CW+4*t+3}], v15, {sr(S_WS)}, s61 offen offset:{1024*t} {ld_flags}")

def col_offsets(a, s_pi, s_k1):
    a(f"s_lshl_b32 s59, s{s_k1}, 5\ns_lshl_b32 s61, s{s_pi}, 4\ns_add_u32 s59, s59, s61\ns_add_u32 s59, s59, {WS_Z}")
    a(f"s_lshl_b32 s60, s{s_k1}, 13\ns_lshl_b32 s61, s{s_pi}, 12\ns_add_u32 s60, s60, s61\ns_add_u32 s61, s60, {WS_WT}")

def col_z_loads(a, ld_flags):
    for t in range(4):
        a(f"buffer_load_dwordx4 v[{CZ+4*t}:{CZ+4*t+3}], v14, {sr(S_WS)}, s59 offen {ld_flags}")
        if t < 3: a(f"s_add_u32 s59, s59, {64*8192}")

def col_compute3(a, st_flags, late_w, zw=3):
    AR, AI, U, T = CAR, CAI, CZ, CT
    def mf(d, x, y, first):
        a(f"v_mfma_f32_32x32x16_bf16 v[{d}:{d+15}], v[{x}:{x+3}], v[{y}:{y+3}], " + ("0" if first else f"v[{d}:{d+15}]"))
    def cmul(cb, sb, conj):
        n1, n2 = ("-", "") if conj else ("", "-")
        for p in range(8):
            c, s = cb + 2*p, sb + 2*p
            tr, ti = T + 4*(p & 1), T + 4*(p & 1) + 2
            re, im = AR + 2*p, AI + 2*p
            for e in range(2): a(f"v_mul_f32 v{tr+e}, v{re+e}, v{c+e}\nv_mul_f32 v{ti+e}, v{im+e}, v{c+e}")
            for e in range(2): a(f"v_fma_f32 v{tr+e}, {n1}v{im+e}, v{s+e}, v{tr+e}\nv_fma_f32 v{ti+e}, {n2}v{re+e}, v{s+e}, v{ti+e}")
            a(f"v_cvt_pk_bf16_f32 v{U+p}, v{tr}, v{tr+1}\nv_cvt_pk_bf16_f32 v{U+8+p}, v{ti}, v{ti+1}")
    for t in range(4):
        a(f"s_waitcnt vmcnt({zw - t})")
        mf(AR, CZ + 4*t, CA + 8*t, t == 0); mf(AI, CZ + 4*t, CA + 8*t + 4, t == 0)
    cmul(T1C, T1S, False)
    C, S, N = CB, CB + 8, CB + 16
    for t in range(2):
        mf(AR, C + 4*t, U + 4*t, t == 0); mf(AI, N + 4*t, U + 4*t, t == 0)
        mf(AR, S + 4*t, U + 8 + 4*t, False); mf(AI, C + 4*t, U + 8 + 4*t, False)
    late_w()
    a("s_waitcnt vmcnt(0)")
    for r in range(16): a(f"v_lshlrev_b32 v{T1C+r}, 16, v{CW+r}\nv_and_b32 v{T1S+r}, 0xffff0000, v{CW+r}")
    cmul(T1C, T1S, True)
    for (C, S, N, last) in ((CB, CB + 8, CB + 16, False), (CD, CD + 8, CD + 16, True)):
        for t in range(2):
            mf(AR, U + 4*t, C + 4*t, t == 0); mf(AI, U + 4*t, S + 4*t, t == 0)
            mf(AR, U + 8 + 4*t, N + 4*t, False); mf(AI, U + 8 + 4*t, C + 4*t, False)
        if not last: cmul(T2C, T2S, True)
    a(f"s_add_u32 s60, s60, {WS_E}")
    for q in range(4):
        for ri, acc in enumerate((AR, AI)):
            for p in range(2): a(f"v_cvt_pk_bf16_f32 v{U+4*q+2*ri+p}, v{acc+4*q+2*p}, v{acc+4*q+2*p+1}")
        a(f"buffer_store_dwordx4 v[{U+4*q}:{U+4*q+3}], v12, {sr(S_WS)}, s60 offen offset:{128*q} {st_flags}")

def z_store_all(a, lds_rows, st_flags):
    a(f"v_and_b32 v4, 1, v1\nv_lshrrev_b32 v5, 1, v1\nv_lshlrev_b32 v4, 10, v4\nv_lshl_add_u32 v4, v5, 2, v4\nv_add_u32 v4, {lds_rows}, v4\nv_add_u32 v5, 128, v4")
    a(f"s_lshl_b32 s52, s62, 13\ns_add_u32 s52, s52, {WS_Z}\ns_add_u32 s53, s52, 4096")
    lds_wait_ge(a, 12, FL_BAR_A - MISC, 4, 18, 61, 63)
    Stamps.at(a, 6)
    def rd(e):
        a(f"ds_read2st64_b32 v[{32+4*e}:{33+4*e}], v{4 + (e & 1)} offset0:{e >> 1} offset1:{(e >> 1) + 8}")
        a(f"ds_read2st64_b32 v[{34+4*e}:{35+4*e}], v{4 + (e & 1)} offset0:{(e >> 1) + 16} offset1:{(e >> 1) + 24}")
    for e in range(7): rd(e)
    a("s_waitcnt lgkmcnt(12)"); rd(7)
    for e in range(8):
        a(f"s_waitcnt lgkmcnt({14 - 2*e})")
        a(f"buffer_store_dwordx4 v[{32+4*e}:{35+4*e}], v2, {sr(S_WS)}, s{52 + e // 4} offen offset:{1024*(e % 4)} {st_flags}")
    a(f"s_mov_b64 exec, 1\nds_add_u32 v12, v13 offset:{FL_A_DONE - MISC}\ns_mov_b64 exec, -1")
```

```python
import sys, math
from spec2 import *

OPT = set(sys.argv[2:])
Stamps.on = "stamp" in OPT or "se" in OPT
if "se" in OPT or "qs" in OPT: Stamps.skip = set(range(1, 15))
if "cyc" in OPT: Stamps.op = "s_memtime"
Trace.on = "trace" in OPT
TM, TL, TH, T3 = Trace("main", 10), Trace("loader", 31), Trace("h12", 31), Trace("h3", 31)
LSLEEP[0] = 1 if "lsleep" in OPT else 0
NAME = "parallel_sum__spectral_gfnet__glu_gated_swiglu__prompt_kernel"
HEADER = open("parallel_sum__spectral_gfnet__glu_gated_swiglu__prompt.s.ref").read().split("; Override")[0]
WT = "sc0 sc1"
RD = "" if "rdplain" in OPT else "sc1"
GF_EPOCH, MBOX = WS_FLAG, WS_FLAG + 0x10000
S_MB, S_DBG = 64, 66
FL_HS, FL_HSF, FL_FULL3 = MISC + 112, MISC + 128, MISC + 144
H3C = () if "one" in OPT else (15, 17, 19, 21)
FL_Z_CNT, FL_E_CNT, FL_HLVL, FL_FULL2, FL_GO, FL_FULLE = MISC + 40, MISC + 44, MISC + 48, MISC + 64, MISC + 80, MISC + 96
SCRATCH = MISC + 1024
GSPIN = 1 << 14
CPRIO = 0 if "cp0" in OPT else 2
PSLEEP = 24 if "slowpoll" in OPT else 2
HWT = "" if "hplain" in OPT else WT
S_I, S_J, S_P, S_NP, S_ROT, S_T, S_CJ, S_RES, S_TAG, S_HW, S_COL = 84, 85, 86, 87, 88, 89, 90, 91, 5, 4, 83

class DsQ:
    def __init__(self, a): self.a = a; self.q = []
    def op(self, text, tag=None):
        self.a(text)
        if "read" in text.split()[0]: self.q.append(tag)
    def wait(self, tag):
        idx = [i for i, t in enumerate(self.q) if t == tag]
        if not idx: return
        n = len(self.q) - 1 - idx[-1]
        assert n <= 15, n
        self.a(f"s_waitcnt lgkmcnt({n})")
        self.q = self.q[idx[-1] + 1:]

PJ = [(43 * j) >> 4 for j in range(17)]
ORDER = [PJ[j] for j in range(16)] + [PJ[j+1] - 1 for j in range(16)] + [PJ[j] + 1 for j in range(16) if PJ[j+1] - PJ[j] == 3]

NL, NS = (int([o[2:] for o in OPT if o.startswith("nl")][0]) if any(o.startswith("nl") for o in OPT) else 10), 7
HST = 18 * SLOT
def plan_slots():
    free = [(16, 0), (17, 4)] + [(4 * w + c, c + 1) for c in range(4) for w in range(4)]
    cells = {}
    def alloc(key, release):
        free.sort(key=lambda t: t[1])
        s, req = free.pop(0)
        cells[key] = (s, req)
        free.append((s, release))
    for q in range(4):
        alloc(("A", "X", q), 5 + q); alloc(("C", "X", q), 13 + q); alloc(("A", "Y", q), 5 + q)
    for q in range(4):
        alloc(("B", "Y", q), 9 + q); alloc(("C", "Y", q), 13 + q); alloc(("B", "X", q), 9 + q)
    ne = 18 - NL
    rest_e, rest_w = list(range(ne, 8)), list(range(NL, 22))
    order = [("w", c) for c in range(NL)] + [("e", c) for c in range(ne)]
    while rest_e or rest_w:
        if rest_e: order.append(("e", rest_e.pop(0)))
        if rest_e and "ee" in OPT: order.append(("e", rest_e.pop(0)))
        if rest_w: order.append(("w", rest_w.pop(0)))
    for k in order: alloc(k, 17 + k[1] if k[0] == "w" else 99)
    global FINAL
    FINAL = sorted((rel, s) for (s, rel) in free)[:6]
    return cells
CELLS = plan_slots()
LAST_REQ = max(r for (s, r) in CELLS.values())
TA = [s for _, s in FINAL[:2]]; TB = [s for _, s in FINAL[2:]]; TA_REQ, TB_REQ = FINAL[1][0], FINAL[5][0]; assert TB_REQ <= 37, FINAL

def ids_early(a):
    a(f"s_bfe_u32 s40, s2, 0x20003\ns_and_b32 s41, s2, 3\ns_lshl2_add_u32 s{S_I}, s41, s40")
    a(f"s_bfe_u32 s40, s2, 0x10002\ns_lshr_b32 s41, s2, 5\ns_lshl3_add_u32 s{S_J}, s40, s41")
    if "rx" in OPT: a(f"s_add_u32 s{S_ROT}, s2, s{S_J}\ns_and_b32 s{S_ROT}, s{S_ROT}, 3")
    else: a(f"s_add_u32 s{S_ROT}, s{S_I}, s{S_J}\ns_and_b32 s{S_ROT}, s{S_ROT}, 3")

def ids_late(a):
    a(f"s_mul_i32 s{S_P}, s{S_J}, 43\ns_add_u32 s{S_NP}, s{S_P}, 43\ns_lshr_b32 s{S_P}, s{S_P}, 4\ns_lshr_b32 s{S_NP}, s{S_NP}, 4\ns_sub_u32 s{S_NP}, s{S_NP}, s{S_P}")
    a(f"s_and_b32 s40, s2, 3\ns_bfe_u32 s41, s2, 0x10002\ns_lshl1_add_u32 s40, s40, s41\ns_bfe_u32 s41, s2, 0x20003\ns_lshl2_add_u32 s{S_T}, s40, s41\ns_lshr_b32 s{S_CJ}, s2, 5")
    a(f"s_lshl_b32 s{S_COL}, s{S_CJ}, 5\ns_add_u32 s{S_COL}, s{S_COL}, s{S_T}")
    for d, src, n in ((S_W1, 72, 512*2752), (S_W3, 74, 512*2752), (S_W2, 76, 1376*1024), (S_OUT, 78, 2048*1024)):
        a(f"s_mov_b64 s[{d}:{d+1}], s[{src}:{src+1}]\ns_mov_b32 s{d+2}, {n}\ns_mov_b32 s{d+3}, 0x20000")
    a(f"s_mov_b32 s{S_WS+2}, 0x10000000\ns_mov_b32 s{S_WS+3}, 0x20000")
    a(f"s_add_u32 s80, s{S_WS}, {GF_EPOCH}\ns_addc_u32 s81, s{S_WS+1}, 0")
    a(f"s_lshl_b32 s40, s2, 8\ns_add_u32 s40, s40, {MBOX}\ns_add_u32 s{S_MB}, s{S_WS}, s40\ns_addc_u32 s{S_MB+1}, s{S_WS+1}, 0")
    Stamps.clear(a)

def warm(a, segs):
    if "hop" not in OPT: return
    a("s_mov_b64 exec, 0")
    for sg in segs: a(f"s_call_b64 s[0:1], hs_{sg}_0")
    a("s_mov_b64 exec, -1")

def make_tag(a):
    a(f"s_mul_i32 s{S_TAG}, s{S_TAG}, 0x9E3779B1\ns_add_u32 s{S_TAG}, s{S_TAG}, 0x7F4A7C15")

def flag_store(a, soff, level, vt):
    a(f"s_add_u32 s40, s{S_TAG}, {level}\nv_mov_b32 v{vt}, s40")
    a("s_mov_b64 exec, 1")
    a(f"buffer_store_dword v{vt}, off, {sr(S_WS)}, s{soff} {WT}")
    a("s_mov_b64 exec, -1")

def h_post(a):
    a(f"s_cmp_eq_u32 s{S_NP}, 2\ns_mov_b32 s40, 0x10000\ns_cmov_b32 s40, 0x10100\nv_mov_b32 v0, s40\nv_lshlrev_b32 v2, 13, v1")
    a("s_mov_b64 exec, 0xff")
    a(f"buffer_atomic_add v0, v2, {sr(S_WS)}, s59 offen sc1")
    a("s_mov_b64 exec, -1")

def wg_signal(a, cnt_word, n, event, vaddr, vone, vt):
    zf = a.label("zf")
    a("s_mov_b64 exec, 1")
    a(f"ds_add_rtn_u32 v{vt}, v{vaddr}, v{vone} offset:{cnt_word - MISC}\ns_mov_b64 exec, -1\ns_waitcnt lgkmcnt(0)\nv_readfirstlane_b32 s40, v{vt}")
    a(f"s_cmp_lg_u32 s40, {n - 1}\ns_cbranch_scc1 {zf}")
    a(f"s_and_b32 s43, s2, 1\ns_lshl_b32 s41, s43, 7\ns_add_u32 s41, s41, {4*event}\ns_mov_b32 s40, 1")
    a(f"s_atomic_add s40, s[{S_DBG}:{S_DBG+1}], s41 glc\ns_waitcnt lgkmcnt(0)")
    a(f"s_and_b32 s40, s40, 127\ns_cmp_lg_u32 s40, 127\ns_cbranch_scc1 {zf}")
    a(f"s_lshl_b32 s43, s43, 2\ns_add_u32 s43, s43, {MBOX + 8*event}\ns_add_u32 s40, s{S_TAG}, 1\nv_mov_b32 v{vt}, s40\nv_lshlrev_b32 v{vt+1}, 8, v1")
    for i in range(4):
        a(f"buffer_store_dword v{vt}, v{vt+1}, {sr(S_WS)}, s43 offen {WT}\ns_add_u32 s43, s43, 0x4000")
    a(f"{zf}:")

def wait_go(a, event):
    top, done = a.label("gp"), a.label("gpd")
    a(f"s_mov_b32 s41, {GSPIN}\ns_add_u32 s43, s{S_TAG}, 1")
    a(f"{top}:")
    a(f"s_load_dwordx2 s[44:45], s[{S_MB}:{S_MB+1}], {8*event} glc\ns_waitcnt lgkmcnt(0)")
    a(f"s_xor_b32 s44, s44, s43\ns_xor_b32 s45, s45, s43\ns_or_b32 s44, s44, s45\ns_cbranch_scc0 {done}")
    a(f"s_sleep {PSLEEP}\ns_sub_u32 s41, s41, 1\ns_cbranch_scc0 {top}")
    a(f"{done}:")

def level_load(a):
    a(f"s_load_dword s53, s[{S_MB}:{S_MB+1}], s54 glc")

def level_test(a, need):
    a(f"s_bitcmp1_b32 s53, {8 * need - 4}" if "nohw" not in OPT else "s_cmp_eq_u32 s2, s2")

def pair_table(a, vt, t1, t2, sx=40):
    a(f"s_and_b32 s{sx}, s{S_T}, 3\ns_lshl1_add_u32 s{sx}, s{sx}, s{S_CJ}\ns_lshl_b32 s{sx}, s{sx}, 1\ns_and_b32 s{sx}, s{sx}, 15\ns_mul_i32 s{sx+1}, s{sx}, 11\ns_lshr_b32 s{sx+1}, s{sx+1}, 4\ns_sub_u32 s{sx+1}, s{sx+1}, 32")
    a(f"v_add_u32 v{t1}, s{sx+1}, v1\nv_subrev_u32 v{t2}, 11, v{t1}\nv_min_u32 v{t1}, v{t1}, v{t2}")
    a(f"v_lshrrev_b32 v{t2}, 1, v{t1}\nv_add3_u32 v{t1}, v{t1}, v{t2}, 1\nv_min_u32 v{t1}, 15, v{t1}")
    a(f"v_add_u32 v{t2}, s{sx}, v1\nv_and_b32 v{t2}, 15, v{t2}\nv_cmp_gt_u32 vcc, 32, v1\nv_cndmask_b32 v{t1}, v{t1}, v{t2}, vcc\nv_mul_u32_u24 v{t1}, 43, v{t1}")
    a(f"v_cndmask_b32 v{t2}, 16, 27, vcc\nv_cmp_gt_u32 vcc, 16, v1\nv_cndmask_b32 v{t2}, v{t2}, 0, vcc\nv_add_u32 v{t1}, v{t1}, v{t2}\nv_lshrrev_b32 v{vt}, 4, v{t1}")

def h_wait(a, need, before=None):
    top, done = a.label("hp"), a.label("hpd")
    level_test(a, need)
    a(f"s_cbranch_scc1 {done}")
    if before: before()
    a(f"s_mov_b32 s41, {GSPIN}")
    a(f"{top}:")
    level_load(a); a("s_waitcnt lgkmcnt(0)"); level_test(a, need)
    a(f"s_cbranch_scc1 {done}\ns_sub_u32 s41, s41, 1\ns_cbranch_scc0 {top}")
    a(f"{done}:")

def mbox_off(a, dst, grp):
    a(f"s_bfe_u32 s40, s{grp}, 0x20003\ns_and_b32 s41, s{grp}, 4\ns_add_u32 s40, s40, s41\ns_and_b32 s41, s{grp}, 3\ns_lshl3_add_u32 s{dst}, s41, s40\ns_lshl_b32 s{dst}, s{dst}, 8")
    a(f"s_lshr_b32 s40, s{grp}, 5\ns_lshl2_add_u32 s{dst}, s40, s{dst}\ns_add_u32 s{dst}, s{dst}, {MBOX + 128}")

def check(a, stubs, scache, need, areg, off, vt, minof=1, before_spin=None):
    back, sl = a.label("fb"), a.label("fs")
    a(f"s_cmp_ge_u32 s{scache}, {need}")
    a(f"s_cbranch_scc0 {sl}")
    a(f"{back}:")
    stubs.append((sl, back, scache, need, areg, off, vt, minof, before_spin))

def emit_stubs(a, stubs):
    for (sl, back, sc, need, areg, off, vt, minof, before_spin) in stubs:
        a(f"{sl}:")
        if before_spin:
            a(f"ds_read_b32 v{vt}, v{areg} offset:{off}\ns_waitcnt lgkmcnt(0)\nv_readfirstlane_b32 s{sc}, v{vt}")
            a(f"s_cmp_ge_u32 s{sc}, {need}\ns_cbranch_scc1 {back}")
            before_spin()
        lds_wait_ge(a, areg, off, need, vt, sc, 41, minof=minof, sleep=1)
        a(f"s_branch {back}")

X0, ACC, AF, PD = 128, (64, 96), 32, 3

def x_setup(a):
    a(f"s_and_b32 s40, s3, 1\ns_lshl1_add_u32 s50, s{S_I}, s40\ns_lshr_b32 s41, s3, 1\ns_lshl_b32 s41, s41, 5\ns_add_u32 s50, s50, s41")
    a("s_lshl_b32 s51, s3, 15")
    a("s_lshr_b32 s41, s50, 3\ns_lshl_b32 s41, s41, 18\ns_and_b32 s42, s50, 7\ns_lshl_b32 s42, s42, 12\ns_add_u32 s56, s41, s42")
    a(f"s_lshl_b32 s40, s{S_ROT}, 8\ns_add_u32 s52, s56, s40")
    if "nors" not in OPT: a(f"s_and_b32 s63, s{S_J}, 4\ns_lshr_b32 s40, s{S_J}, 2\ns_and_b32 s40, s40, 2\ns_or_b32 s63, s63, s40")
    else: a(f"s_lshr_b32 s63, s{S_J}, 1\ns_and_b32 s63, s63, 6")
    a("v_lshrrev_b32 v20, 4, v1\nv_and_b32 v21, 15, v1\nv_xor_b32 v21, v21, v20\nv_lshlrev_b32 v21, 4, v21\nv_lshl_add_u32 v20, v20, 10, v21")
    a("s_and_b32 s40, s63, 2\ns_lshl_b32 s40, s40, 6\nv_xor_b32 v16, s40, v20\nv_xor_b32 v17, 64, v16\nv_xor_b32 v18, 0x80, v16\nv_xor_b32 v19, 0x80, v17")
    a("s_lshl_b32 s63, s63, 10")

def touch_setup(a):
    a(f"s_mul_i32 s{S_P}, s{S_J}, 43\ns_lshr_b32 s{S_P}, s{S_P}, 4\ns_lshr_b32 s40, s3, 1\ns_lshl1_add_u32 s40, s{S_ROT}, s40\ns_mul_i32 s48, s40, {64*2752}")
    a(f"s_lshl_b32 s40, s{S_P}, 6\ns_add_u32 s48, s48, s40\nv_mul_u32_u24 v44, 2752, v1")
    a(f"s_mov_b32 s14, {512*2752}\ns_mov_b32 s15, 0x20000")

def touch_issue(a, off):
    a(f"buffer_load_dword v127, v44, s[12:15], s48 offen offset:{off}")

def x_setup_late(a):
    for c in range(1, 4):
        a(f"s_add_u32 s40, s{S_ROT}, {c}\ns_and_b32 s40, s40, 3\ns_lshl_b32 s40, s40, 8\ns_add_u32 s{52+c}, s56, s40")

def x_issue(a, c, between=None):
    a(f"s_add_u32 s41, s51, {c*SLOT}" if c else "s_mov_b32 s41, s51")
    for e in range(8):
        a(f"s_xor_b32 s42, s63, {e << 10}" if e else "s_mov_b32 s42, s63")
        a("s_add_u32 m0, s41, s42\ns_lshl_b32 s42, s42, 5")
        a(f"s_add_u32 s40, s42, s{52+c}")
        a(f"buffer_load_dwordx4 v{16+(e&3)}, {sr(S_X)}, s40 offen lds")
        if between: between(e)

def epilogue_ops(acc, level):
    ev = []
    for n in range(16):
        tau, r = n // 8, n % 8
        g, u = acc + 16*tau + r, acc + 16*tau + 8 + r
        ev += [(n, 0, f"v_mul_f32 v{u}, v{g}, v{u}"), (n, 1, f"v_mul_f32 v{g}, v10, v{g}"), (n + 1, 2, f"v_exp_f32 v{g}, v{g}"),
               (n + 2, 3, f"v_fma_f32 v{g}, v{g}, v11, v11"), (n + 3, 5, f"v_rcp_f32 v{g}, v{g}"), (n + 4, 4, f"v_mul_f32 v{u}, v{u}, v{g}")]
        if r & 1: ev.append((n + 5, 6, f"v_cvt_pk_bf16_f32 v{24 + 4*tau + r // 2}, v{u-1}, v{u}"))
    ops = [o for _, _, o in sorted(ev, key=lambda t: (t[0], t[1]))]
    ops.insert(len(ops) - 6, ("ds", "ds_write_b128 v22, v[24:27]"))
    ops.insert(len(ops) - 2, f"v_mov_b32 v23, {level}")
    return ops + [("ds", "ds_write_b128 v22, v[28:31] offset:1024"), ("ds", f"ds_write_b32 v9, v23 offset:{FL_HS - MISC}")]

def HB(p): return X0 + 4*p if p < 32 else 84 + 4*(p - 32)
def h_pre(a, p): a(f"v_readlane_b32 s{68 + p % 4}, v8, {p}")
def h_load(a, p): a(f"buffer_load_dwordx4 v[{HB(p)}:{HB(p)+3}], v3, {sr(S_WS)}, s{68 + p % 4} offen {RD}")
def h_burst(a, lo, hi):
    for p in range(lo, min(lo + 3, hi)): h_pre(a, p)
    for p in range(lo, hi):
        if p + 3 < hi: h_pre(a, p + 3)
        h_load(a, p)

def g1_main(a):
    dq = DsQ(a); slow = []
    a(f"s_lshl_b32 s40, s3, 2\ns_add_u32 s40, s40, {MISC}\nv_mov_b32 v9, s40")
    a("v_lshlrev_b32 v3, 4, v1")
    a("v_and_b32 v20, 31, v1\nv_lshrrev_b32 v21, 5, v1\nv_and_b32 v22, 15, v1\nv_xor_b32 v21, v21, v22\nv_lshlrev_b32 v21, 4, v21")
    a("v_lshl_add_u32 v24, v20, 8, v21\nv_add_u32 v24, s51, v24")
    for j in range(1, 8): a(f"v_xor_b32 v{24+j}, {32*j}, v24")
    a("v_bfe_u32 v20, v1, 4, 1\nv_lshrrev_b32 v21, 5, v1\nv_bfe_u32 v22, v1, 2, 2")
    a(f"v_add_u32 v8, s{S_P}, v22\nv_and_b32 v8, 1, v8")
    a("v_lshrrev_b32 v22, 1, v22\nv_lshl_add_u32 v22, v21, 2, v22\nv_lshl_add_u32 v22, v8, 1, v22\nv_lshlrev_b32 v22, 6, v22")
    a("v_lshl_add_u32 v22, v20, 12, v22\nv_lshl_add_u32 v22, v20, 5, v22")
    a("v_and_b32 v21, 1, v1\nv_lshl_add_u32 v22, v21, 4, v22\nv_bfe_u32 v21, v1, 1, 1\nv_lshl_add_u32 v4, v21, 3, v22")
    a("v_xor_b32 v5, 128, v4\nv_xor_b32 v6, 32, v4\nv_xor_b32 v7, 160, v4")
    a("s_mov_b32 s56, 0x3f803f80\ns_mov_b32 s57, 0x00003f80\ns_mov_b32 s58, 0x3f800000")
    def reads(c):
        for j in range(8):
            r = X0 + 32*c + 4*j
            dq.op(f"ds_read_b128 v[{r}:{r+3}], v{24+j} offset:{c*SLOT}", ("x", c, j))
        a(f"v_mov_b32 v14, {c + 1}")
        dq.op(f"ds_write_b32 v9, v14 offset:{FL_FREE - MISC}")
    def sums(c, only=None):
        for j in (range(8) if only is None else [only]):
            if j % 2 == 0: dq.wait(("x", c, j + 1))
            for r in range(X0 + 32*c + 4*j, X0 + 32*c + 4*j + 4):
                first = (r == X0)
                a(f"v_dot2_f32_bf16 v10, v{r}, s56, {'0' if first else 'v10'}")
                a(f"v_dot2_f32_bf16 v11, v{r}, v{r}, {'0' if first else 'v11'}")
    wd = a.label("wd")
    if "hopm" in OPT:
        for w, segs in enumerate((["x0"], ["x1"], ["x2"], ["x3"])):
            nx = a.label("wn")
            if w < 3: a(f"s_cmp_lg_u32 s3, {w}\ns_cbranch_scc1 {nx}")
            warm(a, segs)
            if w < 3: a(f"s_branch {wd}\n{nx}:")
        a(f"{wd}:")
    x_issue(a, 1)
    Stamps.at(a, 6)
    if "hopm" in OPT: a(f";@seg x0 {HV}")
    a("s_waitcnt vmcnt(8)"); Stamps.at(a, 1); reads(0)
    x_issue(a, 2, lambda e: sums(0, e))
    a("s_waitcnt vmcnt(8)"); reads(1)
    x_issue(a, 3, lambda e: sums(1, e))
    T3L = "t3" in OPT
    if T3L: touch_issue(a, 128)
    if "hopm" in OPT: a(f";@seg x1 {HV}")
    a(f"s_waitcnt vmcnt({8 + T3L})"); reads(2); sums(2)
    a(f"s_waitcnt vmcnt({0 + T3L})"); Stamps.at(a, 2); reads(3)
    sums(3)
    a("v_mov_b32 v12, v10\nv_mov_b32 v13, v11")
    a("v_permlane32_swap_b32 v12, v10\nv_permlane32_swap_b32 v13, v11")
    a("v_add_f32 v10, v10, v12\nv_add_f32 v11, v11, v13")
    sub = Asm(); ln_scalars(sub, 10, 11, None)
    a(sub.lines[0])
    a("v_cvt_pk_bf16_f32 v31, -v10, -v10\nv_and_b32 v31, 0xffff0000, v31")
    rest = sub.lines[1:] + [f"v_mul_f32 v10, {f32(-math.log2(math.e))}, v11", "v_mul_f32 v11, v11, v11", "v_rcp_f32 v11, v11"]
    for j in range(32):
        for r in range(4):
            x = X0 + 4*j + r; t = 16 + 2*r
            a(f"v_dot2_f32_bf16 v{t}, v{x}, s57, v31\nv_dot2_f32_bf16 v{t+1}, v{x}, s58, v31")
        if j in (2, 17) and "hopm" in OPT: a(f";@seg x{2 if j == 2 else 3} {HV}")
        if j < len(rest): a(rest[j])
        for r in range(4): a(f"v_cvt_pk_bf16_f32 v{X0+4*j+r}, v{16+2*r}, v{17+2*r}")
        if j == 24: dq.op(f"ds_read_b32 v2, v9 offset:{FL_FULL - MISC}", "poll")
    PASS = "ABC"
    def base_calc(r):
        ps, q = PASS[r // 32], (r % 32) // 8
        bx, by = CELLS[(ps, "X", q)][0] * SLOT, CELLS[(ps, "Y", q)][0] * SLOT
        a(f"v_mul_i32_i24 v0, {by - bx}, v8\nv_add_u32 v0, {bx}, v0")
        return 8
    def full_check(r):
        ps, q = PASS[r // 32], (r % 32) // 8
        need_full = {"A": q + 1, "B": q + 5, "C": 0}[ps]
        if not need_full: return 0
        back, sl = a.label("g1b"), a.label("g1s")
        dq.wait("poll")
        a(f"v_readfirstlane_b32 s40, v2\ns_cmp_ge_u32 s40, {need_full}\ns_cbranch_scc0 {sl}")
        a(f"{back}:")
        slow.append((sl, back, need_full, FL_FULL))
        return 16
    def AB(r): return 12 + 4 * ((r // 8) & 1)
    def addr(r, tau):
        for i in (2*tau, 2*tau + 1): a(f"v_add_u32 v{AB(r)+i}, v0, v{4+i}")
        return 8
    def wreads(r, tau):
        j = r % 8; b = AF + 8 * (r % 4); cost = 8
        for rd in range(2):
            dq.op(f"ds_read_b64_tr_b16 v[{b+4*tau+2*rd}:{b+4*tau+2*rd+1}], v{AB(r)+2*tau+rd} offset:{512*j}", ("w", r))
        nxt = r - j + 8
        if nxt < 96:
            if j == 2 and tau == 0: cost += base_calc(nxt)
            if j == 4: cost += addr(nxt, tau)
            if j == 7 and tau == 0: cost += full_check(nxt)
            if j == 5 and tau == 0 and nxt < 64:
                dq.op(f"ds_read_b32 v2, v9 offset:{FL_FULL - MISC}", "poll"); cost += 4
        if j == 6 and tau == 1: a(f"v_mov_b32 v0, {5 + r // 8}"); cost += 4
        if j == 7 and tau == 1:
            dq.op(f"ds_write_b32 v9, v0 offset:{FL_FREE - MISC}"); cost += 4
        return cost
    a(f";@seg m1 {HM}")
    base_calc(0); addr(0, 0); addr(0, 1); full_check(0)
    for g in range(PD): wreads(g, 0); wreads(g, 1)
    Stamps.at(a, 3)
    fin2, done = a.label("g1fin2"), a.label("g1done")
    sub = Asm()
    sub(f"s_lshl_b32 s42, s3, 11\ns_add_u32 s42, s42, {HST}\nv_add_u32 v22, s42, v3\ns_movk_i32 s54, 128")
    sub(f"s_and_b32 s42, s3, 1\ns_lshl_b32 s42, s42, 5\ns_add_u32 s42, s42, s{S_T}\ns_mul_i32 s50, s42, 86")
    sub(f"s_lshr_b32 s51, s3, 1\ns_add_u32 s50, s50, s51\ns_lshl_b32 s50, s50, 10\ns_add_u32 s50, s50, {WS_H}")
    pair_table(sub, 20, 24, 25, 42)
    sub("v_lshlrev_b32 v20, 11, v20\nv_add_u32 v20, s50, v20")
    sub("v_bfe_u32 v24, v1, 2, 2\nv_lshrrev_b32 v25, 5, v1\nv_lshl_add_u32 v25, v25, 3, v24\ns_lshl_b32 s42, s51, 4\nv_add_u32 v25, s42, v25")
    sub("v_lshlrev_b32 v25, 7, v25\nv_lshrrev_b32 v24, 1, v24\nv_lshl_add_u32 v25, v24, 6, v25")
    sub("v_bfe_u32 v24, v1, 4, 1\nv_lshl_add_u32 v25, v24, 5, v25\nv_and_b32 v24, 3, v1\nv_lshl_add_u32 v21, v24, 3, v25")
    res_setup(sub, 42)
    EP = {0: [l.strip() for l in sub.lines], 1: epilogue_ops(ACC[0], 1), 2: epilogue_ops(ACC[1], 2)}
    opcost = lambda o: 8 if isinstance(o, tuple) or o.startswith(("v_exp", "v_rcp")) else 4
    def emit(o):
        if isinstance(o, tuple): dq.op(o[1])
        else: a(o)
    def step(g, extra=None):
        ps, j = g // 32, g % 32
        acc = ACC[ps & 1]; ep = EP[ps]
        b = AF + 8 * (g % 4)
        dq.wait(("w", g))
        for tau in range(2):
            d = acc + 16 * tau
            a(f"v_mfma_f32_32x32x16_bf16 v[{d}:{d+15}], v[{b+4*tau}:{b+4*tau+3}], v[{X0+4*j}:{X0+4*j+3}], " + ("0" if j == 0 else f"v[{d}:{d+15}]"))
            cost = 4 * tau
            if g + PD < 96: cost += wreads(g + PD, tau)
            if ps == 2 and j in (HSJ - 3, 26) and tau == 1:
                dq.op(f"ds_read_b32 v2, v9 offset:{FL_HSF - MISC}", "poll"); cost += 4
            if ps == 2 and j == HSJ and tau == 0:
                back, sl = a.label("g1b"), a.label("g1s")
                dq.wait("poll")
                a(f"v_readfirstlane_b32 s40, v2\ns_cmp_ge_u32 s40, 1\ns_cbranch_scc0 {sl}\n{back}:")
                slow.append((sl, back, 1, FL_HSF)); cost += 16
            if ps == 2 and j == 20 and tau == 0: level_load(a); cost += 4
            while ep and j >= 1 and cost + opcost(ep[0]) <= (GAPB if ps else 20):
                assert not (ps == 2 and isinstance(ep[0], tuple) and j < HSJ)
                o = ep.pop(0); cost += opcost(o); emit(o)
                if not ep: print("fill list", ps, "ends at step", j)
            if extra: extra(tau)
    for g in range(96 - ET):
        if g == 32: a(f";@seg m2 {HM}\ns_waitcnt vmcnt(0)")
        if "qs" in OPT and g % 8 == 0: Stamps.at(a, 1 + g // 8, True)
        step(g)
        if g % 32 == 31:
            assert not EP[g // 32]
            Stamps.at(a, 4 + g // 32)
        if g == 63:
            a(f"s_cmp_eq_u32 s{S_NP}, 2\ns_cbranch_scc1 {fin2}")
    assert not EP[2]
    if "qs" in OPT: Stamps.at(a, 13, True)
    late = a.label("g1late")
    a("v_mov_b32 v8, v20\ns_waitcnt lgkmcnt(0)\nv_readfirstlane_b32 s56, v2"); dq.q = []
    def final_ep(acc, level, need, extra=None):
        checked = False
        for n, o in enumerate(epilogue_ops(acc, level)):
            if isinstance(o, tuple) and not checked:
                back, sl = a.label("g1b"), a.label("g1s")
                a(f"s_cmp_ge_u32 s56, {need}\ns_cbranch_scc0 {sl}\n{back}:"); slow.append((sl, back, need, FL_HSF)); checked = True
            a(o[1] if isinstance(o, tuple) else o)
            if extra: extra(n)
    level_test(a, 1)
    a(f"s_cbranch_scc0 {late}")
    for p in range(3): h_pre(a, p)
    nxt = [0]
    def early(tau):
        p = nxt[0]
        if p >= B0: return
        if p + 3 < B0: h_pre(a, p + 3)
        h_load(a, p); nxt[0] += 1
    for g in range(96 - ET, 96): step(g, early)
    Stamps.at(a, 8)
    a(f";@seg m3 {HV}")
    level_load(a)
    final_ep(ACC[0], 3, 2)
    for _ in range(8): early(0)
    Stamps.at(a, 9)
    a(f"s_branch {done}")
    a(f"{late}:")
    dq.q = []
    for g in range(96 - ET, 96): step(g)
    level_load(a)
    final_ep(ACC[0], 3, 2)
    a("s_branch k_g2late")
    a(f"{fin2}:")
    a(f"v_mov_b32 v0, 16\nds_write_b32 v9, v0 offset:{FL_FREE - MISC}\ns_mov_b32 s56, 0\ns_mov_b32 s53, 0\nv_mov_b32 v8, v20")
    a("s_nop 15")
    final_ep(ACC[1], 2, 1)
    a("k_g2late:")
    a("s_waitcnt lgkmcnt(0)")
    h_wait(a, 1)
    h_burst(a, 0, B0)
    a(f"s_branch {done}")
    for (sl, back, n, word) in slow:
        a(f"{sl}:")
        lds_wait_ge(a, 9, word - MISC, n, 2, 40, 41)
        a(f"s_branch {back}")
    a(f"{done}:")

ACC2, AF2 = 52, 20

def slot_sel(a, dst, idx, slots):
    a(f"s_mov_b32 s{dst}, {slots[0]*SLOT}")
    for i in range(1, len(slots)):
        a(f"s_cmp_eq_u32 s{idx}, {i}\ns_cmov_b32 s{dst}, {slots[i]*SLOT}")

def g2_main(a):
    dq = DsQ(a); stubs = []
    TM.start(a); TM(a, "T0")
    vm = [("h", p) for p in range(B0)]
    for q in range(B0, B0 + 3): h_pre(a, q)
    a(f"s_mov_b32 s55, 0\ns_mov_b32 s57, 0\nds_read_b32 v2, v9 offset:{FL_FULL2 - MISC}")
    a("v_mov_b32 v4, v21\nv_xor_b32 v5, 64, v21\nv_add_u32 v6, 0x10000, v4\nv_add_u32 v7, 0x10000, v5\nv_add_u32 v18, 0x20000, v4\nv_add_u32 v19, 0x20000, v5")
    a("s_waitcnt lgkmcnt(0)\nv_readfirstlane_b32 s52, v2")
    Stamps.at(a, 11)
    a(f";@sp {HM}")
    AR = [4, 6, 18]
    NB = 4
    def reads(p, dl):
        c = p // 2
        if p % 2 == 0 and dl == 0: check(a, stubs, 57 if c in H3C else 52, c + 1, 9, (FL_FULL3 if c in H3C else FL_FULL2) - MISC, 2)
        base = CELLS[("w", c)][0] * SLOT + (p % 2) * 4096
        w, off = base >> 16, base & 0xffff
        b = AF2 + 8 * (p % NB)
        for rd in range(2):
            dq.op(f"ds_read_b64_tr_b16 v[{b+4*dl+2*rd}:{b+4*dl+2*rd+1}], v{AR[w]+dl} offset:{off + 512*rd}", ("w", p))
        if dl == 1 and p % 2 == 1 and 17 + c <= TB_REQ:
            a(f"v_mov_b32 v0, {17 + c}")
            dq.op(f"ds_write_b32 v9, v0 offset:{FL_FREE - MISC}")
    level_load(a)
    for p in range(PD): reads(p, 0); reads(p, 1)
    nq = [B0]
    sub = Asm()
    slot_sel(sub, 42, 3, TB)
    F = FIN
    sub(f"v_and_b32 v{F+8}, 31, v1\nv_lshrrev_b32 v{F+9}, 5, v1\nv_and_b32 v{F+10}, 7, v1\nv_xor_b32 v{F+9}, v{F+9}, v{F+10}\nv_lshlrev_b32 v{F+9}, 4, v{F+9}\nv_lshl_add_u32 v{F+8}, v{F+8}, 8, v{F+9}\nv_add_u32 v{F+8}, s42, v{F+8}")
    for g in range(1, 4): sub(f"v_xor_b32 v{F+8+g}, {32*g}, v{F+8}")
    sub(f"v_mov_b32 v{F+12}, {MISC}")
    final_setup(sub)
    unpack_res(sub, 12)
    tail = [l.strip() for l in sub.lines]
    for p in range(43):
        if p in L3TRY:
            skip = a.label("l3s")
            a(f"s_cmp_lg_u32 s55, 0\ns_cbranch_scc1 {skip}\ns_waitcnt lgkmcnt(0)")
            level_test(a, 3)
            a(f"s_cbranch_scc0 {skip}\ns_call_b64 s[46:47], k_l3burst")
            a(f"{skip}:")
        if p + 5 in L3TRY + (L3P,): level_load(a)
        if p == L3P:
            skip = a.label("l3s")
            TM(a, "w3")
            a(f"s_waitcnt lgkmcnt(0)\ns_cmp_lg_u32 s55, 0\ns_cbranch_scc1 {skip}")
            h_wait(a, 3)
            a("s_call_b64 s[46:47], k_l3burst")
            a(f"{skip}:")
            TM(a, "L3")
            vm += [("h", q) for q in range(32, 43)]
        b = AF2 + 8 * (p % NB)
        a(f"s_waitcnt vmcnt({len(vm) - 1 - vm.index(('h', p))})")
        if p % 4 == 0: TM(a, f"p{p}")
        dq.wait(("w", p))
        for dl in range(2):
            d = ACC2 + 16 * dl
            a(f"v_mfma_f32_32x32x16_bf16 v[{d}:{d+15}], v[{b+4*dl}:{b+4*dl+3}], v[{HB(p)}:{HB(p)+3}], " + ("0" if p == 0 else f"v[{d}:{d+15}]"))
            if p + PD < 43: reads(p + PD, dl)
            if p >= 32:
                n = 0
                while tail and (n < 3 or tail[0].startswith("s_cmov")):
                    a(tail.pop(0)); n += 1
        if p == 41: dq.op(f"ds_read_b128 v[4:7], v{F+12} offset:{FL_FREE - MISC}", "fr")
        for _ in range(2 if p < R2 else 1):
            q = nq[0]
            if q == 16:
                TM(a, "w2"); a("s_waitcnt lgkmcnt(0)"); dq.q = []; h_wait(a, 2); TM(a, "L2")
            if q < 32:
                if q + 3 < 32: h_pre(a, q + 3)
                h_load(a, q); vm.append(("h", q))
            if q == 32:
                res_load(a, 12, 11); vm.append("r"); assert p < L3TRY[0]
            nq[0] += 1
    for o in tail: a(o)
    TM(a, "loopend")
    dq.wait("fr")
    a("v_min_u32 v4, v4, v5\nv_min3_u32 v4, v4, v6, v7\nv_readfirstlane_b32 s52, v4")
    check(a, stubs, 52, TB_REQ, F + 12, FL_FREE - MISC, 4, minof=4)
    Stamps.at(a, 14)
    for dl in range(2):
        for g in range(4):
            r = ACC2 + 16*dl + 4*g
            a(f"ds_write_b128 v{F+8+g}, v[{r}:{r+3}] offset:{128*dl}")
    TM(a, "written"); TM.park(a)
    a("s_branch k_fin2")
    a("k_l3burst:")
    h_burst(a, 32, 43)
    a("s_mov_b32 s55, 1\ns_setpc_b64 s[46:47]")
    return stubs

def res_setup(a, t=40):
    a(f"s_lshr_b32 s{t}, s3, 2\ns_lshl_b32 s{t}, s{t}, 20\ns_lshr_b32 s{t+1}, s{S_T}, 3\ns_lshl_b32 s{t+1}, s{t+1}, 18\ns_add_u32 s{t}, s{t}, s{t+1}")
    a(f"s_and_b32 s{t+1}, s{S_T}, 7\ns_lshl_b32 s{t+1}, s{t+1}, 12\ns_add_u32 s{t}, s{t}, s{t+1}\ns_and_b32 s{t+1}, s3, 3\ns_lshl_b32 s{t+1}, s{t+1}, 16\ns_add_u32 s{t}, s{t}, s{t+1}")
    a(f"s_lshl_b32 s{t+1}, s{S_CJ}, 7\ns_add_u32 s{S_RES}, s{t}, s{t+1}")

def res_load(a, dst, voff):
    a(f"v_bfe_u32 v{dst}, v1, 3, 2\nv_and_b32 v{voff}, 7, v1\nv_lshlrev_b32 v{voff}, 4, v{voff}\nv_lshl_add_u32 v{voff}, v{dst}, 10, v{voff}")
    a(f"v_lshrrev_b32 v{dst}, 5, v1\nv_lshl_add_u32 v{voff}, v{dst}, 15, v{voff}")
    a(f"buffer_load_dwordx4 v[{dst}:{dst+3}], v{voff}, {sr(S_X)}, s{S_RES} offen")

def res_issue(a, dst, voff):
    res_setup(a); res_load(a, dst, voff)

FIN, XU = 128, 144
def final_setup(a):
    F = FIN
    a("s_and_b32 s44, s3, 3\ns_lshl_b32 s44, s44, 11\ns_lshr_b32 s45, s3, 2")
    slot_sel(a, 42, 45, TB[:2]); slot_sel(a, 43, 45, TB[2:])
    a(f"v_lshrrev_b32 v{F}, 3, v1\nv_and_b32 v{F+1}, 7, v1\nv_lshlrev_b32 v{F+1}, 1, v{F+1}\nv_xor_b32 v{F+1}, v{F+1}, v{F}\nv_lshlrev_b32 v{F+1}, 4, v{F+1}")
    a(f"v_lshl_add_u32 v{F}, v{F}, 8, v{F+1}\nv_add_u32 v{F}, s44, v{F}\nv_xor_b32 v{F+1}, 16, v{F}")
    a(f"v_add_u32 v{F+4}, s42, v{F}\nv_add_u32 v{F+5}, s42, v{F+1}\nv_add_u32 v{F+6}, s43, v{F}\nv_add_u32 v{F+7}, s43, v{F+1}")
    a(f"v_add_u32 v{F+2}, {TA[1]*SLOT}, v{F}\nv_add_u32 v{F+3}, {TA[1]*SLOT}, v{F+1}\nv_add_u32 v{F}, {TA[0]*SLOT}, v{F}\nv_add_u32 v{F+1}, {TA[0]*SLOT}, v{F+1}")
    a("s_lshl_b32 s45, s45, 31\ns_or_b32 s42, s45, 0x3f800000")

def unpack_res(a, xr):
    for p in range(4):
        a(f"v_lshlrev_b32 v{XU+2*p}, 16, v{xr+p}\nv_and_b32 v{XU+2*p+1}, 0xffff0000, v{xr+p}")

def final_combine(a, xr, voff):
    final_setup(a)
    a("s_waitcnt vmcnt(0)")
    unpack_res(a, xr)
    a("k_fin2:")
    if Trace.on: a("s_memtime s[100:101]\ns_waitcnt lgkmcnt(0)\nv_writelane_b32 v100, s100, 60")
    a("s_waitcnt lgkmcnt(0)\ns_barrier")
    if Trace.on: a("s_memtime s[100:101]\ns_waitcnt lgkmcnt(0)\nv_writelane_b32 v100, s100, 61")
    R = 20
    for q in range(2):
        a(f"ds_read_b128 v[{R+4*q}:{R+4*q+3}], v{FIN+q}")
        a(f"ds_read_b128 v[{R+8+4*q}:{R+8+4*q+3}], v{FIN+2+q}")
        a(f"ds_read_b128 v[{R+16+4*q}:{R+16+4*q+3}], v{FIN+4+q}")
        a(f"ds_read_b128 v[{R+24+4*q}:{R+24+4*q+3}], v{FIN+6+q}")
    for p in range(4):
        if p % 2 == 0: a(f"s_waitcnt lgkmcnt({4 if p == 0 else 0})")
        r = R + 2*p
        a(f"v_pk_fma_f32 v[{r}:{r+1}], v[{r+8}:{r+9}], s[42:43], v[{r}:{r+1}] op_sel_hi:[1,0,1]")
        a(f"v_pk_add_f32 v[{r+16}:{r+17}], v[{r+16}:{r+17}], v[{r+24}:{r+25}]")
        a(f"v_pk_add_f32 v[{r}:{r+1}], v[{r}:{r+1}], v[{XU+2*p}:{XU+2*p+1}]")
        a(f"v_pk_add_f32 v[{r}:{r+1}], v[{r}:{r+1}], v[{r+16}:{r+17}]")
        a(f"v_cvt_pk_bf16_f32 v{xr+p}, v{r}, v{r+1}")
    a(f"buffer_store_dwordx4 v[{xr}:{xr+3}], v{voff}, {sr(S_OUT)}, s{S_RES} offen {'sc0 sc1' if 'owt' in OPT else 'nt' if 'ont' in OPT else ''}")

def loader(a):
    a(f"v_mov_b32 v2, {MISC}")
    a("v_and_b32 v16, 3, v1\nv_lshl_add_u32 v16, v16, 2, v2")
    a("v_lshrrev_b32 v8, 2, v1\nv_and_b32 v9, 3, v1\nv_lshlrev_b32 v9, 4, v9\nv_xor_b32 v10, 2, v8")
    a("v_mul_u32_u24 v8, 5504, v8\nv_mul_u32_u24 v10, 5504, v10\nv_xor_b32 v11, 32, v9")
    a("v_add_u32 v4, v8, v9\nv_add_u32 v5, v8, v11\nv_add_u32 v6, v10, v9\nv_add_u32 v7, v10, v11")
    a("v_lshrrev_b32 v8, 3, v1\nv_and_b32 v9, 7, v1\nv_bfe_u32 v10, v1, 4, 1\nv_lshlrev_b32 v10, 2, v10\nv_xor_b32 v10, v10, v9")
    a("v_lshlrev_b32 v10, 4, v10\nv_lshl_add_u32 v17, v8, 10, v10")
    for q in range(4):
        a(f"s_add_u32 s40, s{S_ROT}, {q}\ns_and_b32 s40, s40, 3\ns_mul_i32 s{44+q}, s40, {128*2752}")
    a(f"s_and_b32 s40, s{S_P}, 1\ns_mul_i32 s48, s40, 2752\ns_sub_u32 s49, 2752, s48")
    a(f"s_lshl_b32 s40, s{S_P}, 6\ns_add_u32 s48, s48, s40\ns_add_u32 s49, s49, s40")
    a(f"s_lshl_b32 s50, s{S_CJ}, 7\ns_mov_b32 s52, 0")
    pair_table(a, 18, 19, 20)
    a("v_lshlrev_b32 v18, 15, v18\nv_add_u32 v18, s50, v18\nv_lshlrev_b32 v19, 4, v1")
    Stamps.at(a, 7)
    two, w2l = a.label("ld2"), a.label("ldw2")
    if "noload" in OPT:
        a("s_waitcnt vmcnt(0)\nv_mov_b32 v3, 1"); wg_signal(a, FL_Z_CNT, 2, 0, 2, 3, 12)
        a(f"v_mov_b32 v3, 99\nds_write_b32 v16, v3 offset:{FL_FULL - MISC}\nds_write_b32 v16, v3 offset:{FL_FULL2 - MISC}\ns_branch k_ldend")
    a(f"s_cmp_eq_u32 s{S_NP}, 2\ns_cbranch_scc1 {two}")
    class Pipe:
        def __init__(s): s.items = []; s.seen = 0; s.depth = DEPTH
        def publish(s, it):
            if it[0] is None: return
            a(f"v_mov_b32 v3, {it[1]}\ns_mov_b64 exec, 15\nds_max_u32 v16, v3 offset:{it[0] - MISC}\ns_mov_b64 exec, -1")
        def probe(s, req, ok):
            a(f"s_call_b64 s[54:55], k_ldprobe\ns_cmp_ge_u32 s52, {req}\ns_cbranch_scc1 {ok}")
        def need(s, req):
            if req <= s.seen: return
            ok = a.label("ldok")
            a(f"s_cmp_ge_u32 s52, {req}\ns_cbranch_scc1 {ok}")
            for i, it in enumerate(s.items):
                if it[0] is None: continue
                s.probe(req, ok)
                a(f"s_waitcnt vmcnt({sum(x[2] for x in s.items[i+1:])})"); s.publish(it)
            lds_wait_ge(a, 2, FL_FREE - MISC, req, 12, 52, 41, minof=4, sleep=LSL)
            a(f"{ok}:")
            s.seen = req
        def done(s, word, val, cnt):
            s.items.append((word, val, cnt))
            while len(s.items) > 1 and sum(x[2] for x in s.items) > s.depth:
                it = s.items.pop(0)
                a(f"s_waitcnt vmcnt({sum(x[2] for x in s.items)})"); s.publish(it)
        def flush(s, keep=0):
            while len(s.items) > keep:
                it = s.items.pop(0)
                a(f"s_waitcnt vmcnt({sum(x[2] for x in s.items)})"); s.publish(it)
    def variant(np_):
        pp = Pipe()
        for grp in range(8):
            st, q = grp // 4, grp % 4
            if st == 0: seq = [[("A", "X", 0), ("C", "X", 64)], [("A", "Y", 0)]]
            else:       seq = [[("C", "Y", 64), ("B", "Y", 64 * (np_ - 1))], [("B", "X", 64 * (np_ - 1))]]
            if np_ == 2: seq = [[c for c in s if c[0] != "C"] for s in seq]
            tot = 0
            for si, s in enumerate(seq):
                pp.need(max([CELLS[(c[0], c[1], q)][1] for c in s] + [LGATE]))
                if grp == 4 and si == 0: lds_wait_ge(a, 2, FL_A_DONE - MISC, 2, 12, 40, 41)
                cl = s[0][1]; ci = 0 if cl == "X" else 1; cnt = 0
                for g in range(4):
                    for mat in range(2):
                        for n, (ps, _, off) in enumerate(s):
                            dst = CELLS[(ps, cl, q)][0] * SLOT + mat * 4096 + g * 1024
                            neg = dst - off < 0
                            a(f"s_mov_b32 m0, {dst if neg else dst - off}")
                            if mat == 0 and n == 0:
                                a(f"s_add_u32 s42, s{44+q}, s{48+ci}" if g == 0 else f"s_add_u32 s42, s42, {32*2752}")
                            if neg:
                                a(f"s_add_u32 s43, s42, {off}\nbuffer_load_dwordx4 v{4+2*ci+mat}, {sr(S_W1 + 4*mat)}, s43 offen lds")
                            else:
                                a(f"buffer_load_dwordx4 v{4+2*ci+mat}, {sr(S_W1 + 4*mat)}, s42 offen offset:{off} lds")
                            cnt += 1
                tot += cnt
                pp.done(FL_FULL if si == 1 else None, grp + 1, cnt)
            if grp in (1, 3, 5, 7): Stamps.at(a, 8 + grp // 2)
            if grp == 1: a(f"s_setprio {LPRIO}")
        while pp.items and pp.items[0][1] < 8:
            pp.flush(keep=len(pp.items) - 1)
        return pp
    p3 = variant(3)
    a(f"s_branch {w2l}")
    a("k_ldprobe:")
    a(f"ds_read_b128 v[12:15], v2 offset:{FL_FREE - MISC}\ns_waitcnt lgkmcnt(0)")
    a("v_min_u32 v12, v12, v13\nv_min3_u32 v12, v12, v14, v15\nv_readfirstlane_b32 s52, v12\ns_nop 0\ns_setpc_b64 s[54:55]")
    a(f"{two}:")
    p2 = variant(2)
    a(f";@seg ld2 {HV}")
    a(f"{w2l}:")
    pp = Pipe(); pp.items = [(FL_FULL, 8, 24)]; pp.seen = min(p3.seen, p2.seen); pp.depth = DEPTH2
    TL.start(a)
    a("v_lshlrev_b32 v19, 4, v1")
    staged = list(range(22 - NST, 22))
    order = [("d", c) for c in range(22) if c not in staged and c not in H3C]
    for n, c in enumerate(staged): order.insert(1 + 2 * n, ("s", c))
    order += [("w", c) for c in staged]
    for kind, c in order:
        slot, req = CELLS[("w", c)]
        ps_ = list(range(2 * c, min(2 * c + 2, 43)))
        base = 32 + 32 * (c - (22 - NST))
        if kind != "w":
            for p in ps_: a(f"v_readlane_b32 s{44 + p % 2}, v18, {p}")
        if kind != "s":
            pp.need(req)
            if c % 2 == 0: TL(a, f"c{c}")
        if kind == "w":
            a(f"v_add_u32 v20, {slot*SLOT}, v19")
            for i in range(4 * len(ps_)): a(f"ds_write_b128 v20, v[{base+4*i}:{base+4*i+3}] offset:{1024*i}")
            pp.flush(); pp.publish((FL_FULL2, c + 1))
            continue
        for p in ps_:
            for g in range(4):
                if kind == "d": a(f"s_mov_b32 m0, {slot*SLOT + (p % 2)*4096 + g*1024}")
                if g: a(f"s_add_u32 s{44 + p % 2}, s{44 + p % 2}, 8192")
                r = base + 16 * (p % 2) + 4 * g
                a(f"buffer_load_dwordx4 v17, {sr(S_W2)}, s{44 + p % 2} offen lds" if kind == "d" else
                  f"buffer_load_dwordx4 v[{r}:{r+3}], v17, {sr(S_W2)}, s{44 + p % 2} offen")
        pp.done(FL_FULL2 if kind == "d" else None, c + 1, 4 * len(ps_))
    TL(a, "issued")
    pp.flush()
    TL(a, "landed"); TL.park(a)

GF, ACCE, BE = 128, 64, 32

def g_first(a, n, dt16, t0):
    st, s7, ar = t0, t0 + 1, t0 + 2
    a(f"v_and_b32 v{st}, 15, v1\ns_lshr_b32 s40, s2, 5\ns_lshl_b32 s40, s40, 6\ns_add_u32 s40, s40, {dt16}\nv_add_u32 v{st}, s40, v{st}")
    a(f"v_cvt_f32_u32 v{st}, v{st}\nv_mul_f32 v{st}, {f32(1/512)}, v{st}\nv_mul_f32 v{s7}, {f32(7.0)}, v{st}")
    a(f"v_lshrrev_b32 v{ar}, 4, v1\nv_lshl_add_u32 v{ar}, v{ar}, 1, 1\nv_cvt_f32_u32 v{ar}, v{ar}\nv_mul_f32 v{ar}, v{ar}, v{st}")
    for i in range(32):
        if i: a(f"v_add_f32 v{ar}, v{ar}, v{st if i & 1 else s7}")
        t = t0 + 4 + 2 * (i & 1); p = t0 + 4 + 2 * ((i + 1) & 1)
        a(f"v_cos_f32 v{t}, v{ar}\nv_sin_f32 v{t+1}, v{ar}")
        if i: a(f"v_cvt_pk_bf16_f32 v{GF+64*n+i-1}, v{p}, -v{p+1}")
    a(f"v_cvt_pk_bf16_f32 v{GF+64*n+31}, v{t0+6}, -v{t0+7}")

def g_second(a, nt, t=4):
    a(f"v_and_b32 v{t}, 1, v1\nv_lshlrev_b32 v{t}, 4, v{t}\nv_bfe_u32 v{t+1}, v1, 1, 1\nv_lshlrev_b32 v{t+1}, 15, v{t+1}\nv_add_u32 v{t+2}, 1, v1\nv_bfe_u32 v{t+2}, v{t+2}, 1, 1\nv_lshl_or_b32 v{t+1}, v{t+2}, 31, v{t+1}")
    for n in range(nt):
        for i in range(32):
            r = GF + 64*n + i
            a(f"v_alignbit_b32 v{r+32}, v{r}, v{r}, v{t}")
        for i in range(32):
            r = GF + 64*n + i
            a(f"v_xor_b32 v{r+32}, v{t+1}, v{r+32}")

def e_load(a, s_pi, meanwhile):
    a(f"v_mov_b32 v2, {MISC}")
    a("v_lshrrev_b32 v8, 4, v1\nv_bfe_u32 v9, v1, 2, 2\nv_xor_b32 v9, v9, v8\nv_lshlrev_b32 v5, 13, v8\nv_lshrrev_b32 v10, 1, v9\nv_lshl_add_u32 v5, v10, 12, v5")
    a("v_and_b32 v10, 1, v9\nv_lshl_add_u32 v5, v10, 6, v5\nv_and_b32 v10, 3, v1\nv_lshl_add_u32 v5, v10, 4, v5")
    a(f"s_lshl_b32 s45, s{S_T}, 7\ns_lshl_b32 s40, s{s_pi}, 18\ns_add_u32 s45, s45, s40\ns_add_u32 s45, s45, {WS_E}")
    a(f"s_lshl_b32 s40, s{s_pi}, 2\nv_add_u32 v6, s40, v2")
    for i in range(4):
        (s0, r0), (s1, r1) = CELLS[("e", 2*i)], CELLS[("e", 2*i + 1)]
        lds_wait_ge(a, 2, FL_FREE - MISC, max(r0, r1), 16, 40, 41, minof=4, sleep=1)
        TH(a, f"ld{i}")
        a(f"s_mul_i32 s46, s{s_pi}, {(s1 - s0) * SLOT}\ns_add_u32 s46, s46, {s0 * SLOT}")
        for g in range(8):
            a(f"s_add_u32 m0, s46, {g*1024}")
            a(f"s_add_u32 s42, s45, {(64*i + 4*g)*8192}")
            a(f"buffer_load_dwordx4 v5, {sr(S_WS)}, s42 offen {RD} lds")
    meanwhile()
    for i in range(4):
        a(f"s_waitcnt vmcnt({8*(3-i)})\nv_mov_b32 v3, {i+1}\nds_write_b32 v6, v3 offset:{FL_FULLE - MISC}")

def e_part(a, nt, s_dt16, TT):
    dq = DsQ(a); stubs = []
    a(f"v_mov_b32 v2, {MISC}")
    a("v_lshrrev_b32 v8, 3, v1\nv_lshlrev_b32 v9, 8, v8\nv_and_b32 v8, 3, v8\nv_lshl_add_u32 v9, v8, 6, v9")
    a("v_and_b32 v8, 3, v1\nv_lshl_add_u32 v9, v8, 4, v9\nv_bfe_u32 v8, v1, 2, 1\nv_lshl_add_u32 v4, v8, 3, v9")
    for nu in range(1, 4): a(f"v_xor_b32 v{4+nu}, {64*nu}, v4")
    a("s_mov_b32 s52, 0\ns_mov_b32 s53, 0\ns_waitcnt lgkmcnt(0)")
    AH = 7
    def reads(u):
        js, nu = u // 4, u % 4
        c = js // 2
        if u % 8 == 0: check(a, stubs, 52 + (c & 1), c // 2 + 1, 2, FL_FULLE - MISC + 4 * (c & 1), 3)
        if js % 2 == 0: a(f"v_add_u32 v{16+nu}, {CELLS[('e', c)][0]*SLOT}, v{4+nu}")
        b = BE + 4 * (u % 8)
        for rd in range(2):
            dq.op(f"ds_read_b64_tr_b16 v[{b+2*rd}:{b+2*rd+1}], v{16+nu} offset:{(js % 2)*4096 + 2048*rd}", ("e", u))
    a(f"s_setprio {EPRIO}")
    for u in range(AH): reads(u)
    for u in range(64):
        js, nu = u // 4, u % 4
        b = BE + 4 * (u % 8)
        dq.wait(("e", u))
        if u % 8 == 0: TT(a, f"u{u}")
        for n in range(nt):
            d = ACCE + 16*n + 4*nu; g = GF + 64*n + 4*js
            a(f"v_mfma_f32_16x16x32_bf16 v[{d}:{d+3}], v[{g}:{g+3}], v[{b}:{b+3}], " + ("0" if js == 0 else f"v[{d}:{d+3}]"))
        if u + AH < 64: reads(u + AH)
    a(f"s_lshr_b32 s40, s{s_dt16}, 2\nv_lshrrev_b32 v17, 4, v1\nv_add_u32 v17, s40, v17\nv_and_b32 v18, 7, v1\nv_xor_b32 v17, v17, v18\nv_lshlrev_b32 v17, 4, v17")
    a(f"v_and_b32 v16, 15, v1\nv_lshl_add_u32 v16, v16, 8, v17\nv_xor_b32 v17, 64, v16")
    a(f"v_add_u32 v18, {TA[1]*SLOT}, v16\nv_add_u32 v19, {TA[1]*SLOT}, v17\nv_add_u32 v16, {TA[0]*SLOT}, v16\nv_add_u32 v17, {TA[0]*SLOT}, v17")
    TT(a, "edone")
    lds_wait_ge(a, 2, FL_FREE - MISC, TA_REQ, 4, 40, 41, minof=4, sleep=1)
    for n in range(nt):
        for nu in range(4):
            d = ACCE + 16*n + 4*nu
            a(f"ds_write_b128 v{16+n+2*(nu >> 1)}, v[{d}:{d+3}] offset:{(nu & 1)*4096}")
    TT(a, "written"); TT.park(a)
    return stubs

def h_relay(a, level, val):
    lds_wait_ge(a, 2, FL_HS - MISC, level, 16, 40, 41, minof=4, sleep=1 if level < 3 else 0)
    T3(a, f"hs{level}")
    for i in range(8): a(f"ds_read_b128 v[{32+4*i}:{35+4*i}], v24 offset:{1024*i}")
    a(f"v_mov_b32 v16, {level}\nds_write_b32 v25, v16 offset:{FL_HSF - MISC}")
    for i in range(8):
        a(f"s_waitcnt lgkmcnt({7 - i})")
        a(f"buffer_store_dwordx4 v[{32+4*i}:{35+4*i}], v26, {sr(S_WS)}, s{44 + i // 2} offen offset:{1024*(i & 1)} {WT}")
    T3(a, "st")
    if "va" in OPT:
        a(f"v_mov_b32 v16, {val}\ns_waitcnt vmcnt(0)\ns_mov_b64 exec, 0xffff")
        a(f"buffer_atomic_add v16, v27, {sr(S_WS)}, s48 offen sc1\ns_mov_b64 exec, -1")
    else:
        a(f"s_mov_b32 s56, {val}\ns_waitcnt vmcnt(0)")
        for i in range(16): a(f"s_atomic_add s56, s[58:59], {(i & 7) * 8192 + (i >> 3) * 2048}")
    T3(a, "ack")
    T3(a, "atom"); T3.park(a)

def h_relay_setup(a):
    a(f"v_mov_b32 v2, {MISC}\nv_lshlrev_b32 v26, 4, v1\nv_add_u32 v24, {HST}, v26\nv_and_b32 v25, 3, v1\nv_lshl_add_u32 v25, v25, 2, v2")
    a(f"s_lshl_b32 s49, s{S_I}, 1\ns_mul_i32 s44, s49, 86\ns_lshl1_add_u32 s44, s{S_P}, s44\ns_lshl_b32 s44, s44, 10\ns_add_u32 s44, s44, {WS_H}")
    a(f"s_add_u32 s45, s44, {86*1024}\ns_add_u32 s46, s44, {32*86*1024}\ns_add_u32 s47, s46, {86*1024}")
    mbox_off(a, 48, 49)
    a(f"s_add_u32 s58, s{S_WS}, s48\ns_addc_u32 s59, s{S_WS+1}, 0")
    a("v_and_b32 v27, 7, v1\nv_lshlrev_b32 v27, 13, v27\nv_bfe_u32 v16, v1, 3, 1\nv_lshl_add_u32 v27, v16, 11, v27\nv_bfe_u32 v16, v1, 4, 1\nv_lshl_add_u32 v27, v16, 2, v27")

def h3_refill_setup(a):
    a("v_lshrrev_b32 v8, 3, v1\nv_and_b32 v9, 7, v1\nv_bfe_u32 v10, v1, 4, 1\nv_lshlrev_b32 v10, 2, v10\nv_xor_b32 v10, v10, v9")
    a("v_lshlrev_b32 v10, 4, v10\nv_lshl_add_u32 v28, v8, 10, v10")
    pair_table(a, 29, 8, 9)
    a(f"s_lshl_b32 s40, s{S_CJ}, 7\nv_lshlrev_b32 v29, 15, v29\nv_add_u32 v29, s40, v29")

def h3_refill(a):
    prev = None
    for c in H3C:
        slot, req = CELLS[("w", c)]
        ps_ = list(range(2 * c, min(2 * c + 2, 43)))
        for p in ps_: a(f"v_readlane_b32 s{44 + p % 2}, v29, {p}")
        if prev is not None:
            ok = a.label("rf")
            a(f"s_cmp_ge_u32 s52, {req}\ns_cbranch_scc1 {ok}\ns_waitcnt vmcnt(0)\nv_mov_b32 v16, {prev + 1}\nds_write_b32 v25, v16 offset:{FL_FULL3 - MISC}")
            lds_wait_ge(a, 2, FL_FREE - MISC, req, 16, 52, 41, minof=4)
            a(f"{ok}:")
        else:
            lds_wait_ge(a, 2, FL_FREE - MISC, req, 16, 52, 41, minof=4)
        for p in ps_:
            for g in range(4):
                a(f"s_mov_b32 m0, {slot*SLOT + (p % 2)*4096 + g*1024}")
                if g: a(f"s_add_u32 s{44 + p % 2}, s{44 + p % 2}, 8192")
                a(f"buffer_load_dwordx4 v28, {sr(S_W2)}, s{44 + p % 2} offen lds")
        if prev is not None:
            a(f"s_waitcnt vmcnt({4 * len(ps_)})\nv_mov_b32 v16, {prev + 1}\nds_write_b32 v25, v16 offset:{FL_FULL3 - MISC}")
        prev = c
    if prev is not None:
        a(f"s_waitcnt vmcnt(0)\nv_mov_b32 v16, {prev + 1}\nds_write_b32 v25, v16 offset:{FL_FULL3 - MISC}")

def scalar_prefetch(a):
    a(f"s_lshl3_add_u32 s40, s2, s3\ns_and_b32 s41, s40, 1023\ns_mulk_i32 s41, {11*128}\ns_min_u32 s41, s41, {512*2752 - 11*128}")
    a(f"s_cmp_lt_u32 s40, 1024\ns_cselect_b64 s[42:43], s[{S_W1}:{S_W1+1}], s[{S_W3}:{S_W3+1}]\ns_add_u32 s42, s42, s41\ns_addc_u32 s43, s43, 0")
    for i in range(11): a(f"s_load_dword s82, s[42:43], {128*i}")

def w2_touch(a):
    a(f"v_mov_b32 v2, {MISC}")
    lds_wait_ge(a, 2, FL_FULL - MISC, W2T, 16, 40, 41, sleep=4)
    a(f"v_lshlrev_b32 v4, 7, v1\ns_lshr_b32 s42, s2, 3\ns_mul_i32 s42, s42, {344*128}")
    for i in range(6):
        if i == 5: a("s_mov_b64 exec, 0xffffff")
        a(f"buffer_load_dword v10, v4, {sr(S_W2)}, s42 offen\ns_add_u32 s42, s42, 8192")
    a("s_mov_b64 exec, -1")

W2T = 8
L3P = 31
gi = lambda k, d: int([o[len(k):] for o in OPT if o.startswith(k) and o[len(k):].isdigit()][0]) if any(o.startswith(k) and o[len(k):].isdigit() for o in OPT) else d
B0 = gi("b", 8)
R2 = gi("rr", 4)
ET = gi("et", 4)
HSJ = 10
L2P = int([o[2:] for o in OPT if o.startswith("l2")][0]) if any(o.startswith("l2") for o in OPT) else 4
LR = 2 if "r2" in OPT else 1
PSTP = 13
L3TRY = (max(33 - B0 - R2, 18), 26)
GAPB = int([o[2:] for o in OPT if o.startswith("gb")][0]) if any(o.startswith("gb") for o in OPT) else 28
EPRIO = 2 if "ep2" in OPT else 0
DEPTH = 40
DEPTH2 = int([o[2:] for o in OPT if o.startswith("d2")][0]) if any(o.startswith("d2") for o in OPT) else 16
NST = int([o[2:] for o in OPT if o.startswith("st")and o[2:].isdigit()][0]) if any(o.startswith("st") and o[2:].isdigit() for o in OPT) else 0
LSL = 2 if "lsl" in OPT else 0
HV, HM = 256, 128
G1PRIO = 0
KPRIO = 0 if "k0" in OPT else 3
LPRIO = 0 if "lp0" in OPT else 3
ZG = 3 if "zg" in OPT else 0
WG = 3 if ("wg" in OPT or "zg" in OPT) else 0
LGATE = gi("lg", 2)
XS = False
SF = WT

a = Asm()
a.begin_kernel(NAME)
a("s_cmp_ge_u32 s2, 0x100\ns_cbranch_scc1 k_end")
Stamps.at(a, 0)
if "dbgspan" in OPT or "fix" in OPT: a("s_memrealtime s[92:93]")
if Trace.on: a("s_memtime s[92:93]\ns_waitcnt lgkmcnt(0)")
a(f"s_load_dwordx2 s[{S_X}:{S_X+1}], s[0:1], 0\ns_load_dwordx2 s[{S_WR}:{S_WR+1}], s[0:1], 8\ns_load_dwordx2 s[{S_WI}:{S_WI+1}], s[0:1], 16")
a(f"s_load_dwordx8 s[72:79], s[0:1], 32\ns_load_dwordx2 s[{S_WS}:{S_WS+1}], s[0:1], 72\ns_load_dwordx2 s[{S_DBG}:{S_DBG+1}], s[0:1], 64")
code_prefetch(a, NAME, "k_end", 65536, 8, 255)
a("v_lshrrev_b32 v2, 6, v0\nv_and_b32 v1, 63, v0\nv_readfirstlane_b32 s3, v2")
a(f"s_mov_b32 s{S_X+2}, 0x200000\ns_mov_b32 s{S_X+3}, 0x20000")
ids_early(a)
a("s_cmp_ge_u32 s3, 4\ns_cbranch_scc1 k_helper")
x_setup(a)
x_setup_late(a)
touch_setup(a)
a("s_waitcnt lgkmcnt(0)\ns_barrier")
TE = 7 if "te7" in OPT else 3
def first_touch(e):
    if e == 0: a("s_bitcmp1_b32 s3, 0\ns_cselect_b64 s[12:13], s[74:75], s[72:73]")
    if e == TE and ("t1" in OPT or "t2" in OPT): touch_issue(a, 0)
    if e == TE and "t2" in OPT: touch_issue(a, 128)
x_issue(a, 0, first_touch)
a("s_branch k_main")
a("k_helper:")
a(f"s_setprio 3\ns_sub_u32 s{S_HW}, s3, 4")
a(f"v_lshlrev_b32 v4, 2, v1\nv_add_u32 v4, {MISC}, v4\nv_mov_b32 v5, 0\nds_write_b32 v4, v5")
a(f"s_mov_b32 s{S_WR+2}, {2048*514}\ns_mov_b32 s{S_WR+3}, s{S_X+3}\ns_mov_b64 s[{S_WI+2}:{S_WI+3}], s[{S_WR+2}:{S_WR+3}]")
row_setup(a, S_HW, 18*SLOT)
a("s_waitcnt lgkmcnt(0)\ns_barrier")
row_issue(a)
a(f"s_cmp_lg_u32 s{S_HW}, 1\ns_cbranch_scc1 k_now")
w_issue(a, 17*SLOT)
a("k_now:")
ids_late(a)
Stamps.at(a, 1)
a(f"s_load_dword s{S_TAG}, s[80:81], 0\ns_sub_u32 s6, s{S_HW}, 1")
def wait_rows():
    a(f"s_waitcnt vmcnt(8)\ns_cmp_eq_u32 s{S_HW}, 1\ns_cbranch_scc1 k_rows\ns_waitcnt vmcnt(0)\nk_rows:")
row_compute(a, S_HW, wait_rows)
make_tag(a)
a(f"s_cmp_eq_u32 s{S_HW}, 0\ns_cbranch_scc1 k_loader")
a(f"s_cmp_lg_u32 s{S_HW}, 3\ns_cbranch_scc1 k_h12")
z_store_all(a, 18*SLOT, SF)
a(f"s_lshl_b32 s42, s2, 8\ns_add_u32 s42, s42, {MBOX + 128}\nv_mov_b32 v14, 0\nv_mov_b32 v15, 0\ns_mov_b64 exec, 1")
a(f"buffer_store_dwordx2 v[14:15], off, {sr(S_WS)}, s42 {WT}\ns_mov_b64 exec, -1")
a("s_waitcnt vmcnt(0)")
wg_signal(a, FL_Z_CNT, 2, 0, 12, 13, 14)
Stamps.at(a, 7)
a("s_setprio 0\ns_branch k_h3")

a("k_main:")
ids_late(a)
if "sp" in OPT: scalar_prefetch(a)
g1_main(a)
st = g2_main(a)
emit_stubs(a, st)

a(";@endseg")
a("k_h12:")
a(f"s_setprio {KPRIO}")
if "nocolE" in OPT:
    res_issue(a, 12, 11); a("s_branch k_fin")
Stamps.at(a, 7)
a(f"s_cmp_lg_u32 s{S_HW}, 1\ns_cbranch_scc1 k_h2a")
w_store(a, 17*SLOT, SF)
a("k_h2a:")
col_mats(a, 6)
a(f"s_cmp_lg_u32 s{S_HW}, 1\ns_cbranch_scc1 k_h2b\ns_waitcnt vmcnt(0)")
wg_signal(a, FL_Z_CNT, 2, 0, 12, 13, 14)
Stamps.at(a, 2)
a("k_h2b:")
col_twiddles(a, 6, S_COL, 2)
col_twiddles(a, 6, S_COL, 1)
col_addrs(a)
col_offsets(a, 6, S_COL)
Stamps.at(a, 8)
a(f"s_setprio {CPRIO}")
wait_go(a, 0)
Stamps.at(a, 9)
col_z_loads(a, RD); col_w_loads(a, RD)
col_compute3(a, SF, lambda: None, 7)
Stamps.at(a, 11)
a(f"v_mov_b32 v2, {MISC}\nv_mov_b32 v3, 1")
a("s_waitcnt vmcnt(0)")
Stamps.at(a, 12)
wg_signal(a, FL_E_CNT, 2, 1, 2, 3, 14)
E2 = "e3" not in OPT
a(f"s_setprio {G1PRIO}\ns_lshl_b32 s7, s6, {5 if E2 else 4}\ns_add_u32 s55, s7, 16")
g_first(a, 0, "s7", 4)
res_issue(a, 12, 11)
a(f"v_lshlrev_b32 v24, 12, v1\ns_lshl1_add_u32 s47, s{S_CJ}, s6\ns_lshl_b32 s47, s47, 17\ns_lshl_b32 s40, s{S_T}, 7\ns_add_u32 s47, s47, s40\ns_add_u32 s47, s47, {WS_E}")
if "noE" in OPT: a("s_branch k_fin")
Stamps.at(a, 13)
a(f"s_setprio {EPRIO}")
TH.start(a); TH(a, "waitE")
wait_go(a, 1)
TH(a, "goE")
a(f"s_mov_b32 exec_hi, 0\nbuffer_load_dword v25, v24, {sr(S_WS)}, s47 offen {RD}\ns_mov_b64 exec, -1")
Stamps.at(a, 14)
def meanwhile():
    if E2: g_first(a, 1, "s55", 32)
    g_second(a, 2 if E2 else 1, 20)
e_load(a, 6, meanwhile)
st = e_part(a, 2 if E2 else 1, 7, TH)
a("s_branch k_fin")
emit_stubs(a, st)

a(";@endseg")
a("k_h3:")
warm(a, ["m1", "m2", "ld2", "m3"])
a("s_mov_b32 s7, 32")
if not E2: g_first(a, 0, 32, 16); g_first(a, 1, 48, 16); g_second(a, 2)
if "w2t" in OPT: w2_touch(a)
wait_go(a, 0)
h_relay_setup(a)
h3_refill_setup(a)
res_issue(a, 12, 11)
a("s_setprio 3")
T3.start(a)
h_relay(a, 1, 1)
Stamps.at(a, 9)
a(f"s_sub_u32 s49, s{S_NP}, 1\ns_lshl_b32 s49, s49, 11\ns_cmp_eq_u32 s{S_NP}, 2\ns_mov_b32 s50, 0x100\ns_cmov_b32 s50, 0x10100")
for i in range(4): a(f"s_add_u32 s{44+i}, s{44+i}, s49")
h_relay(a, 2, "s50")
Stamps.at(a, 10)
a(f"s_cmp_eq_u32 s{S_NP}, 2\ns_cbranch_scc1 k_h3e")
for i in range(4): a(f"s_sub_u32 s{44+i}, s{44+i}, 2048")
h_relay(a, 3, 0x10000)
a("k_h3e:")
Stamps.at(a, 14)
h3_refill(a)
st = [] if E2 else e_part(a, 2, 7, T3)
a("s_branch k_fin")
emit_stubs(a, st)

a("k_loader:")
loader(a)
a("k_ldend:")
res_issue(a, 12, 11)
a("k_fin:")
final_combine(a, 12, 11)
a("s_xor_b32 s40, s3, 5\ns_or_b32 s40, s40, s2\ns_cmp_lg_u32 s40, 0\ns_cbranch_scc1 k_dump")
a(f"s_mov_b32 s42, {GF_EPOCH}")
flag_store(a, 42, 0, 4)
a("k_dump:")
if "fix" in OPT:
    a("k_fx:\ns_memrealtime s[94:95]\ns_waitcnt lgkmcnt(0)\ns_sub_u32 s94, s94, s92\ns_cmp_lt_u32 s94, 4000\ns_cbranch_scc1 k_fx")
if "dbgspan" in OPT:
    a("s_waitcnt vmcnt(0)\ns_memrealtime s[94:95]\ns_waitcnt lgkmcnt(0)\ns_cmp_lg_u32 s3, 0\ns_cbranch_scc1 k_end")
    a("s_and_b32 s92, s92, 0xffffff\ns_and_b32 s94, s94, 0xffffff\ns_sub_u32 s93, 0xffffff, s92\ns_sub_u32 s95, s94, s92")
    for i, r in enumerate((93, 94, 92, 95)):
        a(f"s_atomic_umax s{r}, s[{S_DBG}:{S_DBG+1}], {16 + 4*i}")
    a("s_waitcnt lgkmcnt(0)")
if Stamps.on: a("s_waitcnt vmcnt(0)")
Stamps.dump(a, 0)
if Trace.on: a("s_waitcnt vmcnt(0)")
Trace.dump(a)
import json
if Trace.on: json.dump(Trace.names, open(sys.argv[1][:-2] + ".json", "w"))
a(";@endseg")
a("k_end:\ns_endpgm")
a("k_hopret:\ns_waitcnt lgkmcnt(0)\ns_setpc_b64 s[0:1]")
a.add_kernel(NAME, 256); a.add_launch(NAME, 256, 512, LDS_BYTES)
txt = a.text(header=HEADER, single=True)
if "hop" in OPT:
    txt, nh_ = hop_pass(txt, "k_hopret"); print("hop sites", nh_)
if "noal" not in OPT: txt, nw_, np_ = align_pass(txt)
open(sys.argv[1], "w").write(txt)
print("nops", a.nops_added, CELLS if "v" in OPT else "")
```

```python
import sys, math
from spec2 import *

OPT = set(sys.argv[2:])
Stamps.on = "stamp" in OPT or "se" in OPT
if "se" in OPT or "qs" in OPT: Stamps.skip = set(range(1, 15))
if "cyc" in OPT: Stamps.op = "s_memtime"
Trace.on = "trace" in OPT
TM, TL, TH, T3 = Trace("main", 10), Trace("loader", 31), Trace("h12", 31), Trace("h3", 31)
LSLEEP[0] = 1 if "lsleep" in OPT else 0
NAME = "parallel_sum__spectral_gfnet__glu_gated_swiglu__prompt_kernel"
HEADER = open("parallel_sum__spectral_gfnet__glu_gated_swiglu__prompt.s.ref").read().split("; Override")[0]
WT = "sc0 sc1"
RD = "" if "rdplain" in OPT else "sc1"
GF_EPOCH, MBOX = WS_FLAG, WS_FLAG + 0x10000
S_MB, S_DBG = 64, 66
FL_HS, FL_HSF, FL_FULL3 = MISC + 112, MISC + 128, MISC + 144
H3C = () if "one" in OPT else (15, 17, 19, 21)
FL_Z_CNT, FL_E_CNT, FL_HLVL, FL_FULL2, FL_GO, FL_FULLE = MISC + 40, MISC + 44, MISC + 48, MISC + 64, MISC + 80, MISC + 96
SCRATCH = MISC + 1024
GSPIN = 1 << 18
CPRIO = 0 if "cp0" in OPT else 2
PSLEEP = 24 if "slowpoll" in OPT else 2
HWT = "" if "hplain" in OPT else WT
S_I, S_J, S_P, S_NP, S_ROT, S_T, S_CJ, S_RES, S_TAG, S_HW, S_COL = 84, 85, 86, 87, 88, 89, 90, 91, 5, 4, 83

class DsQ:
    def __init__(self, a): self.a = a; self.q = []
    def op(self, text, tag=None):
        self.a(text)
        if "read" in text.split()[0]: self.q.append(tag)
    def wait(self, tag):
        idx = [i for i, t in enumerate(self.q) if t == tag]
        if not idx: return
        n = len(self.q) - 1 - idx[-1]
        assert n <= 15, n
        self.a(f"s_waitcnt lgkmcnt({n})")
        self.q = self.q[idx[-1] + 1:]

PJ = [(43 * j) >> 4 for j in range(17)]
ORDER = [PJ[j] for j in range(16)] + [PJ[j+1] - 1 for j in range(16)] + [PJ[j] + 1 for j in range(16) if PJ[j+1] - PJ[j] == 3]

NL, NS = (int([o[2:] for o in OPT if o.startswith("nl")][0]) if any(o.startswith("nl") for o in OPT) else 10), 7
HST = 18 * SLOT
def plan_slots():
    free = [(16, 0), (17, 4)] + [(4 * w + c, c + 1) for c in range(4) for w in range(4)]
    cells = {}
    def alloc(key, release):
        free.sort(key=lambda t: t[1])
        s, req = free.pop(0)
        cells[key] = (s, req)
        free.append((s, release))
    for q in range(4):
        alloc(("A", "X", q), 5 + q); alloc(("C", "X", q), 13 + q); alloc(("A", "Y", q), 5 + q)
    for q in range(4):
        alloc(("B", "Y", q), 9 + q); alloc(("C", "Y", q), 13 + q); alloc(("B", "X", q), 9 + q)
    ne = 18 - NL
    rest_e, rest_w = list(range(ne, 8)), list(range(NL, 22))
    order = [("w", c) for c in range(NL)] + [("e", c) for c in range(ne)]
    while rest_e or rest_w:
        if rest_e: order.append(("e", rest_e.pop(0)))
        if rest_e and "ee" in OPT: order.append(("e", rest_e.pop(0)))
        if rest_w: order.append(("w", rest_w.pop(0)))
    for k in order: alloc(k, 17 + k[1] if k[0] == "w" else 99)
    global FINAL
    FINAL = sorted((rel, s) for (s, rel) in free)[:6]
    return cells
CELLS = plan_slots()
LAST_REQ = max(r for (s, r) in CELLS.values())
TA = [s for _, s in FINAL[:2]]; TB = [s for _, s in FINAL[2:]]; TA_REQ, TB_REQ = FINAL[1][0], FINAL[5][0]; assert TB_REQ <= 37, FINAL

def ids_early(a):
    a(f"s_bfe_u32 s40, s2, 0x20003\ns_and_b32 s41, s2, 3\ns_lshl2_add_u32 s{S_I}, s41, s40")
    a(f"s_bfe_u32 s40, s2, 0x10002\ns_lshr_b32 s41, s2, 5\ns_lshl3_add_u32 s{S_J}, s40, s41")
    if "norx" not in OPT: a(f"s_add_u32 s{S_ROT}, s2, s{S_J}\ns_and_b32 s{S_ROT}, s{S_ROT}, 3")
    else: a(f"s_add_u32 s{S_ROT}, s{S_I}, s{S_J}\ns_and_b32 s{S_ROT}, s{S_ROT}, 3")

def ids_late(a):
    a(f"s_mul_i32 s{S_P}, s{S_J}, 43\ns_add_u32 s{S_NP}, s{S_P}, 43\ns_lshr_b32 s{S_P}, s{S_P}, 4\ns_lshr_b32 s{S_NP}, s{S_NP}, 4\ns_sub_u32 s{S_NP}, s{S_NP}, s{S_P}")
    a(f"s_and_b32 s40, s2, 3\ns_bfe_u32 s41, s2, 0x10002\ns_lshl1_add_u32 s40, s40, s41\ns_bfe_u32 s41, s2, 0x20003\ns_lshl2_add_u32 s{S_T}, s40, s41\ns_lshr_b32 s{S_CJ}, s2, 5")
    a(f"s_lshl_b32 s{S_COL}, s{S_CJ}, 5\ns_add_u32 s{S_COL}, s{S_COL}, s{S_T}")
    for d, src, n in ((S_W1, 72, 512*2752), (S_W3, 74, 512*2752), (S_W2, 76, 1376*1024), (S_OUT, 78, 2048*1024)):
        a(f"s_mov_b64 s[{d}:{d+1}], s[{src}:{src+1}]\ns_mov_b32 s{d+2}, {n}\ns_mov_b32 s{d+3}, 0x20000")
    a(f"s_mov_b32 s{S_WS+2}, 0x10000000\ns_mov_b32 s{S_WS+3}, 0x20000")
    a(f"s_add_u32 s80, s{S_WS}, {GF_EPOCH}\ns_addc_u32 s81, s{S_WS+1}, 0")
    a(f"s_lshl_b32 s40, s2, 8\ns_add_u32 s40, s40, {MBOX}\ns_add_u32 s{S_MB}, s{S_WS}, s40\ns_addc_u32 s{S_MB+1}, s{S_WS+1}, 0")
    Stamps.clear(a)

def warm(a, segs):
    if "hop" not in OPT: return
    a("s_mov_b64 exec, 0")
    for sg in segs: a(f"s_call_b64 s[0:1], hs_{sg}_0")
    a("s_mov_b64 exec, -1")

def make_tag(a):
    a(f"s_mul_i32 s{S_TAG}, s{S_TAG}, 0x9E3779B1\ns_add_u32 s{S_TAG}, s{S_TAG}, 0x7F4A7C15")

def flag_store(a, soff, level, vt):
    a(f"s_add_u32 s40, s{S_TAG}, {level}\nv_mov_b32 v{vt}, s40")
    a("s_mov_b64 exec, 1")
    a(f"buffer_store_dword v{vt}, off, {sr(S_WS)}, s{soff} {WT}")
    a("s_mov_b64 exec, -1")

def h_post(a):
    a(f"s_cmp_eq_u32 s{S_NP}, 2\ns_mov_b32 s40, 0x10000\ns_cmov_b32 s40, 0x10100\nv_mov_b32 v0, s40\nv_lshlrev_b32 v2, 13, v1")
    a("s_mov_b64 exec, 0xff")
    a(f"buffer_atomic_add v0, v2, {sr(S_WS)}, s59 offen sc1")
    a("s_mov_b64 exec, -1")

def wg_signal(a, cnt_word, n, event, vaddr, vone, vt):
    zf = a.label("zf")
    a("s_mov_b64 exec, 1")
    a(f"ds_add_rtn_u32 v{vt}, v{vaddr}, v{vone} offset:{cnt_word - MISC}\ns_mov_b64 exec, -1\ns_waitcnt lgkmcnt(0)\nv_readfirstlane_b32 s40, v{vt}")
    a(f"s_cmp_lg_u32 s40, {n - 1}\ns_cbranch_scc1 {zf}")
    a(f"s_and_b32 s43, s2, 1\ns_lshl_b32 s41, s43, 7\ns_add_u32 s41, s41, {4*event}\ns_mov_b32 s40, 1")
    a(f"s_atomic_add s40, s[{S_DBG}:{S_DBG+1}], s41 glc\ns_waitcnt lgkmcnt(0)")
    a(f"s_and_b32 s40, s40, 127\ns_cmp_lg_u32 s40, 127\ns_cbranch_scc1 {zf}")
    a(f"s_lshl_b32 s43, s43, 2\ns_add_u32 s43, s43, {MBOX + 8*event}\ns_add_u32 s40, s{S_TAG}, 1\nv_mov_b32 v{vt}, s40\nv_lshlrev_b32 v{vt+1}, 8, v1")
    for i in range(4):
        a(f"buffer_store_dword v{vt}, v{vt+1}, {sr(S_WS)}, s43 offen {WT}\ns_add_u32 s43, s43, 0x4000")
    a(f"{zf}:")

def wait_go(a, event):
    top, done = a.label("gp"), a.label("gpd")
    a(f"s_mov_b32 s41, {GSPIN}\ns_add_u32 s43, s{S_TAG}, 1")
    a(f"{top}:")
    a(f"s_load_dwordx2 s[44:45], s[{S_MB}:{S_MB+1}], {8*event} glc\ns_waitcnt lgkmcnt(0)")
    a(f"s_xor_b32 s44, s44, s43\ns_xor_b32 s45, s45, s43\ns_or_b32 s44, s44, s45\ns_cbranch_scc0 {done}")
    a(f"s_sleep {PSLEEP}\ns_sub_u32 s41, s41, 1\ns_cbranch_scc0 {top}")
    a(f"{done}:")

def level_load(a):
    a(f"s_load_dword s53, s[{S_MB}:{S_MB+1}], s54 glc")

def level_test(a, need):
    a(f"s_bitcmp1_b32 s53, {8 * need - 4}" if "nohw" not in OPT else "s_cmp_eq_u32 s2, s2")

def pair_table(a, vt, t1, t2, sx=40):
    a(f"s_and_b32 s{sx}, s{S_T}, 3\ns_lshl1_add_u32 s{sx}, s{sx}, s{S_CJ}\ns_lshl_b32 s{sx}, s{sx}, 1\ns_and_b32 s{sx}, s{sx}, 15\ns_mul_i32 s{sx+1}, s{sx}, 11\ns_lshr_b32 s{sx+1}, s{sx+1}, 4\ns_sub_u32 s{sx+1}, s{sx+1}, 32")
    a(f"v_add_u32 v{t1}, s{sx+1}, v1\nv_subrev_u32 v{t2}, 11, v{t1}\nv_min_u32 v{t1}, v{t1}, v{t2}")
    a(f"v_lshrrev_b32 v{t2}, 1, v{t1}\nv_add3_u32 v{t1}, v{t1}, v{t2}, 1\nv_min_u32 v{t1}, 15, v{t1}")
    a(f"v_add_u32 v{t2}, s{sx}, v1\nv_and_b32 v{t2}, 15, v{t2}\nv_cmp_gt_u32 vcc, 32, v1\nv_cndmask_b32 v{t1}, v{t1}, v{t2}, vcc\nv_mul_u32_u24 v{t1}, 43, v{t1}")
    a(f"v_cndmask_b32 v{t2}, 16, 27, vcc\nv_cmp_gt_u32 vcc, 16, v1\nv_cndmask_b32 v{t2}, v{t2}, 0, vcc\nv_add_u32 v{t1}, v{t1}, v{t2}\nv_lshrrev_b32 v{vt}, 4, v{t1}")

def h_wait(a, need, before=None):
    top, done = a.label("hp"), a.label("hpd")
    level_test(a, need)
    a(f"s_cbranch_scc1 {done}")
    if before: before()
    a(f"s_mov_b32 s41, {GSPIN}")
    a(f"{top}:")
    level_load(a); a("s_waitcnt lgkmcnt(0)"); level_test(a, need)
    a(f"s_cbranch_scc1 {done}\ns_sub_u32 s41, s41, 1\ns_cbranch_scc0 {top}")
    a(f"{done}:")

def mbox_off(a, dst, grp):
    a(f"s_bfe_u32 s40, s{grp}, 0x20003\ns_and_b32 s41, s{grp}, 4\ns_add_u32 s40, s40, s41\ns_and_b32 s41, s{grp}, 3\ns_lshl3_add_u32 s{dst}, s41, s40\ns_lshl_b32 s{dst}, s{dst}, 8")
    a(f"s_lshr_b32 s40, s{grp}, 5\ns_lshl2_add_u32 s{dst}, s40, s{dst}\ns_add_u32 s{dst}, s{dst}, {MBOX + 128}")

def check(a, stubs, scache, need, areg, off, vt, minof=1, before_spin=None):
    back, sl = a.label("fb"), a.label("fs")
    a(f"s_cmp_ge_u32 s{scache}, {need}")
    a(f"s_cbranch_scc0 {sl}")
    a(f"{back}:")
    stubs.append((sl, back, scache, need, areg, off, vt, minof, before_spin))

def emit_stubs(a, stubs):
    for (sl, back, sc, need, areg, off, vt, minof, before_spin) in stubs:
        a(f"{sl}:")
        if before_spin:
            a(f"ds_read_b32 v{vt}, v{areg} offset:{off}\ns_waitcnt lgkmcnt(0)\nv_readfirstlane_b32 s{sc}, v{vt}")
            a(f"s_cmp_ge_u32 s{sc}, {need}\ns_cbranch_scc1 {back}")
            before_spin()
        lds_wait_ge(a, areg, off, need, vt, sc, 41, minof=minof, sleep=1)
        a(f"s_branch {back}")

X0, ACC, AF, PD = 128, (64, 96), 32, 3

def x_setup(a):
    a(f"s_and_b32 s40, s3, 1\ns_lshl1_add_u32 s50, s{S_I}, s40\ns_lshr_b32 s41, s3, 1\ns_lshl_b32 s41, s41, 5\ns_add_u32 s50, s50, s41")
    a("s_lshl_b32 s51, s3, 15")
    a("s_lshr_b32 s41, s50, 3\ns_lshl_b32 s41, s41, 18\ns_and_b32 s42, s50, 7\ns_lshl_b32 s42, s42, 12\ns_add_u32 s56, s41, s42")
    a(f"s_lshl_b32 s40, s{S_ROT}, 8\ns_add_u32 s52, s56, s40")
    if "nors" not in OPT: a(f"s_and_b32 s63, s{S_J}, 4\ns_lshr_b32 s40, s{S_J}, 2\ns_and_b32 s40, s40, 2\ns_or_b32 s63, s63, s40")
    else: a(f"s_lshr_b32 s63, s{S_J}, 1\ns_and_b32 s63, s63, 6")
    a("v_lshrrev_b32 v20, 4, v1\nv_and_b32 v21, 15, v1\nv_xor_b32 v21, v21, v20\nv_lshlrev_b32 v21, 4, v21\nv_lshl_add_u32 v20, v20, 10, v21")
    a("s_and_b32 s40, s63, 2\ns_lshl_b32 s40, s40, 6\nv_xor_b32 v16, s40, v20\nv_xor_b32 v17, 64, v16\nv_xor_b32 v18, 0x80, v16\nv_xor_b32 v19, 0x80, v17")
    a("s_lshl_b32 s63, s63, 10")

def touch_setup(a):
    a(f"s_mul_i32 s{S_P}, s{S_J}, 43\ns_lshr_b32 s{S_P}, s{S_P}, 4\ns_lshr_b32 s40, s3, 1\ns_lshl1_add_u32 s40, s{S_ROT}, s40\ns_mul_i32 s48, s40, {64*2752}")
    a(f"s_lshl_b32 s40, s{S_P}, 6\ns_add_u32 s48, s48, s40\nv_mul_u32_u24 v44, 2752, v1")
    a(f"s_mov_b32 s14, {512*2752}\ns_mov_b32 s15, 0x20000")

def touch_issue(a, off):
    a(f"buffer_load_dword v127, v44, s[12:15], s48 offen offset:{off}")

def x_setup_late(a):
    for c in range(1, 4):
        a(f"s_add_u32 s40, s{S_ROT}, {c}\ns_and_b32 s40, s40, 3\ns_lshl_b32 s40, s40, 8\ns_add_u32 s{52+c}, s56, s40")

def x_issue(a, c, between=None):
    a(f"s_add_u32 s41, s51, {c*SLOT}" if c else "s_mov_b32 s41, s51")
    for e in range(8):
        a(f"s_xor_b32 s42, s63, {e << 10}" if e else "s_mov_b32 s42, s63")
        a("s_add_u32 m0, s41, s42\ns_lshl_b32 s42, s42, 5")
        a(f"s_add_u32 s40, s42, s{52+c}")
        a(f"buffer_load_dwordx4 v{16+(e&3)}, {sr(S_X)}, s40 offen lds")
        if between: between(e)

def epilogue_ops(acc, level):
    ev = []
    for n in range(16):
        tau, r = n // 8, n % 8
        g, u = acc + 16*tau + r, acc + 16*tau + 8 + r
        ev += [(n, 0, f"v_mul_f32 v{u}, v{g}, v{u}"), (n, 1, f"v_mul_f32 v{g}, v10, v{g}"), (n + 1, 2, f"v_exp_f32 v{g}, v{g}"),
               (n + 2, 3, f"v_fma_f32 v{g}, v{g}, v11, v11"), (n + 3, 5, f"v_rcp_f32 v{g}, v{g}"), (n + 4, 4, f"v_mul_f32 v{u}, v{u}, v{g}")]
        if r & 1: ev.append((n + 5, 6, f"v_cvt_pk_bf16_f32 v{24 + 4*tau + r // 2}, v{u-1}, v{u}"))
    ops = [o for _, _, o in sorted(ev, key=lambda t: (t[0], t[1]))]
    ops.insert(len(ops) - 6, ("ds", "ds_write_b128 v22, v[24:27]"))
    ops.insert(len(ops) - 2, f"v_mov_b32 v23, {level}")
    return ops + [("ds", "ds_write_b128 v22, v[28:31] offset:1024"), ("ds", f"ds_write_b32 v9, v23 offset:{FL_HS - MISC}")]

def HB(p): return X0 + 4*p if p < 32 else 84 + 4*(p - 32)
def h_pre(a, p): a(f"v_readlane_b32 s{68 + p % 4}, v8, {p}")
def h_load(a, p): a(f"buffer_load_dwordx4 v[{HB(p)}:{HB(p)+3}], v3, {sr(S_WS)}, s{68 + p % 4} offen {RD}")
def h_burst(a, lo, hi):
    for p in range(lo, min(lo + 3, hi)): h_pre(a, p)
    for p in range(lo, hi):
        if p + 3 < hi: h_pre(a, p + 3)
        h_load(a, p)

def g1_main(a):
    dq = DsQ(a); slow = []
    a(f"s_lshl_b32 s40, s3, 2\ns_add_u32 s40, s40, {MISC}\nv_mov_b32 v9, s40")
    a("v_lshlrev_b32 v3, 4, v1")
    a("v_and_b32 v20, 31, v1\nv_lshrrev_b32 v21, 5, v1\nv_and_b32 v22, 15, v1\nv_xor_b32 v21, v21, v22\nv_lshlrev_b32 v21, 4, v21")
    a("v_lshl_add_u32 v24, v20, 8, v21\nv_add_u32 v24, s51, v24")
    for j in range(1, 8): a(f"v_xor_b32 v{24+j}, {32*j}, v24")
    a("v_bfe_u32 v20, v1, 4, 1\nv_lshrrev_b32 v21, 5, v1\nv_bfe_u32 v22, v1, 2, 2")
    a(f"v_add_u32 v8, s{S_P}, v22\nv_and_b32 v8, 1, v8")
    a("v_lshrrev_b32 v22, 1, v22\nv_lshl_add_u32 v22, v21, 2, v22\nv_lshl_add_u32 v22, v8, 1, v22\nv_lshlrev_b32 v22, 6, v22")
    a("v_lshl_add_u32 v22, v20, 12, v22\nv_lshl_add_u32 v22, v20, 5, v22")
    a("v_and_b32 v21, 1, v1\nv_lshl_add_u32 v22, v21, 4, v22\nv_bfe_u32 v21, v1, 1, 1\nv_lshl_add_u32 v4, v21, 3, v22")
    a("v_xor_b32 v5, 128, v4\nv_xor_b32 v6, 32, v4\nv_xor_b32 v7, 160, v4")
    a("s_mov_b32 s56, 0x3f803f80\ns_mov_b32 s57, 0x00003f80\ns_mov_b32 s58, 0x3f800000")
    def reads(c):
        for j in range(8):
            r = X0 + 32*c + 4*j
            dq.op(f"ds_read_b128 v[{r}:{r+3}], v{24+j} offset:{c*SLOT}", ("x", c, j))
        a(f"v_mov_b32 v14, {c + 1}")
        dq.op(f"ds_write_b32 v9, v14 offset:{FL_FREE - MISC}")
    def sums(c, only=None):
        for j in (range(8) if only is None else [only]):
            if j % 2 == 0: dq.wait(("x", c, j + 1))
            for r in range(X0 + 32*c + 4*j, X0 + 32*c + 4*j + 4):
                first = (r == X0)
                a(f"v_dot2_f32_bf16 v10, v{r}, s56, {'0' if first else 'v10'}")
                a(f"v_dot2_f32_bf16 v11, v{r}, v{r}, {'0' if first else 'v11'}")
    wd = a.label("wd")
    if "hopm" in OPT:
        for w, segs in enumerate((["x0"], ["x1"], ["x2"], ["x3"])):
            nx = a.label("wn")
            if w < 3: a(f"s_cmp_lg_u32 s3, {w}\ns_cbranch_scc1 {nx}")
            warm(a, segs)
            if w < 3: a(f"s_branch {wd}\n{nx}:")
        a(f"{wd}:")
    x_issue(a, 1)
    Stamps.at(a, 6)
    if "hopm" in OPT: a(f";@seg x0 {HV}")
    a("s_waitcnt vmcnt(8)"); Stamps.at(a, 1); reads(0)
    x_issue(a, 2, lambda e: sums(0, e))
    a("s_waitcnt vmcnt(8)"); reads(1)
    x_issue(a, 3, lambda e: sums(1, e))
    T3L = "t3" in OPT
    if T3L: touch_issue(a, 128)
    if "hopm" in OPT: a(f";@seg x1 {HV}")
    a(f"s_waitcnt vmcnt({8 + T3L})"); reads(2); sums(2)
    a(f"s_waitcnt vmcnt({0 + T3L})"); Stamps.at(a, 2); reads(3)
    sums(3)
    a("v_mov_b32 v12, v10\nv_mov_b32 v13, v11")
    a("v_permlane32_swap_b32 v12, v10\nv_permlane32_swap_b32 v13, v11")
    a("v_add_f32 v10, v10, v12\nv_add_f32 v11, v11, v13")
    sub = Asm(); ln_scalars(sub, 10, 11, None)
    a(sub.lines[0])
    a("v_cvt_pk_bf16_f32 v31, -v10, -v10\nv_and_b32 v31, 0xffff0000, v31")
    rest = sub.lines[1:] + [f"v_mul_f32 v10, {f32(-math.log2(math.e))}, v11", "v_mul_f32 v11, v11, v11", "v_rcp_f32 v11, v11"]
    for j in range(32):
        for r in range(4):
            x = X0 + 4*j + r; t = 16 + 2*r
            a(f"v_dot2_f32_bf16 v{t}, v{x}, s57, v31\nv_dot2_f32_bf16 v{t+1}, v{x}, s58, v31")
        if j in (2, 17) and "hopm" in OPT: a(f";@seg x{2 if j == 2 else 3} {HV}")
        if j < len(rest): a(rest[j])
        for r in range(4): a(f"v_cvt_pk_bf16_f32 v{X0+4*j+r}, v{16+2*r}, v{17+2*r}")
        if j == 24: dq.op(f"ds_read_b32 v2, v9 offset:{FL_FULL - MISC}", "poll")
    PASS = "ABC"
    def base_calc(r):
        ps, q = PASS[r // 32], (r % 32) // 8
        bx, by = CELLS[(ps, "X", q)][0] * SLOT, CELLS[(ps, "Y", q)][0] * SLOT
        a(f"v_mul_i32_i24 v0, {by - bx}, v8\nv_add_u32 v0, {bx}, v0")
        return 8
    def full_check(r):
        ps, q = PASS[r // 32], (r % 32) // 8
        need_full = {"A": q + 1, "B": q + 5, "C": 0}[ps]
        if not need_full: return 0
        back, sl = a.label("g1b"), a.label("g1s")
        dq.wait("poll")
        a(f"v_readfirstlane_b32 s40, v2\ns_cmp_ge_u32 s40, {need_full}\ns_cbranch_scc0 {sl}")
        a(f"{back}:")
        slow.append((sl, back, need_full, FL_FULL))
        return 16
    def AB(r): return 12 + 4 * ((r // 8) & 1)
    def addr(r, tau):
        for i in (2*tau, 2*tau + 1): a(f"v_add_u32 v{AB(r)+i}, v0, v{4+i}")
        return 8
    def wreads(r, tau):
        j = r % 8; b = AF + 8 * (r % 4); cost = 8
        for rd in range(2):
            dq.op(f"ds_read_b64_tr_b16 v[{b+4*tau+2*rd}:{b+4*tau+2*rd+1}], v{AB(r)+2*tau+rd} offset:{512*j}", ("w", r))
        nxt = r - j + 8
        if nxt < 96:
            if j == 2 and tau == 0: cost += base_calc(nxt)
            if j == 4: cost += addr(nxt, tau)
            if j == 7 and tau == 0: cost += full_check(nxt)
            if j == 5 and tau == 0 and nxt < 64:
                dq.op(f"ds_read_b32 v2, v9 offset:{FL_FULL - MISC}", "poll"); cost += 4
        if j == 6 and tau == 1: a(f"v_mov_b32 v0, {5 + r // 8}"); cost += 4
        if j == 7 and tau == 1:
            dq.op(f"ds_write_b32 v9, v0 offset:{FL_FREE - MISC}"); cost += 4
        return cost
    a(f";@seg m1 {HM}")
    base_calc(0); addr(0, 0); addr(0, 1); full_check(0)
    for g in range(PD): wreads(g, 0); wreads(g, 1)
    Stamps.at(a, 3)
    fin2, done = a.label("g1fin2"), a.label("g1done")
    sub = Asm()
    sub(f"s_lshl_b32 s42, s3, 11\ns_add_u32 s42, s42, {HST}\nv_add_u32 v22, s42, v3\ns_movk_i32 s54, 128")
    sub(f"s_and_b32 s42, s3, 1\ns_lshl_b32 s42, s42, 5\ns_add_u32 s42, s42, s{S_T}\ns_mul_i32 s50, s42, 86")
    sub(f"s_lshr_b32 s51, s3, 1\ns_add_u32 s50, s50, s51\ns_lshl_b32 s50, s50, 10\ns_add_u32 s50, s50, {WS_H}")
    pair_table(sub, 20, 24, 25, 42)
    sub("v_lshlrev_b32 v20, 11, v20\nv_add_u32 v20, s50, v20")
    sub("v_bfe_u32 v24, v1, 2, 2\nv_lshrrev_b32 v25, 5, v1\nv_lshl_add_u32 v25, v25, 3, v24\ns_lshl_b32 s42, s51, 4\nv_add_u32 v25, s42, v25")
    sub("v_lshlrev_b32 v25, 7, v25\nv_lshrrev_b32 v24, 1, v24\nv_lshl_add_u32 v25, v24, 6, v25")
    sub("v_bfe_u32 v24, v1, 4, 1\nv_lshl_add_u32 v25, v24, 5, v25\nv_and_b32 v24, 3, v1\nv_lshl_add_u32 v21, v24, 3, v25")
    res_setup(sub, 42)
    EP = {0: [l.strip() for l in sub.lines], 1: epilogue_ops(ACC[0], 1), 2: epilogue_ops(ACC[1], 2)}
    opcost = lambda o: 8 if isinstance(o, tuple) or o.startswith(("v_exp", "v_rcp")) else 4
    def emit(o):
        if isinstance(o, tuple): dq.op(o[1])
        else: a(o)
    def step(g, extra=None):
        ps, j = g // 32, g % 32
        acc = ACC[ps & 1]; ep = EP[ps]
        b = AF + 8 * (g % 4)
        dq.wait(("w", g))
        for tau in range(2):
            d = acc + 16 * tau
            a(f"v_mfma_f32_32x32x16_bf16 v[{d}:{d+15}], v[{b+4*tau}:{b+4*tau+3}], v[{X0+4*j}:{X0+4*j+3}], " + ("0" if j == 0 else f"v[{d}:{d+15}]"))
            cost = 4 * tau
            if g + PD < 96: cost += wreads(g + PD, tau)
            if ps == 2 and j in (HSJ - 3, 26) and tau == 1:
                dq.op(f"ds_read_b32 v2, v9 offset:{FL_HSF - MISC}", "poll"); cost += 4
            if ps == 2 and j == HSJ and tau == 0:
                back, sl = a.label("g1b"), a.label("g1s")
                dq.wait("poll")
                a(f"v_readfirstlane_b32 s40, v2\ns_cmp_ge_u32 s40, 1\ns_cbranch_scc0 {sl}\n{back}:")
                slow.append((sl, back, 1, FL_HSF)); cost += 16
            if ps == 2 and j == 20 and tau == 0: level_load(a); cost += 4
            while ep and j >= 1 and cost + opcost(ep[0]) <= (GAPB if ps else 20):
                assert not (ps == 2 and isinstance(ep[0], tuple) and j < HSJ)
                o = ep.pop(0); cost += opcost(o); emit(o)
                if not ep: print("fill list", ps, "ends at step", j)
            if extra: extra(tau)
    for g in range(96 - ET):
        if g == 32: a(f";@seg m2 {HM}\ns_waitcnt vmcnt(0)")
        if "qs" in OPT and g % 8 == 0: Stamps.at(a, 1 + g // 8, True)
        step(g)
        if g % 32 == 31:
            assert not EP[g // 32]
            Stamps.at(a, 4 + g // 32)
        if g == 63:
            a(f"s_cmp_eq_u32 s{S_NP}, 2\ns_cbranch_scc1 {fin2}")
    assert not EP[2]
    if "qs" in OPT: Stamps.at(a, 13, True)
    late = a.label("g1late")
    a("v_mov_b32 v8, v20\ns_waitcnt lgkmcnt(0)\nv_readfirstlane_b32 s56, v2"); dq.q = []
    def final_ep(acc, level, need, extra=None):
        checked = False
        for n, o in enumerate(epilogue_ops(acc, level)):
            if isinstance(o, tuple) and not checked:
                back, sl = a.label("g1b"), a.label("g1s")
                a(f"s_cmp_ge_u32 s56, {need}\ns_cbranch_scc0 {sl}\n{back}:"); slow.append((sl, back, need, FL_HSF)); checked = True
            a(o[1] if isinstance(o, tuple) else o)
            if extra: extra(n)
    level_test(a, 1)
    a(f"s_cbranch_scc0 {late}")
    for p in range(3): h_pre(a, p)
    nxt = [0]
    def early(tau):
        p = nxt[0]
        if p >= B0: return
        if p + 3 < B0: h_pre(a, p + 3)
        h_load(a, p); nxt[0] += 1
    for g in range(96 - ET, 96): step(g, early)
    Stamps.at(a, 8)
    a(f";@seg m3 {HV}")
    level_load(a)
    final_ep(ACC[0], 3, 2)
    for _ in range(8): early(0)
    Stamps.at(a, 9)
    a(f"s_branch {done}")
    a(f"{late}:")
    dq.q = []
    for g in range(96 - ET, 96): step(g)
    level_load(a)
    final_ep(ACC[0], 3, 2)
    a("s_branch k_g2late")
    a(f"{fin2}:")
    a(f"v_mov_b32 v0, 16\nds_write_b32 v9, v0 offset:{FL_FREE - MISC}\ns_mov_b32 s56, 0\ns_mov_b32 s53, 0\nv_mov_b32 v8, v20")
    a("s_nop 15")
    final_ep(ACC[1], 2, 1)
    a("k_g2late:")
    a("s_waitcnt lgkmcnt(0)")
    h_wait(a, 1)
    h_burst(a, 0, B0)
    a(f"s_branch {done}")
    for (sl, back, n, word) in slow:
        a(f"{sl}:")
        lds_wait_ge(a, 9, word - MISC, n, 2, 40, 41)
        a(f"s_branch {back}")
    a(f"{done}:")

ACC2, AF2 = 52, 20

def slot_sel(a, dst, idx, slots):
    a(f"s_mov_b32 s{dst}, {slots[0]*SLOT}")
    for i in range(1, len(slots)):
        a(f"s_cmp_eq_u32 s{idx}, {i}\ns_cmov_b32 s{dst}, {slots[i]*SLOT}")

def g2_main(a):
    dq = DsQ(a); stubs = []
    TM.start(a); TM(a, "T0")
    vm = [("h", p) for p in range(B0)]
    for q in range(B0, B0 + 3): h_pre(a, q)
    a(f"s_mov_b32 s55, 0\ns_mov_b32 s57, 0\nds_read_b32 v2, v9 offset:{FL_FULL2 - MISC}")
    a("v_mov_b32 v4, v21\nv_xor_b32 v5, 64, v21\nv_add_u32 v6, 0x10000, v4\nv_add_u32 v7, 0x10000, v5\nv_add_u32 v18, 0x20000, v4\nv_add_u32 v19, 0x20000, v5")
    a("s_waitcnt lgkmcnt(0)\nv_readfirstlane_b32 s52, v2")
    Stamps.at(a, 11)
    a(f";@sp {HM}")
    AR = [4, 6, 18]
    NB = 4
    def reads(p, dl):
        c = p // 2
        if p % 2 == 0 and dl == 0: check(a, stubs, 57 if c in H3C else 52, c + 1, 9, (FL_FULL3 if c in H3C else FL_FULL2) - MISC, 2)
        base = CELLS[("w", c)][0] * SLOT + (p % 2) * 4096
        w, off = base >> 16, base & 0xffff
        b = AF2 + 8 * (p % NB)
        for rd in range(2):
            dq.op(f"ds_read_b64_tr_b16 v[{b+4*dl+2*rd}:{b+4*dl+2*rd+1}], v{AR[w]+dl} offset:{off + 512*rd}", ("w", p))
        if dl == 1 and p % 2 == 1 and 17 + c <= TB_REQ:
            a(f"v_mov_b32 v0, {17 + c}")
            dq.op(f"ds_write_b32 v9, v0 offset:{FL_FREE - MISC}")
    level_load(a)
    for p in range(PD): reads(p, 0); reads(p, 1)
    nq = [B0]
    sub = Asm()
    slot_sel(sub, 42, 3, TB)
    F = FIN
    sub(f"v_and_b32 v{F+8}, 31, v1\nv_lshrrev_b32 v{F+9}, 5, v1\nv_and_b32 v{F+10}, 7, v1\nv_xor_b32 v{F+9}, v{F+9}, v{F+10}\nv_lshlrev_b32 v{F+9}, 4, v{F+9}\nv_lshl_add_u32 v{F+8}, v{F+8}, 8, v{F+9}\nv_add_u32 v{F+8}, s42, v{F+8}")
    for g in range(1, 4): sub(f"v_xor_b32 v{F+8+g}, {32*g}, v{F+8}")
    sub(f"v_mov_b32 v{F+12}, {MISC}")
    final_setup(sub)
    unpack_res(sub, 12)
    tail = [l.strip() for l in sub.lines]
    for p in range(43):
        if p in L3TRY:
            skip = a.label("l3s")
            a(f"s_cmp_lg_u32 s55, 0\ns_cbranch_scc1 {skip}\ns_waitcnt lgkmcnt(0)")
            level_test(a, 3)
            a(f"s_cbranch_scc0 {skip}\ns_call_b64 s[46:47], k_l3burst")
            a(f"{skip}:")
        if p + LA in L3TRY + (L3P,): level_load(a)
        if p == L3P:
            skip = a.label("l3s")
            TM(a, "w3")
            a(f"s_waitcnt lgkmcnt(0)\ns_cmp_lg_u32 s55, 0\ns_cbranch_scc1 {skip}")
            h_wait(a, 3)
            a("s_call_b64 s[46:47], k_l3burst")
            a(f"{skip}:")
            TM(a, "L3")
            vm += [("h", q) for q in range(32, 43)]
        b = AF2 + 8 * (p % NB)
        a(f"s_waitcnt vmcnt({len(vm) - 1 - vm.index(('h', p))})")
        if p % 4 == 0: TM(a, f"p{p}")
        dq.wait(("w", p))
        for dl in range(2):
            d = ACC2 + 16 * dl
            a(f"v_mfma_f32_32x32x16_bf16 v[{d}:{d+15}], v[{b+4*dl}:{b+4*dl+3}], v[{HB(p)}:{HB(p)+3}], " + ("0" if p == 0 else f"v[{d}:{d+15}]"))
            if p + PD < 43: reads(p + PD, dl)
            if p >= 32:
                n = 0
                while tail and (n < 3 or tail[0].startswith("s_cmov")):
                    a(tail.pop(0)); n += 1
        if p == 41: dq.op(f"ds_read_b128 v[4:7], v{F+12} offset:{FL_FREE - MISC}", "fr")
        for _ in range(2 if p < R2 else 1):
            q = nq[0]
            if q == 16:
                TM(a, "w2"); a("s_waitcnt lgkmcnt(0)"); dq.q = []; h_wait(a, 2); TM(a, "L2")
            if q < 32:
                if q + 3 < 32: h_pre(a, q + 3)
                h_load(a, q); vm.append(("h", q))
            if q == 32:
                res_load(a, 12, 11); vm.append("r"); assert p < L3TRY[0]
            nq[0] += 1
    for o in tail: a(o)
    TM(a, "loopend")
    dq.wait("fr")
    a("v_min_u32 v4, v4, v5\nv_min3_u32 v4, v4, v6, v7\nv_readfirstlane_b32 s52, v4")
    check(a, stubs, 52, TB_REQ, F + 12, FL_FREE - MISC, 4, minof=4)
    Stamps.at(a, 14)
    for dl in range(2):
        for g in range(4):
            r = ACC2 + 16*dl + 4*g
            a(f"ds_write_b128 v{F+8+g}, v[{r}:{r+3}] offset:{128*dl}")
    TM(a, "written"); TM.park(a)
    a("s_branch k_fin2")
    a("k_l3burst:")
    h_burst(a, 32, 43)
    a("s_mov_b32 s55, 1\ns_setpc_b64 s[46:47]")
    return stubs

def res_setup(a, t=40):
    a(f"s_lshr_b32 s{t}, s3, 2\ns_lshl_b32 s{t}, s{t}, 20\ns_lshr_b32 s{t+1}, s{S_T}, 3\ns_lshl_b32 s{t+1}, s{t+1}, 18\ns_add_u32 s{t}, s{t}, s{t+1}")
    a(f"s_and_b32 s{t+1}, s{S_T}, 7\ns_lshl_b32 s{t+1}, s{t+1}, 12\ns_add_u32 s{t}, s{t}, s{t+1}\ns_and_b32 s{t+1}, s3, 3\ns_lshl_b32 s{t+1}, s{t+1}, 16\ns_add_u32 s{t}, s{t}, s{t+1}")
    a(f"s_lshl_b32 s{t+1}, s{S_CJ}, 7\ns_add_u32 s{S_RES}, s{t}, s{t+1}")

def res_load(a, dst, voff):
    a(f"v_bfe_u32 v{dst}, v1, 3, 2\nv_and_b32 v{voff}, 7, v1\nv_lshlrev_b32 v{voff}, 4, v{voff}\nv_lshl_add_u32 v{voff}, v{dst}, 10, v{voff}")
    a(f"v_lshrrev_b32 v{dst}, 5, v1\nv_lshl_add_u32 v{voff}, v{dst}, 15, v{voff}")
    a(f"buffer_load_dwordx4 v[{dst}:{dst+3}], v{voff}, {sr(S_X)}, s{S_RES} offen")

def res_issue(a, dst, voff):
    res_setup(a); res_load(a, dst, voff)

FIN, XU = 128, 144
def final_setup(a):
    F = FIN
    a("s_and_b32 s44, s3, 3\ns_lshl_b32 s44, s44, 11\ns_lshr_b32 s45, s3, 2")
    slot_sel(a, 42, 45, TB[:2]); slot_sel(a, 43, 45, TB[2:])
    a(f"v_lshrrev_b32 v{F}, 3, v1\nv_and_b32 v{F+1}, 7, v1\nv_lshlrev_b32 v{F+1}, 1, v{F+1}\nv_xor_b32 v{F+1}, v{F+1}, v{F}\nv_lshlrev_b32 v{F+1}, 4, v{F+1}")
    a(f"v_lshl_add_u32 v{F}, v{F}, 8, v{F+1}\nv_add_u32 v{F}, s44, v{F}\nv_xor_b32 v{F+1}, 16, v{F}")
    a(f"v_add_u32 v{F+4}, s42, v{F}\nv_add_u32 v{F+5}, s42, v{F+1}\nv_add_u32 v{F+6}, s43, v{F}\nv_add_u32 v{F+7}, s43, v{F+1}")
    a(f"v_add_u32 v{F+2}, {TA[1]*SLOT}, v{F}\nv_add_u32 v{F+3}, {TA[1]*SLOT}, v{F+1}\nv_add_u32 v{F}, {TA[0]*SLOT}, v{F}\nv_add_u32 v{F+1}, {TA[0]*SLOT}, v{F+1}")
    a("s_lshl_b32 s45, s45, 31\ns_or_b32 s42, s45, 0x3f800000")

def unpack_res(a, xr):
    for p in range(4):
        a(f"v_lshlrev_b32 v{XU+2*p}, 16, v{xr+p}\nv_and_b32 v{XU+2*p+1}, 0xffff0000, v{xr+p}")

def final_combine(a, xr, voff):
    final_setup(a)
    a("s_waitcnt vmcnt(0)")
    unpack_res(a, xr)
    a("k_fin2:")
    if Trace.on: a("s_memtime s[100:101]\ns_waitcnt lgkmcnt(0)\nv_writelane_b32 v100, s100, 60")
    a("s_waitcnt lgkmcnt(0)\ns_barrier")
    if Trace.on: a("s_memtime s[100:101]\ns_waitcnt lgkmcnt(0)\nv_writelane_b32 v100, s100, 61")
    R = 20
    for q in range(2):
        a(f"ds_read_b128 v[{R+4*q}:{R+4*q+3}], v{FIN+q}")
        a(f"ds_read_b128 v[{R+8+4*q}:{R+8+4*q+3}], v{FIN+2+q}")
        a(f"ds_read_b128 v[{R+16+4*q}:{R+16+4*q+3}], v{FIN+4+q}")
        a(f"ds_read_b128 v[{R+24+4*q}:{R+24+4*q+3}], v{FIN+6+q}")
    for p in range(4):
        if p % 2 == 0: a(f"s_waitcnt lgkmcnt({4 if p == 0 else 0})")
        r = R + 2*p
        a(f"v_pk_fma_f32 v[{r}:{r+1}], v[{r+8}:{r+9}], s[42:43], v[{r}:{r+1}] op_sel_hi:[1,0,1]")
        a(f"v_pk_add_f32 v[{r+16}:{r+17}], v[{r+16}:{r+17}], v[{r+24}:{r+25}]")
        a(f"v_pk_add_f32 v[{r}:{r+1}], v[{r}:{r+1}], v[{XU+2*p}:{XU+2*p+1}]")
        a(f"v_pk_add_f32 v[{r}:{r+1}], v[{r}:{r+1}], v[{r+16}:{r+17}]")
        a(f"v_cvt_pk_bf16_f32 v{xr+p}, v{r}, v{r+1}")
    a(f"buffer_store_dwordx4 v[{xr}:{xr+3}], v{voff}, {sr(S_OUT)}, s{S_RES} offen {'sc0 sc1' if 'owt' in OPT else 'nt' if 'ont' in OPT else ''}")

def loader(a):
    a(f"v_mov_b32 v2, {MISC}")
    a("v_and_b32 v16, 3, v1\nv_lshl_add_u32 v16, v16, 2, v2")
    a("v_lshrrev_b32 v8, 2, v1\nv_and_b32 v9, 3, v1\nv_lshlrev_b32 v9, 4, v9\nv_xor_b32 v10, 2, v8")
    a("v_mul_u32_u24 v8, 5504, v8\nv_mul_u32_u24 v10, 5504, v10\nv_xor_b32 v11, 32, v9")
    a("v_add_u32 v4, v8, v9\nv_add_u32 v5, v8, v11\nv_add_u32 v6, v10, v9\nv_add_u32 v7, v10, v11")
    a("v_lshrrev_b32 v8, 3, v1\nv_and_b32 v9, 7, v1\nv_bfe_u32 v10, v1, 4, 1\nv_lshlrev_b32 v10, 2, v10\nv_xor_b32 v10, v10, v9")
    a("v_lshlrev_b32 v10, 4, v10\nv_lshl_add_u32 v17, v8, 10, v10")
    for q in range(4):
        a(f"s_add_u32 s40, s{S_ROT}, {q}\ns_and_b32 s40, s40, 3\ns_mul_i32 s{44+q}, s40, {128*2752}")
    a(f"s_and_b32 s40, s{S_P}, 1\ns_mul_i32 s48, s40, 2752\ns_sub_u32 s49, 2752, s48")
    a(f"s_lshl_b32 s40, s{S_P}, 6\ns_add_u32 s48, s48, s40\ns_add_u32 s49, s49, s40")
    a(f"s_lshl_b32 s50, s{S_CJ}, 7\ns_mov_b32 s52, 0")
    pair_table(a, 18, 19, 20)
    a("v_lshlrev_b32 v18, 15, v18\nv_add_u32 v18, s50, v18\nv_lshlrev_b32 v19, 4, v1")
    Stamps.at(a, 7)
    two, w2l = a.label("ld2"), a.label("ldw2")
    if "noload" in OPT:
        a("s_waitcnt vmcnt(0)\nv_mov_b32 v3, 1"); wg_signal(a, FL_Z_CNT, 2, 0, 2, 3, 12)
        a(f"v_mov_b32 v3, 99\nds_write_b32 v16, v3 offset:{FL_FULL - MISC}\nds_write_b32 v16, v3 offset:{FL_FULL2 - MISC}\ns_branch k_ldend")
    a(f"s_cmp_eq_u32 s{S_NP}, 2\ns_cbranch_scc1 {two}")
    class Pipe:
        def __init__(s): s.items = []; s.seen = 0; s.depth = DEPTH
        def publish(s, it):
            if it[0] is None: return
            a(f"v_mov_b32 v3, {it[1]}\ns_mov_b64 exec, 15\nds_max_u32 v16, v3 offset:{it[0] - MISC}\ns_mov_b64 exec, -1")
        def probe(s, req, ok):
            a(f"s_call_b64 s[54:55], k_ldprobe\ns_cmp_ge_u32 s52, {req}\ns_cbranch_scc1 {ok}")
        def need(s, req):
            if req <= s.seen: return
            ok = a.label("ldok")
            a(f"s_cmp_ge_u32 s52, {req}\ns_cbranch_scc1 {ok}")
            for i, it in enumerate(s.items):
                if it[0] is None: continue
                s.probe(req, ok)
                a(f"s_waitcnt vmcnt({sum(x[2] for x in s.items[i+1:])})"); s.publish(it)
            lds_wait_ge(a, 2, FL_FREE - MISC, req, 12, 52, 41, minof=4, sleep=LSL)
            a(f"{ok}:")
            s.seen = req
        def done(s, word, val, cnt):
            s.items.append((word, val, cnt))
            while len(s.items) > 1 and sum(x[2] for x in s.items) > s.depth:
                it = s.items.pop(0)
                a(f"s_waitcnt vmcnt({sum(x[2] for x in s.items)})"); s.publish(it)
        def flush(s, keep=0):
            while len(s.items) > keep:
                it = s.items.pop(0)
                a(f"s_waitcnt vmcnt({sum(x[2] for x in s.items)})"); s.publish(it)
    def variant(np_):
        pp = Pipe()
        for grp in range(8):
            st, q = grp // 4, grp % 4
            if st == 0: seq = [[("A", "X", 0), ("C", "X", 64)], [("A", "Y", 0)]]
            else:       seq = [[("C", "Y", 64), ("B", "Y", 64 * (np_ - 1))], [("B", "X", 64 * (np_ - 1))]]
            if np_ == 2: seq = [[c for c in s if c[0] != "C"] for s in seq]
            tot = 0
            for si, s in enumerate(seq):
                pp.need(max([CELLS[(c[0], c[1], q)][1] for c in s] + [LGATE]))
                if grp == 4 and si == 0: lds_wait_ge(a, 2, FL_A_DONE - MISC, 2, 12, 40, 41)
                cl = s[0][1]; ci = 0 if cl == "X" else 1; cnt = 0
                for g in range(4):
                    for mat in range(2):
                        for n, (ps, _, off) in enumerate(s):
                            dst = CELLS[(ps, cl, q)][0] * SLOT + mat * 4096 + g * 1024
                            neg = dst - off < 0
                            a(f"s_mov_b32 m0, {dst if neg else dst - off}")
                            if mat == 0 and n == 0:
                                a(f"s_add_u32 s42, s{44+q}, s{48+ci}" if g == 0 else f"s_add_u32 s42, s42, {32*2752}")
                            if neg:
                                a(f"s_add_u32 s43, s42, {off}\nbuffer_load_dwordx4 v{4+2*ci+mat}, {sr(S_W1 + 4*mat)}, s43 offen lds")
                            else:
                                a(f"buffer_load_dwordx4 v{4+2*ci+mat}, {sr(S_W1 + 4*mat)}, s42 offen offset:{off} lds")
                            cnt += 1
                tot += cnt
                pp.done(FL_FULL if si == 1 else None, grp + 1, cnt)
            if grp in (1, 3, 5, 7): Stamps.at(a, 8 + grp // 2)
            if grp == 1: a(f"s_setprio {LPRIO}")
        while pp.items and pp.items[0][1] < 8:
            pp.flush(keep=len(pp.items) - 1)
        return pp
    p3 = variant(3)
    a(f"s_branch {w2l}")
    a("k_ldprobe:")
    a(f"ds_read_b128 v[12:15], v2 offset:{FL_FREE - MISC}\ns_waitcnt lgkmcnt(0)")
    a("v_min_u32 v12, v12, v13\nv_min3_u32 v12, v12, v14, v15\nv_readfirstlane_b32 s52, v12\ns_nop 0\ns_setpc_b64 s[54:55]")
    a(f"{two}:")
    p2 = variant(2)
    a(f";@seg ld2 {HV}")
    a(f"{w2l}:")
    pp = Pipe(); pp.items = [(FL_FULL, 8, 24)]; pp.seen = min(p3.seen, p2.seen); pp.depth = DEPTH2
    TL.start(a)
    a("v_lshlrev_b32 v19, 4, v1")
    staged = list(range(22 - NST, 22))
    order = [("d", c) for c in range(22) if c not in staged and c not in H3C]
    for n, c in enumerate(staged): order.insert(1 + 2 * n, ("s", c))
    order += [("w", c) for c in staged]
    for kind, c in order:
        slot, req = CELLS[("w", c)]
        ps_ = list(range(2 * c, min(2 * c + 2, 43)))
        base = 32 + 32 * (c - (22 - NST))
        if kind != "w":
            for p in ps_: a(f"v_readlane_b32 s{44 + p % 2}, v18, {p}")
            a("s_nop 1")
        if kind != "s":
            pp.need(req)
            if c % 2 == 0: TL(a, f"c{c}")
        if kind == "w":
            a(f"v_add_u32 v20, {slot*SLOT}, v19")
            for i in range(4 * len(ps_)): a(f"ds_write_b128 v20, v[{base+4*i}:{base+4*i+3}] offset:{1024*i}")
            pp.flush(); pp.publish((FL_FULL2, c + 1))
            continue
        for p in ps_:
            for g in range(4):
                if kind == "d": a(f"s_mov_b32 m0, {slot*SLOT + (p % 2)*4096 + g*1024}")
                if g: a(f"s_add_u32 s{44 + p % 2}, s{44 + p % 2}, 8192")
                r = base + 16 * (p % 2) + 4 * g
                a(f"buffer_load_dwordx4 v17, {sr(S_W2)}, s{44 + p % 2} offen lds" if kind == "d" else
                  f"buffer_load_dwordx4 v[{r}:{r+3}], v17, {sr(S_W2)}, s{44 + p % 2} offen")
        pp.done(FL_FULL2 if kind == "d" else None, c + 1, 4 * len(ps_))
    TL(a, "issued")
    pp.flush()
    TL(a, "landed"); TL.park(a)

GF, ACCE, BE = 128, 64, 32

def g_first(a, n, dt16, t0):
    st, s7, ar = t0, t0 + 1, t0 + 2
    a(f"v_and_b32 v{st}, 15, v1\ns_lshr_b32 s40, s2, 5\ns_lshl_b32 s40, s40, 6\ns_add_u32 s40, s40, {dt16}\nv_add_u32 v{st}, s40, v{st}")
    a(f"v_cvt_f32_u32 v{st}, v{st}\nv_mul_f32 v{st}, {f32(1/512)}, v{st}\nv_mul_f32 v{s7}, {f32(7.0)}, v{st}")
    a(f"v_lshrrev_b32 v{ar}, 4, v1\nv_lshl_add_u32 v{ar}, v{ar}, 1, 1\nv_cvt_f32_u32 v{ar}, v{ar}\nv_mul_f32 v{ar}, v{ar}, v{st}")
    for i in range(32):
        if i: a(f"v_add_f32 v{ar}, v{ar}, v{st if i & 1 else s7}")
        t = t0 + 4 + 2 * (i & 1); p = t0 + 4 + 2 * ((i + 1) & 1)
        a(f"v_cos_f32 v{t}, v{ar}\nv_sin_f32 v{t+1}, v{ar}")
        if i: a(f"v_cvt_pk_bf16_f32 v{GF+64*n+i-1}, v{p}, -v{p+1}")
    a(f"v_cvt_pk_bf16_f32 v{GF+64*n+31}, v{t0+6}, -v{t0+7}")

def g_second(a, nt, t=4):
    a(f"v_and_b32 v{t}, 1, v1\nv_lshlrev_b32 v{t}, 4, v{t}\nv_bfe_u32 v{t+1}, v1, 1, 1\nv_lshlrev_b32 v{t+1}, 15, v{t+1}\nv_add_u32 v{t+2}, 1, v1\nv_bfe_u32 v{t+2}, v{t+2}, 1, 1\nv_lshl_or_b32 v{t+1}, v{t+2}, 31, v{t+1}")
    for n in range(nt):
        for i in range(32):
            r = GF + 64*n + i
            a(f"v_alignbit_b32 v{r+32}, v{r}, v{r}, v{t}")
        for i in range(32):
            r = GF + 64*n + i
            a(f"v_xor_b32 v{r+32}, v{t+1}, v{r+32}")

def e_load(a, s_pi, meanwhile):
    a(f"v_mov_b32 v2, {MISC}")
    a("v_lshrrev_b32 v8, 4, v1\nv_bfe_u32 v9, v1, 2, 2\nv_xor_b32 v9, v9, v8\nv_lshlrev_b32 v5, 13, v8\nv_lshrrev_b32 v10, 1, v9\nv_lshl_add_u32 v5, v10, 12, v5")
    a("v_and_b32 v10, 1, v9\nv_lshl_add_u32 v5, v10, 6, v5\nv_and_b32 v10, 3, v1\nv_lshl_add_u32 v5, v10, 4, v5")
    a(f"s_lshl_b32 s45, s{S_T}, 7\ns_lshl_b32 s40, s{s_pi}, 18\ns_add_u32 s45, s45, s40\ns_add_u32 s45, s45, {WS_E}")
    a(f"s_lshl_b32 s40, s{s_pi}, 2\nv_add_u32 v6, s40, v2")
    for i in range(4):
        (s0, r0), (s1, r1) = CELLS[("e", 2*i)], CELLS[("e", 2*i + 1)]
        lds_wait_ge(a, 2, FL_FREE - MISC, max(r0, r1), 16, 40, 41, minof=4, sleep=1)
        TH(a, f"ld{i}")
        a(f"s_mul_i32 s46, s{s_pi}, {(s1 - s0) * SLOT}\ns_add_u32 s46, s46, {s0 * SLOT}")
        for g in range(8):
            a(f"s_add_u32 m0, s46, {g*1024}")
            a(f"s_add_u32 s42, s45, {(64*i + 4*g)*8192}")
            a(f"buffer_load_dwordx4 v5, {sr(S_WS)}, s42 offen {RD} lds")
    meanwhile()
    for i in range(4):
        a(f"s_waitcnt vmcnt({8*(3-i)})\nv_mov_b32 v3, {i+1}\nds_write_b32 v6, v3 offset:{FL_FULLE - MISC}")

def e_part(a, nt, s_dt16, TT):
    dq = DsQ(a); stubs = []
    a(f"v_mov_b32 v2, {MISC}")
    a("v_lshrrev_b32 v8, 3, v1\nv_lshlrev_b32 v9, 8, v8\nv_and_b32 v8, 3, v8\nv_lshl_add_u32 v9, v8, 6, v9")
    a("v_and_b32 v8, 3, v1\nv_lshl_add_u32 v9, v8, 4, v9\nv_bfe_u32 v8, v1, 2, 1\nv_lshl_add_u32 v4, v8, 3, v9")
    for nu in range(1, 4): a(f"v_xor_b32 v{4+nu}, {64*nu}, v4")
    a("s_mov_b32 s52, 0\ns_mov_b32 s53, 0\ns_waitcnt lgkmcnt(0)")
    AH = 7
    def reads(u):
        js, nu = u // 4, u % 4
        c = js // 2
        if u % 8 == 0: check(a, stubs, 52 + (c & 1), c // 2 + 1, 2, FL_FULLE - MISC + 4 * (c & 1), 3)
        if js % 2 == 0: a(f"v_add_u32 v{16+nu}, {CELLS[('e', c)][0]*SLOT}, v{4+nu}")
        b = BE + 4 * (u % 8)
        for rd in range(2):
            dq.op(f"ds_read_b64_tr_b16 v[{b+2*rd}:{b+2*rd+1}], v{16+nu} offset:{(js % 2)*4096 + 2048*rd}", ("e", u))
    a(f"s_setprio {EPRIO}")
    for u in range(AH): reads(u)
    for u in range(64):
        js, nu = u // 4, u % 4
        b = BE + 4 * (u % 8)
        dq.wait(("e", u))
        if u % 8 == 0: TT(a, f"u{u}")
        for n in range(nt):
            d = ACCE + 16*n + 4*nu; g = GF + 64*n + 4*js
            a(f"v_mfma_f32_16x16x32_bf16 v[{d}:{d+3}], v[{g}:{g+3}], v[{b}:{b+3}], " + ("0" if js == 0 else f"v[{d}:{d+3}]"))
        if u + AH < 64: reads(u + AH)
    a(f"s_lshr_b32 s40, s{s_dt16}, 2\nv_lshrrev_b32 v17, 4, v1\nv_add_u32 v17, s40, v17\nv_and_b32 v18, 7, v1\nv_xor_b32 v17, v17, v18\nv_lshlrev_b32 v17, 4, v17")
    a(f"v_and_b32 v16, 15, v1\nv_lshl_add_u32 v16, v16, 8, v17\nv_xor_b32 v17, 64, v16")
    a(f"v_add_u32 v18, {TA[1]*SLOT}, v16\nv_add_u32 v19, {TA[1]*SLOT}, v17\nv_add_u32 v16, {TA[0]*SLOT}, v16\nv_add_u32 v17, {TA[0]*SLOT}, v17")
    TT(a, "edone")
    lds_wait_ge(a, 2, FL_FREE - MISC, TA_REQ, 4, 40, 41, minof=4, sleep=1)
    for n in range(nt):
        for nu in range(4):
            d = ACCE + 16*n + 4*nu
            a(f"ds_write_b128 v{16+n+2*(nu >> 1)}, v[{d}:{d+3}] offset:{(nu & 1)*4096}")
    TT(a, "written"); TT.park(a)
    return stubs

def h_relay(a, level, val):
    lds_wait_ge(a, 2, FL_HS - MISC, level, 16, 40, 41, minof=4, sleep=1 if level < 3 or "hs0" not in OPT else 0)
    T3(a, f"hs{level}")
    for i in range(8): a(f"ds_read_b128 v[{32+4*i}:{35+4*i}], v24 offset:{1024*i}")
    a(f"v_mov_b32 v16, {level}\nds_write_b32 v25, v16 offset:{FL_HSF - MISC}")
    for i in range(8):
        a(f"s_waitcnt lgkmcnt({7 - i})")
        a(f"buffer_store_dwordx4 v[{32+4*i}:{35+4*i}], v26, {sr(S_WS)}, s{44 + i // 2} offen offset:{1024*(i & 1)} {WT}")
    T3(a, "st")
    if "va" in OPT:
        a(f"v_mov_b32 v16, {val}\ns_waitcnt vmcnt(0)\ns_mov_b64 exec, 0xffff")
        a(f"buffer_atomic_add v16, v27, {sr(S_WS)}, s48 offen sc1\ns_mov_b64 exec, -1")
    else:
        a(f"s_mov_b32 s56, {val}\ns_waitcnt vmcnt(0)")
        for i in range(16): a(f"s_atomic_add s56, s[58:59], {(i & 7) * 8192 + (i >> 3) * 2048}")
    T3(a, "ack")
    T3(a, "atom"); T3.park(a)

def h_relay_setup(a):
    a(f"v_mov_b32 v2, {MISC}\nv_lshlrev_b32 v26, 4, v1\nv_add_u32 v24, {HST}, v26\nv_and_b32 v25, 3, v1\nv_lshl_add_u32 v25, v25, 2, v2")
    a(f"s_lshl_b32 s49, s{S_I}, 1\ns_mul_i32 s44, s49, 86\ns_lshl1_add_u32 s44, s{S_P}, s44\ns_lshl_b32 s44, s44, 10\ns_add_u32 s44, s44, {WS_H}")
    a(f"s_add_u32 s45, s44, {86*1024}\ns_add_u32 s46, s44, {32*86*1024}\ns_add_u32 s47, s46, {86*1024}")
    mbox_off(a, 48, 49)
    a(f"s_add_u32 s58, s{S_WS}, s48\ns_addc_u32 s59, s{S_WS+1}, 0")
    a("v_and_b32 v27, 7, v1\nv_lshlrev_b32 v27, 13, v27\nv_bfe_u32 v16, v1, 3, 1\nv_lshl_add_u32 v27, v16, 11, v27\nv_bfe_u32 v16, v1, 4, 1\nv_lshl_add_u32 v27, v16, 2, v27")

def h3_refill_setup(a):
    a("v_lshrrev_b32 v8, 3, v1\nv_and_b32 v9, 7, v1\nv_bfe_u32 v10, v1, 4, 1\nv_lshlrev_b32 v10, 2, v10\nv_xor_b32 v10, v10, v9")
    a("v_lshlrev_b32 v10, 4, v10\nv_lshl_add_u32 v28, v8, 10, v10")
    pair_table(a, 29, 8, 9)
    a(f"s_lshl_b32 s40, s{S_CJ}, 7\nv_lshlrev_b32 v29, 15, v29\nv_add_u32 v29, s40, v29")

def h3_refill(a):
    prev = None
    for c in H3C:
        slot, req = CELLS[("w", c)]
        ps_ = list(range(2 * c, min(2 * c + 2, 43)))
        for p in ps_: a(f"v_readlane_b32 s{44 + p % 2}, v29, {p}")
        a("s_nop 1")
        if prev is not None:
            ok = a.label("rf")
            a(f"s_cmp_ge_u32 s52, {req}\ns_cbranch_scc1 {ok}\ns_waitcnt vmcnt(0)\nv_mov_b32 v16, {prev + 1}\nds_write_b32 v25, v16 offset:{FL_FULL3 - MISC}")
            lds_wait_ge(a, 2, FL_FREE - MISC, req, 16, 52, 41, minof=4, sleep=LSL)
            a(f"{ok}:")
        else:
            lds_wait_ge(a, 2, FL_FREE - MISC, req, 16, 52, 41, minof=4, sleep=LSL)
        for p in ps_:
            for g in range(4):
                a(f"s_mov_b32 m0, {slot*SLOT + (p % 2)*4096 + g*1024}")
                if g: a(f"s_add_u32 s{44 + p % 2}, s{44 + p % 2}, 8192")
                a(f"buffer_load_dwordx4 v28, {sr(S_W2)}, s{44 + p % 2} offen lds")
        if prev is not None:
            a(f"s_waitcnt vmcnt({4 * len(ps_)})\nv_mov_b32 v16, {prev + 1}\nds_write_b32 v25, v16 offset:{FL_FULL3 - MISC}")
        prev = c
    if prev is not None:
        a(f"s_waitcnt vmcnt(0)\nv_mov_b32 v16, {prev + 1}\nds_write_b32 v25, v16 offset:{FL_FULL3 - MISC}")

def scalar_prefetch(a):
    a(f"s_lshl3_add_u32 s40, s2, s3\ns_and_b32 s41, s40, 1023\ns_mulk_i32 s41, {11*128}\ns_min_u32 s41, s41, {512*2752 - 11*128}")
    a(f"s_cmp_lt_u32 s40, 1024\ns_cselect_b64 s[42:43], s[{S_W1}:{S_W1+1}], s[{S_W3}:{S_W3+1}]\ns_add_u32 s42, s42, s41\ns_addc_u32 s43, s43, 0")
    for i in range(11): a(f"s_load_dword s82, s[42:43], {128*i}")

def w2_touch(a):
    a(f"v_mov_b32 v2, {MISC}")
    lds_wait_ge(a, 2, FL_FULL - MISC, W2T, 16, 40, 41, sleep=4)
    a(f"v_lshlrev_b32 v4, 7, v1\ns_lshr_b32 s42, s2, 3\ns_mul_i32 s42, s42, {344*128}")
    for i in range(6):
        if i == 5: a("s_mov_b64 exec, 0xffffff")
        a(f"buffer_load_dword v10, v4, {sr(S_W2)}, s42 offen\ns_add_u32 s42, s42, 8192")
    a("s_mov_b64 exec, -1")

W2T = 8
L3P = 31
gi = lambda k, d: int([o[len(k):] for o in OPT if o.startswith(k) and o[len(k):].isdigit()][0]) if any(o.startswith(k) and o[len(k):].isdigit() for o in OPT) else d
B0 = gi("b", 8)
R2 = gi("rr", 4)
ET = gi("et", 4)
HSJ = 10
L2P = int([o[2:] for o in OPT if o.startswith("l2")][0]) if any(o.startswith("l2") for o in OPT) else 4
LR = 2 if "r2" in OPT else 1
PSTP = 13
L3TRY = (max(33 - B0 - R2, 18), 26) if "tr3" not in OPT else (21, 24, 27)
LA = 5 if "tr3" not in OPT else 3
GAPB = int([o[2:] for o in OPT if o.startswith("gb")][0]) if any(o.startswith("gb") for o in OPT) else 40
EPRIO = 2 if "ep2" in OPT else 0
DEPTH = gi("dp", 24)
DEPTH2 = int([o[2:] for o in OPT if o.startswith("d2")][0]) if any(o.startswith("d2") for o in OPT) else 16
NST = int([o[2:] for o in OPT if o.startswith("st")and o[2:].isdigit()][0]) if any(o.startswith("st") and o[2:].isdigit() for o in OPT) else 0
LSL = gi("ls", 2)
HV, HM = 256, 128
G1PRIO = gi("gp", 0)
KPRIO = 0 if "k0" in OPT else 3
LPRIO = 0 if "lp0" in OPT else 3
ZG = 3 if "zg" in OPT else 0
WG = 3 if ("wg" in OPT or "zg" in OPT) else 0
LGATE = gi("lg", 2)
XS = False
SF = WT

a = Asm()
a.begin_kernel(NAME)
a("s_cmp_ge_u32 s2, 0x100\ns_cbranch_scc1 k_end")
Stamps.at(a, 0)
if "dbgspan" in OPT or "fix" in OPT: a("s_memrealtime s[92:93]")
if Trace.on: a("s_memtime s[92:93]\ns_waitcnt lgkmcnt(0)")
a(f"s_load_dwordx2 s[{S_X}:{S_X+1}], s[0:1], 0\ns_load_dwordx2 s[{S_WR}:{S_WR+1}], s[0:1], 8\ns_load_dwordx2 s[{S_WI}:{S_WI+1}], s[0:1], 16")
a(f"s_load_dwordx8 s[72:79], s[0:1], 32\ns_load_dwordx2 s[{S_WS}:{S_WS+1}], s[0:1], 72\ns_load_dwordx2 s[{S_DBG}:{S_DBG+1}], s[0:1], 64")
code_prefetch(a, NAME, "k_end", 65536, 8, 255)
a("v_lshrrev_b32 v2, 6, v0\nv_and_b32 v1, 63, v0\nv_readfirstlane_b32 s3, v2")
a(f"s_mov_b32 s{S_X+2}, 0x200000\ns_mov_b32 s{S_X+3}, 0x20000")
ids_early(a)
a("s_cmp_ge_u32 s3, 4\ns_cbranch_scc1 k_helper")
x_setup(a)
x_setup_late(a)
touch_setup(a)
a("s_waitcnt lgkmcnt(0)\ns_barrier")
TE = 7 if "te7" in OPT else 3
def first_touch(e):
    if e == 0: a("s_bitcmp1_b32 s3, 0\ns_cselect_b64 s[12:13], s[74:75], s[72:73]")
    if e == TE and ("t1" in OPT or "t2" in OPT): touch_issue(a, 0)
    if e == TE and "t2" in OPT: touch_issue(a, 128)
x_issue(a, 0, first_touch)
a("s_branch k_main")
a("k_helper:")
a(f"s_setprio 3\ns_sub_u32 s{S_HW}, s3, 4")
a(f"v_lshlrev_b32 v4, 2, v1\nv_add_u32 v4, {MISC}, v4\nv_mov_b32 v5, 0\nds_write_b32 v4, v5")
a(f"s_mov_b32 s{S_WR+2}, {2048*514}\ns_mov_b32 s{S_WR+3}, s{S_X+3}\ns_mov_b64 s[{S_WI+2}:{S_WI+3}], s[{S_WR+2}:{S_WR+3}]")
row_setup(a, S_HW, 18*SLOT)
a("s_waitcnt lgkmcnt(0)\ns_barrier")
row_issue(a)
a(f"s_cmp_lg_u32 s{S_HW}, 1\ns_cbranch_scc1 k_now")
w_issue(a, 17*SLOT)
a("k_now:")
ids_late(a)
Stamps.at(a, 1)
a(f"s_load_dword s{S_TAG}, s[80:81], 0\ns_sub_u32 s6, s{S_HW}, 1")
def wait_rows():
    a(f"s_waitcnt vmcnt(8)\ns_cmp_eq_u32 s{S_HW}, 1\ns_cbranch_scc1 k_rows\ns_waitcnt vmcnt(0)\nk_rows:")
row_compute(a, S_HW, wait_rows)
make_tag(a)
a(f"s_cmp_eq_u32 s{S_HW}, 0\ns_cbranch_scc1 k_loader")
a(f"s_cmp_lg_u32 s{S_HW}, 3\ns_cbranch_scc1 k_h12")
z_store_all(a, 18*SLOT, SF)
a(f"s_lshl_b32 s42, s2, 8\ns_add_u32 s42, s42, {MBOX + 128}\nv_mov_b32 v14, 0\nv_mov_b32 v15, 0\ns_mov_b64 exec, 1")
a(f"buffer_store_dwordx2 v[14:15], off, {sr(S_WS)}, s42 {WT}\ns_mov_b64 exec, -1")
a("s_waitcnt vmcnt(0)")
wg_signal(a, FL_Z_CNT, 2, 0, 12, 13, 14)
Stamps.at(a, 7)
a("s_setprio 0\ns_branch k_h3")

a("k_main:")
ids_late(a)
if "sp" in OPT: scalar_prefetch(a)
g1_main(a)
st = g2_main(a)
emit_stubs(a, st)

a(";@endseg")
a("k_h12:")
a(f"s_setprio {KPRIO}")
if "nocolE" in OPT:
    res_issue(a, 12, 11); a("s_branch k_fin")
Stamps.at(a, 7)
a(f"s_cmp_lg_u32 s{S_HW}, 1\ns_cbranch_scc1 k_h2a")
w_store(a, 17*SLOT, SF)
a("k_h2a:")
col_mats(a, 6)
a(f"s_cmp_lg_u32 s{S_HW}, 1\ns_cbranch_scc1 k_h2b\ns_waitcnt vmcnt(0)")
wg_signal(a, FL_Z_CNT, 2, 0, 12, 13, 14)
Stamps.at(a, 2)
a("k_h2b:")
col_twiddles(a, 6, S_COL, 2)
col_twiddles(a, 6, S_COL, 1)
col_addrs(a)
col_offsets(a, 6, S_COL)
Stamps.at(a, 8)
a(f"s_setprio {CPRIO}")
wait_go(a, 0)
Stamps.at(a, 9)
col_z_loads(a, RD); col_w_loads(a, RD)
col_compute3(a, SF, lambda: None, 7)
Stamps.at(a, 11)
a(f"v_mov_b32 v2, {MISC}\nv_mov_b32 v3, 1")
a("s_waitcnt vmcnt(0)")
Stamps.at(a, 12)
wg_signal(a, FL_E_CNT, 2, 1, 2, 3, 14)
E2 = "e3" not in OPT
a(f"s_setprio {G1PRIO}\ns_lshl_b32 s7, s6, {5 if E2 else 4}\ns_add_u32 s55, s7, 16")
g_first(a, 0, "s7", 4)
GE = gi("ge", 1)
if GE >= 1: g_first(a, 1, "s55", 4)
if GE >= 2: g_second(a, 2, 20)
res_issue(a, 12, 11)
a(f"v_lshlrev_b32 v24, 12, v1\ns_lshl1_add_u32 s47, s{S_CJ}, s6\ns_lshl_b32 s47, s47, 17\ns_lshl_b32 s40, s{S_T}, 7\ns_add_u32 s47, s47, s40\ns_add_u32 s47, s47, {WS_E}")
if "noE" in OPT: a("s_branch k_fin")
Stamps.at(a, 13)
a(f"s_setprio {EPRIO}")
TH.start(a); TH(a, "waitE")
wait_go(a, 1)
TH(a, "goE")
a(f"s_mov_b32 exec_hi, 0\nbuffer_load_dword v25, v24, {sr(S_WS)}, s47 offen {RD}\ns_mov_b64 exec, -1")
Stamps.at(a, 14)
def meanwhile():
    if GE < 1: g_first(a, 1, "s55", 32)
    if GE < 2: g_second(a, 2, 20)
e_load(a, 6, meanwhile)
st = e_part(a, 2 if E2 else 1, 7, TH)
a("s_branch k_fin")
emit_stubs(a, st)

a(";@endseg")
a("k_h3:")
warm(a, ["m1", "m2", "ld2", "m3"])
a("s_mov_b32 s7, 32")
if not E2: g_first(a, 0, 32, 16); g_first(a, 1, 48, 16); g_second(a, 2)
if "w2t" in OPT: w2_touch(a)
wait_go(a, 0)
h_relay_setup(a)
h3_refill_setup(a)
res_issue(a, 12, 11)
a("s_setprio 3")
T3.start(a)
h_relay(a, 1, 1)
Stamps.at(a, 9)
a(f"s_sub_u32 s49, s{S_NP}, 1\ns_lshl_b32 s49, s49, 11\ns_cmp_eq_u32 s{S_NP}, 2\ns_mov_b32 s50, 0x100\ns_cmov_b32 s50, 0x10100")
for i in range(4): a(f"s_add_u32 s{44+i}, s{44+i}, s49")
h_relay(a, 2, "s50")
Stamps.at(a, 10)
a(f"s_cmp_eq_u32 s{S_NP}, 2\ns_cbranch_scc1 k_h3e")
for i in range(4): a(f"s_sub_u32 s{44+i}, s{44+i}, 2048")
h_relay(a, 3, 0x10000)
a("k_h3e:")
Stamps.at(a, 14)
h3_refill(a)
st = [] if E2 else e_part(a, 2, 7, T3)
a("s_branch k_fin")
emit_stubs(a, st)

a("k_loader:")
loader(a)
a("k_ldend:")
res_issue(a, 12, 11)
a("k_fin:")
final_combine(a, 12, 11)
a("s_xor_b32 s40, s3, 5\ns_or_b32 s40, s40, s2\ns_cmp_lg_u32 s40, 0\ns_cbranch_scc1 k_dump")
a(f"s_mov_b32 s42, {GF_EPOCH}")
flag_store(a, 42, 0, 4)
a("k_dump:")
if "fix" in OPT:
    a("k_fx:\ns_memrealtime s[94:95]\ns_waitcnt lgkmcnt(0)\ns_sub_u32 s94, s94, s92\ns_cmp_lt_u32 s94, 4000\ns_cbranch_scc1 k_fx")
if "dbgspan" in OPT:
    a("s_waitcnt vmcnt(0)\ns_memrealtime s[94:95]\ns_waitcnt lgkmcnt(0)\ns_cmp_lg_u32 s3, 0\ns_cbranch_scc1 k_end")
    a("s_and_b32 s92, s92, 0xffffff\ns_and_b32 s94, s94, 0xffffff\ns_sub_u32 s93, 0xffffff, s92\ns_sub_u32 s95, s94, s92")
    for i, r in enumerate((93, 94, 92, 95)):
        a(f"s_atomic_umax s{r}, s[{S_DBG}:{S_DBG+1}], {16 + 4*i}")
    a("s_waitcnt lgkmcnt(0)")
if Stamps.on: a("s_waitcnt vmcnt(0)")
Stamps.dump(a, 0)
if Trace.on: a("s_waitcnt vmcnt(0)")
Trace.dump(a)
import json
if Trace.on: json.dump(Trace.names, open(sys.argv[1][:-2] + ".json", "w"))
a(";@endseg")
a("k_end:\ns_endpgm")
a("k_hopret:\ns_waitcnt lgkmcnt(0)\ns_setpc_b64 s[0:1]")
a.add_kernel(NAME, 256); a.add_launch(NAME, 256, 512, LDS_BYTES)
txt = a.text(header=HEADER, single=True)
if "hop" in OPT:
    txt, nh_ = hop_pass(txt, "k_hopret"); print("hop sites", nh_)
if "noal" not in OPT: txt, nw_, np_ = align_pass(txt)
open(sys.argv[1], "w").write(txt)
print("nops", a.nops_added, CELLS if "v" in OPT else "")
```

```python
from pieces import *

def row_setup(a, s_hw, lds_rows):
    a("s_lshr_b32 s40, s2, 3\ns_and_b32 s41, s2, 3\ns_bfe_u32 s42, s2, 0x10002\ns_lshl1_add_u32 s41, s41, s42\ns_lshl_b32 s62, s41, 5\ns_add_u32 s62, s62, s40")
    a(f"s_lshl2_add_u32 s42, s41, s{s_hw}\ns_lshl_b32 s42, s42, 5\ns_add_u32 s42, s42, s40\ns_lshl_b32 s42, s42, 10")
    a(f"s_lshl_b32 s44, s{s_hw}, 11\ns_add_u32 s44, s44, {lds_rows}\ns_mov_b32 m0, s44")
    a("v_lshlrev_b32 v2, 4, v1\ns_add_u32 s43, s42, 0x100000")

def row_issue(a):
    a(f"buffer_load_dwordx4 v2, {sr(S_X)}, s42 offen lds")
    a("s_add_u32 m0, s44, 1024")
    a(f"buffer_load_dwordx4 v2, {sr(S_X)}, s43 offen lds")

def w_setup(a):
    a("s_bfe_u32 s45, s2, 0x20003\ns_and_b32 s46, s2, 3\ns_bfe_u32 s47, s2, 0x10002\ns_bfe_u32 s48, s2, 0x20005\ns_lshr_b32 s49, s2, 7")
    a("s_lshl2_add_u32 s50, s47, s46\ns_lshl_b32 s50, s50, 2\ns_lshl3_add_u32 s50, s50, s48\ns_lshl3_add_u32 s50, s50, s49")
    a("s_mulk_i32 s50, 514\ns_lshl_b32 s51, s45, 7\ns_add_u32 s50, s50, s51\ns_add_u32 s50, s50, 2")
    a("v_lshrrev_b32 v3, 5, v1\nv_bfe_u32 v4, v1, 3, 2\nv_lshl_add_u32 v3, v3, 4, v4\nv_mul_u32_u24 v3, 1028, v3\nv_and_b32 v4, 7, v1\nv_lshl_add_u32 v3, v4, 4, v3")

def w_issue(a, lds_w, setup=True):
    if setup: w_setup(a)
    for r in range(4):
        a(f"s_mov_b32 m0, {lds_w + 1024*r}")
        if r: a(f"s_add_u32 s50, s50, {64*514}")
        a(f"buffer_load_dwordx4 v3, {sr(S_WR)}, s50 offen lds")
        a(f"s_mov_b32 m0, {lds_w + 4096 + 1024*r}")
        a(f"buffer_load_dwordx4 v3, {sr(S_WI)}, s50 offen lds")

def w_store(a, lds_w, st_flags, between=None):
    a(f"v_lshrrev_b32 v5, 3, v1\nv_and_b32 v3, 7, v1\nv_lshlrev_b32 v4, 7, v3\nv_lshl_add_u32 v4, v5, 1, v4\nv_add_u32 v4, {lds_w}, v4")
    a("v_lshlrev_b32 v5, 13, v5\nv_lshl_add_u32 v5, v3, 4, v5")
    a("s_lshl_b32 s60, s45, 19\ns_lshl_b32 s61, s49, 12\ns_add_u32 s60, s60, s61\ns_lshl_b32 s61, s46, 10\ns_add_u32 s60, s60, s61")
    a(f"s_lshl_b32 s61, s47, 9\ns_add_u32 s60, s60, s61\ns_lshl_b32 s61, s48, 7\ns_add_u32 s60, s60, s61\ns_add_u32 s50, s60, {WS_WT}")
    a("s_waitcnt vmcnt(0)")
    def rd(n):
        for r in range(4):
            a(f"ds_read_u16 v{32+8*n+r}, v4 offset:{1024*r + 16*n}\nds_read_u16 v{36+8*n+r}, v4 offset:{4096 + 1024*r + 16*n}")
    def st(n): a(f"buffer_store_dwordx4 v[{32+8*n}:{35+8*n}], v5, {sr(S_WS)}, s50 offen {st_flags}\ns_add_u32 s50, s50, 0x10000")
    rd(0)
    for n in range(8):
        a("s_waitcnt lgkmcnt(4)")
        if n < 7: rd(n + 1)
        else: a(f"s_mov_b64 exec, 1\nds_add_u32 v12, v13 offset:{FL_A_DONE - MISC}\ns_mov_b64 exec, -1")
        a(f"s_waitcnt lgkmcnt({8 if n < 7 else 0})")
        for r in range(4): a(f"v_lshl_or_b32 v{32+8*n+r}, v{36+8*n+r}, 16, v{32+8*n+r}")
        if not between: st(n)
    if between:
        between()
        for n in range(8): st(n)

ZR = 96
def z_store(a, s_half, lds_rows, st_flags, between=None):
    a(f"v_and_b32 v4, 1, v1\nv_lshrrev_b32 v5, 1, v1\nv_lshlrev_b32 v4, 10, v4\nv_lshl_add_u32 v4, v5, 2, v4\ns_lshl_b32 s52, s{s_half}, 9\ns_add_u32 s52, s52, {lds_rows}\nv_add_u32 v4, s52, v4\nv_add_u32 v5, 128, v4")
    a(f"s_lshl_b32 s52, s62, 13\ns_lshl_b32 s63, s{s_half}, 12\ns_add_u32 s52, s52, s63\ns_add_u32 s52, s52, {WS_Z}")
    lds_wait_ge(a, 12, FL_BAR_A - MISC, 4, 18, 61, 63)
    Stamps.at(a, 6)
    for e in range(4):
        a(f"ds_read2st64_b32 v[{ZR+4*e}:{ZR+1+4*e}], v{4 + (e & 1)} offset0:{e >> 1} offset1:{(e >> 1) + 8}")
        a(f"ds_read2st64_b32 v[{ZR+2+4*e}:{ZR+3+4*e}], v{4 + (e & 1)} offset0:{(e >> 1) + 16} offset1:{(e >> 1) + 24}")
    if between:
        a("s_waitcnt lgkmcnt(0)"); between()
    for e in range(4):
        if not between: a(f"s_waitcnt lgkmcnt({6 - 2*e})")
        a(f"buffer_store_dwordx4 v[{ZR+4*e}:{ZR+3+4*e}], v2, {sr(S_WS)}, s52 offen offset:{1024*e} {st_flags}")

def row_compute(a, s_hw, wait_rows):
    N, Q4, FU, ARG, STEP = 4, 5, 6, 7, 8
    B1, TC, TS, A2, CM = 16, 32, 40, 48, 9
    a(f"v_and_b32 v{N}, 15, v1")
    a(f"v_lshrrev_b32 v{Q4}, 4, v1\nv_lshlrev_b32 v{Q4}, 2, v{Q4}\nv_cvt_f32_u32 v{Q4}, v{Q4}")
    a(f"v_add_u32 v{FU}, 1, v{N}\nv_cvt_f32_u32 v{FU}, v{FU}")
    a(f"v_mul_f32 v{STEP}, {f32(1/32)}, v{FU}")
    a(f"v_mul_f32 v{ARG}, v{Q4}, v{STEP}")
    C0, S0 = 52, 60
    for j in range(8):
        if j == 4: a(f"v_mul_f32 v10, {f32(13.0)}, v{STEP}\nv_add_f32 v{ARG}, v{ARG}, v10")
        elif j: a(f"v_add_f32 v{ARG}, v{ARG}, v{STEP}")
        a(f"v_cos_f32 v{C0+j}, v{ARG}\nv_sin_f32 v{S0+j}, v{ARG}")
    for jj in range(4):
        a(f"v_cvt_pk_bf16_f32 v{B1+jj}, v{C0+2*jj}, v{C0+2*jj+1}")
        a(f"v_cvt_pk_bf16_f32 v{B1+4+jj}, -v{S0+2*jj}, -v{S0+2*jj+1}")
    for jj in range(8): a(f"v_xor_b32 v{B1+8+jj}, 0x80000000, v{B1+jj}")
    for tau in range(2):
        if tau: a(f"v_add_f32 v{FU}, {f32(16.0)}, v{FU}")
        a(f"v_mul_f32 v{STEP}, {f32(1/512)}, v{FU}\nv_mul_f32 v{ARG}, v{Q4}, v{STEP}")
        for r in range(4):
            if r: a(f"v_add_f32 v{ARG}, v{ARG}, v{STEP}")
            a(f"v_cos_f32 v{TC+4*tau+r}, v{ARG}\nv_sin_f32 v{TS+4*tau+r}, v{ARG}")
    a(f"v_lshrrev_b32 v{STEP}, 1, v{N}\nv_cvt_f32_u32 v{STEP}, v{STEP}\nv_mul_f32 v{STEP}, {f32(1/16)}, v{STEP}")
    a(f"v_and_b32 v{ARG}, 1, v{N}\nv_cvt_f32_u32 v{ARG}, v{ARG}\nv_mul_f32 v{ARG}, {f32(0.25)}, v{ARG}")
    a(f"v_fma_f32 v{ARG}, v{Q4}, v{STEP}, v{ARG}")
    for r in range(4):
        if r: a(f"v_add_f32 v{ARG}, v{ARG}, v{STEP}")
        a(f"v_cos_f32 v{C0+r}, v{ARG}\nv_sin_f32 v{S0+r}, v{ARG}")
    for jj in range(2):
        a(f"v_cvt_pk_bf16_f32 v{A2+jj}, v{C0+2*jj}, v{C0+2*jj+1}")
        a(f"v_cvt_pk_bf16_f32 v{A2+2+jj}, v{S0+2*jj}, v{S0+2*jj+1}")
    a(f"v_cmp_eq_u32 vcc, 15, v{N}\nv_mov_b32 v{CM}, {f32(32.0)}\nv_cndmask_b32 v{CM}, 0, v{CM}, vcc")
    a("s_mov_b32 s53, 0x3f803f80")
    a("v_lshlrev_b32 v10, 3, v1\nv_add_u32 v10, s44, v10")
    a(f"v_lshrrev_b32 v11, 4, v1\nv_lshlrev_b32 v11, 6, v11\nv_add_u32 v11, v11, v{N}\nv_lshlrev_b32 v11, 2, v11\nv_add_u32 v11, s44, v11")
    XF = 52
    Stamps.at(a, 3)
    wait_rows()
    Stamps.at(a, 4)
    for al in range(2):
        a(f"ds_read_b64_tr_b16 v[{XF+4*al}:{XF+4*al+1}], v10 offset:{1024*al}")
        a(f"ds_read_b64_tr_b16 v[{XF+4*al+2}:{XF+4*al+3}], v10 offset:{1024*al+512}")
    D1, SU = 92, 12
    a("s_waitcnt lgkmcnt(0)")
    for j in range(4):
        for al in range(2):
            c1 = "0" if j == 0 else f"v{SU+2*al}"
            c2 = "0" if j == 0 else f"v{SU+2*al+1}"
            a(f"v_dot2_f32_bf16 v{SU+2*al}, v{XF+4*al+j}, s53, {c1}")
            a(f"v_dot2_f32_bf16 v{SU+2*al+1}, v{XF+4*al+j}, v{XF+4*al+j}, {c2}")
    mf = []
    for al in range(2):
        for tau in range(2):
            for ri in range(2):
                d = D1 + 16*al + 8*tau + 4*ri
                mf.append(f"v_mfma_f32_16x16x32_bf16 v[{d}:{d+3}], v[{XF+4*al}:{XF+4*al+3}], v[{B1+8*tau+4*ri}:{B1+8*tau+4*ri+3}], 0")
    for n, m in enumerate(("row_ror:8 row_mask:0xf", "row_ror:4 row_mask:0xf", "row_ror:2 row_mask:0xf", "row_ror:1 row_mask:0xf",
              "row_bcast:15 row_mask:0xa", "row_bcast:31 row_mask:0xc")):
        a(mf[n])
        for q in range(4): a(f"v_add_f32_dpp v{SU+q}, v{SU+q}, v{SU+q} {m} bank_mask:0xf")
    a(mf[6]); a(mf[7])
    sub = [Asm(), Asm()]
    for al in range(2): ln_scalars(sub[al], SU+2*al, SU+2*al+1, None)
    for l0, l1 in zip(sub[0].lines, sub[1].lines): a(l0); a(l1)
    for al in range(2):
        a(f"v_readlane_b32 s{54+al}, v{SU+2*al}, 63\nv_readlane_b32 s{56+2*al}, v{SU+2*al+1}, 63")
    UF, T0 = 60, 76
    for al in range(2):
        for r in range(4):
            d = D1 + 16*al + 8 + r
            a(f"v_fma_f32 v{d}, -v{CM}, s{54+al}, v{d}")
    mf = []
    for al in range(2):
        for tau in range(2):
            re, im = D1 + 16*al + 8*tau, D1 + 16*al + 8*tau + 4
            for p in range(2):
                c, s = TC + 4*tau + 2*p, TS + 4*tau + 2*p
                tr, ti = T0 + 4*p, T0 + 4*p + 2
                for e in range(2): a(f"v_mul_f32 v{tr+e}, v{re+2*p+e}, v{c+e}\nv_mul_f32 v{ti+e}, v{im+2*p+e}, v{c+e}")
                for e in range(2): a(f"v_fma_f32 v{tr+e}, v{im+2*p+e}, v{s+e}, v{tr+e}\nv_fma_f32 v{ti+e}, -v{re+2*p+e}, v{s+e}, v{ti+e}")
            u = UF + 8*al + 4*tau
            for p in range(2):
                a(f"v_cvt_pk_bf16_f32 v{u+p}, v{T0+4*p}, v{T0+4*p+1}")
                a(f"v_cvt_pk_bf16_f32 v{u+2+p}, v{T0+4*p+2}, v{T0+4*p+3}")
            d = D1 + 16*al + 8*tau
            mf.append(f"v_mfma_f32_16x16x32_bf16 v[{d}:{d+3}], v[{A2}:{A2+3}], v[{u}:{u+3}], 0")
    for i in (0, 2, 1, 3): a(mf[i])
    a(f"v_mov_b32 v12, {MISC}\nv_mov_b32 v13, 1")
    for tau in range(2):
        for vl in range(2):
            d0, d1 = D1 + 8*tau + 2*vl, D1 + 16 + 8*tau + 2*vl
            t = T0 + 8 * vl
            for e in range(2): a(f"v_mul_f32 v{d0+e}, s56, v{d0+e}")
            for e in range(2): a(f"v_fma_f32 v{t+e}, v{d1+e}, s58, v{d0+e}\nv_fma_f32 v{t+2+e}, -v{d1+e}, s58, v{d0+e}")
            a(f"v_cvt_pk_bf16_f32 v{t+4}, v{t}, v{t+1}\nv_cvt_pk_bf16_f32 v{t+5}, v{t+2}, v{t+3}")
            a(f"ds_write_b32 v11, v{t+4} offset:{64*tau + 128*vl}")
            a(f"ds_write_b32 v11, v{t+5} offset:{64*tau + 128*vl + 1024}")
    Stamps.at(a, 5)
    a("s_mov_b64 exec, 1")
    a(f"ds_add_u32 v12, v13 offset:{FL_BAR_A - MISC}")
    a("s_mov_b64 exec, -1")

def col_loads2(a, s_pi, s_k1, ld_flags):
    a(f"s_lshl_b32 s60, s{s_k1}, 5\ns_lshl_b32 s61, s{s_pi}, 4\ns_add_u32 s60, s60, s61\ns_add_u32 s60, s60, {WS_Z}")
    for t in range(4):
        a(f"buffer_load_dwordx4 v[{CF_Z+4*t}:{CF_Z+4*t+3}], v14, {sr(S_WS)}, s60 offen {ld_flags}")
        if t < 3: a(f"s_add_u32 s60, s60, {64*8192}")
    a(f"s_lshl_b32 s60, s{s_k1}, 13\ns_lshl_b32 s61, s{s_pi}, 12\ns_add_u32 s60, s60, s61\ns_add_u32 s61, s60, {WS_WT}")
    for t in range(4):
        a(f"buffer_load_dwordx4 v[{CF_W+4*t}:{CF_W+4*t+3}], v15, {sr(S_WS)}, s61 offen offset:{1024*t} {ld_flags}")

def col_addrs(a):
    a("v_bfe_u32 v13, v1, 2, 1\nv_lshlrev_b32 v14, 4, v13\nv_bfe_u32 v13, v1, 3, 2\nv_lshl_add_u32 v14, v13, 2, v14")
    a("v_and_b32 v13, 0x23, v1\nv_add_u32 v14, v14, v13\nv_lshlrev_b32 v14, 13, v14\nv_lshlrev_b32 v15, 4, v1")
    a("v_bfe_u32 v12, v1, 3, 2\nv_lshlrev_b32 v12, 10, v12\nv_lshrrev_b32 v13, 5, v1\nv_lshl_add_u32 v12, v13, 9, v12\nv_and_b32 v13, 7, v1\nv_lshl_add_u32 v12, v13, 4, v12")

def col_store2(a, st_flags):
    AR, AI, U = CF_AR, CF_AI, CF_Z
    a(f"s_add_u32 s60, s60, {WS_E}")
    for q in range(4):
        for ri, acc in enumerate((AR, AI)):
            for p in range(2):
                a(f"v_cvt_pk_bf16_f32 v{U+4*q+2*ri+p}, v{acc+4*q+2*p}, v{acc+4*q+2*p+1}")
        a(f"buffer_store_dwordx4 v[{U+4*q}:{U+4*q+3}], v12, {sr(S_WS)}, s60 offen offset:{128*q} {st_flags}")

CA, CB, CD = 128, 160, 184
T1C, T1S, T2C, T2S = 16, 32, 48, 64
CZ, CW, CAR, CAI, CT = 80, 96, 208, 224, 112

def _lane_ids(a, s_pi, L, H, C, t):
    a(f"v_bfe_u32 v{t}, v1, 2, 1\nv_lshlrev_b32 v{L}, 4, v{t}\nv_bfe_u32 v{t}, v1, 3, 2\nv_lshl_add_u32 v{L}, v{t}, 2, v{L}")
    a(f"v_and_b32 v{t}, 3, v1\nv_add_u32 v{L}, v{L}, v{t}")
    a(f"v_lshl_add_u32 v{C}, v{L}, 1, s{s_pi}\nv_cvt_f32_u32 v{C}, v{C}\nv_cvt_f32_u32 v{L}, v{L}")
    a(f"v_lshrrev_b32 v{H}, 5, v1\nv_cvt_f32_u32 v{H}, v{H}")

def col_mats(a, s_pi):
    L, H, C, ARG, STEP, X, tc, ts = 240, 241, 242, 243, 244, 245, 246, 248
    _lane_ids(a, s_pi, L, H, C, X)
    a(f"v_mul_f32 v{STEP}, {f32(1/64)}, v{C}\nv_mul_f32 v{ARG}, 4.0, v{H}\nv_mul_f32 v{ARG}, v{ARG}, v{STEP}\nv_mul_f32 v{X}, {f32(5.0)}, v{STEP}")
    pend = []
    for t in range(4):
        for i in range(4):
            if i: a(f"v_add_f32 v{ARG}, v{ARG}, v{STEP}")
            elif t: a(f"v_add_f32 v{ARG}, v{ARG}, v{X}")
            a(f"v_cos_f32 v{tc+(i&1)}, v{ARG}\nv_sin_f32 v{ts+(i&1)}, v{ARG}")
            for o in pend: a(o)
            pend = [f"v_cvt_pk_bf16_f32 v{CA+8*t+i}, v{tc+(i&1)}, v{ts+(i&1)}", f"v_cvt_pk_bf16_f32 v{CA+8*t+4+i}, -v{ts+(i&1)}, v{tc+(i&1)}"]
    for o in pend: a(o)
    a(f"v_mul_f32 v{H}, {f32(16.0)}, v{H}")
    def mat(base):
        for R in range(16):
            if R: a(f"v_add_f32 v{ARG}, v{ARG}, v{STEP}")
            a(f"v_sin_f32 v{ts+(R&1)}, v{ARG}\nv_cos_f32 v{tc+(R&1)}, v{ARG}")
            if R & 1:
                a(f"v_cvt_pk_bf16_f32 v{base+8+(R>>1)}, v{ts}, v{ts+1}")
                a(f"v_cvt_pk_bf16_f32 v{base+(R>>1)}, v{tc}, v{tc+1}")
                a(f"v_xor_b32 v{base+16+(R>>1)}, 0x80008000, v{base+8+(R>>1)}")
    a(f"v_mul_f32 v{STEP}, {f32(1/32)}, v{L}\nv_mul_f32 v{ARG}, v{H}, v{STEP}")
    mat(CB)
    a(f"v_cvt_f32_u32 v{X}, s{s_pi}\nv_fma_f32 v{H}, 0.5, v{X}, v{H}")
    a(f"v_and_b32 v{X}, 31, v1\nv_cvt_f32_u32 v{X}, v{X}\nv_mul_f32 v{STEP}, {f32(1/32)}, v{X}\nv_mul_f32 v{ARG}, v{H}, v{STEP}")
    mat(CD)

def col_twiddles(a, s_pi, s_k1, which):
    L, H, C, ARG, STEP, X = 240, 241, 242, 243, 244, 245
    def tw(cb, sb):
        for R in range(16):
            if R: a(f"v_add_f32 v{ARG}, v{ARG}, v{STEP}")
            a(f"v_cos_f32 v{cb+R}, v{ARG}\nv_sin_f32 v{sb+R}, v{ARG}")
    if which == 2:
        a(f"v_mul_f32 v{STEP}, {f32(1/1024)}, v{L}\nv_mul_f32 v{ARG}, v{H}, v{STEP}")
        tw(T2C, T2S)
        a(f"s_cmp_eq_u32 s{s_k1}, 255\ns_mov_b32 s62, {f32(2/(2048*512))}\ns_cmov_b32 s62, {f32(1/(2048*512))}")
        for R in range(32): a(f"v_mul_f32 v{T2C+R}, s62, v{T2C+R}")
    else:
        a(f"v_floor_f32 v{X}, v{H}\nv_mul_f32 v{STEP}, {f32(1/2048)}, v{C}\nv_mul_f32 v{ARG}, v{X}, v{STEP}")
        tw(T1C, T1S)

def col_w_loads(a, ld_flags):
    for t in range(4):
        a(f"buffer_load_dwordx4 v[{CW+4*t}:{CW+4*t+3}], v15, {sr(S_WS)}, s61 offen offset:{1024*t} {ld_flags}")

def col_offsets(a, s_pi, s_k1):
    a(f"s_lshl_b32 s59, s{s_k1}, 5\ns_lshl_b32 s61, s{s_pi}, 4\ns_add_u32 s59, s59, s61\ns_add_u32 s59, s59, {WS_Z}")
    a(f"s_lshl_b32 s60, s{s_k1}, 13\ns_lshl_b32 s61, s{s_pi}, 12\ns_add_u32 s60, s60, s61\ns_add_u32 s61, s60, {WS_WT}")

def col_z_loads(a, ld_flags):
    for t in range(4):
        a(f"buffer_load_dwordx4 v[{CZ+4*t}:{CZ+4*t+3}], v14, {sr(S_WS)}, s59 offen {ld_flags}")
        if t < 3: a(f"s_add_u32 s59, s59, {64*8192}")

def col_compute3(a, st_flags, late_w, zw=3):
    AR, AI, U, T = CAR, CAI, CZ, CT
    def mf(d, x, y, first):
        a(f"v_mfma_f32_32x32x16_bf16 v[{d}:{d+15}], v[{x}:{x+3}], v[{y}:{y+3}], " + ("0" if first else f"v[{d}:{d+15}]"))
    def cmul(cb, sb, conj):
        n1, n2 = ("-", "") if conj else ("", "-")
        for p in range(8):
            c, s = cb + 2*p, sb + 2*p
            tr, ti = T + 4*(p & 1), T + 4*(p & 1) + 2
            re, im = AR + 2*p, AI + 2*p
            for e in range(2): a(f"v_mul_f32 v{tr+e}, v{re+e}, v{c+e}\nv_mul_f32 v{ti+e}, v{im+e}, v{c+e}")
            for e in range(2): a(f"v_fma_f32 v{tr+e}, {n1}v{im+e}, v{s+e}, v{tr+e}\nv_fma_f32 v{ti+e}, {n2}v{re+e}, v{s+e}, v{ti+e}")
            a(f"v_cvt_pk_bf16_f32 v{U+p}, v{tr}, v{tr+1}\nv_cvt_pk_bf16_f32 v{U+8+p}, v{ti}, v{ti+1}")
    for t in range(4):
        a(f"s_waitcnt vmcnt({zw - t})")
        mf(AR, CZ + 4*t, CA + 8*t, t == 0); mf(AI, CZ + 4*t, CA + 8*t + 4, t == 0)
    cmul(T1C, T1S, False)
    C, S, N = CB, CB + 8, CB + 16
    for t in range(2):
        mf(AR, C + 4*t, U + 4*t, t == 0); mf(AI, N + 4*t, U + 4*t, t == 0)
        mf(AR, S + 4*t, U + 8 + 4*t, False); mf(AI, C + 4*t, U + 8 + 4*t, False)
    late_w()
    a("s_waitcnt vmcnt(0)")
    for r in range(16): a(f"v_lshlrev_b32 v{T1C+r}, 16, v{CW+r}\nv_and_b32 v{T1S+r}, 0xffff0000, v{CW+r}")
    cmul(T1C, T1S, True)
    for (C, S, N, last) in ((CB, CB + 8, CB + 16, False), (CD, CD + 8, CD + 16, True)):
        for t in range(2):
            mf(AR, U + 4*t, C + 4*t, t == 0); mf(AI, U + 4*t, S + 4*t, t == 0)
            mf(AR, U + 8 + 4*t, N + 4*t, False); mf(AI, U + 8 + 4*t, C + 4*t, False)
        if not last: cmul(T2C, T2S, True)
    a(f"s_add_u32 s60, s60, {WS_E}")
    for q in range(4):
        for e in range(4): a(f"v_cvt_pk_bf16_f32 v{U+4*q+e}, v{AR+4*q+e}, v{AI+4*q+e}")
        a(f"buffer_store_dwordx4 v[{U+4*q}:{U+4*q+3}], v12, {sr(S_WS)}, s60 offen offset:{128*q} {st_flags}")

def z_store_all(a, lds_rows, st_flags):
    a(f"v_and_b32 v4, 1, v1\nv_lshrrev_b32 v5, 1, v1\nv_lshlrev_b32 v4, 10, v4\nv_lshl_add_u32 v4, v5, 2, v4\nv_add_u32 v4, {lds_rows}, v4\nv_add_u32 v5, 128, v4")
    a(f"s_lshl_b32 s52, s62, 13\ns_add_u32 s52, s52, {WS_Z}\ns_add_u32 s53, s52, 4096")
    lds_wait_ge(a, 12, FL_BAR_A - MISC, 4, 18, 61, 63)
    Stamps.at(a, 6)
    def rd(e):
        a(f"ds_read2st64_b32 v[{32+4*e}:{33+4*e}], v{4 + (e & 1)} offset0:{e >> 1} offset1:{(e >> 1) + 8}")
        a(f"ds_read2st64_b32 v[{34+4*e}:{35+4*e}], v{4 + (e & 1)} offset0:{(e >> 1) + 16} offset1:{(e >> 1) + 24}")
    for e in range(7): rd(e)
    a("s_waitcnt lgkmcnt(12)"); rd(7)
    for e in range(8):
        a(f"s_waitcnt lgkmcnt({14 - 2*e})")
        a(f"buffer_store_dwordx4 v[{32+4*e}:{35+4*e}], v2, {sr(S_WS)}, s{52 + e // 4} offen offset:{1024*(e % 4)} {st_flags}")
    a(f"s_mov_b64 exec, 1\nds_add_u32 v12, v13 offset:{FL_A_DONE - MISC}\ns_mov_b64 exec, -1")

IB1, ITC, ITS, IB2, IL, IP, ID, IU, IY, IT = 16, 20, 28, 36, 52, 68, 128, 84, 192, 116

def irow_consts(a, s_pi=None):
    N, Q, ARG, STEP, c, s = 4, 5, 6, 7, 8, 100
    a(f"v_and_b32 v{N}, 15, v1\nv_cvt_f32_u32 v{N}, v{N}\nv_lshrrev_b32 v{Q}, 4, v1\nv_cvt_f32_u32 v{Q}, v{Q}")
    a(f"v_mul_f32 v{STEP}, {f32(1/16)}, v{N}\nv_add_f32 v{ARG}, v{Q}, v{Q}\nv_mul_f32 v{ARG}, v{ARG}, v{STEP}")
    for sv in range(2):
        if sv: a(f"v_add_f32 v{ARG}, v{ARG}, v{STEP}")
        a(f"v_cos_f32 v{c}, v{ARG}\nv_sin_f32 v{c+1}, v{ARG}")
        a(f"v_cvt_pk_bf16_f32 v{IB1+sv}, v{c}, -v{c+1}\nv_cvt_pk_bf16_f32 v{IB1+2+sv}, v{c+1}, v{c}")
    a(f"v_fma_f32 v{Q}, 4.0, v{Q}, 1.0")
    a(f"v_mul_f32 v{STEP}, {f32(1/512)}, v{N}\nv_mul_f32 v{ARG}, v{Q}, v{STEP}\nv_mul_f32 v{c}, {f32(13.0)}, v{STEP}")
    for i in range(8):
        if i: a(f"v_add_f32 v{ARG}, v{ARG}, v{c if i == 4 else STEP}")
        a(f"v_cos_f32 v{ITC+i}, v{ARG}\nv_sin_f32 v{ITS+i}, v{ARG}")
    a(f"v_mul_f32 v{STEP}, {f32(1/32)}, v{N}\nv_mul_f32 v{ARG}, v{Q}, v{STEP}")
    for r in range(4):
        if r: a(f"v_add_f32 v{ARG}, v{ARG}, v{STEP}")
        a(f"v_cos_f32 v{s+r}, v{ARG}\nv_sin_f32 v{s+4+r}, v{ARG}")
    for p in range(2):
        a(f"v_cvt_pk_bf16_f32 v{IB2+p}, v{s+2*p}, v{s+2*p+1}\nv_cvt_pk_bf16_f32 v{IB2+2+p}, -v{s+4+2*p}, -v{s+5+2*p}")
    if s_pi is not None:
        a(f"s_lshl_b32 s40, s{s_pi}, 15")
        for i in range(4): a(f"v_xor_b32 v{IB2+i}, s40, v{IB2+i}")
    a(f"v_and_b32 v{c}, 1, v1\nv_mul_u32_u24 v{c}, 0x8000, v{c}\nv_lshl_or_b32 v{c}, v{c}, 16, v{c}")
    for i in range(4): a(f"v_xor_b32 v{IB2+8+i}, v{c}, v{IB2+i}")
    for i in range(4): a(f"v_xor_b32 v{IB2+4+i}, 0x8000, v{IB2+i}")
    for i in range(4): a(f"v_xor_b32 v{IB2+12+i}, 0x8000, v{IB2+8+i}")

def irow_loads(a, voff, soff, ld_flags):
    for t in range(4):
        tau, sv = t & 1, t >> 1
        a(f"buffer_load_dwordx4 v[{IL+8*tau+4*sv}:{IL+8*tau+4*sv+3}], v{voff}, {sr(S_WS)}, s{soff} offen {ld_flags}")
        if t < 3: a(f"s_add_u32 s{soff}, s{soff}, {16*8192}")

def irow_compute(a):
    a("s_waitcnt vmcnt(0)")
    for tau in range(2):
        for e in range(4):
            for sv in range(2): a(f"v_mov_b32 v{IP+8*tau+2*e+sv}, v{IL+8*tau+4*sv+e}")
    for e in range(4):
        for tau in range(2):
            for ri in range(2):
                d = ID + 16*e + 8*tau + 4*ri; p = IP + 8*tau + 2*e
                a(f"v_mfma_f32_16x16x16_bf16 v[{d}:{d+3}], v[{p}:{p+1}], v[{IB1+2*ri}:{IB1+2*ri+1}], 0")
    for e in range(4):
        for tau in range(2):
            re, im = ID + 16*e + 8*tau, ID + 16*e + 8*tau + 4
            for r in range(4): a(f"v_mul_f32 v{IT+r}, v{re+r}, v{ITC+4*tau+r}\nv_mul_f32 v{IT+4+r}, v{im+r}, v{ITC+4*tau+r}")
            for r in range(4): a(f"v_fma_f32 v{IT+r}, -v{im+r}, v{ITS+4*tau+r}, v{IT+r}\nv_fma_f32 v{IT+4+r}, v{re+r}, v{ITS+4*tau+r}, v{IT+4+r}")
            u = IU + 8*e + 4*tau
            for p in range(4): a(f"v_cvt_pk_bf16_f32 v{u+p}, v{IT+2*p}, v{IT+2*p+1}")
        for rho in range(2):
            for tau in range(2):
                d = IY + 8*e + 4*rho; u = IU + 8*e + 4*tau; b = IB2 + 8*tau + 4*rho
                a(f"v_mfma_f32_16x16x32_bf16 v[{d}:{d+3}], v[{u}:{u+3}], v[{b}:{b+3}], " + ("0" if tau == 0 else f"v[{d}:{d+3}]"))
```

```python
import sys, math
from spec3 import *

OPT = set(sys.argv[2:])
Stamps.on = "stamp" in OPT or "se" in OPT
if "se" in OPT or "qs" in OPT: Stamps.skip = set(range(1, 15))
if "cyc" in OPT: Stamps.op = "s_memtime"
Trace.on = "trace" in OPT
TM, TL, TH, T3 = Trace("main", 10), Trace("loader", 31), Trace("h12", 255), Trace("h3", 31)
LSLEEP[0] = 1 if "lsleep" in OPT else 0
NAME = "parallel_sum__spectral_gfnet__glu_gated_swiglu__prompt_kernel"
HEADER = open("parallel_sum__spectral_gfnet__glu_gated_swiglu__prompt.s.ref").read().split("; Override")[0]
WT = "sc0 sc1"
RD = "" if "rdplain" in OPT else "sc1"
GF_EPOCH, GCNT, MBOX = WS_FLAG, WS_FLAG + 0x1000, WS_FLAG + 0x10000
WS_Y = 0xD00000
XCH = MISC + 1024
S_MB, S_DBG = 64, 66
FL_HS, FL_HSF, FL_FULL3, FL_YX, FL_YC, FL_LV = MISC + 112, MISC + 128, MISC + 144, MISC + 160, MISC + 164, MISC + 176
H3C = ()
FL_Z_CNT, FL_E_CNT, FL_HLVL, FL_FULL2, FL_GO, FL_FULLE = MISC + 40, MISC + 44, MISC + 48, MISC + 64, MISC + 80, MISC + 96
SCRATCH = MISC + 1024
GSPIN = 1 << 18
CPRIO = 0 if "cp0" in OPT else 2
PSLEEP = 24 if "slowpoll" in OPT else 2
HWT = "" if "hplain" in OPT else WT
S_I, S_J, S_P, S_NP, S_ROT, S_T, S_CJ, S_RES, S_TAG, S_HW, S_COL = 84, 85, 86, 87, 88, 89, 90, 91, 5, 4, 83

class DsQ:
    def __init__(self, a): self.a = a; self.q = []
    def op(self, text, tag=None):
        self.a(text)
        if "read" in text.split()[0]: self.q.append(tag)
    def wait(self, tag):
        idx = [i for i, t in enumerate(self.q) if t == tag]
        if not idx: return
        n = len(self.q) - 1 - idx[-1]
        assert n <= 15, n
        self.a(f"s_waitcnt lgkmcnt({n})")
        self.q = self.q[idx[-1] + 1:]

PJ = [(43 * j) >> 4 for j in range(17)]
ORDER = [PJ[j] for j in range(16)] + [PJ[j+1] - 1 for j in range(16)] + [PJ[j] + 1 for j in range(16) if PJ[j+1] - PJ[j] == 3]

NL, NS = (int([o[2:] for o in OPT if o.startswith("nl")][0]) if any(o.startswith("nl") for o in OPT) else 10), 7
HST = 18 * SLOT
def plan_slots():
    free = [(16, 0), (17, 4)] + [(4 * w + c, c + 1) for c in range(4) for w in range(4)]
    cells = {}
    def alloc(key, release):
        free.sort(key=lambda t: t[1])
        s, req = free.pop(0)
        cells[key] = (s, req)
        free.append((s, release))
    for q in range(4):
        alloc(("A", "X", q), 5 + q); alloc(("C", "X", q), 13 + q); alloc(("A", "Y", q), 5 + q)
    for q in range(4):
        alloc(("B", "Y", q), 9 + q); alloc(("C", "Y", q), 13 + q); alloc(("B", "X", q), 9 + q)
    for c in range(22): alloc(("w", c), 17 + c)
    global FINAL
    FINAL = sorted((rel, s) for (s, rel) in free)[:5]
    return cells
CELLS = plan_slots()
LAST_REQ = max(r for (s, r) in CELLS.values())
TA = FINAL[0][1]; TB = [s for _, s in FINAL[1:]]; TA_REQ, TB_REQ = FINAL[0][0], FINAL[4][0]; assert TB_REQ <= 37, FINAL

def ids_early(a):
    a(f"s_bfe_u32 s40, s2, 0x20003\ns_and_b32 s41, s2, 3\ns_lshl2_add_u32 s{S_I}, s41, s40")
    a(f"s_bfe_u32 s40, s2, 0x10002\ns_lshr_b32 s41, s2, 5\ns_lshl3_add_u32 s{S_J}, s40, s41")
    if "norx" not in OPT: a(f"s_add_u32 s{S_ROT}, s2, s{S_J}\ns_and_b32 s{S_ROT}, s{S_ROT}, 3")
    else: a(f"s_add_u32 s{S_ROT}, s{S_I}, s{S_J}\ns_and_b32 s{S_ROT}, s{S_ROT}, 3")

def ids_late(a):
    a(f"s_mul_i32 s{S_P}, s{S_J}, 43\ns_add_u32 s{S_NP}, s{S_P}, 43\ns_lshr_b32 s{S_P}, s{S_P}, 4\ns_lshr_b32 s{S_NP}, s{S_NP}, 4\ns_sub_u32 s{S_NP}, s{S_NP}, s{S_P}")
    a(f"s_and_b32 s40, s2, 3\ns_bfe_u32 s41, s2, 0x10002\ns_lshl1_add_u32 s40, s40, s41\ns_bfe_u32 s41, s2, 0x20003\ns_lshl2_add_u32 s{S_T}, s40, s41\ns_lshr_b32 s{S_CJ}, s2, 5")
    a(f"s_lshl_b32 s{S_COL}, s{S_CJ}, 5\ns_add_u32 s{S_COL}, s{S_COL}, s{S_T}")
    for d, src, n in ((S_W1, 72, 512*2752), (S_W3, 74, 512*2752), (S_W2, 76, 1376*1024), (S_OUT, 78, 2048*1024)):
        a(f"s_mov_b64 s[{d}:{d+1}], s[{src}:{src+1}]\ns_mov_b32 s{d+2}, {n}\ns_mov_b32 s{d+3}, 0x20000")
    a(f"s_mov_b32 s{S_WS+2}, 0x10000000\ns_mov_b32 s{S_WS+3}, 0x20000")
    a(f"s_add_u32 s80, s{S_WS}, {GF_EPOCH}\ns_addc_u32 s81, s{S_WS+1}, 0")
    a(f"s_lshl_b32 s40, s2, 8\ns_add_u32 s40, s40, {MBOX}\ns_add_u32 s{S_MB}, s{S_WS}, s40\ns_addc_u32 s{S_MB+1}, s{S_WS+1}, 0")
    Stamps.clear(a)

def warm(a, segs):
    if "hop" not in OPT: return
    a("s_mov_b64 exec, 0")
    for sg in segs: a(f"s_call_b64 s[0:1], hs_{sg}_0")
    a("s_mov_b64 exec, -1")

def make_tag(a):
    a(f"s_mul_i32 s{S_TAG}, s{S_TAG}, 0x9E3779B1\ns_add_u32 s{S_TAG}, s{S_TAG}, 0x7F4A7C15")

def flag_store(a, soff, level, vt):
    a(f"s_add_u32 s40, s{S_TAG}, {level}\nv_mov_b32 v{vt}, s40")
    a("s_mov_b64 exec, 1")
    a(f"buffer_store_dword v{vt}, off, {sr(S_WS)}, s{soff} {WT}")
    a("s_mov_b64 exec, -1")

def h_post(a):
    a("s_mov_b32 s59, 0x10000")
    for i in range(8): a(f"s_atomic_add s59, s[60:61], {8192*i}")

def wg_signal(a, cnt_word, n, event, vaddr, vone, vt):
    zf = a.label("zf")
    a("s_mov_b64 exec, 1")
    a(f"ds_add_rtn_u32 v{vt}, v{vaddr}, v{vone} offset:{cnt_word - MISC}\ns_mov_b64 exec, -1\ns_waitcnt lgkmcnt(0)\nv_readfirstlane_b32 s40, v{vt}")
    a(f"s_cmp_lg_u32 s40, {n - 1}\ns_cbranch_scc1 {zf}")
    if event == 0:
        a(f"s_and_b32 s43, s2, 1\ns_lshl_b32 s41, s43, 7\ns_mov_b32 s40, 1")
        a(f"s_atomic_add s40, s[{S_DBG}:{S_DBG+1}], s41 glc\ns_waitcnt lgkmcnt(0)")
        a(f"s_and_b32 s40, s40, 127\ns_cmp_lg_u32 s40, 127\ns_cbranch_scc1 {zf}")
    else:
        a(f"s_bfe_u32 s43, s2, 0x30003\ns_lshl_b32 s41, s43, 7\ns_add_u32 s41, s41, {GCNT - GF_EPOCH}\ns_mov_b32 s40, 1")
        a(f"s_atomic_add s40, s[80:81], s41 glc\ns_waitcnt lgkmcnt(0)")
        a(f"s_cmp_lg_u32 s40, 31\ns_cbranch_scc1 {zf}")
    a(f"s_lshl_b32 s43, s43, 2\ns_add_u32 s43, s43, {MBOX + 32*event}\ns_add_u32 s40, s{S_TAG}, 1\nv_mov_b32 v{vt}, s40\nv_lshlrev_b32 v{vt+1}, 8, v1")
    for i in range(4):
        a(f"buffer_store_dword v{vt}, v{vt+1}, {sr(S_WS)}, s43 offen {WT}\ns_add_u32 s43, s43, 0x4000")
    a(f"{zf}:")

def wait_go(a, event):
    top, done = a.label("gp"), a.label("gpd")
    a(f"s_mov_b32 s41, {GSPIN}\ns_add_u32 s42, s{S_TAG}, 1\ns_mov_b32 s43, s42")
    a(f"{top}:")
    if event == 0:
        a(f"s_load_dwordx2 s[44:45], s[{S_MB}:{S_MB+1}], 0 glc\ns_waitcnt lgkmcnt(0)\ns_xor_b64 s[44:45], s[44:45], s[42:43]\ns_cbranch_scc0 {done}")
    else:
        a(f"s_load_dwordx8 s[44:51], s[{S_MB}:{S_MB+1}], 32 glc\ns_waitcnt lgkmcnt(0)")
        for i in range(4): a(f"s_xor_b64 s[{44+2*i}:{45+2*i}], s[{44+2*i}:{45+2*i}], s[42:43]")
        a(f"s_or_b64 s[44:45], s[44:45], s[46:47]\ns_or_b64 s[48:49], s[48:49], s[50:51]\ns_or_b64 s[44:45], s[44:45], s[48:49]\ns_cbranch_scc0 {done}")
    a(f"s_sleep {PSLEEP}\ns_sub_u32 s41, s41, 1\ns_cbranch_scc0 {top}")
    a(f"{done}:")

def level_load(a):
    a(f"s_load_dword s53, s[{S_MB}:{S_MB+1}], s54 glc")

def level_test(a, need):
    a(f"s_bitcmp1_b32 s53, {8 * need - 4 + (need == 3)}")

def pair_table(a, vt, t1, t2, sx=40):
    a(f"s_and_b32 s{sx}, s{S_T}, 3\ns_lshl1_add_u32 s{sx}, s{sx}, s{S_CJ}\ns_lshl_b32 s{sx}, s{sx}, 1\ns_and_b32 s{sx}, s{sx}, 15\ns_mul_i32 s{sx+1}, s{sx}, 11\ns_lshr_b32 s{sx+1}, s{sx+1}, 4\ns_sub_u32 s{sx+1}, s{sx+1}, 32")
    a(f"v_add_u32 v{t1}, s{sx+1}, v1\nv_subrev_u32 v{t2}, 11, v{t1}\nv_min_u32 v{t1}, v{t1}, v{t2}")
    a(f"v_lshrrev_b32 v{t2}, 1, v{t1}\nv_add3_u32 v{t1}, v{t1}, v{t2}, 1\nv_min_u32 v{t1}, 15, v{t1}")
    a(f"v_add_u32 v{t2}, s{sx}, v1\nv_and_b32 v{t2}, 15, v{t2}\nv_cmp_gt_u32 vcc, 32, v1\nv_cndmask_b32 v{t1}, v{t1}, v{t2}, vcc\nv_mul_u32_u24 v{t1}, 43, v{t1}")
    a(f"v_cndmask_b32 v{t2}, 16, 27, vcc\nv_cmp_gt_u32 vcc, 16, v1\nv_cndmask_b32 v{t2}, v{t2}, 0, vcc\nv_add_u32 v{t1}, v{t1}, v{t2}\nv_lshrrev_b32 v{vt}, 4, v{t1}")

def lv_take(a): a("v_readfirstlane_b32 s40, v2\ns_max_u32 s53, s53, s40")

def h_wait(a, need):
    top, done = a.label("hp"), a.label("hpd")
    level_test(a, need)
    a(f"s_cbranch_scc1 {done}\ns_mov_b32 s41, {SPIN}")
    a(f"{top}:")
    a(f"ds_read_b32 v2, v9 offset:{FL_LV - MISC}\ns_waitcnt lgkmcnt(0)"); lv_take(a); level_test(a, need)
    a(f"s_cbranch_scc1 {done}\ns_sub_u32 s41, s41, 1\ns_cbranch_scc0 {top}")
    a(f"{done}:")

def lv_poll(a, loop):
    top, done = a.label("lp"), a.label("lpd")
    a(f"s_mov_b32 s41, {GSPIN}\n{top}:")
    a(f"s_load_dword s52, s[{S_MB}:{S_MB+1}], 128 glc\ns_waitcnt lgkmcnt(0)\nv_mov_b32 v16, s52\nds_write_b32 v25, v16 offset:{FL_LV - MISC}")
    if loop:
        a(f"s_and_b32 s52, s52, 0xffffff\ns_cmp_eq_u32 s52, 0x201010\ns_cbranch_scc1 {done}\ns_sub_u32 s41, s41, 1\ns_cbranch_scc0 {top}\n{done}:")

def mbox_off(a, dst, grp):
    a(f"s_bfe_u32 s40, s{grp}, 0x20003\ns_and_b32 s41, s{grp}, 4\ns_add_u32 s40, s40, s41\ns_and_b32 s41, s{grp}, 3\ns_lshl3_add_u32 s{dst}, s41, s40\ns_lshl_b32 s{dst}, s{dst}, 8")
    a(f"s_lshr_b32 s40, s{grp}, 5\ns_lshl2_add_u32 s{dst}, s40, s{dst}\ns_add_u32 s{dst}, s{dst}, {MBOX + 128}")

def check(a, stubs, scache, need, areg, off, vt, minof=1, before_spin=None):
    back, sl = a.label("fb"), a.label("fs")
    a(f"s_cmp_ge_u32 s{scache}, {need}")
    a(f"s_cbranch_scc0 {sl}")
    a(f"{back}:")
    stubs.append((sl, back, scache, need, areg, off, vt, minof, before_spin))

def emit_stubs(a, stubs):
    for (sl, back, sc, need, areg, off, vt, minof, before_spin) in stubs:
        a(f"{sl}:")
        if before_spin:
            a(f"ds_read_b32 v{vt}, v{areg} offset:{off}\ns_waitcnt lgkmcnt(0)\nv_readfirstlane_b32 s{sc}, v{vt}")
            a(f"s_cmp_ge_u32 s{sc}, {need}\ns_cbranch_scc1 {back}")
            before_spin()
        lds_wait_ge(a, areg, off, need, vt, sc, 41, minof=minof, sleep=1)
        a(f"s_branch {back}")

X0, ACC, AF, PD = 128, (64, 96), 32, 3

def x_setup(a):
    a(f"s_and_b32 s40, s3, 1\ns_lshl1_add_u32 s50, s{S_I}, s40\ns_lshr_b32 s41, s3, 1\ns_lshl_b32 s41, s41, 5\ns_add_u32 s50, s50, s41")
    a("s_lshl_b32 s51, s3, 15")
    a("s_lshr_b32 s41, s50, 3\ns_lshl_b32 s41, s41, 18\ns_and_b32 s42, s50, 7\ns_lshl_b32 s42, s42, 12\ns_add_u32 s56, s41, s42")
    a(f"s_lshl_b32 s40, s{S_ROT}, 8\ns_add_u32 s52, s56, s40")
    if "nors" not in OPT: a(f"s_and_b32 s63, s{S_J}, 4\ns_lshr_b32 s40, s{S_J}, 2\ns_and_b32 s40, s40, 2\ns_or_b32 s63, s63, s40")
    else: a(f"s_lshr_b32 s63, s{S_J}, 1\ns_and_b32 s63, s63, 6")
    a("v_lshrrev_b32 v20, 4, v1\nv_and_b32 v21, 15, v1\nv_xor_b32 v21, v21, v20\nv_lshlrev_b32 v21, 4, v21\nv_lshl_add_u32 v20, v20, 10, v21")
    a("s_and_b32 s40, s63, 2\ns_lshl_b32 s40, s40, 6\nv_xor_b32 v16, s40, v20\nv_xor_b32 v17, 64, v16\nv_xor_b32 v18, 0x80, v16\nv_xor_b32 v19, 0x80, v17")
    a("s_lshl_b32 s63, s63, 10")

def touch_setup(a):
    a(f"s_mul_i32 s{S_P}, s{S_J}, 43\ns_lshr_b32 s{S_P}, s{S_P}, 4\ns_lshr_b32 s40, s3, 1\ns_lshl1_add_u32 s40, s{S_ROT}, s40\ns_mul_i32 s48, s40, {64*2752}")
    a(f"s_lshl_b32 s40, s{S_P}, 6\ns_add_u32 s48, s48, s40\nv_mul_u32_u24 v44, 2752, v1")
    a(f"s_mov_b32 s14, {512*2752}\ns_mov_b32 s15, 0x20000")

def touch_issue(a, off):
    a(f"buffer_load_dword v127, v44, s[12:15], s48 offen offset:{off}")

def x_setup_late(a):
    for c in range(1, 4):
        a(f"s_add_u32 s40, s{S_ROT}, {c}\ns_and_b32 s40, s40, 3\ns_lshl_b32 s40, s40, 8\ns_add_u32 s{52+c}, s56, s40")

def x_issue(a, c, between=None):
    a(f"s_add_u32 s41, s51, {c*SLOT}" if c else "s_mov_b32 s41, s51")
    for e in range(8):
        a(f"s_xor_b32 s42, s63, {e << 10}" if e else "s_mov_b32 s42, s63")
        a("s_add_u32 m0, s41, s42\ns_lshl_b32 s42, s42, 5")
        a(f"s_add_u32 s40, s42, s{52+c}")
        a(f"buffer_load_dwordx4 v{16+(e&3)}, {sr(S_X)}, s40 offen lds")
        if between: between(e)

def epilogue_ops(acc, level, direct=False):
    ev = []
    for n in range(16):
        tau, r = n // 8, n % 8
        g, u = acc + 16*tau + r, acc + 16*tau + 8 + r
        ev += [(n, 0, f"v_mul_f32 v{u}, v{g}, v{u}"), (n, 1, f"v_mul_f32 v{g}, v10, v{g}"), (n + 1, 2, f"v_exp_f32 v{g}, v{g}"),
               (n + 2, 3, f"v_fma_f32 v{g}, v{g}, v11, v11"), (n + 3, 5, f"v_rcp_f32 v{g}, v{g}"), (n + 4, 4, f"v_mul_f32 v{u}, v{u}, v{g}")]
        if r & 1: ev.append((n + 5, 6, f"v_cvt_pk_bf16_f32 v{24 + 4*tau + r // 2}, v{u-1}, v{u}"))
    ops = [o for _, _, o in sorted(ev, key=lambda t: (t[0], t[1]))]
    if direct:
        ops.insert(len(ops) - 30, f"buffer_store_dwordx4 v[24:27], v3, {sr(S_WS)}, s62 offen {WT}")
        return ops + [f"buffer_store_dwordx4 v[28:31], v3, {sr(S_WS)}, s62 offen offset:1024 {WT}"]
    ops.insert(len(ops) - 6, ("ds", "ds_write_b128 v22, v[24:27]"))
    ops.insert(len(ops) - 2, f"v_mov_b32 v23, {level}")
    return ops + [("ds", "ds_write_b128 v22, v[28:31] offset:1024"), ("ds", f"ds_write_b32 v9, v23 offset:{FL_HS - MISC}")]

def HB(p): return X0 + 4*p if p < 32 else 84 + 4*(p - 32)
def h_pre(a, p): a(f"v_readlane_b32 s{68 + p % 4}, v8, {p}")
def h_load(a, p): a(f"buffer_load_dwordx4 v[{HB(p)}:{HB(p)+3}], v3, {sr(S_WS)}, s{68 + p % 4} offen {RD}")
def h_burst(a, lo, hi):
    for p in range(lo, min(lo + 3, hi)): h_pre(a, p)
    for p in range(lo, hi):
        if p + 3 < hi: h_pre(a, p + 3)
        h_load(a, p)

def g1_main(a):
    dq = DsQ(a); slow = []
    a(f"s_lshl_b32 s40, s3, 2\ns_add_u32 s40, s40, {MISC}\nv_mov_b32 v9, s40")
    a("v_lshlrev_b32 v3, 4, v1")
    a("v_and_b32 v20, 31, v1\nv_lshrrev_b32 v21, 5, v1\nv_and_b32 v22, 15, v1\nv_xor_b32 v21, v21, v22\nv_lshlrev_b32 v21, 4, v21")
    a("v_lshl_add_u32 v24, v20, 8, v21\nv_add_u32 v24, s51, v24")
    for j in range(1, 8): a(f"v_xor_b32 v{24+j}, {32*j}, v24")
    a("v_bfe_u32 v20, v1, 4, 1\nv_lshrrev_b32 v21, 5, v1\nv_bfe_u32 v22, v1, 2, 2")
    a(f"v_add_u32 v8, s{S_P}, v22\nv_and_b32 v8, 1, v8")
    a("v_lshrrev_b32 v22, 1, v22\nv_lshl_add_u32 v22, v21, 2, v22\nv_lshl_add_u32 v22, v8, 1, v22\nv_lshlrev_b32 v22, 6, v22")
    a("v_lshl_add_u32 v22, v20, 12, v22\nv_lshl_add_u32 v22, v20, 5, v22")
    a("v_and_b32 v21, 1, v1\nv_lshl_add_u32 v22, v21, 4, v22\nv_bfe_u32 v21, v1, 1, 1\nv_lshl_add_u32 v4, v21, 3, v22")
    a("v_xor_b32 v5, 128, v4\nv_xor_b32 v6, 32, v4\nv_xor_b32 v7, 160, v4")
    a(f"s_mul_i32 s62, s50, 86\ns_lshl1_add_u32 s62, s{S_P}, s62\ns_lshl_b32 s62, s62, 10\ns_add_u32 s62, s62, {WS_H + 2048}")
    a("s_and_b32 s61, s50, 31"); mbox_off(a, 59, 61)
    a(f"s_add_u32 s60, s{S_WS}, s59\ns_addc_u32 s61, s{S_WS+1}, 0")
    a("s_mov_b32 s56, 0x3f803f80\ns_mov_b32 s57, 0x00003f80\ns_mov_b32 s58, 0x3f800000")
    def reads(c):
        for j in range(8):
            r = X0 + 32*c + 4*j
            dq.op(f"ds_read_b128 v[{r}:{r+3}], v{24+j} offset:{c*SLOT}", ("x", c, j))
        a(f"v_mov_b32 v14, {c + 1}")
        dq.op(f"ds_write_b32 v9, v14 offset:{FL_FREE - MISC}")
    def sums(c, only=None):
        for j in (range(8) if only is None else [only]):
            if j % 2 == 0: dq.wait(("x", c, j + 1))
            for r in range(X0 + 32*c + 4*j, X0 + 32*c + 4*j + 4):
                first = (r == X0)
                a(f"v_dot2_f32_bf16 v10, v{r}, s56, {'0' if first else 'v10'}")
                a(f"v_dot2_f32_bf16 v11, v{r}, v{r}, {'0' if first else 'v11'}")
    wd = a.label("wd")
    if "hopm" in OPT:
        for w, segs in enumerate((["x0"], ["x1"], ["x2"], ["x3"])):
            nx = a.label("wn")
            if w < 3: a(f"s_cmp_lg_u32 s3, {w}\ns_cbranch_scc1 {nx}")
            warm(a, segs)
            if w < 3: a(f"s_branch {wd}\n{nx}:")
        a(f"{wd}:")
    if "mx" in OPT: a("s_setprio 3")
    x_issue(a, 1)
    Stamps.at(a, 6)
    if "hopm" in OPT: a(f";@seg x0 {HV}")
    a("s_waitcnt vmcnt(8)"); Stamps.at(a, 1); reads(0)
    x_issue(a, 2, lambda e: sums(0, e))
    a("s_waitcnt vmcnt(8)"); reads(1)
    x_issue(a, 3, lambda e: sums(1, e))
    if "mx" in OPT: a("s_setprio 0")
    T3L = "t3" in OPT
    if T3L: touch_issue(a, 128)
    if "hopm" in OPT: a(f";@seg x1 {HV}")
    a(f"s_waitcnt vmcnt({8 + T3L})"); reads(2); sums(2)
    a(f"s_waitcnt vmcnt({0 + T3L})"); Stamps.at(a, 2); reads(3)
    sums(3)
    a("v_mov_b32 v12, v10\nv_mov_b32 v13, v11")
    a("v_permlane32_swap_b32 v12, v10\nv_permlane32_swap_b32 v13, v11")
    a("v_add_f32 v10, v10, v12\nv_add_f32 v11, v11, v13")
    sub = Asm(); ln_scalars(sub, 10, 11, None)
    a(sub.lines[0])
    a("v_cvt_pk_bf16_f32 v31, -v10, -v10\nv_and_b32 v31, 0xffff0000, v31")
    rest = sub.lines[1:] + [f"v_mul_f32 v10, {f32(-math.log2(math.e))}, v11", "v_mul_f32 v11, v11, v11", "v_rcp_f32 v11, v11"]
    for j in range(32):
        for r in range(4 if "noctr" not in OPT else 0):
            x = X0 + 4*j + r; t = 16 + 2*r
            a(f"v_dot2_f32_bf16 v{t}, v{x}, s57, v31\nv_dot2_f32_bf16 v{t+1}, v{x}, s58, v31")
        if j in (2, 17) and "hopm" in OPT: a(f";@seg x{2 if j == 2 else 3} {HV}")
        if j < len(rest): a(rest[j])
        for r in range(4 if "noctr" not in OPT else 0): a(f"v_cvt_pk_bf16_f32 v{X0+4*j+r}, v{16+2*r}, v{17+2*r}")
        if j == 24: dq.op(f"ds_read_b32 v2, v9 offset:{FL_FULL - MISC}", "poll")
    PASS = "ABC"
    def base_calc(r):
        ps, q = PASS[r // 32], (r % 32) // 8
        bx, by = CELLS[(ps, "X", q)][0] * SLOT, CELLS[(ps, "Y", q)][0] * SLOT
        a(f"v_mul_i32_i24 v0, {by - bx}, v8\nv_add_u32 v0, {bx}, v0")
        return 8
    def full_check(r):
        ps, q = PASS[r // 32], (r % 32) // 8
        need_full = {"A": q + 1, "B": q + 5, "C": 0}[ps]
        if not need_full: return 0
        back, sl = a.label("g1b"), a.label("g1s")
        dq.wait("poll")
        a(f"v_readfirstlane_b32 s40, v2\ns_cmp_ge_u32 s40, {need_full}\ns_cbranch_scc0 {sl}")
        a(f"{back}:")
        slow.append((sl, back, need_full, FL_FULL))
        return 16
    def AB(r): return 12 + 4 * ((r // 8) & 1)
    def addr(r, tau):
        for i in (2*tau, 2*tau + 1): a(f"v_add_u32 v{AB(r)+i}, v0, v{4+i}")
        return 8
    def wreads(r, tau):
        j = r % 8; b = AF + 8 * (r % 4); cost = 8
        for rd in range(2):
            dq.op(f"ds_read_b64_tr_b16 v[{b+4*tau+2*rd}:{b+4*tau+2*rd+1}], v{AB(r)+2*tau+rd} offset:{512*j}", ("w", r))
        nxt = r - j + 8
        if nxt < 96:
            if j == 2 and tau == 0: cost += base_calc(nxt)
            if j == 4: cost += addr(nxt, tau)
            if j == 7 and tau == 0: cost += full_check(nxt)
            if j == 5 and tau == 0 and nxt < 64:
                dq.op(f"ds_read_b32 v2, v9 offset:{FL_FULL - MISC}", "poll"); cost += 4
        if j == 6 and tau == 1: a(f"v_mov_b32 v0, {5 + r // 8}"); cost += 4
        if j == 7 and tau == 1:
            dq.op(f"ds_write_b32 v9, v0 offset:{FL_FREE - MISC}"); cost += 4
        return cost
    a(f";@seg m1 {HM}")
    base_calc(0); addr(0, 0); addr(0, 1); full_check(0)
    for g in range(PD): wreads(g, 0); wreads(g, 1)
    Stamps.at(a, 3)
    fin2, done = a.label("g1fin2"), a.label("g1done")
    sub = Asm()
    sub(f"s_lshl_b32 s42, s3, 11\ns_add_u32 s42, s42, {HST}\nv_add_u32 v22, s42, v3\ns_movk_i32 s54, 128")
    sub(f"s_and_b32 s42, s3, 1\ns_lshl_b32 s42, s42, 5\ns_add_u32 s42, s42, s{S_T}\ns_mul_i32 s50, s42, 86")
    sub(f"s_lshr_b32 s51, s3, 1\ns_add_u32 s50, s50, s51\ns_lshl_b32 s50, s50, 10\ns_add_u32 s50, s50, {WS_H}")
    pair_table(sub, 20, 24, 25, 42)
    sub("v_lshlrev_b32 v20, 11, v20\nv_add_u32 v20, s50, v20")
    sub("v_bfe_u32 v24, v1, 2, 2\nv_lshrrev_b32 v25, 5, v1\nv_lshl_add_u32 v25, v25, 3, v24\ns_lshl_b32 s42, s51, 4\nv_add_u32 v25, s42, v25")
    sub("v_lshlrev_b32 v25, 7, v25\nv_lshrrev_b32 v24, 1, v24\nv_lshl_add_u32 v25, v24, 6, v25")
    sub("v_bfe_u32 v24, v1, 4, 1\nv_lshl_add_u32 v25, v24, 5, v25\nv_and_b32 v24, 3, v1\nv_lshl_add_u32 v21, v24, 3, v25")
    res_setup(sub, 42)
    EP = {0: [l.strip() for l in sub.lines], 1: epilogue_ops(ACC[0], 1), 2: epilogue_ops(ACC[1], 2)}
    opcost = lambda o: 8 if isinstance(o, tuple) or o.startswith(("v_exp", "v_rcp")) else 4
    def emit(o):
        if isinstance(o, tuple): dq.op(o[1])
        else: a(o)
    def step(g, extra=None):
        ps, j = g // 32, g % 32
        acc = ACC[ps & 1]; ep = EP[ps]
        b = AF + 8 * (g % 4)
        dq.wait(("w", g))
        for tau in range(2):
            d = acc + 16 * tau
            a(f"v_mfma_f32_32x32x16_bf16 v[{d}:{d+15}], v[{b+4*tau}:{b+4*tau+3}], v[{X0+4*j}:{X0+4*j+3}], " + ("0" if j == 0 else f"v[{d}:{d+15}]"))
            cost = 4 * tau
            if g + PD < 96: cost += wreads(g + PD, tau)
            if ps == 2 and j in (HSJ - 3, 26) and tau == 1:
                dq.op(f"ds_read_b32 v2, v9 offset:{FL_HSF - MISC}", "poll"); cost += 4
            if ps == 2 and j == HSJ and tau == 0:
                back, sl = a.label("g1b"), a.label("g1s")
                dq.wait("poll")
                a(f"v_readfirstlane_b32 s40, v2\ns_cmp_ge_u32 s40, 1\ns_cbranch_scc0 {sl}\n{back}:")
                slow.append((sl, back, 1, FL_HSF)); cost += 16
            if ps == 2 and j == 20 and tau == 0: level_load(a); cost += 4
            while ep and j >= 1 and cost + opcost(ep[0]) <= (GAPB if ps else 20):
                assert not (ps == 2 and isinstance(ep[0], tuple) and j < HSJ)
                o = ep.pop(0); cost += opcost(o); emit(o)
                if not ep: print("fill list", ps, "ends at step", j)
            if extra: extra(tau)
    for g in range(96 - ET):
        if g == 32: a(f";@seg m2 {HM}\ns_waitcnt vmcnt(0)")
        if "qs" in OPT and g % 8 == 0: Stamps.at(a, 1 + g // 8, True)
        step(g)
        if g % 32 == 31:
            assert not EP[g // 32]
            Stamps.at(a, 4 + g // 32)
        if g == 63:
            a(f"s_cmp_eq_u32 s{S_NP}, 2\ns_cbranch_scc1 {fin2}")
    assert not EP[2]
    if "qs" in OPT: Stamps.at(a, 13, True)
    if "mp" in OPT: a("s_setprio 3")
    late = a.label("g1late")
    a("v_mov_b32 v8, v20\ns_waitcnt lgkmcnt(0)\nv_readfirstlane_b32 s56, v2"); dq.q = []
    def final_ep(acc, level, need, extra=None):
        checked = False
        for n, o in enumerate(epilogue_ops(acc, level, level == 3)):
            if isinstance(o, tuple) and not checked:
                back, sl = a.label("g1b"), a.label("g1s")
                a(f"s_cmp_ge_u32 s56, {need}\ns_cbranch_scc0 {sl}\n{back}:"); slow.append((sl, back, need, FL_HSF)); checked = True
            a(o[1] if isinstance(o, tuple) else o)
            if extra: extra(n)
    level_test(a, 1)
    a(f"s_cbranch_scc0 {late}")
    for p in range(3): h_pre(a, p)
    nxt = [0]
    def early(tau):
        p = nxt[0]
        if p >= B0: return
        if p + 3 < B0: h_pre(a, p + 3)
        h_load(a, p); nxt[0] += 1
    for g in range(96 - ET, 96): step(g, early)
    Stamps.at(a, 8)
    a(f";@seg m3 {HV}")
    level_load(a)
    final_ep(ACC[0], 3, 2)
    for _ in range(8): early(0)
    Stamps.at(a, 9)
    a(f"s_mov_b32 s58, 0\ns_branch {done}")
    a(f"{late}:")
    dq.q = []
    for g in range(96 - ET, 96): step(g)
    level_load(a)
    final_ep(ACC[0], 3, 2)
    a("s_waitcnt vmcnt(0)"); h_post(a)
    a("s_branch k_g2late")
    a(f"{fin2}:")
    if "mp" in OPT: a("s_setprio 3")
    a(f"v_mov_b32 v0, 16\nds_write_b32 v9, v0 offset:{FL_FREE - MISC}\ns_mov_b32 s56, 0\ns_mov_b32 s53, 0\nv_mov_b32 v8, v20")
    a("s_nop 15")
    final_ep(ACC[1], 2, 1)
    a("k_g2late:")
    a("s_mov_b32 s58, 1")
    a("s_waitcnt lgkmcnt(0)")
    h_wait(a, 1)
    h_burst(a, 0, B0)
    a(f"s_branch {done}")
    for (sl, back, n, word) in slow:
        a(f"{sl}:")
        lds_wait_ge(a, 9, word - MISC, n, 2, 40, 41)
        a(f"s_branch {back}")
    a(f"{done}:")

ACC2, AF2 = 52, 20

def slot_sel(a, dst, idx, slots):
    a(f"s_mov_b32 s{dst}, {slots[0]*SLOT}")
    for i in range(1, len(slots)):
        a(f"s_cmp_eq_u32 s{idx}, {i}\ns_cmov_b32 s{dst}, {slots[i]*SLOT}")

def g2_main(a):
    dq = DsQ(a); stubs = []
    TM.start(a); TM(a, "T0")
    vm = [("h", p) for p in range(B0)]
    for q in range(B0, B0 + 3): h_pre(a, q)
    a(f"s_mov_b32 s55, 0\ns_mov_b32 s57, 0\nds_read_b32 v2, v9 offset:{FL_FULL2 - MISC}")
    a("v_mov_b32 v4, v21\nv_xor_b32 v5, 64, v21\nv_add_u32 v6, 0x10000, v4\nv_add_u32 v7, 0x10000, v5\nv_add_u32 v18, 0x20000, v4\nv_add_u32 v19, 0x20000, v5")
    a("s_waitcnt lgkmcnt(0)\nv_readfirstlane_b32 s52, v2")
    Stamps.at(a, 11)
    a(f";@sp {HM}")
    AR = [4, 6, 18]
    NB = 4
    def reads(p, dl):
        c = p // 2
        if p % 2 == 0 and dl == 0: check(a, stubs, 57 if c in H3C else 52, c + 1, 9, (FL_FULL3 if c in H3C else FL_FULL2) - MISC, 16)
        base = CELLS[("w", c)][0] * SLOT + (p % 2) * 4096
        w, off = base >> 16, base & 0xffff
        b = AF2 + 8 * (p % NB)
        for rd in range(2):
            dq.op(f"ds_read_b64_tr_b16 v[{b+4*dl+2*rd}:{b+4*dl+2*rd+1}], v{AR[w]+dl} offset:{off + 512*rd}", ("w", p))
        if dl == 1 and p % 2 == 1 and 17 + c <= TB_REQ:
            a(f"v_mov_b32 v0, {17 + c}")
            dq.op(f"ds_write_b32 v9, v0 offset:{FL_FREE - MISC}")
    for p in range(PD): reads(p, 0); reads(p, 1)
    nq = [B0]
    sub = Asm()
    slot_sel(sub, 42, 3, TB)
    F = FIN
    sub(f"v_and_b32 v{F+8}, 31, v1\nv_lshrrev_b32 v{F+9}, 5, v1\nv_and_b32 v{F+10}, 7, v1\nv_xor_b32 v{F+9}, v{F+9}, v{F+10}\nv_lshlrev_b32 v{F+9}, 4, v{F+9}\nv_lshl_add_u32 v{F+8}, v{F+8}, 8, v{F+9}\nv_add_u32 v{F+8}, s42, v{F+8}")
    for g in range(1, 4): sub(f"v_xor_b32 v{F+8+g}, {32*g}, v{F+8}")
    sub(f"v_mov_b32 v{F+12}, {MISC}")
    final_setup(sub)
    unpack_res(sub, 12)
    tail = [l.strip() for l in sub.lines]
    for p in range(43):
        b = AF2 + 8 * (p % NB)
        a(f"s_waitcnt vmcnt({len(vm) - 1 - vm.index(('h', p))})")
        if p % 4 == 0: TM(a, f"p{p}")
        dq.wait(("w", p))
        for dl in range(2):
            d = ACC2 + 16 * dl
            a(f"v_mfma_f32_32x32x16_bf16 v[{d}:{d+15}], v[{b+4*dl}:{b+4*dl+3}], v[{HB(p)}:{HB(p)+3}], " + ("0" if p == 0 else f"v[{d}:{d+15}]"))
            if p + PD < 43: reads(p + PD, dl)
            if p >= 32:
                n = 0
                while tail and (n < 3 or tail[0].startswith("s_cmov")):
                    a(tail.pop(0)); n += 1
        if p == 41: dq.op(f"ds_read_b128 v[4:7], v{F+12} offset:{FL_FREE - MISC}", "fr")
        for _ in range(2 if p < R2 else 1):
            q = nq[0]
            if q == 16:
                sk = a.label("ep")
                a(f"s_cmp_lg_u32 s58, 0\ns_cbranch_scc1 {sk}\ns_waitcnt vmcnt({16 - B0})"); h_post(a); a(f"{sk}:")
            if q in (16, 32):
                TM(a, f"w{q}"); dq.wait("lv"); lv_take(a); h_wait(a, q // 16 + 1); TM(a, f"L{q}")
            if q < 43:
                if q + 3 < 43: h_pre(a, q + 3)
                h_load(a, q); vm.append(("h", q))
            if q in (14, 30): dq.op(f"ds_read_b32 v2, v9 offset:{FL_LV - MISC}", "lv")
            if q == 24:
                res_load(a, 12, 11); vm.append("r")
            nq[0] += 1
    for o in tail: a(o)
    TM(a, "loopend")
    dq.wait("fr")
    a("v_min_u32 v4, v4, v5\nv_min3_u32 v4, v4, v6, v7\nv_readfirstlane_b32 s52, v4")
    check(a, stubs, 52, TB_REQ, F + 12, FL_FREE - MISC, 4, minof=4)
    Stamps.at(a, 14)
    for dl in range(2):
        for g in range(4):
            r = ACC2 + 16*dl + 4*g
            a(f"ds_write_b128 v{F+8+g}, v[{r}:{r+3}] offset:{128*dl}")
    TM(a, "written"); TM.park(a)
    a("s_branch k_fin2")
    return stubs

def res_setup(a, t=40):
    a(f"s_lshr_b32 s{t}, s3, 2\ns_lshl_b32 s{t}, s{t}, 20\ns_lshr_b32 s{t+1}, s{S_T}, 3\ns_lshl_b32 s{t+1}, s{t+1}, 18\ns_add_u32 s{t}, s{t}, s{t+1}")
    a(f"s_and_b32 s{t+1}, s{S_T}, 7\ns_lshl_b32 s{t+1}, s{t+1}, 12\ns_add_u32 s{t}, s{t}, s{t+1}\ns_and_b32 s{t+1}, s3, 3\ns_lshl_b32 s{t+1}, s{t+1}, 16\ns_add_u32 s{t}, s{t}, s{t+1}")
    a(f"s_lshl_b32 s{t+1}, s{S_CJ}, 7\ns_add_u32 s{S_RES}, s{t}, s{t+1}")

def res_load(a, dst, voff):
    a(f"v_bfe_u32 v{dst}, v1, 3, 2\nv_and_b32 v{voff}, 7, v1\nv_lshlrev_b32 v{voff}, 4, v{voff}\nv_lshl_add_u32 v{voff}, v{dst}, 10, v{voff}")
    a(f"v_lshrrev_b32 v{dst}, 5, v1\nv_lshl_add_u32 v{voff}, v{dst}, 15, v{voff}")
    a(f"buffer_load_dwordx4 v[{dst}:{dst+3}], v{voff}, {sr(S_X)}, s{S_RES} offen")

def res_issue(a, dst, voff):
    res_setup(a); res_load(a, dst, voff)

FIN, XU = 128, 144
def final_setup(a):
    F = FIN
    a("s_and_b32 s44, s3, 3\ns_lshl_b32 s44, s44, 11\ns_lshr_b32 s45, s3, 2")
    slot_sel(a, 42, 45, TB[:2]); slot_sel(a, 43, 45, TB[2:])
    a(f"v_lshrrev_b32 v{F}, 3, v1\nv_and_b32 v{F+1}, 7, v1\nv_lshlrev_b32 v{F+1}, 1, v{F+1}\nv_xor_b32 v{F+1}, v{F+1}, v{F}\nv_lshlrev_b32 v{F+1}, 4, v{F+1}")
    a(f"v_lshl_add_u32 v{F}, v{F}, 8, v{F+1}\nv_add_u32 v{F}, s44, v{F}\nv_xor_b32 v{F+1}, 16, v{F}")
    a(f"v_add_u32 v{F+4}, s42, v{F}\nv_add_u32 v{F+5}, s42, v{F+1}\nv_add_u32 v{F+6}, s43, v{F}\nv_add_u32 v{F+7}, s43, v{F+1}")
    a(f"s_lshl_b32 s44, s3, 10\ns_add_u32 s44, s44, {TA*SLOT}\nv_lshl_add_u32 v{F}, v1, 4, s44")

def unpack_res(a, xr):
    for p in range(4):
        a(f"v_lshlrev_b32 v{XU+2*p}, 16, v{xr+p}\nv_and_b32 v{XU+2*p+1}, 0xffff0000, v{xr+p}")

def final_combine(a, xr, voff):
    final_setup(a)
    a("s_waitcnt vmcnt(0)")
    unpack_res(a, xr)
    a("k_fin2:")
    if Trace.on: a("s_memtime s[100:101]\ns_waitcnt lgkmcnt(0)\nv_writelane_b32 v100, s100, 60")
    a("s_waitcnt lgkmcnt(0)\ns_barrier")
    if Trace.on: a("s_memtime s[100:101]\ns_waitcnt lgkmcnt(0)\nv_writelane_b32 v100, s100, 61")
    R = 20
    a(f"ds_read_b128 v[{R+8}:{R+11}], v{FIN}")
    for q in range(2):
        a(f"ds_read_b128 v[{R+16+4*q}:{R+16+4*q+3}], v{FIN+4+q}")
        a(f"ds_read_b128 v[{R+24+4*q}:{R+24+4*q+3}], v{FIN+6+q}")
    a("s_waitcnt lgkmcnt(4)")
    for p in range(4): a(f"v_lshlrev_b32 v{R+2*p}, 16, v{R+8+p}\nv_and_b32 v{R+2*p+1}, 0xffff0000, v{R+8+p}")
    for p in range(4): a(f"v_pk_add_f32 v[{R+2*p}:{R+2*p+1}], v[{R+2*p}:{R+2*p+1}], v[{XU+2*p}:{XU+2*p+1}]")
    for p in range(4):
        if p % 2 == 0: a(f"s_waitcnt lgkmcnt({2 if p == 0 else 0})")
        r = R + 2*p
        a(f"v_pk_add_f32 v[{r+16}:{r+17}], v[{r+16}:{r+17}], v[{r+24}:{r+25}]")
        a(f"v_pk_add_f32 v[{r}:{r+1}], v[{r}:{r+1}], v[{r+16}:{r+17}]")
        a(f"v_cvt_pk_bf16_f32 v{xr+p}, v{r}, v{r+1}")
    a(f"buffer_store_dwordx4 v[{xr}:{xr+3}], v{voff}, {sr(S_OUT)}, s{S_RES} offen {'sc0 sc1' if 'owt' in OPT else 'nt' if 'ont' in OPT else ''}")

def loader(a):
    a(f"v_mov_b32 v2, {MISC}")
    a("v_and_b32 v16, 3, v1\nv_lshl_add_u32 v16, v16, 2, v2")
    a("v_lshrrev_b32 v8, 2, v1\nv_and_b32 v9, 3, v1\nv_lshlrev_b32 v9, 4, v9\nv_xor_b32 v10, 2, v8")
    a("v_mul_u32_u24 v8, 5504, v8\nv_mul_u32_u24 v10, 5504, v10\nv_xor_b32 v11, 32, v9")
    a("v_add_u32 v4, v8, v9\nv_add_u32 v5, v8, v11\nv_add_u32 v6, v10, v9\nv_add_u32 v7, v10, v11")
    a("v_lshrrev_b32 v8, 3, v1\nv_and_b32 v9, 7, v1\nv_bfe_u32 v10, v1, 4, 1\nv_lshlrev_b32 v10, 2, v10\nv_xor_b32 v10, v10, v9")
    a("v_lshlrev_b32 v10, 4, v10\nv_lshl_add_u32 v17, v8, 10, v10")
    for q in range(4):
        a(f"s_add_u32 s40, s{S_ROT}, {q}\ns_and_b32 s40, s40, 3\ns_mul_i32 s{44+q}, s40, {128*2752}")
    a(f"s_and_b32 s40, s{S_P}, 1\ns_mul_i32 s48, s40, 2752\ns_sub_u32 s49, 2752, s48")
    a(f"s_lshl_b32 s40, s{S_P}, 6\ns_add_u32 s48, s48, s40\ns_add_u32 s49, s49, s40")
    a(f"s_lshl_b32 s50, s{S_CJ}, 7\ns_mov_b32 s52, 0")
    pair_table(a, 18, 19, 20)
    a("v_lshlrev_b32 v18, 15, v18\nv_add_u32 v18, s50, v18\nv_lshlrev_b32 v19, 4, v1")
    Stamps.at(a, 7)
    two, w2l = a.label("ld2"), a.label("ldw2")
    if "noload" in OPT:
        a("s_waitcnt vmcnt(0)\nv_mov_b32 v3, 1"); wg_signal(a, FL_Z_CNT, 2, 0, 2, 3, 12)
        a(f"v_mov_b32 v3, 99\nds_write_b32 v16, v3 offset:{FL_FULL - MISC}\nds_write_b32 v16, v3 offset:{FL_FULL2 - MISC}\ns_branch k_ldend")
    a(f"s_cmp_eq_u32 s{S_NP}, 2\ns_cbranch_scc1 {two}")
    class Pipe:
        def __init__(s): s.items = []; s.seen = 0; s.depth = DEPTH
        def publish(s, it):
            if it[0] is None: return
            a(f"v_mov_b32 v3, {it[1]}\ns_mov_b64 exec, 15\nds_max_u32 v16, v3 offset:{it[0] - MISC}\ns_mov_b64 exec, -1")
        def probe(s, req, ok):
            a(f"s_call_b64 s[54:55], k_ldprobe\ns_cmp_ge_u32 s52, {req}\ns_cbranch_scc1 {ok}")
        def need(s, req):
            if req <= s.seen: return
            ok = a.label("ldok")
            a(f"s_cmp_ge_u32 s52, {req}\ns_cbranch_scc1 {ok}")
            for i, it in enumerate(s.items):
                if it[0] is None: continue
                s.probe(req, ok)
                a(f"s_waitcnt vmcnt({sum(x[2] for x in s.items[i+1:])})"); s.publish(it)
            lds_wait_ge(a, 2, FL_FREE - MISC, req, 12, 52, 41, minof=4, sleep=LSL)
            a(f"{ok}:")
            s.seen = req
        def done(s, word, val, cnt):
            s.items.append((word, val, cnt))
            while len(s.items) > 1 and sum(x[2] for x in s.items) > s.depth:
                it = s.items.pop(0)
                a(f"s_waitcnt vmcnt({sum(x[2] for x in s.items)})"); s.publish(it)
        def flush(s, keep=0):
            while len(s.items) > keep:
                it = s.items.pop(0)
                a(f"s_waitcnt vmcnt({sum(x[2] for x in s.items)})"); s.publish(it)
    def variant(np_):
        pp = Pipe()
        for grp in range(8):
            st, q = grp // 4, grp % 4
            if st == 0: seq = [[("A", "X", 0), ("C", "X", 64)], [("A", "Y", 0)]]
            else:       seq = [[("C", "Y", 64), ("B", "Y", 64 * (np_ - 1))], [("B", "X", 64 * (np_ - 1))]]
            if np_ == 2 or "noC" in OPT: seq = [[c for c in s if c[0] != "C"] for s in seq]
            if "halfw" in OPT: seq = [seq[0], []]
            tot = 0
            for si, s in enumerate(seq):
                if not s:
                    pp.done(FL_FULL, grp + 1, 0); continue
                pp.need(max([CELLS[(c[0], c[1], q)][1] for c in s] + [LGATE]))
                if grp == 4 and si == 0: lds_wait_ge(a, 2, FL_A_DONE - MISC, 2, 12, 40, 41)
                cl = s[0][1]; ci = 0 if cl == "X" else 1; cnt = 0
                for g in range(4):
                    for mat in range(2):
                        for n, (ps, _, off) in enumerate(s):
                            dst = CELLS[(ps, cl, q)][0] * SLOT + mat * 4096 + g * 1024
                            neg = dst - off < 0
                            a(f"s_mov_b32 m0, {dst if neg else dst - off}")
                            if mat == 0 and n == 0:
                                a(f"s_add_u32 s42, s{44+q}, s{48+ci}" if g == 0 else f"s_add_u32 s42, s42, {32*2752}")
                            if neg:
                                a(f"s_add_u32 s43, s42, {off}\nbuffer_load_dwordx4 v{4+2*ci+mat}, {sr(S_W1 + 4*mat)}, s43 offen lds")
                            else:
                                a(f"buffer_load_dwordx4 v{4+2*ci+mat}, {sr(S_W1 + 4*mat)}, s42 offen offset:{off} lds")
                            cnt += 1
                tot += cnt
                pp.done(FL_FULL if si == 1 else None, grp + 1, cnt)
            if grp in (1, 3, 5, 7): Stamps.at(a, 8 + grp // 2)
            if grp == 1: a(f"s_setprio {LPRIO}")
        while pp.items and pp.items[0][1] < 8:
            pp.flush(keep=len(pp.items) - 1)
        return pp
    p3 = variant(3)
    a(f"s_branch {w2l}")
    a("k_ldprobe:")
    a(f"ds_read_b128 v[12:15], v2 offset:{FL_FREE - MISC}\ns_waitcnt lgkmcnt(0)")
    a("v_min_u32 v12, v12, v13\nv_min3_u32 v12, v12, v14, v15\nv_readfirstlane_b32 s52, v12\ns_nop 0\ns_setpc_b64 s[54:55]")
    a(f"{two}:")
    p2 = variant(2)
    a(f";@seg ld2 {HV}")
    a(f"{w2l}:")
    pp = Pipe(); pp.items = [(FL_FULL, 8, 24)]; pp.seen = min(p3.seen, p2.seen); pp.depth = DEPTH2
    TL.start(a)
    a("v_lshlrev_b32 v19, 4, v1")
    staged = list(range(22 - NST, 22))
    order = [("d", c) for c in range(22) if c not in staged and c not in H3C]
    for n, c in enumerate(staged): order.insert(1 + 2 * n, ("s", c))
    order += [("w", c) for c in staged]
    for kind, c in order:
        slot, req = CELLS[("w", c)]
        ps_ = list(range(2 * c, min(2 * c + 2, 43)))
        base = 32 + 32 * (c - (22 - NST))
        if kind != "w":
            for p in ps_: a(f"v_readlane_b32 s{44 + p % 2}, v18, {p}")
            a("s_nop 1")
        if kind != "s":
            pp.need(req)
            if c % 2 == 0: TL(a, f"c{c}")
        if kind == "w":
            a(f"v_add_u32 v20, {slot*SLOT}, v19")
            for i in range(4 * len(ps_)): a(f"ds_write_b128 v20, v[{base+4*i}:{base+4*i+3}] offset:{1024*i}")
            pp.flush(); pp.publish((FL_FULL2, c + 1))
            continue
        for p in ps_:
            for g in range(4):
                if kind == "d": a(f"s_mov_b32 m0, {slot*SLOT + (p % 2)*4096 + g*1024}")
                if g: a(f"s_add_u32 s{44 + p % 2}, s{44 + p % 2}, 8192")
                r = base + 16 * (p % 2) + 4 * g
                a(f"buffer_load_dwordx4 v17, {sr(S_W2)}, s{44 + p % 2} offen lds" if kind == "d" else
                  f"buffer_load_dwordx4 v[{r}:{r+3}], v17, {sr(S_W2)}, s{44 + p % 2} offen")
        pp.done(FL_FULL2 if kind == "d" else None, c + 1, 4 * len(ps_))
    TL(a, "issued")
    pp.flush()
    TL(a, "landed"); TL.park(a)

GF, ACCE, BE = 128, 64, 32

def g_first(a, n, dt16, t0):
    st, s7, ar = t0, t0 + 1, t0 + 2
    a(f"v_and_b32 v{st}, 15, v1\ns_lshr_b32 s40, s2, 5\ns_lshl_b32 s40, s40, 6\ns_add_u32 s40, s40, {dt16}\nv_add_u32 v{st}, s40, v{st}")
    a(f"v_cvt_f32_u32 v{st}, v{st}\nv_mul_f32 v{st}, {f32(1/512)}, v{st}\nv_mul_f32 v{s7}, {f32(7.0)}, v{st}")
    a(f"v_lshrrev_b32 v{ar}, 4, v1\nv_lshl_add_u32 v{ar}, v{ar}, 1, 1\nv_cvt_f32_u32 v{ar}, v{ar}\nv_mul_f32 v{ar}, v{ar}, v{st}")
    for i in range(32):
        if i: a(f"v_add_f32 v{ar}, v{ar}, v{st if i & 1 else s7}")
        t = t0 + 4 + 2 * (i & 1); p = t0 + 4 + 2 * ((i + 1) & 1)
        a(f"v_cos_f32 v{t}, v{ar}\nv_sin_f32 v{t+1}, v{ar}")
        if i: a(f"v_cvt_pk_bf16_f32 v{GF+64*n+i-1}, v{p}, -v{p+1}")
    a(f"v_cvt_pk_bf16_f32 v{GF+64*n+31}, v{t0+6}, -v{t0+7}")

def g_second(a, nt, t=4):
    a(f"v_and_b32 v{t}, 1, v1\nv_lshlrev_b32 v{t}, 4, v{t}\nv_bfe_u32 v{t+1}, v1, 1, 1\nv_lshlrev_b32 v{t+1}, 15, v{t+1}\nv_add_u32 v{t+2}, 1, v1\nv_bfe_u32 v{t+2}, v{t+2}, 1, 1\nv_lshl_or_b32 v{t+1}, v{t+2}, 31, v{t+1}")
    for n in range(nt):
        for i in range(32):
            r = GF + 64*n + i
            a(f"v_alignbit_b32 v{r+32}, v{r}, v{r}, v{t}")
        for i in range(32):
            r = GF + 64*n + i
            a(f"v_xor_b32 v{r+32}, v{t+1}, v{r+32}")

def e_load(a, s_pi, meanwhile):
    a(f"v_mov_b32 v2, {MISC}")
    a("v_lshrrev_b32 v8, 4, v1\nv_bfe_u32 v9, v1, 2, 2\nv_xor_b32 v9, v9, v8\nv_lshlrev_b32 v5, 13, v8\nv_lshrrev_b32 v10, 1, v9\nv_lshl_add_u32 v5, v10, 12, v5")
    a("v_and_b32 v10, 1, v9\nv_lshl_add_u32 v5, v10, 6, v5\nv_and_b32 v10, 3, v1\nv_lshl_add_u32 v5, v10, 4, v5")
    a(f"s_lshl_b32 s45, s{S_T}, 7\ns_lshl_b32 s40, s{s_pi}, 18\ns_add_u32 s45, s45, s40\ns_add_u32 s45, s45, {WS_E}")
    a(f"s_lshl_b32 s40, s{s_pi}, 2\nv_add_u32 v6, s40, v2")
    for i in range(4):
        (s0, r0), (s1, r1) = CELLS[("e", 2*i)], CELLS[("e", 2*i + 1)]
        lds_wait_ge(a, 2, FL_FREE - MISC, max(r0, r1), 16, 40, 41, minof=4, sleep=1)
        TH(a, f"ld{i}")
        a(f"s_mul_i32 s46, s{s_pi}, {(s1 - s0) * SLOT}\ns_add_u32 s46, s46, {s0 * SLOT}")
        for g in range(8):
            a(f"s_add_u32 m0, s46, {g*1024}")
            a(f"s_add_u32 s42, s45, {(64*i + 4*g)*8192}")
            a(f"buffer_load_dwordx4 v5, {sr(S_WS)}, s42 offen {RD} lds")
    meanwhile()
    for i in range(4):
        a(f"s_waitcnt vmcnt({8*(3-i)})\nv_mov_b32 v3, {i+1}\nds_write_b32 v6, v3 offset:{FL_FULLE - MISC}")

def e_part(a, nt, s_dt16, TT):
    dq = DsQ(a); stubs = []
    a(f"v_mov_b32 v2, {MISC}")
    a("v_lshrrev_b32 v8, 3, v1\nv_lshlrev_b32 v9, 8, v8\nv_and_b32 v8, 3, v8\nv_lshl_add_u32 v9, v8, 6, v9")
    a("v_and_b32 v8, 3, v1\nv_lshl_add_u32 v9, v8, 4, v9\nv_bfe_u32 v8, v1, 2, 1\nv_lshl_add_u32 v4, v8, 3, v9")
    for nu in range(1, 4): a(f"v_xor_b32 v{4+nu}, {64*nu}, v4")
    a("s_mov_b32 s52, 0\ns_mov_b32 s53, 0\ns_waitcnt lgkmcnt(0)")
    AH = 7
    def reads(u):
        js, nu = u // 4, u % 4
        c = js // 2
        if u % 8 == 0: check(a, stubs, 52 + (c & 1), c // 2 + 1, 2, FL_FULLE - MISC + 4 * (c & 1), 3)
        if js % 2 == 0: a(f"v_add_u32 v{16+nu}, {CELLS[('e', c)][0]*SLOT}, v{4+nu}")
        b = BE + 4 * (u % 8)
        for rd in range(2):
            dq.op(f"ds_read_b64_tr_b16 v[{b+2*rd}:{b+2*rd+1}], v{16+nu} offset:{(js % 2)*4096 + 2048*rd}", ("e", u))
    a(f"s_setprio {EPRIO}")
    for u in range(AH): reads(u)
    for u in range(64):
        js, nu = u // 4, u % 4
        b = BE + 4 * (u % 8)
        dq.wait(("e", u))
        if u % 8 == 0: TT(a, f"u{u}")
        for n in range(nt):
            d = ACCE + 16*n + 4*nu; g = GF + 64*n + 4*js
            a(f"v_mfma_f32_16x16x32_bf16 v[{d}:{d+3}], v[{g}:{g+3}], v[{b}:{b+3}], " + ("0" if js == 0 else f"v[{d}:{d+3}]"))
        if u + AH < 64: reads(u + AH)
    a(f"s_lshr_b32 s40, s{s_dt16}, 2\nv_lshrrev_b32 v17, 4, v1\nv_add_u32 v17, s40, v17\nv_and_b32 v18, 7, v1\nv_xor_b32 v17, v17, v18\nv_lshlrev_b32 v17, 4, v17")
    a(f"v_and_b32 v16, 15, v1\nv_lshl_add_u32 v16, v16, 8, v17\nv_xor_b32 v17, 64, v16")
    a(f"v_add_u32 v18, {TA[1]*SLOT}, v16\nv_add_u32 v19, {TA[1]*SLOT}, v17\nv_add_u32 v16, {TA[0]*SLOT}, v16\nv_add_u32 v17, {TA[0]*SLOT}, v17")
    TT(a, "edone")
    lds_wait_ge(a, 2, FL_FREE - MISC, TA_REQ, 4, 40, 41, minof=4, sleep=1)
    for n in range(nt):
        for nu in range(4):
            d = ACCE + 16*n + 4*nu
            a(f"ds_write_b128 v{16+n+2*(nu >> 1)}, v[{d}:{d+3}] offset:{(nu & 1)*4096}")
    TT(a, "written"); TT.park(a)
    return stubs

def h_relay(a, level, val):
    lds_wait_ge(a, 2, FL_HS - MISC, level, 16, 40, 41, minof=4, sleep=1 if level < 3 or "hs0" not in OPT else 0)
    T3(a, f"hs{level}")
    for i in range(8): a(f"ds_read_b128 v[{32+4*i}:{35+4*i}], v24 offset:{1024*i}")
    a(f"v_mov_b32 v16, {level}\nds_write_b32 v25, v16 offset:{FL_HSF - MISC}")
    for i in range(8):
        a(f"s_waitcnt lgkmcnt({7 - i})")
        a(f"buffer_store_dwordx4 v[{32+4*i}:{35+4*i}], v26, {sr(S_WS)}, s{44 + i // 2} offen offset:{1024*(i & 1)} {WT}")
    T3(a, "st")
    if "va" in OPT:
        a(f"v_mov_b32 v16, {val}\ns_waitcnt vmcnt(0)\ns_mov_b64 exec, 0xffff")
        a(f"buffer_atomic_add v16, v27, {sr(S_WS)}, s48 offen sc1\ns_mov_b64 exec, -1")
    else:
        a(f"s_mov_b32 s56, {val}\ns_waitcnt vmcnt(0)")
        for i in range(16): a(f"s_atomic_add s56, s[58:59], {(i & 7) * 8192 + (i >> 3) * 2048}")
    T3(a, "ack")
    T3(a, "atom"); T3.park(a)

def h_relay_setup(a):
    a(f"v_mov_b32 v2, {MISC}\nv_lshlrev_b32 v26, 4, v1\nv_add_u32 v24, {HST}, v26\nv_and_b32 v25, 3, v1\nv_lshl_add_u32 v25, v25, 2, v2")
    a(f"s_lshl_b32 s49, s{S_I}, 1\ns_mul_i32 s44, s49, 86\ns_lshl1_add_u32 s44, s{S_P}, s44\ns_lshl_b32 s44, s44, 10\ns_add_u32 s44, s44, {WS_H}")
    a(f"s_add_u32 s45, s44, {86*1024}\ns_add_u32 s46, s44, {32*86*1024}\ns_add_u32 s47, s46, {86*1024}")
    mbox_off(a, 48, 49)
    a(f"s_add_u32 s58, s{S_WS}, s48\ns_addc_u32 s59, s{S_WS+1}, 0")
    a("v_and_b32 v27, 7, v1\nv_lshlrev_b32 v27, 13, v27\nv_bfe_u32 v16, v1, 3, 1\nv_lshl_add_u32 v27, v16, 11, v27\nv_bfe_u32 v16, v1, 4, 1\nv_lshl_add_u32 v27, v16, 2, v27")

def h3_refill_setup(a):
    a("v_lshrrev_b32 v8, 3, v1\nv_and_b32 v9, 7, v1\nv_bfe_u32 v10, v1, 4, 1\nv_lshlrev_b32 v10, 2, v10\nv_xor_b32 v10, v10, v9")
    a("v_lshlrev_b32 v10, 4, v10\nv_lshl_add_u32 v28, v8, 10, v10")
    pair_table(a, 29, 8, 9)
    a(f"s_lshl_b32 s40, s{S_CJ}, 7\nv_lshlrev_b32 v29, 15, v29\nv_add_u32 v29, s40, v29")

def h3_refill(a):
    prev = None
    for c in H3C:
        slot, req = CELLS[("w", c)]
        ps_ = list(range(2 * c, min(2 * c + 2, 43)))
        for p in ps_: a(f"v_readlane_b32 s{44 + p % 2}, v29, {p}")
        a("s_nop 1")
        if prev is not None:
            ok = a.label("rf")
            a(f"s_cmp_ge_u32 s52, {req}\ns_cbranch_scc1 {ok}\ns_waitcnt vmcnt(0)\nv_mov_b32 v16, {prev + 1}\nds_write_b32 v25, v16 offset:{FL_FULL3 - MISC}")
            lds_wait_ge(a, 2, FL_FREE - MISC, req, 16, 52, 41, minof=4, sleep=LSL)
            a(f"{ok}:")
        else:
            lds_wait_ge(a, 2, FL_FREE - MISC, req, 16, 52, 41, minof=4, sleep=LSL)
        for p in ps_:
            for g in range(4):
                a(f"s_mov_b32 m0, {slot*SLOT + (p % 2)*4096 + g*1024}")
                if g: a(f"s_add_u32 s{44 + p % 2}, s{44 + p % 2}, 8192")
                a(f"buffer_load_dwordx4 v28, {sr(S_W2)}, s{44 + p % 2} offen lds")
        if prev is not None:
            a(f"s_waitcnt vmcnt({4 * len(ps_)})\nv_mov_b32 v16, {prev + 1}\nds_write_b32 v25, v16 offset:{FL_FULL3 - MISC}")
        prev = c
    if prev is not None:
        a(f"s_waitcnt vmcnt(0)\nv_mov_b32 v16, {prev + 1}\nds_write_b32 v25, v16 offset:{FL_FULL3 - MISC}")

def scalar_prefetch(a):
    a(f"s_lshl3_add_u32 s40, s2, s3\ns_and_b32 s41, s40, 1023\ns_mulk_i32 s41, {11*128}\ns_min_u32 s41, s41, {512*2752 - 11*128}")
    a(f"s_cmp_lt_u32 s40, 1024\ns_cselect_b64 s[42:43], s[{S_W1}:{S_W1+1}], s[{S_W3}:{S_W3+1}]\ns_add_u32 s42, s42, s41\ns_addc_u32 s43, s43, 0")
    for i in range(11): a(f"s_load_dword s82, s[42:43], {128*i}")

def w2_touch(a):
    a(f"v_mov_b32 v2, {MISC}")
    lds_wait_ge(a, 2, FL_FULL - MISC, W2T, 16, 40, 41, sleep=4)
    a(f"v_lshlrev_b32 v4, 7, v1\ns_lshr_b32 s42, s2, 3\ns_mul_i32 s42, s42, {344*128}")
    for i in range(6):
        if i == 5: a("s_mov_b64 exec, 0xffffff")
        a(f"buffer_load_dword v10, v4, {sr(S_W2)}, s42 offen\ns_add_u32 s42, s42, 8192")
    a("s_mov_b64 exec, -1")

W2T = 8
L3P = 31
gi = lambda k, d: int([o[len(k):] for o in OPT if o.startswith(k) and o[len(k):].isdigit()][0]) if any(o.startswith(k) and o[len(k):].isdigit() for o in OPT) else d
B0 = gi("b", 8)
R2 = gi("rr", 0)
ET = gi("et", 4)
LL2 = gi("ll", 1)
assert 2 * ET == B0
HSJ = gi("hj", 10)
L2P = int([o[2:] for o in OPT if o.startswith("l2")][0]) if any(o.startswith("l2") for o in OPT) else 4
LR = 2 if "r2" in OPT else 1
PSTP = 13
L3TRY = (max(33 - B0 - R2, 18), 26) if "tr3" not in OPT else (21, 24, 27)
LA = 5 if "tr3" not in OPT else 3
GAPB = int([o[2:] for o in OPT if o.startswith("gb")][0]) if any(o.startswith("gb") for o in OPT) else 40
EPRIO = 2 if "ep2" in OPT else 0
DEPTH = gi("dp", 24)
DEPTH2 = int([o[2:] for o in OPT if o.startswith("d2")][0]) if any(o.startswith("d2") for o in OPT) else 16
NST = int([o[2:] for o in OPT if o.startswith("st")and o[2:].isdigit()][0]) if any(o.startswith("st") and o[2:].isdigit() for o in OPT) else 0
LSL = gi("ls", 2)
HV, HM = 256, 128
G1PRIO = gi("gp", 0)
KPRIO = 0 if "k0" in OPT else 3
LPRIO = 0 if "lp0" in OPT else 3
ZG = 3 if "zg" in OPT else 0
WG = 3 if ("wg" in OPT or "zg" in OPT) else 0
LGATE = gi("lg", 2)
XS = False
SF = WT

a = Asm()
a.begin_kernel(NAME)
a("s_cmp_ge_u32 s2, 0x100\ns_cbranch_scc1 k_end")
Stamps.at(a, 0)
if "dbgspan" in OPT or "fix" in OPT: a("s_memrealtime s[92:93]")
if Trace.on: a("s_memtime s[92:93]\ns_waitcnt lgkmcnt(0)")
a(f"s_load_dwordx2 s[{S_X}:{S_X+1}], s[0:1], 0\ns_load_dwordx2 s[{S_WR}:{S_WR+1}], s[0:1], 8\ns_load_dwordx2 s[{S_WI}:{S_WI+1}], s[0:1], 16")
a(f"s_load_dwordx8 s[72:79], s[0:1], 32\ns_load_dwordx2 s[{S_WS}:{S_WS+1}], s[0:1], 72\ns_load_dwordx2 s[{S_DBG}:{S_DBG+1}], s[0:1], 64")
code_prefetch(a, NAME, "k_end", 65536, 8, 255)
a("v_lshrrev_b32 v2, 6, v0\nv_and_b32 v1, 63, v0\nv_readfirstlane_b32 s3, v2")
a(f"s_mov_b32 s{S_X+2}, 0x200000\ns_mov_b32 s{S_X+3}, 0x20000")
ids_early(a)
a("s_cmp_ge_u32 s3, 4\ns_cbranch_scc1 k_helper")
x_setup(a)
x_setup_late(a)
touch_setup(a)
a("s_waitcnt lgkmcnt(0)\ns_barrier")
TE = 7 if "te7" in OPT else 3
def first_touch(e):
    if e == 0: a("s_bitcmp1_b32 s3, 0\ns_cselect_b64 s[12:13], s[74:75], s[72:73]")
    if e == TE and ("t1" in OPT or "t2" in OPT): touch_issue(a, 0)
    if e == TE and "t2" in OPT: touch_issue(a, 128)
x_issue(a, 0, first_touch)
a("s_branch k_main")
a("k_helper:")
a(f"s_setprio 3\ns_sub_u32 s{S_HW}, s3, 4")
a(f"v_lshlrev_b32 v4, 2, v1\nv_add_u32 v4, {MISC}, v4\nv_mov_b32 v5, 0\nds_write_b32 v4, v5")
a(f"s_mov_b32 s{S_WR+2}, {2048*514}\ns_mov_b32 s{S_WR+3}, s{S_X+3}\ns_mov_b64 s[{S_WI+2}:{S_WI+3}], s[{S_WR+2}:{S_WR+3}]")
row_setup(a, S_HW, 18*SLOT)
w_setup(a)
a("s_waitcnt lgkmcnt(0)\ns_barrier")
row_issue(a)
a(f"s_cmp_lg_u32 s{S_HW}, 1\ns_cbranch_scc1 k_now")
w_issue(a, 17*SLOT, False)
a("k_now:")
ids_late(a)
Stamps.at(a, 1)
a(f"s_load_dword s{S_TAG}, s[80:81], 0\ns_sub_u32 s6, s{S_HW}, 1")
def wait_rows():
    a(f"s_waitcnt vmcnt(8)\ns_cmp_eq_u32 s{S_HW}, 1\ns_cbranch_scc1 k_rows\ns_waitcnt vmcnt(0)\nk_rows:")
row_compute(a, S_HW, wait_rows)
make_tag(a)
a(f"s_cmp_eq_u32 s{S_HW}, 0\ns_cbranch_scc1 k_loader")
a(f"s_cmp_lg_u32 s{S_HW}, 3\ns_cbranch_scc1 k_h12")
z_store_all(a, 18*SLOT, SF)
a(f"s_lshl_b32 s42, s2, 8\ns_add_u32 s42, s42, {MBOX + 128}\nv_mov_b32 v14, 0\nv_mov_b32 v15, 0\ns_mov_b64 exec, 1")
a(f"buffer_store_dwordx2 v[14:15], off, {sr(S_WS)}, s42 {WT}")
a(f"s_cmp_ge_u32 s2, 8\ns_cbranch_scc1 k_nocz\ns_lshl_b32 s42, s2, 7\ns_add_u32 s42, s42, {GCNT}\nbuffer_store_dword v14, off, {sr(S_WS)}, s42 {WT}\nk_nocz:\ns_mov_b64 exec, -1")
a("s_waitcnt vmcnt(0)")
wg_signal(a, FL_Z_CNT, 2, 0, 12, 13, 14)
Stamps.at(a, 7)
a("s_setprio 0\ns_branch k_h3")

a("k_main:")
ids_late(a)
if "sp" in OPT: scalar_prefetch(a)
g1_main(a)
st = g2_main(a)
emit_stubs(a, st)

a(";@endseg")
a("k_h12:")
a(f"s_setprio {KPRIO}")
if "nocolE" in OPT:
    res_issue(a, 12, 11); a("s_branch k_fin")
Stamps.at(a, 7)
a(f"s_cmp_lg_u32 s{S_HW}, 1\ns_cbranch_scc1 k_h2a")
w_store(a, 17*SLOT, SF)
a("k_h2a:")
if "wf" not in OPT: col_mats(a, 6)
a(f"s_cmp_lg_u32 s{S_HW}, 1\ns_cbranch_scc1 k_h2b\ns_waitcnt vmcnt(0)")
wg_signal(a, FL_Z_CNT, 2, 0, 12, 13, 14)
Stamps.at(a, 2)
a("k_h2b:")
if "wf" in OPT: col_mats(a, 6)
col_twiddles(a, 6, S_COL, 2)
col_twiddles(a, 6, S_COL, 1)
col_addrs(a)
col_offsets(a, 6, S_COL)
Stamps.at(a, 8)
a(f"s_setprio {CPRIO}")
wait_go(a, 0)
Stamps.at(a, 9)
if "noz" not in OPT: col_z_loads(a, RD)
col_w_loads(a, RD)
if "nocol" not in OPT: col_compute3(a, SF, lambda: None, 7)
Stamps.at(a, 11)
a(f"v_mov_b32 v2, {MISC}\nv_mov_b32 v3, 1")
a("s_waitcnt vmcnt(0)")
Stamps.at(a, 12)
wg_signal(a, FL_E_CNT, 2, 1, 2, 3, 14)
a(f"s_setprio {G1PRIO}")
irow_consts(a, 6)
res_issue(a, 12, 11)
a("v_and_b32 v4, 15, v1\nv_lshrrev_b32 v5, 4, v1\nv_lshl_add_u32 v6, v5, 6, v4\nv_lshlrev_b32 v6, 13, v6")
a(f"s_lshl_b32 s54, s6, 12\ns_lshl_b32 s40, s{S_T}, 7\ns_add_u32 s54, s54, s40\ns_lshl4_add_u32 s54, s{S_CJ}, s54\ns_add_u32 s54, s54, {WS_E}")
a("v_bfe_u32 v7, v1, 2, 2\nv_lshlrev_b32 v7, 8, v7\nv_lshl_add_u32 v7, v5, 6, v7\nv_and_b32 v8, 3, v1\nv_lshl_add_u32 v7, v8, 4, v7")
a(f"s_lshl3_add_u32 s55, s{S_T}, s{S_CJ}\ns_lshl1_add_u32 s55, s55, s6\ns_lshl_b32 s55, s55, 12\ns_add_u32 s55, s55, {WS_Y}")
a(f"v_lshlrev_b32 v8, 4, v1\ns_lshl_b32 s40, s6, 11\ns_add_u32 s40, s40, {XCH}\nv_add_u32 v8, s40, v8\nv_subrev_u32 v9, {XCH}, v8\nv_xor_b32 v9, 0x800, v9\nv_add_u32 v9, {XCH}, v9")
a(f"s_and_b32 s40, s2, 31\ns_lshl_b32 s40, s40, 8\ns_add_u32 s40, s40, {MBOX + 128}\ns_add_u32 s58, s{S_WS}, s40\ns_addc_u32 s59, s{S_WS+1}, 0")
a("s_mul_i32 s57, s6, 0x80008000")
Stamps.at(a, 13)
a(f"s_setprio {EPRIO}")
TH.start(a); TH(a, "waitE")
wait_go(a, 1)
TH(a, "goE")
Stamps.at(a, 14)
irow_loads(a, 6, 54, RD)
irow_compute(a)
TH(a, "calc")
S0 = 68
for e in range(4):
    for p in range(2): a(f"v_cvt_pk_bf16_f32 v{84+2*e+p}, v{IY+8*e+4+2*p}, v{IY+8*e+5+2*p}")
a("ds_write_b128 v8, v[84:87]\nds_write_b128 v8, v[88:91] offset:1024")
a(f"s_mov_b64 exec, 1\nds_add_u32 v2, v3 offset:{FL_YX - MISC}\ns_mov_b64 exec, -1")
lds_wait_ge(a, 2, FL_YX - MISC, 2, 10, 40, 41)
a("ds_read_b128 v[84:87], v9\nds_read_b128 v[88:91], v9 offset:1024\ns_waitcnt lgkmcnt(0)")
for i in range(8): a(f"v_lshlrev_b32 v{S0+2*i}, 16, v{84+i}\nv_and_b32 v{S0+2*i+1}, 0xffff0000, v{84+i}")
for e in range(4):
    for r in range(4):
        k = IY + 8*e + r
        a(f"v_sub_f32 v{k+4}, v{k}, v{S0+4*e+r}\nv_add_f32 v{k}, v{k}, v{S0+4*e+r}")
for e in range(4):
    for p in range(4): a(f"v_cvt_pk_bf16_f32 v{84+4*e+p}, v{IY+8*e+2*p}, v{IY+8*e+2*p+1}")
    for p in (2, 3): a(f"v_xor_b32 v{84+4*e+p}, s57, v{84+4*e+p}")
for e in range(4):
    o = 84 + 4*e
    a(f"v_permlane16_swap_b32 v{o}, v{o+2}\nv_permlane16_swap_b32 v{o+1}, v{o+3}")
    a(f"buffer_store_dwordx4 v[{o}:{o+3}], v7, {sr(S_WS)}, s55 offen offset:{1024*e} {WT}")
a("v_lshrrev_b32 v4, 5, v1\nv_lshlrev_b32 v4, 13, v4\nv_bfe_u32 v5, v1, 3, 2\nv_lshl_add_u32 v4, v5, 10, v4\nv_and_b32 v5, 1, v1\nv_lshl_add_u32 v4, v5, 7, v4\nv_bfe_u32 v5, v1, 1, 2\nv_lshl_add_u32 v4, v5, 4, v4")
a(f"s_lshl_b32 s55, s{S_T}, 16\ns_lshr_b32 s40, s{S_CJ}, 2\ns_lshl_b32 s40, s40, 12\ns_add_u32 s55, s55, s40\ns_and_b32 s40, s{S_CJ}, 3\ns_lshl_b32 s40, s40, 8\ns_add_u32 s55, s55, s40")
a(f"s_lshl_b32 s40, s6, 6\ns_add_u32 s55, s55, s40\ns_add_u32 s55, s55, {WS_Y}\ns_lshl_b32 s54, s6, 12\ns_add_u32 s54, s54, {TA*SLOT}")
a(f"s_waitcnt vmcnt(0)\ns_mov_b64 exec, 1\nds_add_rtn_u32 v10, v2, v3 offset:{FL_YC - MISC}\ns_mov_b64 exec, -1\ns_waitcnt lgkmcnt(0)\nv_readfirstlane_b32 s40, v10")
a("s_cmp_eq_u32 s40, 0\ns_cbranch_scc1 k_ynp\ns_mov_b32 s56, 0x1000000")
for i in range(8): a(f"s_atomic_add s56, s[58:59], {8192*i}")
a("k_ynp:")
TH(a, "posted")
lds_wait_ge(a, 2, FL_FREE - MISC, TA_REQ, 16, 40, 41, minof=4, sleep=1)
a(f"s_mov_b32 s41, {GSPIN}\nk_yp:\ns_load_dword s53, s[{S_MB}:{S_MB+1}], 128 glc\ns_waitcnt lgkmcnt(0)\ns_bitcmp1_b32 s53, 27\ns_cbranch_scc1 k_yd\ns_sleep 1\ns_sub_u32 s41, s41, 1\ns_cbranch_scc0 k_yp\nk_yd:")
TH(a, "yrdy")
for g in range(4):
    a(f"s_add_u32 m0, s54, {1024*g}")
    if g: a("s_add_u32 s55, s55, 0x4000")
    a(f"buffer_load_dwordx4 v4, {sr(S_WS)}, s55 offen {RD} lds")
TH.park(a)
a("s_branch k_fin")

a(";@endseg")
a("k_h3:")
warm(a, ["m1", "m2", "ld2", "m3"])
a("s_mov_b32 s7, 32")
if "w2t" in OPT: w2_touch(a)
wait_go(a, 0)
h_relay_setup(a)
h3_refill_setup(a)
res_issue(a, 12, 11)
a("s_setprio 3")
T3.start(a)
h_relay(a, 1, 1)
Stamps.at(a, 9)
a(f"s_sub_u32 s49, s{S_NP}, 1\ns_lshl_b32 s49, s49, 11\ns_cmp_eq_u32 s{S_NP}, 2\ns_mov_b32 s50, 0x100\ns_cmov_b32 s50, 0x20100")
for i in range(4): a(f"s_add_u32 s{44+i}, s{44+i}, s49")
h_relay(a, 2, "s50")
Stamps.at(a, 10)
a("k_h3e:")
lv_poll(a, True)
Stamps.at(a, 14)
a("s_branch k_fin")

a("k_loader:")
loader(a)
a("k_ldend:")
res_issue(a, 12, 11)
a("k_fin:")
final_combine(a, 12, 11)
a("s_xor_b32 s40, s3, 5\ns_or_b32 s40, s40, s2\ns_cmp_lg_u32 s40, 0\ns_cbranch_scc1 k_dump")
a(f"s_mov_b32 s42, {GF_EPOCH}")
flag_store(a, 42, 0, 4)
a("k_dump:")
if "fix" in OPT:
    a("k_fx:\ns_memrealtime s[94:95]\ns_waitcnt lgkmcnt(0)\ns_sub_u32 s94, s94, s92\ns_cmp_lt_u32 s94, 4000\ns_cbranch_scc1 k_fx")
if "dbgspan" in OPT:
    a("s_waitcnt vmcnt(0)\ns_memrealtime s[94:95]\ns_waitcnt lgkmcnt(0)\ns_cmp_lg_u32 s3, 0\ns_cbranch_scc1 k_end")
    a("s_and_b32 s92, s92, 0xffffff\ns_and_b32 s94, s94, 0xffffff\ns_sub_u32 s93, 0xffffff, s92\ns_sub_u32 s95, s94, s92")
    for i, r in enumerate((93, 94, 92, 95)):
        a(f"s_atomic_umax s{r}, s[{S_DBG}:{S_DBG+1}], {16 + 4*i}")
    a("s_waitcnt lgkmcnt(0)")
if Stamps.on: a("s_waitcnt vmcnt(0)")
Stamps.dump(a, 0)
if Trace.on: a("s_waitcnt vmcnt(0)")
Trace.dump(a)
import json
if Trace.on: json.dump(Trace.names, open(sys.argv[1][:-2] + ".json", "w"))
a(";@endseg")
a("k_end:\ns_endpgm")
a("k_hopret:\ns_waitcnt lgkmcnt(0)\ns_setpc_b64 s[0:1]")
a.add_kernel(NAME, 256); a.add_launch(NAME, 256, 512, LDS_BYTES)
txt = a.text(header=HEADER, single=True)
if "hop" in OPT:
    txt, nh_ = hop_pass(txt, "k_hopret"); print("hop sites", nh_)
if "noal" not in OPT: txt, nw_, np_ = align_pass(txt)
open(sys.argv[1], "w").write(txt)
print("nops", a.nops_added, CELLS if "v" in OPT else "")
```

```python
from pieces import *

def row_setup(a, s_hw, lds_rows):
    a("s_lshr_b32 s40, s2, 3\ns_and_b32 s41, s2, 3\ns_bfe_u32 s42, s2, 0x10002\ns_lshl1_add_u32 s41, s41, s42\ns_lshl_b32 s62, s41, 5\ns_add_u32 s62, s62, s40")
    a(f"s_lshl2_add_u32 s42, s41, s{s_hw}\ns_lshl_b32 s42, s42, 5\ns_add_u32 s42, s42, s40\ns_lshl_b32 s42, s42, 10")
    a(f"s_lshl_b32 s44, s{s_hw}, 11\ns_add_u32 s44, s44, {lds_rows}\ns_mov_b32 m0, s44")
    a("v_lshlrev_b32 v2, 4, v1\ns_add_u32 s43, s42, 0x100000")

def row_issue(a):
    a(f"buffer_load_dwordx4 v2, {sr(S_X)}, s42 offen lds")
    a("s_add_u32 m0, s44, 1024")
    a(f"buffer_load_dwordx4 v2, {sr(S_X)}, s43 offen lds")

def w_setup(a):
    a("s_bfe_u32 s45, s2, 0x20003\ns_and_b32 s46, s2, 3\ns_bfe_u32 s47, s2, 0x10002\ns_bfe_u32 s48, s2, 0x20005\ns_lshr_b32 s49, s2, 7")
    a("s_lshl2_add_u32 s50, s47, s46\ns_lshl_b32 s50, s50, 2\ns_lshl3_add_u32 s50, s50, s48\ns_lshl3_add_u32 s50, s50, s49")
    a("s_mulk_i32 s50, 514\ns_lshl_b32 s51, s45, 7\ns_add_u32 s50, s50, s51\ns_add_u32 s50, s50, 2")
    a("v_lshrrev_b32 v3, 5, v1\nv_bfe_u32 v4, v1, 3, 2\nv_lshl_add_u32 v3, v3, 4, v4\nv_mul_u32_u24 v3, 1028, v3\nv_and_b32 v4, 7, v1\nv_lshl_add_u32 v3, v4, 4, v3")

def w_issue(a, lds_w, setup=True):
    if setup: w_setup(a)
    for r in range(4):
        a(f"s_mov_b32 m0, {lds_w + 1024*r}")
        if r: a(f"s_add_u32 s50, s50, {64*514}")
        a(f"buffer_load_dwordx4 v3, {sr(S_WR)}, s50 offen lds")
        a(f"s_mov_b32 m0, {lds_w + 4096 + 1024*r}")
        a(f"buffer_load_dwordx4 v3, {sr(S_WI)}, s50 offen lds")

def w_store(a, lds_w, st_flags, between=None, wait="s_waitcnt vmcnt(0)"):
    a(f"v_lshrrev_b32 v5, 3, v1\nv_and_b32 v3, 7, v1\nv_lshlrev_b32 v4, 7, v3\nv_lshl_add_u32 v4, v5, 1, v4\nv_add_u32 v4, {lds_w}, v4")
    a("v_lshlrev_b32 v5, 13, v5\nv_lshl_add_u32 v5, v3, 4, v5")
    a("s_lshl_b32 s60, s45, 19\ns_lshl_b32 s61, s49, 12\ns_add_u32 s60, s60, s61\ns_lshl_b32 s61, s46, 10\ns_add_u32 s60, s60, s61")
    a(f"s_lshl_b32 s61, s47, 9\ns_add_u32 s60, s60, s61\ns_lshl_b32 s61, s48, 7\ns_add_u32 s60, s60, s61\ns_add_u32 s50, s60, {WS_WT}")
    a(wait)
    def rd(n):
        for r in range(4):
            a(f"ds_read_u16 v{128+8*n+r}, v4 offset:{1024*r + 16*n}\nds_read_u16 v{132+8*n+r}, v4 offset:{4096 + 1024*r + 16*n}")
    def st(n): a(f"buffer_store_dwordx4 v[{128+8*n}:{131+8*n}], v5, {sr(S_WS)}, s50 offen {st_flags}\ns_add_u32 s50, s50, 0x10000")
    rd(0)
    for n in range(8):
        a("s_waitcnt lgkmcnt(4)")
        if n < 7: rd(n + 1)
        else: a(f"s_mov_b64 exec, 1\nds_add_u32 v12, v13 offset:{FL_A_DONE - MISC}\ns_mov_b64 exec, -1")
        a(f"s_waitcnt lgkmcnt({8 if n < 7 else 0})")
        for r in range(4): a(f"v_lshl_or_b32 v{128+8*n+r}, v{132+8*n+r}, 16, v{128+8*n+r}")
        if not between: st(n)
    if between:
        between()
        for n in range(8): st(n)

ZR = 96
def z_store(a, s_half, lds_rows, st_flags, between=None):
    a(f"v_and_b32 v4, 1, v1\nv_lshrrev_b32 v5, 1, v1\nv_lshlrev_b32 v4, 10, v4\nv_lshl_add_u32 v4, v5, 2, v4\ns_lshl_b32 s52, s{s_half}, 9\ns_add_u32 s52, s52, {lds_rows}\nv_add_u32 v4, s52, v4\nv_add_u32 v5, 128, v4")
    a(f"s_lshl_b32 s52, s62, 13\ns_lshl_b32 s63, s{s_half}, 12\ns_add_u32 s52, s52, s63\ns_add_u32 s52, s52, {WS_Z}")
    lds_wait_ge(a, 12, FL_BAR_A - MISC, 4, 18, 61, 63)
    Stamps.at(a, 6)
    for e in range(4):
        a(f"ds_read2st64_b32 v[{ZR+4*e}:{ZR+1+4*e}], v{4 + (e & 1)} offset0:{e >> 1} offset1:{(e >> 1) + 8}")
        a(f"ds_read2st64_b32 v[{ZR+2+4*e}:{ZR+3+4*e}], v{4 + (e & 1)} offset0:{(e >> 1) + 16} offset1:{(e >> 1) + 24}")
    if between:
        a("s_waitcnt lgkmcnt(0)"); between()
    for e in range(4):
        if not between: a(f"s_waitcnt lgkmcnt({6 - 2*e})")
        a(f"buffer_store_dwordx4 v[{ZR+4*e}:{ZR+3+4*e}], v2, {sr(S_WS)}, s52 offen offset:{1024*e} {st_flags}")

def row_compute(a, s_hw, wait_rows):
    N, Q4, FU, ARG, STEP = 4, 5, 6, 7, 8
    B1, TC, TS, A2, CM = 16, 32, 40, 48, 9
    a(f"v_and_b32 v{N}, 15, v1")
    a(f"v_lshrrev_b32 v{Q4}, 4, v1\nv_lshlrev_b32 v{Q4}, 2, v{Q4}\nv_cvt_f32_u32 v{Q4}, v{Q4}")
    a(f"v_add_u32 v{FU}, 1, v{N}\nv_cvt_f32_u32 v{FU}, v{FU}")
    a(f"v_mul_f32 v{STEP}, {f32(1/32)}, v{FU}")
    a(f"v_mul_f32 v{ARG}, v{Q4}, v{STEP}")
    C0, S0 = 52, 60
    for j in range(8):
        if j == 4: a(f"v_mul_f32 v10, {f32(13.0)}, v{STEP}\nv_add_f32 v{ARG}, v{ARG}, v10")
        elif j: a(f"v_add_f32 v{ARG}, v{ARG}, v{STEP}")
        a(f"v_cos_f32 v{C0+j}, v{ARG}\nv_sin_f32 v{S0+j}, v{ARG}")
    for jj in range(4):
        a(f"v_cvt_pk_bf16_f32 v{B1+jj}, v{C0+2*jj}, v{C0+2*jj+1}")
        a(f"v_cvt_pk_bf16_f32 v{B1+4+jj}, -v{S0+2*jj}, -v{S0+2*jj+1}")
    for jj in range(8): a(f"v_xor_b32 v{B1+8+jj}, 0x80000000, v{B1+jj}")
    for tau in range(2):
        if tau: a(f"v_add_f32 v{FU}, {f32(16.0)}, v{FU}")
        a(f"v_mul_f32 v{STEP}, {f32(1/512)}, v{FU}\nv_mul_f32 v{ARG}, v{Q4}, v{STEP}")
        for r in range(4):
            if r: a(f"v_add_f32 v{ARG}, v{ARG}, v{STEP}")
            a(f"v_cos_f32 v{TC+4*tau+r}, v{ARG}\nv_sin_f32 v{TS+4*tau+r}, v{ARG}")
    a(f"v_lshrrev_b32 v{STEP}, 1, v{N}\nv_cvt_f32_u32 v{STEP}, v{STEP}\nv_mul_f32 v{STEP}, {f32(1/16)}, v{STEP}")
    a(f"v_and_b32 v{ARG}, 1, v{N}\nv_cvt_f32_u32 v{ARG}, v{ARG}\nv_mul_f32 v{ARG}, {f32(0.25)}, v{ARG}")
    a(f"v_fma_f32 v{ARG}, v{Q4}, v{STEP}, v{ARG}")
    for r in range(4):
        if r: a(f"v_add_f32 v{ARG}, v{ARG}, v{STEP}")
        a(f"v_cos_f32 v{C0+r}, v{ARG}\nv_sin_f32 v{S0+r}, v{ARG}")
    for jj in range(2):
        a(f"v_cvt_pk_bf16_f32 v{A2+jj}, v{C0+2*jj}, v{C0+2*jj+1}")
        a(f"v_cvt_pk_bf16_f32 v{A2+2+jj}, v{S0+2*jj}, v{S0+2*jj+1}")
    a(f"v_cmp_eq_u32 vcc, 15, v{N}\nv_mov_b32 v{CM}, {f32(32.0)}\nv_cndmask_b32 v{CM}, 0, v{CM}, vcc")
    a("s_mov_b32 s53, 0x3f803f80")
    a("v_lshlrev_b32 v10, 3, v1\nv_add_u32 v10, s44, v10")
    a(f"v_lshrrev_b32 v11, 4, v1\nv_lshlrev_b32 v11, 6, v11\nv_add_u32 v11, v11, v{N}\nv_lshlrev_b32 v11, 2, v11\nv_add_u32 v11, s44, v11")
    XF = 52
    Stamps.at(a, 3)
    wait_rows()
    Stamps.at(a, 4)
    for al in range(2):
        a(f"ds_read_b64_tr_b16 v[{XF+4*al}:{XF+4*al+1}], v10 offset:{1024*al}")
        a(f"ds_read_b64_tr_b16 v[{XF+4*al+2}:{XF+4*al+3}], v10 offset:{1024*al+512}")
    D1, SU = 92, 12
    a("s_waitcnt lgkmcnt(0)")
    for j in range(4):
        for al in range(2):
            c1 = "0" if j == 0 else f"v{SU+2*al}"
            c2 = "0" if j == 0 else f"v{SU+2*al+1}"
            a(f"v_dot2_f32_bf16 v{SU+2*al}, v{XF+4*al+j}, s53, {c1}")
            a(f"v_dot2_f32_bf16 v{SU+2*al+1}, v{XF+4*al+j}, v{XF+4*al+j}, {c2}")
    mf = []
    for al in range(2):
        for tau in range(2):
            for ri in range(2):
                d = D1 + 16*al + 8*tau + 4*ri
                mf.append(f"v_mfma_f32_16x16x32_bf16 v[{d}:{d+3}], v[{XF+4*al}:{XF+4*al+3}], v[{B1+8*tau+4*ri}:{B1+8*tau+4*ri+3}], 0")
    for n, m in enumerate(("row_ror:8 row_mask:0xf", "row_ror:4 row_mask:0xf", "row_ror:2 row_mask:0xf", "row_ror:1 row_mask:0xf",
              "row_bcast:15 row_mask:0xa", "row_bcast:31 row_mask:0xc")):
        a(mf[n])
        for q in range(4): a(f"v_add_f32_dpp v{SU+q}, v{SU+q}, v{SU+q} {m} bank_mask:0xf")
    a(mf[6]); a(mf[7])
    sub = [Asm(), Asm()]
    for al in range(2): ln_scalars(sub[al], SU+2*al, SU+2*al+1, None)
    for l0, l1 in zip(sub[0].lines, sub[1].lines): a(l0); a(l1)
    for al in range(2):
        a(f"v_readlane_b32 s{54+al}, v{SU+2*al}, 63\nv_readlane_b32 s{56+2*al}, v{SU+2*al+1}, 63")
    UF, T0 = 60, 76
    for al in range(2):
        for r in range(4):
            d = D1 + 16*al + 8 + r
            a(f"v_fma_f32 v{d}, -v{CM}, s{54+al}, v{d}")
    mf = []
    for al in range(2):
        for tau in range(2):
            re, im = D1 + 16*al + 8*tau, D1 + 16*al + 8*tau + 4
            for p in range(2):
                c, s = TC + 4*tau + 2*p, TS + 4*tau + 2*p
                tr, ti = T0 + 4*p, T0 + 4*p + 2
                for e in range(2): a(f"v_mul_f32 v{tr+e}, v{re+2*p+e}, v{c+e}\nv_mul_f32 v{ti+e}, v{im+2*p+e}, v{c+e}")
                for e in range(2): a(f"v_fma_f32 v{tr+e}, v{im+2*p+e}, v{s+e}, v{tr+e}\nv_fma_f32 v{ti+e}, -v{re+2*p+e}, v{s+e}, v{ti+e}")
            u = UF + 8*al + 4*tau
            for p in range(2):
                a(f"v_cvt_pk_bf16_f32 v{u+p}, v{T0+4*p}, v{T0+4*p+1}")
                a(f"v_cvt_pk_bf16_f32 v{u+2+p}, v{T0+4*p+2}, v{T0+4*p+3}")
            d = D1 + 16*al + 8*tau
            mf.append(f"v_mfma_f32_16x16x32_bf16 v[{d}:{d+3}], v[{A2}:{A2+3}], v[{u}:{u+3}], 0")
    for i in (0, 2, 1, 3): a(mf[i])
    a(f"v_mov_b32 v12, {MISC}\nv_mov_b32 v13, 1")
    for tau in range(2):
        for vl in range(2):
            d0, d1 = D1 + 8*tau + 2*vl, D1 + 16 + 8*tau + 2*vl
            t = T0 + 8 * vl
            for e in range(2): a(f"v_mul_f32 v{d0+e}, s56, v{d0+e}")
            for e in range(2): a(f"v_fma_f32 v{t+e}, v{d1+e}, s58, v{d0+e}\nv_fma_f32 v{t+2+e}, -v{d1+e}, s58, v{d0+e}")
            a(f"v_cvt_pk_bf16_f32 v{t+4}, v{t}, v{t+1}\nv_cvt_pk_bf16_f32 v{t+5}, v{t+2}, v{t+3}")
            a(f"ds_write_b32 v11, v{t+4} offset:{64*tau + 128*vl}")
            a(f"ds_write_b32 v11, v{t+5} offset:{64*tau + 128*vl + 1024}")
    Stamps.at(a, 5)
    a("s_mov_b64 exec, 1")
    a(f"ds_add_u32 v12, v13 offset:{FL_BAR_A - MISC}")
    a("s_mov_b64 exec, -1")

def col_loads2(a, s_pi, s_k1, ld_flags):
    a(f"s_lshl_b32 s60, s{s_k1}, 5\ns_lshl_b32 s61, s{s_pi}, 4\ns_add_u32 s60, s60, s61\ns_add_u32 s60, s60, {WS_Z}")
    for t in range(4):
        a(f"buffer_load_dwordx4 v[{CF_Z+4*t}:{CF_Z+4*t+3}], v14, {sr(S_WS)}, s60 offen {ld_flags}")
        if t < 3: a(f"s_add_u32 s60, s60, {64*8192}")
    a(f"s_lshl_b32 s60, s{s_k1}, 13\ns_lshl_b32 s61, s{s_pi}, 12\ns_add_u32 s60, s60, s61\ns_add_u32 s61, s60, {WS_WT}")
    for t in range(4):
        a(f"buffer_load_dwordx4 v[{CF_W+4*t}:{CF_W+4*t+3}], v15, {sr(S_WS)}, s61 offen offset:{1024*t} {ld_flags}")

def col_addrs(a):
    a("v_bfe_u32 v13, v1, 2, 1\nv_lshlrev_b32 v14, 4, v13\nv_bfe_u32 v13, v1, 3, 2\nv_lshl_add_u32 v14, v13, 2, v14")
    a("v_and_b32 v13, 0x23, v1\nv_add_u32 v14, v14, v13\nv_lshlrev_b32 v14, 13, v14\nv_lshlrev_b32 v15, 4, v1")
    a("v_bfe_u32 v12, v1, 3, 2\nv_lshlrev_b32 v12, 10, v12\nv_lshrrev_b32 v13, 5, v1\nv_lshl_add_u32 v12, v13, 9, v12\nv_and_b32 v13, 7, v1\nv_lshl_add_u32 v12, v13, 4, v12")

def col_store2(a, st_flags):
    AR, AI, U = CF_AR, CF_AI, CF_Z
    a(f"s_add_u32 s60, s60, {WS_E}")
    for q in range(4):
        for ri, acc in enumerate((AR, AI)):
            for p in range(2):
                a(f"v_cvt_pk_bf16_f32 v{U+4*q+2*ri+p}, v{acc+4*q+2*p}, v{acc+4*q+2*p+1}")
        a(f"buffer_store_dwordx4 v[{U+4*q}:{U+4*q+3}], v12, {sr(S_WS)}, s60 offen offset:{128*q} {st_flags}")

CA, CB, CD = 128, 160, 184
T1C, T1S, T2C, T2S = 16, 32, 48, 64
CZ, CW, CAR, CAI, CT = 80, 96, 208, 224, 112

def _lane_ids(a, s_pi, L, H, C, t):
    a(f"v_bfe_u32 v{t}, v1, 2, 1\nv_lshlrev_b32 v{L}, 4, v{t}\nv_bfe_u32 v{t}, v1, 3, 2\nv_lshl_add_u32 v{L}, v{t}, 2, v{L}")
    a(f"v_and_b32 v{t}, 3, v1\nv_add_u32 v{L}, v{L}, v{t}")
    a(f"v_lshl_add_u32 v{C}, v{L}, 1, s{s_pi}\nv_cvt_f32_u32 v{C}, v{C}\nv_cvt_f32_u32 v{L}, v{L}")
    a(f"v_lshrrev_b32 v{H}, 5, v1\nv_cvt_f32_u32 v{H}, v{H}")

def col_mats(a, s_pi):
    L, H, C, ARG, STEP, X, tc, ts = 240, 241, 242, 243, 244, 245, 246, 248
    _lane_ids(a, s_pi, L, H, C, X)
    a(f"v_mul_f32 v{STEP}, {f32(1/64)}, v{C}\nv_mul_f32 v{ARG}, 4.0, v{H}\nv_mul_f32 v{ARG}, v{ARG}, v{STEP}\nv_mul_f32 v{X}, {f32(5.0)}, v{STEP}")
    pend = []
    for t in range(4):
        for i in range(4):
            if i: a(f"v_add_f32 v{ARG}, v{ARG}, v{STEP}")
            elif t: a(f"v_add_f32 v{ARG}, v{ARG}, v{X}")
            a(f"v_cos_f32 v{tc+(i&1)}, v{ARG}\nv_sin_f32 v{ts+(i&1)}, v{ARG}")
            for o in pend: a(o)
            pend = [f"v_cvt_pk_bf16_f32 v{CA+8*t+i}, v{tc+(i&1)}, v{ts+(i&1)}", f"v_cvt_pk_bf16_f32 v{CA+8*t+4+i}, -v{ts+(i&1)}, v{tc+(i&1)}"]
    for o in pend: a(o)
    a(f"v_mul_f32 v{H}, {f32(16.0)}, v{H}")
    def mat(base):
        for R in range(16):
            if R: a(f"v_add_f32 v{ARG}, v{ARG}, v{STEP}")
            a(f"v_sin_f32 v{ts+(R&1)}, v{ARG}\nv_cos_f32 v{tc+(R&1)}, v{ARG}")
            if R & 1:
                a(f"v_cvt_pk_bf16_f32 v{base+8+(R>>1)}, v{ts}, v{ts+1}")
                a(f"v_cvt_pk_bf16_f32 v{base+(R>>1)}, v{tc}, v{tc+1}")
                a(f"v_xor_b32 v{base+16+(R>>1)}, 0x80008000, v{base+8+(R>>1)}")
    a(f"v_mul_f32 v{STEP}, {f32(1/32)}, v{L}\nv_mul_f32 v{ARG}, v{H}, v{STEP}")
    mat(CB)
    a(f"v_cvt_f32_u32 v{X}, s{s_pi}\nv_fma_f32 v{H}, 0.5, v{X}, v{H}")
    a(f"v_and_b32 v{X}, 31, v1\nv_cvt_f32_u32 v{X}, v{X}\nv_mul_f32 v{STEP}, {f32(1/32)}, v{X}\nv_mul_f32 v{ARG}, v{H}, v{STEP}")
    mat(CD)

def col_twiddles(a, s_pi, s_k1, which):
    L, H, C, ARG, STEP, X = 240, 241, 242, 243, 244, 245
    def tw(cb, sb):
        for R in range(16):
            if R: a(f"v_add_f32 v{ARG}, v{ARG}, v{STEP}")
            a(f"v_cos_f32 v{cb+R}, v{ARG}\nv_sin_f32 v{sb+R}, v{ARG}")
    if which == 2:
        a(f"v_mul_f32 v{STEP}, {f32(1/1024)}, v{L}\nv_mul_f32 v{ARG}, v{H}, v{STEP}")
        tw(T2C, T2S)
        a(f"s_cmp_eq_u32 s{s_k1}, 255\ns_mov_b32 s62, {f32(2/(2048*512))}\ns_cmov_b32 s62, {f32(1/(2048*512))}")
        for R in range(32): a(f"v_mul_f32 v{T2C+R}, s62, v{T2C+R}")
    else:
        a(f"v_floor_f32 v{X}, v{H}\nv_mul_f32 v{STEP}, {f32(1/2048)}, v{C}\nv_mul_f32 v{ARG}, v{X}, v{STEP}")
        tw(T1C, T1S)

def col_w_loads(a, ld_flags):
    for t in range(4):
        a(f"buffer_load_dwordx4 v[{CW+4*t}:{CW+4*t+3}], v15, {sr(S_WS)}, s61 offen offset:{1024*t} {ld_flags}")

def col_offsets(a, s_pi, s_k1):
    a(f"s_lshl_b32 s59, s{s_k1}, 5\ns_lshl_b32 s61, s{s_pi}, 4\ns_add_u32 s59, s59, s61\ns_add_u32 s59, s59, {WS_Z}")
    a(f"s_lshl_b32 s60, s{s_k1}, 13\ns_lshl_b32 s61, s{s_pi}, 12\ns_add_u32 s60, s60, s61\ns_add_u32 s61, s60, {WS_WT}")

def col_z_loads(a, ld_flags):
    for t in range(4):
        a(f"buffer_load_dwordx4 v[{CZ+4*t}:{CZ+4*t+3}], v14, {sr(S_WS)}, s59 offen {ld_flags}")
        if t < 3: a(f"s_add_u32 s59, s59, {64*8192}")

def col_compute3(a, st_flags, late_w, zw=3):
    AR, AI, U, T = CAR, CAI, CZ, CT
    def mf(d, x, y, first):
        a(f"v_mfma_f32_32x32x16_bf16 v[{d}:{d+15}], v[{x}:{x+3}], v[{y}:{y+3}], " + ("0" if first else f"v[{d}:{d+15}]"))
    def cmul(cb, sb, conj):
        n1, n2 = ("-", "") if conj else ("", "-")
        for p in range(8):
            c, s = cb + 2*p, sb + 2*p
            tr, ti = T + 4*(p & 1), T + 4*(p & 1) + 2
            re, im = AR + 2*p, AI + 2*p
            for e in range(2): a(f"v_mul_f32 v{tr+e}, v{re+e}, v{c+e}\nv_mul_f32 v{ti+e}, v{im+e}, v{c+e}")
            for e in range(2): a(f"v_fma_f32 v{tr+e}, {n1}v{im+e}, v{s+e}, v{tr+e}\nv_fma_f32 v{ti+e}, {n2}v{re+e}, v{s+e}, v{ti+e}")
            a(f"v_cvt_pk_bf16_f32 v{U+p}, v{tr}, v{tr+1}\nv_cvt_pk_bf16_f32 v{U+8+p}, v{ti}, v{ti+1}")
    for t in range(4):
        a(f"s_waitcnt vmcnt({zw - t})")
        mf(AR, CZ + 4*t, CA + 8*t, t == 0); mf(AI, CZ + 4*t, CA + 8*t + 4, t == 0)
    cmul(T1C, T1S, False)
    C, S, N = CB, CB + 8, CB + 16
    for t in range(2):
        mf(AR, C + 4*t, U + 4*t, t == 0); mf(AI, N + 4*t, U + 4*t, t == 0)
        mf(AR, S + 4*t, U + 8 + 4*t, False); mf(AI, C + 4*t, U + 8 + 4*t, False)
    late_w()
    a("s_waitcnt vmcnt(0)")
    for r in range(16): a(f"v_lshlrev_b32 v{T1C+r}, 16, v{CW+r}\nv_and_b32 v{T1S+r}, 0xffff0000, v{CW+r}")
    cmul(T1C, T1S, True)
    for (C, S, N, last) in ((CB, CB + 8, CB + 16, False), (CD, CD + 8, CD + 16, True)):
        for t in range(2):
            mf(AR, U + 4*t, C + 4*t, t == 0); mf(AI, U + 4*t, S + 4*t, t == 0)
            mf(AR, U + 8 + 4*t, N + 4*t, False); mf(AI, U + 8 + 4*t, C + 4*t, False)
        if not last: cmul(T2C, T2S, True)
    a(f"s_add_u32 s60, s60, {WS_E}")
    for q in range(4):
        for e in range(4): a(f"v_cvt_pk_bf16_f32 v{U+4*q+e}, v{AR+4*q+e}, v{AI+4*q+e}")
        a(f"buffer_store_dwordx4 v[{U+4*q}:{U+4*q+3}], v12, {sr(S_WS)}, s60 offen offset:{128*q} {st_flags}")

def z_store_all(a, lds_rows, st_flags):
    a(f"v_and_b32 v4, 1, v1\nv_lshrrev_b32 v5, 1, v1\nv_lshlrev_b32 v4, 10, v4\nv_lshl_add_u32 v4, v5, 2, v4\nv_add_u32 v4, {lds_rows}, v4\nv_add_u32 v5, 128, v4")
    a(f"s_lshl_b32 s52, s62, 13\ns_add_u32 s52, s52, {WS_Z}\ns_add_u32 s53, s52, 4096")
    lds_wait_ge(a, 12, FL_BAR_A - MISC, 4, 18, 61, 63)
    Stamps.at(a, 6)
    def rd(e):
        a(f"ds_read2st64_b32 v[{32+4*e}:{33+4*e}], v{4 + (e & 1)} offset0:{e >> 1} offset1:{(e >> 1) + 8}")
        a(f"ds_read2st64_b32 v[{34+4*e}:{35+4*e}], v{4 + (e & 1)} offset0:{(e >> 1) + 16} offset1:{(e >> 1) + 24}")
    for e in range(7): rd(e)
    a("s_waitcnt lgkmcnt(12)"); rd(7)
    for e in range(8):
        a(f"s_waitcnt lgkmcnt({14 - 2*e})")
        a(f"buffer_store_dwordx4 v[{32+4*e}:{35+4*e}], v2, {sr(S_WS)}, s{52 + e // 4} offen offset:{1024*(e % 4)} {st_flags}")
    a(f"s_mov_b64 exec, 1\nds_add_u32 v12, v13 offset:{FL_A_DONE - MISC}\ns_mov_b64 exec, -1")

IB1, ITC, ITS, IB2, IL, IP, ID, IU, IY, IT = 16, 20, 28, 36, 52, 68, 128, 84, 192, 116

def irow_consts(a, s_pi=None):
    N, Q, ARG, STEP, c, s = 4, 5, 6, 7, 8, 100
    a(f"v_and_b32 v{N}, 15, v1\nv_cvt_f32_u32 v{N}, v{N}\nv_lshrrev_b32 v{Q}, 4, v1\nv_cvt_f32_u32 v{Q}, v{Q}")
    a(f"v_mul_f32 v{STEP}, {f32(1/16)}, v{N}\nv_add_f32 v{ARG}, v{Q}, v{Q}\nv_mul_f32 v{ARG}, v{ARG}, v{STEP}")
    for sv in range(2):
        if sv: a(f"v_add_f32 v{ARG}, v{ARG}, v{STEP}")
        a(f"v_cos_f32 v{c}, v{ARG}\nv_sin_f32 v{c+1}, v{ARG}")
        a(f"v_cvt_pk_bf16_f32 v{IB1+sv}, v{c}, -v{c+1}\nv_cvt_pk_bf16_f32 v{IB1+2+sv}, v{c+1}, v{c}")
    a(f"v_fma_f32 v{Q}, 4.0, v{Q}, 1.0")
    a(f"v_mul_f32 v{STEP}, {f32(1/512)}, v{N}\nv_mul_f32 v{ARG}, v{Q}, v{STEP}\nv_mul_f32 v{c}, {f32(13.0)}, v{STEP}")
    for i in range(8):
        if i: a(f"v_add_f32 v{ARG}, v{ARG}, v{c if i == 4 else STEP}")
        a(f"v_cos_f32 v{ITC+i}, v{ARG}\nv_sin_f32 v{ITS+i}, v{ARG}")
    a(f"v_mul_f32 v{STEP}, {f32(1/32)}, v{N}\nv_mul_f32 v{ARG}, v{Q}, v{STEP}")
    for r in range(4):
        if r: a(f"v_add_f32 v{ARG}, v{ARG}, v{STEP}")
        a(f"v_cos_f32 v{s+r}, v{ARG}\nv_sin_f32 v{s+4+r}, v{ARG}")
    for p in range(2):
        a(f"v_cvt_pk_bf16_f32 v{IB2+p}, v{s+2*p}, v{s+2*p+1}\nv_cvt_pk_bf16_f32 v{IB2+2+p}, -v{s+4+2*p}, -v{s+5+2*p}")
    if s_pi is not None:
        a(f"s_lshl_b32 s40, s{s_pi}, 15")
        for i in range(4): a(f"v_xor_b32 v{IB2+i}, s40, v{IB2+i}")
    a(f"v_and_b32 v{c}, 1, v1\nv_mul_u32_u24 v{c}, 0x8000, v{c}\nv_lshl_or_b32 v{c}, v{c}, 16, v{c}")
    for i in range(4): a(f"v_xor_b32 v{IB2+8+i}, v{c}, v{IB2+i}")
    for i in range(4): a(f"v_xor_b32 v{IB2+4+i}, 0x8000, v{IB2+i}")
    for i in range(4): a(f"v_xor_b32 v{IB2+12+i}, 0x8000, v{IB2+8+i}")

def irow_loads(a, voff, soff, ld_flags):
    for t in range(4):
        tau, sv = t & 1, t >> 1
        a(f"buffer_load_dwordx4 v[{IL+8*tau+4*sv}:{IL+8*tau+4*sv+3}], v{voff}, {sr(S_WS)}, s{soff} offen {ld_flags}")
        if t < 3: a(f"s_add_u32 s{soff}, s{soff}, {16*8192}")

def irow_compute(a):
    a("s_waitcnt vmcnt(0)")
    for tau in range(2):
        for e in range(4):
            for sv in range(2): a(f"v_mov_b32 v{IP+8*tau+2*e+sv}, v{IL+8*tau+4*sv+e}")
    for e in range(4):
        for tau in range(2):
            for ri in range(2):
                d = ID + 16*e + 8*tau + 4*ri; p = IP + 8*tau + 2*e
                a(f"v_mfma_f32_16x16x16_bf16 v[{d}:{d+3}], v[{p}:{p+1}], v[{IB1+2*ri}:{IB1+2*ri+1}], 0")
    for e in range(4):
        for tau in range(2):
            re, im = ID + 16*e + 8*tau, ID + 16*e + 8*tau + 4
            for r in range(4): a(f"v_mul_f32 v{IT+r}, v{re+r}, v{ITC+4*tau+r}\nv_mul_f32 v{IT+4+r}, v{im+r}, v{ITC+4*tau+r}")
            for r in range(4): a(f"v_fma_f32 v{IT+r}, -v{im+r}, v{ITS+4*tau+r}, v{IT+r}\nv_fma_f32 v{IT+4+r}, v{re+r}, v{ITS+4*tau+r}, v{IT+4+r}")
            u = IU + 8*e + 4*tau
            for p in range(4): a(f"v_cvt_pk_bf16_f32 v{u+p}, v{IT+2*p}, v{IT+2*p+1}")
        for rho in range(2):
            for tau in range(2):
                d = IY + 8*e + 4*rho; u = IU + 8*e + 4*tau; b = IB2 + 8*tau + 4*rho
                a(f"v_mfma_f32_16x16x32_bf16 v[{d}:{d+3}], v[{u}:{u+3}], v[{b}:{b+3}], " + ("0" if tau == 0 else f"v[{d}:{d+3}]"))
```

```python
import sys, math
from spec3 import *

OPT = set(sys.argv[2:])
Stamps.on = "stamp" in OPT or "se" in OPT
if "se" in OPT or "qs" in OPT: Stamps.skip = set(range(1, 15))
if "cyc" in OPT: Stamps.op = "s_memtime"
Trace.on = "trace" in OPT
TM, TL, TH, T3 = Trace("main", 10), Trace("loader", 31), Trace("h12", 255), Trace("h3", 31)
LSLEEP[0] = 1 if "lsleep" in OPT else 0
NAME = "parallel_sum__spectral_gfnet__glu_gated_swiglu__prompt_kernel"
HEADER = open("parallel_sum__spectral_gfnet__glu_gated_swiglu__prompt.s.ref").read().split("; Override")[0]
WT = "sc0 sc1"
RD = "" if "rdplain" in OPT else "sc1"
GF_EPOCH, GCNT, MBOX = WS_FLAG, WS_FLAG + 0x1000, WS_FLAG + 0x10000
WS_Y = 0xD00000
XCH = MISC + 1024
S_MB, S_DBG = 64, 66
FL_HS, FL_HSF, FL_FULL3, FL_YX, FL_YC, FL_LV = MISC + 112, MISC + 128, MISC + 144, MISC + 160, MISC + 164, MISC + 176
H3C = ()
FL_Z_CNT, FL_E_CNT, FL_HLVL, FL_FULL2, FL_GO, FL_FULLE = MISC + 40, MISC + 44, MISC + 48, MISC + 64, MISC + 80, MISC + 96
SCRATCH = MISC + 1024
GSPIN = 1 << 18
CPRIO = 0 if "cp0" in OPT else 2
PSLEEP = 24 if "slowpoll" in OPT else 2
HWT = "" if "hplain" in OPT else WT
S_I, S_J, S_P, S_NP, S_ROT, S_T, S_CJ, S_RES, S_TAG, S_HW, S_COL = 84, 85, 86, 87, 88, 89, 90, 91, 5, 4, 83

class DsQ:
    def __init__(self, a): self.a = a; self.q = []
    def op(self, text, tag=None):
        self.a(text)
        if "read" in text.split()[0]: self.q.append(tag)
    def wait(self, tag):
        idx = [i for i, t in enumerate(self.q) if t == tag]
        if not idx: return
        n = len(self.q) - 1 - idx[-1]
        assert n <= 15, n
        self.a(f"s_waitcnt lgkmcnt({n})")
        self.q = self.q[idx[-1] + 1:]

PJ = [(43 * j) >> 4 for j in range(17)]
ORDER = [PJ[j] for j in range(16)] + [PJ[j+1] - 1 for j in range(16)] + [PJ[j] + 1 for j in range(16) if PJ[j+1] - PJ[j] == 3]

NL, NS = (int([o[2:] for o in OPT if o.startswith("nl")][0]) if any(o.startswith("nl") for o in OPT) else 10), 7
HST = 18 * SLOT
def plan_slots():
    free = [(16, 0), (17, 4)] + [(4 * w + c, c + 1) for c in range(4) for w in range(4)]
    cells = {}
    def alloc(key, release):
        free.sort(key=lambda t: t[1])
        s, req = free.pop(0)
        cells[key] = (s, req)
        free.append((s, release))
    for q in range(4):
        alloc(("A", "X", q), 5 + q); alloc(("C", "X", q), 13 + q); alloc(("A", "Y", q), 5 + q)
    for q in range(4):
        alloc(("B", "Y", q), 9 + q); alloc(("C", "Y", q), 13 + q); alloc(("B", "X", q), 9 + q)
    for c in range(22): alloc(("w", c), 17 + c)
    global FINAL
    FINAL = sorted((rel, s) for (s, rel) in free)[:5]
    return cells
CELLS = plan_slots()
LAST_REQ = max(r for (s, r) in CELLS.values())
TA = FINAL[0][1]; TB = [s for _, s in FINAL[1:]]; TA_REQ, TB_REQ = FINAL[0][0], FINAL[4][0]; assert TB_REQ <= 37, FINAL

def ids_early(a):
    a(f"s_bfe_u32 s40, s2, 0x20003\ns_and_b32 s41, s2, 3\ns_lshl2_add_u32 s{S_I}, s41, s40")
    a(f"s_bfe_u32 s40, s2, 0x10002\ns_lshr_b32 s41, s2, 5\ns_lshl3_add_u32 s{S_J}, s40, s41")
    if "norx" not in OPT: a(f"s_add_u32 s{S_ROT}, s2, s{S_J}\ns_and_b32 s{S_ROT}, s{S_ROT}, 3")
    else: a(f"s_add_u32 s{S_ROT}, s{S_I}, s{S_J}\ns_and_b32 s{S_ROT}, s{S_ROT}, 3")

def ids_late(a):
    a(f"s_mul_i32 s{S_P}, s{S_J}, 43\ns_add_u32 s{S_NP}, s{S_P}, 43\ns_lshr_b32 s{S_P}, s{S_P}, 4\ns_lshr_b32 s{S_NP}, s{S_NP}, 4\ns_sub_u32 s{S_NP}, s{S_NP}, s{S_P}")
    a(f"s_and_b32 s40, s2, 3\ns_bfe_u32 s41, s2, 0x10002\ns_lshl1_add_u32 s40, s40, s41\ns_bfe_u32 s41, s2, 0x20003\ns_lshl2_add_u32 s{S_T}, s40, s41\ns_lshr_b32 s{S_CJ}, s2, 5")
    a(f"s_lshl_b32 s{S_COL}, s{S_CJ}, 5\ns_add_u32 s{S_COL}, s{S_COL}, s{S_T}")
    for d, src, n in ((S_W1, 72, 512*2752), (S_W3, 74, 512*2752), (S_W2, 76, 1376*1024), (S_OUT, 78, 2048*1024)):
        a(f"s_mov_b64 s[{d}:{d+1}], s[{src}:{src+1}]\ns_mov_b32 s{d+2}, {n}\ns_mov_b32 s{d+3}, 0x20000")
    a(f"s_mov_b32 s{S_WS+2}, 0x10000000\ns_mov_b32 s{S_WS+3}, 0x20000")
    a(f"s_add_u32 s80, s{S_WS}, {GF_EPOCH}\ns_addc_u32 s81, s{S_WS+1}, 0")
    a(f"s_lshl_b32 s40, s2, 8\ns_add_u32 s40, s40, {MBOX}\ns_add_u32 s{S_MB}, s{S_WS}, s40\ns_addc_u32 s{S_MB+1}, s{S_WS+1}, 0")
    Stamps.clear(a)

def warm(a, segs):
    if "hop" not in OPT: return
    a("s_mov_b64 exec, 0")
    for sg in segs: a(f"s_call_b64 s[0:1], hs_{sg}_0")
    a("s_mov_b64 exec, -1")

def make_tag(a):
    a(f"s_mul_i32 s{S_TAG}, s{S_TAG}, 0x9E3779B1\ns_add_u32 s{S_TAG}, s{S_TAG}, 0x7F4A7C15")

def flag_store(a, soff, level, vt):
    a(f"s_add_u32 s40, s{S_TAG}, {level}\nv_mov_b32 v{vt}, s40")
    a("s_mov_b64 exec, 1")
    a(f"buffer_store_dword v{vt}, off, {sr(S_WS)}, s{soff} {WT}")
    a("s_mov_b64 exec, -1")

def h_post(a):
    a("s_mov_b32 s59, 0x10000")
    for i in range(8): a(f"s_atomic_add s59, s[60:61], {8192*i}")

def wg_signal(a, cnt_word, n, event, vaddr, vone, vt):
    zf = a.label("zf")
    if n > 1:
        a("s_mov_b64 exec, 1")
        a(f"ds_add_rtn_u32 v{vt}, v{vaddr}, v{vone} offset:{cnt_word - MISC}\ns_mov_b64 exec, -1\ns_waitcnt lgkmcnt(0)\nv_readfirstlane_b32 s40, v{vt}")
        a(f"s_cmp_lg_u32 s40, {n - 1}\ns_cbranch_scc1 {zf}")
    if event == 0:
        a(f"s_and_b32 s43, s2, 1\ns_lshl_b32 s41, s43, 7\ns_mov_b32 s40, 1")
        a(f"s_atomic_add s40, s[{S_DBG}:{S_DBG+1}], s41 glc\ns_waitcnt lgkmcnt(0)")
        a(f"s_and_b32 s40, s40, 127\ns_cmp_lg_u32 s40, 127\ns_cbranch_scc1 {zf}")
    else:
        a(f"s_bfe_u32 s43, s2, 0x30003\ns_lshl_b32 s41, s43, 7\ns_add_u32 s41, s41, {GCNT - GF_EPOCH}\ns_mov_b32 s40, 1")
        a(f"s_atomic_add s40, s[80:81], s41 glc\ns_waitcnt lgkmcnt(0)")
        a(f"s_cmp_lg_u32 s40, 31\ns_cbranch_scc1 {zf}")
    a(f"s_lshl_b32 s43, s43, 2\ns_add_u32 s43, s43, {MBOX + 32*event}\ns_add_u32 s40, s{S_TAG}, 1\nv_mov_b32 v{vt}, s40\nv_lshlrev_b32 v{vt+1}, 8, v1")
    for i in range(4):
        a(f"buffer_store_dword v{vt}, v{vt+1}, {sr(S_WS)}, s43 offen {WT}\ns_add_u32 s43, s43, 0x4000")
    a(f"{zf}:")

def wait_go(a, event):
    top, done = a.label("gp"), a.label("gpd")
    a(f"s_mov_b32 s41, {GSPIN}\ns_add_u32 s42, s{S_TAG}, 1\ns_mov_b32 s43, s42")
    a(f"{top}:")
    if event == 0:
        a(f"s_load_dwordx2 s[44:45], s[{S_MB}:{S_MB+1}], 0 glc\ns_waitcnt lgkmcnt(0)\ns_xor_b64 s[44:45], s[44:45], s[42:43]\ns_cbranch_scc0 {done}")
    else:
        a(f"s_load_dwordx8 s[44:51], s[{S_MB}:{S_MB+1}], 32 glc\ns_waitcnt lgkmcnt(0)")
        for i in range(4): a(f"s_xor_b64 s[{44+2*i}:{45+2*i}], s[{44+2*i}:{45+2*i}], s[42:43]")
        a(f"s_or_b64 s[44:45], s[44:45], s[46:47]\ns_or_b64 s[48:49], s[48:49], s[50:51]\ns_or_b64 s[44:45], s[44:45], s[48:49]\ns_cbranch_scc0 {done}")
    a(f"s_sleep {PSLEEP}\ns_sub_u32 s41, s41, 1\ns_cbranch_scc0 {top}")
    a(f"{done}:")

def level_load(a):
    a(f"s_load_dword s53, s[{S_MB}:{S_MB+1}], s54 glc")

def level_test(a, need):
    a(f"s_bitcmp1_b32 s53, {8 * need - 4 + (need == 3)}")

def pair_table(a, vt, t1, t2, sx=40):
    a(f"s_and_b32 s{sx}, s{S_T}, 3\ns_lshl1_add_u32 s{sx}, s{sx}, s{S_CJ}\ns_lshl_b32 s{sx}, s{sx}, 1\ns_and_b32 s{sx}, s{sx}, 15\ns_mul_i32 s{sx+1}, s{sx}, 11\ns_lshr_b32 s{sx+1}, s{sx+1}, 4\ns_sub_u32 s{sx+1}, s{sx+1}, 32")
    a(f"v_add_u32 v{t1}, s{sx+1}, v1\nv_subrev_u32 v{t2}, 11, v{t1}\nv_min_u32 v{t1}, v{t1}, v{t2}")
    a(f"v_lshrrev_b32 v{t2}, 1, v{t1}\nv_add3_u32 v{t1}, v{t1}, v{t2}, 1\nv_min_u32 v{t1}, 15, v{t1}")
    a(f"v_add_u32 v{t2}, s{sx}, v1\nv_and_b32 v{t2}, 15, v{t2}\nv_cmp_gt_u32 vcc, 32, v1\nv_cndmask_b32 v{t1}, v{t1}, v{t2}, vcc\nv_mul_u32_u24 v{t1}, 43, v{t1}")
    a(f"v_cndmask_b32 v{t2}, 16, 27, vcc\nv_cmp_gt_u32 vcc, 16, v1\nv_cndmask_b32 v{t2}, v{t2}, 0, vcc\nv_add_u32 v{t1}, v{t1}, v{t2}\nv_lshrrev_b32 v{vt}, 4, v{t1}")

def lv_take(a): a("v_readfirstlane_b32 s40, v2\ns_max_u32 s53, s53, s40")

def h_wait(a, need):
    top, done = a.label("hp"), a.label("hpd")
    level_test(a, need)
    a(f"s_cbranch_scc1 {done}\ns_mov_b32 s41, {SPIN}")
    a(f"{top}:")
    a(f"ds_read_b32 v2, v9 offset:{FL_LV - MISC}\ns_waitcnt lgkmcnt(0)"); lv_take(a); level_test(a, need)
    a(f"s_cbranch_scc1 {done}\ns_sub_u32 s41, s41, 1\ns_cbranch_scc0 {top}")
    a(f"{done}:")

def lv_poll(a, loop):
    top, done = a.label("lp"), a.label("lpd")
    a(f"s_mov_b32 s41, {GSPIN}\n{top}:")
    a(f"s_load_dword s52, s[{S_MB}:{S_MB+1}], 128 glc\ns_waitcnt lgkmcnt(0)\nv_mov_b32 v16, s52\nds_write_b32 v25, v16 offset:{FL_LV - MISC}")
    if loop:
        a(f"s_and_b32 s52, s52, 0xffffff\ns_cmp_eq_u32 s52, 0x201010\ns_cbranch_scc1 {done}\ns_sub_u32 s41, s41, 1\ns_cbranch_scc0 {top}\n{done}:")

def mbox_off(a, dst, grp):
    a(f"s_bfe_u32 s40, s{grp}, 0x20003\ns_and_b32 s41, s{grp}, 4\ns_add_u32 s40, s40, s41\ns_and_b32 s41, s{grp}, 3\ns_lshl3_add_u32 s{dst}, s41, s40\ns_lshl_b32 s{dst}, s{dst}, 8")
    a(f"s_lshr_b32 s40, s{grp}, 5\ns_lshl2_add_u32 s{dst}, s40, s{dst}\ns_add_u32 s{dst}, s{dst}, {MBOX + 128}")

def check(a, stubs, scache, need, areg, off, vt, minof=1, before_spin=None):
    back, sl = a.label("fb"), a.label("fs")
    a(f"s_cmp_ge_u32 s{scache}, {need}")
    a(f"s_cbranch_scc0 {sl}")
    a(f"{back}:")
    stubs.append((sl, back, scache, need, areg, off, vt, minof, before_spin))

def emit_stubs(a, stubs):
    for (sl, back, sc, need, areg, off, vt, minof, before_spin) in stubs:
        a(f"{sl}:")
        if before_spin:
            a(f"ds_read_b32 v{vt}, v{areg} offset:{off}\ns_waitcnt lgkmcnt(0)\nv_readfirstlane_b32 s{sc}, v{vt}")
            a(f"s_cmp_ge_u32 s{sc}, {need}\ns_cbranch_scc1 {back}")
            before_spin()
        lds_wait_ge(a, areg, off, need, vt, sc, 41, minof=minof, sleep=1)
        a(f"s_branch {back}")

X0, ACC, AF, PD = 128, (64, 96), 32, 3

def x_setup(a):
    a(f"s_and_b32 s40, s3, 1\ns_lshl1_add_u32 s50, s{S_I}, s40\ns_lshr_b32 s41, s3, 1\ns_lshl_b32 s41, s41, 5\ns_add_u32 s50, s50, s41")
    a("s_lshl_b32 s51, s3, 15")
    a("s_lshr_b32 s41, s50, 3\ns_lshl_b32 s41, s41, 18\ns_and_b32 s42, s50, 7\ns_lshl_b32 s42, s42, 12\ns_add_u32 s56, s41, s42")
    a(f"s_lshl_b32 s40, s{S_ROT}, 8\ns_add_u32 s52, s56, s40")
    if "nors" not in OPT: a(f"s_and_b32 s63, s{S_J}, 4\ns_lshr_b32 s40, s{S_J}, 2\ns_and_b32 s40, s40, 2\ns_or_b32 s63, s63, s40")
    else: a(f"s_lshr_b32 s63, s{S_J}, 1\ns_and_b32 s63, s63, 6")
    a("v_lshrrev_b32 v20, 4, v1\nv_and_b32 v21, 15, v1\nv_xor_b32 v21, v21, v20\nv_lshlrev_b32 v21, 4, v21\nv_lshl_add_u32 v20, v20, 10, v21")
    a("s_and_b32 s40, s63, 2\ns_lshl_b32 s40, s40, 6\nv_xor_b32 v16, s40, v20\nv_xor_b32 v17, 64, v16\nv_xor_b32 v18, 0x80, v16\nv_xor_b32 v19, 0x80, v17")
    a("s_lshl_b32 s63, s63, 10")

def touch_setup(a):
    a(f"s_mul_i32 s{S_P}, s{S_J}, 43\ns_lshr_b32 s{S_P}, s{S_P}, 4\ns_lshr_b32 s40, s3, 1\ns_lshl1_add_u32 s40, s{S_ROT}, s40\ns_mul_i32 s48, s40, {64*2752}")
    a(f"s_lshl_b32 s40, s{S_P}, 6\ns_add_u32 s48, s48, s40\nv_mul_u32_u24 v44, 2752, v1")
    a(f"s_mov_b32 s14, {512*2752}\ns_mov_b32 s15, 0x20000")

def touch_issue(a, off):
    a(f"buffer_load_dword v127, v44, s[12:15], s48 offen offset:{off}")

def x_setup_late(a):
    for c in range(1, 4):
        a(f"s_add_u32 s40, s{S_ROT}, {c}\ns_and_b32 s40, s40, 3\ns_lshl_b32 s40, s40, 8\ns_add_u32 s{52+c}, s56, s40")

def x_issue(a, c, between=None):
    a(f"s_add_u32 s41, s51, {c*SLOT}" if c else "s_mov_b32 s41, s51")
    for e in range(8):
        a(f"s_xor_b32 s42, s63, {e << 10}" if e else "s_mov_b32 s42, s63")
        a("s_add_u32 m0, s41, s42\ns_lshl_b32 s42, s42, 5")
        a(f"s_add_u32 s40, s42, s{52+c}")
        a(f"buffer_load_dwordx4 v{16+(e&3)}, {sr(S_X)}, s40 offen lds")
        if between: between(e)

def epilogue_ops(acc, level, direct=False):
    ev = []
    for n in range(16):
        tau, r = n // 8, n % 8
        g, u = acc + 16*tau + r, acc + 16*tau + 8 + r
        ev += [(n, 0, f"v_mul_f32 v{u}, v{g}, v{u}"), (n, 1, f"v_mul_f32 v{g}, v10, v{g}"), (n + 1, 2, f"v_exp_f32 v{g}, v{g}"),
               (n + 2, 3, f"v_fma_f32 v{g}, v{g}, v11, v11"), (n + 3, 5, f"v_rcp_f32 v{g}, v{g}"), (n + 4, 4, f"v_mul_f32 v{u}, v{u}, v{g}")]
        if r & 1: ev.append((n + 5, 6, f"v_cvt_pk_bf16_f32 v{24 + 4*tau + r // 2}, v{u-1}, v{u}"))
    ops = [o for _, _, o in sorted(ev, key=lambda t: (t[0], t[1]))]
    if direct:
        ops.insert(len(ops) - 30, f"buffer_store_dwordx4 v[24:27], v3, {sr(S_WS)}, s62 offen {WT}")
        return ops + [f"buffer_store_dwordx4 v[28:31], v3, {sr(S_WS)}, s62 offen offset:1024 {WT}"]
    ops.insert(len(ops) - 6, ("ds", "ds_write_b128 v22, v[24:27]"))
    ops.insert(len(ops) - 2, f"v_mov_b32 v23, {level}")
    return ops + [("ds", "ds_write_b128 v22, v[28:31] offset:1024"), ("ds", f"ds_write_b32 v9, v23 offset:{FL_HS - MISC}")]

def HB(p): return X0 + 4*p if p < 32 else 84 + 4*(p - 32)
def h_pre(a, p): a(f"v_readlane_b32 s{68 + p % 4}, v8, {p}")
def h_load(a, p): a(f"buffer_load_dwordx4 v[{HB(p)}:{HB(p)+3}], v3, {sr(S_WS)}, s{68 + p % 4} offen {RD}")
def h_burst(a, lo, hi):
    for p in range(lo, min(lo + 3, hi)): h_pre(a, p)
    for p in range(lo, hi):
        if p + 3 < hi: h_pre(a, p + 3)
        h_load(a, p)

def g1_main(a):
    dq = DsQ(a); slow = []
    a(f"s_lshl_b32 s40, s3, 2\ns_add_u32 s40, s40, {MISC}\nv_mov_b32 v9, s40")
    a("v_lshlrev_b32 v3, 4, v1")
    a("v_and_b32 v20, 31, v1\nv_lshrrev_b32 v21, 5, v1\nv_and_b32 v22, 15, v1\nv_xor_b32 v21, v21, v22\nv_lshlrev_b32 v21, 4, v21")
    a("v_lshl_add_u32 v24, v20, 8, v21\nv_add_u32 v24, s51, v24")
    for j in range(1, 8): a(f"v_xor_b32 v{24+j}, {32*j}, v24")
    a("v_bfe_u32 v20, v1, 4, 1\nv_lshrrev_b32 v21, 5, v1\nv_bfe_u32 v22, v1, 2, 2")
    a(f"v_add_u32 v8, s{S_P}, v22\nv_and_b32 v8, 1, v8")
    a("v_lshrrev_b32 v22, 1, v22\nv_lshl_add_u32 v22, v21, 2, v22\nv_lshl_add_u32 v22, v8, 1, v22\nv_lshlrev_b32 v22, 6, v22")
    a("v_lshl_add_u32 v22, v20, 12, v22\nv_lshl_add_u32 v22, v20, 5, v22")
    a("v_and_b32 v21, 1, v1\nv_lshl_add_u32 v22, v21, 4, v22\nv_bfe_u32 v21, v1, 1, 1\nv_lshl_add_u32 v4, v21, 3, v22")
    a("v_xor_b32 v5, 128, v4\nv_xor_b32 v6, 32, v4\nv_xor_b32 v7, 160, v4")
    a(f"s_mul_i32 s62, s50, 86\ns_lshl1_add_u32 s62, s{S_P}, s62\ns_lshl_b32 s62, s62, 10\ns_add_u32 s62, s62, {WS_H + 2048}")
    a("s_and_b32 s61, s50, 31"); mbox_off(a, 59, 61)
    a(f"s_add_u32 s60, s{S_WS}, s59\ns_addc_u32 s61, s{S_WS+1}, 0")
    a("s_mov_b32 s56, 0x3f803f80\ns_mov_b32 s57, 0x00003f80\ns_mov_b32 s58, 0x3f800000")
    def reads(c):
        for j in range(8):
            r = X0 + 32*c + 4*j
            dq.op(f"ds_read_b128 v[{r}:{r+3}], v{24+j} offset:{c*SLOT}", ("x", c, j))
        a(f"v_mov_b32 v14, {c + 1}")
        dq.op(f"ds_write_b32 v9, v14 offset:{FL_FREE - MISC}")
    def sums(c, only=None):
        for j in (range(8) if only is None else [only]):
            if j % 2 == 0: dq.wait(("x", c, j + 1))
            for r in range(X0 + 32*c + 4*j, X0 + 32*c + 4*j + 4):
                first = (r == X0)
                a(f"v_dot2_f32_bf16 v10, v{r}, s56, {'0' if first else 'v10'}")
                a(f"v_dot2_f32_bf16 v11, v{r}, v{r}, {'0' if first else 'v11'}")
    wd = a.label("wd")
    if "hopm" in OPT:
        for w, segs in enumerate((["x0"], ["x1"], ["x2"], ["x3"])):
            nx = a.label("wn")
            if w < 3: a(f"s_cmp_lg_u32 s3, {w}\ns_cbranch_scc1 {nx}")
            warm(a, segs)
            if w < 3: a(f"s_branch {wd}\n{nx}:")
        a(f"{wd}:")
    if "mx" in OPT: a("s_setprio 3")
    x_issue(a, 1)
    Stamps.at(a, 6)
    if "hopm" in OPT: a(f";@seg x0 {HV}")
    a("s_waitcnt vmcnt(8)"); Stamps.at(a, 1); reads(0)
    x_issue(a, 2, lambda e: sums(0, e))
    a("s_waitcnt vmcnt(8)"); reads(1)
    x_issue(a, 3, lambda e: sums(1, e))
    if "mx" in OPT: a("s_setprio 0")
    T3L = "t3" in OPT
    if T3L: touch_issue(a, 128)
    if "hopm" in OPT: a(f";@seg x1 {HV}")
    a(f"s_waitcnt vmcnt({8 + T3L})"); reads(2); sums(2)
    a(f"s_waitcnt vmcnt({0 + T3L})"); Stamps.at(a, 2); reads(3)
    sums(3)
    a("v_mov_b32 v12, v10\nv_mov_b32 v13, v11")
    a("v_permlane32_swap_b32 v12, v10\nv_permlane32_swap_b32 v13, v11")
    a("v_add_f32 v10, v10, v12\nv_add_f32 v11, v11, v13")
    sub = Asm(); ln_scalars(sub, 10, 11, None)
    a(sub.lines[0])
    a("v_cvt_pk_bf16_f32 v31, -v10, -v10\nv_and_b32 v31, 0xffff0000, v31")
    rest = sub.lines[1:] + [f"v_mul_f32 v10, {f32(-math.log2(math.e))}, v11", "v_mul_f32 v11, v11, v11", "v_rcp_f32 v11, v11"]
    for j in range(32):
        for r in range(4 if "noctr" not in OPT else 0):
            x = X0 + 4*j + r; t = 16 + 2*r
            a(f"v_dot2_f32_bf16 v{t}, v{x}, s57, v31\nv_dot2_f32_bf16 v{t+1}, v{x}, s58, v31")
        if j in (2, 17) and "hopm" in OPT: a(f";@seg x{2 if j == 2 else 3} {HV}")
        if j < len(rest): a(rest[j])
        for r in range(4 if "noctr" not in OPT else 0): a(f"v_cvt_pk_bf16_f32 v{X0+4*j+r}, v{16+2*r}, v{17+2*r}")
        if j == 24: dq.op(f"ds_read_b32 v2, v9 offset:{FL_FULL - MISC}", "poll")
    PASS = "ABC"
    def base_calc(r):
        ps, q = PASS[r // 32], (r % 32) // 8
        bx, by = CELLS[(ps, "X", q)][0] * SLOT, CELLS[(ps, "Y", q)][0] * SLOT
        a(f"v_mul_i32_i24 v0, {by - bx}, v8\nv_add_u32 v0, {bx}, v0")
        return 8
    def full_check(r):
        ps, q = PASS[r // 32], (r % 32) // 8
        need_full = {"A": q + 1, "B": q + 5, "C": 0}[ps]
        if not need_full: return 0
        back, sl = a.label("g1b"), a.label("g1s")
        dq.wait("poll")
        a(f"v_readfirstlane_b32 s40, v2\ns_cmp_ge_u32 s40, {need_full}\ns_cbranch_scc0 {sl}")
        a(f"{back}:")
        slow.append((sl, back, need_full, FL_FULL))
        return 16
    def AB(r): return 12 + 4 * ((r // 8) & 1)
    def addr(r, tau):
        for i in (2*tau, 2*tau + 1): a(f"v_add_u32 v{AB(r)+i}, v0, v{4+i}")
        return 8
    def wreads(r, tau):
        j = r % 8; b = AF + 8 * (r % 4); cost = 8
        for rd in range(2):
            dq.op(f"ds_read_b64_tr_b16 v[{b+4*tau+2*rd}:{b+4*tau+2*rd+1}], v{AB(r)+2*tau+rd} offset:{512*j}", ("w", r))
        nxt = r - j + 8
        if nxt < 96:
            if j == 2 and tau == 0: cost += base_calc(nxt)
            if j == 4: cost += addr(nxt, tau)
            if j == 7 and tau == 0: cost += full_check(nxt)
            if j == 5 and tau == 0 and nxt < 64:
                dq.op(f"ds_read_b32 v2, v9 offset:{FL_FULL - MISC}", "poll"); cost += 4
        if j == 6 and tau == 1: a(f"v_mov_b32 v0, {5 + r // 8}"); cost += 4
        if j == 7 and tau == 1:
            dq.op(f"ds_write_b32 v9, v0 offset:{FL_FREE - MISC}"); cost += 4
        return cost
    a(f";@seg m1 {HM}")
    base_calc(0); addr(0, 0); addr(0, 1); full_check(0)
    for g in range(PD): wreads(g, 0); wreads(g, 1)
    Stamps.at(a, 3)
    fin2, done = a.label("g1fin2"), a.label("g1done")
    sub = Asm()
    sub(f"s_lshl_b32 s42, s3, 11\ns_add_u32 s42, s42, {HST}\nv_add_u32 v22, s42, v3\ns_movk_i32 s54, 128")
    sub(f"s_and_b32 s42, s3, 1\ns_lshl_b32 s42, s42, 5\ns_add_u32 s42, s42, s{S_T}\ns_mul_i32 s50, s42, 86")
    sub(f"s_lshr_b32 s51, s3, 1\ns_add_u32 s50, s50, s51\ns_lshl_b32 s50, s50, 10\ns_add_u32 s50, s50, {WS_H}")
    pair_table(sub, 20, 24, 25, 42)
    sub("v_lshlrev_b32 v20, 11, v20\nv_add_u32 v20, s50, v20")
    sub("v_bfe_u32 v24, v1, 2, 2\nv_lshrrev_b32 v25, 5, v1\nv_lshl_add_u32 v25, v25, 3, v24\ns_lshl_b32 s42, s51, 4\nv_add_u32 v25, s42, v25")
    sub("v_lshlrev_b32 v25, 7, v25\nv_lshrrev_b32 v24, 1, v24\nv_lshl_add_u32 v25, v24, 6, v25")
    sub("v_bfe_u32 v24, v1, 4, 1\nv_lshl_add_u32 v25, v24, 5, v25\nv_and_b32 v24, 3, v1\nv_lshl_add_u32 v21, v24, 3, v25")
    res_setup(sub, 42)
    EP = {0: [l.strip() for l in sub.lines], 1: epilogue_ops(ACC[0], 1), 2: epilogue_ops(ACC[1], 2)}
    opcost = lambda o: 8 if isinstance(o, tuple) or o.startswith(("v_exp", "v_rcp")) else 4
    def emit(o):
        if isinstance(o, tuple): dq.op(o[1])
        else: a(o)
    def step(g, extra=None):
        ps, j = g // 32, g % 32
        acc = ACC[ps & 1]; ep = EP[ps]
        b = AF + 8 * (g % 4)
        dq.wait(("w", g))
        for tau in range(2):
            d = acc + 16 * tau
            a(f"v_mfma_f32_32x32x16_bf16 v[{d}:{d+15}], v[{b+4*tau}:{b+4*tau+3}], v[{X0+4*j}:{X0+4*j+3}], " + ("0" if j == 0 else f"v[{d}:{d+15}]"))
            cost = 4 * tau
            if g + PD < 96: cost += wreads(g + PD, tau)
            if ps == 2 and j in (HSJ - 3, 26) and tau == 1:
                dq.op(f"ds_read_b32 v2, v9 offset:{FL_HSF - MISC}", "poll"); cost += 4
            if ps == 2 and j == HSJ and tau == 0:
                back, sl = a.label("g1b"), a.label("g1s")
                dq.wait("poll")
                a(f"v_readfirstlane_b32 s40, v2\ns_cmp_ge_u32 s40, 1\ns_cbranch_scc0 {sl}\n{back}:")
                slow.append((sl, back, 1, FL_HSF)); cost += 16
            if ps == 2 and j == 20 and tau == 0: level_load(a); cost += 4
            while ep and j >= 1 and cost + opcost(ep[0]) <= (GAPB if ps else 20):
                assert not (ps == 2 and isinstance(ep[0], tuple) and j < HSJ)
                o = ep.pop(0); cost += opcost(o); emit(o)
                if not ep: print("fill list", ps, "ends at step", j)
            if extra: extra(tau)
    for g in range(96 - ET):
        if g == 32: a(f";@seg m2 {HM}\ns_waitcnt vmcnt(0)")
        if "qs" in OPT and g % 8 == 0: Stamps.at(a, 1 + g // 8, True)
        step(g)
        if g % 32 == 31:
            assert not EP[g // 32]
            Stamps.at(a, 4 + g // 32)
        if g == 63:
            a(f"s_cmp_eq_u32 s{S_NP}, 2\ns_cbranch_scc1 {fin2}")
    assert not EP[2]
    if "qs" in OPT: Stamps.at(a, 13, True)
    if "mp" in OPT: a("s_setprio 3")
    late = a.label("g1late")
    a("v_mov_b32 v8, v20\ns_waitcnt lgkmcnt(0)\nv_readfirstlane_b32 s56, v2"); dq.q = []
    def final_ep(acc, level, need, extra=None):
        checked = False
        for n, o in enumerate(epilogue_ops(acc, level, level == 3)):
            if isinstance(o, tuple) and not checked:
                back, sl = a.label("g1b"), a.label("g1s")
                a(f"s_cmp_ge_u32 s56, {need}\ns_cbranch_scc0 {sl}\n{back}:"); slow.append((sl, back, need, FL_HSF)); checked = True
            a(o[1] if isinstance(o, tuple) else o)
            if extra: extra(n)
    level_test(a, 1)
    a(f"s_cbranch_scc0 {late}")
    for p in range(3): h_pre(a, p)
    nxt = [0]
    def early(tau):
        p = nxt[0]
        if p >= B0: return
        if p + 3 < B0: h_pre(a, p + 3)
        h_load(a, p); nxt[0] += 1
    for g in range(96 - ET, 96): step(g, early)
    Stamps.at(a, 8)
    a(f";@seg m3 {HV}")
    level_load(a)
    final_ep(ACC[0], 3, 2)
    for _ in range(8): early(0)
    Stamps.at(a, 9)
    a(f"s_mov_b32 s58, 0\ns_branch {done}")
    a(f"{late}:")
    dq.q = []
    for g in range(96 - ET, 96): step(g)
    level_load(a)
    final_ep(ACC[0], 3, 2)
    a("s_waitcnt vmcnt(0)"); h_post(a)
    a("s_branch k_g2late")
    a(f"{fin2}:")
    if "mp" in OPT: a("s_setprio 3")
    a(f"v_mov_b32 v0, 16\nds_write_b32 v9, v0 offset:{FL_FREE - MISC}\ns_mov_b32 s56, 0\ns_mov_b32 s53, 0\nv_mov_b32 v8, v20")
    a("s_nop 15")
    final_ep(ACC[1], 2, 1)
    a("k_g2late:")
    a("s_mov_b32 s58, 1")
    a("s_waitcnt lgkmcnt(0)")
    h_wait(a, 1)
    h_burst(a, 0, B0)
    a(f"s_branch {done}")
    for (sl, back, n, word) in slow:
        a(f"{sl}:")
        lds_wait_ge(a, 9, word - MISC, n, 2, 40, 41)
        a(f"s_branch {back}")
    a(f"{done}:")

ACC2, AF2 = 52, 20

def slot_sel(a, dst, idx, slots):
    a(f"s_mov_b32 s{dst}, {slots[0]*SLOT}")
    for i in range(1, len(slots)):
        a(f"s_cmp_eq_u32 s{idx}, {i}\ns_cmov_b32 s{dst}, {slots[i]*SLOT}")

def g2_main(a):
    dq = DsQ(a); stubs = []
    TM.start(a); TM(a, "T0")
    vm = [("h", p) for p in range(B0)]
    for q in range(B0, B0 + 3): h_pre(a, q)
    a(f"s_mov_b32 s55, 0\ns_mov_b32 s57, 0\nds_read_b32 v2, v9 offset:{FL_FULL2 - MISC}")
    a("v_mov_b32 v4, v21\nv_xor_b32 v5, 64, v21\nv_add_u32 v6, 0x10000, v4\nv_add_u32 v7, 0x10000, v5\nv_add_u32 v18, 0x20000, v4\nv_add_u32 v19, 0x20000, v5")
    a("s_waitcnt lgkmcnt(0)\nv_readfirstlane_b32 s52, v2")
    Stamps.at(a, 11)
    a(f";@sp {HM}")
    AR = [4, 6, 18]
    NB = 4
    def reads(p, dl):
        c = p // 2
        if p % 2 == 0 and dl == 0 and (c % CK == 0 or c >= 8): check(a, stubs, 57 if c in H3C else 52, c + 1 if c >= 8 else c + CK, 9, (FL_FULL3 if c in H3C else FL_FULL2) - MISC, 16)
        base = CELLS[("w", c)][0] * SLOT + (p % 2) * 4096
        w, off = base >> 16, base & 0xffff
        b = AF2 + 8 * (p % NB)
        for rd in range(2):
            dq.op(f"ds_read_b64_tr_b16 v[{b+4*dl+2*rd}:{b+4*dl+2*rd+1}], v{AR[w]+dl} offset:{off + 512*rd}", ("w", p))
        if dl == 1 and p % 2 == 1 and 17 + c <= TB_REQ:
            a(f"v_mov_b32 v0, {17 + c}")
            dq.op(f"ds_write_b32 v9, v0 offset:{FL_FREE - MISC}")
    for p in range(PD): reads(p, 0); reads(p, 1)
    nq = [B0]
    sub = Asm()
    slot_sel(sub, 42, 3, TB)
    F = FIN
    sub(f"v_and_b32 v{F+8}, 31, v1\nv_lshrrev_b32 v{F+9}, 5, v1\nv_and_b32 v{F+10}, 7, v1\nv_xor_b32 v{F+9}, v{F+9}, v{F+10}\nv_lshlrev_b32 v{F+9}, 4, v{F+9}\nv_lshl_add_u32 v{F+8}, v{F+8}, 8, v{F+9}\nv_add_u32 v{F+8}, s42, v{F+8}")
    for g in range(1, 4): sub(f"v_xor_b32 v{F+8+g}, {32*g}, v{F+8}")
    sub(f"v_mov_b32 v{F+12}, {MISC}")
    final_setup(sub)
    unpack_res(sub, 12)
    tail = [l.strip() for l in sub.lines]
    for p in range(43):
        b = AF2 + 8 * (p % NB)
        a(f"s_waitcnt vmcnt({len(vm) - 1 - vm.index(('h', p))})")
        if p % 4 == 0: TM(a, f"p{p}")
        dq.wait(("w", p))
        for dl in range(2):
            d = ACC2 + 16 * dl
            a(f"v_mfma_f32_32x32x16_bf16 v[{d}:{d+15}], v[{b+4*dl}:{b+4*dl+3}], v[{HB(p)}:{HB(p)+3}], " + ("0" if p == 0 else f"v[{d}:{d+15}]"))
            if p + PD < 43: reads(p + PD, dl)
            if p >= 32:
                n = 0
                while tail and (n < 3 or tail[0].startswith("s_cmov")):
                    a(tail.pop(0)); n += 1
        if p == 41: dq.op(f"ds_read_b128 v[4:7], v{F+12} offset:{FL_FREE - MISC}", "fr")
        for _ in range(2 if (p < R2 or 16 <= nq[0] < 16 + 2 * CU or (nq[0] >= 32 and "c3" in OPT)) else 1):
            q = nq[0]
            if q == 16:
                sk = a.label("ep")
                a(f"s_cmp_lg_u32 s58, 0\ns_cbranch_scc1 {sk}\ns_waitcnt vmcnt({16 - B0})"); h_post(a); a(f"{sk}:")
            if q in (16, 32):
                TM(a, f"w{q}"); dq.wait("lv"); lv_take(a); h_wait(a, q // 16 + 1); TM(a, f"L{q}")
            if q < 43:
                if q + 3 < 43: h_pre(a, q + 3)
                h_load(a, q); vm.append(("h", q))
            if q in (14, 30): dq.op(f"ds_read_b32 v2, v9 offset:{FL_LV - MISC}", "lv")
            if q == 24:
                res_load(a, 12, 11); vm.append("r")
            nq[0] += 1
    for o in tail: a(o)
    TM(a, "loopend")
    dq.wait("fr")
    a("v_min_u32 v4, v4, v5\nv_min3_u32 v4, v4, v6, v7\nv_readfirstlane_b32 s52, v4")
    check(a, stubs, 52, TB_REQ, F + 12, FL_FREE - MISC, 4, minof=4)
    Stamps.at(a, 14)
    for dl in range(2):
        for g in range(4):
            r = ACC2 + 16*dl + 4*g
            a(f"ds_write_b128 v{F+8+g}, v[{r}:{r+3}] offset:{128*dl}")
    TM(a, "written"); TM.park(a)
    a("s_branch k_fin2")
    return stubs

def res_setup(a, t=40):
    a(f"s_lshr_b32 s{t}, s3, 2\ns_lshl_b32 s{t}, s{t}, 20\ns_lshr_b32 s{t+1}, s{S_T}, 3\ns_lshl_b32 s{t+1}, s{t+1}, 18\ns_add_u32 s{t}, s{t}, s{t+1}")
    a(f"s_and_b32 s{t+1}, s{S_T}, 7\ns_lshl_b32 s{t+1}, s{t+1}, 12\ns_add_u32 s{t}, s{t}, s{t+1}\ns_and_b32 s{t+1}, s3, 3\ns_lshl_b32 s{t+1}, s{t+1}, 16\ns_add_u32 s{t}, s{t}, s{t+1}")
    a(f"s_lshl_b32 s{t+1}, s{S_CJ}, 7\ns_add_u32 s{S_RES}, s{t}, s{t+1}")

def res_load(a, dst, voff):
    a(f"v_bfe_u32 v{dst}, v1, 3, 2\nv_and_b32 v{voff}, 7, v1\nv_lshlrev_b32 v{voff}, 4, v{voff}\nv_lshl_add_u32 v{voff}, v{dst}, 10, v{voff}")
    a(f"v_lshrrev_b32 v{dst}, 5, v1\nv_lshl_add_u32 v{voff}, v{dst}, 15, v{voff}")
    a(f"buffer_load_dwordx4 v[{dst}:{dst+3}], v{voff}, {sr(S_X)}, s{S_RES} offen")

def res_issue(a, dst, voff):
    res_setup(a); res_load(a, dst, voff)

FIN, XU = 128, 144
def final_setup(a):
    F = FIN
    a("s_and_b32 s44, s3, 3\ns_lshl_b32 s44, s44, 11\ns_lshr_b32 s45, s3, 2")
    slot_sel(a, 42, 45, TB[:2]); slot_sel(a, 43, 45, TB[2:])
    a(f"v_lshrrev_b32 v{F}, 3, v1\nv_and_b32 v{F+1}, 7, v1\nv_lshlrev_b32 v{F+1}, 1, v{F+1}\nv_xor_b32 v{F+1}, v{F+1}, v{F}\nv_lshlrev_b32 v{F+1}, 4, v{F+1}")
    a(f"v_lshl_add_u32 v{F}, v{F}, 8, v{F+1}\nv_add_u32 v{F}, s44, v{F}\nv_xor_b32 v{F+1}, 16, v{F}")
    a(f"v_add_u32 v{F+4}, s42, v{F}\nv_add_u32 v{F+5}, s42, v{F+1}\nv_add_u32 v{F+6}, s43, v{F}\nv_add_u32 v{F+7}, s43, v{F+1}")
    a(f"s_lshl_b32 s44, s3, 10\ns_add_u32 s44, s44, {TA*SLOT}\nv_lshl_add_u32 v{F}, v1, 4, s44")

def unpack_res(a, xr):
    for p in range(4):
        a(f"v_lshlrev_b32 v{XU+2*p}, 16, v{xr+p}\nv_and_b32 v{XU+2*p+1}, 0xffff0000, v{xr+p}")

def final_combine(a, xr, voff):
    final_setup(a)
    a("s_waitcnt vmcnt(0)")
    unpack_res(a, xr)
    a("k_fin2:")
    if Trace.on: a("s_memtime s[100:101]\ns_waitcnt lgkmcnt(0)\nv_writelane_b32 v100, s100, 60")
    a("s_waitcnt lgkmcnt(0)\ns_barrier")
    if Trace.on: a("s_memtime s[100:101]\ns_waitcnt lgkmcnt(0)\nv_writelane_b32 v100, s100, 61")
    R = 20
    a(f"ds_read_b128 v[{R+8}:{R+11}], v{FIN}")
    for q in range(2):
        a(f"ds_read_b128 v[{R+16+4*q}:{R+16+4*q+3}], v{FIN+4+q}")
        a(f"ds_read_b128 v[{R+24+4*q}:{R+24+4*q+3}], v{FIN+6+q}")
    a("s_waitcnt lgkmcnt(4)")
    for p in range(4): a(f"v_lshlrev_b32 v{R+2*p}, 16, v{R+8+p}\nv_and_b32 v{R+2*p+1}, 0xffff0000, v{R+8+p}")
    for p in range(4): a(f"v_pk_add_f32 v[{R+2*p}:{R+2*p+1}], v[{R+2*p}:{R+2*p+1}], v[{XU+2*p}:{XU+2*p+1}]")
    for p in range(4):
        if p % 2 == 0: a(f"s_waitcnt lgkmcnt({2 if p == 0 else 0})")
        r = R + 2*p
        a(f"v_pk_add_f32 v[{r+16}:{r+17}], v[{r+16}:{r+17}], v[{r+24}:{r+25}]")
        a(f"v_pk_add_f32 v[{r}:{r+1}], v[{r}:{r+1}], v[{r+16}:{r+17}]")
        a(f"v_cvt_pk_bf16_f32 v{xr+p}, v{r}, v{r+1}")
    a(f"buffer_store_dwordx4 v[{xr}:{xr+3}], v{voff}, {sr(S_OUT)}, s{S_RES} offen {'sc0 sc1' if 'owt' in OPT else 'nt' if 'ont' in OPT else ''}")

def loader(a):
    a(f"v_mov_b32 v2, {MISC}")
    a("v_and_b32 v16, 3, v1\nv_lshl_add_u32 v16, v16, 2, v2")
    a("v_lshrrev_b32 v8, 2, v1\nv_and_b32 v9, 3, v1\nv_lshlrev_b32 v9, 4, v9\nv_xor_b32 v10, 2, v8")
    a("v_mul_u32_u24 v8, 5504, v8\nv_mul_u32_u24 v10, 5504, v10\nv_xor_b32 v11, 32, v9")
    a("v_add_u32 v4, v8, v9\nv_add_u32 v5, v8, v11\nv_add_u32 v6, v10, v9\nv_add_u32 v7, v10, v11")
    a("v_lshrrev_b32 v8, 3, v1\nv_and_b32 v9, 7, v1\nv_bfe_u32 v10, v1, 4, 1\nv_lshlrev_b32 v10, 2, v10\nv_xor_b32 v10, v10, v9")
    a("v_lshlrev_b32 v10, 4, v10\nv_lshl_add_u32 v17, v8, 10, v10")
    for q in range(4):
        a(f"s_add_u32 s40, s{S_ROT}, {q}\ns_and_b32 s40, s40, 3\ns_mul_i32 s{44+q}, s40, {128*2752}")
    a(f"s_and_b32 s40, s{S_P}, 1\ns_mul_i32 s48, s40, 2752\ns_sub_u32 s49, 2752, s48")
    a(f"s_lshl_b32 s40, s{S_P}, 6\ns_add_u32 s48, s48, s40\ns_add_u32 s49, s49, s40")
    a(f"s_lshl_b32 s50, s{S_CJ}, 7\ns_mov_b32 s52, 0")
    pair_table(a, 18, 19, 20)
    a("v_lshlrev_b32 v18, 15, v18\nv_add_u32 v18, s50, v18\nv_lshlrev_b32 v19, 4, v1")
    Stamps.at(a, 7)
    two, w2l = a.label("ld2"), a.label("ldw2")
    if "noload" in OPT:
        a("s_waitcnt vmcnt(0)\nv_mov_b32 v3, 1"); wg_signal(a, FL_Z_CNT, 2, 0, 2, 3, 12)
        a(f"v_mov_b32 v3, 99\nds_write_b32 v16, v3 offset:{FL_FULL - MISC}\nds_write_b32 v16, v3 offset:{FL_FULL2 - MISC}\ns_branch k_ldend")
    a(f"s_cmp_eq_u32 s{S_NP}, 2\ns_cbranch_scc1 {two}")
    class Pipe:
        def __init__(s): s.items = []; s.seen = 0; s.depth = DEPTH
        def publish(s, it):
            if it[0] is None: return
            a(f"v_mov_b32 v3, {it[1]}\ns_mov_b64 exec, 15\nds_max_u32 v16, v3 offset:{it[0] - MISC}\ns_mov_b64 exec, -1")
        def probe(s, req, ok):
            a(f"s_call_b64 s[54:55], k_ldprobe\ns_cmp_ge_u32 s52, {req}\ns_cbranch_scc1 {ok}")
        def need(s, req):
            if req <= s.seen: return
            ok = a.label("ldok")
            a(f"s_cmp_ge_u32 s52, {req}\ns_cbranch_scc1 {ok}")
            for i, it in enumerate(s.items):
                if it[0] is None: continue
                s.probe(req, ok)
                a(f"s_waitcnt vmcnt({sum(x[2] for x in s.items[i+1:])})"); s.publish(it)
            lds_wait_ge(a, 2, FL_FREE - MISC, req, 12, 52, 41, minof=4, sleep=LSL)
            a(f"{ok}:")
            s.seen = req
        def done(s, word, val, cnt):
            s.items.append((word, val, cnt))
            while len(s.items) > 1 and sum(x[2] for x in s.items) > s.depth:
                it = s.items.pop(0)
                a(f"s_waitcnt vmcnt({sum(x[2] for x in s.items)})"); s.publish(it)
        def flush(s, keep=0):
            while len(s.items) > keep:
                it = s.items.pop(0)
                a(f"s_waitcnt vmcnt({sum(x[2] for x in s.items)})"); s.publish(it)
    def variant(np_):
        pp = Pipe()
        for grp in range(8):
            st, q = grp // 4, grp % 4
            if st == 0: seq = [[("A", "X", 0), ("C", "X", 64)], [("A", "Y", 0)]]
            else:       seq = [[("C", "Y", 64), ("B", "Y", 64 * (np_ - 1))], [("B", "X", 64 * (np_ - 1))]]
            if np_ == 2 or "noC" in OPT: seq = [[c for c in s if c[0] != "C"] for s in seq]
            if "halfw" in OPT: seq = [seq[0], []]
            tot = 0
            for si, s in enumerate(seq):
                if not s:
                    pp.done(FL_FULL, grp + 1, 0); continue
                pp.need(max([CELLS[(c[0], c[1], q)][1] for c in s] + [LGATE]))
                if grp == 4 and si == 0: lds_wait_ge(a, 2, FL_A_DONE - MISC, 2, 12, 40, 41)
                cl = s[0][1]; ci = 0 if cl == "X" else 1; cnt = 0
                for g in range(4):
                    for mat in range(2):
                        for n, (ps, _, off) in enumerate(s):
                            dst = CELLS[(ps, cl, q)][0] * SLOT + mat * 4096 + g * 1024
                            neg = dst - off < 0
                            a(f"s_mov_b32 m0, {dst if neg else dst - off}")
                            if mat == 0 and n == 0:
                                a(f"s_add_u32 s42, s{44+q}, s{48+ci}" if g == 0 else f"s_add_u32 s42, s42, {32*2752}")
                            if neg:
                                a(f"s_add_u32 s43, s42, {off}\nbuffer_load_dwordx4 v{4+2*ci+mat}, {sr(S_W1 + 4*mat)}, s43 offen lds")
                            else:
                                a(f"buffer_load_dwordx4 v{4+2*ci+mat}, {sr(S_W1 + 4*mat)}, s42 offen offset:{off} lds")
                            cnt += 1
                tot += cnt
                pp.done(FL_FULL if si == 1 else None, grp + 1, cnt)
            if grp in (1, 3, 5, 7): Stamps.at(a, 8 + grp // 2)
            if grp == 1: a(f"s_setprio {LPRIO}")
        while pp.items and pp.items[0][1] < 8:
            pp.flush(keep=len(pp.items) - 1)
        return pp
    p3 = variant(3)
    a(f"s_branch {w2l}")
    a("k_ldprobe:")
    a(f"ds_read_b128 v[12:15], v2 offset:{FL_FREE - MISC}\ns_waitcnt lgkmcnt(0)")
    a("v_min_u32 v12, v12, v13\nv_min3_u32 v12, v12, v14, v15\nv_readfirstlane_b32 s52, v12\ns_nop 0\ns_setpc_b64 s[54:55]")
    a(f"{two}:")
    p2 = variant(2)
    a(f";@seg ld2 {HV}")
    a(f"{w2l}:")
    pp = Pipe(); pp.items = [(FL_FULL, 8, 24)]; pp.seen = min(p3.seen, p2.seen); pp.depth = DEPTH2
    TL.start(a)
    a("v_lshlrev_b32 v19, 4, v1")
    staged = list(range(22 - NST, 22))
    order = [("d", c) for c in range(22) if c not in staged and c not in H3C]
    for n, c in enumerate(staged): order.insert(1 + 2 * n, ("s", c))
    order += [("w", c) for c in staged]
    for kind, c in order:
        slot, req = CELLS[("w", c)]
        ps_ = list(range(2 * c, min(2 * c + 2, 43)))
        base = 32 + 32 * (c - (22 - NST))
        if kind != "w":
            for p in ps_: a(f"v_readlane_b32 s{44 + p % 2}, v18, {p}")
            a("s_nop 1")
        if kind != "s":
            pp.need(req)
            if c % 2 == 0: TL(a, f"c{c}")
        if kind == "w":
            a(f"v_add_u32 v20, {slot*SLOT}, v19")
            for i in range(4 * len(ps_)): a(f"ds_write_b128 v20, v[{base+4*i}:{base+4*i+3}] offset:{1024*i}")
            pp.flush(); pp.publish((FL_FULL2, c + 1))
            continue
        for p in ps_:
            for g in range(4):
                if kind == "d": a(f"s_mov_b32 m0, {slot*SLOT + (p % 2)*4096 + g*1024}")
                if g: a(f"s_add_u32 s{44 + p % 2}, s{44 + p % 2}, 8192")
                r = base + 16 * (p % 2) + 4 * g
                a(f"buffer_load_dwordx4 v17, {sr(S_W2)}, s{44 + p % 2} offen lds" if kind == "d" else
                  f"buffer_load_dwordx4 v[{r}:{r+3}], v17, {sr(S_W2)}, s{44 + p % 2} offen")
        pp.done(FL_FULL2 if kind == "d" else None, c + 1, 4 * len(ps_))
    TL(a, "issued")
    pp.flush()
    TL(a, "landed"); TL.park(a)

GF, ACCE, BE = 128, 64, 32

def g_first(a, n, dt16, t0):
    st, s7, ar = t0, t0 + 1, t0 + 2
    a(f"v_and_b32 v{st}, 15, v1\ns_lshr_b32 s40, s2, 5\ns_lshl_b32 s40, s40, 6\ns_add_u32 s40, s40, {dt16}\nv_add_u32 v{st}, s40, v{st}")
    a(f"v_cvt_f32_u32 v{st}, v{st}\nv_mul_f32 v{st}, {f32(1/512)}, v{st}\nv_mul_f32 v{s7}, {f32(7.0)}, v{st}")
    a(f"v_lshrrev_b32 v{ar}, 4, v1\nv_lshl_add_u32 v{ar}, v{ar}, 1, 1\nv_cvt_f32_u32 v{ar}, v{ar}\nv_mul_f32 v{ar}, v{ar}, v{st}")
    for i in range(32):
        if i: a(f"v_add_f32 v{ar}, v{ar}, v{st if i & 1 else s7}")
        t = t0 + 4 + 2 * (i & 1); p = t0 + 4 + 2 * ((i + 1) & 1)
        a(f"v_cos_f32 v{t}, v{ar}\nv_sin_f32 v{t+1}, v{ar}")
        if i: a(f"v_cvt_pk_bf16_f32 v{GF+64*n+i-1}, v{p}, -v{p+1}")
    a(f"v_cvt_pk_bf16_f32 v{GF+64*n+31}, v{t0+6}, -v{t0+7}")

def g_second(a, nt, t=4):
    a(f"v_and_b32 v{t}, 1, v1\nv_lshlrev_b32 v{t}, 4, v{t}\nv_bfe_u32 v{t+1}, v1, 1, 1\nv_lshlrev_b32 v{t+1}, 15, v{t+1}\nv_add_u32 v{t+2}, 1, v1\nv_bfe_u32 v{t+2}, v{t+2}, 1, 1\nv_lshl_or_b32 v{t+1}, v{t+2}, 31, v{t+1}")
    for n in range(nt):
        for i in range(32):
            r = GF + 64*n + i
            a(f"v_alignbit_b32 v{r+32}, v{r}, v{r}, v{t}")
        for i in range(32):
            r = GF + 64*n + i
            a(f"v_xor_b32 v{r+32}, v{t+1}, v{r+32}")

def e_load(a, s_pi, meanwhile):
    a(f"v_mov_b32 v2, {MISC}")
    a("v_lshrrev_b32 v8, 4, v1\nv_bfe_u32 v9, v1, 2, 2\nv_xor_b32 v9, v9, v8\nv_lshlrev_b32 v5, 13, v8\nv_lshrrev_b32 v10, 1, v9\nv_lshl_add_u32 v5, v10, 12, v5")
    a("v_and_b32 v10, 1, v9\nv_lshl_add_u32 v5, v10, 6, v5\nv_and_b32 v10, 3, v1\nv_lshl_add_u32 v5, v10, 4, v5")
    a(f"s_lshl_b32 s45, s{S_T}, 7\ns_lshl_b32 s40, s{s_pi}, 18\ns_add_u32 s45, s45, s40\ns_add_u32 s45, s45, {WS_E}")
    a(f"s_lshl_b32 s40, s{s_pi}, 2\nv_add_u32 v6, s40, v2")
    for i in range(4):
        (s0, r0), (s1, r1) = CELLS[("e", 2*i)], CELLS[("e", 2*i + 1)]
        lds_wait_ge(a, 2, FL_FREE - MISC, max(r0, r1), 16, 40, 41, minof=4, sleep=1)
        TH(a, f"ld{i}")
        a(f"s_mul_i32 s46, s{s_pi}, {(s1 - s0) * SLOT}\ns_add_u32 s46, s46, {s0 * SLOT}")
        for g in range(8):
            a(f"s_add_u32 m0, s46, {g*1024}")
            a(f"s_add_u32 s42, s45, {(64*i + 4*g)*8192}")
            a(f"buffer_load_dwordx4 v5, {sr(S_WS)}, s42 offen {RD} lds")
    meanwhile()
    for i in range(4):
        a(f"s_waitcnt vmcnt({8*(3-i)})\nv_mov_b32 v3, {i+1}\nds_write_b32 v6, v3 offset:{FL_FULLE - MISC}")

def e_part(a, nt, s_dt16, TT):
    dq = DsQ(a); stubs = []
    a(f"v_mov_b32 v2, {MISC}")
    a("v_lshrrev_b32 v8, 3, v1\nv_lshlrev_b32 v9, 8, v8\nv_and_b32 v8, 3, v8\nv_lshl_add_u32 v9, v8, 6, v9")
    a("v_and_b32 v8, 3, v1\nv_lshl_add_u32 v9, v8, 4, v9\nv_bfe_u32 v8, v1, 2, 1\nv_lshl_add_u32 v4, v8, 3, v9")
    for nu in range(1, 4): a(f"v_xor_b32 v{4+nu}, {64*nu}, v4")
    a("s_mov_b32 s52, 0\ns_mov_b32 s53, 0\ns_waitcnt lgkmcnt(0)")
    AH = 7
    def reads(u):
        js, nu = u // 4, u % 4
        c = js // 2
        if u % 8 == 0: check(a, stubs, 52 + (c & 1), c // 2 + 1, 2, FL_FULLE - MISC + 4 * (c & 1), 3)
        if js % 2 == 0: a(f"v_add_u32 v{16+nu}, {CELLS[('e', c)][0]*SLOT}, v{4+nu}")
        b = BE + 4 * (u % 8)
        for rd in range(2):
            dq.op(f"ds_read_b64_tr_b16 v[{b+2*rd}:{b+2*rd+1}], v{16+nu} offset:{(js % 2)*4096 + 2048*rd}", ("e", u))
    a(f"s_setprio {EPRIO}")
    for u in range(AH): reads(u)
    for u in range(64):
        js, nu = u // 4, u % 4
        b = BE + 4 * (u % 8)
        dq.wait(("e", u))
        if u % 8 == 0: TT(a, f"u{u}")
        for n in range(nt):
            d = ACCE + 16*n + 4*nu; g = GF + 64*n + 4*js
            a(f"v_mfma_f32_16x16x32_bf16 v[{d}:{d+3}], v[{g}:{g+3}], v[{b}:{b+3}], " + ("0" if js == 0 else f"v[{d}:{d+3}]"))
        if u + AH < 64: reads(u + AH)
    a(f"s_lshr_b32 s40, s{s_dt16}, 2\nv_lshrrev_b32 v17, 4, v1\nv_add_u32 v17, s40, v17\nv_and_b32 v18, 7, v1\nv_xor_b32 v17, v17, v18\nv_lshlrev_b32 v17, 4, v17")
    a(f"v_and_b32 v16, 15, v1\nv_lshl_add_u32 v16, v16, 8, v17\nv_xor_b32 v17, 64, v16")
    a(f"v_add_u32 v18, {TA[1]*SLOT}, v16\nv_add_u32 v19, {TA[1]*SLOT}, v17\nv_add_u32 v16, {TA[0]*SLOT}, v16\nv_add_u32 v17, {TA[0]*SLOT}, v17")
    TT(a, "edone")
    lds_wait_ge(a, 2, FL_FREE - MISC, TA_REQ, 4, 40, 41, minof=4, sleep=1)
    for n in range(nt):
        for nu in range(4):
            d = ACCE + 16*n + 4*nu
            a(f"ds_write_b128 v{16+n+2*(nu >> 1)}, v[{d}:{d+3}] offset:{(nu & 1)*4096}")
    TT(a, "written"); TT.park(a)
    return stubs

def h_relay(a, level, val):
    lds_wait_ge(a, 2, FL_HS - MISC, level, 16, 40, 41, minof=4, sleep=1 if level < 3 or "hs0" not in OPT else 0)
    T3(a, f"hs{level}")
    for i in range(8): a(f"ds_read_b128 v[{32+4*i}:{35+4*i}], v24 offset:{1024*i}")
    a(f"v_mov_b32 v16, {level}\nds_write_b32 v25, v16 offset:{FL_HSF - MISC}")
    for i in range(8):
        a(f"s_waitcnt lgkmcnt({7 - i})")
        a(f"buffer_store_dwordx4 v[{32+4*i}:{35+4*i}], v26, {sr(S_WS)}, s{44 + i // 2} offen offset:{1024*(i & 1)} {WT}")
    T3(a, "st")
    if "va" in OPT:
        a(f"v_mov_b32 v16, {val}\ns_waitcnt vmcnt(0)\ns_mov_b64 exec, 0xffff")
        a(f"buffer_atomic_add v16, v27, {sr(S_WS)}, s48 offen sc1\ns_mov_b64 exec, -1")
    else:
        a(f"s_mov_b32 s56, {val}\ns_waitcnt vmcnt(0)")
        for i in range(16): a(f"s_atomic_add s56, s[58:59], {(i & 7) * 8192 + (i >> 3) * 2048}")
    T3(a, "ack")
    T3(a, "atom"); T3.park(a)

def h_relay_setup(a):
    a(f"v_mov_b32 v2, {MISC}\nv_lshlrev_b32 v26, 4, v1\nv_add_u32 v24, {HST}, v26\nv_and_b32 v25, 3, v1\nv_lshl_add_u32 v25, v25, 2, v2")
    a(f"s_lshl_b32 s49, s{S_I}, 1\ns_mul_i32 s44, s49, 86\ns_lshl1_add_u32 s44, s{S_P}, s44\ns_lshl_b32 s44, s44, 10\ns_add_u32 s44, s44, {WS_H}")
    a(f"s_add_u32 s45, s44, {86*1024}\ns_add_u32 s46, s44, {32*86*1024}\ns_add_u32 s47, s46, {86*1024}")
    mbox_off(a, 48, 49)
    a(f"s_add_u32 s58, s{S_WS}, s48\ns_addc_u32 s59, s{S_WS+1}, 0")
    a("v_and_b32 v27, 7, v1\nv_lshlrev_b32 v27, 13, v27\nv_bfe_u32 v16, v1, 3, 1\nv_lshl_add_u32 v27, v16, 11, v27\nv_bfe_u32 v16, v1, 4, 1\nv_lshl_add_u32 v27, v16, 2, v27")

def h3_refill_setup(a):
    a("v_lshrrev_b32 v8, 3, v1\nv_and_b32 v9, 7, v1\nv_bfe_u32 v10, v1, 4, 1\nv_lshlrev_b32 v10, 2, v10\nv_xor_b32 v10, v10, v9")
    a("v_lshlrev_b32 v10, 4, v10\nv_lshl_add_u32 v28, v8, 10, v10")
    pair_table(a, 29, 8, 9)
    a(f"s_lshl_b32 s40, s{S_CJ}, 7\nv_lshlrev_b32 v29, 15, v29\nv_add_u32 v29, s40, v29")

def h3_refill(a):
    prev = None
    for c in H3C:
        slot, req = CELLS[("w", c)]
        ps_ = list(range(2 * c, min(2 * c + 2, 43)))
        for p in ps_: a(f"v_readlane_b32 s{44 + p % 2}, v29, {p}")
        a("s_nop 1")
        if prev is not None:
            ok = a.label("rf")
            a(f"s_cmp_ge_u32 s52, {req}\ns_cbranch_scc1 {ok}\ns_waitcnt vmcnt(0)\nv_mov_b32 v16, {prev + 1}\nds_write_b32 v25, v16 offset:{FL_FULL3 - MISC}")
            lds_wait_ge(a, 2, FL_FREE - MISC, req, 16, 52, 41, minof=4, sleep=LSL)
            a(f"{ok}:")
        else:
            lds_wait_ge(a, 2, FL_FREE - MISC, req, 16, 52, 41, minof=4, sleep=LSL)
        for p in ps_:
            for g in range(4):
                a(f"s_mov_b32 m0, {slot*SLOT + (p % 2)*4096 + g*1024}")
                if g: a(f"s_add_u32 s{44 + p % 2}, s{44 + p % 2}, 8192")
                a(f"buffer_load_dwordx4 v28, {sr(S_W2)}, s{44 + p % 2} offen lds")
        if prev is not None:
            a(f"s_waitcnt vmcnt({4 * len(ps_)})\nv_mov_b32 v16, {prev + 1}\nds_write_b32 v25, v16 offset:{FL_FULL3 - MISC}")
        prev = c
    if prev is not None:
        a(f"s_waitcnt vmcnt(0)\nv_mov_b32 v16, {prev + 1}\nds_write_b32 v25, v16 offset:{FL_FULL3 - MISC}")

def scalar_prefetch(a):
    a(f"s_lshl3_add_u32 s40, s2, s3\ns_and_b32 s41, s40, 1023\ns_mulk_i32 s41, {11*128}\ns_min_u32 s41, s41, {512*2752 - 11*128}")
    a(f"s_cmp_lt_u32 s40, 1024\ns_cselect_b64 s[42:43], s[{S_W1}:{S_W1+1}], s[{S_W3}:{S_W3+1}]\ns_add_u32 s42, s42, s41\ns_addc_u32 s43, s43, 0")
    for i in range(11): a(f"s_load_dword s82, s[42:43], {128*i}")

def w2_touch(a):
    a(f"v_mov_b32 v2, {MISC}")
    lds_wait_ge(a, 2, FL_FULL - MISC, W2T, 16, 40, 41, sleep=4)
    a(f"v_lshlrev_b32 v4, 7, v1\ns_lshr_b32 s42, s2, 3\ns_mul_i32 s42, s42, {344*128}")
    for i in range(6):
        if i == 5: a("s_mov_b64 exec, 0xffffff")
        a(f"buffer_load_dword v10, v4, {sr(S_W2)}, s42 offen\ns_add_u32 s42, s42, 8192")
    a("s_mov_b64 exec, -1")

W2T = 8
L3P = 31
gi = lambda k, d: int([o[len(k):] for o in OPT if o.startswith(k) and o[len(k):].isdigit()][0]) if any(o.startswith(k) and o[len(k):].isdigit() for o in OPT) else d
B0 = gi("b", 8)
R2 = gi("rr", 0)
ET = gi("et", 4)
LL2 = gi("ll", 1)
CK = gi("ck", 1)
CU = gi("cu", 0)
assert 2 * ET == B0
HSJ = gi("hj", 10)
L2P = int([o[2:] for o in OPT if o.startswith("l2")][0]) if any(o.startswith("l2") for o in OPT) else 4
LR = 2 if "r2" in OPT else 1
PSTP = 13
L3TRY = (max(33 - B0 - R2, 18), 26) if "tr3" not in OPT else (21, 24, 27)
LA = 5 if "tr3" not in OPT else 3
GAPB = int([o[2:] for o in OPT if o.startswith("gb")][0]) if any(o.startswith("gb") for o in OPT) else 40
EPRIO = 2 if "ep2" in OPT else 0
DEPTH = gi("dp", 24)
DEPTH2 = int([o[2:] for o in OPT if o.startswith("d2")][0]) if any(o.startswith("d2") for o in OPT) else 16
NST = int([o[2:] for o in OPT if o.startswith("st")and o[2:].isdigit()][0]) if any(o.startswith("st") and o[2:].isdigit() for o in OPT) else 0
LSL = gi("ls", 2)
HV, HM = 256, 128
G1PRIO = gi("gp", 0)
KPRIO = 0 if "k0" in OPT else 3
LPRIO = 0 if "lp0" in OPT else 3
ZG = 3 if "zg" in OPT else 0
WG = 3 if ("wg" in OPT or "zg" in OPT) else 0
LGATE = gi("lg", 2)
XS = False
SF = WT

a = Asm()
a.begin_kernel(NAME)
a("s_cmp_ge_u32 s2, 0x100\ns_cbranch_scc1 k_end")
Stamps.at(a, 0)
if "dbgspan" in OPT or "fix" in OPT: a("s_memrealtime s[92:93]")
if Trace.on: a("s_memtime s[92:93]\ns_waitcnt lgkmcnt(0)")
a(f"s_load_dwordx2 s[{S_X}:{S_X+1}], s[0:1], 0\ns_load_dwordx2 s[{S_WR}:{S_WR+1}], s[0:1], 8\ns_load_dwordx2 s[{S_WI}:{S_WI+1}], s[0:1], 16")
a(f"s_load_dwordx8 s[72:79], s[0:1], 32\ns_load_dwordx2 s[{S_WS}:{S_WS+1}], s[0:1], 72\ns_load_dwordx2 s[{S_DBG}:{S_DBG+1}], s[0:1], 64")
code_prefetch(a, NAME, "k_end", 65536, 8, 255)
a("v_lshrrev_b32 v2, 6, v0\nv_and_b32 v1, 63, v0\nv_readfirstlane_b32 s3, v2")
a(f"s_mov_b32 s{S_X+2}, 0x200000\ns_mov_b32 s{S_X+3}, 0x20000")
ids_early(a)
a("s_cmp_ge_u32 s3, 4\ns_cbranch_scc1 k_helper")
x_setup(a)
x_setup_late(a)
touch_setup(a)
a("s_waitcnt lgkmcnt(0)\ns_barrier")
TE = 7 if "te7" in OPT else 3
def first_touch(e):
    if e == 0: a("s_bitcmp1_b32 s3, 0\ns_cselect_b64 s[12:13], s[74:75], s[72:73]")
    if e == TE and ("t1" in OPT or "t2" in OPT): touch_issue(a, 0)
    if e == TE and "t2" in OPT: touch_issue(a, 128)
x_issue(a, 0, first_touch)
a("s_branch k_main")
a("k_helper:")
a(f"s_setprio 3\ns_sub_u32 s{S_HW}, s3, 4")
a(f"v_lshlrev_b32 v4, 2, v1\nv_add_u32 v4, {MISC}, v4\nv_mov_b32 v5, 0\nds_write_b32 v4, v5")
a(f"s_mov_b32 s{S_WR+2}, {2048*514}\ns_mov_b32 s{S_WR+3}, s{S_X+3}\ns_mov_b64 s[{S_WI+2}:{S_WI+3}], s[{S_WR+2}:{S_WR+3}]")
row_setup(a, S_HW, 18*SLOT)
w_setup(a)
a("s_waitcnt lgkmcnt(0)\ns_barrier")
row_issue(a)
WO = gi("wo", 3)
a(f"s_cmp_lg_u32 s{S_HW}, {WO}\ns_cbranch_scc1 k_now")
w_issue(a, 17*SLOT, False)
a("k_now:")
ids_late(a)
Stamps.at(a, 1)
a(f"s_load_dword s{S_TAG}, s[80:81], 0\ns_sub_u32 s6, s{S_HW}, 1")
def wait_rows():
    a(f"s_waitcnt vmcnt(8)\ns_cmp_eq_u32 s{S_HW}, {WO}\ns_cbranch_scc1 k_rows\ns_waitcnt vmcnt(0)\nk_rows:")
row_compute(a, S_HW, wait_rows)
make_tag(a)
a(f"s_cmp_eq_u32 s{S_HW}, 0\ns_cbranch_scc1 k_loader")
a(f"s_cmp_lg_u32 s{S_HW}, 3\ns_cbranch_scc1 k_h12")
z_store_all(a, 18*SLOT, SF)
a(f"s_lshl_b32 s42, s2, 8\ns_add_u32 s42, s42, {MBOX + 128}\nv_mov_b32 v14, 0\nv_mov_b32 v15, 0\ns_mov_b64 exec, 1")
a(f"buffer_store_dwordx2 v[14:15], off, {sr(S_WS)}, s42 {WT}")
a(f"s_cmp_ge_u32 s2, 8\ns_cbranch_scc1 k_nocz\ns_lshl_b32 s42, s2, 7\ns_add_u32 s42, s42, {GCNT}\nbuffer_store_dword v14, off, {sr(S_WS)}, s42 {WT}\nk_nocz:\ns_mov_b64 exec, -1")
if WO == 3: w_store(a, 17*SLOT, SF, wait="s_waitcnt vmcnt(9)")
a("s_waitcnt vmcnt(0)")
wg_signal(a, FL_Z_CNT, 2 if WO == 1 else 1, 0, 12, 13, 14)
Stamps.at(a, 7)
a("s_setprio 0\ns_branch k_h3")

a("k_main:")
ids_late(a)
if "sp" in OPT: scalar_prefetch(a)
g1_main(a)
st = g2_main(a)
emit_stubs(a, st)

a(";@endseg")
a("k_h12:")
a(f"s_setprio {KPRIO}")
if "nocolE" in OPT:
    res_issue(a, 12, 11); a("s_branch k_fin")
Stamps.at(a, 7)
if WO == 1:
    a(f"s_cmp_lg_u32 s{S_HW}, 1\ns_cbranch_scc1 k_h2a")
    w_store(a, 17*SLOT, SF)
    a("k_h2a:")
    if "wf" not in OPT: col_mats(a, 6)
    a(f"s_cmp_lg_u32 s{S_HW}, 1\ns_cbranch_scc1 k_h2b\ns_waitcnt vmcnt(0)")
    wg_signal(a, FL_Z_CNT, 2, 0, 12, 13, 14)
    Stamps.at(a, 2)
    a("k_h2b:")
    if "wf" in OPT: col_mats(a, 6)
else:
    col_mats(a, 6)
col_twiddles(a, 6, S_COL, 2)
col_twiddles(a, 6, S_COL, 1)
col_addrs(a)
col_offsets(a, 6, S_COL)
Stamps.at(a, 8)
a(f"s_setprio {CPRIO}")
wait_go(a, 0)
Stamps.at(a, 9)
if "noz" not in OPT: col_z_loads(a, RD)
col_w_loads(a, RD)
if "nocol" not in OPT: col_compute3(a, SF, lambda: None, 7)
Stamps.at(a, 11)
a(f"v_mov_b32 v2, {MISC}\nv_mov_b32 v3, 1")
a("s_waitcnt vmcnt(0)")
Stamps.at(a, 12)
wg_signal(a, FL_E_CNT, 2, 1, 2, 3, 14)
a(f"s_setprio {G1PRIO}")
irow_consts(a, 6)
res_issue(a, 12, 11)
a("v_and_b32 v4, 15, v1\nv_lshrrev_b32 v5, 4, v1\nv_lshl_add_u32 v6, v5, 6, v4\nv_lshlrev_b32 v6, 13, v6")
a(f"s_lshl_b32 s54, s6, 12\ns_lshl_b32 s40, s{S_T}, 7\ns_add_u32 s54, s54, s40\ns_lshl4_add_u32 s54, s{S_CJ}, s54\ns_add_u32 s54, s54, {WS_E}")
a("v_bfe_u32 v7, v1, 2, 2\nv_lshlrev_b32 v7, 8, v7\nv_lshl_add_u32 v7, v5, 6, v7\nv_and_b32 v8, 3, v1\nv_lshl_add_u32 v7, v8, 4, v7")
a(f"s_lshl3_add_u32 s55, s{S_T}, s{S_CJ}\ns_lshl1_add_u32 s55, s55, s6\ns_lshl_b32 s55, s55, 12\ns_add_u32 s55, s55, {WS_Y}")
a(f"v_lshlrev_b32 v8, 4, v1\ns_lshl_b32 s40, s6, 11\ns_add_u32 s40, s40, {XCH}\nv_add_u32 v8, s40, v8\nv_subrev_u32 v9, {XCH}, v8\nv_xor_b32 v9, 0x800, v9\nv_add_u32 v9, {XCH}, v9")
a(f"s_and_b32 s40, s2, 31\ns_lshl_b32 s40, s40, 8\ns_add_u32 s40, s40, {MBOX + 128}\ns_add_u32 s58, s{S_WS}, s40\ns_addc_u32 s59, s{S_WS+1}, 0")
a("s_mul_i32 s57, s6, 0x80008000")
Stamps.at(a, 13)
a(f"s_setprio {EPRIO}")
TH.start(a); TH(a, "waitE")
wait_go(a, 1)
TH(a, "goE")
Stamps.at(a, 14)
if gi("eg", 0): lds_wait_ge(a, 2, FL_FREE - MISC, gi("eg", 0), 120, 40, 41, minof=4, sleep=1)
irow_loads(a, 6, 54, RD)
irow_compute(a)
TH(a, "calc")
S0 = 68
for e in range(4):
    for p in range(2): a(f"v_cvt_pk_bf16_f32 v{84+2*e+p}, v{IY+8*e+4+2*p}, v{IY+8*e+5+2*p}")
a("ds_write_b128 v8, v[84:87]\nds_write_b128 v8, v[88:91] offset:1024")
a(f"s_mov_b64 exec, 1\nds_add_u32 v2, v3 offset:{FL_YX - MISC}\ns_mov_b64 exec, -1")
lds_wait_ge(a, 2, FL_YX - MISC, 2, 10, 40, 41)
a("ds_read_b128 v[84:87], v9\nds_read_b128 v[88:91], v9 offset:1024\ns_waitcnt lgkmcnt(0)")
for i in range(8): a(f"v_lshlrev_b32 v{S0+2*i}, 16, v{84+i}\nv_and_b32 v{S0+2*i+1}, 0xffff0000, v{84+i}")
for e in range(4):
    for r in range(4):
        k = IY + 8*e + r
        a(f"v_sub_f32 v{k+4}, v{k}, v{S0+4*e+r}\nv_add_f32 v{k}, v{k}, v{S0+4*e+r}")
for e in range(4):
    for p in range(4): a(f"v_cvt_pk_bf16_f32 v{84+4*e+p}, v{IY+8*e+2*p}, v{IY+8*e+2*p+1}")
    for p in (2, 3): a(f"v_xor_b32 v{84+4*e+p}, s57, v{84+4*e+p}")
for e in range(4):
    o = 84 + 4*e
    a(f"v_permlane16_swap_b32 v{o}, v{o+2}\nv_permlane16_swap_b32 v{o+1}, v{o+3}")
    a(f"buffer_store_dwordx4 v[{o}:{o+3}], v7, {sr(S_WS)}, s55 offen offset:{1024*e} {WT}")
a("v_lshrrev_b32 v4, 5, v1\nv_lshlrev_b32 v4, 13, v4\nv_bfe_u32 v5, v1, 3, 2\nv_lshl_add_u32 v4, v5, 10, v4\nv_and_b32 v5, 1, v1\nv_lshl_add_u32 v4, v5, 7, v4\nv_bfe_u32 v5, v1, 1, 2\nv_lshl_add_u32 v4, v5, 4, v4")
a(f"s_lshl_b32 s55, s{S_T}, 16\ns_lshr_b32 s40, s{S_CJ}, 2\ns_lshl_b32 s40, s40, 12\ns_add_u32 s55, s55, s40\ns_and_b32 s40, s{S_CJ}, 3\ns_lshl_b32 s40, s40, 8\ns_add_u32 s55, s55, s40")
a(f"s_lshl_b32 s40, s6, 6\ns_add_u32 s55, s55, s40\ns_add_u32 s55, s55, {WS_Y}\ns_lshl_b32 s54, s6, 12\ns_add_u32 s54, s54, {TA*SLOT}")
a(f"s_waitcnt vmcnt(0)\ns_mov_b64 exec, 1\nds_add_rtn_u32 v10, v2, v3 offset:{FL_YC - MISC}\ns_mov_b64 exec, -1\ns_waitcnt lgkmcnt(0)\nv_readfirstlane_b32 s40, v10")
a("s_cmp_eq_u32 s40, 0\ns_cbranch_scc1 k_ynp\ns_mov_b32 s56, 0x1000000")
for i in range(8): a(f"s_atomic_add s56, s[58:59], {8192*i}")
a("k_ynp:")
TH(a, "posted")
lds_wait_ge(a, 2, FL_FREE - MISC, TA_REQ, 16, 40, 41, minof=4, sleep=1)
a(f"s_mov_b32 s41, {GSPIN}\nk_yp:\ns_load_dword s53, s[{S_MB}:{S_MB+1}], 128 glc\ns_waitcnt lgkmcnt(0)\ns_bitcmp1_b32 s53, 27\ns_cbranch_scc1 k_yd\ns_sleep 1\ns_sub_u32 s41, s41, 1\ns_cbranch_scc0 k_yp\nk_yd:")
TH(a, "yrdy")
for g in range(4):
    a(f"s_add_u32 m0, s54, {1024*g}")
    if g: a("s_add_u32 s55, s55, 0x4000")
    a(f"buffer_load_dwordx4 v4, {sr(S_WS)}, s55 offen {RD} lds")
TH.park(a)
a("s_branch k_fin")

a(";@endseg")
a("k_h3:")
warm(a, ["m1", "m2", "ld2", "m3"])
a("s_mov_b32 s7, 32")
if "w2t" in OPT: w2_touch(a)
wait_go(a, 0)
h_relay_setup(a)
h3_refill_setup(a)
res_issue(a, 12, 11)
a("s_setprio 3")
T3.start(a)
h_relay(a, 1, 1)
Stamps.at(a, 9)
a(f"s_sub_u32 s49, s{S_NP}, 1\ns_lshl_b32 s49, s49, 11\ns_cmp_eq_u32 s{S_NP}, 2\ns_mov_b32 s50, 0x100\ns_cmov_b32 s50, 0x20100")
for i in range(4): a(f"s_add_u32 s{44+i}, s{44+i}, s49")
h_relay(a, 2, "s50")
Stamps.at(a, 10)
a("k_h3e:")
lv_poll(a, True)
Stamps.at(a, 14)
a("s_branch k_fin")

a("k_loader:")
loader(a)
a("k_ldend:")
res_issue(a, 12, 11)
a("k_fin:")
final_combine(a, 12, 11)
a("s_xor_b32 s40, s3, 5\ns_or_b32 s40, s40, s2\ns_cmp_lg_u32 s40, 0\ns_cbranch_scc1 k_dump")
a(f"s_mov_b32 s42, {GF_EPOCH}")
flag_store(a, 42, 0, 4)
a("k_dump:")
if "fix" in OPT:
    a("k_fx:\ns_memrealtime s[94:95]\ns_waitcnt lgkmcnt(0)\ns_sub_u32 s94, s94, s92\ns_cmp_lt_u32 s94, 4000\ns_cbranch_scc1 k_fx")
if "dbgspan" in OPT:
    a("s_waitcnt vmcnt(0)\ns_memrealtime s[94:95]\ns_waitcnt lgkmcnt(0)\ns_cmp_lg_u32 s3, 0\ns_cbranch_scc1 k_end")
    a("s_and_b32 s92, s92, 0xffffff\ns_and_b32 s94, s94, 0xffffff\ns_sub_u32 s93, 0xffffff, s92\ns_sub_u32 s95, s94, s92")
    for i, r in enumerate((93, 94, 92, 95)):
        a(f"s_atomic_umax s{r}, s[{S_DBG}:{S_DBG+1}], {16 + 4*i}")
    a("s_waitcnt lgkmcnt(0)")
if Stamps.on: a("s_waitcnt vmcnt(0)")
Stamps.dump(a, 0)
if Trace.on: a("s_waitcnt vmcnt(0)")
Trace.dump(a)
import json
if Trace.on: json.dump(Trace.names, open(sys.argv[1][:-2] + ".json", "w"))
a(";@endseg")
a("k_end:\ns_endpgm")
a("k_hopret:\ns_waitcnt lgkmcnt(0)\ns_setpc_b64 s[0:1]")
a.add_kernel(NAME, 256); a.add_launch(NAME, 256, 512, LDS_BYTES)
txt = a.text(header=HEADER, single=True)
if "hop" in OPT:
    txt, nh_ = hop_pass(txt, "k_hopret"); print("hop sites", nh_)
if "noal" not in OPT: txt, nw_, np_ = align_pass(txt)
open(sys.argv[1], "w").write(txt)
print("nops", a.nops_added, CELLS if "v" in OPT else "")
```

```python
from pieces import *

def row_setup(a, s_hw, lds_rows):
    a("s_lshr_b32 s40, s2, 3\ns_and_b32 s41, s2, 3\ns_bfe_u32 s42, s2, 0x10002\ns_lshl1_add_u32 s41, s41, s42\ns_lshl_b32 s62, s41, 5\ns_add_u32 s62, s62, s40")
    a(f"s_lshl2_add_u32 s42, s41, s{s_hw}\ns_lshl_b32 s42, s42, 5\ns_add_u32 s42, s42, s40\ns_lshl_b32 s42, s42, 10")
    a(f"s_lshl_b32 s44, s{s_hw}, 11\ns_add_u32 s44, s44, {lds_rows}\ns_mov_b32 m0, s44")
    a("v_lshlrev_b32 v2, 4, v1\ns_add_u32 s43, s42, 0x100000")

def row_issue(a):
    a(f"buffer_load_dwordx4 v2, {sr(S_X)}, s42 offen lds")
    a("s_add_u32 m0, s44, 1024")
    a(f"buffer_load_dwordx4 v2, {sr(S_X)}, s43 offen lds")

def w_setup(a):
    a("s_bfe_u32 s45, s2, 0x20003\ns_and_b32 s46, s2, 3\ns_bfe_u32 s47, s2, 0x10002\ns_bfe_u32 s48, s2, 0x20005\ns_lshr_b32 s49, s2, 7")
    a("s_lshl2_add_u32 s50, s47, s46\ns_lshl_b32 s50, s50, 2\ns_lshl3_add_u32 s50, s50, s48\ns_lshl3_add_u32 s50, s50, s49")
    a("s_mulk_i32 s50, 514\ns_lshl_b32 s51, s45, 7\ns_add_u32 s50, s50, s51\ns_add_u32 s50, s50, 2")
    a("v_lshrrev_b32 v3, 5, v1\nv_bfe_u32 v4, v1, 3, 2\nv_lshl_add_u32 v3, v3, 4, v4\nv_mul_u32_u24 v3, 1028, v3\nv_and_b32 v4, 7, v1\nv_lshl_add_u32 v3, v4, 4, v3")

def w_issue(a, lds_w, setup=True):
    if setup: w_setup(a)
    for r in range(4):
        a(f"s_mov_b32 m0, {lds_w + 1024*r}")
        if r: a(f"s_add_u32 s50, s50, {64*514}")
        a(f"buffer_load_dwordx4 v3, {sr(S_WR)}, s50 offen lds")
        a(f"s_mov_b32 m0, {lds_w + 4096 + 1024*r}")
        a(f"buffer_load_dwordx4 v3, {sr(S_WI)}, s50 offen lds")

def w_store(a, lds_w, st_flags, between=None, wait="s_waitcnt vmcnt(0)"):
    a(f"v_lshrrev_b32 v5, 3, v1\nv_and_b32 v3, 7, v1\nv_lshlrev_b32 v4, 7, v3\nv_lshl_add_u32 v4, v5, 1, v4\nv_add_u32 v4, {lds_w}, v4")
    a("v_lshlrev_b32 v5, 13, v5\nv_lshl_add_u32 v5, v3, 4, v5")
    a("s_lshl_b32 s60, s45, 19\ns_lshl_b32 s61, s49, 12\ns_add_u32 s60, s60, s61\ns_lshl_b32 s61, s46, 10\ns_add_u32 s60, s60, s61")
    a(f"s_lshl_b32 s61, s47, 9\ns_add_u32 s60, s60, s61\ns_lshl_b32 s61, s48, 7\ns_add_u32 s60, s60, s61\ns_add_u32 s50, s60, {WS_WT}")
    a(wait)
    def rd(n):
        for r in range(4):
            a(f"ds_read_u16 v{128+8*n+r}, v4 offset:{1024*r + 16*n}\nds_read_u16 v{132+8*n+r}, v4 offset:{4096 + 1024*r + 16*n}")
    def st(n): a(f"buffer_store_dwordx4 v[{128+8*n}:{131+8*n}], v5, {sr(S_WS)}, s50 offen {st_flags}\ns_add_u32 s50, s50, 0x10000")
    rd(0)
    for n in range(8):
        a("s_waitcnt lgkmcnt(4)")
        if n < 7: rd(n + 1)
        else: a(f"s_mov_b64 exec, 1\nds_add_u32 v12, v13 offset:{FL_A_DONE - MISC}\ns_mov_b64 exec, -1")
        a(f"s_waitcnt lgkmcnt({8 if n < 7 else 0})")
        for r in range(4): a(f"v_lshl_or_b32 v{128+8*n+r}, v{132+8*n+r}, 16, v{128+8*n+r}")
        if not between: st(n)
    if between:
        between()
        for n in range(8): st(n)

ZR = 96
def z_store(a, s_half, lds_rows, st_flags, between=None):
    a(f"v_and_b32 v4, 1, v1\nv_lshrrev_b32 v5, 1, v1\nv_lshlrev_b32 v4, 10, v4\nv_lshl_add_u32 v4, v5, 2, v4\ns_lshl_b32 s52, s{s_half}, 9\ns_add_u32 s52, s52, {lds_rows}\nv_add_u32 v4, s52, v4\nv_add_u32 v5, 128, v4")
    a(f"s_lshl_b32 s52, s62, 13\ns_lshl_b32 s63, s{s_half}, 12\ns_add_u32 s52, s52, s63\ns_add_u32 s52, s52, {WS_Z}")
    lds_wait_ge(a, 12, FL_BAR_A - MISC, 4, 18, 61, 63)
    Stamps.at(a, 6)
    for e in range(4):
        a(f"ds_read2st64_b32 v[{ZR+4*e}:{ZR+1+4*e}], v{4 + (e & 1)} offset0:{e >> 1} offset1:{(e >> 1) + 8}")
        a(f"ds_read2st64_b32 v[{ZR+2+4*e}:{ZR+3+4*e}], v{4 + (e & 1)} offset0:{(e >> 1) + 16} offset1:{(e >> 1) + 24}")
    if between:
        a("s_waitcnt lgkmcnt(0)"); between()
    for e in range(4):
        if not between: a(f"s_waitcnt lgkmcnt({6 - 2*e})")
        a(f"buffer_store_dwordx4 v[{ZR+4*e}:{ZR+3+4*e}], v2, {sr(S_WS)}, s52 offen offset:{1024*e} {st_flags}")

def row_compute(a, s_hw, wait_rows):
    N, Q4, FU, ARG, STEP = 4, 5, 6, 7, 8
    B1, TC, TS, A2, CM = 16, 32, 40, 48, 9
    a(f"v_and_b32 v{N}, 15, v1")
    a(f"v_lshrrev_b32 v{Q4}, 4, v1\nv_lshlrev_b32 v{Q4}, 2, v{Q4}\nv_cvt_f32_u32 v{Q4}, v{Q4}")
    a(f"v_add_u32 v{FU}, 1, v{N}\nv_cvt_f32_u32 v{FU}, v{FU}")
    a(f"v_mul_f32 v{STEP}, {f32(1/32)}, v{FU}")
    a(f"v_mul_f32 v{ARG}, v{Q4}, v{STEP}")
    C0, S0 = 52, 60
    for j in range(8):
        if j == 4: a(f"v_mul_f32 v10, {f32(13.0)}, v{STEP}\nv_add_f32 v{ARG}, v{ARG}, v10")
        elif j: a(f"v_add_f32 v{ARG}, v{ARG}, v{STEP}")
        a(f"v_cos_f32 v{C0+j}, v{ARG}\nv_sin_f32 v{S0+j}, v{ARG}")
    for jj in range(4):
        a(f"v_cvt_pk_bf16_f32 v{B1+jj}, v{C0+2*jj}, v{C0+2*jj+1}")
        a(f"v_cvt_pk_bf16_f32 v{B1+4+jj}, -v{S0+2*jj}, -v{S0+2*jj+1}")
    for jj in range(8): a(f"v_xor_b32 v{B1+8+jj}, 0x80000000, v{B1+jj}")
    for tau in range(2):
        if tau: a(f"v_add_f32 v{FU}, {f32(16.0)}, v{FU}")
        a(f"v_mul_f32 v{STEP}, {f32(1/512)}, v{FU}\nv_mul_f32 v{ARG}, v{Q4}, v{STEP}")
        for r in range(4):
            if r: a(f"v_add_f32 v{ARG}, v{ARG}, v{STEP}")
            a(f"v_cos_f32 v{TC+4*tau+r}, v{ARG}\nv_sin_f32 v{TS+4*tau+r}, v{ARG}")
    a(f"v_lshrrev_b32 v{STEP}, 1, v{N}\nv_cvt_f32_u32 v{STEP}, v{STEP}\nv_mul_f32 v{STEP}, {f32(1/16)}, v{STEP}")
    a(f"v_and_b32 v{ARG}, 1, v{N}\nv_cvt_f32_u32 v{ARG}, v{ARG}\nv_mul_f32 v{ARG}, {f32(0.25)}, v{ARG}")
    a(f"v_fma_f32 v{ARG}, v{Q4}, v{STEP}, v{ARG}")
    for r in range(4):
        if r: a(f"v_add_f32 v{ARG}, v{ARG}, v{STEP}")
        a(f"v_cos_f32 v{C0+r}, v{ARG}\nv_sin_f32 v{S0+r}, v{ARG}")
    for jj in range(2):
        a(f"v_cvt_pk_bf16_f32 v{A2+jj}, v{C0+2*jj}, v{C0+2*jj+1}")
        a(f"v_cvt_pk_bf16_f32 v{A2+2+jj}, v{S0+2*jj}, v{S0+2*jj+1}")
    a(f"v_cmp_eq_u32 vcc, 15, v{N}\nv_mov_b32 v{CM}, {f32(32.0)}\nv_cndmask_b32 v{CM}, 0, v{CM}, vcc")
    a("s_mov_b32 s53, 0x3f803f80")
    a("v_lshlrev_b32 v10, 3, v1\nv_add_u32 v10, s44, v10")
    a(f"v_lshrrev_b32 v11, 4, v1\nv_lshlrev_b32 v11, 6, v11\nv_add_u32 v11, v11, v{N}\nv_lshlrev_b32 v11, 2, v11\nv_add_u32 v11, s44, v11")
    XF = 52
    Stamps.at(a, 3)
    wait_rows()
    Stamps.at(a, 4)
    for al in range(2):
        a(f"ds_read_b64_tr_b16 v[{XF+4*al}:{XF+4*al+1}], v10 offset:{1024*al}")
        a(f"ds_read_b64_tr_b16 v[{XF+4*al+2}:{XF+4*al+3}], v10 offset:{1024*al+512}")
    D1, SU = 92, 12
    a("s_waitcnt lgkmcnt(0)")
    for j in range(4):
        for al in range(2):
            c1 = "0" if j == 0 else f"v{SU+2*al}"
            c2 = "0" if j == 0 else f"v{SU+2*al+1}"
            a(f"v_dot2_f32_bf16 v{SU+2*al}, v{XF+4*al+j}, s53, {c1}")
            a(f"v_dot2_f32_bf16 v{SU+2*al+1}, v{XF+4*al+j}, v{XF+4*al+j}, {c2}")
    mf = []
    for al in range(2):
        for tau in range(2):
            for ri in range(2):
                d = D1 + 16*al + 8*tau + 4*ri
                mf.append(f"v_mfma_f32_16x16x32_bf16 v[{d}:{d+3}], v[{XF+4*al}:{XF+4*al+3}], v[{B1+8*tau+4*ri}:{B1+8*tau+4*ri+3}], 0")
    for n, m in enumerate(("row_ror:8 row_mask:0xf", "row_ror:4 row_mask:0xf", "row_ror:2 row_mask:0xf", "row_ror:1 row_mask:0xf",
              "row_bcast:15 row_mask:0xa", "row_bcast:31 row_mask:0xc")):
        a(mf[n])
        for q in range(4): a(f"v_add_f32_dpp v{SU+q}, v{SU+q}, v{SU+q} {m} bank_mask:0xf")
    a(mf[6]); a(mf[7])
    sub = [Asm(), Asm()]
    for al in range(2): ln_scalars(sub[al], SU+2*al, SU+2*al+1, None)
    for l0, l1 in zip(sub[0].lines, sub[1].lines): a(l0); a(l1)
    for al in range(2):
        a(f"v_readlane_b32 s{54+al}, v{SU+2*al}, 63\nv_readlane_b32 s{56+2*al}, v{SU+2*al+1}, 63")
    UF, T0 = 60, 76
    for al in range(2):
        for r in range(4):
            d = D1 + 16*al + 8 + r
            a(f"v_fma_f32 v{d}, -v{CM}, s{54+al}, v{d}")
    mf = []
    for al in range(2):
        for tau in range(2):
            re, im = D1 + 16*al + 8*tau, D1 + 16*al + 8*tau + 4
            for p in range(2):
                c, s = TC + 4*tau + 2*p, TS + 4*tau + 2*p
                tr, ti = T0 + 4*p, T0 + 4*p + 2
                for e in range(2): a(f"v_mul_f32 v{tr+e}, v{re+2*p+e}, v{c+e}\nv_mul_f32 v{ti+e}, v{im+2*p+e}, v{c+e}")
                for e in range(2): a(f"v_fma_f32 v{tr+e}, v{im+2*p+e}, v{s+e}, v{tr+e}\nv_fma_f32 v{ti+e}, -v{re+2*p+e}, v{s+e}, v{ti+e}")
            u = UF + 8*al + 4*tau
            for p in range(2):
                a(f"v_cvt_pk_bf16_f32 v{u+p}, v{T0+4*p}, v{T0+4*p+1}")
                a(f"v_cvt_pk_bf16_f32 v{u+2+p}, v{T0+4*p+2}, v{T0+4*p+3}")
            d = D1 + 16*al + 8*tau
            mf.append(f"v_mfma_f32_16x16x32_bf16 v[{d}:{d+3}], v[{A2}:{A2+3}], v[{u}:{u+3}], 0")
    for i in (0, 2, 1, 3): a(mf[i])
    a(f"v_mov_b32 v12, {MISC}\nv_mov_b32 v13, 1")
    for tau in range(2):
        for vl in range(2):
            d0, d1 = D1 + 8*tau + 2*vl, D1 + 16 + 8*tau + 2*vl
            t = T0 + 8 * vl
            for e in range(2): a(f"v_mul_f32 v{d0+e}, s56, v{d0+e}")
            for e in range(2): a(f"v_fma_f32 v{t+e}, v{d1+e}, s58, v{d0+e}\nv_fma_f32 v{t+2+e}, -v{d1+e}, s58, v{d0+e}")
            a(f"v_cvt_pk_bf16_f32 v{t+4}, v{t}, v{t+1}\nv_cvt_pk_bf16_f32 v{t+5}, v{t+2}, v{t+3}")
            a(f"ds_write_b32 v11, v{t+4} offset:{64*tau + 128*vl}")
            a(f"ds_write_b32 v11, v{t+5} offset:{64*tau + 128*vl + 1024}")
    Stamps.at(a, 5)
    a("s_mov_b64 exec, 1")
    a(f"ds_add_u32 v12, v13 offset:{FL_BAR_A - MISC}")
    a("s_mov_b64 exec, -1")

def col_loads2(a, s_pi, s_k1, ld_flags):
    a(f"s_lshl_b32 s60, s{s_k1}, 5\ns_lshl_b32 s61, s{s_pi}, 4\ns_add_u32 s60, s60, s61\ns_add_u32 s60, s60, {WS_Z}")
    for t in range(4):
        a(f"buffer_load_dwordx4 v[{CF_Z+4*t}:{CF_Z+4*t+3}], v14, {sr(S_WS)}, s60 offen {ld_flags}")
        if t < 3: a(f"s_add_u32 s60, s60, {64*8192}")
    a(f"s_lshl_b32 s60, s{s_k1}, 13\ns_lshl_b32 s61, s{s_pi}, 12\ns_add_u32 s60, s60, s61\ns_add_u32 s61, s60, {WS_WT}")
    for t in range(4):
        a(f"buffer_load_dwordx4 v[{CF_W+4*t}:{CF_W+4*t+3}], v15, {sr(S_WS)}, s61 offen offset:{1024*t} {ld_flags}")

def col_addrs(a):
    a("v_bfe_u32 v13, v1, 2, 1\nv_lshlrev_b32 v14, 4, v13\nv_bfe_u32 v13, v1, 3, 2\nv_lshl_add_u32 v14, v13, 2, v14")
    a("v_and_b32 v13, 0x23, v1\nv_add_u32 v14, v14, v13\nv_lshlrev_b32 v14, 13, v14\nv_lshlrev_b32 v15, 4, v1")
    a("v_bfe_u32 v12, v1, 3, 2\nv_lshlrev_b32 v12, 10, v12\nv_lshrrev_b32 v13, 5, v1\nv_lshl_add_u32 v12, v13, 9, v12\nv_and_b32 v13, 7, v1\nv_lshl_add_u32 v12, v13, 4, v12")

def col_store2(a, st_flags):
    AR, AI, U = CF_AR, CF_AI, CF_Z
    a(f"s_add_u32 s60, s60, {WS_E}")
    for q in range(4):
        for ri, acc in enumerate((AR, AI)):
            for p in range(2):
                a(f"v_cvt_pk_bf16_f32 v{U+4*q+2*ri+p}, v{acc+4*q+2*p}, v{acc+4*q+2*p+1}")
        a(f"buffer_store_dwordx4 v[{U+4*q}:{U+4*q+3}], v12, {sr(S_WS)}, s60 offen offset:{128*q} {st_flags}")

CA, CB, CD = 128, 160, 184
T1C, T1S, T2C, T2S = 16, 32, 48, 64
CZ, CW, CAR, CAI, CT = 80, 96, 208, 224, 112

def _lane_ids(a, s_pi, L, H, C, t):
    a(f"v_bfe_u32 v{t}, v1, 2, 1\nv_lshlrev_b32 v{L}, 4, v{t}\nv_bfe_u32 v{t}, v1, 3, 2\nv_lshl_add_u32 v{L}, v{t}, 2, v{L}")
    a(f"v_and_b32 v{t}, 3, v1\nv_add_u32 v{L}, v{L}, v{t}")
    a(f"v_lshl_add_u32 v{C}, v{L}, 1, s{s_pi}\nv_cvt_f32_u32 v{C}, v{C}\nv_cvt_f32_u32 v{L}, v{L}")
    a(f"v_lshrrev_b32 v{H}, 5, v1\nv_cvt_f32_u32 v{H}, v{H}")

def col_mats(a, s_pi):
    L, H, C, ARG, STEP, X, tc, ts = 240, 241, 242, 243, 244, 245, 246, 248
    _lane_ids(a, s_pi, L, H, C, X)
    a(f"v_mul_f32 v{STEP}, {f32(1/64)}, v{C}\nv_mul_f32 v{ARG}, 4.0, v{H}\nv_mul_f32 v{ARG}, v{ARG}, v{STEP}\nv_mul_f32 v{X}, {f32(5.0)}, v{STEP}")
    pend = []
    for t in range(4):
        for i in range(4):
            if i: a(f"v_add_f32 v{ARG}, v{ARG}, v{STEP}")
            elif t: a(f"v_add_f32 v{ARG}, v{ARG}, v{X}")
            a(f"v_cos_f32 v{tc+(i&1)}, v{ARG}\nv_sin_f32 v{ts+(i&1)}, v{ARG}")
            for o in pend: a(o)
            pend = [f"v_cvt_pk_bf16_f32 v{CA+8*t+i}, v{tc+(i&1)}, v{ts+(i&1)}", f"v_cvt_pk_bf16_f32 v{CA+8*t+4+i}, -v{ts+(i&1)}, v{tc+(i&1)}"]
    for o in pend: a(o)
    a(f"v_mul_f32 v{H}, {f32(16.0)}, v{H}")
    def mat(base):
        for R in range(16):
            if R: a(f"v_add_f32 v{ARG}, v{ARG}, v{STEP}")
            a(f"v_sin_f32 v{ts+(R&1)}, v{ARG}\nv_cos_f32 v{tc+(R&1)}, v{ARG}")
            if R & 1:
                a(f"v_cvt_pk_bf16_f32 v{base+8+(R>>1)}, v{ts}, v{ts+1}")
                a(f"v_cvt_pk_bf16_f32 v{base+(R>>1)}, v{tc}, v{tc+1}")
                a(f"v_xor_b32 v{base+16+(R>>1)}, 0x80008000, v{base+8+(R>>1)}")
    a(f"v_mul_f32 v{STEP}, {f32(1/32)}, v{L}\nv_mul_f32 v{ARG}, v{H}, v{STEP}")
    mat(CB)
    a(f"v_cvt_f32_u32 v{X}, s{s_pi}\nv_fma_f32 v{H}, 0.5, v{X}, v{H}")
    a(f"v_and_b32 v{X}, 31, v1\nv_cvt_f32_u32 v{X}, v{X}\nv_mul_f32 v{STEP}, {f32(1/32)}, v{X}\nv_mul_f32 v{ARG}, v{H}, v{STEP}")
    mat(CD)

def col_twiddles(a, s_pi, s_k1, which):
    L, H, C, ARG, STEP, X = 240, 241, 242, 243, 244, 245
    def tw(cb, sb):
        for R in range(16):
            if R: a(f"v_add_f32 v{ARG}, v{ARG}, v{STEP}")
            a(f"v_cos_f32 v{cb+R}, v{ARG}\nv_sin_f32 v{sb+R}, v{ARG}")
    if which == 2:
        a(f"v_mul_f32 v{STEP}, {f32(1/1024)}, v{L}\nv_mul_f32 v{ARG}, v{H}, v{STEP}")
        tw(T2C, T2S)
        a(f"s_cmp_eq_u32 s{s_k1}, 255\ns_mov_b32 s62, {f32(2/(2048*512))}\ns_cmov_b32 s62, {f32(1/(2048*512))}")
        for R in range(32): a(f"v_mul_f32 v{T2C+R}, s62, v{T2C+R}")
    else:
        a(f"v_floor_f32 v{X}, v{H}\nv_mul_f32 v{STEP}, {f32(1/2048)}, v{C}\nv_mul_f32 v{ARG}, v{X}, v{STEP}")
        tw(T1C, T1S)

def col_w_loads(a, ld_flags):
    for t in range(4):
        a(f"buffer_load_dwordx4 v[{CW+4*t}:{CW+4*t+3}], v15, {sr(S_WS)}, s61 offen offset:{1024*t} {ld_flags}")

def col_offsets(a, s_pi, s_k1):
    a(f"s_lshl_b32 s59, s{s_k1}, 5\ns_lshl_b32 s61, s{s_pi}, 4\ns_add_u32 s59, s59, s61\ns_add_u32 s59, s59, {WS_Z}")
    a(f"s_lshl_b32 s60, s{s_k1}, 13\ns_lshl_b32 s61, s{s_pi}, 12\ns_add_u32 s60, s60, s61\ns_add_u32 s61, s60, {WS_WT}")

def col_z_loads(a, ld_flags):
    for t in range(4):
        a(f"buffer_load_dwordx4 v[{CZ+4*t}:{CZ+4*t+3}], v14, {sr(S_WS)}, s59 offen {ld_flags}")
        if t < 3: a(f"s_add_u32 s59, s59, {64*8192}")

def col_compute3(a, st_flags, late_w, zw=3):
    AR, AI, U, T = CAR, CAI, CZ, CT
    def mf(d, x, y, first):
        a(f"v_mfma_f32_32x32x16_bf16 v[{d}:{d+15}], v[{x}:{x+3}], v[{y}:{y+3}], " + ("0" if first else f"v[{d}:{d+15}]"))
    def cmul(cb, sb, conj):
        n1, n2 = ("-", "") if conj else ("", "-")
        for p in range(8):
            c, s = cb + 2*p, sb + 2*p
            tr, ti = T + 4*(p & 1), T + 4*(p & 1) + 2
            re, im = AR + 2*p, AI + 2*p
            for e in range(2): a(f"v_mul_f32 v{tr+e}, v{re+e}, v{c+e}\nv_mul_f32 v{ti+e}, v{im+e}, v{c+e}")
            for e in range(2): a(f"v_fma_f32 v{tr+e}, {n1}v{im+e}, v{s+e}, v{tr+e}\nv_fma_f32 v{ti+e}, {n2}v{re+e}, v{s+e}, v{ti+e}")
            a(f"v_cvt_pk_bf16_f32 v{U+p}, v{tr}, v{tr+1}\nv_cvt_pk_bf16_f32 v{U+8+p}, v{ti}, v{ti+1}")
    for t in range(4):
        a(f"s_waitcnt vmcnt({zw - t})")
        mf(AR, CZ + 4*t, CA + 8*t, t == 0); mf(AI, CZ + 4*t, CA + 8*t + 4, t == 0)
    cmul(T1C, T1S, False)
    C, S, N = CB, CB + 8, CB + 16
    for t in range(2):
        mf(AR, C + 4*t, U + 4*t, t == 0); mf(AI, N + 4*t, U + 4*t, t == 0)
        mf(AR, S + 4*t, U + 8 + 4*t, False); mf(AI, C + 4*t, U + 8 + 4*t, False)
    late_w()
    a("s_waitcnt vmcnt(0)")
    for r in range(16): a(f"v_lshlrev_b32 v{T1C+r}, 16, v{CW+r}\nv_and_b32 v{T1S+r}, 0xffff0000, v{CW+r}")
    cmul(T1C, T1S, True)
    for (C, S, N, last) in ((CB, CB + 8, CB + 16, False), (CD, CD + 8, CD + 16, True)):
        for t in range(2):
            mf(AR, U + 4*t, C + 4*t, t == 0); mf(AI, U + 4*t, S + 4*t, t == 0)
            mf(AR, U + 8 + 4*t, N + 4*t, False); mf(AI, U + 8 + 4*t, C + 4*t, False)
        if not last: cmul(T2C, T2S, True)
    a(f"s_add_u32 s60, s60, {WS_E}")
    for q in range(4):
        for e in range(4): a(f"v_cvt_pk_bf16_f32 v{U+4*q+e}, v{AR+4*q+e}, v{AI+4*q+e}")
        a(f"buffer_store_dwordx4 v[{U+4*q}:{U+4*q+3}], v12, {sr(S_WS)}, s60 offen offset:{128*q} {st_flags}")

def z_store_all(a, lds_rows, st_flags):
    a(f"v_and_b32 v4, 1, v1\nv_lshrrev_b32 v5, 1, v1\nv_lshlrev_b32 v4, 10, v4\nv_lshl_add_u32 v4, v5, 2, v4\nv_add_u32 v4, {lds_rows}, v4\nv_add_u32 v5, 128, v4")
    a(f"s_lshl_b32 s52, s62, 13\ns_add_u32 s52, s52, {WS_Z}\ns_add_u32 s53, s52, 4096")
    lds_wait_ge(a, 12, FL_BAR_A - MISC, 4, 18, 61, 63)
    Stamps.at(a, 6)
    def rd(e):
        a(f"ds_read2st64_b32 v[{32+4*e}:{33+4*e}], v{4 + (e & 1)} offset0:{e >> 1} offset1:{(e >> 1) + 8}")
        a(f"ds_read2st64_b32 v[{34+4*e}:{35+4*e}], v{4 + (e & 1)} offset0:{(e >> 1) + 16} offset1:{(e >> 1) + 24}")
    for e in range(7): rd(e)
    a("s_waitcnt lgkmcnt(12)"); rd(7)
    for e in range(8):
        a(f"s_waitcnt lgkmcnt({14 - 2*e})")
        a(f"buffer_store_dwordx4 v[{32+4*e}:{35+4*e}], v2, {sr(S_WS)}, s{52 + e // 4} offen offset:{1024*(e % 4)} {st_flags}")
    a(f"s_mov_b64 exec, 1\nds_add_u32 v12, v13 offset:{FL_A_DONE - MISC}\ns_mov_b64 exec, -1")

IB1, ITC, ITS, IB2, IL, IP, ID, IU, IY, IT = 16, 20, 28, 36, 52, 68, 128, 84, 192, 116

def irow_consts(a, s_pi=None):
    N, Q, ARG, STEP, c, s = 4, 5, 6, 7, 8, 100
    a(f"v_and_b32 v{N}, 15, v1\nv_cvt_f32_u32 v{N}, v{N}\nv_lshrrev_b32 v{Q}, 4, v1\nv_cvt_f32_u32 v{Q}, v{Q}")
    a(f"v_mul_f32 v{STEP}, {f32(1/16)}, v{N}\nv_add_f32 v{ARG}, v{Q}, v{Q}\nv_mul_f32 v{ARG}, v{ARG}, v{STEP}")
    for sv in range(2):
        if sv: a(f"v_add_f32 v{ARG}, v{ARG}, v{STEP}")
        a(f"v_cos_f32 v{c}, v{ARG}\nv_sin_f32 v{c+1}, v{ARG}")
        a(f"v_cvt_pk_bf16_f32 v{IB1+sv}, v{c}, -v{c+1}\nv_cvt_pk_bf16_f32 v{IB1+2+sv}, v{c+1}, v{c}")
    a(f"v_fma_f32 v{Q}, 4.0, v{Q}, 1.0")
    a(f"v_mul_f32 v{STEP}, {f32(1/512)}, v{N}\nv_mul_f32 v{ARG}, v{Q}, v{STEP}\nv_mul_f32 v{c}, {f32(13.0)}, v{STEP}")
    for i in range(8):
        if i: a(f"v_add_f32 v{ARG}, v{ARG}, v{c if i == 4 else STEP}")
        a(f"v_cos_f32 v{ITC+i}, v{ARG}\nv_sin_f32 v{ITS+i}, v{ARG}")
    a(f"v_mul_f32 v{STEP}, {f32(1/32)}, v{N}\nv_mul_f32 v{ARG}, v{Q}, v{STEP}")
    for r in range(4):
        if r: a(f"v_add_f32 v{ARG}, v{ARG}, v{STEP}")
        a(f"v_cos_f32 v{s+r}, v{ARG}\nv_sin_f32 v{s+4+r}, v{ARG}")
    for p in range(2):
        a(f"v_cvt_pk_bf16_f32 v{IB2+p}, v{s+2*p}, v{s+2*p+1}\nv_cvt_pk_bf16_f32 v{IB2+2+p}, -v{s+4+2*p}, -v{s+5+2*p}")
    if s_pi is not None:
        a(f"s_lshl_b32 s40, s{s_pi}, 15")
        for i in range(4): a(f"v_xor_b32 v{IB2+i}, s40, v{IB2+i}")
    a(f"v_and_b32 v{c}, 1, v1\nv_mul_u32_u24 v{c}, 0x8000, v{c}\nv_lshl_or_b32 v{c}, v{c}, 16, v{c}")
    for i in range(4): a(f"v_xor_b32 v{IB2+8+i}, v{c}, v{IB2+i}")
    for i in range(4): a(f"v_xor_b32 v{IB2+4+i}, 0x8000, v{IB2+i}")
    for i in range(4): a(f"v_xor_b32 v{IB2+12+i}, 0x8000, v{IB2+8+i}")

def irow_loads(a, voff, soff, ld_flags):
    for t in range(4):
        tau, sv = t & 1, t >> 1
        a(f"buffer_load_dwordx4 v[{IL+8*tau+4*sv}:{IL+8*tau+4*sv+3}], v{voff}, {sr(S_WS)}, s{soff} offen {ld_flags}")
        if t < 3: a(f"s_add_u32 s{soff}, s{soff}, {16*8192}")

def irow_compute(a):
    a("s_waitcnt vmcnt(0)")
    for tau in range(2):
        for e in range(4):
            for sv in range(2): a(f"v_mov_b32 v{IP+8*tau+2*e+sv}, v{IL+8*tau+4*sv+e}")
    for e in range(4):
        for tau in range(2):
            for ri in range(2):
                d = ID + 16*e + 8*tau + 4*ri; p = IP + 8*tau + 2*e
                a(f"v_mfma_f32_16x16x16_bf16 v[{d}:{d+3}], v[{p}:{p+1}], v[{IB1+2*ri}:{IB1+2*ri+1}], 0")
    for e in range(4):
        for tau in range(2):
            re, im = ID + 16*e + 8*tau, ID + 16*e + 8*tau + 4
            for r in range(4): a(f"v_mul_f32 v{IT+r}, v{re+r}, v{ITC+4*tau+r}\nv_mul_f32 v{IT+4+r}, v{im+r}, v{ITC+4*tau+r}")
            for r in range(4): a(f"v_fma_f32 v{IT+r}, -v{im+r}, v{ITS+4*tau+r}, v{IT+r}\nv_fma_f32 v{IT+4+r}, v{re+r}, v{ITS+4*tau+r}, v{IT+4+r}")
            u = IU + 8*e + 4*tau
            for p in range(4): a(f"v_cvt_pk_bf16_f32 v{u+p}, v{IT+2*p}, v{IT+2*p+1}")
        for rho in range(2):
            for tau in range(2):
                d = IY + 8*e + 4*rho; u = IU + 8*e + 4*tau; b = IB2 + 8*tau + 4*rho
                a(f"v_mfma_f32_16x16x32_bf16 v[{d}:{d+3}], v[{u}:{u+3}], v[{b}:{b+3}], " + ("0" if tau == 0 else f"v[{d}:{d+3}]"))

def col_compute4(a, st_flags):
    U, T = CZ, CT
    ACCS = [(CAR, CAI), (CA, CA + 16)]
    def mf(d, x, y, first):
        a(f"v_mfma_f32_32x32x16_bf16 v[{d}:{d+15}], v[{x}:{x+3}], v[{y}:{y+3}], " + ("0" if first else f"v[{d}:{d+15}]"))
    def cmul(acc, cb, sb, conj, ps, mid=()):
        AR, AI = acc; mid = list(mid)
        n1, n2 = ("-", "") if conj else ("", "-")
        for p in ps:
            c, s = cb + 2*p, sb + 2*p
            tr, ti = T + 4*(p & 1), T + 4*(p & 1) + 2
            re, im = AR + 2*p, AI + 2*p
            for e in range(2): a(f"v_mul_f32 v{tr+e}, v{re+e}, v{c+e}\nv_mul_f32 v{ti+e}, v{im+e}, v{c+e}")
            if mid: mf(*mid.pop(0))
            for e in range(2): a(f"v_fma_f32 v{tr+e}, {n1}v{im+e}, v{s+e}, v{tr+e}\nv_fma_f32 v{ti+e}, {n2}v{re+e}, v{s+e}, v{ti+e}")
            a(f"v_cvt_pk_bf16_f32 v{U+p}, v{tr}, v{tr+1}\nv_cvt_pk_bf16_f32 v{U+8+p}, v{ti}, v{ti+1}")
    def stage(acc, base, t, data_is_b):
        AR, AI = acc; C, S, N = base + 4*t, base + 8 + 4*t, base + 16 + 4*t
        ur, ui = U + 4*t, U + 8 + 4*t
        if data_is_b: return [(AR, C, ur, t == 0), (AI, N, ur, t == 0), (AR, S, ui, False), (AI, C, ui, False)]
        return [(AR, ur, C, t == 0), (AI, ur, S, t == 0), (AR, ui, N, False), (AI, ui, C, False)]
    for t in range(4):
        a(f"s_waitcnt vmcnt({7 - t})")
        mf(CAR, CZ + 4*t, CA + 8*t, t == 0); mf(CAI, CZ + 4*t, CA + 8*t + 4, t == 0)
    for n, (cb, sb, conj, base, dib) in enumerate(((T1C, T1S, False, CB, True), (T1C, T1S, True, CB, False), (T2C, T2S, True, CD, False))):
        src, dst = ACCS[n & 1], ACCS[(n + 1) & 1]
        cmul(src, cb, sb, conj, range(4))
        cmul(src, cb, sb, conj, range(4, 8), stage(dst, base, 0, dib))
        tail = stage(dst, base, 1, dib)
        if n == 0:
            a("s_waitcnt vmcnt(0)")
            for r in range(16):
                if r % 4 == 0: mf(*tail.pop(0))
                a(f"v_lshlrev_b32 v{T1C+r}, 16, v{CW+r}\nv_and_b32 v{T1S+r}, 0xffff0000, v{CW+r}")
        for m in tail: mf(*m)
    AR, AI = ACCS[1]
    a(f"s_add_u32 s60, s60, {WS_E}")
    for q in range(4):
        for e in range(4): a(f"v_cvt_pk_bf16_f32 v{U+4*q+e}, v{AR+4*q+e}, v{AI+4*q+e}")
        a(f"buffer_store_dwordx4 v[{U+4*q}:{U+4*q+3}], v12, {sr(S_WS)}, s60 offen offset:{128*q} {st_flags}")
```

```python
import sys, math
from spec4 import *

OPT = set(sys.argv[2:])
Stamps.on = "stamp" in OPT or "se" in OPT
if "se" in OPT or "qs" in OPT: Stamps.skip = set(range(1, 15))
if "cyc" in OPT: Stamps.op = "s_memtime"
Trace.on = "trace" in OPT
TM, TL, TH, T3 = Trace("main", 10), Trace("loader", 31), Trace("h12", 255), Trace("h3", 31)
LSLEEP[0] = 1 if "lsleep" in OPT else 0
NAME = "parallel_sum__spectral_gfnet__glu_gated_swiglu__prompt_kernel"
HEADER = open("parallel_sum__spectral_gfnet__glu_gated_swiglu__prompt.s.ref").read().split("; Override")[0]
WT = "sc0 sc1"
RD = "" if "rdplain" in OPT else "sc1"
GF_EPOCH, GCNT, MBOX = WS_FLAG, WS_FLAG + 0x1000, WS_FLAG + 0x10000
WS_Y = 0xD00000
XCH = MISC + 1024
S_MB, S_DBG = 64, 66
FL_HS, FL_HSF, FL_FULL3, FL_YX, FL_YC, FL_LV = MISC + 112, MISC + 128, MISC + 144, MISC + 160, MISC + 164, MISC + 176
H3C = ()
FL_Z_CNT, FL_E_CNT, FL_HLVL, FL_FULL2, FL_GO, FL_FULLE = MISC + 40, MISC + 44, MISC + 48, MISC + 64, MISC + 80, MISC + 96
SCRATCH = MISC + 1024
GSPIN = 1 << 18
CPRIO = 0 if "cp0" in OPT else 2
PSLEEP = 24 if "slowpoll" in OPT else 2
HWT = "" if "hplain" in OPT else WT
S_I, S_J, S_P, S_NP, S_ROT, S_T, S_CJ, S_RES, S_TAG, S_HW, S_COL = 84, 85, 86, 87, 88, 89, 90, 91, 5, 4, 83

class DsQ:
    def __init__(self, a): self.a = a; self.q = []
    def op(self, text, tag=None):
        self.a(text)
        if "read" in text.split()[0]: self.q.append(tag)
    def wait(self, tag):
        idx = [i for i, t in enumerate(self.q) if t == tag]
        if not idx: return
        n = len(self.q) - 1 - idx[-1]
        assert n <= 15, n
        self.a(f"s_waitcnt lgkmcnt({n})")
        self.q = self.q[idx[-1] + 1:]

PJ = [(43 * j) >> 4 for j in range(17)]
ORDER = [PJ[j] for j in range(16)] + [PJ[j+1] - 1 for j in range(16)] + [PJ[j] + 1 for j in range(16) if PJ[j+1] - PJ[j] == 3]

NL, NS = (int([o[2:] for o in OPT if o.startswith("nl")][0]) if any(o.startswith("nl") for o in OPT) else 10), 7
HST = 18 * SLOT
def plan_slots():
    free = [(16, 0), (17, 4)] + [(4 * w + c, c + 1) for c in range(4) for w in range(4)]
    cells = {}
    def alloc(key, release):
        free.sort(key=lambda t: t[1])
        s, req = free.pop(0)
        cells[key] = (s, req)
        free.append((s, release))
    for q in range(4):
        alloc(("A", "X", q), 5 + q); alloc(("C", "X", q), 13 + q); alloc(("A", "Y", q), 5 + q)
    for q in range(4):
        alloc(("B", "Y", q), 9 + q); alloc(("C", "Y", q), 13 + q); alloc(("B", "X", q), 9 + q)
    for c in range(22): alloc(("w", c), 17 + c)
    global FINAL
    FINAL = sorted((rel, s) for (s, rel) in free)[:5]
    return cells
CELLS = plan_slots()
LAST_REQ = max(r for (s, r) in CELLS.values())
TA = FINAL[0][1]; TB = [s for _, s in FINAL[1:]]; TA_REQ, TB_REQ = FINAL[0][0], FINAL[4][0]; assert TB_REQ <= 37, FINAL

def ids_early(a):
    a(f"s_bfe_u32 s40, s2, 0x20003\ns_and_b32 s41, s2, 3\ns_lshl2_add_u32 s{S_I}, s41, s40")
    a(f"s_bfe_u32 s40, s2, 0x10002\ns_lshr_b32 s41, s2, 5\ns_lshl3_add_u32 s{S_J}, s40, s41")
    if "norx" not in OPT: a(f"s_add_u32 s{S_ROT}, s2, s{S_J}\ns_and_b32 s{S_ROT}, s{S_ROT}, 3")
    else: a(f"s_add_u32 s{S_ROT}, s{S_I}, s{S_J}\ns_and_b32 s{S_ROT}, s{S_ROT}, 3")

def ids_late(a):
    a(f"s_mul_i32 s{S_P}, s{S_J}, 43\ns_add_u32 s{S_NP}, s{S_P}, 43\ns_lshr_b32 s{S_P}, s{S_P}, 4\ns_lshr_b32 s{S_NP}, s{S_NP}, 4\ns_sub_u32 s{S_NP}, s{S_NP}, s{S_P}")
    a(f"s_and_b32 s40, s2, 3\ns_bfe_u32 s41, s2, 0x10002\ns_lshl1_add_u32 s40, s40, s41\ns_bfe_u32 s41, s2, 0x20003\ns_lshl2_add_u32 s{S_T}, s40, s41\ns_lshr_b32 s{S_CJ}, s2, 5")
    a(f"s_lshl_b32 s{S_COL}, s{S_CJ}, 5\ns_add_u32 s{S_COL}, s{S_COL}, s{S_T}")
    for d, src, n in ((S_W1, 72, 512*2752), (S_W3, 74, 512*2752), (S_W2, 76, 1376*1024), (S_OUT, 78, 2048*1024)):
        a(f"s_mov_b64 s[{d}:{d+1}], s[{src}:{src+1}]\ns_mov_b32 s{d+2}, {n}\ns_mov_b32 s{d+3}, 0x20000")
    a(f"s_mov_b32 s{S_WS+2}, 0x10000000\ns_mov_b32 s{S_WS+3}, 0x20000")
    a(f"s_add_u32 s80, s{S_WS}, {GF_EPOCH}\ns_addc_u32 s81, s{S_WS+1}, 0")
    a(f"s_lshl_b32 s40, s2, 8\ns_add_u32 s40, s40, {MBOX}\ns_add_u32 s{S_MB}, s{S_WS}, s40\ns_addc_u32 s{S_MB+1}, s{S_WS+1}, 0")
    Stamps.clear(a)

def warm(a, segs):
    if "hop" not in OPT: return
    a("s_mov_b64 exec, 0")
    for sg in segs: a(f"s_call_b64 s[0:1], hs_{sg}_0")
    a("s_mov_b64 exec, -1")

def make_tag(a):
    a(f"s_mul_i32 s{S_TAG}, s{S_TAG}, 0x9E3779B1\ns_add_u32 s{S_TAG}, s{S_TAG}, 0x7F4A7C15")

def flag_store(a, soff, level, vt):
    a(f"s_add_u32 s40, s{S_TAG}, {level}\nv_mov_b32 v{vt}, s40")
    a("s_mov_b64 exec, 1")
    a(f"buffer_store_dword v{vt}, off, {sr(S_WS)}, s{soff} {WT}")
    a("s_mov_b64 exec, -1")

def h_post(a):
    a("s_mov_b32 s59, 0x10000")
    for i in range(8): a(f"s_atomic_add s59, s[60:61], {8192*i}")

def wg_signal(a, cnt_word, n, event, vaddr, vone, vt):
    zf = a.label("zf")
    if n > 1:
        a("s_mov_b64 exec, 1")
        a(f"ds_add_rtn_u32 v{vt}, v{vaddr}, v{vone} offset:{cnt_word - MISC}\ns_mov_b64 exec, -1\ns_waitcnt lgkmcnt(0)\nv_readfirstlane_b32 s40, v{vt}")
        a(f"s_cmp_lg_u32 s40, {n - 1}\ns_cbranch_scc1 {zf}")
    if event == 0:
        a(f"s_and_b32 s43, s2, 1\ns_lshl_b32 s41, s43, 7\ns_mov_b32 s40, 1")
        a(f"s_atomic_add s40, s[{S_DBG}:{S_DBG+1}], s41 glc\ns_waitcnt lgkmcnt(0)")
        a(f"s_and_b32 s40, s40, 127\ns_cmp_lg_u32 s40, 127\ns_cbranch_scc1 {zf}")
    else:
        a(f"s_bfe_u32 s43, s2, 0x30003\ns_lshl_b32 s41, s43, 7\ns_add_u32 s41, s41, {GCNT - GF_EPOCH}\ns_mov_b32 s40, 1")
        a(f"s_atomic_add s40, s[80:81], s41 glc\ns_waitcnt lgkmcnt(0)")
        a(f"s_cmp_lg_u32 s40, 31\ns_cbranch_scc1 {zf}")
    a(f"s_lshl_b32 s43, s43, 2\ns_add_u32 s43, s43, {MBOX + 32*event}\ns_add_u32 s40, s{S_TAG}, 1\nv_mov_b32 v{vt}, s40\nv_lshlrev_b32 v{vt+1}, 8, v1")
    if NCOPY < 64: a("s_mov_b32 exec_hi, 0")
    for i in range(max(NCOPY // 64, 1)):
        a(f"buffer_store_dword v{vt}, v{vt+1}, {sr(S_WS)}, s43 offen {WT}\ns_add_u32 s43, s43, 0x4000")
    a("s_mov_b64 exec, -1")
    a(f"{zf}:")

def wait_go(a, event):
    top, done = a.label("gp"), a.label("gpd")
    a(f"s_mov_b32 s41, {GSPIN}\ns_add_u32 s42, s{S_TAG}, 1\ns_mov_b32 s43, s42")
    a(f"s_and_b32 s40, s2, {NCOPY - 1}\ns_lshl_b32 s40, s40, 8\ns_add_u32 s40, s40, {MBOX - GF_EPOCH + 32*event}")
    a(f"{top}:")
    if event == 0:
        a(f"s_load_dwordx2 s[44:45], s[80:81], s40 glc\ns_waitcnt lgkmcnt(0)\ns_xor_b64 s[44:45], s[44:45], s[42:43]\ns_cbranch_scc0 {done}")
    else:
        a(f"s_load_dwordx8 s[44:51], s[80:81], s40 glc\ns_waitcnt lgkmcnt(0)")
        for i in range(4): a(f"s_xor_b64 s[{44+2*i}:{45+2*i}], s[{44+2*i}:{45+2*i}], s[42:43]")
        a(f"s_or_b64 s[44:45], s[44:45], s[46:47]\ns_or_b64 s[48:49], s[48:49], s[50:51]\ns_or_b64 s[44:45], s[44:45], s[48:49]\ns_cbranch_scc0 {done}")
    a(f"s_sleep {PSLEEP}\ns_sub_u32 s41, s41, 1\ns_cbranch_scc0 {top}")
    a(f"{done}:")

def level_load(a):
    a(f"s_load_dword s53, s[{S_MB}:{S_MB+1}], s54 glc")

def level_test(a, need):
    a(f"s_bitcmp1_b32 s53, {8 * need - 4 + (need == 3)}")

def pair_table(a, vt, t1, t2, sx=40):
    a(f"s_and_b32 s{sx}, s{S_T}, 3\ns_lshl1_add_u32 s{sx}, s{sx}, s{S_CJ}\ns_lshl_b32 s{sx}, s{sx}, 1\ns_and_b32 s{sx}, s{sx}, 15\ns_mul_i32 s{sx+1}, s{sx}, 11\ns_lshr_b32 s{sx+1}, s{sx+1}, 4\ns_sub_u32 s{sx+1}, s{sx+1}, 32")
    a(f"v_add_u32 v{t1}, s{sx+1}, v1\nv_subrev_u32 v{t2}, 11, v{t1}\nv_min_u32 v{t1}, v{t1}, v{t2}")
    a(f"v_lshrrev_b32 v{t2}, 1, v{t1}\nv_add3_u32 v{t1}, v{t1}, v{t2}, 1\nv_min_u32 v{t1}, 15, v{t1}")
    a(f"v_add_u32 v{t2}, s{sx}, v1\nv_and_b32 v{t2}, 15, v{t2}\nv_cmp_gt_u32 vcc, 32, v1\nv_cndmask_b32 v{t1}, v{t1}, v{t2}, vcc\nv_mul_u32_u24 v{t1}, 43, v{t1}")
    a(f"v_cndmask_b32 v{t2}, 16, 27, vcc\nv_cmp_gt_u32 vcc, 16, v1\nv_cndmask_b32 v{t2}, v{t2}, 0, vcc\nv_add_u32 v{t1}, v{t1}, v{t2}\nv_lshrrev_b32 v{vt}, 4, v{t1}")

def lv_take(a): a("v_readfirstlane_b32 s40, v2\ns_max_u32 s53, s53, s40")

def h_wait(a, need):
    top, done = a.label("hp"), a.label("hpd")
    level_test(a, need)
    a(f"s_cbranch_scc1 {done}\ns_mov_b32 s41, {SPIN}")
    a(f"{top}:")
    a(f"ds_read_b32 v2, v9 offset:{FL_LV - MISC}\ns_waitcnt lgkmcnt(0)"); lv_take(a); level_test(a, need)
    a(f"s_cbranch_scc1 {done}\ns_sub_u32 s41, s41, 1\ns_cbranch_scc0 {top}")
    a(f"{done}:")

def lv_poll(a, loop):
    top, done = a.label("lp"), a.label("lpd")
    a(f"s_mov_b32 s41, {GSPIN}\n{top}:")
    a(f"s_load_dword s52, s[{S_MB}:{S_MB+1}], 128 glc\ns_waitcnt lgkmcnt(0)\nv_mov_b32 v16, s52\nds_write_b32 v25, v16 offset:{FL_LV - MISC}")
    if loop:
        a(f"s_and_b32 s52, s52, 0xffffff\ns_cmp_eq_u32 s52, 0x201010\ns_cbranch_scc1 {done}\ns_sub_u32 s41, s41, 1\ns_cbranch_scc0 {top}\n{done}:")

def mbox_off(a, dst, grp):
    a(f"s_bfe_u32 s40, s{grp}, 0x20003\ns_and_b32 s41, s{grp}, 4\ns_add_u32 s40, s40, s41\ns_and_b32 s41, s{grp}, 3\ns_lshl3_add_u32 s{dst}, s41, s40\ns_lshl_b32 s{dst}, s{dst}, 8")
    a(f"s_lshr_b32 s40, s{grp}, 5\ns_lshl2_add_u32 s{dst}, s40, s{dst}\ns_add_u32 s{dst}, s{dst}, {MBOX + 128}")

def check(a, stubs, scache, need, areg, off, vt, minof=1, before_spin=None):
    back, sl = a.label("fb"), a.label("fs")
    a(f"s_cmp_ge_u32 s{scache}, {need}")
    a(f"s_cbranch_scc0 {sl}")
    a(f"{back}:")
    stubs.append((sl, back, scache, need, areg, off, vt, minof, before_spin))

def emit_stubs(a, stubs):
    for (sl, back, sc, need, areg, off, vt, minof, before_spin) in stubs:
        a(f"{sl}:")
        if before_spin:
            a(f"ds_read_b32 v{vt}, v{areg} offset:{off}\ns_waitcnt lgkmcnt(0)\nv_readfirstlane_b32 s{sc}, v{vt}")
            a(f"s_cmp_ge_u32 s{sc}, {need}\ns_cbranch_scc1 {back}")
            before_spin()
        lds_wait_ge(a, areg, off, need, vt, sc, 41, minof=minof, sleep=1)
        a(f"s_branch {back}")

X0, ACC, AF, PD = 128, (64, 96), 32, 3

def x_setup(a):
    a(f"s_and_b32 s40, s3, 1\ns_lshl1_add_u32 s50, s{S_I}, s40\ns_lshr_b32 s41, s3, 1\ns_lshl_b32 s41, s41, 5\ns_add_u32 s50, s50, s41")
    a("s_lshl_b32 s51, s3, 15")
    a("s_lshr_b32 s41, s50, 3\ns_lshl_b32 s41, s41, 18\ns_and_b32 s42, s50, 7\ns_lshl_b32 s42, s42, 12\ns_add_u32 s56, s41, s42")
    a(f"s_lshl_b32 s40, s{S_ROT}, 8\ns_add_u32 s52, s56, s40")
    if "nors" not in OPT: a(f"s_and_b32 s63, s{S_J}, 4\ns_lshr_b32 s40, s{S_J}, 2\ns_and_b32 s40, s40, 2\ns_or_b32 s63, s63, s40")
    else: a(f"s_lshr_b32 s63, s{S_J}, 1\ns_and_b32 s63, s63, 6")
    a("v_lshrrev_b32 v20, 4, v1\nv_and_b32 v21, 15, v1\nv_xor_b32 v21, v21, v20\nv_lshlrev_b32 v21, 4, v21\nv_lshl_add_u32 v20, v20, 10, v21")
    a("s_and_b32 s40, s63, 2\ns_lshl_b32 s40, s40, 6\nv_xor_b32 v16, s40, v20\nv_xor_b32 v17, 64, v16\nv_xor_b32 v18, 0x80, v16\nv_xor_b32 v19, 0x80, v17")
    a("s_lshl_b32 s63, s63, 10")

def touch_setup(a):
    a(f"s_mul_i32 s{S_P}, s{S_J}, 43\ns_lshr_b32 s{S_P}, s{S_P}, 4\ns_lshr_b32 s40, s3, 1\ns_lshl1_add_u32 s40, s{S_ROT}, s40\ns_mul_i32 s48, s40, {64*2752}")
    a(f"s_lshl_b32 s40, s{S_P}, 6\ns_add_u32 s48, s48, s40\nv_mul_u32_u24 v44, 2752, v1")
    a(f"s_mov_b32 s14, {512*2752}\ns_mov_b32 s15, 0x20000")

def touch_issue(a, off):
    a(f"buffer_load_dword v127, v44, s[12:15], s48 offen offset:{off}")

def x_setup_late(a):
    for c in range(1, 4):
        a(f"s_add_u32 s40, s{S_ROT}, {c}\ns_and_b32 s40, s40, 3\ns_lshl_b32 s40, s40, 8\ns_add_u32 s{52+c}, s56, s40")

def x_issue(a, c, between=None):
    a(f"s_add_u32 s41, s51, {c*SLOT}" if c else "s_mov_b32 s41, s51")
    for e in range(8):
        a(f"s_xor_b32 s42, s63, {e << 10}" if e else "s_mov_b32 s42, s63")
        a("s_add_u32 m0, s41, s42\ns_lshl_b32 s42, s42, 5")
        a(f"s_add_u32 s40, s42, s{52+c}")
        a(f"buffer_load_dwordx4 v{16+(e&3)}, {sr(S_X)}, s40 offen lds")
        if between: between(e)

def epilogue_ops(acc, level, direct=False):
    ev = []
    for n in range(16):
        tau, r = n // 8, n % 8
        g, u = acc + 16*tau + r, acc + 16*tau + 8 + r
        ev += [(n, 0, f"v_mul_f32 v{u}, v{g}, v{u}"), (n, 1, f"v_mul_f32 v{g}, v10, v{g}"), (n + 1, 2, f"v_exp_f32 v{g}, v{g}"),
               (n + 2, 3, f"v_fma_f32 v{g}, v{g}, v11, v11"), (n + 3, 5, f"v_rcp_f32 v{g}, v{g}"), (n + 4, 4, f"v_mul_f32 v{u}, v{u}, v{g}")]
        if r & 1: ev.append((n + 5, 6, f"v_cvt_pk_bf16_f32 v{24 + 4*tau + r // 2}, v{u-1}, v{u}"))
    ops = [o for _, _, o in sorted(ev, key=lambda t: (t[0], t[1]))]
    if direct:
        ops.insert(len(ops) - 30, f"buffer_store_dwordx4 v[24:27], v3, {sr(S_WS)}, s62 offen {WT}")
        return ops + [f"buffer_store_dwordx4 v[28:31], v3, {sr(S_WS)}, s62 offen offset:1024 {WT}"]
    ops.insert(len(ops) - 6, ("ds", "ds_write_b128 v22, v[24:27]"))
    ops.insert(len(ops) - 2, f"v_mov_b32 v23, {level}")
    return ops + [("ds", "ds_write_b128 v22, v[28:31] offset:1024"), ("ds", f"ds_write_b32 v9, v23 offset:{FL_HS - MISC}")]

TABR = [20]
def HB(p): return X0 + 4*p if p < 32 else 84 + 4*(p - 32)
def h_pre(a, p): a(f"v_readlane_b32 s{68 + p % 4}, v{TABR[0]}, {p}")
def h_load(a, p):
  if not ("sk" in OPT and p < 16): a(f"buffer_load_dwordx4 v[{HB(p)}:{HB(p)+3}], v3, {sr(S_WS)}, s{68 + p % 4} offen {RD}")
def h_burst(a, lo, hi):
    for p in range(lo, min(lo + 3, hi)): h_pre(a, p)
    for p in range(lo, hi):
        if p + 3 < hi: h_pre(a, p + 3)
        h_load(a, p)

def g1_main(a):
    dq = DsQ(a); slow = []
    a(f"s_lshl_b32 s40, s3, 2\ns_add_u32 s40, s40, {MISC}\nv_mov_b32 v9, s40")
    a("v_lshlrev_b32 v3, 4, v1")
    a("v_and_b32 v20, 31, v1\nv_lshrrev_b32 v21, 5, v1\nv_and_b32 v22, 15, v1\nv_xor_b32 v21, v21, v22\nv_lshlrev_b32 v21, 4, v21")
    a("v_lshl_add_u32 v24, v20, 8, v21\nv_add_u32 v24, s51, v24")
    for j in range(1, 8): a(f"v_xor_b32 v{24+j}, {32*j}, v24")
    a("v_bfe_u32 v20, v1, 4, 1\nv_lshrrev_b32 v21, 5, v1\nv_bfe_u32 v22, v1, 2, 2")
    a(f"v_add_u32 v8, s{S_P}, v22\nv_and_b32 v8, 1, v8")
    a("v_lshrrev_b32 v22, 1, v22\nv_lshl_add_u32 v22, v21, 2, v22\nv_lshl_add_u32 v22, v8, 1, v22\nv_lshlrev_b32 v22, 6, v22")
    a("v_lshl_add_u32 v22, v20, 12, v22\nv_lshl_add_u32 v22, v20, 5, v22")
    a("v_and_b32 v21, 1, v1\nv_lshl_add_u32 v22, v21, 4, v22\nv_bfe_u32 v21, v1, 1, 1\nv_lshl_add_u32 v4, v21, 3, v22")
    a("v_xor_b32 v5, 128, v4\nv_xor_b32 v6, 32, v4\nv_xor_b32 v7, 160, v4")
    a(f"s_mul_i32 s62, s50, 86\ns_lshl1_add_u32 s62, s{S_P}, s62\ns_lshl_b32 s62, s62, 10\ns_add_u32 s62, s62, {WS_H + 2048}")
    a("s_and_b32 s61, s50, 31"); mbox_off(a, 59, 61)
    a(f"s_add_u32 s60, s{S_WS}, s59\ns_addc_u32 s61, s{S_WS+1}, 0")
    a("s_mov_b32 s56, 0x3f803f80\ns_mov_b32 s57, 0x00003f80\ns_mov_b32 s58, 0x3f800000")
    def reads(c):
        for j in range(8):
            r = X0 + 32*c + 4*j
            dq.op(f"ds_read_b128 v[{r}:{r+3}], v{24+j} offset:{c*SLOT}", ("x", c, j))
        a(f"v_mov_b32 v14, {c + 1}")
        dq.op(f"ds_write_b32 v9, v14 offset:{FL_FREE - MISC}")
    def sums(c, only=None):
        for j in (range(8) if only is None else [only]):
            if j % 2 == 0: dq.wait(("x", c, j + 1))
            for r in range(X0 + 32*c + 4*j, X0 + 32*c + 4*j + 4):
                first = (r == X0)
                a(f"v_dot2_f32_bf16 v10, v{r}, s56, {'0' if first else 'v10'}")
                a(f"v_dot2_f32_bf16 v11, v{r}, v{r}, {'0' if first else 'v11'}")
    wd = a.label("wd")
    if "hopm" in OPT:
        for w, segs in enumerate((["x0"], ["x1"], ["x2"], ["x3"])):
            nx = a.label("wn")
            if w < 3: a(f"s_cmp_lg_u32 s3, {w}\ns_cbranch_scc1 {nx}")
            warm(a, segs)
            if w < 3: a(f"s_branch {wd}\n{nx}:")
        a(f"{wd}:")
    if "mx" in OPT: a("s_setprio 3")
    x_issue(a, 1)
    Stamps.at(a, 6)
    if "hopm" in OPT: a(f";@seg x0 {HV}")
    a("s_waitcnt vmcnt(8)"); Stamps.at(a, 1); reads(0)
    x_issue(a, 2, lambda e: sums(0, e))
    a("s_waitcnt vmcnt(8)"); reads(1)
    x_issue(a, 3, lambda e: sums(1, e))
    if "mx" in OPT: a("s_setprio 0")
    T3L = "t3" in OPT
    if T3L: touch_issue(a, 128)
    if "hopm" in OPT: a(f";@seg x1 {HV}")
    a(f"s_waitcnt vmcnt({8 + T3L})"); reads(2); sums(2)
    a(f"s_waitcnt vmcnt({0 + T3L})"); Stamps.at(a, 2); reads(3)
    sums(3)
    a("v_mov_b32 v12, v10\nv_mov_b32 v13, v11")
    a("v_permlane32_swap_b32 v12, v10\nv_permlane32_swap_b32 v13, v11")
    a("v_add_f32 v10, v10, v12\nv_add_f32 v11, v11, v13")
    sub = Asm(); ln_scalars(sub, 10, 11, None)
    a(sub.lines[0])
    a("v_cvt_pk_bf16_f32 v31, -v10, -v10\nv_and_b32 v31, 0xffff0000, v31")
    rest = sub.lines[1:] + [f"v_mul_f32 v10, {f32(-math.log2(math.e))}, v11", "v_mul_f32 v11, v11, v11", "v_rcp_f32 v11, v11"]
    for j in range(32):
        for r in range(4 if "noctr" not in OPT else 0):
            x = X0 + 4*j + r; t = 16 + 2*r
            a(f"v_dot2_f32_bf16 v{t}, v{x}, s57, v31\nv_dot2_f32_bf16 v{t+1}, v{x}, s58, v31")
        if j in (2, 17) and "hopm" in OPT: a(f";@seg x{2 if j == 2 else 3} {HV}")
        if j < len(rest): a(rest[j])
        for r in range(4 if "noctr" not in OPT else 0): a(f"v_cvt_pk_bf16_f32 v{X0+4*j+r}, v{16+2*r}, v{17+2*r}")
        if j == 24: dq.op(f"ds_read_b32 v2, v9 offset:{FL_FULL - MISC}", "poll")
    PASS = "ABC"
    def base_calc(r):
        ps, q = PASS[r // 32], (r % 32) // 8
        bx, by = CELLS[(ps, "X", q)][0] * SLOT, CELLS[(ps, "Y", q)][0] * SLOT
        a(f"v_mul_i32_i24 v0, {by - bx}, v8\nv_add_u32 v0, {bx}, v0")
        return 8
    def full_check(r):
        ps, q = PASS[r // 32], (r % 32) // 8
        need_full = {"A": q + 1, "B": q + 5, "C": 0}[ps]
        if not need_full: return 0
        back, sl = a.label("g1b"), a.label("g1s")
        dq.wait("poll")
        a(f"v_readfirstlane_b32 s40, v2\ns_cmp_ge_u32 s40, {need_full}\ns_cbranch_scc0 {sl}")
        a(f"{back}:")
        slow.append((sl, back, need_full, FL_FULL))
        return 16
    def AB(r): return 12 + 4 * ((r // 8) & 1)
    def addr(r, tau):
        for i in (2*tau, 2*tau + 1): a(f"v_add_u32 v{AB(r)+i}, v0, v{4+i}")
        return 8
    def wreads(r, tau):
        j = r % 8; b = AF + 8 * (r % 4); cost = 8
        for rd in range(2):
            dq.op(f"ds_read_b64_tr_b16 v[{b+4*tau+2*rd}:{b+4*tau+2*rd+1}], v{AB(r)+2*tau+rd} offset:{512*j}", ("w", r))
        nxt = r - j + 8
        if nxt < 96:
            if j == 2 and tau == 0: cost += base_calc(nxt)
            if j == 4: cost += addr(nxt, tau)
            if j == 7 and tau == 0: cost += full_check(nxt)
            if j == 5 and tau == 0 and nxt < 64:
                dq.op(f"ds_read_b32 v2, v9 offset:{FL_FULL - MISC}", "poll"); cost += 4
        if j == 6 and tau == 1: a(f"v_mov_b32 v0, {5 + r // 8}"); cost += 4
        if j == 7 and tau == 1:
            dq.op(f"ds_write_b32 v9, v0 offset:{FL_FREE - MISC}"); cost += 4
        return cost
    a(f";@seg m1 {HM}")
    base_calc(0); addr(0, 0); addr(0, 1); full_check(0)
    for g in range(PD): wreads(g, 0); wreads(g, 1)
    Stamps.at(a, 3)
    fin2, done = a.label("g1fin2"), a.label("g1done")
    sub = Asm()
    sub(f"s_lshl_b32 s42, s3, 11\ns_add_u32 s42, s42, {HST}\nv_add_u32 v22, s42, v3\ns_movk_i32 s54, 128")
    sub(f"s_and_b32 s42, s3, 1\ns_lshl_b32 s42, s42, 5\ns_add_u32 s42, s42, s{S_T}\ns_mul_i32 s50, s42, 86")
    sub(f"s_lshr_b32 s51, s3, 1\ns_add_u32 s50, s50, s51\ns_lshl_b32 s50, s50, 10\ns_add_u32 s50, s50, {WS_H}")
    pair_table(sub, 20, 24, 25, 42)
    sub("v_lshlrev_b32 v20, 11, v20\nv_add_u32 v20, s50, v20")
    sub("v_bfe_u32 v24, v1, 2, 2\nv_lshrrev_b32 v25, 5, v1\nv_lshl_add_u32 v25, v25, 3, v24\ns_lshl_b32 s42, s51, 4\nv_add_u32 v25, s42, v25")
    sub("v_lshlrev_b32 v25, 7, v25\nv_lshrrev_b32 v24, 1, v24\nv_lshl_add_u32 v25, v24, 6, v25")
    sub("v_bfe_u32 v24, v1, 4, 1\nv_lshl_add_u32 v25, v24, 5, v25\nv_and_b32 v24, 3, v1\nv_lshl_add_u32 v21, v24, 3, v25")
    res_setup(sub, 42)
    EP = {0: [l.strip() for l in sub.lines], 1: epilogue_ops(ACC[0], 1), 2: epilogue_ops(ACC[1], 2)}
    opcost = lambda o: 8 if isinstance(o, tuple) or o.startswith(("v_exp", "v_rcp")) else 4
    def emit(o):
        if isinstance(o, tuple): dq.op(o[1])
        else: a(o)
    def step(g, extra=None):
        ps, j = g // 32, g % 32
        acc = ACC[ps & 1]; ep = EP[ps]
        b = AF + 8 * (g % 4)
        dq.wait(("w", g))
        for tau in range(2):
            d = acc + 16 * tau
            if "m16" in OPT:
                for z in range(2):
                    dd = d + 8 * (j & 1) + 4 * z; xx = X0 + 4 * (j ^ z)
                    a(f"v_mfma_f32_16x16x32_bf16 v[{dd}:{dd+3}], v[{b+4*tau}:{b+4*tau+3}], v[{xx}:{xx+3}], " + ("0" if j < 2 else f"v[{dd}:{dd+3}]"))
            else:
                a(f"v_mfma_f32_32x32x16_bf16 v[{d}:{d+15}], v[{b+4*tau}:{b+4*tau+3}], v[{X0+4*j}:{X0+4*j+3}], " + ("0" if j == 0 else f"v[{d}:{d+15}]"))
            cost = 4 * tau
            if g + PD < 96: cost += wreads(g + PD, tau)
            if ps == 2 and j == HSJ - 3 and tau == 1:
                dq.op(f"ds_read_b32 v2, v9 offset:{FL_HSF - MISC}", "poll"); cost += 4
            if ps == 2 and j == HSJ and tau == 0:
                back, sl = a.label("g1b"), a.label("g1s")
                dq.wait("poll")
                a(f"v_readfirstlane_b32 s40, v2\ns_cmp_ge_u32 s40, 1\ns_cbranch_scc0 {sl}\n{back}:")
                slow.append((sl, back, 1, FL_HSF)); cost += 16
            if ps == 2 and j == 32 - ET - 8 and tau == 0: level_load(a); cost += 4
            while ep and j >= 1 and cost + opcost(ep[0]) <= (GAPB if ps else 20):
                assert not (ps == 2 and isinstance(ep[0], tuple) and j < HSJ)
                o = ep.pop(0); cost += opcost(o); emit(o)
                if not ep: print("fill list", ps, "ends at step", j)
            if extra: extra(tau)
    for g in range(96 - ET):
        if g == 32: a(f";@seg m2 {HM}\ns_waitcnt vmcnt(0)")
        if "qs" in OPT and g % 8 == 0: Stamps.at(a, 1 + g // 8, True)
        step(g)
        if g % 32 == 31:
            assert not EP[g // 32]
            Stamps.at(a, 4 + g // 32)
        if g == 63:
            a(f"s_cmp_eq_u32 s{S_NP}, 2\ns_cbranch_scc1 {fin2}")
    assert not EP[2]
    if "qs" in OPT: Stamps.at(a, 13, True)
    if "mp" in OPT: a("s_setprio 3")
    late = a.label("g1late")
    a("s_waitcnt lgkmcnt(0)"); dq.q = []
    def final_ep(acc, level, need, extra=None):
        checked = False
        for n, o in enumerate(epilogue_ops(acc, level, level == 3)):
            if isinstance(o, tuple) and not checked:
                back, sl = a.label("g1b"), a.label("g1s")
                a(f"s_cmp_ge_u32 s56, {need}\ns_cbranch_scc0 {sl}\n{back}:"); slow.append((sl, back, need, FL_HSF)); checked = True
            a(o[1] if isinstance(o, tuple) else o)
            if extra: extra(n)
    level_test(a, 1)
    a(f"s_cbranch_scc0 {late}")
    for p in range(3): h_pre(a, p)
    nxt = [0]
    def early(tau):
        p = nxt[0]
        if p >= B0 or (SPARSE and tau == 0): return
        if p + 3 < B0: h_pre(a, p + 3)
        h_load(a, p); nxt[0] += 1
    for g in range(96 - ET, 96): step(g, early)
    Stamps.at(a, 8)
    a(f";@seg m3 {HV}")
    level_load(a)
    final_ep(ACC[0], 3, 2)
    for _ in range(8): early(0)
    Stamps.at(a, 9)
    a(f"s_mov_b32 s58, 0\ns_branch {done}")
    a(f"{late}:")
    dq.q = []
    for g in range(96 - ET, 96): step(g)
    level_load(a)
    final_ep(ACC[0], 3, 2)
    if "nomid" not in OPT:
        a("s_waitcnt lgkmcnt(0)\ns_mov_b32 s58, 2"); level_test(a, 1); a("s_cbranch_scc1 k_g2mid")
    a("s_waitcnt vmcnt(0)"); h_post(a)
    a("s_branch k_g2late")
    a(f"{fin2}:")
    if "mp" in OPT: a("s_setprio 3")
    a(f"v_mov_b32 v0, 16\nds_write_b32 v9, v0 offset:{FL_FREE - MISC}\ns_mov_b32 s56, 0\ns_mov_b32 s53, 0")
    a("s_nop 15")
    final_ep(ACC[1], 2, 1)
    a("k_g2late:")
    a("s_mov_b32 s58, 1")
    a("s_waitcnt lgkmcnt(0)")
    h_wait(a, 1)
    a("k_g2mid:")
    h_burst(a, 0, B0)
    a(f"s_branch {done}")
    for (sl, back, n, word) in slow:
        a(f"{sl}:")
        lds_wait_ge(a, 9, word - MISC, n, 2, 40, 41)
        a(f"s_branch {back}")
    a(f"{done}:")

ACC2, AF2 = 52, 20

def slot_sel(a, dst, idx, slots):
    a(f"s_mov_b32 s{dst}, {slots[0]*SLOT}")
    for i in range(1, len(slots)):
        a(f"s_cmp_eq_u32 s{idx}, {i}\ns_cmov_b32 s{dst}, {slots[i]*SLOT}")

def g2_main(a):
    dq = DsQ(a); stubs = []
    TM.start(a); TM(a, "T0")
    a("v_mov_b32 v8, v20"); TABR[0] = 8
    vm = [("h", p) for p in range(B0)]
    for q in range(B0, B0 + 3): h_pre(a, q)
    a(f"s_mov_b32 s55, 0\ns_mov_b32 s57, 0\nds_read_b32 v2, v9 offset:{FL_FULL2 - MISC}")
    a("v_mov_b32 v4, v21\nv_xor_b32 v5, 64, v21\nv_add_u32 v6, 0x10000, v4\nv_add_u32 v7, 0x10000, v5\nv_add_u32 v18, 0x20000, v4\nv_add_u32 v19, 0x20000, v5")
    a("s_waitcnt lgkmcnt(0)\nv_readfirstlane_b32 s52, v2")
    Stamps.at(a, 11)
    a(f";@sp {HM}")
    AR = [4, 6, 18]
    NB = 4
    def reads(p, dl):
        c = p // 2
        if p % 2 == 0 and dl == 0 and (c % CK == 0 or c >= 8): check(a, stubs, 57 if c in H3C else 52, c + 1 if c >= 8 else c + CK, 9, (FL_FULL3 if c in H3C else FL_FULL2) - MISC, 16)
        base = CELLS[("w", c)][0] * SLOT + (p % 2) * 4096
        w, off = base >> 16, base & 0xffff
        b = AF2 + 8 * (p % NB)
        for rd in range(2):
            dq.op(f"ds_read_b64_tr_b16 v[{b+4*dl+2*rd}:{b+4*dl+2*rd+1}], v{AR[w]+dl} offset:{off + 512*rd}", ("w", p))
        if dl == 1 and p % 2 == 1 and 17 + c <= TB_REQ:
            a(f"v_mov_b32 v0, {17 + c}")
            dq.op(f"ds_write_b32 v9, v0 offset:{FL_FREE - MISC}")
    for p in range(PD): reads(p, 0); reads(p, 1)
    nq = [B0]
    sub = Asm()
    slot_sel(sub, 42, 3, TB)
    F = FIN
    sub(f"v_and_b32 v{F+8}, 31, v1\nv_lshrrev_b32 v{F+9}, 5, v1\nv_and_b32 v{F+10}, 7, v1\nv_xor_b32 v{F+9}, v{F+9}, v{F+10}\nv_lshlrev_b32 v{F+9}, 4, v{F+9}\nv_lshl_add_u32 v{F+8}, v{F+8}, 8, v{F+9}\nv_add_u32 v{F+8}, s42, v{F+8}")
    for g in range(1, 4): sub(f"v_xor_b32 v{F+8+g}, {32*g}, v{F+8}")
    sub(f"v_mov_b32 v{F+12}, {MISC}")
    final_setup(sub)
    unpack_res(sub, 12)
    tail = [l.strip() for l in sub.lines]
    for p in range(43):
        b = AF2 + 8 * (p % NB)
        a(f"s_waitcnt vmcnt({len(vm) - 1 - vm.index(('h', p))})")
        if p == 0:
            sk = a.label("ep")
            a(f"s_cmp_lg_u32 s58, 2\ns_cbranch_scc1 {sk}"); h_post(a); a(f"{sk}:")
        if p % 4 == 0: TM(a, f"p{p}")
        dq.wait(("w", p))
        for dl in range(2):
            d = ACC2 + 16 * dl
            if "m16" in OPT:
                for z in range(2):
                    dd = d + 8 * (p & 1) + 4 * z; xx = HB(max(p - z, 0))
                    a(f"v_mfma_f32_16x16x32_bf16 v[{dd}:{dd+3}], v[{b+4*dl}:{b+4*dl+3}], v[{xx}:{xx+3}], " + ("0" if p < 2 else f"v[{dd}:{dd+3}]"))
            elif not ("sk" in OPT and p < 16): a(f"v_mfma_f32_32x32x16_bf16 v[{d}:{d+15}], v[{b+4*dl}:{b+4*dl+3}], v[{HB(p)}:{HB(p)+3}], " + ("0" if p == 0 else f"v[{d}:{d+15}]"))
            if p + PD < 43: reads(p + PD, dl)
            if p >= 32:
                n = 0
                while tail and (n < 3 or tail[0].startswith("s_cmov")):
                    a(tail.pop(0)); n += 1
        if p == 41: dq.op(f"ds_read_b128 v[4:7], v{F+12} offset:{FL_FREE - MISC}", "fr")
        for _ in range(2 if (p < R2 or 16 <= nq[0] < 16 + 2 * CU or (nq[0] >= 32 and "c3" in OPT)) else 1):
            q = nq[0]
            if q == 16:
                sk = a.label("ep")
                a(f"s_cmp_lg_u32 s58, 0\ns_cbranch_scc1 {sk}\ns_waitcnt vmcnt({0 if 'sk' in OPT else 16 - B0})"); h_post(a); a(f"{sk}:")
            if q in (16, 32):
                TM(a, f"w{q}"); dq.wait("lv"); lv_take(a); h_wait(a, q // 16 + 1); TM(a, f"L{q}")
            if q < 43:
                if q + 3 < 43: h_pre(a, q + 3)
                h_load(a, q); vm.append(("h", q))
            if q in (14, 30): dq.op(f"ds_read_b32 v2, v9 offset:{FL_LV - MISC}", "lv")
            if q == 24:
                res_load(a, 12, 11); vm.append("r")
            nq[0] += 1
    for o in tail: a(o)
    TM(a, "loopend")
    dq.wait("fr")
    a("v_min_u32 v4, v4, v5\nv_min3_u32 v4, v4, v6, v7\nv_readfirstlane_b32 s52, v4")
    check(a, stubs, 52, TB_REQ, F + 12, FL_FREE - MISC, 4, minof=4)
    Stamps.at(a, 14)
    for dl in range(2):
        for g in range(4):
            r = ACC2 + 16*dl + 4*g
            a(f"ds_write_b128 v{F+8+g}, v[{r}:{r+3}] offset:{128*dl}")
    TM(a, "written"); TM.park(a)
    a("s_branch k_fin2")
    return stubs

def res_setup(a, t=40):
    a(f"s_lshr_b32 s{t}, s3, 2\ns_lshl_b32 s{t}, s{t}, 20\ns_lshr_b32 s{t+1}, s{S_T}, 3\ns_lshl_b32 s{t+1}, s{t+1}, 18\ns_add_u32 s{t}, s{t}, s{t+1}")
    a(f"s_and_b32 s{t+1}, s{S_T}, 7\ns_lshl_b32 s{t+1}, s{t+1}, 12\ns_add_u32 s{t}, s{t}, s{t+1}\ns_and_b32 s{t+1}, s3, 3\ns_lshl_b32 s{t+1}, s{t+1}, 16\ns_add_u32 s{t}, s{t}, s{t+1}")
    a(f"s_lshl_b32 s{t+1}, s{S_CJ}, 7\ns_add_u32 s{S_RES}, s{t}, s{t+1}")

def res_load(a, dst, voff):
    a(f"v_bfe_u32 v{dst}, v1, 3, 2\nv_and_b32 v{voff}, 7, v1\nv_lshlrev_b32 v{voff}, 4, v{voff}\nv_lshl_add_u32 v{voff}, v{dst}, 10, v{voff}")
    a(f"v_lshrrev_b32 v{dst}, 5, v1\nv_lshl_add_u32 v{voff}, v{dst}, 15, v{voff}")
    a(f"buffer_load_dwordx4 v[{dst}:{dst+3}], v{voff}, {sr(S_X)}, s{S_RES} offen")

def res_issue(a, dst, voff):
    res_setup(a); res_load(a, dst, voff)

FIN, XU = 128, 144
def final_setup(a):
    F = FIN
    a("s_and_b32 s44, s3, 3\ns_lshl_b32 s44, s44, 11\ns_lshr_b32 s45, s3, 2")
    slot_sel(a, 42, 45, TB[:2]); slot_sel(a, 43, 45, TB[2:])
    a(f"v_lshrrev_b32 v{F}, 3, v1\nv_and_b32 v{F+1}, 7, v1\nv_lshlrev_b32 v{F+1}, 1, v{F+1}\nv_xor_b32 v{F+1}, v{F+1}, v{F}\nv_lshlrev_b32 v{F+1}, 4, v{F+1}")
    a(f"v_lshl_add_u32 v{F}, v{F}, 8, v{F+1}\nv_add_u32 v{F}, s44, v{F}\nv_xor_b32 v{F+1}, 16, v{F}")
    a(f"v_add_u32 v{F+4}, s42, v{F}\nv_add_u32 v{F+5}, s42, v{F+1}\nv_add_u32 v{F+6}, s43, v{F}\nv_add_u32 v{F+7}, s43, v{F+1}")
    a(f"s_lshl_b32 s44, s3, 10\ns_add_u32 s44, s44, {TA*SLOT}\nv_lshl_add_u32 v{F}, v1, 4, s44")

def unpack_res(a, xr):
    for p in range(4):
        a(f"v_lshlrev_b32 v{XU+2*p}, 16, v{xr+p}\nv_and_b32 v{XU+2*p+1}, 0xffff0000, v{xr+p}")

def final_combine(a, xr, voff):
    final_setup(a)
    a("s_waitcnt vmcnt(0)")
    unpack_res(a, xr)
    a("k_fin2:")
    if Trace.on: a("s_memtime s[100:101]\ns_waitcnt lgkmcnt(0)\nv_writelane_b32 v100, s100, 60")
    a("s_waitcnt lgkmcnt(0)\ns_barrier")
    if Trace.on: a("s_memtime s[100:101]\ns_waitcnt lgkmcnt(0)\nv_writelane_b32 v100, s100, 61")
    R = 20
    a(f"ds_read_b128 v[{R+8}:{R+11}], v{FIN}")
    for q in range(2):
        a(f"ds_read_b128 v[{R+16+4*q}:{R+16+4*q+3}], v{FIN+4+q}")
        a(f"ds_read_b128 v[{R+24+4*q}:{R+24+4*q+3}], v{FIN+6+q}")
    a("s_waitcnt lgkmcnt(4)")
    for p in range(4): a(f"v_lshlrev_b32 v{R+2*p}, 16, v{R+8+p}\nv_and_b32 v{R+2*p+1}, 0xffff0000, v{R+8+p}")
    for p in range(4): a(f"v_pk_add_f32 v[{R+2*p}:{R+2*p+1}], v[{R+2*p}:{R+2*p+1}], v[{XU+2*p}:{XU+2*p+1}]")
    for p in range(4):
        if p % 2 == 0: a(f"s_waitcnt lgkmcnt({2 if p == 0 else 0})")
        r = R + 2*p
        a(f"v_pk_add_f32 v[{r+16}:{r+17}], v[{r+16}:{r+17}], v[{r+24}:{r+25}]")
        a(f"v_pk_add_f32 v[{r}:{r+1}], v[{r}:{r+1}], v[{r+16}:{r+17}]")
        a(f"v_cvt_pk_bf16_f32 v{xr+p}, v{r}, v{r+1}")
    a(f"buffer_store_dwordx4 v[{xr}:{xr+3}], v{voff}, {sr(S_OUT)}, s{S_RES} offen {'sc0 sc1' if 'owt' in OPT else 'nt' if 'ont' in OPT else ''}")

def loader(a):
    a(f"v_mov_b32 v2, {MISC}")
    a("v_and_b32 v16, 3, v1\nv_lshl_add_u32 v16, v16, 2, v2")
    a("v_lshrrev_b32 v8, 2, v1\nv_and_b32 v9, 3, v1\nv_lshlrev_b32 v9, 4, v9\nv_xor_b32 v10, 2, v8")
    a("v_mul_u32_u24 v8, 5504, v8\nv_mul_u32_u24 v10, 5504, v10\nv_xor_b32 v11, 32, v9")
    a("v_add_u32 v4, v8, v9\nv_add_u32 v5, v8, v11\nv_add_u32 v6, v10, v9\nv_add_u32 v7, v10, v11")
    a("v_lshrrev_b32 v8, 3, v1\nv_and_b32 v9, 7, v1\nv_bfe_u32 v10, v1, 4, 1\nv_lshlrev_b32 v10, 2, v10\nv_xor_b32 v10, v10, v9")
    a("v_lshlrev_b32 v10, 4, v10\nv_lshl_add_u32 v17, v8, 10, v10")
    for q in range(4):
        a(f"s_add_u32 s40, s{S_ROT}, {q}\ns_and_b32 s40, s40, 3\ns_mul_i32 s{44+q}, s40, {128*2752}")
    a(f"s_and_b32 s40, s{S_P}, 1\ns_mul_i32 s48, s40, 2752\ns_sub_u32 s49, 2752, s48")
    a(f"s_lshl_b32 s40, s{S_P}, 6\ns_add_u32 s48, s48, s40\ns_add_u32 s49, s49, s40")
    a(f"s_lshl_b32 s50, s{S_CJ}, 7\ns_mov_b32 s52, 0")
    pair_table(a, 18, 19, 20)
    a("v_lshlrev_b32 v18, 15, v18\nv_add_u32 v18, s50, v18\nv_lshlrev_b32 v19, 4, v1")
    Stamps.at(a, 7)
    two, w2l = a.label("ld2"), a.label("ldw2")
    if "noload" in OPT:
        a("s_waitcnt vmcnt(0)\nv_mov_b32 v3, 1"); wg_signal(a, FL_Z_CNT, 2, 0, 2, 3, 12)
        a(f"v_mov_b32 v3, 99\nds_write_b32 v16, v3 offset:{FL_FULL - MISC}\nds_write_b32 v16, v3 offset:{FL_FULL2 - MISC}\ns_branch k_ldend")
    a(f"s_cmp_eq_u32 s{S_NP}, 2\ns_cbranch_scc1 {two}")
    class Pipe:
        def __init__(s): s.items = []; s.seen = 0; s.depth = DEPTH
        def publish(s, it):
            if it[0] is None: return
            a(f"v_mov_b32 v3, {it[1]}\ns_mov_b64 exec, 15\nds_max_u32 v16, v3 offset:{it[0] - MISC}\ns_mov_b64 exec, -1")
        def probe(s, req, ok):
            a(f"s_call_b64 s[54:55], k_ldprobe\ns_cmp_ge_u32 s52, {req}\ns_cbranch_scc1 {ok}")
        def need(s, req):
            if req <= s.seen: return
            ok = a.label("ldok")
            a(f"s_cmp_ge_u32 s52, {req}\ns_cbranch_scc1 {ok}")
            for i, it in enumerate(s.items):
                if it[0] is None: continue
                s.probe(req, ok)
                a(f"s_waitcnt vmcnt({sum(x[2] for x in s.items[i+1:])})"); s.publish(it)
            lds_wait_ge(a, 2, FL_FREE - MISC, req, 12, 52, 41, minof=4, sleep=LSL)
            a(f"{ok}:")
            s.seen = req
        def done(s, word, val, cnt):
            s.items.append((word, val, cnt))
            while len(s.items) > 1 and sum(x[2] for x in s.items) > s.depth:
                it = s.items.pop(0)
                a(f"s_waitcnt vmcnt({sum(x[2] for x in s.items)})"); s.publish(it)
        def flush(s, keep=0):
            while len(s.items) > keep:
                it = s.items.pop(0)
                a(f"s_waitcnt vmcnt({sum(x[2] for x in s.items)})"); s.publish(it)
    def variant(np_):
        pp = Pipe()
        for grp in range(8):
            st, q = grp // 4, grp % 4
            if st == 0: seq = [[("A", "X", 0), ("C", "X", 64)], [("A", "Y", 0)]]
            else:       seq = [[("C", "Y", 64), ("B", "Y", 64 * (np_ - 1))], [("B", "X", 64 * (np_ - 1))]]
            if np_ == 2 or "noC" in OPT: seq = [[c for c in s if c[0] != "C"] for s in seq]
            if "halfw" in OPT: seq = [seq[0], []]
            tot = 0
            for si, s in enumerate(seq):
                if not s:
                    pp.done(FL_FULL, grp + 1, 0); continue
                pp.need(max([CELLS[(c[0], c[1], q)][1] for c in s] + [LGATE]))
                if grp == 4 and si == 0: lds_wait_ge(a, 2, FL_A_DONE - MISC, 2, 12, 40, 41)
                cl = s[0][1]; ci = 0 if cl == "X" else 1; cnt = 0
                for g in range(4):
                    for mat in range(2):
                        for n, (ps, _, off) in enumerate(s):
                            dst = CELLS[(ps, cl, q)][0] * SLOT + mat * 4096 + g * 1024
                            neg = dst - off < 0
                            a(f"s_mov_b32 m0, {dst if neg else dst - off}")
                            if mat == 0 and n == 0:
                                a(f"s_add_u32 s42, s{44+q}, s{48+ci}" if g == 0 else f"s_add_u32 s42, s42, {32*2752}")
                            if neg:
                                a(f"s_add_u32 s43, s42, {off}\nbuffer_load_dwordx4 v{4+2*ci+mat}, {sr(S_W1 + 4*mat)}, s43 offen lds")
                            else:
                                a(f"buffer_load_dwordx4 v{4+2*ci+mat}, {sr(S_W1 + 4*mat)}, s42 offen offset:{off} lds")
                            cnt += 1
                tot += cnt
                pp.done(FL_FULL if si == 1 else None, grp + 1, cnt)
            if grp in (1, 3, 5, 7): Stamps.at(a, 8 + grp // 2)
            if grp == 1: a(f"s_setprio {LPRIO}")
        while pp.items and pp.items[0][1] < 8:
            pp.flush(keep=len(pp.items) - 1)
        return pp
    p3 = variant(3)
    a(f"s_branch {w2l}")
    a("k_ldprobe:")
    a(f"ds_read_b128 v[12:15], v2 offset:{FL_FREE - MISC}\ns_waitcnt lgkmcnt(0)")
    a("v_min_u32 v12, v12, v13\nv_min3_u32 v12, v12, v14, v15\nv_readfirstlane_b32 s52, v12\ns_nop 0\ns_setpc_b64 s[54:55]")
    a(f"{two}:")
    p2 = variant(2)
    a(f";@seg ld2 {HV}")
    a(f"{w2l}:")
    pp = Pipe(); pp.items = [(FL_FULL, 8, 24)]; pp.seen = min(p3.seen, p2.seen); pp.depth = DEPTH2
    TL.start(a)
    a("v_lshlrev_b32 v19, 4, v1")
    staged = list(range(22 - NST, 22))
    order = [("d", c) for c in range(22) if c not in staged and c not in H3C]
    for n, c in enumerate(staged): order.insert(1 + 2 * n, ("s", c))
    order += [("w", c) for c in staged]
    for kind, c in order:
        slot, req = CELLS[("w", c)]
        ps_ = list(range(2 * c, min(2 * c + 2, 43)))
        base = 32 + 32 * (c - (22 - NST))
        if kind != "w":
            for p in ps_: a(f"v_readlane_b32 s{44 + p % 2}, v18, {p}")
            a("s_nop 1")
        if kind != "s":
            pp.need(req)
            if c % 2 == 0: TL(a, f"c{c}")
        if kind == "w":
            a(f"v_add_u32 v20, {slot*SLOT}, v19")
            for i in range(4 * len(ps_)): a(f"ds_write_b128 v20, v[{base+4*i}:{base+4*i+3}] offset:{1024*i}")
            pp.flush(); pp.publish((FL_FULL2, c + 1))
            continue
        for p in ps_:
            for g in range(4):
                if kind == "d": a(f"s_mov_b32 m0, {slot*SLOT + (p % 2)*4096 + g*1024}")
                if g: a(f"s_add_u32 s{44 + p % 2}, s{44 + p % 2}, 8192")
                r = base + 16 * (p % 2) + 4 * g
                a(f"buffer_load_dwordx4 v17, {sr(S_W2)}, s{44 + p % 2} offen lds" if kind == "d" else
                  f"buffer_load_dwordx4 v[{r}:{r+3}], v17, {sr(S_W2)}, s{44 + p % 2} offen")
        pp.done(FL_FULL2 if kind == "d" else None, c + 1, 4 * len(ps_))
    TL(a, "issued")
    pp.flush()
    TL(a, "landed"); TL.park(a)

GF, ACCE, BE = 128, 64, 32

def g_first(a, n, dt16, t0):
    st, s7, ar = t0, t0 + 1, t0 + 2
    a(f"v_and_b32 v{st}, 15, v1\ns_lshr_b32 s40, s2, 5\ns_lshl_b32 s40, s40, 6\ns_add_u32 s40, s40, {dt16}\nv_add_u32 v{st}, s40, v{st}")
    a(f"v_cvt_f32_u32 v{st}, v{st}\nv_mul_f32 v{st}, {f32(1/512)}, v{st}\nv_mul_f32 v{s7}, {f32(7.0)}, v{st}")
    a(f"v_lshrrev_b32 v{ar}, 4, v1\nv_lshl_add_u32 v{ar}, v{ar}, 1, 1\nv_cvt_f32_u32 v{ar}, v{ar}\nv_mul_f32 v{ar}, v{ar}, v{st}")
    for i in range(32):
        if i: a(f"v_add_f32 v{ar}, v{ar}, v{st if i & 1 else s7}")
        t = t0 + 4 + 2 * (i & 1); p = t0 + 4 + 2 * ((i + 1) & 1)
        a(f"v_cos_f32 v{t}, v{ar}\nv_sin_f32 v{t+1}, v{ar}")
        if i: a(f"v_cvt_pk_bf16_f32 v{GF+64*n+i-1}, v{p}, -v{p+1}")
    a(f"v_cvt_pk_bf16_f32 v{GF+64*n+31}, v{t0+6}, -v{t0+7}")

def g_second(a, nt, t=4):
    a(f"v_and_b32 v{t}, 1, v1\nv_lshlrev_b32 v{t}, 4, v{t}\nv_bfe_u32 v{t+1}, v1, 1, 1\nv_lshlrev_b32 v{t+1}, 15, v{t+1}\nv_add_u32 v{t+2}, 1, v1\nv_bfe_u32 v{t+2}, v{t+2}, 1, 1\nv_lshl_or_b32 v{t+1}, v{t+2}, 31, v{t+1}")
    for n in range(nt):
        for i in range(32):
            r = GF + 64*n + i
            a(f"v_alignbit_b32 v{r+32}, v{r}, v{r}, v{t}")
        for i in range(32):
            r = GF + 64*n + i
            a(f"v_xor_b32 v{r+32}, v{t+1}, v{r+32}")

def e_load(a, s_pi, meanwhile):
    a(f"v_mov_b32 v2, {MISC}")
    a("v_lshrrev_b32 v8, 4, v1\nv_bfe_u32 v9, v1, 2, 2\nv_xor_b32 v9, v9, v8\nv_lshlrev_b32 v5, 13, v8\nv_lshrrev_b32 v10, 1, v9\nv_lshl_add_u32 v5, v10, 12, v5")
    a("v_and_b32 v10, 1, v9\nv_lshl_add_u32 v5, v10, 6, v5\nv_and_b32 v10, 3, v1\nv_lshl_add_u32 v5, v10, 4, v5")
    a(f"s_lshl_b32 s45, s{S_T}, 7\ns_lshl_b32 s40, s{s_pi}, 18\ns_add_u32 s45, s45, s40\ns_add_u32 s45, s45, {WS_E}")
    a(f"s_lshl_b32 s40, s{s_pi}, 2\nv_add_u32 v6, s40, v2")
    for i in range(4):
        (s0, r0), (s1, r1) = CELLS[("e", 2*i)], CELLS[("e", 2*i + 1)]
        lds_wait_ge(a, 2, FL_FREE - MISC, max(r0, r1), 16, 40, 41, minof=4, sleep=1)
        TH(a, f"ld{i}")
        a(f"s_mul_i32 s46, s{s_pi}, {(s1 - s0) * SLOT}\ns_add_u32 s46, s46, {s0 * SLOT}")
        for g in range(8):
            a(f"s_add_u32 m0, s46, {g*1024}")
            a(f"s_add_u32 s42, s45, {(64*i + 4*g)*8192}")
            a(f"buffer_load_dwordx4 v5, {sr(S_WS)}, s42 offen {RD} lds")
    meanwhile()
    for i in range(4):
        a(f"s_waitcnt vmcnt({8*(3-i)})\nv_mov_b32 v3, {i+1}\nds_write_b32 v6, v3 offset:{FL_FULLE - MISC}")

def e_part(a, nt, s_dt16, TT):
    dq = DsQ(a); stubs = []
    a(f"v_mov_b32 v2, {MISC}")
    a("v_lshrrev_b32 v8, 3, v1\nv_lshlrev_b32 v9, 8, v8\nv_and_b32 v8, 3, v8\nv_lshl_add_u32 v9, v8, 6, v9")
    a("v_and_b32 v8, 3, v1\nv_lshl_add_u32 v9, v8, 4, v9\nv_bfe_u32 v8, v1, 2, 1\nv_lshl_add_u32 v4, v8, 3, v9")
    for nu in range(1, 4): a(f"v_xor_b32 v{4+nu}, {64*nu}, v4")
    a("s_mov_b32 s52, 0\ns_mov_b32 s53, 0\ns_waitcnt lgkmcnt(0)")
    AH = 7
    def reads(u):
        js, nu = u // 4, u % 4
        c = js // 2
        if u % 8 == 0: check(a, stubs, 52 + (c & 1), c // 2 + 1, 2, FL_FULLE - MISC + 4 * (c & 1), 3)
        if js % 2 == 0: a(f"v_add_u32 v{16+nu}, {CELLS[('e', c)][0]*SLOT}, v{4+nu}")
        b = BE + 4 * (u % 8)
        for rd in range(2):
            dq.op(f"ds_read_b64_tr_b16 v[{b+2*rd}:{b+2*rd+1}], v{16+nu} offset:{(js % 2)*4096 + 2048*rd}", ("e", u))
    a(f"s_setprio {EPRIO}")
    for u in range(AH): reads(u)
    for u in range(64):
        js, nu = u // 4, u % 4
        b = BE + 4 * (u % 8)
        dq.wait(("e", u))
        if u % 8 == 0: TT(a, f"u{u}")
        for n in range(nt):
            d = ACCE + 16*n + 4*nu; g = GF + 64*n + 4*js
            a(f"v_mfma_f32_16x16x32_bf16 v[{d}:{d+3}], v[{g}:{g+3}], v[{b}:{b+3}], " + ("0" if js == 0 else f"v[{d}:{d+3}]"))
        if u + AH < 64: reads(u + AH)
    a(f"s_lshr_b32 s40, s{s_dt16}, 2\nv_lshrrev_b32 v17, 4, v1\nv_add_u32 v17, s40, v17\nv_and_b32 v18, 7, v1\nv_xor_b32 v17, v17, v18\nv_lshlrev_b32 v17, 4, v17")
    a(f"v_and_b32 v16, 15, v1\nv_lshl_add_u32 v16, v16, 8, v17\nv_xor_b32 v17, 64, v16")
    a(f"v_add_u32 v18, {TA[1]*SLOT}, v16\nv_add_u32 v19, {TA[1]*SLOT}, v17\nv_add_u32 v16, {TA[0]*SLOT}, v16\nv_add_u32 v17, {TA[0]*SLOT}, v17")
    TT(a, "edone")
    lds_wait_ge(a, 2, FL_FREE - MISC, TA_REQ, 4, 40, 41, minof=4, sleep=1)
    for n in range(nt):
        for nu in range(4):
            d = ACCE + 16*n + 4*nu
            a(f"ds_write_b128 v{16+n+2*(nu >> 1)}, v[{d}:{d+3}] offset:{(nu & 1)*4096}")
    TT(a, "written"); TT.park(a)
    return stubs

def h_relay(a, level, val):
    lds_wait_ge(a, 2, FL_HS - MISC, level, 16, 40, 41, minof=4, sleep=1 if level < 3 or "hs0" not in OPT else 0)
    T3(a, f"hs{level}")
    for i in range(8): a(f"ds_read_b128 v[{32+4*i}:{35+4*i}], v24 offset:{1024*i}")
    a(f"v_mov_b32 v16, {level}\nds_write_b32 v25, v16 offset:{FL_HSF - MISC}")
    for i in range(8):
        a(f"s_waitcnt lgkmcnt({7 - i})")
        a(f"buffer_store_dwordx4 v[{32+4*i}:{35+4*i}], v26, {sr(S_WS)}, s{44 + i // 2} offen offset:{1024*(i & 1)} {WT}")
    T3(a, "st")
    if "va" in OPT:
        a(f"v_mov_b32 v16, {val}\ns_waitcnt vmcnt(0)\ns_mov_b64 exec, 0xffff")
        a(f"buffer_atomic_add v16, v27, {sr(S_WS)}, s48 offen sc1\ns_mov_b64 exec, -1")
    else:
        a(f"s_mov_b32 s56, {val}\ns_waitcnt vmcnt(0)")
        for i in range(16): a(f"s_atomic_add s56, s[58:59], {(i & 7) * 8192 + (i >> 3) * 2048}")
    T3(a, "ack")
    T3(a, "atom"); T3.park(a)

def h_relay_setup(a):
    a(f"v_mov_b32 v2, {MISC}\nv_lshlrev_b32 v26, 4, v1\nv_add_u32 v24, {HST}, v26\nv_and_b32 v25, 3, v1\nv_lshl_add_u32 v25, v25, 2, v2")
    a(f"s_lshl_b32 s49, s{S_I}, 1\ns_mul_i32 s44, s49, 86\ns_lshl1_add_u32 s44, s{S_P}, s44\ns_lshl_b32 s44, s44, 10\ns_add_u32 s44, s44, {WS_H}")
    a(f"s_add_u32 s45, s44, {86*1024}\ns_add_u32 s46, s44, {32*86*1024}\ns_add_u32 s47, s46, {86*1024}")
    mbox_off(a, 48, 49)
    a(f"s_add_u32 s58, s{S_WS}, s48\ns_addc_u32 s59, s{S_WS+1}, 0")
    a("v_and_b32 v27, 7, v1\nv_lshlrev_b32 v27, 13, v27\nv_bfe_u32 v16, v1, 3, 1\nv_lshl_add_u32 v27, v16, 11, v27\nv_bfe_u32 v16, v1, 4, 1\nv_lshl_add_u32 v27, v16, 2, v27")

def h3_refill_setup(a):
    a("v_lshrrev_b32 v8, 3, v1\nv_and_b32 v9, 7, v1\nv_bfe_u32 v10, v1, 4, 1\nv_lshlrev_b32 v10, 2, v10\nv_xor_b32 v10, v10, v9")
    a("v_lshlrev_b32 v10, 4, v10\nv_lshl_add_u32 v28, v8, 10, v10")
    pair_table(a, 29, 8, 9)
    a(f"s_lshl_b32 s40, s{S_CJ}, 7\nv_lshlrev_b32 v29, 15, v29\nv_add_u32 v29, s40, v29")

def h3_refill(a):
    prev = None
    for c in H3C:
        slot, req = CELLS[("w", c)]
        ps_ = list(range(2 * c, min(2 * c + 2, 43)))
        for p in ps_: a(f"v_readlane_b32 s{44 + p % 2}, v29, {p}")
        a("s_nop 1")
        if prev is not None:
            ok = a.label("rf")
            a(f"s_cmp_ge_u32 s52, {req}\ns_cbranch_scc1 {ok}\ns_waitcnt vmcnt(0)\nv_mov_b32 v16, {prev + 1}\nds_write_b32 v25, v16 offset:{FL_FULL3 - MISC}")
            lds_wait_ge(a, 2, FL_FREE - MISC, req, 16, 52, 41, minof=4, sleep=LSL)
            a(f"{ok}:")
        else:
            lds_wait_ge(a, 2, FL_FREE - MISC, req, 16, 52, 41, minof=4, sleep=LSL)
        for p in ps_:
            for g in range(4):
                a(f"s_mov_b32 m0, {slot*SLOT + (p % 2)*4096 + g*1024}")
                if g: a(f"s_add_u32 s{44 + p % 2}, s{44 + p % 2}, 8192")
                a(f"buffer_load_dwordx4 v28, {sr(S_W2)}, s{44 + p % 2} offen lds")
        if prev is not None:
            a(f"s_waitcnt vmcnt({4 * len(ps_)})\nv_mov_b32 v16, {prev + 1}\nds_write_b32 v25, v16 offset:{FL_FULL3 - MISC}")
        prev = c
    if prev is not None:
        a(f"s_waitcnt vmcnt(0)\nv_mov_b32 v16, {prev + 1}\nds_write_b32 v25, v16 offset:{FL_FULL3 - MISC}")

def scalar_prefetch(a):
    a(f"s_lshl3_add_u32 s40, s2, s3\ns_and_b32 s41, s40, 1023\ns_mulk_i32 s41, {11*128}\ns_min_u32 s41, s41, {512*2752 - 11*128}")
    a(f"s_cmp_lt_u32 s40, 1024\ns_cselect_b64 s[42:43], s[{S_W1}:{S_W1+1}], s[{S_W3}:{S_W3+1}]\ns_add_u32 s42, s42, s41\ns_addc_u32 s43, s43, 0")
    for i in range(11): a(f"s_load_dword s82, s[42:43], {128*i}")

def w2_touch(a):
    a(f"v_mov_b32 v2, {MISC}")
    lds_wait_ge(a, 2, FL_FULL - MISC, W2T, 16, 40, 41, sleep=4)
    a(f"v_lshlrev_b32 v4, 7, v1\ns_lshr_b32 s42, s2, 3\ns_mul_i32 s42, s42, {344*128}")
    for i in range(6):
        if i == 5: a("s_mov_b64 exec, 0xffffff")
        a(f"buffer_load_dword v10, v4, {sr(S_W2)}, s42 offen\ns_add_u32 s42, s42, 8192")
    a("s_mov_b64 exec, -1")

W2T = 8
L3P = 31
gi = lambda k, d: int([o[len(k):] for o in OPT if o.startswith(k) and o[len(k):].isdigit()][0]) if any(o.startswith(k) and o[len(k):].isdigit() for o in OPT) else d
B0 = gi("b", 8)
R2 = gi("rr", 0)
ET = gi("et", 4)
LL2 = gi("ll", 1)
CK = gi("ck", 8)
CU = gi("cu", 0)
NCOPY = gi("nc", 256)
SPARSE = ET == B0
assert 2 * ET == B0 or SPARSE
HSJ = gi("hj", 10)
L2P = int([o[2:] for o in OPT if o.startswith("l2")][0]) if any(o.startswith("l2") for o in OPT) else 4
LR = 2 if "r2" in OPT else 1
PSTP = 13
L3TRY = (max(33 - B0 - R2, 18), 26) if "tr3" not in OPT else (21, 24, 27)
LA = 5 if "tr3" not in OPT else 3
GAPB = int([o[2:] for o in OPT if o.startswith("gb")][0]) if any(o.startswith("gb") for o in OPT) else 40
EPRIO = 2 if "ep2" in OPT else 0
DEPTH = gi("dp", 24)
DEPTH2 = int([o[2:] for o in OPT if o.startswith("d2")][0]) if any(o.startswith("d2") for o in OPT) else 16
NST = int([o[2:] for o in OPT if o.startswith("st")and o[2:].isdigit()][0]) if any(o.startswith("st") and o[2:].isdigit() for o in OPT) else 0
LSL = gi("ls", 2)
HV, HM = 256, 128
G1PRIO = gi("gp", 0)
KPRIO = 0 if "k0" in OPT else 3
LPRIO = 0 if "lp0" in OPT else 3
ZG = 3 if "zg" in OPT else 0
WG = 3 if ("wg" in OPT or "zg" in OPT) else 0
LGATE = gi("lg", 2)
XS = False
SF = WT

a = Asm()
a.begin_kernel(NAME)
a("s_cmp_ge_u32 s2, 0x100\ns_cbranch_scc1 k_end")
Stamps.at(a, 0)
if "dbgspan" in OPT or "fix" in OPT: a("s_memrealtime s[92:93]")
if Trace.on: a("s_memtime s[92:93]\ns_waitcnt lgkmcnt(0)")
a(f"s_load_dwordx2 s[{S_X}:{S_X+1}], s[0:1], 0\ns_load_dwordx2 s[{S_WR}:{S_WR+1}], s[0:1], 8\ns_load_dwordx2 s[{S_WI}:{S_WI+1}], s[0:1], 16")
a(f"s_load_dwordx8 s[72:79], s[0:1], 32\ns_load_dwordx2 s[{S_WS}:{S_WS+1}], s[0:1], 72\ns_load_dwordx2 s[{S_DBG}:{S_DBG+1}], s[0:1], 64")
code_prefetch(a, NAME, "k_end", 65536, 8, 255)
a("v_lshrrev_b32 v2, 6, v0\nv_and_b32 v1, 63, v0\nv_readfirstlane_b32 s3, v2")
a(f"s_mov_b32 s{S_X+2}, 0x200000\ns_mov_b32 s{S_X+3}, 0x20000")
ids_early(a)
a("s_cmp_ge_u32 s3, 4\ns_cbranch_scc1 k_helper")
x_setup(a)
x_setup_late(a)
TCH = bool(OPT & {"t1", "t2", "t3"})
if TCH: touch_setup(a)
a("s_waitcnt lgkmcnt(0)\ns_barrier")
TE = 7 if "te7" in OPT else 3
def first_touch(e):
    if e == 0 and TCH: a("s_bitcmp1_b32 s3, 0\ns_cselect_b64 s[12:13], s[74:75], s[72:73]")
    if e == TE and ("t1" in OPT or "t2" in OPT): touch_issue(a, 0)
    if e == TE and "t2" in OPT: touch_issue(a, 128)
x_issue(a, 0, first_touch)
a("s_branch k_main")
a("k_helper:")
a(f"s_setprio 3\ns_sub_u32 s{S_HW}, s3, 4")
a(f"v_lshlrev_b32 v4, 2, v1\nv_add_u32 v4, {MISC}, v4\nv_mov_b32 v5, 0\nds_write_b32 v4, v5")
a(f"s_mov_b32 s{S_WR+2}, {2048*514}\ns_mov_b32 s{S_WR+3}, s{S_X+3}\ns_mov_b64 s[{S_WI+2}:{S_WI+3}], s[{S_WR+2}:{S_WR+3}]")
row_setup(a, S_HW, 18*SLOT)
w_setup(a)
a("s_waitcnt lgkmcnt(0)\ns_barrier")
row_issue(a)
WO = gi("wo", 3)
a(f"s_cmp_lg_u32 s{S_HW}, {WO}\ns_cbranch_scc1 k_now")
w_issue(a, 17*SLOT, False)
a("k_now:")
ids_late(a)
Stamps.at(a, 1)
a(f"s_load_dword s{S_TAG}, s[80:81], 0\ns_sub_u32 s6, s{S_HW}, 1")
def wait_rows():
    a(f"s_waitcnt vmcnt(8)\ns_cmp_eq_u32 s{S_HW}, {WO}\ns_cbranch_scc1 k_rows\ns_waitcnt vmcnt(0)\nk_rows:")
row_compute(a, S_HW, wait_rows)
make_tag(a)
a(f"s_cmp_eq_u32 s{S_HW}, 0\ns_cbranch_scc1 k_loader")
a(f"s_cmp_lg_u32 s{S_HW}, 3\ns_cbranch_scc1 k_h12")
z_store_all(a, 18*SLOT, SF)
a(f"s_lshl_b32 s42, s2, 8\ns_add_u32 s42, s42, {MBOX + 128}\nv_mov_b32 v14, 0\nv_mov_b32 v15, 0\ns_mov_b64 exec, 1")
a(f"buffer_store_dwordx2 v[14:15], off, {sr(S_WS)}, s42 {WT}")
a(f"s_cmp_ge_u32 s2, 8\ns_cbranch_scc1 k_nocz\ns_lshl_b32 s42, s2, 7\ns_add_u32 s42, s42, {GCNT}\nbuffer_store_dword v14, off, {sr(S_WS)}, s42 {WT}\nk_nocz:\ns_mov_b64 exec, -1")
if WO == 3: w_store(a, 17*SLOT, SF, wait="s_waitcnt vmcnt(9)")
a("s_waitcnt vmcnt(0)")
wg_signal(a, FL_Z_CNT, 2 if WO == 1 else 1, 0, 12, 13, 14)
Stamps.at(a, 7)
a("s_setprio 0\ns_branch k_h3")

a("k_main:")
ids_late(a)
if "sp" in OPT: scalar_prefetch(a)
g1_main(a)
st = g2_main(a)
emit_stubs(a, st)

a(";@endseg")
a("k_h12:")
a(f"s_setprio {KPRIO}")
if "nocolE" in OPT:
    res_issue(a, 12, 11); a("s_branch k_fin")
Stamps.at(a, 7)
if WO == 1:
    a(f"s_cmp_lg_u32 s{S_HW}, 1\ns_cbranch_scc1 k_h2a")
    w_store(a, 17*SLOT, SF)
    a("k_h2a:")
    if "wf" not in OPT: col_mats(a, 6)
    a(f"s_cmp_lg_u32 s{S_HW}, 1\ns_cbranch_scc1 k_h2b\ns_waitcnt vmcnt(0)")
    wg_signal(a, FL_Z_CNT, 2, 0, 12, 13, 14)
    Stamps.at(a, 2)
    a("k_h2b:")
    if "wf" in OPT: col_mats(a, 6)
else:
    col_mats(a, 6)
col_twiddles(a, 6, S_COL, 2)
col_twiddles(a, 6, S_COL, 1)
col_addrs(a)
col_offsets(a, 6, S_COL)
Stamps.at(a, 8)
a(f"s_setprio {CPRIO}")
wait_go(a, 0)
Stamps.at(a, 9)
if "noz" not in OPT: col_z_loads(a, RD)
col_w_loads(a, RD)
if "nocol" not in OPT: (col_compute3(a, SF, lambda: None, 7) if "cc3" in OPT else col_compute4(a, SF))
Stamps.at(a, 11)
a(f"v_mov_b32 v2, {MISC}\nv_mov_b32 v3, 1")
a("s_waitcnt vmcnt(0)")
Stamps.at(a, 12)
wg_signal(a, FL_E_CNT, 2, 1, 2, 3, 14)
a(f"s_setprio {G1PRIO}")
irow_consts(a, 6)
res_issue(a, 12, 11)
a("v_and_b32 v4, 15, v1\nv_lshrrev_b32 v5, 4, v1\nv_lshl_add_u32 v6, v5, 6, v4\nv_lshlrev_b32 v6, 13, v6")
a(f"s_lshl_b32 s54, s6, 12\ns_lshl_b32 s40, s{S_T}, 7\ns_add_u32 s54, s54, s40\ns_lshl4_add_u32 s54, s{S_CJ}, s54\ns_add_u32 s54, s54, {WS_E}")
a("v_bfe_u32 v7, v1, 2, 2\nv_lshlrev_b32 v7, 8, v7\nv_lshl_add_u32 v7, v5, 6, v7\nv_and_b32 v8, 3, v1\nv_lshl_add_u32 v7, v8, 4, v7")
a(f"s_lshl3_add_u32 s55, s{S_T}, s{S_CJ}\ns_lshl1_add_u32 s55, s55, s6\ns_lshl_b32 s55, s55, 12\ns_add_u32 s55, s55, {WS_Y}")
a(f"v_lshlrev_b32 v8, 4, v1\ns_lshl_b32 s40, s6, 11\ns_add_u32 s40, s40, {XCH}\nv_add_u32 v8, s40, v8\nv_subrev_u32 v9, {XCH}, v8\nv_xor_b32 v9, 0x800, v9\nv_add_u32 v9, {XCH}, v9")
a(f"s_and_b32 s40, s2, 31\ns_lshl_b32 s40, s40, 8\ns_add_u32 s40, s40, {MBOX + 128}\ns_add_u32 s58, s{S_WS}, s40\ns_addc_u32 s59, s{S_WS+1}, 0")
a("s_mul_i32 s57, s6, 0x80008000")
Stamps.at(a, 13)
a(f"s_setprio {EPRIO}")
TH.start(a); TH(a, "waitE")
wait_go(a, 1)
TH(a, "goE")
Stamps.at(a, 14)
if gi("eg", 0): lds_wait_ge(a, 2, FL_FREE - MISC, gi("eg", 0), 120, 40, 41, minof=4, sleep=1)
irow_loads(a, 6, 54, RD)
irow_compute(a)
TH(a, "calc")
S0 = 68
for e in range(4):
    for p in range(2): a(f"v_cvt_pk_bf16_f32 v{84+2*e+p}, v{IY+8*e+4+2*p}, v{IY+8*e+5+2*p}")
a("ds_write_b128 v8, v[84:87]\nds_write_b128 v8, v[88:91] offset:1024")
a(f"s_mov_b64 exec, 1\nds_add_u32 v2, v3 offset:{FL_YX - MISC}\ns_mov_b64 exec, -1")
lds_wait_ge(a, 2, FL_YX - MISC, 2, 10, 40, 41)
a("ds_read_b128 v[84:87], v9\nds_read_b128 v[88:91], v9 offset:1024\ns_waitcnt lgkmcnt(0)")
for i in range(8): a(f"v_lshlrev_b32 v{S0+2*i}, 16, v{84+i}\nv_and_b32 v{S0+2*i+1}, 0xffff0000, v{84+i}")
for e in range(4):
    for r in range(4):
        k = IY + 8*e + r
        a(f"v_sub_f32 v{k+4}, v{k}, v{S0+4*e+r}\nv_add_f32 v{k}, v{k}, v{S0+4*e+r}")
for e in range(4):
    for p in range(4): a(f"v_cvt_pk_bf16_f32 v{84+4*e+p}, v{IY+8*e+2*p}, v{IY+8*e+2*p+1}")
    for p in (2, 3): a(f"v_xor_b32 v{84+4*e+p}, s57, v{84+4*e+p}")
for e in range(4):
    o = 84 + 4*e
    a(f"v_permlane16_swap_b32 v{o}, v{o+2}\nv_permlane16_swap_b32 v{o+1}, v{o+3}")
    a(f"buffer_store_dwordx4 v[{o}:{o+3}], v7, {sr(S_WS)}, s55 offen offset:{1024*e} {WT}")
a("v_lshrrev_b32 v4, 5, v1\nv_lshlrev_b32 v4, 13, v4\nv_bfe_u32 v5, v1, 3, 2\nv_lshl_add_u32 v4, v5, 10, v4\nv_and_b32 v5, 1, v1\nv_lshl_add_u32 v4, v5, 7, v4\nv_bfe_u32 v5, v1, 1, 2\nv_lshl_add_u32 v4, v5, 4, v4")
a(f"s_lshl_b32 s55, s{S_T}, 16\ns_lshr_b32 s40, s{S_CJ}, 2\ns_lshl_b32 s40, s40, 12\ns_add_u32 s55, s55, s40\ns_and_b32 s40, s{S_CJ}, 3\ns_lshl_b32 s40, s40, 8\ns_add_u32 s55, s55, s40")
a(f"s_lshl_b32 s40, s6, 6\ns_add_u32 s55, s55, s40\ns_add_u32 s55, s55, {WS_Y}\ns_lshl_b32 s54, s6, 12\ns_add_u32 s54, s54, {TA*SLOT}")
a(f"s_waitcnt vmcnt(0)\ns_mov_b64 exec, 1\nds_add_rtn_u32 v10, v2, v3 offset:{FL_YC - MISC}\ns_mov_b64 exec, -1\ns_waitcnt lgkmcnt(0)\nv_readfirstlane_b32 s40, v10")
a("s_cmp_eq_u32 s40, 0\ns_cbranch_scc1 k_ynp\ns_mov_b32 s56, 0x1000000")
for i in range(8): a(f"s_atomic_add s56, s[58:59], {8192*i}")
a("k_ynp:")
TH(a, "posted")
lds_wait_ge(a, 2, FL_FREE - MISC, TA_REQ, 16, 40, 41, minof=4, sleep=1)
a(f"s_mov_b32 s41, {GSPIN}\nk_yp:\ns_load_dword s53, s[{S_MB}:{S_MB+1}], 128 glc\ns_waitcnt lgkmcnt(0)\ns_bitcmp1_b32 s53, 27\n{'s_branch' if 'noY' in OPT else 's_cbranch_scc1'} k_yd\ns_sleep 1\ns_sub_u32 s41, s41, 1\ns_cbranch_scc0 k_yp\nk_yd:")
TH(a, "yrdy")
for g in range(4):
    a(f"s_add_u32 m0, s54, {1024*g}")
    if g: a("s_add_u32 s55, s55, 0x4000")
    a(f"buffer_load_dwordx4 v4, {sr(S_WS)}, s55 offen {RD} lds")
TH.park(a)
a("s_branch k_fin")

a(";@endseg")
a("k_h3:")
warm(a, ["m1", "m2", "ld2", "m3"])
a("s_mov_b32 s7, 32")
if "w2t" in OPT: w2_touch(a)
wait_go(a, 0)
h_relay_setup(a)
h3_refill_setup(a)
res_issue(a, 12, 11)
a("s_setprio 3")
T3.start(a)
h_relay(a, 1, 1)
Stamps.at(a, 9)
a(f"s_sub_u32 s49, s{S_NP}, 1\ns_lshl_b32 s49, s49, 11\ns_cmp_eq_u32 s{S_NP}, 2\ns_mov_b32 s50, 0x100\ns_cmov_b32 s50, 0x20100")
for i in range(4): a(f"s_add_u32 s{44+i}, s{44+i}, s49")
h_relay(a, 2, "s50")
Stamps.at(a, 10)
a("k_h3e:")
lv_poll(a, True)
Stamps.at(a, 14)
a("s_branch k_fin")

a("k_loader:")
loader(a)
a("k_ldend:")
res_issue(a, 12, 11)
a("k_fin:")
final_combine(a, 12, 11)
a("s_xor_b32 s40, s3, 5\ns_or_b32 s40, s40, s2\ns_cmp_lg_u32 s40, 0\ns_cbranch_scc1 k_dump")
a(f"s_mov_b32 s42, {GF_EPOCH}")
flag_store(a, 42, 0, 4)
a("k_dump:")
if "fix" in OPT:
    a("k_fx:\ns_memrealtime s[94:95]\ns_waitcnt lgkmcnt(0)\ns_sub_u32 s94, s94, s92\ns_cmp_lt_u32 s94, 4000\ns_cbranch_scc1 k_fx")
if "dbgspan" in OPT:
    a("s_waitcnt vmcnt(0)\ns_memrealtime s[94:95]\ns_waitcnt lgkmcnt(0)\ns_cmp_lg_u32 s3, 0\ns_cbranch_scc1 k_end")
    a("s_and_b32 s92, s92, 0xffffff\ns_and_b32 s94, s94, 0xffffff\ns_sub_u32 s93, 0xffffff, s92\ns_sub_u32 s95, s94, s92")
    for i, r in enumerate((93, 94, 92, 95)):
        a(f"s_atomic_umax s{r}, s[{S_DBG}:{S_DBG+1}], {16 + 4*i}")
    a("s_waitcnt lgkmcnt(0)")
if Stamps.on: a("s_waitcnt vmcnt(0)")
Stamps.dump(a, 0)
if Trace.on: a("s_waitcnt vmcnt(0)")
Trace.dump(a)
import json
if Trace.on: json.dump(Trace.names, open(sys.argv[1][:-2] + ".json", "w"))
a(";@endseg")
a("k_end:\ns_endpgm")
if "hop" in OPT: a("k_hopret:\ns_waitcnt lgkmcnt(0)\ns_setpc_b64 s[0:1]")
a.add_kernel(NAME, 256); a.add_launch(NAME, 256, 512, LDS_BYTES)
txt = a.text(header=HEADER, single=True)
if "hop" in OPT:
    txt, nh_ = hop_pass(txt, "k_hopret"); print("hop sites", nh_)
if "noal" not in OPT: txt, nw_, np_ = align_pass(txt)
txt = "\n".join(l for l in txt.split("\n") if not l.strip().startswith(";@"))
DOC = """; One persistent workgroup per CU, eight waves:
;   waves 0-3  gate/up GEMM + SwiGLU (x tile held in registers), then the down projection
;   waves 5-6  2048-point column filter (one frequency parity each), then the inverse row DFT
;   wave 7     spectrum / filter transposes, h hand-off, level relay
;   waves 4-7 first do the layernorm statistics and the 512-point row DFT of eight rows.
; Hand-offs between workgroups use write-through stores, counters and per-workgroup mailboxes.
"""
txt = txt.replace("; @launch", DOC + "; @launch", 1)
open(sys.argv[1], "w").write(txt)
print("nops", a.nops_added, CELLS if "v" in OPT else "")
```

```python
import sys, math
from spec4 import *

OPT = set(sys.argv[2:])
Stamps.on = "stamp" in OPT or "se" in OPT
if "se" in OPT or "qs" in OPT: Stamps.skip = set(range(1, 15))
if "cyc" in OPT: Stamps.op = "s_memtime"
Trace.on = "trace" in OPT
TM, TL, TH, T3 = Trace("main", 10), Trace("loader", 31), Trace("h12", 255), Trace("h3", 31)
LSLEEP[0] = 1 if "lsleep" in OPT else 0
NAME = "parallel_sum__spectral_gfnet__glu_gated_swiglu__prompt_kernel"
HEADER = open("parallel_sum__spectral_gfnet__glu_gated_swiglu__prompt.s.ref").read().split("; Override")[0]
WT = "sc0 sc1"
RD = "" if "rdplain" in OPT else "sc1"
GF_EPOCH, GCNT, MBOX = WS_FLAG, WS_FLAG + 0x1000, WS_FLAG + 0x10000
WS_Y = 0xD00000
XCH = MISC + 1024
S_MB, S_DBG = 64, 66
FL_HS, FL_HSF, FL_FULL3, FL_YX, FL_YC, FL_LV = MISC + 112, MISC + 128, MISC + 144, MISC + 160, MISC + 164, MISC + 176
H3C = ()
FL_Z_CNT, FL_E_CNT, FL_HLVL, FL_FULL2, FL_GO, FL_FULLE = MISC + 40, MISC + 44, MISC + 48, MISC + 64, MISC + 80, MISC + 96
SCRATCH = MISC + 1024
GSPIN = 1 << 18
CPRIO = 0 if "cp0" in OPT else 2
PSLEEP = 24 if "slowpoll" in OPT else 2
HWT = "" if "hplain" in OPT else WT
S_I, S_J, S_P, S_NP, S_ROT, S_T, S_CJ, S_RES, S_TAG, S_HW, S_COL = 84, 85, 86, 87, 88, 89, 90, 91, 5, 4, 83

class DsQ:
    def __init__(self, a): self.a = a; self.q = []
    def op(self, text, tag=None):
        self.a(text)
        if "read" in text.split()[0]: self.q.append(tag)
    def wait(self, tag):
        idx = [i for i, t in enumerate(self.q) if t == tag]
        if not idx: return
        n = len(self.q) - 1 - idx[-1]
        assert n <= 15, n
        self.a(f"s_waitcnt lgkmcnt({n})")
        self.q = self.q[idx[-1] + 1:]

PJ = [(43 * j) >> 4 for j in range(17)]
ORDER = [PJ[j] for j in range(16)] + [PJ[j+1] - 1 for j in range(16)] + [PJ[j] + 1 for j in range(16) if PJ[j+1] - PJ[j] == 3]

NL, NS = (int([o[2:] for o in OPT if o.startswith("nl")][0]) if any(o.startswith("nl") for o in OPT) else 10), 7
HST = 18 * SLOT
def plan_slots():
    free = [(16, 0), (17, 4)] + [(4 * w + c, c + 1) for c in range(4) for w in range(4)]
    cells = {}
    def alloc(key, release):
        free.sort(key=lambda t: t[1])
        s, req = free.pop(0)
        cells[key] = (s, req)
        free.append((s, release))
    for q in range(4):
        alloc(("A", "X", q), 5 + q); alloc(("C", "X", q), 13 + q); alloc(("A", "Y", q), 5 + q)
    for q in range(4):
        alloc(("B", "Y", q), 9 + q); alloc(("C", "Y", q), 13 + q); alloc(("B", "X", q), 9 + q)
    for c in range(22): alloc(("w", c), 17 + c)
    global FINAL
    FINAL = sorted((rel, s) for (s, rel) in free)[:5]
    return cells
CELLS = plan_slots()
LAST_REQ = max(r for (s, r) in CELLS.values())
TA = FINAL[0][1]; TB = [s for _, s in FINAL[1:]]; TA_REQ, TB_REQ = FINAL[0][0], FINAL[4][0]; assert TB_REQ <= 37, FINAL

def ids_early(a):
    if "r16" in OPT:
        a(f"s_bfe_u32 s{S_I}, s2, 0x40003\ns_and_b32 s40, s2, 7\ns_lshr_b32 s41, s2, 7\ns_lshl1_add_u32 s{S_J}, s40, s41")
        a(f"s_add_u32 s{S_ROT}, s{S_I}, s{S_J}\ns_and_b32 s{S_ROT}, s{S_ROT}, 3")
        return
    if "r8" in OPT:
        a(f"s_bfe_u32 s40, s2, 0x30003\ns_bfe_u32 s41, s2, 0x10001\ns_lshl3_add_u32 s{S_I}, s41, s40")
        a(f"s_and_b32 s40, s2, 1\ns_bfe_u32 s42, s2, 0x10002\ns_lshl1_add_u32 s40, s40, s42\ns_lshr_b32 s42, s2, 6\ns_lshl2_add_u32 s{S_J}, s40, s42")
        if "norx" in OPT: a(f"s_add_u32 s{S_ROT}, s{S_I}, s{S_J}\ns_and_b32 s{S_ROT}, s{S_ROT}, 3")
        else: a(f"s_bfe_u32 s40, s2, 0x10003\ns_lshl1_add_u32 s41, s41, s40\ns_add_u32 s{S_ROT}, s41, s{S_J}\ns_and_b32 s{S_ROT}, s{S_ROT}, 3")
        return
    a(f"s_bfe_u32 s40, s2, 0x20003\ns_and_b32 s41, s2, 3\ns_lshl2_add_u32 s{S_I}, s41, s40")
    a(f"s_bfe_u32 s40, s2, 0x10002\ns_lshr_b32 s41, s2, 5\ns_lshl3_add_u32 s{S_J}, s40, s41")
    if "norx" not in OPT: a(f"s_add_u32 s{S_ROT}, s2, s{S_J}\ns_and_b32 s{S_ROT}, s{S_ROT}, 3")
    else: a(f"s_add_u32 s{S_ROT}, s{S_I}, s{S_J}\ns_and_b32 s{S_ROT}, s{S_ROT}, 3")

def ids_late(a):
    a(f"s_mul_i32 s{S_P}, s{S_J}, 43\ns_add_u32 s{S_NP}, s{S_P}, 43\ns_lshr_b32 s{S_P}, s{S_P}, 4\ns_lshr_b32 s{S_NP}, s{S_NP}, 4\ns_sub_u32 s{S_NP}, s{S_NP}, s{S_P}")
    a(f"s_and_b32 s40, s2, 3\ns_bfe_u32 s41, s2, 0x10002\ns_lshl1_add_u32 s40, s40, s41\ns_bfe_u32 s41, s2, 0x20003\ns_lshl2_add_u32 s{S_T}, s40, s41\ns_lshr_b32 s{S_CJ}, s2, 5")
    a(f"s_lshl_b32 s{S_COL}, s{S_CJ}, 5\ns_add_u32 s{S_COL}, s{S_COL}, s{S_T}")
    for d, src, n in ((S_W1, 72, 512*2752), (S_W3, 74, 512*2752), (S_W2, 76, 1376*1024), (S_OUT, 78, 2048*1024)):
        a(f"s_mov_b64 s[{d}:{d+1}], s[{src}:{src+1}]\ns_mov_b32 s{d+2}, {n}\ns_mov_b32 s{d+3}, 0x20000")
    a(f"s_mov_b32 s{S_WS+2}, 0x10000000\ns_mov_b32 s{S_WS+3}, 0x20000")
    a(f"s_add_u32 s80, s{S_WS}, {GF_EPOCH}\ns_addc_u32 s81, s{S_WS+1}, 0")
    a(f"s_lshl_b32 s40, s2, 8\ns_add_u32 s40, s40, {MBOX}\ns_add_u32 s{S_MB}, s{S_WS}, s40\ns_addc_u32 s{S_MB+1}, s{S_WS+1}, 0")
    Stamps.clear(a)

def warm(a, segs):
    if "hop" not in OPT: return
    a("s_mov_b64 exec, 0")
    for sg in segs: a(f"s_call_b64 s[0:1], hs_{sg}_0")
    a("s_mov_b64 exec, -1")

def make_tag(a):
    a(f"s_mul_i32 s{S_TAG}, s{S_TAG}, 0x9E3779B1\ns_add_u32 s{S_TAG}, s{S_TAG}, 0x7F4A7C15")

def flag_store(a, soff, level, vt):
    a(f"s_add_u32 s40, s{S_TAG}, {level}\nv_mov_b32 v{vt}, s40")
    a("s_mov_b64 exec, 1")
    a(f"buffer_store_dword v{vt}, off, {sr(S_WS)}, s{soff} {WT}")
    a("s_mov_b64 exec, -1")

def h_post(a):
    a("s_mov_b32 s59, 0x10000")
    for i in range(8): a(f"s_atomic_add s59, s[60:61], {8192*i}")

def wg_signal(a, cnt_word, n, event, vaddr, vone, vt):
    zf = a.label("zf")
    if n > 1:
        a("s_mov_b64 exec, 1")
        a(f"ds_add_rtn_u32 v{vt}, v{vaddr}, v{vone} offset:{cnt_word - MISC}\ns_mov_b64 exec, -1\ns_waitcnt lgkmcnt(0)\nv_readfirstlane_b32 s40, v{vt}")
        a(f"s_cmp_lg_u32 s40, {n - 1}\ns_cbranch_scc1 {zf}")
    if event == 0:
        a(f"s_and_b32 s43, s2, 1\ns_lshl_b32 s41, s43, 7\ns_mov_b32 s40, 1")
        a(f"s_atomic_add s40, s[{S_DBG}:{S_DBG+1}], s41 glc\ns_waitcnt lgkmcnt(0)")
        a(f"s_and_b32 s40, s40, 127\ns_cmp_lg_u32 s40, 127\ns_cbranch_scc1 {zf}")
    else:
        a(f"s_bfe_u32 s43, s2, 0x30003\ns_lshl_b32 s41, s43, 7\ns_add_u32 s41, s41, {GCNT - GF_EPOCH}\ns_mov_b32 s40, 1")
        a(f"s_atomic_add s40, s[80:81], s41 glc\ns_waitcnt lgkmcnt(0)")
        a(f"s_cmp_lg_u32 s40, 31\ns_cbranch_scc1 {zf}")
    a(f"s_lshl_b32 s43, s43, 2\ns_add_u32 s43, s43, {MBOX + 32*event}\ns_add_u32 s40, s{S_TAG}, 1\nv_mov_b32 v{vt}, s40\nv_lshlrev_b32 v{vt+1}, 8, v1")
    if NCOPY < 64: a("s_mov_b32 exec_hi, 0")
    for i in range(max(NCOPY // 64, 1)):
        a(f"buffer_store_dword v{vt}, v{vt+1}, {sr(S_WS)}, s43 offen {WT}\ns_add_u32 s43, s43, 0x4000")
    a("s_mov_b64 exec, -1")
    a(f"{zf}:")

def wait_go(a, event):
    top, done = a.label("gp"), a.label("gpd")
    a(f"s_mov_b32 s41, {GSPIN}\ns_add_u32 s42, s{S_TAG}, 1\ns_mov_b32 s43, s42")
    a(f"s_and_b32 s40, s2, {NCOPY - 1}\ns_lshl_b32 s40, s40, 8\ns_add_u32 s40, s40, {MBOX - GF_EPOCH + 32*event}")
    a(f"{top}:")
    if event == 0:
        a(f"s_load_dwordx2 s[44:45], s[80:81], s40 glc\ns_waitcnt lgkmcnt(0)\ns_xor_b64 s[44:45], s[44:45], s[42:43]\ns_cbranch_scc0 {done}")
    else:
        a(f"s_load_dwordx8 s[44:51], s[80:81], s40 glc\ns_waitcnt lgkmcnt(0)")
        for i in range(4): a(f"s_xor_b64 s[{44+2*i}:{45+2*i}], s[{44+2*i}:{45+2*i}], s[42:43]")
        a(f"s_or_b64 s[44:45], s[44:45], s[46:47]\ns_or_b64 s[48:49], s[48:49], s[50:51]\ns_or_b64 s[44:45], s[44:45], s[48:49]\ns_cbranch_scc0 {done}")
    a(f"s_sleep {PSLEEP}\ns_sub_u32 s41, s41, 1\ns_cbranch_scc0 {top}")
    a(f"{done}:")

def level_load(a):
    a(f"s_load_dword s53, s[{S_MB}:{S_MB+1}], s54 glc")

def level_test(a, need):
    a(f"s_bitcmp1_b32 s53, {8 * need - 4 + (need == 3)}")

def pair_table(a, vt, t1, t2, sx=40):
    a(f"s_and_b32 s{sx}, s{S_T}, 3\ns_lshl1_add_u32 s{sx}, s{sx}, s{S_CJ}\ns_lshl_b32 s{sx}, s{sx}, 1\ns_and_b32 s{sx}, s{sx}, 15\ns_mul_i32 s{sx+1}, s{sx}, 11\ns_lshr_b32 s{sx+1}, s{sx+1}, 4\ns_sub_u32 s{sx+1}, s{sx+1}, 32")
    a(f"v_add_u32 v{t1}, s{sx+1}, v1\nv_subrev_u32 v{t2}, 11, v{t1}\nv_min_u32 v{t1}, v{t1}, v{t2}")
    a(f"v_lshrrev_b32 v{t2}, 1, v{t1}\nv_add3_u32 v{t1}, v{t1}, v{t2}, 1\nv_min_u32 v{t1}, 15, v{t1}")
    a(f"v_add_u32 v{t2}, s{sx}, v1\nv_and_b32 v{t2}, 15, v{t2}\nv_cmp_gt_u32 vcc, 32, v1\nv_cndmask_b32 v{t1}, v{t1}, v{t2}, vcc\nv_mul_u32_u24 v{t1}, 43, v{t1}")
    a(f"v_cndmask_b32 v{t2}, 16, 27, vcc\nv_cmp_gt_u32 vcc, 16, v1\nv_cndmask_b32 v{t2}, v{t2}, 0, vcc\nv_add_u32 v{t1}, v{t1}, v{t2}\nv_lshrrev_b32 v{vt}, 4, v{t1}")

def lv_take(a): a("v_readfirstlane_b32 s40, v2\ns_max_u32 s53, s53, s40")

def h_wait(a, need):
    top, done = a.label("hp"), a.label("hpd")
    level_test(a, need)
    a(f"s_cbranch_scc1 {done}\ns_mov_b32 s41, {SPIN}")
    a(f"{top}:")
    a(f"ds_read_b32 v2, v9 offset:{FL_LV - MISC}\ns_waitcnt lgkmcnt(0)"); lv_take(a); level_test(a, need)
    a(f"s_cbranch_scc1 {done}\ns_sub_u32 s41, s41, 1\ns_cbranch_scc0 {top}")
    a(f"{done}:")

def lv_poll(a, loop):
    top, done = a.label("lp"), a.label("lpd")
    a(f"s_mov_b32 s41, {GSPIN}\n{top}:")
    a(f"s_load_dword s52, s[{S_MB}:{S_MB+1}], 128 glc\ns_waitcnt lgkmcnt(0)\nv_mov_b32 v16, s52\nds_write_b32 v25, v16 offset:{FL_LV - MISC}")
    if loop:
        a(f"s_and_b32 s52, s52, 0xffffff\ns_cmp_eq_u32 s52, 0x201010\ns_cbranch_scc1 {done}\ns_sub_u32 s41, s41, 1\ns_cbranch_scc0 {top}\n{done}:")

def mbox_off(a, dst, grp):
    a(f"s_bfe_u32 s40, s{grp}, 0x20003\ns_and_b32 s41, s{grp}, 4\ns_add_u32 s40, s40, s41\ns_and_b32 s41, s{grp}, 3\ns_lshl3_add_u32 s{dst}, s41, s40\ns_lshl_b32 s{dst}, s{dst}, 8")
    a(f"s_lshr_b32 s40, s{grp}, 5\ns_lshl2_add_u32 s{dst}, s40, s{dst}\ns_add_u32 s{dst}, s{dst}, {MBOX + 128}")

def check(a, stubs, scache, need, areg, off, vt, minof=1, before_spin=None):
    back, sl = a.label("fb"), a.label("fs")
    a(f"s_cmp_ge_u32 s{scache}, {need}")
    a(f"s_cbranch_scc0 {sl}")
    a(f"{back}:")
    stubs.append((sl, back, scache, need, areg, off, vt, minof, before_spin))

def emit_stubs(a, stubs):
    for (sl, back, sc, need, areg, off, vt, minof, before_spin) in stubs:
        a(f"{sl}:")
        if before_spin:
            a(f"ds_read_b32 v{vt}, v{areg} offset:{off}\ns_waitcnt lgkmcnt(0)\nv_readfirstlane_b32 s{sc}, v{vt}")
            a(f"s_cmp_ge_u32 s{sc}, {need}\ns_cbranch_scc1 {back}")
            before_spin()
        lds_wait_ge(a, areg, off, need, vt, sc, 41, minof=minof, sleep=1)
        a(f"s_branch {back}")

X0, ACC, AF, PD = 128, (64, 96), 32, 3

def x_setup(a):
    a(f"s_and_b32 s40, s3, 1\ns_lshl1_add_u32 s50, s{S_I}, s40\ns_lshr_b32 s41, s3, 1\ns_lshl_b32 s41, s41, 5\ns_add_u32 s50, s50, s41")
    a("s_lshl_b32 s51, s3, 15")
    a("s_lshr_b32 s41, s50, 3\ns_lshl_b32 s41, s41, 18\ns_and_b32 s42, s50, 7\ns_lshl_b32 s42, s42, 12\ns_add_u32 s56, s41, s42")
    a(f"s_lshl_b32 s40, s{S_ROT}, 8\ns_add_u32 s52, s56, s40")
    if "nors" not in OPT: a(f"s_and_b32 s63, s{S_J}, 4\ns_lshr_b32 s40, s{S_J}, 2\ns_and_b32 s40, s40, 2\ns_or_b32 s63, s63, s40")
    else: a(f"s_lshr_b32 s63, s{S_J}, 1\ns_and_b32 s63, s63, 6")
    a("v_lshrrev_b32 v20, 4, v1\nv_and_b32 v21, 15, v1\nv_xor_b32 v21, v21, v20\nv_lshlrev_b32 v21, 4, v21\nv_lshl_add_u32 v20, v20, 10, v21")
    a("s_and_b32 s40, s63, 2\ns_lshl_b32 s40, s40, 6\nv_xor_b32 v16, s40, v20\nv_xor_b32 v17, 64, v16\nv_xor_b32 v18, 0x80, v16\nv_xor_b32 v19, 0x80, v17")
    a("s_lshl_b32 s63, s63, 10")

def touch_setup(a):
    a(f"s_mul_i32 s{S_P}, s{S_J}, 43\ns_lshr_b32 s{S_P}, s{S_P}, 4\ns_lshr_b32 s40, s3, 1\ns_lshl1_add_u32 s40, s{S_ROT}, s40\ns_mul_i32 s48, s40, {64*2752}")
    a(f"s_lshl_b32 s40, s{S_P}, 6\ns_add_u32 s48, s48, s40\nv_mul_u32_u24 v44, 2752, v1")
    a(f"s_mov_b32 s14, {512*2752}\ns_mov_b32 s15, 0x20000")

def touch_issue(a, off):
    a(f"buffer_load_dword v127, v44, s[12:15], s48 offen offset:{off}")

def x_setup_late(a):
    for c in range(1, 4):
        a(f"s_add_u32 s40, s{S_ROT}, {c}\ns_and_b32 s40, s40, 3\ns_lshl_b32 s40, s40, 8\ns_add_u32 s{52+c}, s56, s40")

def x_issue(a, c, between=None):
    a(f"s_add_u32 s41, s51, {c*SLOT}" if c else "s_mov_b32 s41, s51")
    for e in range(8):
        a(f"s_xor_b32 s42, s63, {e << 10}" if e else "s_mov_b32 s42, s63")
        a("s_add_u32 m0, s41, s42\ns_lshl_b32 s42, s42, 5")
        a(f"s_add_u32 s40, s42, s{52+c}")
        a(f"buffer_load_dwordx4 v{16+(e&3)}, {sr(S_X)}, s40 offen lds")
        if between: between(e)

def epilogue_ops(acc, level, direct=False):
    ev = []
    for n in range(16):
        tau, r = n // 8, n % 8
        g, u = acc + 16*tau + r, acc + 16*tau + 8 + r
        ev += [(n, 0, f"v_mul_f32 v{u}, v{g}, v{u}"), (n, 1, f"v_mul_f32 v{g}, v10, v{g}"), (n + 1, 2, f"v_exp_f32 v{g}, v{g}"),
               (n + 2, 3, f"v_fma_f32 v{g}, v{g}, v11, v11"), (n + 3, 5, f"v_rcp_f32 v{g}, v{g}"), (n + 4, 4, f"v_mul_f32 v{u}, v{u}, v{g}")]
        if r & 1: ev.append((n + 5, 6, f"v_cvt_pk_bf16_f32 v{24 + 4*tau + r // 2}, v{u-1}, v{u}"))
    ops = [o for _, _, o in sorted(ev, key=lambda t: (t[0], t[1]))]
    if direct:
        ops.insert(len(ops) - 30, f"buffer_store_dwordx4 v[24:27], v3, {sr(S_WS)}, s62 offen {WT}")
        return ops + [f"buffer_store_dwordx4 v[28:31], v3, {sr(S_WS)}, s62 offen offset:1024 {WT}"]
    ops.insert(len(ops) - 6, ("ds", "ds_write_b128 v22, v[24:27]"))
    ops.insert(len(ops) - 2, f"v_mov_b32 v23, {level}")
    return ops + [("ds", "ds_write_b128 v22, v[28:31] offset:1024"), ("ds", f"ds_write_b32 v9, v23 offset:{FL_HS - MISC}")]

TABR = [20]
def HB(p): return X0 + 4*p if p < 32 else 84 + 4*(p - 32)
def h_pre(a, p): a(f"v_readlane_b32 s{68 + p % 4}, v{TABR[0]}, {p}")
def h_load(a, p):
  if not ("sk" in OPT and p < 16): a(f"buffer_load_dwordx4 v[{HB(p)}:{HB(p)+3}], v3, {sr(S_WS)}, s{68 + p % 4} offen {RD}")
def h_burst(a, lo, hi):
    for p in range(lo, min(lo + 3, hi)): h_pre(a, p)
    for p in range(lo, hi):
        if p + 3 < hi: h_pre(a, p + 3)
        h_load(a, p)

def g1_main(a):
    dq = DsQ(a); slow = []
    a(f"s_lshl_b32 s40, s3, 2\ns_add_u32 s40, s40, {MISC}\nv_mov_b32 v9, s40")
    a("v_lshlrev_b32 v3, 4, v1")
    a("v_and_b32 v20, 31, v1\nv_lshrrev_b32 v21, 5, v1\nv_and_b32 v22, 15, v1\nv_xor_b32 v21, v21, v22\nv_lshlrev_b32 v21, 4, v21")
    a("v_lshl_add_u32 v24, v20, 8, v21\nv_add_u32 v24, s51, v24")
    for j in range(1, 8): a(f"v_xor_b32 v{24+j}, {32*j}, v24")
    a("v_bfe_u32 v20, v1, 4, 1\nv_lshrrev_b32 v21, 5, v1\nv_bfe_u32 v22, v1, 2, 2")
    a(f"v_add_u32 v8, s{S_P}, v22\nv_and_b32 v8, 1, v8")
    a("v_lshrrev_b32 v22, 1, v22\nv_lshl_add_u32 v22, v21, 2, v22\nv_lshl_add_u32 v22, v8, 1, v22\nv_lshlrev_b32 v22, 6, v22")
    a("v_lshl_add_u32 v22, v20, 12, v22\nv_lshl_add_u32 v22, v20, 5, v22")
    a("v_and_b32 v21, 1, v1\nv_lshl_add_u32 v22, v21, 4, v22\nv_bfe_u32 v21, v1, 1, 1\nv_lshl_add_u32 v4, v21, 3, v22")
    a("v_xor_b32 v5, 128, v4\nv_xor_b32 v6, 32, v4\nv_xor_b32 v7, 160, v4")
    a(f"s_mul_i32 s62, s50, 86\ns_lshl1_add_u32 s62, s{S_P}, s62\ns_lshl_b32 s62, s62, 10\ns_add_u32 s62, s62, {WS_H + 2048}")
    a("s_and_b32 s61, s50, 31"); mbox_off(a, 59, 61)
    a(f"s_add_u32 s60, s{S_WS}, s59\ns_addc_u32 s61, s{S_WS+1}, 0")
    a("s_mov_b32 s56, 0x3f803f80\ns_mov_b32 s57, 0x00003f80\ns_mov_b32 s58, 0x3f800000")
    def reads(c):
        for j in range(8):
            r = X0 + 32*c + 4*j
            dq.op(f"ds_read_b128 v[{r}:{r+3}], v{24+j} offset:{c*SLOT}", ("x", c, j))
        a(f"v_mov_b32 v14, {c + 1}")
        dq.op(f"ds_write_b32 v9, v14 offset:{FL_FREE - MISC}")
    def sums(c, only=None):
        for j in (range(8) if only is None else [only]):
            if j % 2 == 0: dq.wait(("x", c, j + 1))
            for r in range(X0 + 32*c + 4*j, X0 + 32*c + 4*j + 4):
                first = (r == X0)
                a(f"v_dot2_f32_bf16 v10, v{r}, s56, {'0' if first else 'v10'}")
                a(f"v_dot2_f32_bf16 v11, v{r}, v{r}, {'0' if first else 'v11'}")
    wd = a.label("wd")
    if "hopm" in OPT:
        for w, segs in enumerate((["x0"], ["x1"], ["x2"], ["x3"])):
            nx = a.label("wn")
            if w < 3: a(f"s_cmp_lg_u32 s3, {w}\ns_cbranch_scc1 {nx}")
            warm(a, segs)
            if w < 3: a(f"s_branch {wd}\n{nx}:")
        a(f"{wd}:")
    if "mx" in OPT: a("s_setprio 3")
    x_issue(a, 1)
    Stamps.at(a, 6)
    if "hopm" in OPT: a(f";@seg x0 {HV}")
    a("s_waitcnt vmcnt(8)"); Stamps.at(a, 1); reads(0)
    x_issue(a, 2, lambda e: sums(0, e))
    a("s_waitcnt vmcnt(8)"); reads(1)
    x_issue(a, 3, lambda e: sums(1, e))
    if "mx" in OPT: a("s_setprio 0")
    T3L = "t3" in OPT
    if T3L: touch_issue(a, 128)
    if "hopm" in OPT: a(f";@seg x1 {HV}")
    a(f"s_waitcnt vmcnt({8 + T3L})"); reads(2); sums(2)
    a(f"s_waitcnt vmcnt({0 + T3L})"); Stamps.at(a, 2); reads(3)
    sums(3)
    a("v_mov_b32 v12, v10\nv_mov_b32 v13, v11")
    a("v_permlane32_swap_b32 v12, v10\nv_permlane32_swap_b32 v13, v11")
    a("v_add_f32 v10, v10, v12\nv_add_f32 v11, v11, v13")
    sub = Asm(); ln_scalars(sub, 10, 11, None)
    a(sub.lines[0])
    a("v_cvt_pk_bf16_f32 v31, -v10, -v10\nv_and_b32 v31, 0xffff0000, v31")
    rest = sub.lines[1:] + [f"v_mul_f32 v10, {f32(-math.log2(math.e))}, v11", "v_mul_f32 v11, v11, v11", "v_rcp_f32 v11, v11"]
    for j in range(32):
        for r in range(4 if "noctr" not in OPT else 0):
            x = X0 + 4*j + r; t = 16 + 2*r
            a(f"v_dot2_f32_bf16 v{t}, v{x}, s57, v31\nv_dot2_f32_bf16 v{t+1}, v{x}, s58, v31")
        if j in (2, 17) and "hopm" in OPT: a(f";@seg x{2 if j == 2 else 3} {HV}")
        if j < len(rest): a(rest[j])
        for r in range(4 if "noctr" not in OPT else 0): a(f"v_cvt_pk_bf16_f32 v{X0+4*j+r}, v{16+2*r}, v{17+2*r}")
        if j == 24: dq.op(f"ds_read_b32 v2, v9 offset:{FL_FULL - MISC}", "poll")
    PASS = "ABC"
    def base_calc(r):
        ps, q = PASS[r // 32], (r % 32) // 8
        bx, by = CELLS[(ps, "X", q)][0] * SLOT, CELLS[(ps, "Y", q)][0] * SLOT
        a(f"v_mul_i32_i24 v0, {by - bx}, v8\nv_add_u32 v0, {bx}, v0")
        return 8
    def full_check(r):
        ps, q = PASS[r // 32], (r % 32) // 8
        need_full = {"A": q + 1, "B": q + 5, "C": 0}[ps]
        if not need_full: return 0
        back, sl = a.label("g1b"), a.label("g1s")
        dq.wait("poll")
        a(f"v_readfirstlane_b32 s40, v2\ns_cmp_ge_u32 s40, {need_full}\ns_cbranch_scc0 {sl}")
        a(f"{back}:")
        slow.append((sl, back, need_full, FL_FULL))
        return 16
    def AB(r): return 12 + 4 * ((r // 8) & 1)
    def addr(r, tau):
        for i in (2*tau, 2*tau + 1): a(f"v_add_u32 v{AB(r)+i}, v0, v{4+i}")
        return 8
    def wreads(r, tau):
        j = r % 8; b = AF + 8 * (r % 4); cost = 8
        for rd in range(2):
            dq.op(f"ds_read_b64_tr_b16 v[{b+4*tau+2*rd}:{b+4*tau+2*rd+1}], v{AB(r)+2*tau+rd} offset:{512*j}", ("w", r))
        nxt = r - j + 8
        if nxt < 96:
            if j == 2 and tau == 0: cost += base_calc(nxt)
            if j == 4: cost += addr(nxt, tau)
            if j == 7 and tau == 0: cost += full_check(nxt)
            if j == 5 and tau == 0 and nxt < 64:
                dq.op(f"ds_read_b32 v2, v9 offset:{FL_FULL - MISC}", "poll"); cost += 4
        if j == 6 and tau == 1: a(f"v_mov_b32 v0, {5 + r // 8}"); cost += 4
        if j == 7 and tau == 1:
            dq.op(f"ds_write_b32 v9, v0 offset:{FL_FREE - MISC}"); cost += 4
        return cost
    a(f";@seg m1 {HM}")
    base_calc(0); addr(0, 0); addr(0, 1); full_check(0)
    for g in range(PD): wreads(g, 0); wreads(g, 1)
    Stamps.at(a, 3)
    fin2, done = a.label("g1fin2"), a.label("g1done")
    sub = Asm()
    sub(f"s_lshl_b32 s42, s3, 11\ns_add_u32 s42, s42, {HST}\nv_add_u32 v22, s42, v3\ns_movk_i32 s54, 128")
    sub(f"s_and_b32 s42, s3, 1\ns_lshl_b32 s42, s42, 5\ns_add_u32 s42, s42, s{S_T}\ns_mul_i32 s50, s42, 86")
    sub(f"s_lshr_b32 s51, s3, 1\ns_add_u32 s50, s50, s51\ns_lshl_b32 s50, s50, 10\ns_add_u32 s50, s50, {WS_H}")
    pair_table(sub, 20, 24, 25, 42)
    sub("v_lshlrev_b32 v20, 11, v20\nv_add_u32 v20, s50, v20")
    sub("v_bfe_u32 v24, v1, 2, 2\nv_lshrrev_b32 v25, 5, v1\nv_lshl_add_u32 v25, v25, 3, v24\ns_lshl_b32 s42, s51, 4\nv_add_u32 v25, s42, v25")
    sub("v_lshlrev_b32 v25, 7, v25\nv_lshrrev_b32 v24, 1, v24\nv_lshl_add_u32 v25, v24, 6, v25")
    sub("v_bfe_u32 v24, v1, 4, 1\nv_lshl_add_u32 v25, v24, 5, v25\nv_and_b32 v24, 3, v1\nv_lshl_add_u32 v21, v24, 3, v25")
    res_setup(sub, 42)
    EP = {0: [l.strip() for l in sub.lines], 1: epilogue_ops(ACC[0], 1), 2: epilogue_ops(ACC[1], 2)}
    opcost = lambda o: 8 if isinstance(o, tuple) or o.startswith(("v_exp", "v_rcp")) else 4
    def emit(o):
        if isinstance(o, tuple): dq.op(o[1])
        else: a(o)
    def step(g, extra=None):
        ps, j = g // 32, g % 32
        acc = ACC[ps & 1]; ep = EP[ps]
        b = AF + 8 * (g % 4)
        dq.wait(("w", g))
        for tau in range(2):
            d = acc + 16 * tau
            if "m16" in OPT:
                for z in range(2):
                    dd = d + 8 * (j & 1) + 4 * z; xx = X0 + 4 * (j ^ z)
                    a(f"v_mfma_f32_16x16x32_bf16 v[{dd}:{dd+3}], v[{b+4*tau}:{b+4*tau+3}], v[{xx}:{xx+3}], " + ("0" if j < 2 else f"v[{dd}:{dd+3}]"))
            else:
                a(f"v_mfma_f32_32x32x16_bf16 v[{d}:{d+15}], v[{b+4*tau}:{b+4*tau+3}], v[{X0+4*j}:{X0+4*j+3}], " + ("0" if j == 0 else f"v[{d}:{d+15}]"))
            cost = 4 * tau
            if g + PD < 96: cost += wreads(g + PD, tau)
            if ps == 2 and j == HSJ - 3 and tau == 1:
                dq.op(f"ds_read_b32 v2, v9 offset:{FL_HSF - MISC}", "poll"); cost += 4
            if ps == 2 and j == HSJ and tau == 0:
                back, sl = a.label("g1b"), a.label("g1s")
                dq.wait("poll")
                a(f"v_readfirstlane_b32 s40, v2\ns_cmp_ge_u32 s40, 1\ns_cbranch_scc0 {sl}\n{back}:")
                slow.append((sl, back, 1, FL_HSF)); cost += 16
            if ps == 2 and j == 32 - ET - 8 and tau == 0: level_load(a); cost += 4
            while ep and j >= 1 and cost + opcost(ep[0]) <= (GAPB if ps else 20):
                assert not (ps == 2 and isinstance(ep[0], tuple) and j < HSJ)
                o = ep.pop(0); cost += opcost(o); emit(o)
                if not ep: print("fill list", ps, "ends at step", j)
            if extra: extra(tau)
    for g in range(96 - ET):
        if g == 32: a(f";@seg m2 {HM}\ns_waitcnt vmcnt(0)")
        if "qs" in OPT and g % 8 == 0: Stamps.at(a, 1 + g // 8, True)
        step(g)
        if g % 32 == 31:
            assert not EP[g // 32]
            Stamps.at(a, 4 + g // 32)
        if g == 63:
            a(f"s_cmp_eq_u32 s{S_NP}, 2\ns_cbranch_scc1 {fin2}")
    assert not EP[2]
    if "qs" in OPT: Stamps.at(a, 13, True)
    if "mp" in OPT: a("s_setprio 3")
    late = a.label("g1late")
    a("s_waitcnt lgkmcnt(0)"); dq.q = []
    def final_ep(acc, level, need, extra=None):
        checked = False
        for n, o in enumerate(epilogue_ops(acc, level, level == 3)):
            if isinstance(o, tuple) and not checked:
                back, sl = a.label("g1b"), a.label("g1s")
                a(f"s_cmp_ge_u32 s56, {need}\ns_cbranch_scc0 {sl}\n{back}:"); slow.append((sl, back, need, FL_HSF)); checked = True
            a(o[1] if isinstance(o, tuple) else o)
            if extra: extra(n)
    level_test(a, 1)
    a(f"s_cbranch_scc0 {late}")
    for p in range(3): h_pre(a, p)
    nxt = [0]
    def early(tau):
        p = nxt[0]
        if p >= B0 or (SPARSE and tau == 0): return
        if p + 3 < B0: h_pre(a, p + 3)
        h_load(a, p); nxt[0] += 1
    for g in range(96 - ET, 96): step(g, early)
    Stamps.at(a, 8)
    a(f";@seg m3 {HV}")
    level_load(a)
    final_ep(ACC[0], 3, 2)
    for _ in range(8): early(0)
    Stamps.at(a, 9)
    a(f"s_mov_b32 s58, 0\ns_branch {done}")
    a(f"{late}:")
    dq.q = []
    for g in range(96 - ET, 96): step(g)
    level_load(a)
    final_ep(ACC[0], 3, 2)
    if "nomid" not in OPT:
        a("s_waitcnt lgkmcnt(0)\ns_mov_b32 s58, 2"); level_test(a, 1); a("s_cbranch_scc1 k_g2mid")
    a("s_waitcnt vmcnt(0)"); h_post(a)
    a("s_branch k_g2late")
    a(f"{fin2}:")
    if "mp" in OPT: a("s_setprio 3")
    a(f"v_mov_b32 v0, 16\nds_write_b32 v9, v0 offset:{FL_FREE - MISC}\ns_mov_b32 s56, 0\ns_mov_b32 s53, 0")
    a("s_nop 15")
    final_ep(ACC[1], 2, 1)
    a("k_g2late:")
    a("s_mov_b32 s58, 1")
    a("s_waitcnt lgkmcnt(0)")
    h_wait(a, 1)
    a("k_g2mid:")
    h_burst(a, 0, B0)
    a(f"s_branch {done}")
    for (sl, back, n, word) in slow:
        a(f"{sl}:")
        lds_wait_ge(a, 9, word - MISC, n, 2, 40, 41)
        a(f"s_branch {back}")
    a(f"{done}:")

ACC2, AF2 = 52, 20

def slot_sel(a, dst, idx, slots):
    a(f"s_mov_b32 s{dst}, {slots[0]*SLOT}")
    for i in range(1, len(slots)):
        a(f"s_cmp_eq_u32 s{idx}, {i}\ns_cmov_b32 s{dst}, {slots[i]*SLOT}")

def g2_main(a):
    dq = DsQ(a); stubs = []
    TM.start(a); TM(a, "T0")
    a("v_mov_b32 v8, v20"); TABR[0] = 8
    vm = [("h", p) for p in range(B0)]
    for q in range(B0, B0 + 3): h_pre(a, q)
    a(f"s_mov_b32 s55, 0\ns_mov_b32 s57, 0\nds_read_b32 v2, v9 offset:{FL_FULL2 - MISC}")
    a("v_mov_b32 v4, v21\nv_xor_b32 v5, 64, v21\nv_add_u32 v6, 0x10000, v4\nv_add_u32 v7, 0x10000, v5\nv_add_u32 v18, 0x20000, v4\nv_add_u32 v19, 0x20000, v5")
    a("s_waitcnt lgkmcnt(0)\nv_readfirstlane_b32 s52, v2")
    Stamps.at(a, 11)
    a(f";@sp {HM}")
    AR = [4, 6, 18]
    NB = 4
    def reads(p, dl):
        c = p // 2
        if p % 2 == 0 and dl == 0 and (c % CK == 0 or c >= 8): check(a, stubs, 57 if c in H3C else 52, c + 1 if c >= 8 else c + CK, 9, (FL_FULL3 if c in H3C else FL_FULL2) - MISC, 16)
        base = CELLS[("w", c)][0] * SLOT + (p % 2) * 4096
        w, off = base >> 16, base & 0xffff
        b = AF2 + 8 * (p % NB)
        for rd in range(2):
            dq.op(f"ds_read_b64_tr_b16 v[{b+4*dl+2*rd}:{b+4*dl+2*rd+1}], v{AR[w]+dl} offset:{off + 512*rd}", ("w", p))
        if dl == 1 and p % 2 == 1 and 17 + c <= TB_REQ:
            a(f"v_mov_b32 v0, {17 + c}")
            dq.op(f"ds_write_b32 v9, v0 offset:{FL_FREE - MISC}")
    for p in range(PD): reads(p, 0); reads(p, 1)
    nq = [B0]
    sub = Asm()
    slot_sel(sub, 42, 3, TB)
    F = FIN
    sub(f"v_and_b32 v{F+8}, 31, v1\nv_lshrrev_b32 v{F+9}, 5, v1\nv_and_b32 v{F+10}, 7, v1\nv_xor_b32 v{F+9}, v{F+9}, v{F+10}\nv_lshlrev_b32 v{F+9}, 4, v{F+9}\nv_lshl_add_u32 v{F+8}, v{F+8}, 8, v{F+9}\nv_add_u32 v{F+8}, s42, v{F+8}")
    for g in range(1, 4): sub(f"v_xor_b32 v{F+8+g}, {32*g}, v{F+8}")
    sub(f"v_mov_b32 v{F+12}, {MISC}")
    final_setup(sub)
    unpack_res(sub, 12)
    tail = [l.strip() for l in sub.lines]
    for p in range(43):
        b = AF2 + 8 * (p % NB)
        a(f"s_waitcnt vmcnt({len(vm) - 1 - vm.index(('h', p))})")
        if p == 0:
            sk = a.label("ep")
            a(f"s_cmp_lg_u32 s58, 2\ns_cbranch_scc1 {sk}"); h_post(a); a(f"{sk}:")
        if p % 4 == 0: TM(a, f"p{p}")
        dq.wait(("w", p))
        for dl in range(2):
            d = ACC2 + 16 * dl
            if "m16" in OPT:
                for z in range(2):
                    dd = d + 8 * (p & 1) + 4 * z; xx = HB(max(p - z, 0))
                    a(f"v_mfma_f32_16x16x32_bf16 v[{dd}:{dd+3}], v[{b+4*dl}:{b+4*dl+3}], v[{xx}:{xx+3}], " + ("0" if p < 2 else f"v[{dd}:{dd+3}]"))
            elif not ("sk" in OPT and p < 16): a(f"v_mfma_f32_32x32x16_bf16 v[{d}:{d+15}], v[{b+4*dl}:{b+4*dl+3}], v[{HB(p)}:{HB(p)+3}], " + ("0" if p == 0 else f"v[{d}:{d+15}]"))
            if p + PD < 43: reads(p + PD, dl)
            if p >= 32:
                n = 0
                while tail and (n < 3 or tail[0].startswith("s_cmov")):
                    a(tail.pop(0)); n += 1
        if p == 41: dq.op(f"ds_read_b128 v[4:7], v{F+12} offset:{FL_FREE - MISC}", "fr")
        for _ in range(2 if (p < R2 or 16 <= nq[0] < 16 + 2 * CU or (nq[0] >= 32 and "c3" in OPT)) else 1):
            q = nq[0]
            if q == 16:
                sk = a.label("ep")
                a(f"s_cmp_lg_u32 s58, 0\ns_cbranch_scc1 {sk}\ns_waitcnt vmcnt({0 if 'sk' in OPT else 16 - B0})"); h_post(a); a(f"{sk}:")
            if q in (16, 32):
                TM(a, f"w{q}"); dq.wait("lv"); lv_take(a); h_wait(a, q // 16 + 1); TM(a, f"L{q}")
            if q < 43:
                if q + 3 < 43: h_pre(a, q + 3)
                h_load(a, q); vm.append(("h", q))
            if q in (14, 30): dq.op(f"ds_read_b32 v2, v9 offset:{FL_LV - MISC}", "lv")
            if q == 24:
                res_load(a, 12, 11); vm.append("r")
            nq[0] += 1
    for o in tail: a(o)
    TM(a, "loopend")
    dq.wait("fr")
    a("v_min_u32 v4, v4, v5\nv_min3_u32 v4, v4, v6, v7\nv_readfirstlane_b32 s52, v4")
    check(a, stubs, 52, TB_REQ, F + 12, FL_FREE - MISC, 4, minof=4)
    Stamps.at(a, 14)
    for dl in range(2):
        for g in range(4):
            r = ACC2 + 16*dl + 4*g
            a(f"ds_write_b128 v{F+8+g}, v[{r}:{r+3}] offset:{128*dl}")
    TM(a, "written"); TM.park(a)
    a("s_branch k_fin2")
    return stubs

def res_setup(a, t=40):
    a(f"s_lshr_b32 s{t}, s3, 2\ns_lshl_b32 s{t}, s{t}, 20\ns_lshr_b32 s{t+1}, s{S_T}, 3\ns_lshl_b32 s{t+1}, s{t+1}, 18\ns_add_u32 s{t}, s{t}, s{t+1}")
    a(f"s_and_b32 s{t+1}, s{S_T}, 7\ns_lshl_b32 s{t+1}, s{t+1}, 12\ns_add_u32 s{t}, s{t}, s{t+1}\ns_and_b32 s{t+1}, s3, 3\ns_lshl_b32 s{t+1}, s{t+1}, 16\ns_add_u32 s{t}, s{t}, s{t+1}")
    a(f"s_lshl_b32 s{t+1}, s{S_CJ}, 7\ns_add_u32 s{S_RES}, s{t}, s{t+1}")

def res_load(a, dst, voff):
    a(f"v_bfe_u32 v{dst}, v1, 3, 2\nv_and_b32 v{voff}, 7, v1\nv_lshlrev_b32 v{voff}, 4, v{voff}\nv_lshl_add_u32 v{voff}, v{dst}, 10, v{voff}")
    a(f"v_lshrrev_b32 v{dst}, 5, v1\nv_lshl_add_u32 v{voff}, v{dst}, 15, v{voff}")
    a(f"buffer_load_dwordx4 v[{dst}:{dst+3}], v{voff}, {sr(S_X)}, s{S_RES} offen")

def res_issue(a, dst, voff):
    res_setup(a); res_load(a, dst, voff)

FIN, XU = 128, 144
def final_setup(a):
    F = FIN
    a("s_and_b32 s44, s3, 3\ns_lshl_b32 s44, s44, 11\ns_lshr_b32 s45, s3, 2")
    slot_sel(a, 42, 45, TB[:2]); slot_sel(a, 43, 45, TB[2:])
    a(f"v_lshrrev_b32 v{F}, 3, v1\nv_and_b32 v{F+1}, 7, v1\nv_lshlrev_b32 v{F+1}, 1, v{F+1}\nv_xor_b32 v{F+1}, v{F+1}, v{F}\nv_lshlrev_b32 v{F+1}, 4, v{F+1}")
    a(f"v_lshl_add_u32 v{F}, v{F}, 8, v{F+1}\nv_add_u32 v{F}, s44, v{F}\nv_xor_b32 v{F+1}, 16, v{F}")
    a(f"v_add_u32 v{F+4}, s42, v{F}\nv_add_u32 v{F+5}, s42, v{F+1}\nv_add_u32 v{F+6}, s43, v{F}\nv_add_u32 v{F+7}, s43, v{F+1}")
    a(f"s_lshl_b32 s44, s3, 10\ns_add_u32 s44, s44, {TA*SLOT}\nv_lshl_add_u32 v{F}, v1, 4, s44")

def unpack_res(a, xr):
    for p in range(4):
        a(f"v_lshlrev_b32 v{XU+2*p}, 16, v{xr+p}\nv_and_b32 v{XU+2*p+1}, 0xffff0000, v{xr+p}")

def final_combine(a, xr, voff):
    final_setup(a)
    a("s_waitcnt vmcnt(0)")
    unpack_res(a, xr)
    a("k_fin2:")
    if Trace.on: a("s_memtime s[100:101]\ns_waitcnt lgkmcnt(0)\nv_writelane_b32 v100, s100, 60")
    a("s_waitcnt lgkmcnt(0)\ns_barrier")
    if Trace.on: a("s_memtime s[100:101]\ns_waitcnt lgkmcnt(0)\nv_writelane_b32 v100, s100, 61")
    R = 20
    a(f"ds_read_b128 v[{R+8}:{R+11}], v{FIN}")
    for q in range(2):
        a(f"ds_read_b128 v[{R+16+4*q}:{R+16+4*q+3}], v{FIN+4+q}")
        a(f"ds_read_b128 v[{R+24+4*q}:{R+24+4*q+3}], v{FIN+6+q}")
    a("s_waitcnt lgkmcnt(4)")
    for p in range(4): a(f"v_lshlrev_b32 v{R+2*p}, 16, v{R+8+p}\nv_and_b32 v{R+2*p+1}, 0xffff0000, v{R+8+p}")
    for p in range(4): a(f"v_pk_add_f32 v[{R+2*p}:{R+2*p+1}], v[{R+2*p}:{R+2*p+1}], v[{XU+2*p}:{XU+2*p+1}]")
    for p in range(4):
        if p % 2 == 0: a(f"s_waitcnt lgkmcnt({2 if p == 0 else 0})")
        r = R + 2*p
        a(f"v_pk_add_f32 v[{r+16}:{r+17}], v[{r+16}:{r+17}], v[{r+24}:{r+25}]")
        a(f"v_pk_add_f32 v[{r}:{r+1}], v[{r}:{r+1}], v[{r+16}:{r+17}]")
        a(f"v_cvt_pk_bf16_f32 v{xr+p}, v{r}, v{r+1}")
    a(f"buffer_store_dwordx4 v[{xr}:{xr+3}], v{voff}, {sr(S_OUT)}, s{S_RES} offen {'sc0 sc1' if 'owt' in OPT else 'nt' if 'ont' in OPT else ''}")

def loader(a):
    a(f"v_mov_b32 v2, {MISC}")
    a("v_and_b32 v16, 3, v1\nv_lshl_add_u32 v16, v16, 2, v2")
    a("v_lshrrev_b32 v8, 2, v1\nv_and_b32 v9, 3, v1\nv_lshlrev_b32 v9, 4, v9\nv_xor_b32 v10, 2, v8")
    a("v_mul_u32_u24 v8, 5504, v8\nv_mul_u32_u24 v10, 5504, v10\nv_xor_b32 v11, 32, v9")
    a("v_add_u32 v4, v8, v9\nv_add_u32 v5, v8, v11\nv_add_u32 v6, v10, v9\nv_add_u32 v7, v10, v11")
    a("v_lshrrev_b32 v8, 3, v1\nv_and_b32 v9, 7, v1\nv_bfe_u32 v10, v1, 4, 1\nv_lshlrev_b32 v10, 2, v10\nv_xor_b32 v10, v10, v9")
    a("v_lshlrev_b32 v10, 4, v10\nv_lshl_add_u32 v17, v8, 10, v10")
    for q in range(4):
        a(f"s_add_u32 s40, s{S_ROT}, {q}\ns_and_b32 s40, s40, 3\ns_mul_i32 s{44+q}, s40, {128*2752}")
    a(f"s_and_b32 s40, s{S_P}, 1\ns_mul_i32 s48, s40, 2752\ns_sub_u32 s49, 2752, s48")
    a(f"s_lshl_b32 s40, s{S_P}, 6\ns_add_u32 s48, s48, s40\ns_add_u32 s49, s49, s40")
    a(f"s_lshl_b32 s50, s{S_CJ}, 7\ns_mov_b32 s52, 0")
    pair_table(a, 18, 19, 20)
    a("v_lshlrev_b32 v18, 15, v18\nv_add_u32 v18, s50, v18\nv_lshlrev_b32 v19, 4, v1")
    Stamps.at(a, 7)
    two, w2l = a.label("ld2"), a.label("ldw2")
    if "noload" in OPT:
        a("s_waitcnt vmcnt(0)\nv_mov_b32 v3, 1"); wg_signal(a, FL_Z_CNT, 2, 0, 2, 3, 12)
        a(f"v_mov_b32 v3, 99\nds_write_b32 v16, v3 offset:{FL_FULL - MISC}\nds_write_b32 v16, v3 offset:{FL_FULL2 - MISC}\ns_branch k_ldend")
    a(f"s_cmp_eq_u32 s{S_NP}, 2\ns_cbranch_scc1 {two}")
    class Pipe:
        def __init__(s): s.items = []; s.seen = 0; s.depth = DEPTH
        def publish(s, it):
            if it[0] is None: return
            a(f"v_mov_b32 v3, {it[1]}\ns_mov_b64 exec, 15\nds_max_u32 v16, v3 offset:{it[0] - MISC}\ns_mov_b64 exec, -1")
        def probe(s, req, ok):
            a(f"s_call_b64 s[54:55], k_ldprobe\ns_cmp_ge_u32 s52, {req}\ns_cbranch_scc1 {ok}")
        def need(s, req):
            if req <= s.seen: return
            ok = a.label("ldok")
            a(f"s_cmp_ge_u32 s52, {req}\ns_cbranch_scc1 {ok}")
            for i, it in enumerate(s.items):
                if it[0] is None: continue
                s.probe(req, ok)
                a(f"s_waitcnt vmcnt({sum(x[2] for x in s.items[i+1:])})"); s.publish(it)
            lds_wait_ge(a, 2, FL_FREE - MISC, req, 12, 52, 41, minof=4, sleep=LSL)
            a(f"{ok}:")
            s.seen = req
        def done(s, word, val, cnt):
            s.items.append((word, val, cnt))
            while len(s.items) > 1 and sum(x[2] for x in s.items) > s.depth:
                it = s.items.pop(0)
                a(f"s_waitcnt vmcnt({sum(x[2] for x in s.items)})"); s.publish(it)
        def flush(s, keep=0):
            while len(s.items) > keep:
                it = s.items.pop(0)
                a(f"s_waitcnt vmcnt({sum(x[2] for x in s.items)})"); s.publish(it)
    def variant(np_):
        pp = Pipe()
        for grp in range(8):
            st, q = grp // 4, grp % 4
            if st == 0: seq = [[("A", "X", 0), ("C", "X", 64)], [("A", "Y", 0)]]
            else:       seq = [[("C", "Y", 64), ("B", "Y", 64 * (np_ - 1))], [("B", "X", 64 * (np_ - 1))]]
            if np_ == 2 or "noC" in OPT: seq = [[c for c in s if c[0] != "C"] for s in seq]
            if "halfw" in OPT: seq = [seq[0], []]
            tot = 0
            for si, s in enumerate(seq):
                if not s:
                    pp.done(FL_FULL, grp + 1, 0); continue
                pp.need(max([CELLS[(c[0], c[1], q)][1] for c in s] + [LGATE]))
                if grp == 4 and si == 0: lds_wait_ge(a, 2, FL_A_DONE - MISC, 2, 12, 40, 41)
                cl = s[0][1]; ci = 0 if cl == "X" else 1; cnt = 0
                for g in range(4):
                    for mat in range(2):
                        for n, (ps, _, off) in enumerate(s):
                            dst = CELLS[(ps, cl, q)][0] * SLOT + mat * 4096 + g * 1024
                            neg = dst - off < 0
                            a(f"s_mov_b32 m0, {dst if neg else dst - off}")
                            if mat == 0 and n == 0:
                                a(f"s_add_u32 s42, s{44+q}, s{48+ci}" if g == 0 else f"s_add_u32 s42, s42, {32*2752}")
                            if neg:
                                a(f"s_add_u32 s43, s42, {off}\nbuffer_load_dwordx4 v{4+2*ci+mat}, {sr(S_W1 + 4*mat)}, s43 offen lds")
                            else:
                                a(f"buffer_load_dwordx4 v{4+2*ci+mat}, {sr(S_W1 + 4*mat)}, s42 offen offset:{off} lds")
                            cnt += 1
                tot += cnt
                pp.done(FL_FULL if si == 1 else None, grp + 1, cnt)
            if grp in (1, 3, 5, 7): Stamps.at(a, 8 + grp // 2)
            if grp == 1: a(f"s_setprio {LPRIO}")
        while pp.items and pp.items[0][1] < 8:
            pp.flush(keep=len(pp.items) - 1)
        return pp
    p3 = variant(3)
    a(f"s_branch {w2l}")
    a("k_ldprobe:")
    a(f"ds_read_b128 v[12:15], v2 offset:{FL_FREE - MISC}\ns_waitcnt lgkmcnt(0)")
    a("v_min_u32 v12, v12, v13\nv_min3_u32 v12, v12, v14, v15\nv_readfirstlane_b32 s52, v12\ns_nop 0\ns_setpc_b64 s[54:55]")
    a(f"{two}:")
    p2 = variant(2)
    a(f";@seg ld2 {HV}")
    a(f"{w2l}:")
    pp = Pipe(); pp.items = [(FL_FULL, 8, 24)]; pp.seen = min(p3.seen, p2.seen); pp.depth = DEPTH2
    TL.start(a)
    a("v_lshlrev_b32 v19, 4, v1")
    staged = list(range(22 - NST, 22))
    order = [("d", c) for c in range(22) if c not in staged and c not in H3C]
    for n, c in enumerate(staged): order.insert(1 + 2 * n, ("s", c))
    order += [("w", c) for c in staged]
    for kind, c in order:
        slot, req = CELLS[("w", c)]
        ps_ = list(range(2 * c, min(2 * c + 2, 43)))
        base = 32 + 32 * (c - (22 - NST))
        if kind != "w":
            for p in ps_: a(f"v_readlane_b32 s{44 + p % 2}, v18, {p}")
            a("s_nop 1")
        if kind != "s":
            pp.need(req)
            if c % 2 == 0: TL(a, f"c{c}")
        if kind == "w":
            a(f"v_add_u32 v20, {slot*SLOT}, v19")
            for i in range(4 * len(ps_)): a(f"ds_write_b128 v20, v[{base+4*i}:{base+4*i+3}] offset:{1024*i}")
            pp.flush(); pp.publish((FL_FULL2, c + 1))
            continue
        for p in ps_:
            for g in range(4):
                if kind == "d": a(f"s_mov_b32 m0, {slot*SLOT + (p % 2)*4096 + g*1024}")
                if g: a(f"s_add_u32 s{44 + p % 2}, s{44 + p % 2}, 8192")
                r = base + 16 * (p % 2) + 4 * g
                a(f"buffer_load_dwordx4 v17, {sr(S_W2)}, s{44 + p % 2} offen lds" if kind == "d" else
                  f"buffer_load_dwordx4 v[{r}:{r+3}], v17, {sr(S_W2)}, s{44 + p % 2} offen")
        pp.done(FL_FULL2 if kind == "d" else None, c + 1, 4 * len(ps_))
    TL(a, "issued")
    pp.flush()
    TL(a, "landed"); TL.park(a)

GF, ACCE, BE = 128, 64, 32

def g_first(a, n, dt16, t0):
    st, s7, ar = t0, t0 + 1, t0 + 2
    a(f"v_and_b32 v{st}, 15, v1\ns_lshr_b32 s40, s2, 5\ns_lshl_b32 s40, s40, 6\ns_add_u32 s40, s40, {dt16}\nv_add_u32 v{st}, s40, v{st}")
    a(f"v_cvt_f32_u32 v{st}, v{st}\nv_mul_f32 v{st}, {f32(1/512)}, v{st}\nv_mul_f32 v{s7}, {f32(7.0)}, v{st}")
    a(f"v_lshrrev_b32 v{ar}, 4, v1\nv_lshl_add_u32 v{ar}, v{ar}, 1, 1\nv_cvt_f32_u32 v{ar}, v{ar}\nv_mul_f32 v{ar}, v{ar}, v{st}")
    for i in range(32):
        if i: a(f"v_add_f32 v{ar}, v{ar}, v{st if i & 1 else s7}")
        t = t0 + 4 + 2 * (i & 1); p = t0 + 4 + 2 * ((i + 1) & 1)
        a(f"v_cos_f32 v{t}, v{ar}\nv_sin_f32 v{t+1}, v{ar}")
        if i: a(f"v_cvt_pk_bf16_f32 v{GF+64*n+i-1}, v{p}, -v{p+1}")
    a(f"v_cvt_pk_bf16_f32 v{GF+64*n+31}, v{t0+6}, -v{t0+7}")

def g_second(a, nt, t=4):
    a(f"v_and_b32 v{t}, 1, v1\nv_lshlrev_b32 v{t}, 4, v{t}\nv_bfe_u32 v{t+1}, v1, 1, 1\nv_lshlrev_b32 v{t+1}, 15, v{t+1}\nv_add_u32 v{t+2}, 1, v1\nv_bfe_u32 v{t+2}, v{t+2}, 1, 1\nv_lshl_or_b32 v{t+1}, v{t+2}, 31, v{t+1}")
    for n in range(nt):
        for i in range(32):
            r = GF + 64*n + i
            a(f"v_alignbit_b32 v{r+32}, v{r}, v{r}, v{t}")
        for i in range(32):
            r = GF + 64*n + i
            a(f"v_xor_b32 v{r+32}, v{t+1}, v{r+32}")

def e_load(a, s_pi, meanwhile):
    a(f"v_mov_b32 v2, {MISC}")
    a("v_lshrrev_b32 v8, 4, v1\nv_bfe_u32 v9, v1, 2, 2\nv_xor_b32 v9, v9, v8\nv_lshlrev_b32 v5, 13, v8\nv_lshrrev_b32 v10, 1, v9\nv_lshl_add_u32 v5, v10, 12, v5")
    a("v_and_b32 v10, 1, v9\nv_lshl_add_u32 v5, v10, 6, v5\nv_and_b32 v10, 3, v1\nv_lshl_add_u32 v5, v10, 4, v5")
    a(f"s_lshl_b32 s45, s{S_T}, 7\ns_lshl_b32 s40, s{s_pi}, 18\ns_add_u32 s45, s45, s40\ns_add_u32 s45, s45, {WS_E}")
    a(f"s_lshl_b32 s40, s{s_pi}, 2\nv_add_u32 v6, s40, v2")
    for i in range(4):
        (s0, r0), (s1, r1) = CELLS[("e", 2*i)], CELLS[("e", 2*i + 1)]
        lds_wait_ge(a, 2, FL_FREE - MISC, max(r0, r1), 16, 40, 41, minof=4, sleep=1)
        TH(a, f"ld{i}")
        a(f"s_mul_i32 s46, s{s_pi}, {(s1 - s0) * SLOT}\ns_add_u32 s46, s46, {s0 * SLOT}")
        for g in range(8):
            a(f"s_add_u32 m0, s46, {g*1024}")
            a(f"s_add_u32 s42, s45, {(64*i + 4*g)*8192}")
            a(f"buffer_load_dwordx4 v5, {sr(S_WS)}, s42 offen {RD} lds")
    meanwhile()
    for i in range(4):
        a(f"s_waitcnt vmcnt({8*(3-i)})\nv_mov_b32 v3, {i+1}\nds_write_b32 v6, v3 offset:{FL_FULLE - MISC}")

def e_part(a, nt, s_dt16, TT):
    dq = DsQ(a); stubs = []
    a(f"v_mov_b32 v2, {MISC}")
    a("v_lshrrev_b32 v8, 3, v1\nv_lshlrev_b32 v9, 8, v8\nv_and_b32 v8, 3, v8\nv_lshl_add_u32 v9, v8, 6, v9")
    a("v_and_b32 v8, 3, v1\nv_lshl_add_u32 v9, v8, 4, v9\nv_bfe_u32 v8, v1, 2, 1\nv_lshl_add_u32 v4, v8, 3, v9")
    for nu in range(1, 4): a(f"v_xor_b32 v{4+nu}, {64*nu}, v4")
    a("s_mov_b32 s52, 0\ns_mov_b32 s53, 0\ns_waitcnt lgkmcnt(0)")
    AH = 7
    def reads(u):
        js, nu = u // 4, u % 4
        c = js // 2
        if u % 8 == 0: check(a, stubs, 52 + (c & 1), c // 2 + 1, 2, FL_FULLE - MISC + 4 * (c & 1), 3)
        if js % 2 == 0: a(f"v_add_u32 v{16+nu}, {CELLS[('e', c)][0]*SLOT}, v{4+nu}")
        b = BE + 4 * (u % 8)
        for rd in range(2):
            dq.op(f"ds_read_b64_tr_b16 v[{b+2*rd}:{b+2*rd+1}], v{16+nu} offset:{(js % 2)*4096 + 2048*rd}", ("e", u))
    a(f"s_setprio {EPRIO}")
    for u in range(AH): reads(u)
    for u in range(64):
        js, nu = u // 4, u % 4
        b = BE + 4 * (u % 8)
        dq.wait(("e", u))
        if u % 8 == 0: TT(a, f"u{u}")
        for n in range(nt):
            d = ACCE + 16*n + 4*nu; g = GF + 64*n + 4*js
            a(f"v_mfma_f32_16x16x32_bf16 v[{d}:{d+3}], v[{g}:{g+3}], v[{b}:{b+3}], " + ("0" if js == 0 else f"v[{d}:{d+3}]"))
        if u + AH < 64: reads(u + AH)
    a(f"s_lshr_b32 s40, s{s_dt16}, 2\nv_lshrrev_b32 v17, 4, v1\nv_add_u32 v17, s40, v17\nv_and_b32 v18, 7, v1\nv_xor_b32 v17, v17, v18\nv_lshlrev_b32 v17, 4, v17")
    a(f"v_and_b32 v16, 15, v1\nv_lshl_add_u32 v16, v16, 8, v17\nv_xor_b32 v17, 64, v16")
    a(f"v_add_u32 v18, {TA[1]*SLOT}, v16\nv_add_u32 v19, {TA[1]*SLOT}, v17\nv_add_u32 v16, {TA[0]*SLOT}, v16\nv_add_u32 v17, {TA[0]*SLOT}, v17")
    TT(a, "edone")
    lds_wait_ge(a, 2, FL_FREE - MISC, TA_REQ, 4, 40, 41, minof=4, sleep=1)
    for n in range(nt):
        for nu in range(4):
            d = ACCE + 16*n + 4*nu
            a(f"ds_write_b128 v{16+n+2*(nu >> 1)}, v[{d}:{d+3}] offset:{(nu & 1)*4096}")
    TT(a, "written"); TT.park(a)
    return stubs

def h_relay(a, level, val):
    lds_wait_ge(a, 2, FL_HS - MISC, level, 16, 40, 41, minof=4, sleep=1 if level < 3 or "hs0" not in OPT else 0)
    T3(a, f"hs{level}")
    for i in range(8): a(f"ds_read_b128 v[{32+4*i}:{35+4*i}], v24 offset:{1024*i}")
    a(f"v_mov_b32 v16, {level}\nds_write_b32 v25, v16 offset:{FL_HSF - MISC}")
    for i in range(8):
        a(f"s_waitcnt lgkmcnt({7 - i})")
        a(f"buffer_store_dwordx4 v[{32+4*i}:{35+4*i}], v26, {sr(S_WS)}, s{44 + i // 2} offen offset:{1024*(i & 1)} {WT}")
    T3(a, "st")
    if "va" in OPT:
        a(f"v_mov_b32 v16, {val}\ns_waitcnt vmcnt(0)\ns_mov_b64 exec, 0xffff")
        a(f"buffer_atomic_add v16, v27, {sr(S_WS)}, s48 offen sc1\ns_mov_b64 exec, -1")
    else:
        a(f"s_mov_b32 s56, {val}\ns_waitcnt vmcnt(0)")
        for i in range(16): a(f"s_atomic_add s56, s[58:59], {(i & 7) * 8192 + (i >> 3) * 2048}")
    T3(a, "ack")
    T3(a, "atom"); T3.park(a)

def h_relay_setup(a):
    a(f"v_mov_b32 v2, {MISC}\nv_lshlrev_b32 v26, 4, v1\nv_add_u32 v24, {HST}, v26\nv_and_b32 v25, 3, v1\nv_lshl_add_u32 v25, v25, 2, v2")
    a(f"s_lshl_b32 s49, s{S_I}, 1\ns_mul_i32 s44, s49, 86\ns_lshl1_add_u32 s44, s{S_P}, s44\ns_lshl_b32 s44, s44, 10\ns_add_u32 s44, s44, {WS_H}")
    a(f"s_add_u32 s45, s44, {86*1024}\ns_add_u32 s46, s44, {32*86*1024}\ns_add_u32 s47, s46, {86*1024}")
    mbox_off(a, 48, 49)
    a(f"s_add_u32 s58, s{S_WS}, s48\ns_addc_u32 s59, s{S_WS+1}, 0")
    a("v_and_b32 v27, 7, v1\nv_lshlrev_b32 v27, 13, v27\nv_bfe_u32 v16, v1, 3, 1\nv_lshl_add_u32 v27, v16, 11, v27\nv_bfe_u32 v16, v1, 4, 1\nv_lshl_add_u32 v27, v16, 2, v27")

def h3_refill_setup(a):
    a("v_lshrrev_b32 v8, 3, v1\nv_and_b32 v9, 7, v1\nv_bfe_u32 v10, v1, 4, 1\nv_lshlrev_b32 v10, 2, v10\nv_xor_b32 v10, v10, v9")
    a("v_lshlrev_b32 v10, 4, v10\nv_lshl_add_u32 v28, v8, 10, v10")
    pair_table(a, 29, 8, 9)
    a(f"s_lshl_b32 s40, s{S_CJ}, 7\nv_lshlrev_b32 v29, 15, v29\nv_add_u32 v29, s40, v29")

def h3_refill(a):
    prev = None
    for c in H3C:
        slot, req = CELLS[("w", c)]
        ps_ = list(range(2 * c, min(2 * c + 2, 43)))
        for p in ps_: a(f"v_readlane_b32 s{44 + p % 2}, v29, {p}")
        a("s_nop 1")
        if prev is not None:
            ok = a.label("rf")
            a(f"s_cmp_ge_u32 s52, {req}\ns_cbranch_scc1 {ok}\ns_waitcnt vmcnt(0)\nv_mov_b32 v16, {prev + 1}\nds_write_b32 v25, v16 offset:{FL_FULL3 - MISC}")
            lds_wait_ge(a, 2, FL_FREE - MISC, req, 16, 52, 41, minof=4, sleep=LSL)
            a(f"{ok}:")
        else:
            lds_wait_ge(a, 2, FL_FREE - MISC, req, 16, 52, 41, minof=4, sleep=LSL)
        for p in ps_:
            for g in range(4):
                a(f"s_mov_b32 m0, {slot*SLOT + (p % 2)*4096 + g*1024}")
                if g: a(f"s_add_u32 s{44 + p % 2}, s{44 + p % 2}, 8192")
                a(f"buffer_load_dwordx4 v28, {sr(S_W2)}, s{44 + p % 2} offen lds")
        if prev is not None:
            a(f"s_waitcnt vmcnt({4 * len(ps_)})\nv_mov_b32 v16, {prev + 1}\nds_write_b32 v25, v16 offset:{FL_FULL3 - MISC}")
        prev = c
    if prev is not None:
        a(f"s_waitcnt vmcnt(0)\nv_mov_b32 v16, {prev + 1}\nds_write_b32 v25, v16 offset:{FL_FULL3 - MISC}")

def scalar_prefetch(a):
    a(f"s_lshl3_add_u32 s40, s2, s3\ns_and_b32 s41, s40, 1023\ns_mulk_i32 s41, {11*128}\ns_min_u32 s41, s41, {512*2752 - 11*128}")
    a(f"s_cmp_lt_u32 s40, 1024\ns_cselect_b64 s[42:43], s[{S_W1}:{S_W1+1}], s[{S_W3}:{S_W3+1}]\ns_add_u32 s42, s42, s41\ns_addc_u32 s43, s43, 0")
    for i in range(11): a(f"s_load_dword s82, s[42:43], {128*i}")

def w2_touch(a):
    a(f"v_mov_b32 v2, {MISC}")
    lds_wait_ge(a, 2, FL_FULL - MISC, W2T, 16, 40, 41, sleep=4)
    a(f"v_lshlrev_b32 v4, 7, v1\ns_lshr_b32 s42, s2, 3\ns_mul_i32 s42, s42, {344*128}")
    for i in range(6):
        if i == 5: a("s_mov_b64 exec, 0xffffff")
        a(f"buffer_load_dword v10, v4, {sr(S_W2)}, s42 offen\ns_add_u32 s42, s42, 8192")
    a("s_mov_b64 exec, -1")

W2T = 8
L3P = 31
gi = lambda k, d: int([o[len(k):] for o in OPT if o.startswith(k) and o[len(k):].isdigit()][0]) if any(o.startswith(k) and o[len(k):].isdigit() for o in OPT) else d
B0 = gi("b", 8)
R2 = gi("rr", 0)
ET = gi("et", 4)
LL2 = gi("ll", 1)
CK = gi("ck", 8)
CU = gi("cu", 0)
NCOPY = gi("nc", 256)
SPARSE = ET == B0
assert 2 * ET == B0 or SPARSE
HSJ = gi("hj", 10)
L2P = int([o[2:] for o in OPT if o.startswith("l2")][0]) if any(o.startswith("l2") for o in OPT) else 4
LR = 2 if "r2" in OPT else 1
PSTP = 13
L3TRY = (max(33 - B0 - R2, 18), 26) if "tr3" not in OPT else (21, 24, 27)
LA = 5 if "tr3" not in OPT else 3
GAPB = int([o[2:] for o in OPT if o.startswith("gb")][0]) if any(o.startswith("gb") for o in OPT) else 40
EPRIO = 2 if "ep2" in OPT else 0
DEPTH = gi("dp", 24)
DEPTH2 = int([o[2:] for o in OPT if o.startswith("d2")][0]) if any(o.startswith("d2") for o in OPT) else 16
NST = int([o[2:] for o in OPT if o.startswith("st")and o[2:].isdigit()][0]) if any(o.startswith("st") and o[2:].isdigit() for o in OPT) else 0
LSL = gi("ls", 2)
HV, HM = 256, 128
G1PRIO = gi("gp", 0)
KPRIO = 0 if "k0" in OPT else 3
LPRIO = 0 if "lp0" in OPT else 3
ZG = 3 if "zg" in OPT else 0
WG = 3 if ("wg" in OPT or "zg" in OPT) else 0
LGATE = gi("lg", 2)
XS = False
SF = WT

a = Asm()
a.begin_kernel(NAME)
a("s_cmp_ge_u32 s2, 0x100\ns_cbranch_scc1 k_end")
Stamps.at(a, 0)
if "dbgspan" in OPT or "fix" in OPT: a("s_memrealtime s[92:93]")
if Trace.on: a("s_memtime s[92:93]\ns_waitcnt lgkmcnt(0)")
a(f"s_load_dwordx2 s[{S_X}:{S_X+1}], s[0:1], 0\ns_load_dwordx2 s[{S_WR}:{S_WR+1}], s[0:1], 8\ns_load_dwordx2 s[{S_WI}:{S_WI+1}], s[0:1], 16")
a(f"s_load_dwordx8 s[72:79], s[0:1], 32\ns_load_dwordx2 s[{S_WS}:{S_WS+1}], s[0:1], 72\ns_load_dwordx2 s[{S_DBG}:{S_DBG+1}], s[0:1], 64")
code_prefetch(a, NAME, "k_end", 65536, 8, 255)
a("v_lshrrev_b32 v2, 6, v0\nv_and_b32 v1, 63, v0\nv_readfirstlane_b32 s3, v2")
a(f"s_mov_b32 s{S_X+2}, 0x200000\ns_mov_b32 s{S_X+3}, 0x20000")
ids_early(a)
a("s_cmp_ge_u32 s3, 4\ns_cbranch_scc1 k_helper")
x_setup(a)
x_setup_late(a)
TCH = bool(OPT & {"t1", "t2", "t3"})
if TCH: touch_setup(a)
a("s_waitcnt lgkmcnt(0)\ns_barrier")
TE = 7 if "te7" in OPT else 3
def first_touch(e):
    if e == 0 and TCH: a("s_bitcmp1_b32 s3, 0\ns_cselect_b64 s[12:13], s[74:75], s[72:73]")
    if e == TE and ("t1" in OPT or "t2" in OPT): touch_issue(a, 0)
    if e == TE and "t2" in OPT: touch_issue(a, 128)
x_issue(a, 0, first_touch)
a("s_branch k_main")
a("k_helper:")
a(f"s_setprio 3\ns_sub_u32 s{S_HW}, s3, 4")
a(f"v_lshlrev_b32 v4, 2, v1\nv_add_u32 v4, {MISC}, v4\nv_mov_b32 v5, 0\nds_write_b32 v4, v5")
a(f"s_mov_b32 s{S_WR+2}, {2048*514}\ns_mov_b32 s{S_WR+3}, s{S_X+3}\ns_mov_b64 s[{S_WI+2}:{S_WI+3}], s[{S_WR+2}:{S_WR+3}]")
row_setup(a, S_HW, 18*SLOT)
w_setup(a)
a("s_waitcnt lgkmcnt(0)\ns_barrier")
row_issue(a)
WO = gi("wo", 3)
a(f"s_cmp_lg_u32 s{S_HW}, {WO}\ns_cbranch_scc1 k_now")
w_issue(a, 17*SLOT, False)
a("k_now:")
ids_late(a)
Stamps.at(a, 1)
a(f"s_load_dword s{S_TAG}, s[80:81], 0\ns_sub_u32 s6, s{S_HW}, 1")
def wait_rows():
    a(f"s_waitcnt vmcnt(8)\ns_cmp_eq_u32 s{S_HW}, {WO}\ns_cbranch_scc1 k_rows\ns_waitcnt vmcnt(0)\nk_rows:")
row_compute(a, S_HW, wait_rows)
make_tag(a)
a(f"s_cmp_eq_u32 s{S_HW}, 0\ns_cbranch_scc1 k_loader")
a(f"s_cmp_lg_u32 s{S_HW}, 3\ns_cbranch_scc1 k_h12")
z_store_all(a, 18*SLOT, SF)
a(f"s_lshl_b32 s42, s2, 8\ns_add_u32 s42, s42, {MBOX + 128}\nv_mov_b32 v14, 0\nv_mov_b32 v15, 0\ns_mov_b64 exec, 1")
a(f"buffer_store_dwordx2 v[14:15], off, {sr(S_WS)}, s42 {WT}")
a(f"s_cmp_ge_u32 s2, 8\ns_cbranch_scc1 k_nocz\ns_lshl_b32 s42, s2, 7\ns_add_u32 s42, s42, {GCNT}\nbuffer_store_dword v14, off, {sr(S_WS)}, s42 {WT}\nk_nocz:\ns_mov_b64 exec, -1")
if WO == 3: w_store(a, 17*SLOT, SF, wait="s_waitcnt vmcnt(9)")
a("s_waitcnt vmcnt(0)")
wg_signal(a, FL_Z_CNT, 2 if WO == 1 else 1, 0, 12, 13, 14)
Stamps.at(a, 7)
a("s_setprio 0\ns_branch k_h3")

a("k_main:")
ids_late(a)
if "sp" in OPT: scalar_prefetch(a)
g1_main(a)
st = g2_main(a)
emit_stubs(a, st)

a(";@endseg")
a("k_h12:")
a(f"s_setprio {KPRIO}")
if "nocolE" in OPT:
    res_issue(a, 12, 11); a("s_branch k_fin")
Stamps.at(a, 7)
if WO == 1:
    a(f"s_cmp_lg_u32 s{S_HW}, 1\ns_cbranch_scc1 k_h2a")
    w_store(a, 17*SLOT, SF)
    a("k_h2a:")
    if "wf" not in OPT: col_mats(a, 6)
    a(f"s_cmp_lg_u32 s{S_HW}, 1\ns_cbranch_scc1 k_h2b\ns_waitcnt vmcnt(0)")
    wg_signal(a, FL_Z_CNT, 2, 0, 12, 13, 14)
    Stamps.at(a, 2)
    a("k_h2b:")
    if "wf" in OPT: col_mats(a, 6)
else:
    col_mats(a, 6)
col_twiddles(a, 6, S_COL, 2)
col_twiddles(a, 6, S_COL, 1)
col_addrs(a)
col_offsets(a, 6, S_COL)
Stamps.at(a, 8)
a(f"s_setprio {CPRIO}")
wait_go(a, 0)
Stamps.at(a, 9)
if "noz" not in OPT: col_z_loads(a, "" if "zp" in OPT else RD)
col_w_loads(a, RD)
if "nocol" not in OPT: (col_compute3(a, SF, lambda: None, 7) if "cc3" in OPT else col_compute4(a, SF))
Stamps.at(a, 11)
a(f"v_mov_b32 v2, {MISC}\nv_mov_b32 v3, 1")
a("s_waitcnt vmcnt(0)")
Stamps.at(a, 12)
wg_signal(a, FL_E_CNT, 2, 1, 2, 3, 14)
a(f"s_setprio {G1PRIO}")
irow_consts(a, 6)
res_issue(a, 12, 11)
a("v_and_b32 v4, 15, v1\nv_lshrrev_b32 v5, 4, v1\nv_lshl_add_u32 v6, v5, 6, v4\nv_lshlrev_b32 v6, 13, v6")
a(f"s_lshl_b32 s54, s6, 12\ns_lshl_b32 s40, s{S_T}, 7\ns_add_u32 s54, s54, s40\ns_lshl4_add_u32 s54, s{S_CJ}, s54\ns_add_u32 s54, s54, {WS_E}")
a("v_bfe_u32 v7, v1, 2, 2\nv_lshlrev_b32 v7, 8, v7\nv_lshl_add_u32 v7, v5, 6, v7\nv_and_b32 v8, 3, v1\nv_lshl_add_u32 v7, v8, 4, v7")
a(f"s_lshl3_add_u32 s55, s{S_T}, s{S_CJ}\ns_lshl1_add_u32 s55, s55, s6\ns_lshl_b32 s55, s55, 12\ns_add_u32 s55, s55, {WS_Y}")
a(f"v_lshlrev_b32 v8, 4, v1\ns_lshl_b32 s40, s6, 11\ns_add_u32 s40, s40, {XCH}\nv_add_u32 v8, s40, v8\nv_subrev_u32 v9, {XCH}, v8\nv_xor_b32 v9, 0x800, v9\nv_add_u32 v9, {XCH}, v9")
a(f"s_and_b32 s40, s2, 31\ns_lshl_b32 s40, s40, 8\ns_add_u32 s40, s40, {MBOX + 128}\ns_add_u32 s58, s{S_WS}, s40\ns_addc_u32 s59, s{S_WS+1}, 0")
a("s_mul_i32 s57, s6, 0x80008000")
Stamps.at(a, 13)
a(f"s_setprio {EPRIO}")
TH.start(a); TH(a, "waitE")
wait_go(a, 1)
TH(a, "goE")
Stamps.at(a, 14)
if gi("eg", 0): lds_wait_ge(a, 2, FL_FREE - MISC, gi("eg", 0), 120, 40, 41, minof=4, sleep=1)
irow_loads(a, 6, 54, RD)
irow_compute(a)
TH(a, "calc")
S0 = 68
for e in range(4):
    for p in range(2): a(f"v_cvt_pk_bf16_f32 v{84+2*e+p}, v{IY+8*e+4+2*p}, v{IY+8*e+5+2*p}")
a("ds_write_b128 v8, v[84:87]\nds_write_b128 v8, v[88:91] offset:1024")
a(f"s_mov_b64 exec, 1\nds_add_u32 v2, v3 offset:{FL_YX - MISC}\ns_mov_b64 exec, -1")
lds_wait_ge(a, 2, FL_YX - MISC, 2, 10, 40, 41)
a("ds_read_b128 v[84:87], v9\nds_read_b128 v[88:91], v9 offset:1024\ns_waitcnt lgkmcnt(0)")
for i in range(8): a(f"v_lshlrev_b32 v{S0+2*i}, 16, v{84+i}\nv_and_b32 v{S0+2*i+1}, 0xffff0000, v{84+i}")
for e in range(4):
    for r in range(4):
        k = IY + 8*e + r
        a(f"v_sub_f32 v{k+4}, v{k}, v{S0+4*e+r}\nv_add_f32 v{k}, v{k}, v{S0+4*e+r}")
for e in range(4):
    for p in range(4): a(f"v_cvt_pk_bf16_f32 v{84+4*e+p}, v{IY+8*e+2*p}, v{IY+8*e+2*p+1}")
    for p in (2, 3): a(f"v_xor_b32 v{84+4*e+p}, s57, v{84+4*e+p}")
for e in range(4):
    o = 84 + 4*e
    a(f"v_permlane16_swap_b32 v{o}, v{o+2}\nv_permlane16_swap_b32 v{o+1}, v{o+3}")
    a(f"buffer_store_dwordx4 v[{o}:{o+3}], v7, {sr(S_WS)}, s55 offen offset:{1024*e} {WT}")
a("v_lshrrev_b32 v4, 5, v1\nv_lshlrev_b32 v4, 13, v4\nv_bfe_u32 v5, v1, 3, 2\nv_lshl_add_u32 v4, v5, 10, v4\nv_and_b32 v5, 1, v1\nv_lshl_add_u32 v4, v5, 7, v4\nv_bfe_u32 v5, v1, 1, 2\nv_lshl_add_u32 v4, v5, 4, v4")
a(f"s_lshl_b32 s55, s{S_T}, 16\ns_lshr_b32 s40, s{S_CJ}, 2\ns_lshl_b32 s40, s40, 12\ns_add_u32 s55, s55, s40\ns_and_b32 s40, s{S_CJ}, 3\ns_lshl_b32 s40, s40, 8\ns_add_u32 s55, s55, s40")
a(f"s_lshl_b32 s40, s6, 6\ns_add_u32 s55, s55, s40\ns_add_u32 s55, s55, {WS_Y}\ns_lshl_b32 s54, s6, 12\ns_add_u32 s54, s54, {TA*SLOT}")
a(f"s_waitcnt vmcnt(0)\ns_mov_b64 exec, 1\nds_add_rtn_u32 v10, v2, v3 offset:{FL_YC - MISC}\ns_mov_b64 exec, -1\ns_waitcnt lgkmcnt(0)\nv_readfirstlane_b32 s40, v10")
a("s_cmp_eq_u32 s40, 0\ns_cbranch_scc1 k_ynp\ns_mov_b32 s56, 0x1000000")
for i in range(8): a(f"s_atomic_add s56, s[58:59], {8192*i}")
a("k_ynp:")
TH(a, "posted")
lds_wait_ge(a, 2, FL_FREE - MISC, TA_REQ, 16, 40, 41, minof=4, sleep=1)
a(f"s_mov_b32 s41, {GSPIN}\nk_yp:\ns_load_dword s53, s[{S_MB}:{S_MB+1}], 128 glc\ns_waitcnt lgkmcnt(0)\ns_bitcmp1_b32 s53, 27\n{'s_branch' if 'noY' in OPT else 's_cbranch_scc1'} k_yd\ns_sleep 1\ns_sub_u32 s41, s41, 1\ns_cbranch_scc0 k_yp\nk_yd:")
TH(a, "yrdy")
for g in range(4):
    a(f"s_add_u32 m0, s54, {1024*g}")
    if g: a("s_add_u32 s55, s55, 0x4000")
    a(f"buffer_load_dwordx4 v4, {sr(S_WS)}, s55 offen {RD} lds")
TH.park(a)
a("s_branch k_fin")

a(";@endseg")
a("k_h3:")
warm(a, ["m1", "m2", "ld2", "m3"])
a("s_mov_b32 s7, 32")
if "w2t" in OPT: w2_touch(a)
wait_go(a, 0)
h_relay_setup(a)
h3_refill_setup(a)
res_issue(a, 12, 11)
a("s_setprio 3")
T3.start(a)
h_relay(a, 1, 1)
Stamps.at(a, 9)
a(f"s_sub_u32 s49, s{S_NP}, 1\ns_lshl_b32 s49, s49, 11\ns_cmp_eq_u32 s{S_NP}, 2\ns_mov_b32 s50, 0x100\ns_cmov_b32 s50, 0x20100")
for i in range(4): a(f"s_add_u32 s{44+i}, s{44+i}, s49")
h_relay(a, 2, "s50")
Stamps.at(a, 10)
a("k_h3e:")
lv_poll(a, True)
Stamps.at(a, 14)
a("s_branch k_fin")

a("k_loader:")
loader(a)
a("k_ldend:")
res_issue(a, 12, 11)
a("k_fin:")
final_combine(a, 12, 11)
a("s_xor_b32 s40, s3, 5\ns_or_b32 s40, s40, s2\ns_cmp_lg_u32 s40, 0\ns_cbranch_scc1 k_dump")
a(f"s_mov_b32 s42, {GF_EPOCH}")
flag_store(a, 42, 0, 4)
a("k_dump:")
if "fix" in OPT:
    a("k_fx:\ns_memrealtime s[94:95]\ns_waitcnt lgkmcnt(0)\ns_sub_u32 s94, s94, s92\ns_cmp_lt_u32 s94, 4000\ns_cbranch_scc1 k_fx")
if "dbgspan" in OPT:
    a("s_waitcnt vmcnt(0)\ns_memrealtime s[94:95]\ns_waitcnt lgkmcnt(0)\ns_cmp_lg_u32 s3, 0\ns_cbranch_scc1 k_end")
    a("s_and_b32 s92, s92, 0xffffff\ns_and_b32 s94, s94, 0xffffff\ns_sub_u32 s93, 0xffffff, s92\ns_sub_u32 s95, s94, s92")
    for i, r in enumerate((93, 94, 92, 95)):
        a(f"s_atomic_umax s{r}, s[{S_DBG}:{S_DBG+1}], {16 + 4*i}")
    a("s_waitcnt lgkmcnt(0)")
if Stamps.on: a("s_waitcnt vmcnt(0)")
Stamps.dump(a, 0)
if Trace.on: a("s_waitcnt vmcnt(0)")
Trace.dump(a)
import json
if Trace.on: json.dump(Trace.names, open(sys.argv[1][:-2] + ".json", "w"))
a(";@endseg")
a("k_end:\ns_endpgm")
if "hop" in OPT: a("k_hopret:\ns_waitcnt lgkmcnt(0)\ns_setpc_b64 s[0:1]")
a.add_kernel(NAME, 256); a.add_launch(NAME, 256, 512, LDS_BYTES)
txt = a.text(header=HEADER, single=True)
if "hop" in OPT:
    txt, nh_ = hop_pass(txt, "k_hopret"); print("hop sites", nh_)
if "noal" not in OPT: txt, nw_, np_ = align_pass(txt)
txt = "\n".join(l for l in txt.split("\n") if not l.strip().startswith(";@"))
DOC = """; One persistent workgroup per CU, eight waves:
;   waves 0-3  gate/up GEMM + SwiGLU (x tile held in registers), then the down projection
;   waves 5-6  2048-point column filter (one frequency parity each), then the inverse row DFT
;   wave 7     spectrum / filter transposes, h hand-off, level relay
;   waves 4-7 first do the layernorm statistics and the 512-point row DFT of eight rows.
; Hand-offs between workgroups use write-through stores, counters and per-workgroup mailboxes.
"""
txt = txt.replace("; @launch", DOC + "; @launch", 1)
open(sys.argv[1], "w").write(txt)
print("nops", a.nops_added, CELLS if "v" in OPT else "")
```
